```python
import torch

def _softmax(x, axis=-1):
    return torch.softmax(x, dim=axis)
def _gelu(x):
    return torch.nn.functional.gelu(x, approximate="tanh")
def _silu(x):
    return torch.nn.functional.silu(x)
def _sigmoid(x):
    return torch.sigmoid(x)
def _layernorm(x, axis=-1, eps=1e-5):
    m = x.mean(dim=axis, keepdim=True)
    v = x.var(dim=axis, keepdim=True, unbiased=False)
    return (x - m) / torch.sqrt(v + eps)
def _scatter_add(tgt, idx, src, axis=0):
    return tgt.clone().index_add_(axis, idx, src)
def _segment_sum(src, seg, n):
    out = torch.zeros((n,) + src.shape[1:], dtype=src.dtype)
    return out.index_add_(0, seg, src)
def _pad(x, pw):
    flat = tuple(v for pair in reversed(pw) for v in pair)
    return torch.nn.functional.pad(x, flat)

kernel_name = 'recurrent_scan__gqa_block_cached__swiglu_ffn__decode'

def setup_inputs():

    _w = (lambda a: (lambda t: t.to(torch.bfloat16) if t.is_floating_point() else t)(torch.as_tensor(a)))
    def _A_setup():
        B, Sq, D = 1, 1, 512
        Hq, Hkv, Sk, Dh = 32, 8, 32768, 128
        assert Hq % Hkv == 0, (Hq, Hkv)
        return {
            "x": _w((lambda *s: torch.randn(*s, dtype=torch.bfloat16) * 0.05)(B, Sq, D)),
            "k_cache": _w((lambda *s: torch.randn(*s, dtype=torch.bfloat16) * 0.8)(B, Hkv, Sk, Dh)),
            "v_cache": _w((lambda *s: torch.randn(*s, dtype=torch.bfloat16) * 0.8)(B, Hkv, Sk, Dh)),
            "wq": _w((lambda *s: torch.randn(*s, dtype=torch.bfloat16) * 0.8)(D, Hq * Dh) * (D ** -0.5)),
            "wo": _w((lambda *s: torch.randn(*s, dtype=torch.bfloat16) * 0.8)(Hq * Dh, D) * ((Hq * Dh) ** -0.5)),
        }
    _A_in = _A_setup()

    def _B_setup():
        B, S, D, F = 1, 1, 512, 1792
        return {
            "x": _w((lambda *s: torch.randn(*s, dtype=torch.bfloat16) * 0.05)(B, S, D)),
            "w_gate": _w((lambda *s: torch.randn(*s, dtype=torch.bfloat16) * 0.2)(D, F)),
            "w_up": _w((lambda *s: torch.randn(*s, dtype=torch.bfloat16) * 0.2)(D, F)),
            "w_down": _w((lambda *s: torch.randn(*s, dtype=torch.bfloat16) * 0.2)(F, D)),
        }
    _B_in = _B_setup()

    return {
        "A_x": _A_in["x"],
        "A_k_cache": _A_in["k_cache"],
        "A_v_cache": _A_in["v_cache"],
        "A_wq": _A_in["wq"],
        "A_wo": _A_in["wo"],
        "B_x": _B_in["x"],
        "B_w_gate": _B_in["w_gate"],
        "B_w_up": _B_in["w_up"],
        "B_w_down": _B_in["w_down"],
    }

def reference(A_x, A_k_cache, A_v_cache, A_wq, A_wo, B_x, B_w_gate, B_w_up, B_w_down):
    def _A_ref(x, k_cache, v_cache, wq, wo):
        B, Sq, D = x.shape
        Hq, Dh = 32, 128
        Hkv = k_cache.shape[1]
        rep = Hq // Hkv
        q = (lambda x, *d: x.permute(*d))((x @ wq).reshape(B, Sq, Hq, Dh), 0, 2, 1, 3)
        k = (lambda x, n, axis: torch.repeat_interleave(x, n, dim=axis))(k_cache, rep, axis=1)
        v = (lambda x, n, axis: torch.repeat_interleave(x, n, dim=axis))(v_cache, rep, axis=1)
        scores = torch.einsum("bhqd,bhkd->bhqk", q, k) * (Dh ** -0.5)
        p = _softmax(scores, axis=-1)
        o = torch.einsum("bhqk,bhkd->bhqd", p, v)
        return (lambda x, *d: x.permute(*d))(o, 0, 2, 1, 3).reshape(B, Sq, Hq * Dh) @ wo

    def _B_ref(x, w_gate, w_up, w_down):
        g = _silu(x @ w_gate)
        u = x @ w_up
        return (g * u) @ w_down

    x = A_x
    xn = _layernorm(x, axis=-1)
    s = _A_ref(xn, A_k_cache, A_v_cache, A_wq, A_wo)
    g = _silu(_B_ref(xn, B_w_gate, B_w_up, B_w_down))
    return x + s * g
```

```python
import re

def regs_of(op):
    op = op.strip()
    if op.startswith('-'): op = op[1:]
    m = re.fullmatch(r'abs\((.*)\)', op)
    if m: op = m.group(1)
    m = re.fullmatch(r'([vsa])(\d+)', op)
    if m: return {(m.group(1), int(m.group(2)))}
    m = re.fullmatch(r'([vsa])\[(\d+):(\d+)\]', op)
    if m: return {(m.group(1), i) for i in range(int(m.group(2)), int(m.group(3)) + 1)}
    if op in ('vcc', 'vcc_lo', 'vcc_hi'): return {('s', 'vcc')}
    if op in ('exec', 'exec_lo', 'exec_hi'): return {('s', 'exec')}
    if op == 'm0': return {('s', 'm0')}
    return set()

TRANS = ('v_exp_f32', 'v_log_f32', 'v_rcp_f32', 'v_rsq_f32', 'v_sqrt_f32', 'v_sin_f32', 'v_cos_f32')

class Ins:
    def __init__(self, text):
        self.text = text
        t = text.split(';')[0].strip()
        self.label = t.endswith(':'); self.dir = t.startswith('.') or t == ''
        self.mn = ''; self.w = set(); self.r = set(); self.kind = 'other'; self.states = 1
        if self.label or self.dir:
            self.states = 0; return
        parts = t.split(None, 1)
        mn = self.mn = parts[0]
        rest = parts[1] if len(parts) > 1 else ''
        ops = [o.strip() for o in re.split(r',(?![^\[]*\])', rest)] if rest else []
        if ops:
            last = ops[-1].split()
            mods = last[1:]; ops[-1] = last[0] if last else ''
        else: mods = []
        self.ops = ops; self.mods = mods
        R = [regs_of(o) for o in ops]
        self.dpp = mn.endswith('_dpp')
        if mn == 's_nop':
            self.states = int(ops[0]) + 1
        elif mn.startswith('v_mfma'):
            self.kind = 'mfma'; self.w = R[0]; self.ab = R[1] | R[2]; self.c = R[3]; self.r = self.ab | self.c
            self.passes = 8 if '32x32' in mn else 4
        elif mn.startswith('v_'):
            self.kind = 'valu'
            base = mn.replace('_dpp', '').replace('_e32', '').replace('_e64', '')
            self.base = base
            self.trans = base in TRANS
            if 'permlane' in mn:
                self.w = R[0] | R[1]; self.r = R[0] | R[1]
            elif base.startswith(('v_add_co', 'v_sub_co', 'v_addc_co', 'v_subb_co')):
                self.w = R[0] | R[1]; self.r = set().union(*R[2:])
            else:
                self.w = R[0]; self.r = set().union(*R[1:]) if len(R) > 1 else set()
                if self.dpp or base.startswith(('v_fmac', 'v_dot2c', 'v_writelane')): self.r |= R[0]
            if base.startswith('v_cmpx'): self.w |= {('s', 'exec')}
        elif mn.startswith(('buffer_', 'global_')):
            self.kind = 'vmem'
            self.store = 'store' in mn or ('atomic' in mn)
            self.wide = mn.endswith(('x3', 'x4'))
            allr = set().union(*R)
            if 'lds' in mods: self.r = allr
            elif mn.startswith('buffer_'):
                if self.store: self.r = allr; self.data = R[0]
                else: self.w = R[0]; self.r = set().union(*R[1:])
            else:
                if self.store: self.r = allr; self.data = R[1]
                else: self.w = R[0]; self.r = set().union(*R[1:])
        elif mn.startswith('ds_'):
            self.kind = 'ds'
            if mn.startswith(('ds_read', 'ds_bpermute', 'ds_permute', 'ds_swizzle')) or '_rtn' in mn:
                self.w = R[0]; self.r = set().union(*R[1:])
            else: self.r = set().union(*R)
        elif mn.startswith('s_'):
            self.kind = 'salu'
            if mn.startswith(('s_cmp', 's_bitcmp', 's_cbranch', 's_branch', 's_waitcnt', 's_barrier', 's_sleep', 's_setprio', 's_endpgm')):
                self.r = set().union(*R) if R else set()
            elif R:
                self.w = R[0]; self.r = set().union(*R[1:]) if len(R) > 1 else set()

def isv(x): return x[0] in ('v', 'a')
def need(p, c):
    n = 0
    if p.kind == 'valu':
        wv = {x for x in p.w if isv(x)}; ws = {x for x in p.w if not isv(x)}
        if c.kind == 'valu':
            if wv & c.r:
                if c.dpp or 'permlane' in c.mn: n = max(n, 2)
                if c.base.startswith(('v_readlane', 'v_readfirstlane')): n = max(n, 1)
                if p.trans and not c.trans: n = max(n, 1)
            if ws & c.r: n = max(n, 4 if c.base.startswith(('v_readlane', 'v_writelane')) else 2)
            if ('s', 'vcc') in ws and c.base.startswith('v_cndmask'): n = max(n, 2)
            if ('s', 'exec') in ws: n = max(n, 5)
        if c.kind == 'mfma':
            if wv & c.r: n = max(n, 2)
            if ('s', 'exec') in ws: n = max(n, 4)
        if c.kind == 'vmem' and ws & c.r: n = max(n, 5)
        if c.kind in ('vmem', 'ds') and p.trans and wv & c.r: n = max(n, 1)
        if c.kind == 'salu' and ws & c.r: n = max(n, 1)
    if p.kind == 'mfma':
        big = {4: 8, 8: 12}[p.passes]; ovl = {4: 6, 8: 10}[p.passes]; war = {4: 3, 8: 7}[p.passes]
        if c.kind == 'mfma':
            if p.w & c.ab: n = max(n, big)
            if p.w & c.c and p.w != c.c: n = max(n, ovl)
            if p.w & c.w and p.w != c.c: n = max(n, big)
        elif c.kind in ('valu', 'vmem', 'ds'):
            if p.w & (c.r | c.w): n = max(n, big)
            if c.kind == 'valu' and p.c & c.w: n = max(n, war)
    if p.kind == 'vmem' and getattr(p, 'store', False) and p.wide:
        if c.kind == 'valu' and p.data & c.w: n = max(n, 2)
        elif p.data & c.w: n = max(n, 1)
    if p.kind == 'salu' and ('s', 'm0') in p.w and c.kind == 'vmem' and 'lds' in c.mods: n = max(n, 1)
    return n

class Asm:
    def __init__(self): self.L = []
    def __call__(self, s):
        for line in s.split('\n'):
            line = line.strip()
            if line: self.L.append(line)
    def finalize(self):
        out = []
        nn = 0
        for t in self.L:
            c = Ins(t)
            if not (c.label or c.dir):
                dist = 0; req = 0
                for p in reversed(out):
                    if p.label or p.dir: continue
                    if p.mn in ('s_branch', 's_endpgm'): break
                    k = need(p, c)
                    if k - dist > req: req = k - dist
                    dist += p.states
                    if dist >= 12: break
                if req > 0:
                    out.append(Ins(f's_nop {req - 1}')); nn += 1
            out.append(c)
        return '\n'.join(('' if (i.label or i.text.startswith(';')) else '    ') + i.text for i in out) + '\n'
```

```python
import sys
from asmlib import Asm
KN = "recurrent_scan__gqa_block_cached__swiglu_ffn__decode_kernel"

EPOCH = 0
QBOX, MLBOX = 0x1000, 0x5000
HBOX1, FBOX, HBOX2 = 0x10000, 0x100000, 0x180000
WS_USED = 0x200000
STAMP = 128 << 20
L_QFLAG, L_MLCNT, L_FFLAG = 0, 4, 8
L_ML, L_F, L_Q, L_O = 64, 320, 512, 2048
LDS_BYTES = 2048 + 16384
SPIN = 1 << 16

LOG2E = 0x3fb8aa3b
SCALE = 0x3db504f3
EPS = 0x3727c5ac

def v(i, n=1): return f"v{i}" if n == 1 else f"v[{i}:{i+n-1}]"
def s(i, n=1): return f"s{i}" if n == 1 else f"s[{i}:{i+n-1}]"

S_WG, S_WAVE = 2, 3
P_X, P_K, P_V, P_WQ, P_WO, P_BX, P_WG, P_WU, P_WD, P_OUT, P_DBG, P_WS = range(4, 28, 2)
R0, R1, R2, R3, R4 = 28, 32, 36, 40, 44
S_H, S_S = 48, 49
S_T0, S_T1, S_T2, S_T3 = 50, 51, 52, 53
S_HI, S_TM, S_LO, S_HIS = 54, 55, 56, 57
S_CNT, S_E = 58, 59
S_M = 60
S_ST = 76

class G:
    def __init__(self, D=4, il=12, kvpol="nt", wqpol="", wpol="nt", diag=0, pf=1, wo_wait=1, ffn_wait=0, outpol="sc1", prio=1):
        self.__dict__.update(locals()); del self.__dict__['self']
        self.a = Asm(); self.nlab = 0; self.nst = 0
    def lab(self, p):
        self.nlab += 1; return f"L{p}{self.nlab}"
    def srd(self, r, ptr, size):
        a = self.a
        a(f"s_mov_b32 {s(r)}, {s(ptr)}"); a(f"s_mov_b32 {s(r+1)}, {s(ptr+1)}")
        a(f"s_mov_b32 {s(r+2)}, {size:#x}"); a(f"s_mov_b32 {s(r+3)}, 0x20000")
    def stamp(self, k):
        if self.diag: self.a(f"s_memrealtime {s(S_ST+2*k,2)}")
    def stamps_out(self, vt):
        if not self.diag: return
        a = self.a
        a("s_getreg_b32 s98, hwreg(HW_REG_XCC_ID)")
        a("s_waitcnt lgkmcnt(0)")
        a(f"s_mul_i32 {s(S_T0)}, {s(S_WG)}, 12"); a(f"s_add_u32 {s(S_T0)}, {s(S_T0)}, {s(S_WAVE)}")
        a(f"s_lshl_b32 {s(S_T0)}, {s(S_T0)}, 6"); a(f"s_add_u32 {s(S_T0)}, {s(S_T0)}, {STAMP:#x}")
        a("s_mov_b64 exec, 1")
        a(f"v_mov_b32 {v(vt)}, {s(S_T0)}")
        for k in range(12):
            a(f"v_mov_b32 {v(vt+1)}, {s(S_ST+2*k)}")
            a(f"global_store_dword {v(vt)}, {v(vt+1)}, {s(P_WS,2)} offset:{4*k}")
        a("s_waitcnt vmcnt(0)")
    def unpack(self, lo, hi, src):
        self.a(f"v_lshlrev_b32 {v(lo)}, 16, {v(src)}"); self.a(f"v_and_b32 {v(hi)}, {s(S_HI)}, {v(src)}")
    def rbf1(self, dst, src):
        self.a(f"v_cvt_pk_bf16_f32 {v(dst)}, {v(src)}, {v(src)}"); self.a(f"v_and_b32 {v(dst)}, {s(S_HI)}, {v(dst)}")
    def rbf2(self, d0, d1, s0, s1, t):
        self.a(f"v_cvt_pk_bf16_f32 {v(t)}, {v(s0)}, {v(s1)}"); self.unpack(d0, d1, t)
    def ror(self, op, regs, steps):
        for n in steps:
            for r in regs: self.a(f"{op}_dpp {v(r)}, {v(r)}, {v(r)} row_ror:{n} row_mask:0xf bank_mask:0xf")
    def rows_all(self, op, x, t):
        a = self.a
        for sw in ("v_permlane16_swap_b32", "v_permlane32_swap_b32"):
            a(f"v_mov_b32 {v(t)}, {v(x)}"); a(f"{sw} {v(x)}, {v(t)}"); a(f"{op} {v(x)}, {v(x)}, {v(t)}")
    def fold(self, sw, pairs):
        for x, y in pairs: self.a(f"{sw} {v(x)}, {v(y)}")
        for x, y in pairs: self.a(f"v_add_f32 {v(x)}, {v(x)}, {v(y)}")
    def silu_bf(self, dst, x, t):
        a = self.a
        a(f"v_mul_f32 {v(t)}, {0x80000000 ^ LOG2E:#x}, {v(x)}"); a(f"v_exp_f32 {v(t)}, {v(t)}")
        a(f"v_add_f32 {v(t)}, 1.0, {v(t)}"); a(f"v_rcp_f32 {v(t)}, {v(t)}"); a(f"v_mul_f32 {v(t)}, {v(x)}, {v(t)}")
        self.rbf1(dst, t)
    def layernorm(self, X, XF, T):
        a = self.a
        for k in range(4): self.unpack(XF+2*k, XF+2*k+1, X+k)
        a(f"v_add_f32 {v(T)}, {v(XF)}, {v(XF+1)}")
        for k in range(2, 8): a(f"v_add_f32 {v(T)}, {v(T)}, {v(XF+k)}")
        self.ror("v_add_f32", [T], (8, 4, 2, 1)); self.rows_all("v_add_f32", T, T+1)
        a(f"v_mul_f32 {v(T)}, 0x3b000000, {v(T)}")
        a(f"v_sub_f32 {v(T+2)}, {v(XF)}, {v(T)}"); a(f"v_mul_f32 {v(T+3)}, {v(T+2)}, {v(T+2)}")
        for k in range(1, 8):
            a(f"v_sub_f32 {v(T+2)}, {v(XF+k)}, {v(T)}"); a(f"v_fmac_f32 {v(T+3)}, {v(T+2)}, {v(T+2)}")
        self.ror("v_add_f32", [T+3], (8, 4, 2, 1)); self.rows_all("v_add_f32", T+3, T+1)
        a(f"v_mul_f32 {v(T+3)}, 0x3b000000, {v(T+3)}")
        self.rbf2(T, T+3, T, T+3, T+1)
        a(f"v_add_f32 {v(T+3)}, {EPS:#x}, {v(T+3)}"); self.rbf1(T+3, T+3)
        a(f"v_sqrt_f32 {v(T+3)}, {v(T+3)}"); self.rbf1(T+3, T+3)
        a(f"v_rcp_f32 {v(T+2)}, {v(T+3)}")
        for k in range(8): a(f"v_sub_f32 {v(XF+k)}, {v(XF+k)}, {v(T)}")
        for k in range(4): self.rbf2(XF+2*k, XF+2*k+1, XF+2*k, XF+2*k+1, T+1)
        for k in range(8):
            a(f"v_mul_f32 {v(T+4)}, {v(XF+k)}, {v(T+2)}")
            a(f"v_fma_f32 {v(T+5)}, -{v(T+4)}, {v(T+3)}, {v(XF+k)}")
            a(f"v_fma_f32 {v(XF+k)}, {v(T+5)}, {v(T+2)}, {v(T+4)}")
        for k in range(4): self.rbf2(XF+2*k, XF+2*k+1, XF+2*k, XF+2*k+1, T+1)
    def tag(self, regs, vT, dst=None):
        for i, r in enumerate(regs):
            d = r if dst is None else dst[i]
            self.a(f"v_bfi_b32 {v(d)}, {s(S_TM)}, {v(vT)}, {v(r)}")
    def poll(self, loads, words, vT, t):
        a = self.a; L = self.lab("poll"); Lo = self.lab("pollx")
        a(f"s_mov_b32 {s(S_CNT)}, {SPIN}")
        a(f"{L}:")
        for ld in loads: a(ld)
        a("s_waitcnt vmcnt(0)")
        a(f"v_xor_b32 {v(t)}, {v(words[0])}, {v(vT)}")
        for w in words[1:]: a(f"v_bitop3_b32 {v(t)}, {v(w)}, {v(vT)}, {v(t)} bitop3:0xbe")
        a(f"v_and_b32 {v(t)}, {s(S_TM)}, {v(t)}")
        a(f"v_cmp_ne_u32 vcc, 0, {v(t)}")
        a(f"s_sub_u32 {s(S_CNT)}, {s(S_CNT)}, 1")
        a(f"s_cbranch_scc1 {Lo}")
        a("s_mov_b64 exec, vcc")
        a(f"s_cbranch_execnz {L}")
        a(f"{Lo}:")
        a("s_mov_b64 exec, -1")
    def lds_wait(self, off, val, vz, t, extra=()):
        a = self.a; L = self.lab("lw"); Lo = self.lab("lwx")
        a(f"s_mov_b32 {s(S_CNT)}, {SPIN*16}")
        a(f"{L}:")
        a(f"ds_read_b32 {v(t)}, {v(vz)} offset:{off}")
        for e in extra: a(e)
        a("s_waitcnt lgkmcnt(0)")
        a(f"v_readfirstlane_b32 {s(S_T3)}, {v(t)}")
        a(f"s_cmp_eq_u32 {s(S_T3)}, {val}")
        a(f"s_cbranch_scc1 {Lo}")
        a(f"s_sub_u32 {s(S_CNT)}, {s(S_CNT)}, 1")
        a(f"s_cbranch_scc1 {Lo}")
        a("s_sleep 1")
        a(f"s_branch {L}")
        a(f"{Lo}:")
    def epoch_load(self, vt, vz):
        self.a(f"buffer_load_dword {v(vt)}, {v(vz)}, {s(R0,4)}, 0 offen offset:{EPOCH} sc1")
    def epoch_tag(self, vT):
        a = self.a
        a(f"v_add_u32 {v(vT)}, 1, {v(vT)}"); a(f"v_readfirstlane_b32 {s(S_E)}, {v(vT)}")
        a(f"v_and_b32 {v(vT)}, {s(S_TM)}, {v(vT)}")
    def streamer(self):
        a = self.a; D = self.D
        VK, VV, VZ, VT, VT2 = 1, 2, 3, 4, 5
        Q, S, DT, KB = 8, 12, 20, 36
        slot = lambda i: KB + 4*i
        ACC, AO, F, B = slot(16), slot(18), slot(22), slot(23)
        SB = S_T0
        a(f"s_lshl_b32 {s(SB)}, {s(S_H)}, 23"); a(f"s_lshl_b32 {s(S_T1)}, {s(S_S)}, 18"); a(f"s_or_b32 {s(SB)}, {s(SB)}, {s(S_T1)}")
        a(f"s_lshl_b32 {s(S_T1)}, {s(S_WAVE)}, {self.il}"); a(f"s_or_b32 {s(SB)}, {s(SB)}, {s(S_T1)}")
        a(f"v_lshlrev_b32 {v(VV)}, 4, v0")
        a(f"v_and_b32 {v(VK)}, 0x3c0, {v(VV)}")
        a(f"v_and_b32 {v(VT)}, 0xc0, {v(VK)}"); a(f"v_lshlrev_b32 {v(VT)}, 2, {v(VT)}")
        a(f"v_lshrrev_b32 {v(VK)}, 8, {v(VK)}"); a(f"v_lshlrev_b32 {v(VK)}, 6, {v(VK)}")
        a(f"v_and_b32 {v(VT2)}, 0x30, {v(VV)}")
        a(f"v_or3_b32 {v(VK)}, {v(VK)}, {v(VT)}, {v(VT2)}")
        a(f"v_mov_b32 {v(VZ)}, 0")
        a("s_waitcnt lgkmcnt(0)")
        self.srd(R0, P_K, 0x4000000); self.srd(R1, P_V, 0x4000000)
        def off(i):
            if self.il == 12: return (i >> 2) * 32768, (i & 3) * 1024
            return i * 8192, 0
        last_so = [None]
        def load(n):
            t, i = divmod(n, 32)
            so, imm = off(i)
            if so != last_so[0]:
                a(f"s_add_u32 {s(S_T1)}, {s(SB)}, {so}"); last_so[0] = so
            sl = slot(i) if t == 0 else slot(i % 16)
            a(f"buffer_load_dwordx4 {v(sl,4)}, {v(VV if t else VK)}, {s(R1 if t else R0,4)}, {s(S_T1)} offen offset:{imm} {self.kvpol}")
        def qk(j):
            for m in range(4):
                a(f"v_mfma_f32_16x16x32_bf16 {v(DT+4*m,4)}, {v(slot(4*j+m),4)}, {v(Q,4)}, 0")
            for k in range(1, 4):
                for m in range(4):
                    b = (m + k) & 3
                    other = DT+4*m+m if k == 1 else S+j
                    a(f"v_add_f32_dpp {v(S+j)}, {v(DT+4*m+b)}, {v(other)} row_ror:{(4*(m-b)) & 15} row_mask:0xf bank_mask:{1<<m:#x}")
        def softmax():
            a(f"s_mov_b32 {s(S_T2)}, {SCALE:#x}")
            for k in range(4):
                x, y = S+2*k, S+2*k+1
                self.rbf2(x, y, x, y, VT)
                a(f"v_mul_f32 {v(x)}, {s(S_T2)}, {v(x)}"); a(f"v_mul_f32 {v(y)}, {s(S_T2)}, {v(y)}")
                self.rbf2(x, y, x, y, VT)
            M, Lr = DT, DT+1
            a(f"v_max3_f32 {v(M)}, {v(S)}, {v(S+1)}, {v(S+2)}"); a(f"v_max3_f32 {v(M)}, {v(M)}, {v(S+3)}, {v(S+4)}")
            a(f"v_max3_f32 {v(M)}, {v(M)}, {v(S+5)}, {v(S+6)}"); a(f"v_max_f32 {v(M)}, {v(M)}, {v(S+7)}")
            self.ror("v_max_f32", [M], (4, 8)); self.rows_all("v_max_f32", M, VT)
            a(f"s_mov_b32 {s(S_T2)}, {LOG2E:#x}")
            for k in range(8): a(f"v_sub_f32 {v(S+k)}, {v(S+k)}, {v(M)}")
            for k in range(8): a(f"v_mul_f32 {v(S+k)}, {s(S_T2)}, {v(S+k)}")
            for k in range(8): a(f"v_exp_f32 {v(S+k)}, {v(S+k)}")
            a(f"v_add_f32 {v(Lr)}, {v(S)}, {v(S+1)}")
            for k in range(2, 8): a(f"v_add_f32 {v(Lr)}, {v(Lr)}, {v(S+k)}")
            self.ror("v_add_f32", [Lr], (4, 8)); self.rows_all("v_add_f32", Lr, VT)
            a(f"s_lshl_b32 {s(S_T2)}, {s(S_WAVE)}, 5")
            a(f"v_lshl_add_u32 {v(VT)}, v0, 2, {s(S_T2)}"); a(f"v_mov_b32 {v(VT2)}, 1")
            a("s_mov_b64 exec, 15")
            a(f"ds_write2_b32 {v(VT)}, {v(M)}, {v(Lr)} offset0:{L_ML//4} offset1:{L_ML//4+4}")
            a("s_mov_b64 exec, 1")
            a(f"ds_add_u32 {v(VZ)}, {v(VT2)} offset:{L_MLCNT}")
            a("s_mov_b64 exec, -1")
            for r in range(ACC, ACC+8): a(f"v_mov_b32 {v(r)}, 0")
            for r in range(AO, AO+16): a(f"v_mov_b32 {v(r)}, 0")
        def build_a(j):
            a(f"v_cvt_pk_bf16_f32 {v(VT)}, {v(S+2*j)}, {v(S+2*j+1)}")
            for m in range(4):
                for e in range(4):
                    n = (4*(e-m)) & 15
                    ctl = f"row_ror:{n}" if n else "quad_perm:[0,1,2,3]"
                    a(f"v_mov_b32_dpp {v(AO+4*e+m)}, {v(VT)} {ctl} row_mask:0xf bank_mask:{1<<e:#x}")
        def perm1(j, m, e):
            lo, hi = slot((8*j+m) % 16), slot((8*j+4+m) % 16)
            a(f"v_perm_b32 {v(B+4*e+m)}, {v(hi+(e>>1))}, {v(lo+(e>>1))}, {s(S_HIS if e & 1 else S_LO)}")
        def mfma_pv(e):
            acc = ACC + 4*(e >> 2)
            a(f"v_mfma_f32_16x16x32_bf16 {v(acc,4)}, {v(AO+4*(e&3),4)}, {v(B+4*e,4)}, {v(acc,4)}")
        def pv_last(j):
            order = [0, 4, 1, 5, 2, 6, 3, 7]
            for k in range(3): perm1(j, 3, order[k])
            for k in range(8):
                mfma_pv(order[k])
                if k + 3 < 8: perm1(j, 3, order[k+3])
        n0 = 24 + D
        tasks = {}
        def at(n, f): tasks.setdefault(n, []).append(f)
        def qwait():
            a(f"v_and_b32 {v(VT2)}, 3, v0"); a(f"v_lshlrev_b32 {v(VT2)}, 8, {v(VT2)}")
            a(f"v_and_b32 {v(VT)}, 0xc0, {v(VV)}"); a(f"v_lshrrev_b32 {v(VT)}, 2, {v(VT)}")
            a(f"v_and_b32 {v(DT)}, 0x300, {v(VV)}"); a(f"v_lshrrev_b32 {v(DT)}, 2, {v(DT)}")
            a(f"v_or3_b32 {v(VT2)}, {v(VT2)}, {v(VT)}, {v(DT)}")
            self.stamp(2)
            self.lds_wait(L_QFLAG, 1, VZ, VT, [f"ds_read_b128 {v(Q,4)}, {v(VT2)} offset:{L_Q}"])
            self.stamp(3)
        at(n0, qwait)
        for j in range(8): at(n0 + j, lambda j=j: qk(j))
        at(n0 + 7, softmax)
        def fwait():
            a(f"s_lshl_b32 {s(S_T2)}, {s(S_WAVE)}, 4")
            a(f"v_and_b32 {v(VT2)}, 3, v0"); a(f"v_lshl_add_u32 {v(VT2)}, {v(VT2)}, 2, {s(S_T2)}")
            a(f"v_mov_b32 {v(DT+1)}, {s(S_T2)}")
            self.stamp(5)
            self.lds_wait(L_FFLAG, 1, VZ, VT, [f"ds_read_b128 {v(F,4)}, {v(DT+1)} offset:{L_F}", f"ds_read_b32 {v(DT)}, {v(VT2)} offset:{L_F}"])
            self.stamp(6)
            for E in range(2):
                for h in range(4): a(f"v_mul_f32 {v(ACC+4*E+h)}, {v(F+h)}, {v(ACC+4*E+h)}")
            a(f"v_mul_f32 {v(S+6)}, {v(DT)}, {v(S+6)}"); a(f"v_mul_f32 {v(S+7)}, {v(DT)}, {v(S+7)}")
        for j in range(4):
            base = 32 + 8*j + 4 + D
            if j == 3: at(base, fwait)
            at(base, lambda j=j: build_a(j))
            for m in range(3): at(base + m, lambda j=j, m=m: [perm1(j, m, e) for e in range(8)])
            at(base + 3, lambda j=j: pv_last(j))
        for n in range(64 + D):
            if n < 64:
                if n >= D: a(f"s_waitcnt vmcnt({D-1})")
                load(n)
                if n == D - 1:
                    a(f"s_mov_b32 {s(S_HI)}, 0xffff0000"); a(f"s_mov_b32 {s(S_LO)}, 0x05040100"); a(f"s_mov_b32 {s(S_HIS)}, 0x07060302")
                    a("s_barrier")
                if n == D: self.stamp(1)
                if n == 32 + D: self.stamp(4)
            else:
                a(f"s_waitcnt vmcnt({63 + D - n})")
                if n == 63 + D: self.stamp(7)
            for f in tasks.get(n, []): f()
        a(f"s_lshl_b32 {s(S_T2)}, {s(S_WAVE)}, 11")
        a(f"v_add_u32 {v(VT)}, {s(S_T2)}, {v(VV)}")
        a(f"ds_write_b128 {v(VT)}, {v(ACC,4)} offset:{L_O}")
        a(f"ds_write_b128 {v(VT)}, {v(ACC+4,4)} offset:{L_O+1024}")
        a("s_waitcnt lgkmcnt(0)")
        a("s_barrier")
        self.stamp(8)
        self.stamps_out(VT)
        a("s_endpgm")

    def consts(self):
        a = self.a
        a(f"s_mov_b32 {s(S_HI)}, 0xffff0000"); a(f"s_mov_b32 {s(S_TM)}, 0xfff")
        a(f"s_mov_b32 {s(S_LO)}, 0x05040100"); a(f"s_mov_b32 {s(S_HIS)}, 0x07060302")

    def sw0(self):
        a = self.a
        VZ, VT, VA, T, X, XF, XR, ACC, W = 1, 2, 3, 4, 12, 16, 24, 40, 48
        a(f"v_mov_b32 {v(VZ)}, 0"); a(f"v_lshlrev_b32 {v(VA)}, 4, v0")
        a(f"v_lshrrev_b32 {v(T)}, 1, v0"); a(f"v_lshlrev_b32 {v(T)}, 17, {v(T)}")
        a(f"v_and_b32 {v(T+1)}, 16, {v(VA)}"); a(f"v_or_b32 {v(T)}, {v(T)}, {v(T+1)}")
        a(f"s_lshl_b32 {s(S_T0)}, {s(S_H)}, 10"); a(f"s_lshl_b32 {s(S_T1)}, {s(S_S)}, 5"); a(f"s_add_u32 {s(S_T0)}, {s(S_T0)}, {s(S_T1)}")
        a("s_waitcnt lgkmcnt(0)")
        self.srd(R0, P_WS, WS_USED); self.srd(R1, P_X, 1024); self.srd(R2, P_WQ, 0x400000)
        a(f"buffer_load_dwordx4 {v(X,4)}, {v(VA)}, {s(R1,4)}, 0 offen")
        self.epoch_load(VT, VZ)
        for j in range(16):
            a(f"buffer_load_dwordx4 {v(W+4*j,4)}, {v(T)}, {s(R2,4)}, {s(S_T0)} offen {self.wqpol}")
            if j < 15: a(f"s_add_u32 {s(S_T0)}, {s(S_T0)}, 8192")
        a(f"v_mov_b32 {v(T+2)}, 0"); a(f"v_mov_b32 {v(T+3)}, 0")
        a(f"ds_write_b64 {v(VZ)}, {v(T+2,2)} offset:0"); a(f"ds_write_b64 {v(VZ)}, {v(T+2,2)} offset:8")
        a("s_waitcnt lgkmcnt(0)"); a("s_barrier")
        a("s_waitcnt vmcnt(17)")
        self.stamp(1)
        self.layernorm(X, XF, T)
        for j in range(16):
            p = "[0,0,2,2]" if j < 8 else "[1,1,3,3]"
            a(f"v_mov_b32_dpp {v(XR+j)}, {v(XF+(j&7))} quad_perm:{p} row_mask:0xf bank_mask:0xf")
        for j in range(16):
            a(f"s_waitcnt vmcnt({15-j})")
            if j == 0: self.epoch_tag(VT)
            for k in range(4):
                self.unpack(T, T+1, W+4*j+k)
                op = "v_mul_f32" if j == 0 else "v_fmac_f32"
                a(f"{op} {v(ACC+2*k)}, {v(XR+j)}, {v(T)}"); a(f"{op} {v(ACC+2*k+1)}, {v(XR+j)}, {v(T+1)}")
        self.stamp(2)
        self.fold("v_permlane32_swap_b32", [(ACC+e, ACC+e+4) for e in range(4)])
        self.fold("v_permlane16_swap_b32", [(ACC+e, ACC+e+2) for e in range(2)])
        self.ror("v_add_f32", [ACC, ACC+1], (8, 4, 2))
        a(f"v_cvt_pk_bf16_f32 {v(T)}, {v(ACC)}, {v(ACC+1)}")
        a(f"v_lshl_or_b32 {v(T+2)}, {v(T)}, 16, {v(VT)}"); a(f"v_and_or_b32 {v(T+3)}, {v(T)}, {s(S_HI)}, {v(VT)}")
        a(f"v_and_b32 {v(T)}, 1, v0"); a(f"v_lshlrev_b32 {v(T)}, 5, {v(T)}")
        a(f"v_lshrrev_b32 {v(T+1)}, 4, v0"); a(f"v_lshl_add_u32 {v(T)}, {v(T+1)}, 3, {v(T)}")
        a(f"s_lshl_b32 {s(S_T0)}, {s(S_H)}, 11"); a(f"s_add_u32 {s(S_T0)}, {s(S_T0)}, {QBOX:#x}")
        a(f"s_lshl_b32 {s(S_T1)}, {s(S_S)}, 6"); a(f"s_add_u32 {s(S_T1)}, {s(S_T1)}, {s(S_T0)}")
        a("s_mov_b32 exec_lo, 0x30003"); a("s_mov_b32 exec_hi, 0x30003")
        a(f"buffer_store_dwordx2 {v(T+2,2)}, {v(T)}, {s(R0,4)}, {s(S_T1)} offen sc1")
        a("s_mov_b64 exec, -1")
        self.poll([f"buffer_load_dwordx4 {v(W,4)}, {v(VA)}, {s(R0,4)}, {s(S_T0)} offen sc1",
                   f"buffer_load_dwordx4 {v(W+4,4)}, {v(VA)}, {s(R0,4)}, {s(S_T0)} offen offset:1024 sc1"],
                  list(range(W, W+8)), VT, T)
        for k in range(4): a(f"v_perm_b32 {v(XF+k)}, {v(W+2*k+1)}, {v(W+2*k)}, {s(S_HIS)}")
        a(f"v_lshlrev_b32 {v(T)}, 3, v0"); a(f"v_mov_b32 {v(T+1)}, 1")
        a(f"ds_write_b64 {v(T)}, {v(XF,2)} offset:{L_Q}"); a(f"ds_write_b64 {v(T)}, {v(XF+2,2)} offset:{L_Q+512}")
        a("s_waitcnt lgkmcnt(0)")
        a(f"ds_write_b32 {v(VZ)}, {v(T+1)} offset:{L_QFLAG}")
        self.stamp(3)
        MW, LW, M, L, MA, LA, MB, LB = XF, XF+1, XF+2, XF+3, W, W+1, W+2, W+3
        a(f"v_and_b32 {v(T)}, 28, v0"); a(f"v_lshlrev_b32 {v(T)}, 3, {v(T)}")
        a(f"v_and_b32 {v(T+2)}, 3, v0"); a(f"v_lshl_add_u32 {v(T)}, {v(T+2)}, 2, {v(T)}")
        self.lds_wait(L_MLCNT, 8, VZ, T+1, [f"ds_read2_b32 {v(MW,2)}, {v(T)} offset0:{L_ML//4} offset1:{L_ML//4+4}"])
        self.stamp(4)
        a(f"s_mov_b32 {s(S_T2)}, {LOG2E:#x}")
        a(f"v_mov_b32 {v(M)}, {v(MW)}")
        self.ror("v_max_f32", [M], (4, 8))
        a(f"v_mov_b32 {v(T)}, {v(M)}"); a(f"v_permlane16_swap_b32 {v(M)}, {v(T)}"); a(f"v_max_f32 {v(M)}, {v(M)}, {v(T)}")
        a(f"v_sub_f32 {v(L)}, {v(MW)}, {v(M)}"); a(f"v_mul_f32 {v(L)}, {s(S_T2)}, {v(L)}"); a(f"v_exp_f32 {v(L)}, {v(L)}")
        a(f"v_mul_f32 {v(L)}, {v(L)}, {v(LW)}")
        self.ror("v_add_f32", [L], (4, 8))
        a(f"v_mov_b32 {v(T)}, {v(L)}"); a(f"v_permlane16_swap_b32 {v(L)}, {v(T)}"); a(f"v_add_f32 {v(L)}, {v(L)}, {v(T)}")
        self.tag([M, L], VT)
        a(f"v_lshlrev_b32 {v(T)}, 3, v0")
        a(f"s_lshl_b32 {s(S_T0)}, {s(S_H)}, 10"); a(f"s_add_u32 {s(S_T0)}, {s(S_T0)}, {MLBOX:#x}")
        a(f"s_lshl_b32 {s(S_T1)}, {s(S_S)}, 5"); a(f"s_add_u32 {s(S_T1)}, {s(S_T1)}, {s(S_T0)}")
        a("s_mov_b64 exec, 15")
        a(f"buffer_store_dwordx2 {v(M,2)}, {v(T)}, {s(R0,4)}, {s(S_T1)} offen sc1")
        a("s_mov_b64 exec, -1")
        self.poll([f"buffer_load_dwordx2 {v(MA,2)}, {v(T)}, {s(R0,4)}, {s(S_T0)} offen sc1",
                   f"buffer_load_dwordx2 {v(MB,2)}, {v(T)}, {s(R0,4)}, {s(S_T0)} offen offset:512 sc1"],
                  [MA, LA, MB, LB], VT, T+1)
        a(f"v_and_b32 {v(MA)}, {s(S_HI)}, {v(MA)}"); a(f"v_and_b32 {v(MB)}, {s(S_HI)}, {v(MB)}")
        a(f"v_max_f32 {v(M)}, {v(MA)}, {v(MB)}")
        self.ror("v_max_f32", [M], (4, 8)); self.rows_all("v_max_f32", M, T)
        for r in (MA, MB, MW): a(f"v_sub_f32 {v(r)}, {v(r)}, {v(M)}")
        for r in (MA, MB, MW): a(f"v_mul_f32 {v(r)}, {s(S_T2)}, {v(r)}")
        for r in (MA, MB, MW): a(f"v_exp_f32 {v(r)}, {v(r)}")
        a(f"v_mul_f32 {v(L)}, {v(MA)}, {v(LA)}"); a(f"v_fmac_f32 {v(L)}, {v(MB)}, {v(LB)}")
        self.ror("v_add_f32", [L], (4, 8)); self.rows_all("v_add_f32", L, T)
        a(f"v_rcp_f32 {v(L)}, {v(L)}"); a(f"v_mul_f32 {v(MW)}, {v(MW)}, {v(L)}")
        a(f"v_and_b32 {v(T)}, 31, v0"); a(f"v_lshlrev_b32 {v(T)}, 2, {v(T)}"); a(f"v_mov_b32 {v(T+1)}, 1")
        a(f"ds_write_b32 {v(T)}, {v(MW)} offset:{L_F}")
        a("s_waitcnt lgkmcnt(0)")
        a(f"ds_write_b32 {v(VZ)}, {v(T+1)} offset:{L_FFLAG}")
        a("s_waitcnt lgkmcnt(0)")
        self.stamp(5)
        self.stamps_out(T)
        a("s_endpgm")

    def sw1(self):
        a = self.a
        VZ, VT, VA, T, X, XF, AG, AU, W, O = 1, 2, 3, 4, 12, 16, 24, 32, 40, 136
        XC, GC = 10, 11
        WG_, WU_, WD_ = W, W+32, W+64
        a(f"v_mov_b32 {v(VZ)}, 0"); a(f"v_lshlrev_b32 {v(VA)}, 4, v0")
        a(f"v_mul_u32_u24 {v(T)}, {8*3584}, v0")
        a(f"s_lshr_b32 {s(S_T0)}, {s(S_H)}, 1"); a(f"s_mul_i32 {s(S_T0)}, {s(S_T0)}, 448")
        a(f"s_and_b32 {s(S_T1)}, {s(S_H)}, 1"); a(f"s_lshl_b32 {s(S_T2)}, {s(S_T1)}, 8"); a(f"s_add_u32 {s(S_T0)}, {s(S_T0)}, {s(S_T2)}")
        a(f"s_lshl_b32 {s(S_T2)}, {s(S_S)}, 3"); a(f"s_add_u32 {s(S_T0)}, {s(S_T0)}, {s(S_T2)}")
        a(f"s_lshl_b32 {s(S_T1)}, {s(S_T1)}, 3"); a(f"s_sub_u32 {s(S_T1)}, 32, {s(S_T1)}")
        a(f"s_lshr_b32 {s(S_M)}, {s(S_WG)}, 6"); a(f"s_lshl_b32 {s(S_M)}, {s(S_M)}, 8")
        a(f"s_and_b32 {s(S_M+1)}, {s(S_WG)}, 8"); a(f"s_lshl_b32 {s(S_M+1)}, {s(S_M+1)}, 4"); a(f"s_add_u32 {s(S_M)}, {s(S_M)}, {s(S_M+1)}")
        a(f"s_and_b32 {s(S_M+1)}, {s(S_WG)}, 48"); a(f"s_lshl_b32 {s(S_M+1)}, {s(S_M+1)}, 1"); a(f"s_add_u32 {s(S_M)}, {s(S_M)}, {s(S_M+1)}")
        a(f"s_and_b32 {s(S_M+1)}, {s(S_WG)}, 7"); a(f"s_add_u32 {s(S_M)}, {s(S_M)}, {s(S_M+1)}"); a(f"s_lshl_b32 {s(S_M)}, {s(S_M)}, 1")
        a(f"v_and_b32 {v(GC)}, 48, v0"); a(f"v_add_u32 {v(GC)}, {s(S_M)}, {v(GC)}")
        a("s_waitcnt lgkmcnt(0)")
        self.srd(R0, P_WS, WS_USED); self.srd(R1, P_X, 1024)
        self.srd(R2, P_WG, 0x1c0000); self.srd(R3, P_WU, 0x1c0000); self.srd(R4, P_WD, 0x1c0000)
        a(f"s_cmp_lt_u32 {s(S_S)}, {s(S_T1)}")
        a(f"s_cselect_b32 {s(R2+2)}, 0x1c0000, 0"); a(f"s_mov_b32 {s(R3+2)}, {s(R2+2)}"); a(f"s_mov_b32 {s(R4+2)}, {s(R2+2)}")
        a(f"buffer_load_dwordx4 {v(X,4)}, {v(VA)}, {s(R1,4)}, 0 offen")
        self.epoch_load(VT, VZ)
        a(f"buffer_load_ushort {v(XC)}, {v(GC)}, {s(R1,4)}, 0 offen")
        a(f"v_mov_b32 {v(O+8)}, {v(GC)}")
        a("s_barrier")
        if self.ffn_wait: self.lds_wait(L_QFLAG, 1, VZ, T+1)
        a(f"s_lshl_b32 {s(S_T1)}, {s(S_T0)}, 1")
        for j in range(8):
            a(f"buffer_load_dwordx4 {v(WG_+4*j,4)}, {v(T)}, {s(R2,4)}, {s(S_T1)} offen {self.wqpol}")
            a(f"buffer_load_dwordx4 {v(WU_+4*j,4)}, {v(T)}, {s(R3,4)}, {s(S_T1)} offen {self.wqpol}")
            if j < 7: a(f"s_add_u32 {s(S_T1)}, {s(S_T1)}, 3584")
        a(f"s_lshl_b32 {s(S_T1)}, {s(S_T0)}, 10")
        for e in range(8):
            if e == 4: a(f"s_add_u32 {s(S_T1)}, {s(S_T1)}, 4096")
            a(f"buffer_load_dwordx4 {v(WD_+4*e,4)}, {v(VA)}, {s(R4,4)}, {s(S_T1)} offen offset:{1024*(e&3)} {self.wpol}")
        a("s_waitcnt vmcnt(24)")
        self.stamp(1)
        self.layernorm(X, XF, T)
        self.epoch_tag(VT)
        for j in range(8):
            for (w, acc, cnt) in ((WG_, AG, 23-2*j), (WU_, AU, 22-2*j)):
                a(f"s_waitcnt vmcnt({cnt})")
                for k in range(4):
                    self.unpack(T, T+1, w+4*j+k)
                    op = "v_mul_f32" if j == 0 else "v_fmac_f32"
                    a(f"{op} {v(acc+2*k)}, {v(XF+j)}, {v(T)}"); a(f"{op} {v(acc+2*k+1)}, {v(XF+j)}, {v(T+1)}")
        self.fold("v_permlane32_swap_b32", [(b+e, b+e+4) for b in (AG, AU) for e in range(4)])
        self.fold("v_permlane16_swap_b32", [(b+e, b+e+2) for b in (AG, AU) for e in range(2)])
        self.ror("v_add_f32", [AG, AG+1, AU, AU+1], (8, 4, 2, 1))
        self.rbf2(AG, AG+1, AG, AG+1, T); self.rbf2(AU, AU+1, AU, AU+1, T)
        self.silu_bf(AG, AG, T); self.silu_bf(AG+1, AG+1, T)
        a(f"v_mul_f32 {v(AG)}, {v(AG)}, {v(AU)}"); a(f"v_mul_f32 {v(AG+1)}, {v(AG+1)}, {v(AU+1)}")
        self.rbf2(AG, AG+1, AG, AG+1, T)
        for e in range(8): a(f"v_readlane_b32 {s(S_M+e)}, {v(AG+(e&1))}, {16*(e>>1)}")
        for e in range(8):
            a(f"s_waitcnt vmcnt({7-e})")
            for k in range(4):
                self.unpack(T, T+1, WD_+4*e+k)
                op = "v_mul_f32" if e == 0 else "v_fmac_f32"
                a(f"{op} {v(AU+2*k)}, {s(S_M+e)}, {v(T)}"); a(f"{op} {v(AU+2*k+1)}, {s(S_M+e)}, {v(T+1)}")
        for c in range(4):
            msk = (~(0x11111111 << c)) & 0xffffffff
            a(f"s_mov_b32 vcc_lo, {msk:#x}"); a(f"s_mov_b32 vcc_hi, {msk:#x}")
            for hf in range(2):
                for q in range(4):
                    if c == 0:
                        a(f"v_mov_b32_dpp {v(O+4*hf+q)}, {v(AU+4*hf)} quad_perm:[{q},{q},{q},{q}] row_mask:0xf bank_mask:0xf")
                    else:
                        a(f"v_cndmask_b32_dpp {v(O+4*hf+q)}, {v(AU+4*hf+c)}, {v(O+4*hf+q)}, vcc quad_perm:[{q},{q},{q},{q}] row_mask:0xf bank_mask:0xf")
        self.tag(range(O, O+8), VT)
        a(f"v_and_b32 {v(T)}, 32, v0"); a(f"v_lshlrev_b32 {v(T)}, 1, {v(T)}")
        a(f"v_and_b32 {v(T+1)}, 12, v0"); a(f"v_lshl_add_u32 {v(T)}, {v(T+1)}, 2, {v(T)}")
        a(f"v_and_b32 {v(T+1)}, 16, v0"); a(f"v_lshrrev_b32 {v(T+1)}, 1, {v(T+1)}"); a(f"v_and_b32 {v(T+2)}, 3, v0")
        a(f"v_or3_b32 {v(T)}, {v(T)}, {v(T+1)}, {v(T+2)}"); a(f"v_lshlrev_b32 {v(T)}, 12, {v(T)}")
        a(f"s_lshl_b32 {s(S_T0)}, {s(S_WG)}, 4"); a(f"s_add_u32 {s(S_T0)}, {s(S_T0)}, {FBOX:#x}"); a(f"s_add_u32 {s(S_T1)}, {s(S_T0)}, 16384")
        a(f"buffer_store_dwordx4 {v(O,4)}, {v(T)}, {s(R0,4)}, {s(S_T0)} offen sc1")
        a(f"buffer_store_dwordx4 {v(O+4,4)}, {v(T)}, {s(R0,4)}, {s(S_T1)} offen sc1")
        self.stamp(2)
        Lx = self.lab("sw1end")
        a(f"s_cmp_ge_u32 {s(S_WG)}, 128"); a(f"s_cbranch_scc1 {Lx}")
        def gather(box):
            a(f"s_lshl_b32 {s(S_T0)}, {s(S_WG)}, 12"); a(f"s_add_u32 {s(S_T0)}, {s(S_T0)}, {box:#x}")
            self.poll([f"buffer_load_dwordx4 {v(W+4*j,4)}, {v(VA)}, {s(R0,4)}, {s(S_T0)} offen offset:{1024*j} sc1" for j in range(4)],
                      list(range(W, W+16)), VT, T)
            for x, y in ((0, 4), (8, 12), (0, 8)):
                a(f"v_pk_add_f32 {v(W+x,2)}, {v(W+x,2)}, {v(W+y,2)}"); a(f"v_pk_add_f32 {v(W+x+2,2)}, {v(W+x+2,2)}, {v(W+y+2,2)}")
            self.fold("v_permlane32_swap_b32", [(W, W+2), (W+1, W+3)])
            self.fold("v_permlane16_swap_b32", [(W, W+1)])
            self.ror("v_add_f32", [W], (8, 4, 2, 1))
            self.rbf1(W, W)
        gather(FBOX)
        self.silu_bf(GC, W, T)
        a(f"v_lshlrev_b32 {v(XC)}, 16, {v(XC)}")
        self.srd(R1, P_OUT, 1024)
        self.stamp(3)
        a("s_barrier")
        self.stamp(4)
        gather(HBOX2)
        self.stamp(5)
        a(f"v_mul_f32 {v(W)}, {v(W)}, {v(GC)}"); self.rbf1(W, W)
        a(f"v_add_f32 {v(W)}, {v(W)}, {v(XC)}"); a(f"v_cvt_pk_bf16_f32 {v(W)}, {v(W)}, {v(W)}")
        a("s_mov_b32 exec_lo, 0x10001"); a("s_mov_b32 exec_hi, 0x10001")
        a(f"buffer_store_short {v(W)}, {v(O+8)}, {s(R1,4)}, 0 offen {self.outpol}")
        a(f"s_cmp_lg_u32 {s(S_WG)}, 0"); a(f"s_cbranch_scc1 {Lx}")
        a("s_mov_b64 exec, 1")
        a(f"v_mov_b32 {v(T)}, {s(S_E)}")
        a(f"buffer_store_dword {v(T)}, {v(VZ)}, {s(R0,4)}, 0 offen offset:{EPOCH} sc1")
        a(f"{Lx}:")
        if self.diag: a("s_waitcnt vmcnt(0)")
        self.stamp(6)
        self.stamps_out(T)
        a("s_endpgm")

    def sw23(self):
        a = self.a
        VZ, VT, VA, VP, VO, VH, T, W, AO, DD = 1, 2, 3, 4, 5, 6, 8, 16, 48, 80
        SZ = S_M + 15
        a(f"s_and_b32 {s(SZ)}, {s(S_WAVE)}, 1")
        a(f"v_mov_b32 {v(VZ)}, 0"); a(f"v_lshlrev_b32 {v(VA)}, 4, v0")
        if self.pf:
            Lp = self.lab("nopf")
            a(f"s_cmp_ge_u32 {s(S_S)}, {self.pf}"); a(f"s_cbranch_scc1 {Lp}")
            a(f"s_getpc_b64 {s(R4,2)}")
            a(f"Lpc:")
            a(f"s_sub_u32 {s(R4)}, {s(R4)}, Lpc-{KN}"); a(f"s_subb_u32 {s(R4+1)}, {s(R4+1)}, 0")
            a(f"s_mov_b32 {s(R4+2)}, Lcode_end-{KN}"); a(f"s_mov_b32 {s(R4+3)}, 0x20000")
            a(f"s_lshl_b32 {s(S_T0)}, {s(SZ)}, 13")
            for k in range(8):
                if k == 4: a(f"s_add_u32 {s(S_T0)}, {s(S_T0)}, 4096")
                a(f"buffer_load_dwordx4 {v(DD+4*k,4)}, {v(VA)}, {s(R4,4)}, {s(S_T0)} offen offset:{1024*(k&3)}")
            a(f"{Lp}:")
        a(f"v_lshrrev_b32 {v(T)}, 4, v0"); a(f"v_lshlrev_b32 {v(T)}, 13, {v(T)}")
        a(f"v_and_b32 {v(T+1)}, 0xf0, {v(VA)}"); a(f"v_or_b32 {v(T)}, {v(T)}, {v(T+1)}")
        a(f"s_and_b32 {s(S_T0)}, {s(S_S)}, 3"); a(f"s_lshl_b32 {s(S_T0)}, {s(S_T0)}, 5")
        a(f"s_lshr_b32 {s(S_T1)}, {s(S_S)}, 4"); a(f"s_lshl_b32 {s(S_T1)}, {s(S_T1)}, 2"); a(f"s_add_u32 {s(S_T0)}, {s(S_T0)}, {s(S_T1)}")
        a(f"s_bfe_u32 {s(S_T1)}, {s(S_S)}, 0x20002"); a(f"s_add_u32 {s(S_T0)}, {s(S_T0)}, {s(S_T1)}"); a(f"s_lshl_b32 {s(S_T0)}, {s(S_T0)}, 10")
        a(f"s_lshl_b32 {s(S_T1)}, {s(S_H)}, 19"); a(f"s_add_u32 {s(S_T0)}, {s(S_T0)}, {s(S_T1)}")
        a(f"s_lshl_b32 {s(S_T1)}, {s(SZ)}, 9"); a(f"s_add_u32 {s(S_T0)}, {s(S_T0)}, {s(S_T1)}")
        a(f"v_and_b32 {v(VP)}, 15, v0"); a(f"v_lshlrev_b32 {v(VP)}, 6, {v(VP)}"); a(f"v_and_b32 {v(T+1)}, 48, v0"); a(f"v_or_b32 {v(VP)}, {v(VP)}, {v(T+1)}")
        a(f"v_lshrrev_b32 {v(VO)}, 2, v0"); a(f"v_lshlrev_b32 {v(VO)}, 11, {v(VO)}"); a(f"v_and_b32 {v(T+1)}, 48, {v(VA)}"); a(f"v_or_b32 {v(VO)}, {v(VO)}, {v(T+1)}")
        a(f"v_lshlrev_b32 {v(VH)}, 12, v0")
        a("s_waitcnt lgkmcnt(0)")
        self.srd(R0, P_WS, WS_USED); self.srd(R1, P_WO, 0x400000)
        self.epoch_load(VT, VZ)
        a("s_barrier")
        if self.wo_wait: self.lds_wait(L_QFLAG, 1, VZ, T+1)
        for h in range(4):
            for hf in range(2):
                a(f"buffer_load_dwordx4 {v(W+8*h+4*hf,4)}, {v(T)}, {s(R1,4)}, {s(S_T0)} offen offset:{256*hf} {self.wpol}")
            if h < 3: a(f"s_add_u32 {s(S_T0)}, {s(S_T0)}, 0x20000")
        for t in range(1, 8):
            m = (3 << (2*t)) * 0x10001
            a(f"s_mov_b32 {s(S_M+2*t-2)}, {m:#x}"); a(f"s_mov_b32 {s(S_M+2*t-1)}, {m:#x}")
        a("s_mov_b32 vcc_lo, 0x55555555"); a("s_mov_b32 vcc_hi, 0x55555555")
        a(f"s_lshl_b32 {s(S_T0)}, {s(S_H)}, 16"); a(f"s_add_u32 {s(S_T0)}, {s(S_T0)}, {HBOX1:#x}")
        a(f"s_lshl_b32 {s(S_T1)}, {s(S_S)}, 11"); a(f"s_add_u32 {s(S_T1)}, {s(S_T1)}, {s(S_T0)}")
        a(f"s_lshl_b32 {s(S_T2)}, {s(SZ)}, 15"); a(f"s_add_u32 {s(S_T0)}, {s(S_T0)}, {s(S_T2)}")
        a(f"s_lshl_b32 {s(S_T2)}, {s(S_S)}, 6"); a(f"s_add_u32 {s(S_T0)}, {s(S_T0)}, {s(S_T2)}")
        a(f"s_lshl_b32 {s(S_T2)}, {s(SZ)}, 18"); a(f"s_add_u32 {s(S_T2)}, {s(S_T2)}, {HBOX2:#x}")
        a(f"s_lshl_b32 {s(R2)}, {s(S_WG)}, 4"); a(f"s_add_u32 {s(S_T2)}, {s(S_T2)}, {s(R2)}")
        a(f"s_lshl_b32 {s(R2)}, {s(SZ)}, 10")
        a(f"v_add_u32 {v(VA)}, {s(R2)}, {v(VA)}")
        a("s_waitcnt vmcnt(0)")
        self.epoch_tag(VT)
        for t in range(8):
            hf, k = t >> 2, t & 3
            for x, (sel, h0) in enumerate(((S_LO, 0), (S_LO, 2), (S_HIS, 0), (S_HIS, 2))):
                a(f"v_perm_b32 {v(AO+4*t+x)}, {v(W+8*(h0+1)+4*hf+k)}, {v(W+8*h0+4*hf+k)}, {s(sel)}")
        self.stamp(1)
        a("s_barrier")
        self.stamp(2)
        for w in range(8): a(f"ds_read_b128 {v(W+4*w,4)}, {v(VA)} offset:{L_O+2048*w}")
        for w in range(1, 8):
            a(f"s_waitcnt lgkmcnt({7-w})" if not self.diag else "s_waitcnt lgkmcnt(0)")
            a(f"v_pk_add_f32 {v(W,2)}, {v(W,2)}, {v(W+4*w,2)}"); a(f"v_pk_add_f32 {v(W+2,2)}, {v(W+2,2)}, {v(W+4*w+2,2)}")
        self.tag(range(W, W+4), VT)
        a(f"buffer_store_dwordx4 {v(W,4)}, {v(VO)}, {s(R0,4)}, {s(S_T0)} offen sc1")
        self.stamp(3)
        PA, PB = W+8, W+12
        a(f"s_mov_b64 {s(R3,2)}, vcc")
        self.poll([f"buffer_load_dwordx4 {v(PA,4)}, {v(VP)}, {s(R0,4)}, {s(S_T1)} offen sc1",
                   f"buffer_load_dwordx4 {v(PB,4)}, {v(VP)}, {s(R0,4)}, {s(S_T1)} offen offset:1024 sc1"],
                  list(range(PA, PA+8)), VT, T)
        self.stamp(4)
        a(f"v_pk_add_f32 {v(PA,2)}, {v(PA,2)}, {v(PB,2)}"); a(f"v_pk_add_f32 {v(PA+2,2)}, {v(PA+2,2)}, {v(PB+2,2)}")
        self.ror("v_add_f32", range(PA, PA+4), (8, 4, 2, 1))
        a(f"v_cvt_pk_bf16_f32 {v(T)}, {v(PA)}, {v(PA+1)}"); a(f"v_cvt_pk_bf16_f32 {v(T+1)}, {v(PA+2)}, {v(PA+3)}")
        a(f"v_cndmask_b32 {v(PB)}, 0, {v(T)}, {s(R3,2)}"); a(f"v_cndmask_b32 {v(PB+1)}, 0, {v(T+1)}, {s(R3,2)}")
        a(f"v_cndmask_b32 {v(PB+2)}, {v(T)}, 0, {s(R3,2)}"); a(f"v_cndmask_b32 {v(PB+3)}, {v(T+1)}, 0, {s(R3,2)}")
        def sel(t):
            for r in range(4): a(f"v_cndmask_b32 {v(DD+r)}, {v(DD+r)}, {v(DD+4*t+r)}, {s(S_M+2*t-2,2)}")
        for t in range(8):
            a(f"v_mfma_f32_16x16x32_bf16 {v(DD+4*t,4)}, {v(AO+4*t,4)}, {v(PB,4)}, 0")
            if t >= 4: sel(t - 3)
        for t in range(5, 8): sel(t)
        self.tag(range(DD, DD+4), VT)
        a(f"buffer_store_dwordx4 {v(DD,4)}, {v(VH)}, {s(R0,4)}, {s(S_T2)} offen sc1")
        self.stamp(5)
        if self.diag: a("s_waitcnt vmcnt(0)")
        self.stamp(6)
        self.stamps_out(T)
        a("s_endpgm")

    def build(self):
        a = self.a
        hdr = open("recurrent_scan__gqa_block_cached__swiglu_ffn__decode.s.ref").read().split("; @launch")[0]
        a(f'.amdgcn_target "amdgcn-amd-amdhsa--gfx950"')
        a(".text"); a(f".globl {KN}"); a(".p2align 8"); a(f".type {KN},@function"); a(f"{KN}:")
        a(f"s_load_dwordx16 {s(4,16)}, s[0:1], 0"); a(f"s_load_dwordx8 {s(20,8)}, s[0:1], 64")
        a("s_cmp_ge_u32 s2, 256"); a("s_cbranch_scc1 Lend")
        if self.diag:
            for k in range(1, 12): a(f"s_mov_b32 {s(S_ST+2*k)}, 0")
        self.stamp(0)
        a("v_lshrrev_b32 v1, 6, v0"); a("v_and_b32 v0, 63, v0"); a(f"v_readfirstlane_b32 {s(S_WAVE)}, v1")
        a(f"s_and_b32 {s(S_H)}, s2, 7"); a(f"s_lshr_b32 {s(S_S)}, s2, 3")
        a(f"s_cmp_ge_u32 {s(S_WAVE)}, 8"); a("s_cbranch_scc1 Lservice")
        self.streamer()
        a("Lservice:")
        if self.prio: a("s_setprio 3")
        self.consts()
        a(f"s_cmp_eq_u32 {s(S_WAVE)}, 9"); a("s_cbranch_scc1 Lsw1")
        a(f"s_cmp_gt_u32 {s(S_WAVE)}, 9"); a("s_cbranch_scc1 Lsw23")
        self.sw0()
        a("Lsw23:"); self.sw23()
        a("Lsw1:"); self.sw1()
        a("Lend:"); a("s_endpgm")
        a("Lcode_end:")
        a(".fill 64, 4, 0xbf800000")
        a('.section .rodata,"a"'); a(".p2align 6"); a(f".amdhsa_kernel {KN}")
        for d in ("next_free_vgpr 168", "next_free_sgpr 102", "accum_offset 168", "group_segment_fixed_size 0", "kernarg_size 96",
                  "user_sgpr_count 2", "user_sgpr_kernarg_segment_ptr 1", "system_sgpr_workgroup_id_x 1", "float_denorm_mode_32 3"):
            a(f".amdhsa_{d}")
        a(".end_amdhsa_kernel")
        return hdr + f"; @launch grid=(256,1,1) block=(768,1,1) lds={LDS_BYTES}\n" + a.finalize()

def gen(**kw): return G(**kw).build()
if __name__ == "__main__":
    kw = eval("dict(" + (sys.argv[2] if len(sys.argv) > 2 else "") + ")")
    open(sys.argv[1], "w").write(gen(**kw))
```

```python
import sys
from asmlib import Asm
KN = "recurrent_scan__gqa_block_cached__swiglu_ffn__decode_kernel"

EPOCH = 0
QBOX, MLBOX, GBOX = 0x1000, 0x9000, 0x90000
HBOX1, FBOX, HBOX2 = 0x10000, 0x100000, 0x180000
WS_USED = 0x200000
STAMP = 128 << 20
L_QFLAG, L_MLCNT, L_FFLAG, L_S1CNT = 0, 4, 8, 12
L_ML, L_F, L_Q, L_S1, L_O = 64, 320, 512, 1536, 2560
LDS_BYTES = 2560 + 16384
SPIN = 1 << 16

LOG2E = 0x3fb8aa3b
SCALE = 0x3db504f3
EPS = 0x3727c5ac

def v(i, n=1): return f"v{i}" if n == 1 else f"v[{i}:{i+n-1}]"
def s(i, n=1): return f"s{i}" if n == 1 else f"s[{i}:{i+n-1}]"

S_WG, S_WAVE = 2, 3
P_X, P_K, P_V, P_WQ, P_WO, P_BX, P_WG, P_WU, P_WD, P_OUT, P_DBG, P_WS = range(4, 28, 2)
R0, R1, R2, R3, R4 = 28, 32, 36, 40, 44
S_H, S_S = 48, 49
S_T0, S_T1, S_T2, S_T3 = 50, 51, 52, 53
S_HI, S_TM, S_LO, S_HIS = 54, 55, 56, 57
S_CNT, S_E = 58, 59
S_M = 60
S_ST = 76

class G:
    def __init__(self, D=4, il=12, kvpol="nt", wqpol="", wpol="nt", diag=0, pf=1, wo_wait=1, ffn_wait=0, outpol="sc1", prio=1, cut=0, psleep=0, esc=0, vpol=None):
        self.__dict__.update(locals()); del self.__dict__['self']
        self.a = Asm(); self.nlab = 0; self.nst = 0
    def lab(self, p):
        self.nlab += 1; return f"L{p}{self.nlab}"
    def srd(self, r, ptr, size):
        a = self.a
        a(f"s_mov_b32 {s(r)}, {s(ptr)}"); a(f"s_mov_b32 {s(r+1)}, {s(ptr+1)}")
        a(f"s_mov_b32 {s(r+2)}, {size:#x}"); a(f"s_mov_b32 {s(r+3)}, 0x20000")
    def stamp(self, k):
        if self.diag: self.a(f"s_memrealtime {s(S_ST+2*k,2)}")
    def stamps_out(self, vt):
        if not self.diag: return
        a = self.a
        a("s_getreg_b32 s98, hwreg(HW_REG_XCC_ID)")
        a("s_waitcnt lgkmcnt(0)")
        a(f"s_mul_i32 {s(S_T0)}, {s(S_WG)}, 12"); a(f"s_add_u32 {s(S_T0)}, {s(S_T0)}, {s(S_WAVE)}")
        a(f"s_lshl_b32 {s(S_T0)}, {s(S_T0)}, 6"); a(f"s_add_u32 {s(S_T0)}, {s(S_T0)}, {STAMP:#x}")
        a("s_mov_b64 exec, 1")
        a(f"v_mov_b32 {v(vt)}, {s(S_T0)}")
        for k in range(12):
            a(f"v_mov_b32 {v(vt+1)}, {s(S_ST+2*k)}")
            a(f"global_store_dword {v(vt)}, {v(vt+1)}, {s(P_WS,2)} offset:{4*k}")
        a("s_waitcnt vmcnt(0)")
    def unpack(self, lo, hi, src):
        self.a(f"v_lshlrev_b32 {v(lo)}, 16, {v(src)}"); self.a(f"v_and_b32 {v(hi)}, {s(S_HI)}, {v(src)}")
    def rbf1(self, dst, src):
        self.a(f"v_cvt_pk_bf16_f32 {v(dst)}, {v(src)}, {v(src)}"); self.a(f"v_and_b32 {v(dst)}, {s(S_HI)}, {v(dst)}")
    def rbf2(self, d0, d1, s0, s1, t):
        self.a(f"v_cvt_pk_bf16_f32 {v(t)}, {v(s0)}, {v(s1)}"); self.unpack(d0, d1, t)
    def ror(self, op, regs, steps):
        for n in steps:
            for r in regs: self.a(f"{op}_dpp {v(r)}, {v(r)}, {v(r)} row_ror:{n} row_mask:0xf bank_mask:0xf")
    def rows_all(self, op, x, t):
        a = self.a
        for sw in ("v_permlane16_swap_b32", "v_permlane32_swap_b32"):
            a(f"v_mov_b32 {v(t)}, {v(x)}"); a(f"{sw} {v(x)}, {v(t)}"); a(f"{op} {v(x)}, {v(x)}, {v(t)}")
    def fold(self, sw, pairs):
        for x, y in pairs: self.a(f"{sw} {v(x)}, {v(y)}")
        for x, y in pairs: self.a(f"v_add_f32 {v(x)}, {v(x)}, {v(y)}")
    def silu_bf(self, dst, x, t):
        a = self.a
        a(f"v_mul_f32 {v(t)}, {0x80000000 ^ LOG2E:#x}, {v(x)}"); a(f"v_exp_f32 {v(t)}, {v(t)}")
        a(f"v_add_f32 {v(t)}, 1.0, {v(t)}"); a(f"v_rcp_f32 {v(t)}, {v(t)}"); a(f"v_mul_f32 {v(t)}, {v(x)}, {v(t)}")
        self.rbf1(dst, t)
    def layernorm(self, X, XF, T):
        a = self.a
        for k in range(4): self.unpack(XF+2*k, XF+2*k+1, X+k)
        a(f"v_add_f32 {v(T)}, {v(XF)}, {v(XF+1)}")
        for k in range(2, 8): a(f"v_add_f32 {v(T)}, {v(T)}, {v(XF+k)}")
        self.ror("v_add_f32", [T], (8, 4, 2, 1)); self.rows_all("v_add_f32", T, T+1)
        a(f"v_mul_f32 {v(T)}, 0x3b000000, {v(T)}")
        a(f"v_sub_f32 {v(T+2)}, {v(XF)}, {v(T)}"); a(f"v_mul_f32 {v(T+3)}, {v(T+2)}, {v(T+2)}")
        for k in range(1, 8):
            a(f"v_sub_f32 {v(T+2)}, {v(XF+k)}, {v(T)}"); a(f"v_fmac_f32 {v(T+3)}, {v(T+2)}, {v(T+2)}")
        self.ror("v_add_f32", [T+3], (8, 4, 2, 1)); self.rows_all("v_add_f32", T+3, T+1)
        a(f"v_mul_f32 {v(T+3)}, 0x3b000000, {v(T+3)}")
        self.rbf2(T, T+3, T, T+3, T+1)
        a(f"v_add_f32 {v(T+3)}, {EPS:#x}, {v(T+3)}"); self.rbf1(T+3, T+3)
        a(f"v_sqrt_f32 {v(T+3)}, {v(T+3)}"); self.rbf1(T+3, T+3)
        a(f"v_rcp_f32 {v(T+2)}, {v(T+3)}")
        for k in range(8): a(f"v_sub_f32 {v(XF+k)}, {v(XF+k)}, {v(T)}")
        for k in range(4): self.rbf2(XF+2*k, XF+2*k+1, XF+2*k, XF+2*k+1, T+1)
        for k in range(8):
            a(f"v_mul_f32 {v(T+4)}, {v(XF+k)}, {v(T+2)}")
            a(f"v_fma_f32 {v(T+5)}, -{v(T+4)}, {v(T+3)}, {v(XF+k)}")
            a(f"v_fma_f32 {v(XF+k)}, {v(T+5)}, {v(T+2)}, {v(T+4)}")
        for k in range(4): self.rbf2(XF+2*k, XF+2*k+1, XF+2*k, XF+2*k+1, T+1)
    def tag(self, regs, vT, dst=None):
        for i, r in enumerate(regs):
            d = r if dst is None else dst[i]
            self.a(f"v_bfi_b32 {v(d)}, {s(S_TM)}, {v(vT)}, {v(r)}")
    def poll(self, loads, words, vT, t, first_exec=None, slow=True):
        a = self.a; L = self.lab("poll"); Lo = self.lab("pollx")
        a(f"s_mov_b32 {s(S_CNT)}, {SPIN}")
        if first_exec: a(f"s_mov_b64 exec, {first_exec}")
        a(f"{L}:")
        for ld in loads: a(ld)
        a("s_waitcnt vmcnt(0)")
        a(f"v_xor_b32 {v(t)}, {v(words[0])}, {v(vT)}")
        for w in words[1:]: a(f"v_bitop3_b32 {v(t)}, {v(w)}, {v(vT)}, {v(t)} bitop3:0xbe")
        a(f"v_and_b32 {v(t)}, {s(S_TM)}, {v(t)}")
        a(f"v_cmp_ne_u32 vcc, 0, {v(t)}")
        a(f"s_sub_u32 {s(S_CNT)}, {s(S_CNT)}, 1")
        a(f"s_cbranch_scc1 {Lo}")
        a("s_mov_b64 exec, vcc")
        if self.psleep and slow:
            a(f"s_cbranch_execz {Lo}"); a(f"s_sleep {self.psleep}"); a(f"s_branch {L}")
        else: a(f"s_cbranch_execnz {L}")
        a(f"{Lo}:")
        a("s_mov_b64 exec, -1")
    def lds_wait(self, off, val, vz, t, extra=()):
        a = self.a; L = self.lab("lw"); Lo = self.lab("lwx")
        a(f"s_mov_b32 {s(S_CNT)}, {SPIN*16}")
        a(f"{L}:")
        a(f"ds_read_b32 {v(t)}, {v(vz)} offset:{off}")
        for e in extra: a(e)
        a("s_waitcnt lgkmcnt(0)")
        a(f"v_readfirstlane_b32 {s(S_T3)}, {v(t)}")
        a(f"s_cmp_eq_u32 {s(S_T3)}, {val}")
        a(f"s_cbranch_scc1 {Lo}")
        a(f"s_sub_u32 {s(S_CNT)}, {s(S_CNT)}, 1")
        a(f"s_cbranch_scc1 {Lo}")
        a("s_sleep 1")
        a(f"s_branch {L}")
        a(f"{Lo}:")
    def epoch_load(self, vt, vz):
        self.a(f"buffer_load_dword {v(vt)}, {v(vz)}, {s(R0,4)}, 0 offen offset:{EPOCH}" + (" sc1" if self.esc else ""))
    def epoch_tag(self, vT):
        a = self.a
        a(f"v_add_u32 {v(vT)}, 1, {v(vT)}"); a(f"v_readfirstlane_b32 {s(S_E)}, {v(vT)}")
        a(f"v_and_b32 {v(vT)}, {s(S_TM)}, {v(vT)}")
    def streamer(self):
        a = self.a; D = self.D
        VK, VV, VZ, VT, VT2 = 1, 2, 3, 4, 5
        Q, S, DT, KB = 8, 12, 20, 36
        slot = lambda i: KB + 4*i
        ACC, AO, F, B = slot(16), slot(18), slot(22), slot(23)
        SB = S_T0
        a(f"s_lshl_b32 {s(SB)}, {s(S_H)}, 23"); a(f"s_lshl_b32 {s(S_T1)}, {s(S_S)}, 18"); a(f"s_or_b32 {s(SB)}, {s(SB)}, {s(S_T1)}")
        a(f"s_lshl_b32 {s(S_T1)}, {s(S_WAVE)}, {self.il}"); a(f"s_or_b32 {s(SB)}, {s(SB)}, {s(S_T1)}")
        a(f"v_lshlrev_b32 {v(VV)}, 4, v0")
        a(f"v_and_b32 {v(VK)}, 0x3c0, {v(VV)}")
        a(f"v_and_b32 {v(VT)}, 0xc0, {v(VK)}"); a(f"v_lshlrev_b32 {v(VT)}, 2, {v(VT)}")
        a(f"v_lshrrev_b32 {v(VK)}, 8, {v(VK)}"); a(f"v_lshlrev_b32 {v(VK)}, 6, {v(VK)}")
        a(f"v_and_b32 {v(VT2)}, 0x30, {v(VV)}")
        a(f"v_or3_b32 {v(VK)}, {v(VK)}, {v(VT)}, {v(VT2)}")
        a(f"v_mov_b32 {v(VZ)}, 0")
        a("s_waitcnt lgkmcnt(0)")
        self.srd(R0, P_K, 0x4000000); self.srd(R1, P_V, 0x4000000)
        def off(i):
            if self.il == 12: return (i >> 2) * 32768, (i & 3) * 1024
            return i * 8192, 0
        last_so = [None]
        def load(n):
            t, i = divmod(n, 32)
            so, imm = off(i)
            if so != last_so[0]:
                a(f"s_add_u32 {s(S_T1)}, {s(SB)}, {so}"); last_so[0] = so
            sl = slot(i) if t == 0 else slot(i % 16)
            a(f"buffer_load_dwordx4 {v(sl,4)}, {v(VV if t else VK)}, {s(R1 if t else R0,4)}, {s(S_T1)} offen offset:{imm} {self.kvpol if (t == 0 or self.vpol is None) else self.vpol}")
        def qk(j):
            for m in range(4):
                a(f"v_mfma_f32_16x16x32_bf16 {v(DT+4*m,4)}, {v(slot(4*j+m),4)}, {v(Q,4)}, 0")
            for k in range(1, 4):
                for m in range(4):
                    b = (m + k) & 3
                    other = DT+4*m+m if k == 1 else S+j
                    a(f"v_add_f32_dpp {v(S+j)}, {v(DT+4*m+b)}, {v(other)} row_ror:{(4*(m-b)) & 15} row_mask:0xf bank_mask:{1<<m:#x}")
        def softmax():
            a(f"s_mov_b32 {s(S_T2)}, {SCALE:#x}")
            for k in range(4):
                x, y = S+2*k, S+2*k+1
                self.rbf2(x, y, x, y, VT)
                a(f"v_mul_f32 {v(x)}, {s(S_T2)}, {v(x)}"); a(f"v_mul_f32 {v(y)}, {s(S_T2)}, {v(y)}")
                self.rbf2(x, y, x, y, VT)
            M, Lr = DT, DT+1
            a(f"v_max3_f32 {v(M)}, {v(S)}, {v(S+1)}, {v(S+2)}"); a(f"v_max3_f32 {v(M)}, {v(M)}, {v(S+3)}, {v(S+4)}")
            a(f"v_max3_f32 {v(M)}, {v(M)}, {v(S+5)}, {v(S+6)}"); a(f"v_max_f32 {v(M)}, {v(M)}, {v(S+7)}")
            self.ror("v_max_f32", [M], (4, 8)); self.rows_all("v_max_f32", M, VT)
            a(f"s_mov_b32 {s(S_T2)}, {LOG2E:#x}")
            for k in range(8): a(f"v_sub_f32 {v(S+k)}, {v(S+k)}, {v(M)}")
            for k in range(8): a(f"v_mul_f32 {v(S+k)}, {s(S_T2)}, {v(S+k)}")
            for k in range(8): a(f"v_exp_f32 {v(S+k)}, {v(S+k)}")
            a(f"v_add_f32 {v(Lr)}, {v(S)}, {v(S+1)}")
            for k in range(2, 8): a(f"v_add_f32 {v(Lr)}, {v(Lr)}, {v(S+k)}")
            self.ror("v_add_f32", [Lr], (4, 8)); self.rows_all("v_add_f32", Lr, VT)
            a(f"s_lshl_b32 {s(S_T2)}, {s(S_WAVE)}, 5")
            a(f"v_lshl_add_u32 {v(VT)}, v0, 2, {s(S_T2)}"); a(f"v_mov_b32 {v(VT2)}, 1")
            a("s_mov_b64 exec, 15")
            a(f"ds_write2_b32 {v(VT)}, {v(M)}, {v(Lr)} offset0:{L_ML//4} offset1:{L_ML//4+4}")
            a("s_mov_b64 exec, 1")
            a(f"ds_add_u32 {v(VZ)}, {v(VT2)} offset:{L_MLCNT}")
            a("s_mov_b64 exec, -1")
            for r in range(ACC, ACC+8): a(f"v_mov_b32 {v(r)}, 0")
            for r in range(AO, AO+16): a(f"v_mov_b32 {v(r)}, 0")
        def build_a(j):
            a(f"v_cvt_pk_bf16_f32 {v(VT)}, {v(S+2*j)}, {v(S+2*j+1)}")
            for m in range(4):
                for e in range(4):
                    n = (4*(e-m)) & 15
                    ctl = f"row_ror:{n}" if n else "quad_perm:[0,1,2,3]"
                    a(f"v_mov_b32_dpp {v(AO+4*e+m)}, {v(VT)} {ctl} row_mask:0xf bank_mask:{1<<e:#x}")
        def perm1(j, m, e):
            lo, hi = slot((8*j+m) % 16), slot((8*j+4+m) % 16)
            a(f"v_perm_b32 {v(B+4*e+m)}, {v(hi+(e>>1))}, {v(lo+(e>>1))}, {s(S_HIS if e & 1 else S_LO)}")
        def mfma_pv(e):
            acc = ACC + 4*(e >> 2)
            a(f"v_mfma_f32_16x16x32_bf16 {v(acc,4)}, {v(AO+4*(e&3),4)}, {v(B+4*e,4)}, {v(acc,4)}")
        def pv_last(j):
            order = [0, 4, 1, 5, 2, 6, 3, 7]
            for k in range(3): perm1(j, 3, order[k])
            for k in range(8):
                mfma_pv(order[k])
                if k + 3 < 8: perm1(j, 3, order[k+3])
        n0 = 24 + D
        tasks = {}
        def at(n, f): tasks.setdefault(n, []).append(f)
        def qwait():
            a(f"v_and_b32 {v(VT2)}, 3, v0"); a(f"v_lshlrev_b32 {v(VT2)}, 8, {v(VT2)}")
            a(f"v_and_b32 {v(VT)}, 0xc0, {v(VV)}"); a(f"v_lshrrev_b32 {v(VT)}, 2, {v(VT)}")
            a(f"v_and_b32 {v(DT)}, 0x300, {v(VV)}"); a(f"v_lshrrev_b32 {v(DT)}, 2, {v(DT)}")
            a(f"v_or3_b32 {v(VT2)}, {v(VT2)}, {v(VT)}, {v(DT)}")
            self.stamp(2)
            if not self.cut: self.lds_wait(L_QFLAG, 1, VZ, VT, [f"ds_read_b128 {v(Q,4)}, {v(VT2)} offset:{L_Q}"])
            self.stamp(3)
        at(n0, qwait)
        for j in range(8): at(n0 + j, lambda j=j: qk(j))
        at(n0 + 7, softmax)
        def fwait():
            a(f"s_lshl_b32 {s(S_T2)}, {s(S_WAVE)}, 4")
            a(f"v_and_b32 {v(VT2)}, 3, v0"); a(f"v_lshl_add_u32 {v(VT2)}, {v(VT2)}, 2, {s(S_T2)}")
            a(f"v_mov_b32 {v(DT+1)}, {s(S_T2)}")
            self.stamp(5)
            if not self.cut: self.lds_wait(L_FFLAG, 1, VZ, VT, [f"ds_read_b128 {v(F,4)}, {v(DT+1)} offset:{L_F}", f"ds_read_b32 {v(DT)}, {v(VT2)} offset:{L_F}"])
            self.stamp(6)
            for E in range(2):
                for h in range(4): a(f"v_mul_f32 {v(ACC+4*E+h)}, {v(F+h)}, {v(ACC+4*E+h)}")
            a(f"v_mul_f32 {v(S+6)}, {v(DT)}, {v(S+6)}"); a(f"v_mul_f32 {v(S+7)}, {v(DT)}, {v(S+7)}")
        for j in range(4):
            base = 32 + 8*j + 4 + D
            if j == 3: at(base, fwait)
            at(base, lambda j=j: build_a(j))
            for m in range(3): at(base + m, lambda j=j, m=m: [perm1(j, m, e) for e in range(8)])
            at(base + 3, lambda j=j: pv_last(j))
        for n in range(64 + D):
            if n < 64:
                if n >= D: a(f"s_waitcnt vmcnt({D-1})")
                load(n)
                if n == D - 1:
                    a(f"s_mov_b32 {s(S_HI)}, 0xffff0000"); a(f"s_mov_b32 {s(S_LO)}, 0x05040100"); a(f"s_mov_b32 {s(S_HIS)}, 0x07060302")
                    a("s_barrier")
                if n == D: self.stamp(1)
                if n == 32 + D: self.stamp(4)
            else:
                a(f"s_waitcnt vmcnt({63 + D - n})")
                if n == 63 + D: self.stamp(7)
            for f in tasks.get(n, []): f()
        a(f"s_lshl_b32 {s(S_T2)}, {s(S_WAVE)}, 11")
        a(f"v_add_u32 {v(VT)}, {s(S_T2)}, {v(VV)}")
        a(f"ds_write_b128 {v(VT)}, {v(ACC,4)} offset:{L_O}")
        a(f"ds_write_b128 {v(VT)}, {v(ACC+4,4)} offset:{L_O+1024}")
        a("s_waitcnt lgkmcnt(0)")
        a("s_barrier")
        self.stamp(8)
        self.stamps_out(VT)
        a("s_endpgm")

    def consts(self):
        a = self.a
        a(f"s_mov_b32 {s(S_HI)}, 0xffff0000"); a(f"s_mov_b32 {s(S_TM)}, 0xfff")
        a(f"s_mov_b32 {s(S_LO)}, 0x05040100"); a(f"s_mov_b32 {s(S_HIS)}, 0x07060302")

    VZ, VT, VA, T = 1, 2, 3, 4
    def stage1(self):
        a = self.a
        VZ, VT, VA, T = self.VZ, self.VT, self.VA, self.T
        X, XF, XR, ACC, W = 12, 16, 24, 32, 40
        SZ, SCB, SRB, SROW, SSTR = S_M, S_M+1, S_M+2, S_M+3, S_M+4
        a(f"s_and_b32 {s(SZ)}, {s(S_WAVE)}, 3")
        a(f"v_mov_b32 {v(VZ)}, 0"); a(f"v_lshlrev_b32 {v(VA)}, 4, v0")
        if self.pf:
            Lp = self.lab("nopf")
            a(f"s_cmp_ge_u32 {s(S_S)}, {self.pf}"); a(f"s_cbranch_scc1 {Lp}")
            a(f"s_getpc_b64 {s(R4,2)}")
            a(f"Lpc:")
            a(f"s_sub_u32 {s(R4)}, {s(R4)}, Lpc-{KN}"); a(f"s_subb_u32 {s(R4+1)}, {s(R4+1)}, 0")
            a(f"s_mov_b32 {s(R4+2)}, Lcode_end-{KN}"); a(f"s_mov_b32 {s(R4+3)}, 0x20000")
            a(f"s_lshl_b32 {s(S_T0)}, {s(SZ)}, 12")
            for k in range(4):
                a(f"buffer_load_dwordx4 {v(W+32+4*k,4)}, {v(VA)}, {s(R4,4)}, {s(S_T0)} offen offset:{1024*k}")
            a(f"{Lp}:")
        Lf, Lj = self.lab("s1ffn"), self.lab("s1join")
        a(f"s_cmp_ge_u32 {s(S_S)}, 16"); a(f"s_cbranch_scc1 {Lf}")
        a(f"s_and_b32 {s(SCB)}, {s(S_S)}, 7"); a(f"s_lshr_b32 {s(SRB)}, {s(S_S)}, 3")
        a(f"s_lshl_b32 {s(SROW)}, {s(SRB)}, 2"); a(f"s_add_u32 {s(SROW)}, {s(SROW)}, {s(SZ)}"); a(f"s_lshl_b32 {s(SROW)}, {s(SROW)}, 6")
        a(f"s_mov_b32 {s(SSTR)}, 8192")
        a(f"s_lshl_b32 {s(S_T0)}, {s(S_H)}, 3"); a(f"s_add_u32 {s(S_T0)}, {s(S_T0)}, {s(SCB)}")
        a("s_waitcnt lgkmcnt(0)")
        self.srd(R2, P_WQ, 0x400000)
        a(f"s_branch {Lj}")
        a(f"{Lf}:")
        a(f"s_sub_u32 {s(S_T0)}, {s(S_S)}, 16"); a(f"s_lshl_b32 {s(S_T0)}, {s(S_T0)}, 3"); a(f"s_add_u32 {s(S_T0)}, {s(S_T0)}, {s(S_H)}")
        a(f"s_lshr_b32 {s(SCB)}, {s(S_T0)}, 2"); a(f"s_and_b32 {s(SRB)}, {s(S_T0)}, 3")
        a(f"s_and_b32 {s(S_T1)}, {s(SZ)}, 1")
        a(f"s_lshl_b32 {s(SROW)}, {s(SRB)}, 1"); a(f"s_add_u32 {s(SROW)}, {s(SROW)}, {s(S_T1)}"); a(f"s_lshl_b32 {s(SROW)}, {s(SROW)}, 6")
        a(f"s_mov_b32 {s(SSTR)}, 3584")
        a(f"s_mov_b32 {s(S_T0)}, {s(SCB)}")
        a("s_waitcnt lgkmcnt(0)")
        a(f"s_cmp_ge_u32 {s(SZ)}, 2")
        a(f"s_cselect_b32 {s(R2)}, {s(P_WU)}, {s(P_WG)}"); a(f"s_cselect_b32 {s(R2+1)}, {s(P_WU+1)}, {s(P_WG+1)}")
        a(f"s_cmp_lt_u32 {s(SCB)}, 28")
        a(f"s_cselect_b32 {s(R2+2)}, 0x1c0000, 0"); a(f"s_mov_b32 {s(R2+3)}, 0x20000")
        a(f"{Lj}:")
        self.srd(R0, P_WS, WS_USED); self.srd(R1, P_X, 1024)
        a(f"s_lshl_b32 {s(S_T0)}, {s(S_T0)}, 7"); a(f"s_mul_i32 {s(S_T1)}, {s(SROW)}, {s(SSTR)}"); a(f"s_add_u32 {s(S_T0)}, {s(S_T0)}, {s(S_T1)}")
        a(f"v_and_b32 {v(T)}, 56, v0"); a(f"v_mul_u32_u24 {v(T)}, {s(SSTR)}, {v(T)}")
        a(f"v_and_b32 {v(T+1)}, 0x70, {v(VA)}"); a(f"v_add_u32 {v(T)}, {v(T)}, {v(T+1)}")
        a(f"buffer_load_dwordx4 {v(X,4)}, {v(VA)}, {s(R1,4)}, 0 offen")
        self.epoch_load(VT, VZ)
        for j in range(8):
            a(f"buffer_load_dwordx4 {v(W+4*j,4)}, {v(T)}, {s(R2,4)}, {s(S_T0)} offen {self.wqpol}")
            if j < 7: a(f"s_add_u32 {s(S_T0)}, {s(S_T0)}, {s(SSTR)}")
        a(f"v_mov_b32 {v(T+2)}, 0"); a(f"v_mov_b32 {v(T+3)}, 0")
        Lb = self.lab("s1b")
        a(f"s_cmp_lg_u32 {s(SZ)}, 0"); a(f"s_cbranch_scc1 {Lb}")
        a(f"ds_write_b64 {v(VZ)}, {v(T+2,2)} offset:0"); a(f"ds_write_b64 {v(VZ)}, {v(T+2,2)} offset:8")
        a("s_waitcnt lgkmcnt(0)")
        a(f"{Lb}:")
        a("s_barrier")
        a("s_waitcnt vmcnt(9)")
        self.stamp(1)
        self.layernorm(X, XF, T)
        a(f"s_lshr_b32 {s(S_T0)}, {s(SROW)}, 1")
        a(f"v_lshrrev_b32 {v(T)}, 3, v0"); a(f"v_lshl_add_u32 {v(T)}, {v(T)}, 2, {s(S_T0)}")
        for j in range(8): a(f"ds_bpermute_b32 {v(XR+j)}, {v(T)}, {v(XF+j)}")
        a("s_waitcnt lgkmcnt(0)")
        for j in range(8):
            a(f"s_waitcnt vmcnt({7-j})")
            if j == 0: self.epoch_tag(VT)
            for k in range(4):
                self.unpack(T, T+1, W+4*j+k)
                op = "v_mul_f32" if j == 0 else "v_fmac_f32"
                a(f"{op} {v(ACC+2*k)}, {v(XR+j)}, {v(T)}"); a(f"{op} {v(ACC+2*k+1)}, {v(XR+j)}, {v(T+1)}")
        self.fold("v_permlane32_swap_b32", [(ACC+e, ACC+e+4) for e in range(4)])
        self.fold("v_permlane16_swap_b32", [(ACC+e, ACC+e+2) for e in range(2)])
        self.ror("v_add_f32", [ACC, ACC+1], (8,))
        a(f"s_lshl_b32 {s(S_T0)}, {s(SZ)}, 8")
        a(f"v_and_b32 {v(T)}, 7, v0"); a(f"v_lshl_add_u32 {v(T)}, {v(T)}, 5, {s(S_T0)}")
        a(f"v_lshrrev_b32 {v(T+1)}, 4, v0"); a(f"v_lshl_add_u32 {v(T)}, {v(T+1)}, 3, {v(T)}")
        a(f"v_mov_b32 {v(T+1)}, 1")
        a("s_mov_b32 exec_lo, 0xff00ff"); a("s_mov_b32 exec_hi, 0xff00ff")
        a(f"ds_write_b64 {v(T)}, {v(ACC,2)} offset:{L_S1}")
        a("s_mov_b64 exec, 1")
        a(f"ds_add_u32 {v(VZ)}, {v(T+1)} offset:{L_S1CNT}")
        a("s_mov_b64 exec, -1")
        self.stamp(2)

    def sw0(self):
        a = self.a
        VZ, VT, VA, T = self.VZ, self.VT, self.VA, self.T
        XF, W = 16, 40
        SZ, SCB, SRB = S_M, S_M+1, S_M+2
        if self.cut == 3:
            self.stamps_out(4); a("s_endpgm")
        a(f"v_and_b32 {v(T)}, 0xf0, {v(VA)}"); a(f"v_and_b32 {v(T+2)}, 16, v0"); a(f"v_lshl_add_u32 {v(T)}, {v(T+2)}, 5, {v(T)}")
        self.lds_wait(L_S1CNT, 4, VZ, T+1, [f"ds_read_b128 {v(W,4)}, {v(T)} offset:{L_S1}", f"ds_read_b128 {v(W+4,4)}, {v(T)} offset:{L_S1+256}"])
        a(f"v_pk_add_f32 {v(W,2)}, {v(W,2)}, {v(W+4,2)}"); a(f"v_pk_add_f32 {v(W+2,2)}, {v(W+2,2)}, {v(W+6,2)}")
        Lf, Lj = self.lab("c1ffn"), self.lab("c1join")
        a(f"s_cmp_ge_u32 {s(S_S)}, 16"); a(f"s_cbranch_scc1 {Lf}")
        for r in range(4): a(f"v_mov_b32 {v(W+4+r)}, {v(W+r)}")
        self.fold("v_permlane16_swap_b32", [(W+r, W+4+r) for r in range(4)])
        a(f"v_and_b32 {v(T)}, 0xf0, {v(VA)}")
        a(f"s_lshl_b32 {s(S_T1)}, {s(S_H)}, 12"); a(f"s_lshl_b32 {s(S_T2)}, {s(SRB)}, 11"); a(f"s_add_u32 {s(S_T1)}, {s(S_T1)}, {s(S_T2)}")
        a(f"s_lshl_b32 {s(S_T2)}, {s(SCB)}, 8"); a(f"s_add_u32 {s(S_T1)}, {s(S_T1)}, {s(S_T2)}"); a(f"s_add_u32 {s(S_T1)}, {s(S_T1)}, {QBOX:#x}")
        a("s_mov_b64 exec, 0xffff")
        a(f"s_branch {Lj}")
        a(f"{Lf}:")
        a(f"v_and_b32 {v(T)}, 14, v0"); a(f"v_lshlrev_b32 {v(T)}, 7, {v(T)}")
        a(f"v_and_b32 {v(T+1)}, 16, {v(VA)}"); a(f"v_lshl_add_u32 {v(T+1)}, {v(T+2)}, 1, {v(T+1)}"); a(f"v_add_u32 {v(T)}, {v(T)}, {v(T+1)}")
        a(f"s_lshl_b32 {s(S_T1)}, {s(SCB)}, 11"); a(f"s_lshl_b32 {s(S_T2)}, {s(SRB)}, 6"); a(f"s_add_u32 {s(S_T1)}, {s(S_T1)}, {s(S_T2)}")
        a(f"s_add_u32 {s(S_T1)}, {s(S_T1)}, {GBOX:#x}")
        a("s_mov_b32 exec_lo, -1"); a("s_mov_b32 exec_hi, 0")
        a(f"{Lj}:")
        a("s_nop 1")
        self.tag(range(W, W+4), VT)
        a(f"buffer_store_dwordx4 {v(W,4)}, {v(T)}, {s(R0,4)}, {s(S_T1)} offen sc1")
        a("s_mov_b64 exec, -1")
        a(f"s_lshl_b32 {s(S_T0)}, {s(S_H)}, 12"); a(f"s_add_u32 {s(S_T0)}, {s(S_T0)}, {QBOX:#x}")
        W2 = W + 8
        self.poll([f"buffer_load_dwordx4 {v(W2+4*k,4)}, {v(VA)}, {s(R0,4)}, {s(S_T0)} offen offset:{1024*k} sc1" for k in range(4)],
                  list(range(W2, W2+16)), VT, T)
        for k in range(4): a(f"v_pk_add_f32 {v(W2+2*k,2)}, {v(W2+2*k,2)}, {v(W2+8+2*k,2)}")
        for k in range(4): a(f"v_cvt_pk_bf16_f32 {v(XF+k)}, {v(W2+2*k)}, {v(W2+2*k+1)}")
        a(f"v_lshlrev_b32 {v(T)}, 3, v0"); a(f"v_mov_b32 {v(T+1)}, 1")
        a(f"ds_write_b64 {v(T)}, {v(XF,2)} offset:{L_Q}"); a(f"ds_write_b64 {v(T)}, {v(XF+2,2)} offset:{L_Q+512}")
        a("s_waitcnt lgkmcnt(0)")
        a(f"ds_write_b32 {v(VZ)}, {v(T+1)} offset:{L_QFLAG}")
        self.stamp(3)
        if self.cut in (4, 5):
            self.stamps_out(4); a("s_endpgm")
        MW, LW, M, L, MA, LA, MB, LB = XF, XF+1, XF+2, XF+3, W, W+1, W+2, W+3
        a(f"v_and_b32 {v(T)}, 28, v0"); a(f"v_lshlrev_b32 {v(T)}, 3, {v(T)}")
        a(f"v_and_b32 {v(T+2)}, 3, v0"); a(f"v_lshl_add_u32 {v(T)}, {v(T+2)}, 2, {v(T)}")
        self.lds_wait(L_MLCNT, 8, VZ, T+1, [f"ds_read2_b32 {v(MW,2)}, {v(T)} offset0:{L_ML//4} offset1:{L_ML//4+4}"])
        self.stamp(4)
        a(f"s_mov_b32 {s(S_T2)}, {LOG2E:#x}")
        a(f"v_mov_b32 {v(M)}, {v(MW)}")
        self.ror("v_max_f32", [M], (4, 8))
        a(f"v_mov_b32 {v(T)}, {v(M)}"); a(f"v_permlane16_swap_b32 {v(M)}, {v(T)}"); a(f"v_max_f32 {v(M)}, {v(M)}, {v(T)}")
        a(f"v_sub_f32 {v(L)}, {v(MW)}, {v(M)}"); a(f"v_mul_f32 {v(L)}, {s(S_T2)}, {v(L)}"); a(f"v_exp_f32 {v(L)}, {v(L)}")
        a(f"v_mul_f32 {v(L)}, {v(L)}, {v(LW)}")
        self.ror("v_add_f32", [L], (4, 8))
        a(f"v_mov_b32 {v(T)}, {v(L)}"); a(f"v_permlane16_swap_b32 {v(L)}, {v(T)}"); a(f"v_add_f32 {v(L)}, {v(L)}, {v(T)}")
        self.tag([M, L], VT)
        a(f"v_lshlrev_b32 {v(T)}, 3, v0")
        a(f"s_lshl_b32 {s(S_T0)}, {s(S_H)}, 10"); a(f"s_add_u32 {s(S_T0)}, {s(S_T0)}, {MLBOX:#x}")
        a(f"s_lshl_b32 {s(S_T1)}, {s(S_S)}, 5"); a(f"s_add_u32 {s(S_T1)}, {s(S_T1)}, {s(S_T0)}")
        a("s_mov_b64 exec, 15")
        a(f"buffer_store_dwordx2 {v(M,2)}, {v(T)}, {s(R0,4)}, {s(S_T1)} offen sc1")
        a("s_mov_b64 exec, -1")
        self.poll([f"buffer_load_dwordx2 {v(MA,2)}, {v(T)}, {s(R0,4)}, {s(S_T0)} offen sc1",
                   f"buffer_load_dwordx2 {v(MB,2)}, {v(T)}, {s(R0,4)}, {s(S_T0)} offen offset:512 sc1"],
                  [MA, LA, MB, LB], VT, T+1)
        a(f"v_and_b32 {v(MA)}, {s(S_HI)}, {v(MA)}"); a(f"v_and_b32 {v(MB)}, {s(S_HI)}, {v(MB)}")
        a(f"v_max_f32 {v(M)}, {v(MA)}, {v(MB)}")
        self.ror("v_max_f32", [M], (4, 8)); self.rows_all("v_max_f32", M, T)
        for r in (MA, MB, MW): a(f"v_sub_f32 {v(r)}, {v(r)}, {v(M)}")
        for r in (MA, MB, MW): a(f"v_mul_f32 {v(r)}, {s(S_T2)}, {v(r)}")
        for r in (MA, MB, MW): a(f"v_exp_f32 {v(r)}, {v(r)}")
        a(f"v_mul_f32 {v(L)}, {v(MA)}, {v(LA)}"); a(f"v_fmac_f32 {v(L)}, {v(MB)}, {v(LB)}")
        self.ror("v_add_f32", [L], (4, 8)); self.rows_all("v_add_f32", L, T)
        a(f"v_rcp_f32 {v(L)}, {v(L)}"); a(f"v_mul_f32 {v(MW)}, {v(MW)}, {v(L)}")
        a(f"v_and_b32 {v(T)}, 31, v0"); a(f"v_lshlrev_b32 {v(T)}, 2, {v(T)}"); a(f"v_mov_b32 {v(T+1)}, 1")
        a(f"ds_write_b32 {v(T)}, {v(MW)} offset:{L_F}")
        a("s_waitcnt lgkmcnt(0)")
        a(f"ds_write_b32 {v(VZ)}, {v(T+1)} offset:{L_FFLAG}")
        a("s_waitcnt lgkmcnt(0)")
        self.stamp(5)
        self.stamps_out(T)
        a("s_endpgm")

    def sw1(self):
        a = self.a
        VZ, VT, VA, T = self.VZ, self.VT, self.VA, self.T
        XC, GC, VO, G, U, AU, O, W = 10, 11, 12, 16, 20, 24, 32, 40
        SH = S_M + 4
        a(f"s_lshr_b32 {s(S_T0)}, {s(S_WG)}, 6"); a(f"s_lshl_b32 {s(S_T0)}, {s(S_T0)}, 8")
        a(f"s_and_b32 {s(S_T1)}, {s(S_WG)}, 8"); a(f"s_lshl_b32 {s(S_T1)}, {s(S_T1)}, 4"); a(f"s_add_u32 {s(S_T0)}, {s(S_T0)}, {s(S_T1)}")
        a(f"s_and_b32 {s(S_T1)}, {s(S_WG)}, 48"); a(f"s_lshl_b32 {s(S_T1)}, {s(S_T1)}, 1"); a(f"s_add_u32 {s(S_T0)}, {s(S_T0)}, {s(S_T1)}")
        a(f"s_add_u32 {s(S_T0)}, {s(S_T0)}, {s(S_H)}"); a(f"s_lshl_b32 {s(S_T0)}, {s(S_T0)}, 1")
        a(f"v_and_b32 {v(VO)}, 48, v0"); a(f"v_add_u32 {v(VO)}, {s(S_T0)}, {v(VO)}")
        self.srd(R4, P_WD, 0x1c0000)
        if self.ffn_wait: self.lds_wait(L_QFLAG, 1, VZ, T+1)
        a(f"buffer_load_ushort {v(XC)}, {v(VO)}, {s(R1,4)}, 0 offen")
        a(f"s_lshl_b32 {s(S_T1)}, {s(S_WG)}, 13")
        for e in range(8):
            if e == 4: a(f"s_add_u32 {s(S_T1)}, {s(S_T1)}, 4096")
            a(f"buffer_load_dwordx4 {v(W+4*e,4)}, {v(VA)}, {s(R4,4)}, {s(S_T1)} offen offset:{1024*(e&3)} {self.wpol}")
        if self.cut in (3, 4):
            a("s_waitcnt vmcnt(0)"); self.stamp(3); self.stamps_out(4); a("s_endpgm")
        a(f"s_lshl_b32 {s(S_T0)}, {s(S_WG)}, 8"); a(f"s_add_u32 {s(S_T0)}, {s(S_T0)}, {GBOX:#x}")
        a(f"v_and_b32 {v(T+2)}, 0xf0, {v(VA)}")
        self.poll([f"buffer_load_dwordx4 {v(G,4)}, {v(T+2)}, {s(R0,4)}, {s(S_T0)} offen sc1"], list(range(G, G+4)), VT, T, first_exec="0xffff")
        self.ror("v_add_f32", range(G, G+4), (4, 8))
        for k in range(2): self.rbf2(G+2*k, G+2*k+1, G+2*k, G+2*k+1, T)
        for r in range(4): a(f"v_mov_b32_dpp {v(U+r)}, {v(G+r)} quad_perm:[2,3,2,3] row_mask:0xf bank_mask:0xf")
        for r in range(4): self.silu_bf(G+r, G+r, T)
        for r in range(4): a(f"v_mul_f32 {v(G+r)}, {v(G+r)}, {v(U+r)}")
        for k in range(2): self.rbf2(G+2*k, G+2*k+1, G+2*k, G+2*k+1, T)
        for e in range(8): a(f"v_readlane_b32 {s(SH+e)}, {v(G+(e&3))}, {e>>2}")
        for e in range(8):
            for k in range(4):
                self.unpack(T, T+1, W+4*e+k)
                op = "v_mul_f32" if e == 0 else "v_fmac_f32"
                a(f"{op} {v(AU+2*k)}, {s(SH+e)}, {v(T)}"); a(f"{op} {v(AU+2*k+1)}, {s(SH+e)}, {v(T+1)}")
        for c in range(4):
            msk = (~(0x11111111 << c)) & 0xffffffff
            a(f"s_mov_b32 vcc_lo, {msk:#x}"); a(f"s_mov_b32 vcc_hi, {msk:#x}")
            for hf in range(2):
                for q in range(4):
                    if c == 0:
                        a(f"v_mov_b32_dpp {v(O+4*hf+q)}, {v(AU+4*hf)} quad_perm:[{q},{q},{q},{q}] row_mask:0xf bank_mask:0xf")
                    else:
                        a(f"v_cndmask_b32_dpp {v(O+4*hf+q)}, {v(AU+4*hf+c)}, {v(O+4*hf+q)}, vcc quad_perm:[{q},{q},{q},{q}] row_mask:0xf bank_mask:0xf")
        self.tag(range(O, O+8), VT)
        a(f"v_and_b32 {v(T)}, 32, v0"); a(f"v_lshlrev_b32 {v(T)}, 1, {v(T)}")
        a(f"v_and_b32 {v(T+1)}, 12, v0"); a(f"v_lshl_add_u32 {v(T)}, {v(T+1)}, 2, {v(T)}")
        a(f"v_and_b32 {v(T+1)}, 16, v0"); a(f"v_lshrrev_b32 {v(T+1)}, 1, {v(T+1)}"); a(f"v_and_b32 {v(T+2)}, 3, v0")
        a(f"v_or3_b32 {v(T)}, {v(T)}, {v(T+1)}, {v(T+2)}"); a(f"v_lshlrev_b32 {v(T)}, 12, {v(T)}")
        a(f"s_lshl_b32 {s(S_T0)}, {s(S_WG)}, 4"); a(f"s_add_u32 {s(S_T0)}, {s(S_T0)}, {FBOX:#x}"); a(f"s_add_u32 {s(S_T1)}, {s(S_T0)}, 16384")
        a(f"buffer_store_dwordx4 {v(O,4)}, {v(T)}, {s(R0,4)}, {s(S_T0)} offen sc1")
        a(f"buffer_store_dwordx4 {v(O+4,4)}, {v(T)}, {s(R0,4)}, {s(S_T1)} offen sc1")
        self.stamp(3)
        if self.cut:
            a("s_waitcnt vmcnt(0)"); self.stamps_out(4); a("s_endpgm")
        Lx = self.lab("sw1end")
        a(f"s_cmp_ge_u32 {s(S_WG)}, 128"); a(f"s_cbranch_scc1 {Lx}")
        def gather(box):
            a(f"s_lshl_b32 {s(S_T0)}, {s(S_WG)}, 12"); a(f"s_add_u32 {s(S_T0)}, {s(S_T0)}, {box:#x}")
            self.poll([f"buffer_load_dwordx4 {v(W+4*j,4)}, {v(VA)}, {s(R0,4)}, {s(S_T0)} offen offset:{1024*j} sc1" for j in range(4)],
                      list(range(W, W+16)), VT, T, slow=(box != HBOX2))
            for x, y in ((0, 4), (8, 12), (0, 8)):
                a(f"v_pk_add_f32 {v(W+x,2)}, {v(W+x,2)}, {v(W+y,2)}"); a(f"v_pk_add_f32 {v(W+x+2,2)}, {v(W+x+2,2)}, {v(W+y+2,2)}")
            self.fold("v_permlane32_swap_b32", [(W, W+2), (W+1, W+3)])
            self.fold("v_permlane16_swap_b32", [(W, W+1)])
            self.ror("v_add_f32", [W], (8, 4, 2, 1))
            self.rbf1(W, W)
        self.lds_wait(L_FFLAG, 1, VZ, T+1)
        gather(FBOX)
        self.silu_bf(GC, W, T)
        a(f"v_lshlrev_b32 {v(XC)}, 16, {v(XC)}")
        self.srd(R1, P_OUT, 1024)
        self.stamp(4)
        a("s_barrier")
        self.stamp(5)
        gather(HBOX2)
        self.stamp(6)
        a(f"v_mul_f32 {v(W)}, {v(W)}, {v(GC)}"); self.rbf1(W, W)
        a(f"v_add_f32 {v(W)}, {v(W)}, {v(XC)}"); a(f"v_cvt_pk_bf16_f32 {v(W)}, {v(W)}, {v(W)}")
        a("s_mov_b32 exec_lo, 0x10001"); a("s_mov_b32 exec_hi, 0x10001")
        a(f"buffer_store_short {v(W)}, {v(VO)}, {s(R1,4)}, 0 offen {self.outpol}")
        a(f"s_cmp_lg_u32 {s(S_WG)}, 0"); a(f"s_cbranch_scc1 {Lx}")
        a("s_mov_b64 exec, 1")
        a(f"v_mov_b32 {v(T)}, {s(S_E)}")
        a(f"buffer_store_dword {v(T)}, {v(VZ)}, {s(R0,4)}, 0 offen offset:{EPOCH} sc1")
        a(f"{Lx}:")
        if self.diag: a("s_waitcnt vmcnt(0)")
        self.stamp(7)
        self.stamps_out(T)
        a("s_endpgm")

    def sw23(self):
        a = self.a
        VZ, VT, VA, T = self.VZ, self.VT, self.VA, self.T
        VP, VO, VH, W, AO, DD = 10, 11, 12, 16, 48, 80
        SZ = S_M + 15
        a(f"s_and_b32 {s(SZ)}, {s(S_WAVE)}, 1")
        a(f"v_lshrrev_b32 {v(T)}, 4, v0"); a(f"v_lshlrev_b32 {v(T)}, 13, {v(T)}")
        a(f"v_and_b32 {v(T+1)}, 0xf0, {v(VA)}"); a(f"v_or_b32 {v(T)}, {v(T)}, {v(T+1)}")
        a(f"s_and_b32 {s(S_T0)}, {s(S_S)}, 3"); a(f"s_lshl_b32 {s(S_T0)}, {s(S_T0)}, 5")
        a(f"s_lshr_b32 {s(S_T1)}, {s(S_S)}, 4"); a(f"s_lshl_b32 {s(S_T1)}, {s(S_T1)}, 2"); a(f"s_add_u32 {s(S_T0)}, {s(S_T0)}, {s(S_T1)}")
        a(f"s_bfe_u32 {s(S_T1)}, {s(S_S)}, 0x20002"); a(f"s_add_u32 {s(S_T0)}, {s(S_T0)}, {s(S_T1)}"); a(f"s_lshl_b32 {s(S_T0)}, {s(S_T0)}, 10")
        a(f"s_lshl_b32 {s(S_T1)}, {s(S_H)}, 19"); a(f"s_add_u32 {s(S_T0)}, {s(S_T0)}, {s(S_T1)}")
        a(f"s_lshl_b32 {s(S_T1)}, {s(SZ)}, 9"); a(f"s_add_u32 {s(S_T0)}, {s(S_T0)}, {s(S_T1)}")
        a(f"v_and_b32 {v(VP)}, 15, v0"); a(f"v_lshlrev_b32 {v(VP)}, 6, {v(VP)}"); a(f"v_and_b32 {v(T+1)}, 48, v0"); a(f"v_or_b32 {v(VP)}, {v(VP)}, {v(T+1)}")
        a(f"v_lshrrev_b32 {v(VO)}, 2, v0"); a(f"v_lshlrev_b32 {v(VO)}, 11, {v(VO)}"); a(f"v_and_b32 {v(T+1)}, 48, {v(VA)}"); a(f"v_or_b32 {v(VO)}, {v(VO)}, {v(T+1)}")
        a(f"v_lshlrev_b32 {v(VH)}, 12, v0")
        self.srd(R1, P_WO, 0x400000)
        if self.wo_wait == 1 and self.cut != 3: self.lds_wait(L_QFLAG, 1, VZ, T+1)
        if self.wo_wait == 2: self.lds_wait(L_FFLAG, 1, VZ, T+1)
        for h in range(4):
            for hf in range(2):
                a(f"buffer_load_dwordx4 {v(W+8*h+4*hf,4)}, {v(T)}, {s(R1,4)}, {s(S_T0)} offen offset:{256*hf} {self.wpol}")
            if h < 3: a(f"s_add_u32 {s(S_T0)}, {s(S_T0)}, 0x20000")
        for t in range(1, 8):
            m = (3 << (2*t)) * 0x10001
            a(f"s_mov_b32 {s(S_M+2*t-2)}, {m:#x}"); a(f"s_mov_b32 {s(S_M+2*t-1)}, {m:#x}")
        a(f"s_mov_b32 {s(R3)}, 0x55555555"); a(f"s_mov_b32 {s(R3+1)}, 0x55555555")
        a(f"s_lshl_b32 {s(S_T0)}, {s(S_H)}, 16"); a(f"s_add_u32 {s(S_T0)}, {s(S_T0)}, {HBOX1:#x}")
        a(f"s_lshl_b32 {s(S_T1)}, {s(S_S)}, 11"); a(f"s_add_u32 {s(S_T1)}, {s(S_T1)}, {s(S_T0)}")
        a(f"s_lshl_b32 {s(S_T2)}, {s(SZ)}, 15"); a(f"s_add_u32 {s(S_T0)}, {s(S_T0)}, {s(S_T2)}")
        a(f"s_lshl_b32 {s(S_T2)}, {s(S_S)}, 6"); a(f"s_add_u32 {s(S_T0)}, {s(S_T0)}, {s(S_T2)}")
        a(f"s_lshl_b32 {s(S_T2)}, {s(SZ)}, 18"); a(f"s_add_u32 {s(S_T2)}, {s(S_T2)}, {HBOX2:#x}")
        a(f"s_lshl_b32 {s(R2)}, {s(S_WG)}, 4"); a(f"s_add_u32 {s(S_T2)}, {s(S_T2)}, {s(R2)}")
        a(f"s_lshl_b32 {s(R2)}, {s(SZ)}, 10")
        a(f"v_add_u32 {v(VA)}, {s(R2)}, {v(VA)}")
        a("s_waitcnt vmcnt(0)")
        for t in range(8):
            hf, k = t >> 2, t & 3
            for x, (sel, h0) in enumerate(((S_LO, 0), (S_LO, 2), (S_HIS, 0), (S_HIS, 2))):
                a(f"v_perm_b32 {v(AO+4*t+x)}, {v(W+8*(h0+1)+4*hf+k)}, {v(W+8*h0+4*hf+k)}, {s(sel)}")
        self.stamp(3)
        if self.cut:
            self.stamps_out(4); a("s_endpgm")
        a("s_barrier")
        self.stamp(4)
        for w in range(8): a(f"ds_read_b128 {v(W+4*w,4)}, {v(VA)} offset:{L_O+2048*w}")
        for w in range(1, 8):
            a(f"s_waitcnt lgkmcnt({7-w})" if not self.diag else "s_waitcnt lgkmcnt(0)")
            a(f"v_pk_add_f32 {v(W,2)}, {v(W,2)}, {v(W+4*w,2)}"); a(f"v_pk_add_f32 {v(W+2,2)}, {v(W+2,2)}, {v(W+4*w+2,2)}")
        self.tag(range(W, W+4), VT)
        a(f"buffer_store_dwordx4 {v(W,4)}, {v(VO)}, {s(R0,4)}, {s(S_T0)} offen sc1")
        self.stamp(5)
        PA, PB = W+8, W+12
        self.poll([f"buffer_load_dwordx4 {v(PA,4)}, {v(VP)}, {s(R0,4)}, {s(S_T1)} offen sc1",
                   f"buffer_load_dwordx4 {v(PB,4)}, {v(VP)}, {s(R0,4)}, {s(S_T1)} offen offset:1024 sc1"],
                  list(range(PA, PA+8)), VT, T, slow=False)
        self.stamp(6)
        a(f"v_pk_add_f32 {v(PA,2)}, {v(PA,2)}, {v(PB,2)}"); a(f"v_pk_add_f32 {v(PA+2,2)}, {v(PA+2,2)}, {v(PB+2,2)}")
        self.ror("v_add_f32", range(PA, PA+4), (8, 4, 2, 1))
        a(f"v_cvt_pk_bf16_f32 {v(T)}, {v(PA)}, {v(PA+1)}"); a(f"v_cvt_pk_bf16_f32 {v(T+1)}, {v(PA+2)}, {v(PA+3)}")
        a(f"v_cndmask_b32 {v(PB)}, 0, {v(T)}, {s(R3,2)}"); a(f"v_cndmask_b32 {v(PB+1)}, 0, {v(T+1)}, {s(R3,2)}")
        a(f"v_cndmask_b32 {v(PB+2)}, {v(T)}, 0, {s(R3,2)}"); a(f"v_cndmask_b32 {v(PB+3)}, {v(T+1)}, 0, {s(R3,2)}")
        def sel(t):
            for r in range(4): a(f"v_cndmask_b32 {v(DD+r)}, {v(DD+r)}, {v(DD+4*t+r)}, {s(S_M+2*t-2,2)}")
        for t in range(8):
            a(f"v_mfma_f32_16x16x32_bf16 {v(DD+4*t,4)}, {v(AO+4*t,4)}, {v(PB,4)}, 0")
            if t >= 4: sel(t - 3)
        for t in range(5, 8): sel(t)
        self.tag(range(DD, DD+4), VT)
        a(f"buffer_store_dwordx4 {v(DD,4)}, {v(VH)}, {s(R0,4)}, {s(S_T2)} offen sc1")
        self.stamp(7)
        if self.diag: a("s_waitcnt vmcnt(0)")
        self.stamp(8)
        self.stamps_out(T)
        a("s_endpgm")

    def build(self):
        a = self.a
        hdr = open("recurrent_scan__gqa_block_cached__swiglu_ffn__decode.s.ref").read().split("; @launch")[0]
        a(f'.amdgcn_target "amdgcn-amd-amdhsa--gfx950"')
        a(".text"); a(f".globl {KN}"); a(".p2align 8"); a(f".type {KN},@function"); a(f"{KN}:")
        a(f"s_load_dwordx16 {s(4,16)}, s[0:1], 0"); a(f"s_load_dwordx8 {s(20,8)}, s[0:1], 64")
        a("s_cmp_ge_u32 s2, 256"); a("s_cbranch_scc1 Lend")
        if self.diag:
            for k in range(1, 12): a(f"s_mov_b32 {s(S_ST+2*k)}, 0")
        self.stamp(0)
        a("v_lshrrev_b32 v1, 6, v0"); a("v_and_b32 v0, 63, v0"); a(f"v_readfirstlane_b32 {s(S_WAVE)}, v1")
        a(f"s_and_b32 {s(S_H)}, s2, 7"); a(f"s_lshr_b32 {s(S_S)}, s2, 3")
        a(f"s_cmp_ge_u32 {s(S_WAVE)}, 8"); a("s_cbranch_scc1 Lservice")
        self.streamer()
        a("Lservice:")
        if self.prio: a("s_setprio 3")
        self.consts()
        if self.cut == 1:
            a("s_waitcnt lgkmcnt(0)"); a("s_barrier"); self.stamps_out(4); a("s_endpgm")
        self.stage1()
        if self.cut == 2:
            self.stamps_out(4); a("s_endpgm")
        a(f"s_cmp_eq_u32 {s(S_WAVE)}, 9"); a("s_cbranch_scc1 Lsw1")
        a(f"s_cmp_gt_u32 {s(S_WAVE)}, 9"); a("s_cbranch_scc1 Lsw23")
        self.sw0()
        a("Lsw23:"); self.sw23()
        a("Lsw1:"); self.sw1()
        a("Lend:"); a("s_endpgm")
        a("Lcode_end:")
        a(".fill 64, 4, 0xbf800000")
        a('.section .rodata,"a"'); a(".p2align 6"); a(f".amdhsa_kernel {KN}")
        for d in ("next_free_vgpr 168", "next_free_sgpr 102", "accum_offset 168", "group_segment_fixed_size 0", "kernarg_size 96",
                  "user_sgpr_count 2", "user_sgpr_kernarg_segment_ptr 1", "system_sgpr_workgroup_id_x 1", "float_denorm_mode_32 3"):
            a(f".amdhsa_{d}")
        a(".end_amdhsa_kernel")
        return hdr + f"; @launch grid=(256,1,1) block=(768,1,1) lds={LDS_BYTES}\n" + a.finalize()

def gen(**kw): return G(**kw).build()
if __name__ == "__main__":
    kw = eval("dict(" + (sys.argv[2] if len(sys.argv) > 2 else "") + ")")
    open(sys.argv[1], "w").write(gen(**kw))
```

```python
import sys
from asmlib import Asm
KN = "recurrent_scan__gqa_block_cached__swiglu_ffn__decode_kernel"

EPOCH = 0
QBOX, MLBOX, GBOX = 0x1000, 0x9000, 0x90000
HBOX1, FBOX, HBOX2 = 0x10000, 0x100000, 0x180000
WS_USED = 0x200000
STAMP = 128 << 20
L_QFLAG, L_MLCNT, L_FFLAG, L_S1CNT = 0, 4, 8, 12
L_ML, L_F, L_Q, L_S1, L_O = 64, 320, 512, 1536, 2560
LDS_BYTES = 2560 + 16384
SPIN = 1 << 16

LOG2E = 0x3fb8aa3b
SCALE = 0x3db504f3
EPS = 0x3727c5ac

def v(i, n=1): return f"v{i}" if n == 1 else f"v[{i}:{i+n-1}]"
def s(i, n=1): return f"s{i}" if n == 1 else f"s[{i}:{i+n-1}]"

S_WG, S_WAVE = 2, 3
P_X, P_K, P_V, P_WQ, P_WO, P_BX, P_WG, P_WU, P_WD, P_OUT, P_DBG, P_WS = range(4, 28, 2)
R0, R1, R2, R3, R4 = 28, 32, 36, 40, 44
S_H, S_S = 48, 49
S_T0, S_T1, S_T2, S_T3 = 50, 51, 52, 53
S_HI, S_TM, S_LO, S_HIS = 54, 55, 56, 57
S_CNT, S_E = 58, 59
S_M = 60
S_ST = 76

class G:
    def __init__(self, D=4, il=12, kvpol="nt", wqpol="", wpol="nt", diag=0, pf=1, wo_wait=1, ffn_wait=0, outpol="sc1", prio=1, cut=0, psleep=0, esc=0, vpol=None, amp=None):
        self.__dict__.update(locals()); del self.__dict__['self']
        self.a = Asm(); self.nlab = 0; self.nst = 0
    def lab(self, p):
        self.nlab += 1; return f"L{p}{self.nlab}"
    def srd(self, r, ptr, size):
        a = self.a
        a(f"s_mov_b32 {s(r)}, {s(ptr)}"); a(f"s_mov_b32 {s(r+1)}, {s(ptr+1)}")
        a(f"s_mov_b32 {s(r+2)}, {size:#x}"); a(f"s_mov_b32 {s(r+3)}, 0x20000")
    def stamp(self, k):
        if self.diag or self.amp: self.a(f"s_memrealtime {s(S_ST+2*k,2)}")
    def stamps_out(self, vt):
        if not self.diag: return
        a = self.a
        a("s_getreg_b32 s98, hwreg(HW_REG_XCC_ID)")
        a("s_waitcnt lgkmcnt(0)")
        a(f"s_mul_i32 {s(S_T0)}, {s(S_WG)}, 12"); a(f"s_add_u32 {s(S_T0)}, {s(S_T0)}, {s(S_WAVE)}")
        a(f"s_lshl_b32 {s(S_T0)}, {s(S_T0)}, 6"); a(f"s_add_u32 {s(S_T0)}, {s(S_T0)}, {STAMP:#x}")
        a("s_mov_b64 exec, 1")
        a(f"v_mov_b32 {v(vt)}, {s(S_T0)}")
        for k in range(12):
            a(f"v_mov_b32 {v(vt+1)}, {s(S_ST+2*k)}")
            a(f"global_store_dword {v(vt)}, {v(vt+1)}, {s(P_WS,2)} offset:{4*k}")
        a("s_waitcnt vmcnt(0)")
    def unpack(self, lo, hi, src):
        self.a(f"v_lshlrev_b32 {v(lo)}, 16, {v(src)}"); self.a(f"v_and_b32 {v(hi)}, {s(S_HI)}, {v(src)}")
    def rbf1(self, dst, src):
        self.a(f"v_cvt_pk_bf16_f32 {v(dst)}, {v(src)}, {v(src)}"); self.a(f"v_and_b32 {v(dst)}, {s(S_HI)}, {v(dst)}")
    def rbf2(self, d0, d1, s0, s1, t):
        self.a(f"v_cvt_pk_bf16_f32 {v(t)}, {v(s0)}, {v(s1)}"); self.unpack(d0, d1, t)
    def ror(self, op, regs, steps):
        for n in steps:
            for r in regs: self.a(f"{op}_dpp {v(r)}, {v(r)}, {v(r)} row_ror:{n} row_mask:0xf bank_mask:0xf")
    def rows_all(self, op, x, t):
        a = self.a
        for sw in ("v_permlane16_swap_b32", "v_permlane32_swap_b32"):
            a(f"v_mov_b32 {v(t)}, {v(x)}"); a(f"{sw} {v(x)}, {v(t)}"); a(f"{op} {v(x)}, {v(x)}, {v(t)}")
    def fold(self, sw, pairs):
        for x, y in pairs: self.a(f"{sw} {v(x)}, {v(y)}")
        for x, y in pairs: self.a(f"v_add_f32 {v(x)}, {v(x)}, {v(y)}")
    def silu_bf(self, dst, x, t):
        a = self.a
        a(f"v_mul_f32 {v(t)}, {0x80000000 ^ LOG2E:#x}, {v(x)}"); a(f"v_exp_f32 {v(t)}, {v(t)}")
        a(f"v_add_f32 {v(t)}, 1.0, {v(t)}"); a(f"v_rcp_f32 {v(t)}, {v(t)}"); a(f"v_mul_f32 {v(t)}, {v(x)}, {v(t)}")
        self.rbf1(dst, t)
    def layernorm(self, X, XF, T):
        a = self.a
        for k in range(4): self.unpack(XF+2*k, XF+2*k+1, X+k)
        a(f"v_add_f32 {v(T)}, {v(XF)}, {v(XF+1)}")
        for k in range(2, 8): a(f"v_add_f32 {v(T)}, {v(T)}, {v(XF+k)}")
        self.ror("v_add_f32", [T], (8, 4, 2, 1)); self.rows_all("v_add_f32", T, T+1)
        a(f"v_mul_f32 {v(T)}, 0x3b000000, {v(T)}")
        a(f"v_sub_f32 {v(T+2)}, {v(XF)}, {v(T)}"); a(f"v_mul_f32 {v(T+3)}, {v(T+2)}, {v(T+2)}")
        for k in range(1, 8):
            a(f"v_sub_f32 {v(T+2)}, {v(XF+k)}, {v(T)}"); a(f"v_fmac_f32 {v(T+3)}, {v(T+2)}, {v(T+2)}")
        self.ror("v_add_f32", [T+3], (8, 4, 2, 1)); self.rows_all("v_add_f32", T+3, T+1)
        a(f"v_mul_f32 {v(T+3)}, 0x3b000000, {v(T+3)}")
        self.rbf2(T, T+3, T, T+3, T+1)
        a(f"v_add_f32 {v(T+3)}, {EPS:#x}, {v(T+3)}"); self.rbf1(T+3, T+3)
        a(f"v_sqrt_f32 {v(T+3)}, {v(T+3)}"); self.rbf1(T+3, T+3)
        a(f"v_rcp_f32 {v(T+2)}, {v(T+3)}")
        for k in range(8): a(f"v_sub_f32 {v(XF+k)}, {v(XF+k)}, {v(T)}")
        for k in range(4): self.rbf2(XF+2*k, XF+2*k+1, XF+2*k, XF+2*k+1, T+1)
        for k in range(8):
            a(f"v_mul_f32 {v(T+4)}, {v(XF+k)}, {v(T+2)}")
            a(f"v_fma_f32 {v(T+5)}, -{v(T+4)}, {v(T+3)}, {v(XF+k)}")
            a(f"v_fma_f32 {v(XF+k)}, {v(T+5)}, {v(T+2)}, {v(T+4)}")
        for k in range(4): self.rbf2(XF+2*k, XF+2*k+1, XF+2*k, XF+2*k+1, T+1)
    def tag(self, regs, vT, dst=None):
        for i, r in enumerate(regs):
            d = r if dst is None else dst[i]
            self.a(f"v_bfi_b32 {v(d)}, {s(S_TM)}, {v(vT)}, {v(r)}")
    def poll(self, loads, words, vT, t, first_exec=None, slow=True):
        a = self.a; L = self.lab("poll"); Lo = self.lab("pollx")
        a(f"s_mov_b32 {s(S_CNT)}, {SPIN}")
        if first_exec: a(f"s_mov_b64 exec, {first_exec}")
        a(f"{L}:")
        for ld in loads: a(ld)
        a("s_waitcnt vmcnt(0)")
        a(f"v_xor_b32 {v(t)}, {v(words[0])}, {v(vT)}")
        for w in words[1:]: a(f"v_bitop3_b32 {v(t)}, {v(w)}, {v(vT)}, {v(t)} bitop3:0xbe")
        a(f"v_and_b32 {v(t)}, {s(S_TM)}, {v(t)}")
        a(f"v_cmp_ne_u32 vcc, 0, {v(t)}")
        a(f"s_sub_u32 {s(S_CNT)}, {s(S_CNT)}, 1")
        a(f"s_cbranch_scc1 {Lo}")
        a("s_mov_b64 exec, vcc")
        if self.psleep and slow:
            a(f"s_cbranch_execz {Lo}"); a(f"s_sleep {self.psleep}"); a(f"s_branch {L}")
        else: a(f"s_cbranch_execnz {L}")
        a(f"{Lo}:")
        a("s_mov_b64 exec, -1")
    def lds_wait(self, off, val, vz, t, extra=()):
        a = self.a; L = self.lab("lw"); Lo = self.lab("lwx")
        a(f"s_mov_b32 {s(S_CNT)}, {SPIN*16}")
        a(f"{L}:")
        a(f"ds_read_b32 {v(t)}, {v(vz)} offset:{off}")
        for e in extra: a(e)
        a("s_waitcnt lgkmcnt(0)")
        a(f"v_readfirstlane_b32 {s(S_T3)}, {v(t)}")
        a(f"s_cmp_eq_u32 {s(S_T3)}, {val}")
        a(f"s_cbranch_scc1 {Lo}")
        a(f"s_sub_u32 {s(S_CNT)}, {s(S_CNT)}, 1")
        a(f"s_cbranch_scc1 {Lo}")
        a("s_sleep 1")
        a(f"s_branch {L}")
        a(f"{Lo}:")
    def epoch_load(self, vt, vz):
        self.a(f"buffer_load_dword {v(vt)}, {v(vz)}, {s(R0,4)}, 0 offen offset:{EPOCH}" + (" sc1" if self.esc else ""))
    def epoch_tag(self, vT):
        a = self.a
        a(f"v_add_u32 {v(vT)}, 1, {v(vT)}"); a(f"v_readfirstlane_b32 {s(S_E)}, {v(vT)}")
        a(f"v_and_b32 {v(vT)}, {s(S_TM)}, {v(vT)}")
    def streamer(self):
        a = self.a; D = self.D
        VK, VV, VZ, VT, VT2 = 1, 2, 3, 4, 5
        Q, S, DT, KB = 8, 12, 20, 36
        slot = lambda i: KB + 4*i
        ACC, AO, F, B = slot(16), slot(18), slot(22), slot(23)
        SB = S_T0
        a(f"s_lshl_b32 {s(SB)}, {s(S_H)}, 23"); a(f"s_lshl_b32 {s(S_T1)}, {s(S_S)}, 18"); a(f"s_or_b32 {s(SB)}, {s(SB)}, {s(S_T1)}")
        a(f"s_lshl_b32 {s(S_T1)}, {s(S_WAVE)}, {self.il}"); a(f"s_or_b32 {s(SB)}, {s(SB)}, {s(S_T1)}")
        a(f"v_lshlrev_b32 {v(VV)}, 4, v0")
        a(f"v_and_b32 {v(VK)}, 0x3c0, {v(VV)}")
        a(f"v_and_b32 {v(VT)}, 0xc0, {v(VK)}"); a(f"v_lshlrev_b32 {v(VT)}, 2, {v(VT)}")
        a(f"v_lshrrev_b32 {v(VK)}, 8, {v(VK)}"); a(f"v_lshlrev_b32 {v(VK)}, 6, {v(VK)}")
        a(f"v_and_b32 {v(VT2)}, 0x30, {v(VV)}")
        a(f"v_or3_b32 {v(VK)}, {v(VK)}, {v(VT)}, {v(VT2)}")
        a(f"v_mov_b32 {v(VZ)}, 0")
        a("s_waitcnt lgkmcnt(0)")
        self.srd(R0, P_K, 0x4000000); self.srd(R1, P_V, 0x4000000)
        def off(i):
            if self.il == 12: return (i >> 2) * 32768, (i & 3) * 1024
            return i * 8192, 0
        last_so = [None]
        def load(n):
            t, i = divmod(n, 32)
            so, imm = off(i)
            if so != last_so[0]:
                a(f"s_add_u32 {s(S_T1)}, {s(SB)}, {so}"); last_so[0] = so
            sl = slot(i) if t == 0 else slot(i % 16)
            a(f"buffer_load_dwordx4 {v(sl,4)}, {v(VV if t else VK)}, {s(R1 if t else R0,4)}, {s(S_T1)} offen offset:{imm} {self.kvpol if (t == 0 or self.vpol is None) else self.vpol}")
        def qk(j):
            for m in range(4):
                a(f"v_mfma_f32_16x16x32_bf16 {v(DT+4*m,4)}, {v(slot(4*j+m),4)}, {v(Q,4)}, 0")
            for k in range(1, 4):
                for m in range(4):
                    b = (m + k) & 3
                    other = DT+4*m+m if k == 1 else S+j
                    a(f"v_add_f32_dpp {v(S+j)}, {v(DT+4*m+b)}, {v(other)} row_ror:{(4*(m-b)) & 15} row_mask:0xf bank_mask:{1<<m:#x}")
        def softmax():
            a(f"s_mov_b32 {s(S_T2)}, {SCALE:#x}")
            for k in range(4):
                x, y = S+2*k, S+2*k+1
                self.rbf2(x, y, x, y, VT)
                a(f"v_mul_f32 {v(x)}, {s(S_T2)}, {v(x)}"); a(f"v_mul_f32 {v(y)}, {s(S_T2)}, {v(y)}")
                self.rbf2(x, y, x, y, VT)
            M, Lr = DT, DT+1
            a(f"v_max3_f32 {v(M)}, {v(S)}, {v(S+1)}, {v(S+2)}"); a(f"v_max3_f32 {v(M)}, {v(M)}, {v(S+3)}, {v(S+4)}")
            a(f"v_max3_f32 {v(M)}, {v(M)}, {v(S+5)}, {v(S+6)}"); a(f"v_max_f32 {v(M)}, {v(M)}, {v(S+7)}")
            self.ror("v_max_f32", [M], (4, 8)); self.rows_all("v_max_f32", M, VT)
            a(f"s_mov_b32 {s(S_T2)}, {LOG2E:#x}")
            for k in range(8): a(f"v_sub_f32 {v(S+k)}, {v(S+k)}, {v(M)}")
            for k in range(8): a(f"v_mul_f32 {v(S+k)}, {s(S_T2)}, {v(S+k)}")
            for k in range(8): a(f"v_exp_f32 {v(S+k)}, {v(S+k)}")
            a(f"v_add_f32 {v(Lr)}, {v(S)}, {v(S+1)}")
            for k in range(2, 8): a(f"v_add_f32 {v(Lr)}, {v(Lr)}, {v(S+k)}")
            self.ror("v_add_f32", [Lr], (4, 8)); self.rows_all("v_add_f32", Lr, VT)
            a(f"s_lshl_b32 {s(S_T2)}, {s(S_WAVE)}, 5")
            a(f"v_lshl_add_u32 {v(VT)}, v0, 2, {s(S_T2)}"); a(f"v_mov_b32 {v(VT2)}, 1")
            a("s_mov_b64 exec, 15")
            a(f"ds_write2_b32 {v(VT)}, {v(M)}, {v(Lr)} offset0:{L_ML//4} offset1:{L_ML//4+4}")
            a("s_mov_b64 exec, 1")
            a(f"ds_add_u32 {v(VZ)}, {v(VT2)} offset:{L_MLCNT}")
            a("s_mov_b64 exec, -1")
            for r in range(ACC, ACC+8): a(f"v_mov_b32 {v(r)}, 0")
            for r in range(AO, AO+16): a(f"v_mov_b32 {v(r)}, 0")
        def build_a(j):
            a(f"v_cvt_pk_bf16_f32 {v(VT)}, {v(S+2*j)}, {v(S+2*j+1)}")
            for m in range(4):
                for e in range(4):
                    n = (4*(e-m)) & 15
                    ctl = f"row_ror:{n}" if n else "quad_perm:[0,1,2,3]"
                    a(f"v_mov_b32_dpp {v(AO+4*e+m)}, {v(VT)} {ctl} row_mask:0xf bank_mask:{1<<e:#x}")
        def perm1(j, m, e):
            lo, hi = slot((8*j+m) % 16), slot((8*j+4+m) % 16)
            a(f"v_perm_b32 {v(B+4*e+m)}, {v(hi+(e>>1))}, {v(lo+(e>>1))}, {s(S_HIS if e & 1 else S_LO)}")
        def mfma_pv(e):
            acc = ACC + 4*(e >> 2)
            a(f"v_mfma_f32_16x16x32_bf16 {v(acc,4)}, {v(AO+4*(e&3),4)}, {v(B+4*e,4)}, {v(acc,4)}")
        def pv_last(j):
            order = [0, 4, 1, 5, 2, 6, 3, 7]
            for k in range(3): perm1(j, 3, order[k])
            for k in range(8):
                mfma_pv(order[k])
                if k + 3 < 8: perm1(j, 3, order[k+3])
        n0 = 24 + D
        tasks = {}
        def at(n, f): tasks.setdefault(n, []).append(f)
        def qwait():
            a(f"v_and_b32 {v(VT2)}, 3, v0"); a(f"v_lshlrev_b32 {v(VT2)}, 8, {v(VT2)}")
            a(f"v_and_b32 {v(VT)}, 0xc0, {v(VV)}"); a(f"v_lshrrev_b32 {v(VT)}, 2, {v(VT)}")
            a(f"v_and_b32 {v(DT)}, 0x300, {v(VV)}"); a(f"v_lshrrev_b32 {v(DT)}, 2, {v(DT)}")
            a(f"v_or3_b32 {v(VT2)}, {v(VT2)}, {v(VT)}, {v(DT)}")
            self.stamp(2)
            if not self.cut: self.lds_wait(L_QFLAG, 1, VZ, VT, [f"ds_read_b128 {v(Q,4)}, {v(VT2)} offset:{L_Q}"])
            self.stamp(3)
        at(n0, qwait)
        for j in range(8): at(n0 + j, lambda j=j: qk(j))
        at(n0 + 7, softmax)
        def fwait():
            a(f"s_lshl_b32 {s(S_T2)}, {s(S_WAVE)}, 4")
            a(f"v_and_b32 {v(VT2)}, 3, v0"); a(f"v_lshl_add_u32 {v(VT2)}, {v(VT2)}, 2, {s(S_T2)}")
            a(f"v_mov_b32 {v(DT+1)}, {s(S_T2)}")
            self.stamp(5)
            if not self.cut: self.lds_wait(L_FFLAG, 1, VZ, VT, [f"ds_read_b128 {v(F,4)}, {v(DT+1)} offset:{L_F}", f"ds_read_b32 {v(DT)}, {v(VT2)} offset:{L_F}"])
            self.stamp(6)
            for E in range(2):
                for h in range(4): a(f"v_mul_f32 {v(ACC+4*E+h)}, {v(F+h)}, {v(ACC+4*E+h)}")
            a(f"v_mul_f32 {v(S+6)}, {v(DT)}, {v(S+6)}"); a(f"v_mul_f32 {v(S+7)}, {v(DT)}, {v(S+7)}")
        for j in range(4):
            base = 32 + 8*j + 4 + D
            if j == 3: at(base, fwait)
            at(base, lambda j=j: build_a(j))
            for m in range(3): at(base + m, lambda j=j, m=m: [perm1(j, m, e) for e in range(8)])
            at(base + 3, lambda j=j: pv_last(j))
        for n in range(64 + D):
            if n < 64:
                if n >= D: a(f"s_waitcnt vmcnt({D-1})")
                load(n)
                if n == D - 1:
                    a(f"s_mov_b32 {s(S_HI)}, 0xffff0000"); a(f"s_mov_b32 {s(S_LO)}, 0x05040100"); a(f"s_mov_b32 {s(S_HIS)}, 0x07060302")
                    a("s_barrier")
                if n == D: self.stamp(1)
                if n == 32 + D: self.stamp(4)
            else:
                a(f"s_waitcnt vmcnt({63 + D - n})")
                if n == 63 + D: self.stamp(7)
            for f in tasks.get(n, []): f()
        a(f"s_lshl_b32 {s(S_T2)}, {s(S_WAVE)}, 11")
        a(f"v_add_u32 {v(VT)}, {s(S_T2)}, {v(VV)}")
        a(f"ds_write_b128 {v(VT)}, {v(ACC,4)} offset:{L_O}")
        a(f"ds_write_b128 {v(VT)}, {v(ACC+4,4)} offset:{L_O+1024}")
        a("s_waitcnt lgkmcnt(0)")
        a("s_barrier")
        self.stamp(8)
        self.stamps_out(VT)
        a("s_endpgm")

    def consts(self):
        a = self.a
        a(f"s_mov_b32 {s(S_HI)}, 0xffff0000"); a(f"s_mov_b32 {s(S_TM)}, 0xfff")
        a(f"s_mov_b32 {s(S_LO)}, 0x05040100"); a(f"s_mov_b32 {s(S_HIS)}, 0x07060302")

    VZ, VT, VA, T = 1, 2, 3, 4
    def stage1(self):
        a = self.a
        VZ, VT, VA, T = self.VZ, self.VT, self.VA, self.T
        X, XF, XR, ACC, W = 12, 16, 24, 32, 40
        SZ, SCB, SRB, SROW, SSTR = S_M, S_M+1, S_M+2, S_M+3, S_M+4
        a(f"s_and_b32 {s(SZ)}, {s(S_WAVE)}, 3")
        a(f"v_mov_b32 {v(VZ)}, 0"); a(f"v_lshlrev_b32 {v(VA)}, 4, v0")
        if self.pf:
            Lp = self.lab("nopf")
            a(f"s_cmp_ge_u32 {s(S_S)}, {self.pf}"); a(f"s_cbranch_scc1 {Lp}")
            a(f"s_getpc_b64 {s(R4,2)}")
            a(f"Lpc:")
            a(f"s_sub_u32 {s(R4)}, {s(R4)}, Lpc-{KN}"); a(f"s_subb_u32 {s(R4+1)}, {s(R4+1)}, 0")
            a(f"s_mov_b32 {s(R4+2)}, Lcode_end-{KN}"); a(f"s_mov_b32 {s(R4+3)}, 0x20000")
            a(f"s_lshl_b32 {s(S_T0)}, {s(SZ)}, 12")
            for k in range(4):
                a(f"buffer_load_dwordx4 {v(W+32+4*k,4)}, {v(VA)}, {s(R4,4)}, {s(S_T0)} offen offset:{1024*k}")
            a(f"{Lp}:")
        Lf, Lj = self.lab("s1ffn"), self.lab("s1join")
        a(f"s_cmp_ge_u32 {s(S_S)}, 16"); a(f"s_cbranch_scc1 {Lf}")
        a(f"s_and_b32 {s(SCB)}, {s(S_S)}, 7"); a(f"s_lshr_b32 {s(SRB)}, {s(S_S)}, 3")
        a(f"s_lshl_b32 {s(SROW)}, {s(SRB)}, 2"); a(f"s_add_u32 {s(SROW)}, {s(SROW)}, {s(SZ)}"); a(f"s_lshl_b32 {s(SROW)}, {s(SROW)}, 6")
        a(f"s_mov_b32 {s(SSTR)}, 8192")
        a(f"s_lshl_b32 {s(S_T0)}, {s(S_H)}, 3"); a(f"s_add_u32 {s(S_T0)}, {s(S_T0)}, {s(SCB)}")
        a("s_waitcnt lgkmcnt(0)")
        self.srd(R2, P_WQ, 0x400000)
        a(f"s_branch {Lj}")
        a(f"{Lf}:")
        a(f"s_sub_u32 {s(S_T0)}, {s(S_S)}, 16"); a(f"s_lshl_b32 {s(S_T0)}, {s(S_T0)}, 3"); a(f"s_add_u32 {s(S_T0)}, {s(S_T0)}, {s(S_H)}")
        a(f"s_lshr_b32 {s(SCB)}, {s(S_T0)}, 2"); a(f"s_and_b32 {s(SRB)}, {s(S_T0)}, 3")
        a(f"s_and_b32 {s(S_T1)}, {s(SZ)}, 1")
        a(f"s_lshl_b32 {s(SROW)}, {s(SRB)}, 1"); a(f"s_add_u32 {s(SROW)}, {s(SROW)}, {s(S_T1)}"); a(f"s_lshl_b32 {s(SROW)}, {s(SROW)}, 6")
        a(f"s_mov_b32 {s(SSTR)}, 3584")
        a(f"s_mov_b32 {s(S_T0)}, {s(SCB)}")
        a("s_waitcnt lgkmcnt(0)")
        a(f"s_cmp_ge_u32 {s(SZ)}, 2")
        a(f"s_cselect_b32 {s(R2)}, {s(P_WU)}, {s(P_WG)}"); a(f"s_cselect_b32 {s(R2+1)}, {s(P_WU+1)}, {s(P_WG+1)}")
        a(f"s_cmp_lt_u32 {s(SCB)}, 28")
        a(f"s_cselect_b32 {s(R2+2)}, 0x1c0000, 0"); a(f"s_mov_b32 {s(R2+3)}, 0x20000")
        a(f"{Lj}:")
        self.srd(R0, P_WS, WS_USED); self.srd(R1, P_X, 1024)
        a(f"s_lshl_b32 {s(S_T0)}, {s(S_T0)}, 7"); a(f"s_mul_i32 {s(S_T1)}, {s(SROW)}, {s(SSTR)}"); a(f"s_add_u32 {s(S_T0)}, {s(S_T0)}, {s(S_T1)}")
        a(f"v_and_b32 {v(T)}, 56, v0"); a(f"v_mul_u32_u24 {v(T)}, {s(SSTR)}, {v(T)}")
        a(f"v_and_b32 {v(T+1)}, 0x70, {v(VA)}"); a(f"v_add_u32 {v(T)}, {v(T)}, {v(T+1)}")
        a(f"buffer_load_dwordx4 {v(X,4)}, {v(VA)}, {s(R1,4)}, 0 offen")
        self.epoch_load(VT, VZ)
        for j in range(8):
            a(f"buffer_load_dwordx4 {v(W+4*j,4)}, {v(T)}, {s(R2,4)}, {s(S_T0)} offen {self.wqpol}")
            if j < 7: a(f"s_add_u32 {s(S_T0)}, {s(S_T0)}, {s(SSTR)}")
        a(f"v_mov_b32 {v(T+2)}, 0"); a(f"v_mov_b32 {v(T+3)}, 0")
        Lb = self.lab("s1b")
        a(f"s_cmp_lg_u32 {s(SZ)}, 0"); a(f"s_cbranch_scc1 {Lb}")
        a(f"ds_write_b64 {v(VZ)}, {v(T+2,2)} offset:0"); a(f"ds_write_b64 {v(VZ)}, {v(T+2,2)} offset:8")
        a("s_waitcnt lgkmcnt(0)")
        a(f"{Lb}:")
        a("s_barrier")
        a("s_waitcnt vmcnt(9)")
        self.stamp(1)
        self.layernorm(X, XF, T)
        a(f"s_lshr_b32 {s(S_T0)}, {s(SROW)}, 1")
        a(f"v_lshrrev_b32 {v(T)}, 3, v0"); a(f"v_lshl_add_u32 {v(T)}, {v(T)}, 2, {s(S_T0)}")
        for j in range(8): a(f"ds_bpermute_b32 {v(XR+j)}, {v(T)}, {v(XF+j)}")
        a("s_waitcnt lgkmcnt(0)")
        for j in range(8):
            a(f"s_waitcnt vmcnt({7-j})")
            if j == 0: self.epoch_tag(VT)
            for k in range(4):
                self.unpack(T, T+1, W+4*j+k)
                op = "v_mul_f32" if j == 0 else "v_fmac_f32"
                a(f"{op} {v(ACC+2*k)}, {v(XR+j)}, {v(T)}"); a(f"{op} {v(ACC+2*k+1)}, {v(XR+j)}, {v(T+1)}")
        self.fold("v_permlane32_swap_b32", [(ACC+e, ACC+e+4) for e in range(4)])
        self.fold("v_permlane16_swap_b32", [(ACC+e, ACC+e+2) for e in range(2)])
        self.ror("v_add_f32", [ACC, ACC+1], (8,))
        a(f"s_lshl_b32 {s(S_T0)}, {s(SZ)}, 8")
        a(f"v_and_b32 {v(T)}, 7, v0"); a(f"v_lshl_add_u32 {v(T)}, {v(T)}, 5, {s(S_T0)}")
        a(f"v_lshrrev_b32 {v(T+1)}, 4, v0"); a(f"v_lshl_add_u32 {v(T)}, {v(T+1)}, 3, {v(T)}")
        a(f"v_mov_b32 {v(T+1)}, 1")
        a("s_mov_b32 exec_lo, 0xff00ff"); a("s_mov_b32 exec_hi, 0xff00ff")
        a(f"ds_write_b64 {v(T)}, {v(ACC,2)} offset:{L_S1}")
        a("s_mov_b64 exec, 1")
        a(f"ds_add_u32 {v(VZ)}, {v(T+1)} offset:{L_S1CNT}")
        a("s_mov_b64 exec, -1")
        self.stamp(2)

    def sw0(self):
        a = self.a
        VZ, VT, VA, T = self.VZ, self.VT, self.VA, self.T
        XF, W = 16, 40
        SZ, SCB, SRB = S_M, S_M+1, S_M+2
        if self.cut == 3:
            self.stamps_out(4); a("s_endpgm")
        a(f"v_and_b32 {v(T)}, 0xf0, {v(VA)}"); a(f"v_and_b32 {v(T+2)}, 16, v0"); a(f"v_lshl_add_u32 {v(T)}, {v(T+2)}, 5, {v(T)}")
        self.lds_wait(L_S1CNT, 4, VZ, T+1, [f"ds_read_b128 {v(W,4)}, {v(T)} offset:{L_S1}", f"ds_read_b128 {v(W+4,4)}, {v(T)} offset:{L_S1+256}"])
        a(f"v_pk_add_f32 {v(W,2)}, {v(W,2)}, {v(W+4,2)}"); a(f"v_pk_add_f32 {v(W+2,2)}, {v(W+2,2)}, {v(W+6,2)}")
        Lf, Lj = self.lab("c1ffn"), self.lab("c1join")
        a(f"s_cmp_ge_u32 {s(S_S)}, 16"); a(f"s_cbranch_scc1 {Lf}")
        for r in range(4): a(f"v_mov_b32 {v(W+4+r)}, {v(W+r)}")
        self.fold("v_permlane16_swap_b32", [(W+r, W+4+r) for r in range(4)])
        a(f"v_and_b32 {v(T)}, 0xf0, {v(VA)}")
        a(f"s_lshl_b32 {s(S_T1)}, {s(S_H)}, 12"); a(f"s_lshl_b32 {s(S_T2)}, {s(SRB)}, 11"); a(f"s_add_u32 {s(S_T1)}, {s(S_T1)}, {s(S_T2)}")
        a(f"s_lshl_b32 {s(S_T2)}, {s(SCB)}, 8"); a(f"s_add_u32 {s(S_T1)}, {s(S_T1)}, {s(S_T2)}"); a(f"s_add_u32 {s(S_T1)}, {s(S_T1)}, {QBOX:#x}")
        a("s_mov_b64 exec, 0xffff")
        a(f"s_branch {Lj}")
        a(f"{Lf}:")
        a(f"v_and_b32 {v(T)}, 14, v0"); a(f"v_lshlrev_b32 {v(T)}, 7, {v(T)}")
        a(f"v_and_b32 {v(T+1)}, 16, {v(VA)}"); a(f"v_lshl_add_u32 {v(T+1)}, {v(T+2)}, 1, {v(T+1)}"); a(f"v_add_u32 {v(T)}, {v(T)}, {v(T+1)}")
        a(f"s_lshl_b32 {s(S_T1)}, {s(SCB)}, 11"); a(f"s_lshl_b32 {s(S_T2)}, {s(SRB)}, 6"); a(f"s_add_u32 {s(S_T1)}, {s(S_T1)}, {s(S_T2)}")
        a(f"s_add_u32 {s(S_T1)}, {s(S_T1)}, {GBOX:#x}")
        a("s_mov_b32 exec_lo, -1"); a("s_mov_b32 exec_hi, 0")
        a(f"{Lj}:")
        a("s_nop 1")
        self.tag(range(W, W+4), VT)
        a(f"buffer_store_dwordx4 {v(W,4)}, {v(T)}, {s(R0,4)}, {s(S_T1)} offen sc1")
        a("s_mov_b64 exec, -1")
        a(f"s_lshl_b32 {s(S_T0)}, {s(S_H)}, 12"); a(f"s_add_u32 {s(S_T0)}, {s(S_T0)}, {QBOX:#x}")
        W2 = W + 8
        self.poll([f"buffer_load_dwordx4 {v(W2+4*k,4)}, {v(VA)}, {s(R0,4)}, {s(S_T0)} offen offset:{1024*k} sc1" for k in range(4)],
                  list(range(W2, W2+16)), VT, T)
        for k in range(4): a(f"v_pk_add_f32 {v(W2+2*k,2)}, {v(W2+2*k,2)}, {v(W2+8+2*k,2)}")
        for k in range(4): a(f"v_cvt_pk_bf16_f32 {v(XF+k)}, {v(W2+2*k)}, {v(W2+2*k+1)}")
        a(f"v_lshlrev_b32 {v(T)}, 3, v0"); a(f"v_mov_b32 {v(T+1)}, 1")
        a(f"ds_write_b64 {v(T)}, {v(XF,2)} offset:{L_Q}"); a(f"ds_write_b64 {v(T)}, {v(XF+2,2)} offset:{L_Q+512}")
        a("s_waitcnt lgkmcnt(0)")
        a(f"ds_write_b32 {v(VZ)}, {v(T+1)} offset:{L_QFLAG}")
        self.stamp(3)
        if self.cut in (4, 5):
            self.stamps_out(4); a("s_endpgm")
        MW, LW, M, L, MA, LA, MB, LB = XF, XF+1, XF+2, XF+3, W, W+1, W+2, W+3
        a(f"v_and_b32 {v(T)}, 28, v0"); a(f"v_lshlrev_b32 {v(T)}, 3, {v(T)}")
        a(f"v_and_b32 {v(T+2)}, 3, v0"); a(f"v_lshl_add_u32 {v(T)}, {v(T+2)}, 2, {v(T)}")
        self.lds_wait(L_MLCNT, 8, VZ, T+1, [f"ds_read2_b32 {v(MW,2)}, {v(T)} offset0:{L_ML//4} offset1:{L_ML//4+4}"])
        self.stamp(4)
        a(f"s_mov_b32 {s(S_T2)}, {LOG2E:#x}")
        a(f"v_mov_b32 {v(M)}, {v(MW)}")
        self.ror("v_max_f32", [M], (4, 8))
        a(f"v_mov_b32 {v(T)}, {v(M)}"); a(f"v_permlane16_swap_b32 {v(M)}, {v(T)}"); a(f"v_max_f32 {v(M)}, {v(M)}, {v(T)}")
        a(f"v_sub_f32 {v(L)}, {v(MW)}, {v(M)}"); a(f"v_mul_f32 {v(L)}, {s(S_T2)}, {v(L)}"); a(f"v_exp_f32 {v(L)}, {v(L)}")
        a(f"v_mul_f32 {v(L)}, {v(L)}, {v(LW)}")
        self.ror("v_add_f32", [L], (4, 8))
        a(f"v_mov_b32 {v(T)}, {v(L)}"); a(f"v_permlane16_swap_b32 {v(L)}, {v(T)}"); a(f"v_add_f32 {v(L)}, {v(L)}, {v(T)}")
        self.tag([M, L], VT)
        a(f"v_lshlrev_b32 {v(T)}, 3, v0")
        a(f"s_lshl_b32 {s(S_T0)}, {s(S_H)}, 10"); a(f"s_add_u32 {s(S_T0)}, {s(S_T0)}, {MLBOX:#x}")
        a(f"s_lshl_b32 {s(S_T1)}, {s(S_S)}, 5"); a(f"s_add_u32 {s(S_T1)}, {s(S_T1)}, {s(S_T0)}")
        a("s_mov_b64 exec, 15")
        a(f"buffer_store_dwordx2 {v(M,2)}, {v(T)}, {s(R0,4)}, {s(S_T1)} offen sc1")
        a("s_mov_b64 exec, -1")
        self.poll([f"buffer_load_dwordx2 {v(MA,2)}, {v(T)}, {s(R0,4)}, {s(S_T0)} offen sc1",
                   f"buffer_load_dwordx2 {v(MB,2)}, {v(T)}, {s(R0,4)}, {s(S_T0)} offen offset:512 sc1"],
                  [MA, LA, MB, LB], VT, T+1)
        a(f"v_and_b32 {v(MA)}, {s(S_HI)}, {v(MA)}"); a(f"v_and_b32 {v(MB)}, {s(S_HI)}, {v(MB)}")
        a(f"v_max_f32 {v(M)}, {v(MA)}, {v(MB)}")
        self.ror("v_max_f32", [M], (4, 8)); self.rows_all("v_max_f32", M, T)
        for r in (MA, MB, MW): a(f"v_sub_f32 {v(r)}, {v(r)}, {v(M)}")
        for r in (MA, MB, MW): a(f"v_mul_f32 {v(r)}, {s(S_T2)}, {v(r)}")
        for r in (MA, MB, MW): a(f"v_exp_f32 {v(r)}, {v(r)}")
        a(f"v_mul_f32 {v(L)}, {v(MA)}, {v(LA)}"); a(f"v_fmac_f32 {v(L)}, {v(MB)}, {v(LB)}")
        self.ror("v_add_f32", [L], (4, 8)); self.rows_all("v_add_f32", L, T)
        a(f"v_rcp_f32 {v(L)}, {v(L)}"); a(f"v_mul_f32 {v(MW)}, {v(MW)}, {v(L)}")
        a(f"v_and_b32 {v(T)}, 31, v0"); a(f"v_lshlrev_b32 {v(T)}, 2, {v(T)}"); a(f"v_mov_b32 {v(T+1)}, 1")
        a(f"ds_write_b32 {v(T)}, {v(MW)} offset:{L_F}")
        a("s_waitcnt lgkmcnt(0)")
        a(f"ds_write_b32 {v(VZ)}, {v(T+1)} offset:{L_FFLAG}")
        a("s_waitcnt lgkmcnt(0)")
        self.stamp(5)
        self.stamps_out(T)
        a("s_endpgm")

    def sw1(self):
        a = self.a
        VZ, VT, VA, T = self.VZ, self.VT, self.VA, self.T
        XC, GC, VO, G, U, AU, O, W = 10, 11, 12, 16, 20, 24, 32, 40
        SH = S_M + 4
        a(f"s_lshr_b32 {s(S_T0)}, {s(S_WG)}, 6"); a(f"s_lshl_b32 {s(S_T0)}, {s(S_T0)}, 8")
        a(f"s_and_b32 {s(S_T1)}, {s(S_WG)}, 8"); a(f"s_lshl_b32 {s(S_T1)}, {s(S_T1)}, 4"); a(f"s_add_u32 {s(S_T0)}, {s(S_T0)}, {s(S_T1)}")
        a(f"s_and_b32 {s(S_T1)}, {s(S_WG)}, 48"); a(f"s_lshl_b32 {s(S_T1)}, {s(S_T1)}, 1"); a(f"s_add_u32 {s(S_T0)}, {s(S_T0)}, {s(S_T1)}")
        a(f"s_add_u32 {s(S_T0)}, {s(S_T0)}, {s(S_H)}"); a(f"s_lshl_b32 {s(S_T0)}, {s(S_T0)}, 1")
        a(f"v_and_b32 {v(VO)}, 48, v0"); a(f"v_add_u32 {v(VO)}, {s(S_T0)}, {v(VO)}")
        self.srd(R4, P_WD, 0x1c0000)
        if self.ffn_wait: self.lds_wait(L_QFLAG, 1, VZ, T+1)
        a(f"buffer_load_ushort {v(XC)}, {v(VO)}, {s(R1,4)}, 0 offen")
        a(f"s_lshl_b32 {s(S_T1)}, {s(S_WG)}, 13")
        for e in range(8):
            if e == 4: a(f"s_add_u32 {s(S_T1)}, {s(S_T1)}, 4096")
            a(f"buffer_load_dwordx4 {v(W+4*e,4)}, {v(VA)}, {s(R4,4)}, {s(S_T1)} offen offset:{1024*(e&3)} {self.wpol}")
        if self.cut in (3, 4):
            a("s_waitcnt vmcnt(0)"); self.stamp(3); self.stamps_out(4); a("s_endpgm")
        a(f"s_lshl_b32 {s(S_T0)}, {s(S_WG)}, 8"); a(f"s_add_u32 {s(S_T0)}, {s(S_T0)}, {GBOX:#x}")
        a(f"v_and_b32 {v(T+2)}, 0xf0, {v(VA)}")
        self.poll([f"buffer_load_dwordx4 {v(G,4)}, {v(T+2)}, {s(R0,4)}, {s(S_T0)} offen sc1"], list(range(G, G+4)), VT, T, first_exec="0xffff")
        self.ror("v_add_f32", range(G, G+4), (4, 8))
        for k in range(2): self.rbf2(G+2*k, G+2*k+1, G+2*k, G+2*k+1, T)
        for r in range(4): a(f"v_mov_b32_dpp {v(U+r)}, {v(G+r)} quad_perm:[2,3,2,3] row_mask:0xf bank_mask:0xf")
        for r in range(4): self.silu_bf(G+r, G+r, T)
        for r in range(4): a(f"v_mul_f32 {v(G+r)}, {v(G+r)}, {v(U+r)}")
        for k in range(2): self.rbf2(G+2*k, G+2*k+1, G+2*k, G+2*k+1, T)
        for e in range(8): a(f"v_readlane_b32 {s(SH+e)}, {v(G+(e&3))}, {e>>2}")
        for e in range(8):
            for k in range(4):
                self.unpack(T, T+1, W+4*e+k)
                op = "v_mul_f32" if e == 0 else "v_fmac_f32"
                a(f"{op} {v(AU+2*k)}, {s(SH+e)}, {v(T)}"); a(f"{op} {v(AU+2*k+1)}, {s(SH+e)}, {v(T+1)}")
        for c in range(4):
            msk = (~(0x11111111 << c)) & 0xffffffff
            a(f"s_mov_b32 vcc_lo, {msk:#x}"); a(f"s_mov_b32 vcc_hi, {msk:#x}")
            for hf in range(2):
                for q in range(4):
                    if c == 0:
                        a(f"v_mov_b32_dpp {v(O+4*hf+q)}, {v(AU+4*hf)} quad_perm:[{q},{q},{q},{q}] row_mask:0xf bank_mask:0xf")
                    else:
                        a(f"v_cndmask_b32_dpp {v(O+4*hf+q)}, {v(AU+4*hf+c)}, {v(O+4*hf+q)}, vcc quad_perm:[{q},{q},{q},{q}] row_mask:0xf bank_mask:0xf")
        self.tag(range(O, O+8), VT)
        a(f"v_and_b32 {v(T)}, 32, v0"); a(f"v_lshlrev_b32 {v(T)}, 1, {v(T)}")
        a(f"v_and_b32 {v(T+1)}, 12, v0"); a(f"v_lshl_add_u32 {v(T)}, {v(T+1)}, 2, {v(T)}")
        a(f"v_and_b32 {v(T+1)}, 16, v0"); a(f"v_lshrrev_b32 {v(T+1)}, 1, {v(T+1)}"); a(f"v_and_b32 {v(T+2)}, 3, v0")
        a(f"v_or3_b32 {v(T)}, {v(T)}, {v(T+1)}, {v(T+2)}"); a(f"v_lshlrev_b32 {v(T)}, 12, {v(T)}")
        a(f"s_lshl_b32 {s(S_T0)}, {s(S_WG)}, 4"); a(f"s_add_u32 {s(S_T0)}, {s(S_T0)}, {FBOX:#x}"); a(f"s_add_u32 {s(S_T1)}, {s(S_T0)}, 16384")
        a(f"buffer_store_dwordx4 {v(O,4)}, {v(T)}, {s(R0,4)}, {s(S_T0)} offen sc1")
        a(f"buffer_store_dwordx4 {v(O+4,4)}, {v(T)}, {s(R0,4)}, {s(S_T1)} offen sc1")
        self.stamp(3)
        if self.cut:
            a("s_waitcnt vmcnt(0)"); self.stamps_out(4); a("s_endpgm")
        Lx = self.lab("sw1end")
        a(f"s_cmp_ge_u32 {s(S_WG)}, 128"); a(f"s_cbranch_scc1 {Lx}")
        def gather(box):
            a(f"s_lshl_b32 {s(S_T0)}, {s(S_WG)}, 12"); a(f"s_add_u32 {s(S_T0)}, {s(S_T0)}, {box:#x}")
            self.poll([f"buffer_load_dwordx4 {v(W+4*j,4)}, {v(VA)}, {s(R0,4)}, {s(S_T0)} offen offset:{1024*j} sc1" for j in range(4)],
                      list(range(W, W+16)), VT, T, slow=(box != HBOX2))
            for x, y in ((0, 4), (8, 12), (0, 8)):
                a(f"v_pk_add_f32 {v(W+x,2)}, {v(W+x,2)}, {v(W+y,2)}"); a(f"v_pk_add_f32 {v(W+x+2,2)}, {v(W+x+2,2)}, {v(W+y+2,2)}")
            self.fold("v_permlane32_swap_b32", [(W, W+2), (W+1, W+3)])
            self.fold("v_permlane16_swap_b32", [(W, W+1)])
            self.ror("v_add_f32", [W], (8, 4, 2, 1))
            self.rbf1(W, W)
        self.lds_wait(L_FFLAG, 1, VZ, T+1)
        gather(FBOX)
        self.silu_bf(GC, W, T)
        a(f"v_lshlrev_b32 {v(XC)}, 16, {v(XC)}")
        self.srd(R1, P_OUT, 1024)
        self.stamp(4)
        a("s_barrier")
        self.stamp(5)
        gather(HBOX2)
        self.stamp(6)
        a(f"v_mul_f32 {v(W)}, {v(W)}, {v(GC)}"); self.rbf1(W, W)
        a(f"v_add_f32 {v(W)}, {v(W)}, {v(XC)}"); a(f"v_cvt_pk_bf16_f32 {v(W)}, {v(W)}, {v(W)}")
        a("s_mov_b32 exec_lo, 0x10001"); a("s_mov_b32 exec_hi, 0x10001")
        a(f"buffer_store_short {v(W)}, {v(VO)}, {s(R1,4)}, 0 offen {self.outpol}")
        a(f"s_cmp_lg_u32 {s(S_WG)}, 0"); a(f"s_cbranch_scc1 {Lx}")
        a("s_mov_b64 exec, 1")
        a(f"v_mov_b32 {v(T)}, {s(S_E)}")
        a(f"buffer_store_dword {v(T)}, {v(VZ)}, {s(R0,4)}, 0 offen offset:{EPOCH} sc1")
        if self.amp:
            pa, pb, k = self.amp
            a("s_waitcnt vmcnt(0)"); self.stamp(7); a("s_waitcnt lgkmcnt(0)")
            a(f"s_sub_u32 {s(S_T0)}, {s(S_ST+2*pb)}, {s(S_ST+2*pa)}"); a(f"s_mul_i32 {s(S_T0)}, {s(S_T0)}, {k}")
            a(f"s_min_u32 {s(S_T0)}, {s(S_T0)}, 100000")
            a("Lamp:")
            a(f"s_memrealtime {s(S_ST+20,2)}"); a("s_waitcnt lgkmcnt(0)")
            a(f"s_sub_u32 {s(S_T1)}, {s(S_ST+20)}, {s(S_ST+14)}"); a(f"s_cmp_lt_u32 {s(S_T1)}, {s(S_T0)}"); a("s_cbranch_scc1 Lamp")
        a(f"{Lx}:")
        if self.diag: a("s_waitcnt vmcnt(0)")
        self.stamp(7)
        self.stamps_out(T)
        a("s_endpgm")

    def sw23(self):
        a = self.a
        VZ, VT, VA, T = self.VZ, self.VT, self.VA, self.T
        VP, VO, VH, W, AO, DD = 10, 11, 12, 16, 48, 80
        SZ = S_M + 15
        a(f"s_and_b32 {s(SZ)}, {s(S_WAVE)}, 1")
        a(f"v_lshrrev_b32 {v(T)}, 4, v0"); a(f"v_lshlrev_b32 {v(T)}, 13, {v(T)}")
        a(f"v_and_b32 {v(T+1)}, 0xf0, {v(VA)}"); a(f"v_or_b32 {v(T)}, {v(T)}, {v(T+1)}")
        a(f"s_and_b32 {s(S_T0)}, {s(S_S)}, 3"); a(f"s_lshl_b32 {s(S_T0)}, {s(S_T0)}, 5")
        a(f"s_lshr_b32 {s(S_T1)}, {s(S_S)}, 4"); a(f"s_lshl_b32 {s(S_T1)}, {s(S_T1)}, 2"); a(f"s_add_u32 {s(S_T0)}, {s(S_T0)}, {s(S_T1)}")
        a(f"s_bfe_u32 {s(S_T1)}, {s(S_S)}, 0x20002"); a(f"s_add_u32 {s(S_T0)}, {s(S_T0)}, {s(S_T1)}"); a(f"s_lshl_b32 {s(S_T0)}, {s(S_T0)}, 10")
        a(f"s_lshl_b32 {s(S_T1)}, {s(S_H)}, 19"); a(f"s_add_u32 {s(S_T0)}, {s(S_T0)}, {s(S_T1)}")
        a(f"s_lshl_b32 {s(S_T1)}, {s(SZ)}, 9"); a(f"s_add_u32 {s(S_T0)}, {s(S_T0)}, {s(S_T1)}")
        a(f"v_and_b32 {v(VP)}, 15, v0"); a(f"v_lshlrev_b32 {v(VP)}, 6, {v(VP)}"); a(f"v_and_b32 {v(T+1)}, 48, v0"); a(f"v_or_b32 {v(VP)}, {v(VP)}, {v(T+1)}")
        a(f"v_lshrrev_b32 {v(VO)}, 2, v0"); a(f"v_lshlrev_b32 {v(VO)}, 11, {v(VO)}"); a(f"v_and_b32 {v(T+1)}, 48, {v(VA)}"); a(f"v_or_b32 {v(VO)}, {v(VO)}, {v(T+1)}")
        a(f"v_lshlrev_b32 {v(VH)}, 12, v0")
        self.srd(R1, P_WO, 0x400000)
        if self.wo_wait == 1 and self.cut != 3: self.lds_wait(L_QFLAG, 1, VZ, T+1)
        if self.wo_wait == 2: self.lds_wait(L_FFLAG, 1, VZ, T+1)
        for h in range(4):
            for hf in range(2):
                a(f"buffer_load_dwordx4 {v(W+8*h+4*hf,4)}, {v(T)}, {s(R1,4)}, {s(S_T0)} offen offset:{256*hf} {self.wpol}")
            if h < 3: a(f"s_add_u32 {s(S_T0)}, {s(S_T0)}, 0x20000")
        for t in range(1, 8):
            m = (3 << (2*t)) * 0x10001
            a(f"s_mov_b32 {s(S_M+2*t-2)}, {m:#x}"); a(f"s_mov_b32 {s(S_M+2*t-1)}, {m:#x}")
        a(f"s_mov_b32 {s(R3)}, 0x55555555"); a(f"s_mov_b32 {s(R3+1)}, 0x55555555")
        a(f"s_lshl_b32 {s(S_T0)}, {s(S_H)}, 16"); a(f"s_add_u32 {s(S_T0)}, {s(S_T0)}, {HBOX1:#x}")
        a(f"s_lshl_b32 {s(S_T1)}, {s(S_S)}, 11"); a(f"s_add_u32 {s(S_T1)}, {s(S_T1)}, {s(S_T0)}")
        a(f"s_lshl_b32 {s(S_T2)}, {s(SZ)}, 15"); a(f"s_add_u32 {s(S_T0)}, {s(S_T0)}, {s(S_T2)}")
        a(f"s_lshl_b32 {s(S_T2)}, {s(S_S)}, 6"); a(f"s_add_u32 {s(S_T0)}, {s(S_T0)}, {s(S_T2)}")
        a(f"s_lshl_b32 {s(S_T2)}, {s(SZ)}, 18"); a(f"s_add_u32 {s(S_T2)}, {s(S_T2)}, {HBOX2:#x}")
        a(f"s_lshl_b32 {s(R2)}, {s(S_WG)}, 4"); a(f"s_add_u32 {s(S_T2)}, {s(S_T2)}, {s(R2)}")
        a(f"s_lshl_b32 {s(R2)}, {s(SZ)}, 10")
        a(f"v_add_u32 {v(VA)}, {s(R2)}, {v(VA)}")
        a("s_waitcnt vmcnt(0)")
        for t in range(8):
            hf, k = t >> 2, t & 3
            for x, (sel, h0) in enumerate(((S_LO, 0), (S_LO, 2), (S_HIS, 0), (S_HIS, 2))):
                a(f"v_perm_b32 {v(AO+4*t+x)}, {v(W+8*(h0+1)+4*hf+k)}, {v(W+8*h0+4*hf+k)}, {s(sel)}")
        self.stamp(3)
        if self.cut:
            self.stamps_out(4); a("s_endpgm")
        a("s_barrier")
        self.stamp(4)
        for w in range(8): a(f"ds_read_b128 {v(W+4*w,4)}, {v(VA)} offset:{L_O+2048*w}")
        for w in range(1, 8):
            a(f"s_waitcnt lgkmcnt({7-w})" if not (self.diag or self.amp) else "s_waitcnt lgkmcnt(0)")
            a(f"v_pk_add_f32 {v(W,2)}, {v(W,2)}, {v(W+4*w,2)}"); a(f"v_pk_add_f32 {v(W+2,2)}, {v(W+2,2)}, {v(W+4*w+2,2)}")
        self.tag(range(W, W+4), VT)
        a(f"buffer_store_dwordx4 {v(W,4)}, {v(VO)}, {s(R0,4)}, {s(S_T0)} offen sc1")
        self.stamp(5)
        PA, PB = W+8, W+12
        self.poll([f"buffer_load_dwordx4 {v(PA,4)}, {v(VP)}, {s(R0,4)}, {s(S_T1)} offen sc1",
                   f"buffer_load_dwordx4 {v(PB,4)}, {v(VP)}, {s(R0,4)}, {s(S_T1)} offen offset:1024 sc1"],
                  list(range(PA, PA+8)), VT, T, slow=False)
        self.stamp(6)
        a(f"v_pk_add_f32 {v(PA,2)}, {v(PA,2)}, {v(PB,2)}"); a(f"v_pk_add_f32 {v(PA+2,2)}, {v(PA+2,2)}, {v(PB+2,2)}")
        self.ror("v_add_f32", range(PA, PA+4), (8, 4, 2, 1))
        a(f"v_cvt_pk_bf16_f32 {v(T)}, {v(PA)}, {v(PA+1)}"); a(f"v_cvt_pk_bf16_f32 {v(T+1)}, {v(PA+2)}, {v(PA+3)}")
        a(f"v_cndmask_b32 {v(PB)}, 0, {v(T)}, {s(R3,2)}"); a(f"v_cndmask_b32 {v(PB+1)}, 0, {v(T+1)}, {s(R3,2)}")
        a(f"v_cndmask_b32 {v(PB+2)}, {v(T)}, 0, {s(R3,2)}"); a(f"v_cndmask_b32 {v(PB+3)}, {v(T+1)}, 0, {s(R3,2)}")
        def sel(t):
            for r in range(4): a(f"v_cndmask_b32 {v(DD+r)}, {v(DD+r)}, {v(DD+4*t+r)}, {s(S_M+2*t-2,2)}")
        for t in range(8):
            a(f"v_mfma_f32_16x16x32_bf16 {v(DD+4*t,4)}, {v(AO+4*t,4)}, {v(PB,4)}, 0")
            if t >= 4: sel(t - 3)
        for t in range(5, 8): sel(t)
        self.tag(range(DD, DD+4), VT)
        a(f"buffer_store_dwordx4 {v(DD,4)}, {v(VH)}, {s(R0,4)}, {s(S_T2)} offen sc1")
        self.stamp(7)
        if self.diag: a("s_waitcnt vmcnt(0)")
        self.stamp(8)
        self.stamps_out(T)
        a("s_endpgm")

    def build(self):
        a = self.a
        hdr = open("recurrent_scan__gqa_block_cached__swiglu_ffn__decode.s.ref").read().split("; @launch")[0]
        a(f'.amdgcn_target "amdgcn-amd-amdhsa--gfx950"')
        a(".text"); a(f".globl {KN}"); a(".p2align 8"); a(f".type {KN},@function"); a(f"{KN}:")
        a(f"s_load_dwordx16 {s(4,16)}, s[0:1], 0"); a(f"s_load_dwordx8 {s(20,8)}, s[0:1], 64")
        a("s_cmp_ge_u32 s2, 256"); a("s_cbranch_scc1 Lend")
        if self.diag:
            for k in range(1, 12): a(f"s_mov_b32 {s(S_ST+2*k)}, 0")
        self.stamp(0)
        a("v_lshrrev_b32 v1, 6, v0"); a("v_and_b32 v0, 63, v0"); a(f"v_readfirstlane_b32 {s(S_WAVE)}, v1")
        a(f"s_and_b32 {s(S_H)}, s2, 7"); a(f"s_lshr_b32 {s(S_S)}, s2, 3")
        a(f"s_cmp_ge_u32 {s(S_WAVE)}, 8"); a("s_cbranch_scc1 Lservice")
        self.streamer()
        a("Lservice:")
        if self.prio: a("s_setprio 3")
        self.consts()
        if self.cut == 1:
            a("s_waitcnt lgkmcnt(0)"); a("s_barrier"); self.stamps_out(4); a("s_endpgm")
        self.stage1()
        if self.cut == 2:
            self.stamps_out(4); a("s_endpgm")
        a(f"s_cmp_eq_u32 {s(S_WAVE)}, 9"); a("s_cbranch_scc1 Lsw1")
        a(f"s_cmp_gt_u32 {s(S_WAVE)}, 9"); a("s_cbranch_scc1 Lsw23")
        self.sw0()
        a("Lsw23:"); self.sw23()
        a("Lsw1:"); self.sw1()
        a("Lend:"); a("s_endpgm")
        a("Lcode_end:")
        a(".fill 64, 4, 0xbf800000")
        a('.section .rodata,"a"'); a(".p2align 6"); a(f".amdhsa_kernel {KN}")
        for d in ("next_free_vgpr 168", "next_free_sgpr 102", "accum_offset 168", "group_segment_fixed_size 0", "kernarg_size 96",
                  "user_sgpr_count 2", "user_sgpr_kernarg_segment_ptr 1", "system_sgpr_workgroup_id_x 1", "float_denorm_mode_32 3"):
            a(f".amdhsa_{d}")
        a(".end_amdhsa_kernel")
        return hdr + f"; @launch grid=(256,1,1) block=(768,1,1) lds={LDS_BYTES}\n" + a.finalize()

def gen(**kw): return G(**kw).build()
if __name__ == "__main__":
    kw = eval("dict(" + (sys.argv[2] if len(sys.argv) > 2 else "") + ")")
    open(sys.argv[1], "w").write(gen(**kw))
```

```python
import sys
from asmlib import Asm
KN = "recurrent_scan__gqa_block_cached__swiglu_ffn__decode_kernel"

EPOCH = 0
QBOX, MLBOX, GBOX, OBOX, HBOX = 0x1000, 0x9000, 0x10000, 0x20000, 0xA0000
WS_USED = 0xE0000
STAMP = 128 << 20
L_QFLAG, L_MLCNT, L_FFLAG, L_S1CNT, L_PROG, L_HFLAG, L_ACNT, L_WCNT = 0, 4, 8, 12, 16, 20, 24, 28
L_ML, L_F, L_H, L_Q, L_S1, L_OB, L_O, L_W = 64, 320, 448, 512, 1536, 2560, 2816, 19200
L_A = L_W + 2*12288
LDS_BYTES = L_A + 32768
SPIN = 1 << 16

LOG2E = 0x3fb8aa3b
SCALE = 0x3db504f3
EPS = 0x3727c5ac

def v(i, n=1): return f"v{i}" if n == 1 else f"v[{i}:{i+n-1}]"
def s(i, n=1): return f"s{i}" if n == 1 else f"s[{i}:{i+n-1}]"

S_WG, S_WAVE = 2, 3
P_X, P_K, P_V, P_WQ, P_WO, P_BX, P_WG, P_WU, P_WD, P_OUT, P_DBG, P_WS = range(4, 28, 2)
R0, R1, R2, R3, R4 = 28, 32, 36, 40, 44
S_H, S_S = 48, 49
S_T0, S_T1, S_T2, S_T3 = 50, 51, 52, 53
S_HI, S_TM, S_LO, S_HIS = 54, 55, 56, 57
S_CNT, S_E = 58, 59
S_M = 60
S_ST = 76

class G:
    def __init__(self, D=4, D2=None, nD2=48, n0=28, il=12, kvpol="nt", wpol="nt", diag=0, pf=1, nq=10, nm=50, w_trig="q", g_trig="ml",
                 outpol="sc1", prio=1, touch=0, cut=0, amp=None, trace=0, ramp=None, wpos=64, apos=1, smooth=1, wlate=0, prepoll=0):
        self.__dict__.update(locals()); del self.__dict__['self']
        self.a = Asm(); self.nlab = 0
    def lab(self, p):
        self.nlab += 1; return f"L{p}{self.nlab}"
    def srd(self, r, ptr, size):
        a = self.a
        a(f"s_mov_b32 {s(r)}, {s(ptr)}"); a(f"s_mov_b32 {s(r+1)}, {s(ptr+1)}")
        a(f"s_mov_b32 {s(r+2)}, {size:#x}"); a(f"s_mov_b32 {s(r+3)}, 0x20000")
    def stamp(self, k):
        if self.diag or self.amp: self.a(f"s_memrealtime {s(S_ST+2*k,2)}")
    def lgkm(self, n):
        self.a(f"s_waitcnt lgkmcnt({0 if (self.diag or self.amp) else n})")
    def finish(self, vt):
        a = self.a
        if self.diag:
            a("s_waitcnt lgkmcnt(0)")
            a(f"s_mul_i32 {s(S_T0)}, {s(S_WG)}, 12"); a(f"s_add_u32 {s(S_T0)}, {s(S_T0)}, {s(S_WAVE)}")
            a(f"s_lshl_b32 {s(S_T0)}, {s(S_T0)}, 6"); a(f"s_add_u32 {s(S_T0)}, {s(S_T0)}, {STAMP:#x}")
            a("s_mov_b64 exec, 1")
            a(f"v_mov_b32 {v(vt)}, {s(S_T0)}")
            for k in range(12):
                a(f"v_mov_b32 {v(vt+1)}, {s(S_ST+2*k)}")
                a(f"global_store_dword {v(vt)}, {v(vt+1)}, {s(P_WS,2)} offset:{4*k}")
            a("s_waitcnt vmcnt(0)")
        a("s_endpgm")
    def unpack(self, lo, hi, src):
        self.a(f"v_lshlrev_b32 {v(lo)}, 16, {v(src)}"); self.a(f"v_and_b32 {v(hi)}, {s(S_HI)}, {v(src)}")
    def rbf1(self, dst, src):
        self.a(f"v_cvt_pk_bf16_f32 {v(dst)}, {v(src)}, {v(src)}"); self.a(f"v_and_b32 {v(dst)}, {s(S_HI)}, {v(dst)}")
    def rbf2(self, d0, d1, s0, s1, t):
        self.a(f"v_cvt_pk_bf16_f32 {v(t)}, {v(s0)}, {v(s1)}"); self.unpack(d0, d1, t)
    def ror(self, op, regs, steps):
        for n in steps:
            for r in regs: self.a(f"{op}_dpp {v(r)}, {v(r)}, {v(r)} row_ror:{n} row_mask:0xf bank_mask:0xf")
    def rows_all(self, op, x, t):
        a = self.a
        for sw in ("v_permlane16_swap_b32", "v_permlane32_swap_b32"):
            a(f"v_mov_b32 {v(t)}, {v(x)}"); a(f"{sw} {v(x)}, {v(t)}"); a(f"{op} {v(x)}, {v(x)}, {v(t)}")
    def fold(self, sw, pairs):
        for x, y in pairs: self.a(f"{sw} {v(x)}, {v(y)}")
        for x, y in pairs: self.a(f"v_add_f32 {v(x)}, {v(x)}, {v(y)}")
    def fold4(self, x):
        self.fold("v_permlane32_swap_b32", [(x, x+2), (x+1, x+3)])
        self.fold("v_permlane16_swap_b32", [(x, x+1)])
    def silu_bf(self, dst, x, t):
        a = self.a
        a(f"v_mul_f32 {v(t)}, {0x80000000 ^ LOG2E:#x}, {v(x)}"); a(f"v_exp_f32 {v(t)}, {v(t)}")
        a(f"v_add_f32 {v(t)}, 1.0, {v(t)}"); a(f"v_rcp_f32 {v(t)}, {v(t)}"); a(f"v_mul_f32 {v(t)}, {v(x)}, {v(t)}")
        self.rbf1(dst, t)
    def layernorm(self, X, XF, T):
        a = self.a
        for k in range(4): self.unpack(XF+2*k, XF+2*k+1, X+k)
        a(f"v_add_f32 {v(T)}, {v(XF)}, {v(XF+1)}")
        for k in range(2, 8): a(f"v_add_f32 {v(T)}, {v(T)}, {v(XF+k)}")
        self.ror("v_add_f32", [T], (8, 4, 2, 1)); self.rows_all("v_add_f32", T, T+1)
        a(f"v_mul_f32 {v(T)}, 0x3b000000, {v(T)}")
        a(f"v_sub_f32 {v(T+2)}, {v(XF)}, {v(T)}"); a(f"v_mul_f32 {v(T+3)}, {v(T+2)}, {v(T+2)}")
        for k in range(1, 8):
            a(f"v_sub_f32 {v(T+2)}, {v(XF+k)}, {v(T)}"); a(f"v_fmac_f32 {v(T+3)}, {v(T+2)}, {v(T+2)}")
        self.ror("v_add_f32", [T+3], (8, 4, 2, 1)); self.rows_all("v_add_f32", T+3, T+1)
        a(f"v_mul_f32 {v(T+3)}, 0x3b000000, {v(T+3)}")
        self.rbf2(T, T+3, T, T+3, T+1)
        a(f"v_add_f32 {v(T+3)}, {EPS:#x}, {v(T+3)}"); self.rbf1(T+3, T+3)
        a(f"v_sqrt_f32 {v(T+3)}, {v(T+3)}"); self.rbf1(T+3, T+3)
        a(f"v_rcp_f32 {v(T+2)}, {v(T+3)}")
        for k in range(8): a(f"v_sub_f32 {v(XF+k)}, {v(XF+k)}, {v(T)}")
        for k in range(4): self.rbf2(XF+2*k, XF+2*k+1, XF+2*k, XF+2*k+1, T+1)
        for k in range(8):
            a(f"v_mul_f32 {v(T+4)}, {v(XF+k)}, {v(T+2)}")
            a(f"v_fma_f32 {v(T+5)}, -{v(T+4)}, {v(T+3)}, {v(XF+k)}")
            a(f"v_fma_f32 {v(XF+k)}, {v(T+5)}, {v(T+2)}, {v(T+4)}")
        for k in range(4): self.rbf2(XF+2*k, XF+2*k+1, XF+2*k, XF+2*k+1, T+1)
    def tag(self, regs, vT, dst=None):
        for i, r in enumerate(regs):
            d = r if dst is None else dst[i]
            self.a(f"v_bfi_b32 {v(d)}, {s(S_TM)}, {v(vT)}, {v(r)}")
    def poll(self, loads, vT, t, acc=None, between=None):
        a = self.a; L = self.lab("poll"); Lo = self.lab("pollx")
        if between:
            Lc = self.lab("pollc")
            for ld in loads: a(ld[0])
            between()
            a(f"s_mov_b32 {s(S_CNT)}, {SPIN}")
            a(f"s_branch {Lc}")
        else: a(f"s_mov_b32 {s(S_CNT)}, {SPIN}")
        a(f"{L}:")
        for ld in loads: a(ld[0])
        if between: a(f"{Lc}:")
        first = True
        for j, (_, r0, n) in enumerate(loads):
            a(f"s_waitcnt vmcnt({len(loads)-1-j})")
            for w in range(r0, r0+n):
                if first: a(f"v_xor_b32 {v(t)}, {v(w)}, {v(vT)}"); first = False
                else: a(f"v_bitop3_b32 {v(t)}, {v(w)}, {v(vT)}, {v(t)} bitop3:0xbe")
            if j == len(loads) - 1:
                a(f"v_and_b32 {v(t)}, {s(S_TM)}, {v(t)}")
                a(f"v_cmp_ne_u32 vcc, 0, {v(t)}")
            if acc is not None and j >= 1:
                p = loads[0][1] if j == 1 else acc
                a(f"v_pk_add_f32 {v(acc,2)}, {v(p,2)}, {v(r0,2)}"); a(f"v_pk_add_f32 {v(acc+2,2)}, {v(p+2,2)}, {v(r0+2,2)}")
        a(f"s_sub_u32 {s(S_CNT)}, {s(S_CNT)}, 1")
        a(f"s_cbranch_scc1 {Lo}")
        a("s_mov_b64 exec, vcc")
        a(f"s_cbranch_execnz {L}")
        a(f"{Lo}:")
        a("s_mov_b64 exec, -1")
    def lds_wait(self, off, val, vz, t, extra=()):
        a = self.a; L = self.lab("lw"); Lo = self.lab("lwx")
        a(f"s_mov_b32 {s(S_CNT)}, {SPIN*16}")
        a(f"{L}:")
        a(f"ds_read_b32 {v(t)}, {v(vz)} offset:{off}")
        for e in extra: a(e)
        a("s_waitcnt lgkmcnt(0)")
        a(f"v_readfirstlane_b32 {s(S_T3)}, {v(t)}")
        a(f"s_cmp_ge_u32 {s(S_T3)}, {val}")
        a(f"s_cbranch_scc1 {Lo}")
        a(f"s_sub_u32 {s(S_CNT)}, {s(S_CNT)}, 1")
        a(f"s_cbranch_scc1 {Lo}")
        a("s_sleep 1")
        a(f"s_branch {L}")
        a(f"{Lo}:")
    def trig(self, what, vz, t):
        if what == "q": self.lds_wait(L_QFLAG, 1, vz, t)
        elif what == "ml": self.lds_wait(L_MLCNT, 8, vz, t)
        elif isinstance(what, int) and what > 0: self.lds_wait(L_PROG, what, vz, t)
    def streamer(self):
        a = self.a
        VK, VV, VZ, VT, VT2 = 1, 2, 3, 4, 5
        Q, S, DT, KB = 8, 12, 20, 36
        slot = lambda i: KB + 4*i
        ACC, AO, B = slot(16), slot(18), slot(23)
        SB = S_T0
        a(f"s_lshl_b32 {s(SB)}, {s(S_H)}, 23"); a(f"s_lshl_b32 {s(S_T1)}, {s(S_S)}, 18"); a(f"s_or_b32 {s(SB)}, {s(SB)}, {s(S_T1)}")
        a(f"s_lshl_b32 {s(S_T1)}, {s(S_WAVE)}, {self.il}"); a(f"s_or_b32 {s(SB)}, {s(SB)}, {s(S_T1)}")
        a(f"v_lshlrev_b32 {v(VV)}, 4, v0")
        a(f"v_and_b32 {v(VT)}, 0xc0, {v(VV)}"); a(f"v_lshlrev_b32 {v(VT)}, 2, {v(VT)}")
        a(f"v_lshrrev_b32 {v(VK)}, 4, v0"); a(f"v_lshlrev_b32 {v(VK)}, 6, {v(VK)}")
        a(f"v_and_b32 {v(VT2)}, 48, {v(VV)}")
        a(f"v_or3_b32 {v(VK)}, {v(VK)}, {v(VT)}, {v(VT2)}")
        a(f"v_mov_b32 {v(VZ)}, 0")
        a("s_waitcnt lgkmcnt(0)")
        self.srd(R0, P_K, 0x4000000); self.srd(R1, P_V, 0x4000000)
        def off(i):
            if self.il == 12: return (i >> 2) * 32768, (i & 3) * 1024
            return i * 8192, 0
        last_so = [None]
        VWA, VWD = 6, 7
        SA, SW0, SW1, SSTR = S_M+5, S_M+6, S_M+7, S_M+4
        def regs(it):
            k, i = it
            return {'K': slot(i), 'V': slot(i % 16), 'A': slot(28 + i), 'W': (DT + 4*i if self.wpos > 40 else slot(28 + i))}[k]
        def setup_a():
            a(f"s_lshr_b32 {s(S_M)}, {s(S_WAVE)}, 1")
            self.s1_geom(True)
            a(f"s_and_b32 {s(S_T3)}, {s(S_WAVE)}, 1"); a(f"s_lshl_b32 {s(S_T3)}, {s(S_T3)}, 2"); a(f"s_add_u32 {s(S_T3)}, {s(S_T3)}, {s(S_M+3)}")
            a(f"s_mul_i32 {s(S_T3)}, {s(S_T3)}, {s(SSTR)}"); a(f"s_lshl_b32 {s(SA)}, {s(S_T2)}, 7"); a(f"s_add_u32 {s(SA)}, {s(SA)}, {s(S_T3)}")
            a(f"v_and_b32 {v(VT)}, 56, v0"); a(f"v_mul_u32_u24 {v(VT)}, {s(SSTR)}, {v(VT)}")
            a(f"v_and_b32 {v(VT2)}, 0x70, {v(VV)}"); a(f"v_add_u32 {v(VWA)}, {v(VT)}, {v(VT2)}")
        def setup_w():
            a(f"s_and_b32 {s(S_T2)}, {s(S_S)}, 3"); a(f"s_lshl_b32 {s(S_T2)}, {s(S_T2)}, 1"); a(f"s_lshr_b32 {s(S_T3)}, {s(S_WAVE)}, 2")
            a(f"s_add_u32 {s(S_T2)}, {s(S_T2)}, {s(S_T3)}"); a(f"s_lshl_b32 {s(S_T2)}, {s(S_T2)}, 7")
            a(f"s_lshl_b32 {s(SW0)}, {s(S_H)}, 19"); a(f"s_lshr_b32 {s(S_T3)}, {s(S_S)}, 2"); a(f"s_lshl_b32 {s(S_T3)}, {s(S_T3)}, 10")
            a(f"s_add_u32 {s(SW0)}, {s(SW0)}, {s(S_T3)}"); a(f"s_add_u32 {s(SW0)}, {s(SW0)}, {s(S_T2)}")
            self.fblock(SW1, S_T3)
            a(f"s_lshl_b32 {s(SW1)}, {s(SW1)}, 15"); a(f"s_add_u32 {s(SW1)}, {s(SW1)}, {s(S_T2)}")
            a(f"s_and_b32 {s(S_T2)}, {s(S_WAVE)}, 3")
            a(f"s_lshl_b32 {s(S_T3)}, {s(S_T2)}, 16"); a(f"s_add_u32 {s(SW0)}, {s(SW0)}, {s(S_T3)}")
            a(f"s_lshl_b32 {s(S_T3)}, {s(S_T2)}, 13"); a(f"s_add_u32 {s(SW1)}, {s(SW1)}, {s(S_T3)}")
            self.srd(R2, P_WO, 0x400000); self.srd(R3, P_WD, 0x1c0000)
            a(f"v_lshrrev_b32 {v(VT)}, 3, v0"); a(f"v_and_b32 {v(VT2)}, 0x70, {v(VV)}")
            a(f"v_lshl_add_u32 {v(VWD)}, {v(VT)}, 10, {v(VT2)}"); a(f"v_lshl_add_u32 {v(VWA)}, {v(VT)}, 13, {v(VT2)}")
        def load(it):
            k, i = it
            r = v(regs(it), 4)
            if k in 'KV':
                so, imm = off(i)
                if so != last_so[0]:
                    a(f"s_add_u32 {s(S_T1)}, {s(SB)}, {so}"); last_so[0] = so
                a(f"buffer_load_dwordx4 {r}, {v(VV if k == 'V' else VK)}, {s(R1 if k == 'V' else R0,4)}, {s(S_T1)} offen offset:{imm} {self.kvpol}")
            elif k == 'A':
                if i == 0: setup_a()
                a(f"buffer_load_dwordx4 {r}, {v(VWA)}, {s(R2,4)}, {s(SA)} offen {self.wpol}")
                if i < 3: a(f"s_add_u32 {s(SA)}, {s(SA)}, {s(SSTR)}")
            else:
                if i < 2: a(f"buffer_load_dwordx4 {r}, {v(VWA)}, {s(R2,4)}, {s(SW0)} offen {self.wpol}")
                else: a(f"buffer_load_dwordx4 {r}, {v(VWD)}, {s(R3,4)}, {s(SW1)} offen {self.wpol}")
                if i == 0: a(f"s_add_u32 {s(SW0)}, {s(SW0)}, 0x40000")
        def count(off_):
            a(f"v_mov_b32 {v(VT2)}, 1"); a("s_mov_b64 exec, 1"); a(f"ds_add_u32 {v(VZ)}, {v(VT2)} offset:{off_}"); a("s_mov_b64 exec, -1")
        def put_a():
            a(f"s_lshl_b32 {s(S_T2)}, {s(S_WAVE)}, 12"); a(f"v_add_u32 {v(VT)}, {s(S_T2)}, {v(VV)}")
            for i in range(4): a(f"ds_write_b128 {v(VT)}, {v(regs(('A', i)),4)} offset:{L_A + 1024*i}")
            count(L_ACNT)
            setup_w()
        def put_w():
            a(f"s_lshr_b32 {s(S_T2)}, {s(S_WAVE)}, 2"); a(f"s_mul_i32 {s(S_T2)}, {s(S_T2)}, 12288")
            a(f"s_and_b32 {s(S_T3)}, {s(S_WAVE)}, 3"); a(f"s_lshl_b32 {s(S_T3)}, {s(S_T3)}, 10"); a(f"s_add_u32 {s(S_T2)}, {s(S_T2)}, {s(S_T3)}")
            a(f"v_add_u32 {v(VT)}, {s(S_T2)}, {v(VV)}")
            for i in range(3): a(f"ds_write_b128 {v(VT)}, {v(regs(('W', i)),4)} offset:{L_W + 4096*i}")
            count(L_WCNT)
        def qk(j):
            for m in range(4):
                a(f"v_mfma_f32_16x16x32_bf16 {v(DT+4*m,4)}, {v(slot(4*j+m),4)}, {v(Q,4)}, 0")
            for k in range(1, 4):
                for m in range(4):
                    b = (m + k) & 3
                    other = DT+4*m+m if k == 1 else S+j
                    a(f"v_add_f32_dpp {v(S+j)}, {v(DT+4*m+b)}, {v(other)} row_ror:{(4*(m-b)) & 15} row_mask:0xf bank_mask:{1<<m:#x}")
        M, Lr = DT, DT+1
        def sm_scale(k):
            if k == 0: a(f"s_mov_b32 {s(S_M+8)}, {SCALE:#x}")
            x, y = S+2*k, S+2*k+1
            self.rbf2(x, y, x, y, VT)
            a(f"v_mul_f32 {v(x)}, {s(S_M+8)}, {v(x)}"); a(f"v_mul_f32 {v(y)}, {s(S_M+8)}, {v(y)}")
            self.rbf2(x, y, x, y, VT)
        def sm_max():
            a(f"v_max3_f32 {v(M)}, {v(S)}, {v(S+1)}, {v(S+2)}"); a(f"v_max3_f32 {v(M)}, {v(M)}, {v(S+3)}, {v(S+4)}")
            a(f"v_max3_f32 {v(M)}, {v(M)}, {v(S+5)}, {v(S+6)}"); a(f"v_max_f32 {v(M)}, {v(M)}, {v(S+7)}")
            self.ror("v_max_f32", [M], (4, 8)); self.rows_all("v_max_f32", M, VT)
        def sm_exp():
            a(f"s_mov_b32 {s(S_T2)}, {LOG2E:#x}")
            for k in range(8): a(f"v_sub_f32 {v(S+k)}, {v(S+k)}, {v(M)}")
            for k in range(8): a(f"v_mul_f32 {v(S+k)}, {s(S_T2)}, {v(S+k)}")
            for k in range(8): a(f"v_exp_f32 {v(S+k)}, {v(S+k)}")
        def sm_sum():
            a(f"v_add_f32 {v(Lr)}, {v(S)}, {v(S+1)}")
            for k in range(2, 8): a(f"v_add_f32 {v(Lr)}, {v(Lr)}, {v(S+k)}")
            self.ror("v_add_f32", [Lr], (4, 8)); self.rows_all("v_add_f32", Lr, VT)
            a(f"s_lshl_b32 {s(S_T2)}, {s(S_WAVE)}, 5")
            a(f"v_lshl_add_u32 {v(VT)}, v0, 2, {s(S_T2)}"); a(f"v_mov_b32 {v(VT2)}, 1")
            a("s_mov_b64 exec, 15")
            a(f"ds_write2_b32 {v(VT)}, {v(M)}, {v(Lr)} offset0:{L_ML//4} offset1:{L_ML//4+4}")
            a("s_mov_b64 exec, 1")
            a(f"ds_add_u32 {v(VZ)}, {v(VT2)} offset:{L_MLCNT}")
            a("s_mov_b64 exec, -1")
        def zero_acc():
            for r in range(ACC, ACC+8): a(f"v_mov_b32 {v(r)}, 0")
            for r in range(AO, AO+16): a(f"v_mov_b32 {v(r)}, 0")
        def build_a(j):
            a(f"v_cvt_pk_bf16_f32 {v(VT)}, {v(S+2*j)}, {v(S+2*j+1)}")
            for m in range(4):
                for e in range(4):
                    n = (4*(e-m)) & 15
                    ctl = f"row_ror:{n}" if n else "quad_perm:[0,1,2,3]"
                    a(f"v_mov_b32_dpp {v(AO+4*e+m)}, {v(VT)} {ctl} row_mask:0xf bank_mask:{1<<e:#x}")
        def perm1(j, m, e):
            lo, hi = slot((8*j+m) % 16), slot((8*j+4+m) % 16)
            a(f"v_perm_b32 {v(B+4*e+m)}, {v(hi+(e>>1))}, {v(lo+(e>>1))}, {s(S_HIS if e & 1 else S_LO)}")
        def mfma_pv(e):
            acc = ACC + 4*(e >> 2)
            a(f"v_mfma_f32_16x16x32_bf16 {v(acc,4)}, {v(AO+4*(e&3),4)}, {v(B+4*e,4)}, {v(acc,4)}")
        def pv_last(j):
            order = [0, 4, 1, 5, 2, 6, 3, 7]
            for k in range(3): perm1(j, 3, order[k])
            for k in range(8):
                mfma_pv(order[k])
                if k + 3 < 8: perm1(j, 3, order[k+3])
        def qwait():
            a(f"v_and_b32 {v(VT2)}, 3, v0"); a(f"v_lshlrev_b32 {v(VT2)}, 8, {v(VT2)}")
            a(f"v_and_b32 {v(VT)}, 0xc0, {v(VV)}"); a(f"v_lshrrev_b32 {v(VT)}, 2, {v(VT)}")
            a(f"v_and_b32 {v(DT)}, 0x300, {v(VV)}"); a(f"v_lshrrev_b32 {v(DT)}, 2, {v(DT)}")
            a(f"v_or3_b32 {v(VT2)}, {v(VT2)}, {v(VT)}, {v(DT)}")
            self.stamp(2)
            if not self.cut: self.lds_wait(L_QFLAG, 1, VZ, VT, [f"ds_read_b128 {v(Q,4)}, {v(VT2)} offset:{L_Q}"])
            self.stamp(3)
        kv = [('K', i) for i in range(32)] + [('V', i) for i in range(32)]
        seq = kv[:self.apos] + [('A', i) for i in range(4)] + kv[self.apos:self.wpos] + [('W', i) for i in range(3)] + kv[self.wpos:]
        pos = {it: n for n, it in enumerate(seq)}
        N = len(seq)
        def owrite():
            self.stamp(7)
            pv_last(3)
            a(f"s_lshl_b32 {s(S_T2)}, {s(S_WAVE)}, 11")
            a(f"v_add_u32 {v(VT)}, {s(S_T2)}, {v(VV)}")
            a(f"ds_write_b128 {v(VT)}, {v(ACC,4)} offset:{L_O}")
            a(f"ds_write_b128 {v(VT)}, {v(ACC+4,4)} offset:{L_O+1024}")
            a("s_waitcnt lgkmcnt(0)")
            a("s_barrier")
        p0 = pos[('K', self.n0)]
        tasks = [(p0, -1, [], qwait)]
        for j in range(8):
            tasks.append((p0 + j, pos[('K', 4*j+3)], [('K', 4*j+m) for m in range(4)], lambda j=j: qk(j)))
            if j & 1: tasks.append((0, -1, [], lambda j=j: sm_scale(j >> 1)))
        for f in (sm_max, sm_exp, sm_sum, zero_acc): tasks.append(('next', -1, [], f))
        for j in range(4):
            tasks.append(('next', -1, [], lambda j=j: build_a(j)))
            for m in range(3): tasks.append(('next', pos[('V', 8*j+4+m)], [('V', 8*j+m), ('V', 8*j+4+m)], lambda j=j, m=m: [perm1(j, m, e) for e in range(8)]))
            tasks.append(('next', pos[('V', 8*j+7)], [('V', 8*j+3), ('V', 8*j+7)], (lambda j=j: pv_last(j)) if j < 3 else owrite))
        side = [(0, pos[('A', 3)], [('A', i) for i in range(4)], put_a), (0, pos[('W', 2)], [('W', i) for i in range(3)], put_w)]
        trigs = {pos[kv[t]]: t for t in (self.nq, self.nm, self.g_trig) if isinstance(t, int) and t > 0}
        def Dn(n):
            if self.ramp and n < len(self.ramp): return self.ramp[n]
            return self.D2 if (self.D2 and n >= self.nD2) else self.D
        nbar = (self.ramp[0] if self.ramp else self.D) - 1
        busy = {}; landed = -1
        def run(n):
            for q in (side, tasks):
                did = False
                while q and q[0][1] <= landed:
                    e = q[0][0]
                    if e == 'next':
                        if did and n < 99 and self.smooth: break
                    elif e > n: break
                    t = q.pop(0); t[3](); did = True
                    for x in t[2]: busy.pop(regs(x))
        NM = N - 3 if self.wlate else N
        for n in range(NM):
            if n - Dn(n) > landed:
                a(f"s_waitcnt vmcnt({Dn(n)-1})"); landed = n - Dn(n)
            assert regs(seq[n]) not in busy, (n, seq[n])
            busy[regs(seq[n])] = n
            load(seq[n])
            if self.trace and seq[n] in kv:
                m = kv.index(seq[n])
                if m: a("s_waitcnt lgkmcnt(0)"); a(f"v_writelane_b32 v164, s100, {m-1}")
                a("s_memrealtime s[100:101]")
            if n == nbar:
                a(f"s_mov_b32 {s(S_HI)}, 0xffff0000"); a(f"s_mov_b32 {s(S_LO)}, 0x05040100"); a(f"s_mov_b32 {s(S_HIS)}, 0x07060302")
                a("s_barrier")
            if n in trigs:
                a(f"v_mov_b32 {v(VT)}, {trigs[n]}"); a("s_mov_b64 exec, 1"); a(f"ds_max_u32 {v(VZ)}, {v(VT)} offset:{L_PROG}"); a("s_mov_b64 exec, -1")
            if n == nbar + 1: self.stamp(1)
            if landed == pos[('K', 31)]: self.stamp(4)
            run(n)
        issued = NM
        while landed < N - 1:
            landed += 1
            now = issued < N and landed == NM - self.wlate
            if not now and not any(q and q[0][1] <= landed for q in (side, tasks)): continue
            a(f"s_waitcnt vmcnt({issued - 1 - landed})")
            if now:
                for n in range(NM, N):
                    busy[regs(seq[n])] = n; load(seq[n])
                issued = N
            run(99)
        assert not tasks and not side
        self.stamp(8)
        if self.trace:
            a(f"s_mul_i32 {s(S_T0)}, {s(S_WG)}, 8"); a(f"s_add_u32 {s(S_T0)}, {s(S_T0)}, {s(S_WAVE)}")
            a(f"s_lshl_b32 {s(S_T0)}, {s(S_T0)}, 8"); a(f"s_add_u32 {s(S_T0)}, {s(S_T0)}, {STAMP + (1<<20):#x}")
            a(f"v_lshl_add_u32 {v(VT)}, v0, 2, {s(S_T0)}")
            a(f"global_store_dword {v(VT)}, v164, {s(P_WS,2)}")
        self.finish(VT)

    def s1_geom(self, loader):
        a = self.a
        SZ, SCB, SRB, SROW, SSTR = S_M, S_M+1, S_M+2, S_M+3, S_M+4
        Lf, Lj = self.lab("s1ffn"), self.lab("s1join")
        a(f"s_cmp_ge_u32 {s(S_S)}, 16"); a(f"s_cbranch_scc1 {Lf}")
        a(f"s_and_b32 {s(SCB)}, {s(S_S)}, 7"); a(f"s_lshr_b32 {s(SRB)}, {s(S_S)}, 3")
        a(f"s_lshl_b32 {s(SROW)}, {s(SRB)}, 2"); a(f"s_add_u32 {s(SROW)}, {s(SROW)}, {s(SZ)}"); a(f"s_lshl_b32 {s(SROW)}, {s(SROW)}, 6")
        if loader:
            a(f"s_mov_b32 {s(SSTR)}, 8192")
            a(f"s_lshl_b32 {s(S_T2)}, {s(S_H)}, 3"); a(f"s_add_u32 {s(S_T2)}, {s(S_T2)}, {s(SCB)}")
            self.srd(R2, P_WQ, 0x400000)
        a(f"s_branch {Lj}")
        a(f"{Lf}:")
        a(f"s_sub_u32 {s(S_T2)}, {s(S_S)}, 16"); a(f"s_lshl_b32 {s(S_T2)}, {s(S_T2)}, 3"); a(f"s_add_u32 {s(S_T2)}, {s(S_T2)}, {s(S_H)}")
        a(f"s_lshr_b32 {s(SCB)}, {s(S_T2)}, 2"); a(f"s_and_b32 {s(SRB)}, {s(S_T2)}, 3")
        a(f"s_and_b32 {s(S_T3)}, {s(SZ)}, 1")
        a(f"s_lshl_b32 {s(SROW)}, {s(SRB)}, 1"); a(f"s_add_u32 {s(SROW)}, {s(SROW)}, {s(S_T3)}"); a(f"s_lshl_b32 {s(SROW)}, {s(SROW)}, 6")
        if loader:
            a(f"s_mov_b32 {s(SSTR)}, 3584")
            a(f"s_mov_b32 {s(S_T2)}, {s(SCB)}")
            a(f"s_cmp_ge_u32 {s(SZ)}, 2")
            a(f"s_cselect_b32 {s(R2)}, {s(P_WU)}, {s(P_WG)}"); a(f"s_cselect_b32 {s(R2+1)}, {s(P_WU+1)}, {s(P_WG+1)}")
            a(f"s_cmp_lt_u32 {s(SCB)}, 28")
            a(f"s_cselect_b32 {s(R2+2)}, 0x1c0000, 0"); a(f"s_mov_b32 {s(R2+3)}, 0x20000")
        a(f"{Lj}:")

    VZ, VT, VA, T = 1, 2, 3, 4
    def stage1(self):
        a = self.a
        VZ, VT, VA, T = self.VZ, self.VT, self.VA, self.T
        X, XF, XR, ACC, W = 12, 16, 24, 32, 40
        SZ, SCB, SRB, SROW, SSTR = S_M, S_M+1, S_M+2, S_M+3, S_M+4
        a(f"s_and_b32 {s(SZ)}, {s(S_WAVE)}, 3")
        a(f"v_mov_b32 {v(VZ)}, 0"); a(f"v_lshlrev_b32 {v(VA)}, 4, v0")
        if self.pf:
            Lp = self.lab("nopf")
            a(f"s_cmp_ge_u32 {s(S_S)}, {self.pf}"); a(f"s_cbranch_scc1 {Lp}")
            a(f"s_getpc_b64 {s(R4,2)}")
            a(f"Lpc:")
            a(f"s_sub_u32 {s(R4)}, {s(R4)}, Lpc-{KN}"); a(f"s_subb_u32 {s(R4+1)}, {s(R4+1)}, 0")
            a(f"s_mov_b32 {s(R4+2)}, Lcode_end-{KN}"); a(f"s_mov_b32 {s(R4+3)}, 0x20000")
            a(f"s_lshl_b32 {s(S_T0)}, {s(SZ)}, 12")
            for k in range(4):
                a(f"buffer_load_dwordx4 {v(W+32+4*k,4)}, {v(VA)}, {s(R4,4)}, {s(S_T0)} offen offset:{1024*k}")
            a(f"{Lp}:")
        self.s1_geom(False)
        a("s_waitcnt lgkmcnt(0)")
        self.srd(R0, P_WS, WS_USED); self.srd(R1, P_X, 1024)
        a(f"buffer_load_dwordx4 {v(X,4)}, {v(VA)}, {s(R1,4)}, 0 offen")
        a(f"buffer_load_dword {v(VT)}, {v(VZ)}, {s(R0,4)}, 0 offen offset:{EPOCH}")
        Lb = self.lab("s1b")
        a(f"s_cmp_lg_u32 {s(SZ)}, 0"); a(f"s_cbranch_scc1 {Lb}")
        a(f"v_lshlrev_b32 {v(T+2)}, 2, v0")
        a("s_mov_b64 exec, 0xff")
        a(f"ds_write_b32 {v(T+2)}, {v(VZ)}")
        a("s_mov_b64 exec, -1")
        a("s_waitcnt lgkmcnt(0)")
        a(f"{Lb}:")
        a("s_barrier")
        a("s_waitcnt vmcnt(1)")
        self.stamp(1)
        self.layernorm(X, XF, T)
        a(f"s_lshr_b32 {s(S_T0)}, {s(SROW)}, 1")
        a(f"v_lshrrev_b32 {v(T)}, 3, v0"); a(f"v_lshl_add_u32 {v(T)}, {v(T)}, 2, {s(S_T0)}")
        for j in range(8): a(f"ds_bpermute_b32 {v(XR+j)}, {v(T)}, {v(XF+j)}")
        a("s_waitcnt vmcnt(0)")
        a(f"v_add_u32 {v(VT)}, 1, {v(VT)}"); a(f"v_readfirstlane_b32 {s(S_E)}, {v(VT)}")
        a(f"v_and_b32 {v(VT)}, {s(S_TM)}, {v(VT)}")
        a(f"s_lshl_b32 {s(S_T0)}, {s(SZ)}, 13"); a(f"v_add_u32 {v(T)}, {s(S_T0)}, {v(VA)}")
        self.lds_wait(L_ACNT, 8, VZ, T+1)
        for j in range(8): a(f"ds_read_b128 {v(W+4*j,4)}, {v(T)} offset:{L_A+1024*j}")
        for j in range(8):
            self.lgkm(7-j)
            for k in range(4):
                self.unpack(T, T+1, W+4*j+k)
                op = "v_mul_f32" if j == 0 else "v_fmac_f32"
                a(f"{op} {v(ACC+2*k)}, {v(XR+j)}, {v(T)}"); a(f"{op} {v(ACC+2*k+1)}, {v(XR+j)}, {v(T+1)}")
        self.fold("v_permlane32_swap_b32", [(ACC+e, ACC+e+4) for e in range(4)])
        self.fold("v_permlane16_swap_b32", [(ACC+e, ACC+e+2) for e in range(2)])
        self.ror("v_add_f32", [ACC, ACC+1], (8,))
        a(f"s_lshl_b32 {s(S_T0)}, {s(SZ)}, 8")
        a(f"v_and_b32 {v(T)}, 7, v0"); a(f"v_lshl_add_u32 {v(T)}, {v(T)}, 5, {s(S_T0)}")
        a(f"v_lshrrev_b32 {v(T+1)}, 4, v0"); a(f"v_lshl_add_u32 {v(T)}, {v(T+1)}, 3, {v(T)}")
        a(f"v_mov_b32 {v(T+1)}, 1")
        a("s_mov_b32 exec_lo, 0xff00ff"); a("s_mov_b32 exec_hi, 0xff00ff")
        a(f"ds_write_b64 {v(T)}, {v(ACC,2)} offset:{L_S1}")
        a("s_mov_b64 exec, 1")
        a(f"ds_add_u32 {v(VZ)}, {v(T+1)} offset:{L_S1CNT}")
        a("s_mov_b64 exec, -1")
        self.stamp(2)

    def sw0(self):
        a = self.a
        VZ, VT, VA, T = self.VZ, self.VT, self.VA, self.T
        XF, W = 16, 40
        SZ, SCB, SRB = S_M, S_M+1, S_M+2
        a(f"v_and_b32 {v(T)}, 0xf0, {v(VA)}"); a(f"v_and_b32 {v(T+2)}, 16, v0"); a(f"v_lshl_add_u32 {v(T)}, {v(T+2)}, 5, {v(T)}")
        self.lds_wait(L_S1CNT, 4, VZ, T+1, [f"ds_read_b128 {v(W,4)}, {v(T)} offset:{L_S1}", f"ds_read_b128 {v(W+4,4)}, {v(T)} offset:{L_S1+256}"])
        a(f"v_pk_add_f32 {v(W,2)}, {v(W,2)}, {v(W+4,2)}"); a(f"v_pk_add_f32 {v(W+2,2)}, {v(W+2,2)}, {v(W+6,2)}")
        Lf, Lj = self.lab("c1ffn"), self.lab("c1join")
        a(f"s_cmp_ge_u32 {s(S_S)}, 16"); a(f"s_cbranch_scc1 {Lf}")
        for r in range(4): a(f"v_mov_b32 {v(W+4+r)}, {v(W+r)}")
        self.fold("v_permlane16_swap_b32", [(W+r, W+4+r) for r in range(4)])
        a(f"v_and_b32 {v(T)}, 0xf0, {v(VA)}")
        a(f"s_lshl_b32 {s(S_T1)}, {s(S_H)}, 12"); a(f"s_lshl_b32 {s(S_T2)}, {s(SRB)}, 11"); a(f"s_add_u32 {s(S_T1)}, {s(S_T1)}, {s(S_T2)}")
        a(f"s_lshl_b32 {s(S_T2)}, {s(SCB)}, 8"); a(f"s_add_u32 {s(S_T1)}, {s(S_T1)}, {s(S_T2)}"); a(f"s_add_u32 {s(S_T1)}, {s(S_T1)}, {QBOX:#x}")
        a("s_mov_b64 exec, 0xffff")
        a(f"s_branch {Lj}")
        a(f"{Lf}:")
        a(f"v_and_b32 {v(T)}, 8, v0"); a(f"v_lshlrev_b32 {v(T)}, 7, {v(T)}")
        a(f"v_and_b32 {v(T+1)}, 0x70, {v(VA)}"); a(f"v_lshl_add_u32 {v(T+1)}, {v(T+2)}, 3, {v(T+1)}"); a(f"v_add_u32 {v(T)}, {v(T)}, {v(T+1)}")
        a(f"s_lshl_b32 {s(S_T1)}, {s(SCB)}, 11"); a(f"s_lshl_b32 {s(S_T2)}, {s(SRB)}, 8"); a(f"s_add_u32 {s(S_T1)}, {s(S_T1)}, {s(S_T2)}")
        a(f"s_add_u32 {s(S_T1)}, {s(S_T1)}, {GBOX:#x}")
        a("s_mov_b32 exec_lo, -1"); a("s_mov_b32 exec_hi, 0")
        a(f"{Lj}:")
        self.tag(range(W, W+4), VT)
        a(f"buffer_store_dwordx4 {v(W,4)}, {v(T)}, {s(R0,4)}, {s(S_T1)} offen sc1")
        a("s_mov_b64 exec, -1")
        a(f"s_lshl_b32 {s(S_T0)}, {s(S_H)}, 12"); a(f"s_add_u32 {s(S_T0)}, {s(S_T0)}, {QBOX:#x}")
        W2 = W + 8
        self.trig(self.nq, VZ, T+1)
        self.poll([(f"buffer_load_dwordx4 {v(W2+4*k,4)}, {v(VA)}, {s(R0,4)}, {s(S_T0)} offen offset:{1024*k} sc1", W2+4*k, 4) for k in range(4)], VT, T)
        for k in range(4): a(f"v_pk_add_f32 {v(W2+2*k,2)}, {v(W2+2*k,2)}, {v(W2+8+2*k,2)}")
        for k in range(4): a(f"v_cvt_pk_bf16_f32 {v(XF+k)}, {v(W2+2*k)}, {v(W2+2*k+1)}")
        a(f"v_lshlrev_b32 {v(T)}, 3, v0"); a(f"v_mov_b32 {v(T+1)}, 1")
        a(f"ds_write_b64 {v(T)}, {v(XF,2)} offset:{L_Q}"); a(f"ds_write_b64 {v(T)}, {v(XF+2,2)} offset:{L_Q+512}")
        a("s_waitcnt lgkmcnt(0)")
        a(f"ds_write_b32 {v(VZ)}, {v(T+1)} offset:{L_QFLAG}")
        self.stamp(3)
        if self.cut == 1: return self.finish(T)
        MW, LW, M, L, MA, LA, MB, LB = XF, XF+1, XF+2, XF+3, W, W+1, W+2, W+3
        a(f"v_and_b32 {v(T)}, 28, v0"); a(f"v_lshlrev_b32 {v(T)}, 3, {v(T)}")
        a(f"v_and_b32 {v(T+2)}, 3, v0"); a(f"v_lshl_add_u32 {v(T)}, {v(T+2)}, 2, {v(T)}")
        self.lds_wait(L_MLCNT, 8, VZ, T+1, [f"ds_read2_b32 {v(MW,2)}, {v(T)} offset0:{L_ML//4} offset1:{L_ML//4+4}"])
        self.stamp(4)
        a(f"s_mov_b32 {s(S_T2)}, {LOG2E:#x}")
        a(f"v_mov_b32 {v(M)}, {v(MW)}")
        self.ror("v_max_f32", [M], (4, 8))
        a(f"v_mov_b32 {v(T)}, {v(M)}"); a(f"v_permlane16_swap_b32 {v(M)}, {v(T)}"); a(f"v_max_f32 {v(M)}, {v(M)}, {v(T)}")
        a(f"v_sub_f32 {v(L)}, {v(MW)}, {v(M)}"); a(f"v_mul_f32 {v(L)}, {s(S_T2)}, {v(L)}"); a(f"v_exp_f32 {v(L)}, {v(L)}")
        a(f"v_mul_f32 {v(L)}, {v(L)}, {v(LW)}")
        self.ror("v_add_f32", [L], (4, 8))
        a(f"v_mov_b32 {v(T)}, {v(L)}"); a(f"v_permlane16_swap_b32 {v(L)}, {v(T)}"); a(f"v_add_f32 {v(L)}, {v(L)}, {v(T)}")
        self.tag([M, L], VT)
        a(f"v_lshlrev_b32 {v(T)}, 3, v0")
        a(f"s_lshl_b32 {s(S_T0)}, {s(S_H)}, 10"); a(f"s_add_u32 {s(S_T0)}, {s(S_T0)}, {MLBOX:#x}")
        a(f"s_lshl_b32 {s(S_T1)}, {s(S_S)}, 5"); a(f"s_add_u32 {s(S_T1)}, {s(S_T1)}, {s(S_T0)}")
        a("s_mov_b64 exec, 15")
        a(f"buffer_store_dwordx2 {v(M,2)}, {v(T)}, {s(R0,4)}, {s(S_T1)} offen sc1")
        a("s_mov_b64 exec, -1")
        self.trig(self.nm, VZ, T+1)
        self.poll([(f"buffer_load_dwordx2 {v(MA,2)}, {v(T)}, {s(R0,4)}, {s(S_T0)} offen sc1", MA, 2),
                   (f"buffer_load_dwordx2 {v(MB,2)}, {v(T)}, {s(R0,4)}, {s(S_T0)} offen offset:512 sc1", MB, 2)], VT, T+1)
        a(f"v_and_b32 {v(MA)}, {s(S_HI)}, {v(MA)}"); a(f"v_and_b32 {v(MB)}, {s(S_HI)}, {v(MB)}")
        a(f"v_max_f32 {v(M)}, {v(MA)}, {v(MB)}")
        self.ror("v_max_f32", [M], (4, 8)); self.rows_all("v_max_f32", M, T)
        for r in (MA, MB, MW): a(f"v_sub_f32 {v(r)}, {v(r)}, {v(M)}")
        for r in (MA, MB, MW): a(f"v_mul_f32 {v(r)}, {s(S_T2)}, {v(r)}")
        for r in (MA, MB, MW): a(f"v_exp_f32 {v(r)}, {v(r)}")
        a(f"v_mul_f32 {v(L)}, {v(MA)}, {v(LA)}"); a(f"v_fmac_f32 {v(L)}, {v(MB)}, {v(LB)}")
        self.ror("v_add_f32", [L], (4, 8)); self.rows_all("v_add_f32", L, T)
        a(f"v_rcp_f32 {v(L)}, {v(L)}"); a(f"v_mul_f32 {v(MW)}, {v(MW)}, {v(L)}")
        a(f"v_and_b32 {v(T)}, 31, v0"); a(f"v_lshlrev_b32 {v(T)}, 2, {v(T)}"); a(f"v_mov_b32 {v(T+1)}, 1")
        a(f"ds_write_b32 {v(T)}, {v(MW)} offset:{L_F}")
        a("s_waitcnt lgkmcnt(0)")
        a(f"ds_write_b32 {v(VZ)}, {v(T+1)} offset:{L_FFLAG}")
        a("s_waitcnt lgkmcnt(0)")
        self.stamp(5)
        self.finish(T)

    def fblock(self, dst, t):
        a = self.a
        a(f"s_lshl_b32 {s(dst)}, {s(S_H)}, 3"); a(f"s_lshr_b32 {s(t)}, {s(S_S)}, 2"); a(f"s_add_u32 {s(dst)}, {s(dst)}, {s(t)}")

    def sw1(self):
        a = self.a
        VZ, VT, VA, T = self.VZ, self.VT, self.VA, self.T
        XC, VO, G, W = 10, 11, 12, 16
        self.fblock(S_T0, S_T1)
        a(f"s_lshl_b32 {s(S_T0)}, {s(S_T0)}, 10"); a(f"s_add_u32 {s(S_T0)}, {s(S_T0)}, {GBOX:#x}")
        self.trig(self.g_trig, VZ, T+1)
        self.poll([(f"buffer_load_dwordx4 {v(G,4)}, {v(VA)}, {s(R0,4)}, {s(S_T0)} offen sc1", G, 4)], VT, T)
        self.fold4(G)
        self.rbf1(G, G)
        a(f"v_mov_b32_dpp {v(G+1)}, {v(G)} row_ror:8 row_mask:0xf bank_mask:0xf")
        self.silu_bf(G, G, T)
        a(f"v_mul_f32 {v(G)}, {v(G)}, {v(G+1)}"); a(f"v_cvt_pk_bf16_f32 {v(G)}, {v(G)}, {v(G)}")
        a(f"v_and_b32 {v(T)}, 7, v0"); a(f"v_lshlrev_b32 {v(T)}, 3, {v(T)}")
        a(f"v_lshrrev_b32 {v(T+1)}, 4, v0"); a(f"v_lshl_add_u32 {v(T)}, {v(T+1)}, 1, {v(T)}"); a(f"v_mov_b32 {v(T+1)}, 1")
        a("s_mov_b32 exec_lo, 0xff00ff"); a("s_mov_b32 exec_hi, 0xff00ff")
        a(f"ds_write_b16 {v(T)}, {v(G)} offset:{L_H}")
        a("s_mov_b64 exec, -1")
        a("s_waitcnt lgkmcnt(0)")
        a(f"ds_write_b32 {v(VZ)}, {v(T+1)} offset:{L_HFLAG}")
        self.stamp(3)
        Lx = self.lab("sw1end")
        a(f"s_cmp_ge_u32 {s(S_WG)}, {0 if self.cut else 32}"); a(f"s_cbranch_scc1 {Lx}")
        a(f"s_lshl_b32 {s(S_T0)}, {s(S_WG)}, 5")
        a(f"v_and_b32 {v(VO)}, 3, v0"); a(f"v_lshl_add_u32 {v(VO)}, {v(VO)}, 3, {s(S_T0)}")
        a(f"v_lshrrev_b32 {v(T)}, 4, v0"); a(f"v_lshl_add_u32 {v(VO)}, {v(T)}, 1, {v(VO)}")
        a(f"buffer_load_ushort {v(XC)}, {v(VO)}, {s(R1,4)}, 0 offen")
        a(f"s_lshl_b32 {s(S_T0)}, {s(S_WG)}, 13"); a(f"s_add_u32 {s(S_T0)}, {s(S_T0)}, {HBOX:#x}"); a(f"s_add_u32 {s(S_T1)}, {s(S_T0)}, 4096")
        loads = [(f"buffer_load_dwordx4 {v(W+4*j,4)}, {v(VA)}, {s(R0,4)}, {s(S_T0+(j>>2))} offen offset:{1024*(j&3)} sc1", W+4*j, 4) for j in range(8)]
        if self.touch:
            for ld in loads: a(ld[0])
        a("s_waitcnt vmcnt(0)")
        a(f"v_lshlrev_b32 {v(XC)}, 16, {v(XC)}")
        self.srd(R1, P_OUT, 1024)
        self.stamp(4)
        a("s_barrier")
        self.stamp(5)
        self.poll(loads, VT, T, acc=G)
        self.stamp(6)
        self.fold4(G)
        self.ror("v_add_f32", [G], (8,))
        self.rbf1(G, G)
        self.silu_bf(G+1, G, T)
        a(f"v_mul_f32_dpp {v(G)}, {v(G+1)}, {v(G)} row_ror:12 row_mask:0xf bank_mask:0xf"); self.rbf1(G, G)
        a(f"v_add_f32 {v(G)}, {v(G)}, {v(XC)}"); a(f"v_cvt_pk_bf16_f32 {v(G)}, {v(G)}, {v(G)}")
        a("s_mov_b32 exec_lo, 0xf000f"); a("s_mov_b32 exec_hi, 0xf000f")
        a(f"buffer_store_short {v(G)}, {v(VO)}, {s(R1,4)}, 0 offen {self.outpol}")
        a(f"s_cmp_lg_u32 {s(S_WG)}, 0"); a(f"s_cbranch_scc1 {Lx}")
        a("s_mov_b64 exec, 1")
        a(f"v_mov_b32 {v(T)}, {s(S_E)}")
        a(f"buffer_store_dword {v(T)}, {v(VZ)}, {s(R0,4)}, 0 offen offset:{EPOCH} sc1")
        if self.amp:
            pa, pb, k = self.amp
            a("s_waitcnt vmcnt(0)"); self.stamp(7); a("s_waitcnt lgkmcnt(0)")
            a(f"s_sub_u32 {s(S_T0)}, {s(S_ST+2*pb)}, {s(S_ST+2*pa)}"); a(f"s_mul_i32 {s(S_T0)}, {s(S_T0)}, {k}")
            a(f"s_min_u32 {s(S_T0)}, {s(S_T0)}, 100000")
            a("Lamp:")
            a(f"s_memrealtime {s(S_ST+20,2)}"); a("s_waitcnt lgkmcnt(0)")
            a(f"s_sub_u32 {s(S_T1)}, {s(S_ST+20)}, {s(S_ST+14)}"); a(f"s_cmp_lt_u32 {s(S_T1)}, {s(S_T0)}"); a("s_cbranch_scc1 Lamp")
        a(f"{Lx}:")
        if self.diag: a("s_waitcnt vmcnt(0)")
        self.stamp(7)
        self.finish(T)

    def sw23(self):
        a = self.a
        VZ, VT, VA, T = self.VZ, self.VT, self.VA, self.T
        VP, VH, VB, VB2, OUT, SUM, W, HB, AW, AD, F, DD = 10, 11, 12, 13, 16, 20, 24, 56, 72, 104, 120, 152
        SZ, SFB, SCOL, SPUB, SP0, SHB, SLW = S_M+8, S_M+9, S_M+10, S_M+11, S_M, S_M+12, S_M+13
        a(f"s_and_b32 {s(SZ)}, {s(S_WAVE)}, 1")
        self.fblock(SFB, S_T1)
        a(f"s_and_b32 {s(SCOL)}, {s(S_S)}, 3"); a(f"s_lshl_b32 {s(SCOL)}, {s(SCOL)}, 1"); a(f"s_add_u32 {s(SCOL)}, {s(SCOL)}, {s(SZ)}")
        a(f"s_mul_i32 {s(SLW)}, {s(SZ)}, 12288")
        a(f"v_lshrrev_b32 {v(T)}, 4, v0"); a(f"v_lshl_add_u32 {v(T)}, {v(T)}, 10, {s(SLW)}")
        a(f"v_bfe_u32 {v(T+2)}, v0, 2, 2"); a(f"v_lshl_add_u32 {v(T)}, {v(T+2)}, 7, {v(T)}")
        a(f"v_and_b32 {v(T+2)}, 3, v0"); a(f"v_lshl_add_u32 {v(T)}, {v(T+2)}, 3, {v(T)}")
        a(f"s_lshl_b32 {s(S_T0)}, {s(S_H)}, 16"); a(f"s_add_u32 {s(S_T0)}, {s(S_T0)}, {OBOX:#x}")
        a(f"s_lshl_b32 {s(SPUB)}, {s(S_S)}, 11"); a(f"s_add_u32 {s(SPUB)}, {s(SPUB)}, {s(S_T0)}")
        a(f"s_lshr_b32 {s(S_T1)}, {s(S_S)}, 2"); a(f"s_lshl_b32 {s(S_T1)}, {s(S_T1)}, 8"); a(f"s_add_u32 {s(SP0)}, {s(S_T0)}, {s(S_T1)}")
        for k in range(1, 8): a(f"s_add_u32 {s(SP0+k)}, {s(SP0)}, {8192*k}")
        a(f"v_lshrrev_b32 {v(VP)}, 4, v0"); a(f"v_and_b32 {v(T+2)}, 0xf0, {v(VA)}"); a(f"v_lshl_add_u32 {v(VP)}, {v(VP)}, 11, {v(T+2)}")
        a(f"s_lshl_b32 {s(SHB)}, {s(SCOL)}, 15"); a(f"s_lshl_b32 {s(S_T1)}, {s(SFB)}, 7"); a(f"s_add_u32 {s(SHB)}, {s(SHB)}, {s(S_T1)}")
        a(f"s_add_u32 {s(SHB)}, {s(SHB)}, {HBOX:#x}")
        a(f"v_and_b32 {v(VH)}, 3, v0"); a(f"v_lshlrev_b32 {v(VH)}, 13, {v(VH)}")
        a(f"v_and_b32 {v(T+2)}, 4, v0"); a(f"v_lshl_add_u32 {v(VH)}, {v(T+2)}, 4, {v(VH)}")
        a(f"v_and_b32 {v(VB)}, 48, v0"); a(f"v_add_u32 {v(VH)}, {v(VH)}, {v(VB)}")
        def wprep():
            self.lds_wait(L_WCNT, 8, VZ, T+2)
            for t in range(4):
                for hf in range(2):
                    a(f"ds_read_b64_tr_b16 {v(AD+4*t+2*hf,2)}, {v(T)} offset:{L_W + 8192 + 512*hf + 32*t}")
            self.lds_wait(L_HFLAG, 1, VZ, T+2, [f"ds_read_b128 {v(HB,4)}, {v(VB)} offset:{L_H}"])
            for t in range(4): a(f"v_mfma_f32_16x16x32_bf16 {v(DD+4*t,4)}, {v(AD+4*t,4)}, {v(HB,4)}, 0")
            for t in range(4):
                for kk in range(2):
                    for hf in range(2):
                        a(f"ds_read_b64_tr_b16 {v(AW+8*t+4*kk+2*hf,2)}, {v(T)} offset:{L_W + 4096*kk + 512*hf + 32*t}")
                if t == 1: a("s_waitcnt lgkmcnt(0)")
            a("s_mov_b32 exec_lo, 0x100010"); a("s_mov_b32 exec_hi, 0x100010")
            for t in range(4):
                self.tag(range(DD+4*t, DD+4*t+4), VT, dst=range(OUT, OUT+4))
                if t < 3: a("s_lshl_b64 exec, exec, 1")
            a("s_mov_b64 exec, -1")
            a("s_waitcnt lgkmcnt(0)")
            self.stamp(3)
        late = self.wpos > 56
        if not late: wprep()
        if self.cut: return self.finish(T)
        loads = [(f"buffer_load_dwordx4 {v(W+4*k,4)}, {v(VP)}, {s(R0,4)}, {s(SP0+k)} offen sc1", W+4*k, 4) for k in range(8)]
        if self.touch and True:
            for ld in loads: a(ld[0])
        self.lds_wait(L_FFLAG, 1, VZ, T+2, [f"ds_read_b128 {v(F+4*w,4)}, {v(VZ)} offset:{L_F+16*w}" for w in range(8)])
        a(f"s_lshl_b32 {s(S_T0)}, {s(SZ)}, 10"); a(f"v_add_u32 {v(VA)}, {s(S_T0)}, {v(VA)}")
        a(f"s_lshl_b32 {s(S_T0)}, {s(SZ)}, 7"); a(f"v_add_u32 {v(VB2)}, {s(S_T0)}, {v(VB)}"); a(f"v_lshl_add_u32 {v(T+1)}, v0, 1, {s(S_T0)}")
        if self.touch: a("s_waitcnt vmcnt(0)")
        self.stamp(4)
        a("s_barrier")
        self.stamp(5)
        for w in range(8): a(f"ds_read_b128 {v(W+4*w,4)}, {v(VA)} offset:{L_O+2048*w}")
        for w in range(8):
            self.lgkm(7-w)
            for p in (0, 2):
                if w == 0: a(f"v_pk_mul_f32 {v(SUM+p,2)}, {v(W+p,2)}, {v(F+p,2)}")
                else: a(f"v_pk_fma_f32 {v(SUM+p,2)}, {v(W+4*w+p,2)}, {v(F+4*w+p,2)}, {v(SUM+p,2)}")
        self.tag(range(SUM, SUM+4), VT, dst=range(F, F+4))
        a(f"buffer_store_dwordx4 {v(F,4)}, {v(VA)}, {s(R0,4)}, {s(SPUB)} offen sc1")
        self.stamp(6)
        if late and not self.prepoll: wprep()
        self.poll(loads, VT, T+3, acc=SUM, between=(wprep if late and self.prepoll else None))
        self.stamp(7)
        self.fold4(SUM)
        a(f"v_cvt_pk_bf16_f32 {v(SUM)}, {v(SUM)}, {v(SUM)}")
        a(f"ds_write_b16 {v(T+1)}, {v(SUM)} offset:{L_OB}")
        a(f"ds_read_b128 {v(W,4)}, {v(VB2)} offset:{L_OB}"); a(f"ds_read_b128 {v(W+4,4)}, {v(VB2)} offset:{L_OB+64}")
        self.lgkm(1)
        for t in range(4): a(f"v_mfma_f32_16x16x32_bf16 {v(DD+4*t,4)}, {v(AW+8*t,4)}, {v(W,4)}, 0")
        self.lgkm(0)
        for t in range(4): a(f"v_mfma_f32_16x16x32_bf16 {v(DD+4*t,4)}, {v(AW+8*t+4,4)}, {v(W+4,4)}, {v(DD+4*t,4)}")
        a("s_mov_b32 exec_lo, 0x10001"); a("s_mov_b32 exec_hi, 0x10001")
        for t in range(4):
            self.tag(range(DD+4*t, DD+4*t+4), VT, dst=range(OUT, OUT+4))
            if t < 3: a("s_lshl_b64 exec, exec, 1")
        a("s_mov_b32 exec_lo, 0xff00ff"); a("s_mov_b32 exec_hi, 0xff00ff")
        a(f"buffer_store_dwordx4 {v(OUT,4)}, {v(VH)}, {s(R0,4)}, {s(SHB)} offen sc1")
        self.stamp(8)
        if self.diag: a("s_waitcnt vmcnt(0)")
        self.stamp(9)
        self.finish(T)

    def build(self):
        a = self.a
        hdr = open("recurrent_scan__gqa_block_cached__swiglu_ffn__decode.s.ref").read().split("; @launch")[0]
        a(f'.amdgcn_target "amdgcn-amd-amdhsa--gfx950"')
        a(".text"); a(f".globl {KN}"); a(".p2align 8"); a(f".type {KN},@function"); a(f"{KN}:")
        a(f"s_load_dwordx16 {s(4,16)}, s[0:1], 0"); a(f"s_load_dwordx8 {s(20,8)}, s[0:1], 64")
        a("s_cmp_ge_u32 s2, 256"); a("s_cbranch_scc1 Lend")
        if self.diag:
            for k in range(1, 12): a(f"s_mov_b32 {s(S_ST+2*k)}, 0")
        self.stamp(0)
        a("v_lshrrev_b32 v1, 6, v0"); a("v_and_b32 v0, 63, v0"); a(f"v_readfirstlane_b32 {s(S_WAVE)}, v1")
        a(f"s_and_b32 {s(S_H)}, s2, 7"); a(f"s_lshr_b32 {s(S_S)}, s2, 3")
        a(f"s_cmp_ge_u32 {s(S_WAVE)}, 8"); a("s_cbranch_scc1 Lservice")
        self.streamer()
        a("Lservice:")
        if self.prio: a("s_setprio 3")
        a(f"s_mov_b32 {s(S_HI)}, 0xffff0000"); a(f"s_mov_b32 {s(S_TM)}, 0xfff")
        self.stage1()
        a(f"s_cmp_eq_u32 {s(S_WAVE)}, 9"); a("s_cbranch_scc1 Lsw1")
        a(f"s_cmp_gt_u32 {s(S_WAVE)}, 9"); a("s_cbranch_scc1 Lsw23")
        self.sw0()
        a("Lsw23:"); self.sw23()
        a("Lsw1:"); self.sw1()
        a("Lend:"); a("s_endpgm")
        a("Lcode_end:")
        a(".fill 64, 4, 0xbf800000")
        a('.section .rodata,"a"'); a(".p2align 6"); a(f".amdhsa_kernel {KN}")
        for d in ("next_free_vgpr 168", "next_free_sgpr 102", "accum_offset 168", "group_segment_fixed_size 0", "kernarg_size 96",
                  "user_sgpr_count 2", "user_sgpr_kernarg_segment_ptr 1", "system_sgpr_workgroup_id_x 1", "float_denorm_mode_32 3"):
            a(f".amdhsa_{d}")
        a(".end_amdhsa_kernel")
        return hdr + f"; @launch grid=(256,1,1) block=(768,1,1) lds={LDS_BYTES}\n" + a.finalize()

def gen(**kw): return G(**kw).build()
if __name__ == "__main__":
    kw = eval("dict(" + (sys.argv[2] if len(sys.argv) > 2 else "") + ")")
    open(sys.argv[1], "w").write(gen(**kw))
```

```python
import sys
from asmlib import Asm
KN = "recurrent_scan__gqa_block_cached__swiglu_ffn__decode_kernel"

EPOCH = 0
QBOX, MLBOX, GBOX, OBOX, HBOX = 0x1000, 0x9000, 0x10000, 0x20000, 0xA0000
WS_USED = 0xE0000
STAMP = 128 << 20
L_QFLAG, L_MLCNT, L_FFLAG, L_S1CNT, L_PROG, L_HFLAG, L_ACNT, L_WCNT = 0, 4, 8, 12, 16, 20, 24, 28
L_ML, L_F, L_H, L_Q, L_S1, L_OB, L_O, L_W = 64, 320, 448, 512, 1536, 2560, 2816, 19200
L_A = L_W + 2*12288
LDS_BYTES = L_A + 32768
SPIN = 1 << 16

LOG2E = 0x3fb8aa3b
SCALE = 0x3db504f3
EPS = 0x3727c5ac

def v(i, n=1): return f"v{i}" if n == 1 else f"v[{i}:{i+n-1}]"
def s(i, n=1): return f"s{i}" if n == 1 else f"s[{i}:{i+n-1}]"

S_WG, S_WAVE = 2, 3
P_X, P_K, P_V, P_WQ, P_WO, P_BX, P_WG, P_WU, P_WD, P_OUT, P_DBG, P_WS = range(4, 28, 2)
R0, R1, R2, R3, R4 = 28, 32, 36, 40, 44
S_H, S_S = 48, 49
S_T0, S_T1, S_T2, S_T3 = 50, 51, 52, 53
S_HI, S_TM, S_LO, S_HIS = 54, 55, 56, 57
S_CNT, S_E = 58, 59
S_M = 60
S_ST = 76

class G:
    def __init__(self, D=4, D2=None, nD2=48, n0=28, il=12, kvpol="nt", wpol="nt", diag=0, pf=1, nq=10, nm=50, w_trig="q", g_trig="ml",
                 outpol="sc1", prio=1, touch=0, cut=0, amp=None, trace=0, ramp=None, wpos=64, apos=1, smooth=1, wlate=0, prepoll=0, fast=1, clean=0, wdma=1, rot=0, agap=0):
        self.__dict__.update(locals()); del self.__dict__['self']
        self.a = Asm(); self.nlab = 0
    def lab(self, p):
        self.nlab += 1; return f"L{p}{self.nlab}"
    def srd(self, r, ptr, size):
        a = self.a
        a(f"s_mov_b32 {s(r)}, {s(ptr)}"); a(f"s_mov_b32 {s(r+1)}, {s(ptr+1)}")
        a(f"s_mov_b32 {s(r+2)}, {size:#x}"); a(f"s_mov_b32 {s(r+3)}, 0x20000")
    def stamp(self, k):
        if self.diag or self.amp: self.a(f"s_memrealtime {s(S_ST+2*k,2)}")
    def lgkm(self, n):
        self.a(f"s_waitcnt lgkmcnt({0 if (self.diag or self.amp) else n})")
    def finish(self, vt):
        a = self.a
        if self.diag:
            a("s_waitcnt lgkmcnt(0)")
            a(f"s_mul_i32 {s(S_T0)}, {s(S_WG)}, 12"); a(f"s_add_u32 {s(S_T0)}, {s(S_T0)}, {s(S_WAVE)}")
            a(f"s_lshl_b32 {s(S_T0)}, {s(S_T0)}, 6"); a(f"s_add_u32 {s(S_T0)}, {s(S_T0)}, {STAMP:#x}")
            a("s_mov_b64 exec, 1")
            a(f"v_mov_b32 {v(vt)}, {s(S_T0)}")
            for k in range(12):
                a(f"v_mov_b32 {v(vt+1)}, {s(S_ST+2*k)}")
                a(f"global_store_dword {v(vt)}, {v(vt+1)}, {s(P_WS,2)} offset:{4*k}")
            a("s_waitcnt vmcnt(0)")
        a("s_endpgm")
    def unpack(self, lo, hi, src):
        self.a(f"v_lshlrev_b32 {v(lo)}, 16, {v(src)}"); self.a(f"v_and_b32 {v(hi)}, {s(S_HI)}, {v(src)}")
    def rbf1(self, dst, src):
        self.a(f"v_cvt_pk_bf16_f32 {v(dst)}, {v(src)}, {v(src)}"); self.a(f"v_and_b32 {v(dst)}, {s(S_HI)}, {v(dst)}")
    def rbf2(self, d0, d1, s0, s1, t):
        self.a(f"v_cvt_pk_bf16_f32 {v(t)}, {v(s0)}, {v(s1)}"); self.unpack(d0, d1, t)
    def ror(self, op, regs, steps):
        for n in steps:
            for r in regs: self.a(f"{op}_dpp {v(r)}, {v(r)}, {v(r)} row_ror:{n} row_mask:0xf bank_mask:0xf")
    def rows_all(self, op, x, t):
        a = self.a
        for sw in ("v_permlane16_swap_b32", "v_permlane32_swap_b32"):
            a(f"v_mov_b32 {v(t)}, {v(x)}"); a(f"{sw} {v(x)}, {v(t)}"); a(f"{op} {v(x)}, {v(x)}, {v(t)}")
    def fold(self, sw, pairs):
        for x, y in pairs: self.a(f"{sw} {v(x)}, {v(y)}")
        for x, y in pairs: self.a(f"v_add_f32 {v(x)}, {v(x)}, {v(y)}")
    def fold4(self, x):
        self.fold("v_permlane32_swap_b32", [(x, x+2), (x+1, x+3)])
        self.fold("v_permlane16_swap_b32", [(x, x+1)])
    def silu_bf(self, dst, x, t):
        a = self.a
        a(f"v_mul_f32 {v(t)}, {0x80000000 ^ LOG2E:#x}, {v(x)}"); a(f"v_exp_f32 {v(t)}, {v(t)}")
        a(f"v_add_f32 {v(t)}, 1.0, {v(t)}"); a(f"v_rcp_f32 {v(t)}, {v(t)}"); a(f"v_mul_f32 {v(t)}, {v(x)}, {v(t)}")
        self.rbf1(dst, t)
    def layernorm(self, X, XF, T):
        a = self.a
        for k in range(4): self.unpack(XF+2*k, XF+2*k+1, X+k)
        a(f"v_add_f32 {v(T)}, {v(XF)}, {v(XF+1)}")
        for k in range(2, 8): a(f"v_add_f32 {v(T)}, {v(T)}, {v(XF+k)}")
        self.ror("v_add_f32", [T], (8, 4, 2, 1)); self.rows_all("v_add_f32", T, T+1)
        a(f"v_mul_f32 {v(T)}, 0x3b000000, {v(T)}")
        a(f"v_sub_f32 {v(T+2)}, {v(XF)}, {v(T)}"); a(f"v_mul_f32 {v(T+3)}, {v(T+2)}, {v(T+2)}")
        for k in range(1, 8):
            a(f"v_sub_f32 {v(T+2)}, {v(XF+k)}, {v(T)}"); a(f"v_fmac_f32 {v(T+3)}, {v(T+2)}, {v(T+2)}")
        self.ror("v_add_f32", [T+3], (8, 4, 2, 1)); self.rows_all("v_add_f32", T+3, T+1)
        a(f"v_mul_f32 {v(T+3)}, 0x3b000000, {v(T+3)}")
        self.rbf2(T, T+3, T, T+3, T+1)
        a(f"v_add_f32 {v(T+3)}, {EPS:#x}, {v(T+3)}"); self.rbf1(T+3, T+3)
        a(f"v_sqrt_f32 {v(T+3)}, {v(T+3)}"); self.rbf1(T+3, T+3)
        a(f"v_rcp_f32 {v(T+2)}, {v(T+3)}")
        for k in range(8): a(f"v_sub_f32 {v(XF+k)}, {v(XF+k)}, {v(T)}")
        for k in range(4): self.rbf2(XF+2*k, XF+2*k+1, XF+2*k, XF+2*k+1, T+1)
        for k in range(8):
            a(f"v_mul_f32 {v(T+4)}, {v(XF+k)}, {v(T+2)}")
            a(f"v_fma_f32 {v(T+5)}, -{v(T+4)}, {v(T+3)}, {v(XF+k)}")
            a(f"v_fma_f32 {v(XF+k)}, {v(T+5)}, {v(T+2)}, {v(T+4)}")
        for k in range(4): self.rbf2(XF+2*k, XF+2*k+1, XF+2*k, XF+2*k+1, T+1)
    def tag(self, regs, vT, dst=None):
        for i, r in enumerate(regs):
            d = r if dst is None else dst[i]
            self.a(f"v_bfi_b32 {v(d)}, {s(S_TM)}, {v(vT)}, {v(r)}")
    def poll(self, loads, vT, t, acc=None, between=None):
        a = self.a; L = self.lab("poll"); Lo = self.lab("pollx")
        if between:
            Lc = self.lab("pollc")
            for ld in loads: a(ld[0])
            between()
            a(f"s_mov_b32 {s(S_CNT)}, {SPIN}")
            a(f"s_branch {Lc}")
        else: a(f"s_mov_b32 {s(S_CNT)}, {SPIN}")
        a(f"{L}:")
        for ld in loads: a(ld[0])
        if between: a(f"{Lc}:")
        first = True
        for j, (_, r0, n) in enumerate(loads):
            a(f"s_waitcnt vmcnt({len(loads)-1-j})")
            for w in range(r0, r0+n):
                if first: a(f"v_xor_b32 {v(t)}, {v(w)}, {v(vT)}"); first = False
                else: a(f"v_bitop3_b32 {v(t)}, {v(w)}, {v(vT)}, {v(t)} bitop3:0xbe")
            if j == len(loads) - 1:
                a(f"v_and_b32 {v(t)}, {s(S_TM)}, {v(t)}")
                a(f"v_cmp_ne_u32 vcc, 0, {v(t)}")
            if acc is not None and j >= 1:
                p = loads[0][1] if j == 1 else acc
                a(f"v_pk_add_f32 {v(acc,2)}, {v(p,2)}, {v(r0,2)}"); a(f"v_pk_add_f32 {v(acc+2,2)}, {v(p+2,2)}, {v(r0+2,2)}")
        a(f"s_sub_u32 {s(S_CNT)}, {s(S_CNT)}, 1")
        a(f"s_cbranch_scc1 {Lo}")
        a("s_mov_b64 exec, vcc")
        a(f"s_cbranch_execnz {L}")
        a(f"{Lo}:")
        a("s_mov_b64 exec, -1")
    def lds_wait(self, off, val, vz, t, extra=(), sleep=1):
        a = self.a; L = self.lab("lw"); Lo = self.lab("lwx")
        a(f"s_mov_b32 {s(S_CNT)}, {SPIN*16}")
        a(f"{L}:")
        a(f"ds_read_b32 {v(t)}, {v(vz)} offset:{off}")
        for e in extra: a(e)
        a("s_waitcnt lgkmcnt(0)")
        a(f"v_readfirstlane_b32 {s(S_T3)}, {v(t)}")
        a(f"s_cmp_ge_u32 {s(S_T3)}, {val}")
        a(f"s_cbranch_scc1 {Lo}")
        a(f"s_sub_u32 {s(S_CNT)}, {s(S_CNT)}, 1")
        a(f"s_cbranch_scc1 {Lo}")
        if sleep: a(f"s_sleep {sleep}")
        a(f"s_branch {L}")
        a(f"{Lo}:")
    def trig(self, what, vz, t):
        if what == "q": self.lds_wait(L_QFLAG, 1, vz, t)
        elif what == "ml": self.lds_wait(L_MLCNT, 8, vz, t)
        elif isinstance(what, int) and what > 0: self.lds_wait(L_PROG, what, vz, t)
    def streamer(self):
        a = self.a
        VK, VV, VZ, VT, VT2 = 1, 2, 3, 4, 5
        Q, S, DT, KB = 8, 12, 20, 36
        slot = lambda i: KB + 4*i
        ACC, AO, B = slot(16), slot(18), slot(23)
        SB = S_T0
        a(f"s_lshl_b32 {s(SB)}, {s(S_H)}, 23"); a(f"s_lshl_b32 {s(S_T1)}, {s(S_S)}, 18"); a(f"s_or_b32 {s(SB)}, {s(SB)}, {s(S_T1)}")
        a(f"s_lshl_b32 {s(S_T1)}, {s(S_WAVE)}, {self.il}"); a(f"s_or_b32 {s(SB)}, {s(SB)}, {s(S_T1)}")
        if self.rot == 1: a(f"s_lshl_b32 {s(S_M+9)}, {s(S_S)}, 15")
        if self.rot == 2: a(f"s_add_u32 {s(S_M+9)}, {s(S_S)}, {s(S_H)}"); a(f"s_lshl_b32 {s(S_M+9)}, {s(S_M+9)}, 15")
        a(f"v_lshlrev_b32 {v(VV)}, 4, v0")
        a(f"v_and_b32 {v(VT)}, 0xc0, {v(VV)}"); a(f"v_lshlrev_b32 {v(VT)}, 2, {v(VT)}")
        a(f"v_lshrrev_b32 {v(VK)}, 4, v0"); a(f"v_lshlrev_b32 {v(VK)}, 6, {v(VK)}")
        a(f"v_and_b32 {v(VT2)}, 48, {v(VV)}")
        a(f"v_or3_b32 {v(VK)}, {v(VK)}, {v(VT)}, {v(VT2)}")
        a(f"v_mov_b32 {v(VZ)}, 0")
        a("s_waitcnt lgkmcnt(0)")
        self.srd(R0, P_K, 0x4000000); self.srd(R1, P_V, 0x4000000)
        def off(i):
            if self.il == 12: return (i >> 2) * 32768, (i & 3) * 1024
            return i * 8192, 0
        last_so = [None]
        VWA, VWD = 6, 7
        SA, SW0, SW1, SSTR = S_M+5, S_M+6, S_M+7, S_M+4
        def regs(it):
            k, i = it
            return {'K': slot(i), 'V': slot(i % 16), 'A': slot(28 + i), 'W': (DT + 4*i if self.wpos > 40 else slot(28 + i))}[k]
        def setup_a():
            a(f"s_lshr_b32 {s(S_M)}, {s(S_WAVE)}, 1")
            self.s1_geom(True)
            a(f"s_and_b32 {s(S_T3)}, {s(S_WAVE)}, 1"); a(f"s_lshl_b32 {s(S_T3)}, {s(S_T3)}, 2"); a(f"s_add_u32 {s(S_T3)}, {s(S_T3)}, {s(S_M+3)}")
            a(f"s_mul_i32 {s(S_T3)}, {s(S_T3)}, {s(SSTR)}"); a(f"s_lshl_b32 {s(SA)}, {s(S_T2)}, 7"); a(f"s_add_u32 {s(SA)}, {s(SA)}, {s(S_T3)}")
            a(f"v_and_b32 {v(VT)}, 56, v0"); a(f"v_mul_u32_u24 {v(VT)}, {s(SSTR)}, {v(VT)}")
            a(f"v_and_b32 {v(VT2)}, 0x70, {v(VV)}"); a(f"v_add_u32 {v(VWA)}, {v(VT)}, {v(VT2)}")
        def setup_w():
            a(f"s_and_b32 {s(S_T2)}, {s(S_S)}, 3"); a(f"s_lshl_b32 {s(S_T2)}, {s(S_T2)}, 1"); a(f"s_lshr_b32 {s(S_T3)}, {s(S_WAVE)}, 2")
            a(f"s_add_u32 {s(S_T2)}, {s(S_T2)}, {s(S_T3)}"); a(f"s_lshl_b32 {s(S_T2)}, {s(S_T2)}, 7")
            a(f"s_lshl_b32 {s(SW0)}, {s(S_H)}, 19"); a(f"s_lshr_b32 {s(S_T3)}, {s(S_S)}, 2"); a(f"s_lshl_b32 {s(S_T3)}, {s(S_T3)}, 10")
            a(f"s_add_u32 {s(SW0)}, {s(SW0)}, {s(S_T3)}"); a(f"s_add_u32 {s(SW0)}, {s(SW0)}, {s(S_T2)}")
            self.fblock(SW1, S_T3)
            a(f"s_lshl_b32 {s(SW1)}, {s(SW1)}, 15"); a(f"s_add_u32 {s(SW1)}, {s(SW1)}, {s(S_T2)}")
            a(f"s_and_b32 {s(S_T2)}, {s(S_WAVE)}, 3")
            a(f"s_lshl_b32 {s(S_T3)}, {s(S_T2)}, 16"); a(f"s_add_u32 {s(SW0)}, {s(SW0)}, {s(S_T3)}")
            a(f"s_lshl_b32 {s(S_T3)}, {s(S_T2)}, 13"); a(f"s_add_u32 {s(SW1)}, {s(SW1)}, {s(S_T3)}")
            self.srd(R2, P_WO, 0x400000); self.srd(R3, P_WD, 0x1c0000)
            a(f"v_lshrrev_b32 {v(VT)}, 3, v0"); a(f"v_and_b32 {v(VT2)}, 0x70, {v(VV)}")
            a(f"v_lshl_add_u32 {v(VWD)}, {v(VT)}, 10, {v(VT2)}"); a(f"v_lshl_add_u32 {v(VWA)}, {v(VT)}, 13, {v(VT2)}")
        def load(it):
            k, i = it
            r = v(regs(it), 4)
            if k in 'KV':
                so, imm = off(i)
                if so != last_so[0]:
                    if self.rot:
                        a(f"s_add_u32 {s(S_T1)}, {s(S_M+9)}, {so}"); a(f"s_and_b32 {s(S_T1)}, {s(S_T1)}, 0x38000"); a(f"s_or_b32 {s(S_T1)}, {s(S_T1)}, {s(SB)}")
                    else: a(f"s_add_u32 {s(S_T1)}, {s(SB)}, {so}")
                    last_so[0] = so
                a(f"buffer_load_dwordx4 {r}, {v(VV if k == 'V' else VK)}, {s(R1 if k == 'V' else R0,4)}, {s(S_T1)} offen offset:{imm} {self.kvpol}")
            elif k == 'A':
                if i == 0: setup_a()
                a(f"buffer_load_dwordx4 {r}, {v(VWA)}, {s(R2,4)}, {s(SA)} offen {self.wpol}")
                if i < 3: a(f"s_add_u32 {s(SA)}, {s(SA)}, {s(SSTR)}")
            else:
                if i < 2: a(f"buffer_load_dwordx4 {r}, {v(VWA)}, {s(R2,4)}, {s(SW0)} offen {self.wpol}")
                else: a(f"buffer_load_dwordx4 {r}, {v(VWD)}, {s(R3,4)}, {s(SW1)} offen {self.wpol}")
                if i == 0: a(f"s_add_u32 {s(SW0)}, {s(SW0)}, 0x40000")
        def count(off_):
            a(f"v_mov_b32 {v(VT2)}, 1"); a("s_mov_b64 exec, 1"); a(f"ds_add_u32 {v(VZ)}, {v(VT2)} offset:{off_}"); a("s_mov_b64 exec, -1")
        def put_a():
            a(f"s_lshl_b32 {s(S_T2)}, {s(S_WAVE)}, 12"); a(f"v_add_u32 {v(VT)}, {s(S_T2)}, {v(VV)}")
            for i in range(4): a(f"ds_write_b128 {v(VT)}, {v(regs(('A', i)),4)} offset:{L_A + 1024*i}")
            count(L_ACNT)
            if not self.wdma: setup_w()
        def put_w():
            a(f"s_lshr_b32 {s(S_T2)}, {s(S_WAVE)}, 2"); a(f"s_mul_i32 {s(S_T2)}, {s(S_T2)}, 12288")
            a(f"s_and_b32 {s(S_T3)}, {s(S_WAVE)}, 3"); a(f"s_lshl_b32 {s(S_T3)}, {s(S_T3)}, 10"); a(f"s_add_u32 {s(S_T2)}, {s(S_T2)}, {s(S_T3)}")
            a(f"v_add_u32 {v(VT)}, {s(S_T2)}, {v(VV)}")
            for i in range(3): a(f"ds_write_b128 {v(VT)}, {v(regs(('W', i)),4)} offset:{L_W + 4096*i}")
            count(L_WCNT)
        def qk(j):
            for m in range(4):
                a(f"v_mfma_f32_16x16x32_bf16 {v(DT+4*m,4)}, {v(slot(4*j+m),4)}, {v(Q,4)}, 0")
            for k in range(1, 4):
                for m in range(4):
                    b = (m + k) & 3
                    other = DT+4*m+m if k == 1 else S+j
                    a(f"v_add_f32_dpp {v(S+j)}, {v(DT+4*m+b)}, {v(other)} row_ror:{(4*(m-b)) & 15} row_mask:0xf bank_mask:{1<<m:#x}")
        M, Lr = DT, DT+1
        def sm_scale(k):
            if k == 0: a(f"s_mov_b32 {s(S_M+8)}, {SCALE:#x}")
            x, y = S+2*k, S+2*k+1
            self.rbf2(x, y, x, y, VT)
            a(f"v_mul_f32 {v(x)}, {s(S_M+8)}, {v(x)}"); a(f"v_mul_f32 {v(y)}, {s(S_M+8)}, {v(y)}")
            self.rbf2(x, y, x, y, VT)
        def sm_max():
            a(f"v_max3_f32 {v(M)}, {v(S)}, {v(S+1)}, {v(S+2)}"); a(f"v_max3_f32 {v(M)}, {v(M)}, {v(S+3)}, {v(S+4)}")
            a(f"v_max3_f32 {v(M)}, {v(M)}, {v(S+5)}, {v(S+6)}"); a(f"v_max_f32 {v(M)}, {v(M)}, {v(S+7)}")
            self.ror("v_max_f32", [M], (4, 8)); self.rows_all("v_max_f32", M, VT)
        def sm_exp():
            a(f"s_mov_b32 {s(S_T2)}, {LOG2E:#x}")
            for k in range(8): a(f"v_sub_f32 {v(S+k)}, {v(S+k)}, {v(M)}")
            for k in range(8): a(f"v_mul_f32 {v(S+k)}, {s(S_T2)}, {v(S+k)}")
            for k in range(8): a(f"v_exp_f32 {v(S+k)}, {v(S+k)}")
        def sm_sum():
            a(f"v_add_f32 {v(Lr)}, {v(S)}, {v(S+1)}")
            for k in range(2, 8): a(f"v_add_f32 {v(Lr)}, {v(Lr)}, {v(S+k)}")
            self.ror("v_add_f32", [Lr], (4, 8)); self.rows_all("v_add_f32", Lr, VT)
            a(f"s_lshl_b32 {s(S_T2)}, {s(S_WAVE)}, 5")
            a(f"v_lshl_add_u32 {v(VT)}, v0, 2, {s(S_T2)}"); a(f"v_mov_b32 {v(VT2)}, 1")
            a("s_mov_b64 exec, 15")
            a(f"ds_write2_b32 {v(VT)}, {v(M)}, {v(Lr)} offset0:{L_ML//4} offset1:{L_ML//4+4}")
            a("s_mov_b64 exec, 1")
            a(f"ds_add_u32 {v(VZ)}, {v(VT2)} offset:{L_MLCNT}")
            a("s_mov_b64 exec, -1")
        def zero_acc():
            for r in range(ACC, ACC+8): a(f"v_mov_b32 {v(r)}, 0")
            for r in range(AO, AO+16): a(f"v_mov_b32 {v(r)}, 0")
        def build_a(j):
            a(f"v_cvt_pk_bf16_f32 {v(VT)}, {v(S+2*j)}, {v(S+2*j+1)}")
            for m in range(4):
                for e in range(4):
                    n = (4*(e-m)) & 15
                    ctl = f"row_ror:{n}" if n else "quad_perm:[0,1,2,3]"
                    a(f"v_mov_b32_dpp {v(AO+4*e+m)}, {v(VT)} {ctl} row_mask:0xf bank_mask:{1<<e:#x}")
        def perm1(j, m, e):
            lo, hi = slot((8*j+m) % 16), slot((8*j+4+m) % 16)
            a(f"v_perm_b32 {v(B+4*e+m)}, {v(hi+(e>>1))}, {v(lo+(e>>1))}, {s(S_HIS if e & 1 else S_LO)}")
        def mfma_pv(e):
            acc = ACC + 4*(e >> 2)
            a(f"v_mfma_f32_16x16x32_bf16 {v(acc,4)}, {v(AO+4*(e&3),4)}, {v(B+4*e,4)}, {v(acc,4)}")
        def pv_last(j):
            order = [0, 4, 1, 5, 2, 6, 3, 7]
            for k in range(3): perm1(j, 3, order[k])
            for k in range(8):
                mfma_pv(order[k])
                if k + 3 < 8: perm1(j, 3, order[k+3])
        def qwait():
            a(f"v_and_b32 {v(VT2)}, 3, v0"); a(f"v_lshlrev_b32 {v(VT2)}, 8, {v(VT2)}")
            a(f"v_and_b32 {v(VT)}, 0xc0, {v(VV)}"); a(f"v_lshrrev_b32 {v(VT)}, 2, {v(VT)}")
            a(f"v_and_b32 {v(DT)}, 0x300, {v(VV)}"); a(f"v_lshrrev_b32 {v(DT)}, 2, {v(DT)}")
            a(f"v_or3_b32 {v(VT2)}, {v(VT2)}, {v(VT)}, {v(DT)}")
            self.stamp(2)
            if not self.cut: self.lds_wait(L_QFLAG, 1, VZ, VT, [f"ds_read_b128 {v(Q,4)}, {v(VT2)} offset:{L_Q}"])
            self.stamp(3)
        kv = [('K', i) for i in range(32)] + [('V', i) for i in range(32)]
        seq = kv[:self.apos] + [('A', i) for i in range(4)] + kv[self.apos:self.wpos] + [('W', i) for i in range(0 if self.wdma else 3)] + kv[self.wpos:]
        if self.agap:
            seq = [x for x in seq if x[0] != 'A']
            for i in range(4): seq.insert(self.apos + i*(self.agap + 1), ('A', i))
        pos = {it: n for n, it in enumerate(seq)}
        N = len(seq)
        def owrite():
            self.stamp(7)
            pv_last(3)
            a(f"s_lshl_b32 {s(S_T2)}, {s(S_WAVE)}, 11")
            a(f"v_add_u32 {v(VT)}, {s(S_T2)}, {v(VV)}")
            a(f"ds_write_b128 {v(VT)}, {v(ACC,4)} offset:{L_O}")
            a(f"ds_write_b128 {v(VT)}, {v(ACC+4,4)} offset:{L_O+1024}")
            a("s_waitcnt lgkmcnt(0)")
            a("s_barrier")
        p0 = pos[('K', self.n0)]
        tasks = [(p0, -1, [], qwait)]
        for j in range(8):
            tasks.append((p0 + j, pos[('K', 4*j+3)], [('K', 4*j+m) for m in range(4)], lambda j=j: qk(j)))
            if j & 1: tasks.append((0, -1, [], lambda j=j: sm_scale(j >> 1)))
        for f in (sm_max, sm_exp, sm_sum, zero_acc): tasks.append(('next', -1, [], f))
        for j in range(4):
            tasks.append(('next', -1, [], lambda j=j: build_a(j)))
            for m in range(3): tasks.append(('next', pos[('V', 8*j+4+m)], [('V', 8*j+m), ('V', 8*j+4+m)], lambda j=j, m=m: [perm1(j, m, e) for e in range(8)]))
            tasks.append(('next', pos[('V', 8*j+7)], [('V', 8*j+3), ('V', 8*j+7)], (lambda j=j: pv_last(j)) if j < 3 else owrite))
        side = [(0, pos[('A', 3)], [('A', i) for i in range(4)], put_a)]
        if not self.wdma: side.append((0, pos[('W', 2)], [('W', i) for i in range(3)], put_w))
        trigs = {pos[kv[t]]: t for t in (self.nq, self.nm, self.g_trig) if isinstance(t, int) and t > 0}
        def Dn(n):
            if self.ramp and n < len(self.ramp): return self.ramp[n]
            return self.D2 if (self.D2 and n >= self.nD2) else self.D
        nbar = (self.ramp[0] if self.ramp else self.D) - 1
        busy = {}; landed = -1
        def run(n):
            for q in (side, tasks):
                did = False
                while q and q[0][1] <= landed:
                    e = q[0][0]
                    if e == 'next':
                        if did and n < 99 and self.smooth: break
                    elif e > n: break
                    t = q.pop(0); t[3](); did = True
                    for x in t[2]: busy.pop(regs(x))
        NM = N - 3 if self.wlate else N
        for n in range(NM):
            if n - Dn(n) > landed:
                a(f"s_waitcnt vmcnt({Dn(n)-1})"); landed = n - Dn(n)
            assert regs(seq[n]) not in busy, (n, seq[n])
            busy[regs(seq[n])] = n
            load(seq[n])
            if self.trace and seq[n] in kv:
                m = kv.index(seq[n])
                if m: a("s_waitcnt lgkmcnt(0)"); a(f"v_writelane_b32 v164, s100, {m-1}")
                a("s_memrealtime s[100:101]")
            if n == nbar:
                a(f"s_mov_b32 {s(S_HI)}, 0xffff0000"); a(f"s_mov_b32 {s(S_LO)}, 0x05040100"); a(f"s_mov_b32 {s(S_HIS)}, 0x07060302")
                a("s_barrier")
            if n in trigs:
                a(f"v_mov_b32 {v(VT)}, {trigs[n]}"); a("s_mov_b64 exec, 1"); a(f"ds_max_u32 {v(VZ)}, {v(VT)} offset:{L_PROG}"); a("s_mov_b64 exec, -1")
            if self.wdma and seq[n] == kv[min(63, self.wpos - 1)]: count(L_WCNT)
            if n == nbar + 1: self.stamp(1)
            if landed == pos[('K', 31)]: self.stamp(4)
            run(n)
        issued = NM
        while landed < N - 1:
            landed += 1
            now = issued < N and landed == NM - self.wlate
            if not now and not any(q and q[0][1] <= landed for q in (side, tasks)): continue
            a(f"s_waitcnt vmcnt({issued - 1 - landed})")
            if now:
                for n in range(NM, N):
                    busy[regs(seq[n])] = n; load(seq[n])
                issued = N
            run(99)
        assert not tasks and not side
        self.stamp(8)
        if self.trace:
            a(f"s_mul_i32 {s(S_T0)}, {s(S_WG)}, 8"); a(f"s_add_u32 {s(S_T0)}, {s(S_T0)}, {s(S_WAVE)}")
            a(f"s_lshl_b32 {s(S_T0)}, {s(S_T0)}, 8"); a(f"s_add_u32 {s(S_T0)}, {s(S_T0)}, {STAMP + (1<<20):#x}")
            a(f"v_lshl_add_u32 {v(VT)}, v0, 2, {s(S_T0)}")
            a(f"global_store_dword {v(VT)}, v164, {s(P_WS,2)}")
        self.finish(VT)

    def s1_geom(self, loader):
        a = self.a
        SZ, SCB, SRB, SROW, SSTR = S_M, S_M+1, S_M+2, S_M+3, S_M+4
        Lf, Lj = self.lab("s1ffn"), self.lab("s1join")
        a(f"s_cmp_ge_u32 {s(S_S)}, 16"); a(f"s_cbranch_scc1 {Lf}")
        a(f"s_and_b32 {s(SCB)}, {s(S_S)}, 7"); a(f"s_lshr_b32 {s(SRB)}, {s(S_S)}, 3")
        a(f"s_lshl_b32 {s(SROW)}, {s(SRB)}, 2"); a(f"s_add_u32 {s(SROW)}, {s(SROW)}, {s(SZ)}"); a(f"s_lshl_b32 {s(SROW)}, {s(SROW)}, 6")
        if loader:
            a(f"s_mov_b32 {s(SSTR)}, 8192")
            a(f"s_lshl_b32 {s(S_T2)}, {s(S_H)}, 3"); a(f"s_add_u32 {s(S_T2)}, {s(S_T2)}, {s(SCB)}")
            self.srd(R2, P_WQ, 0x400000)
        a(f"s_branch {Lj}")
        a(f"{Lf}:")
        a(f"s_sub_u32 {s(S_T2)}, {s(S_S)}, 16"); a(f"s_lshl_b32 {s(S_T2)}, {s(S_T2)}, 3"); a(f"s_add_u32 {s(S_T2)}, {s(S_T2)}, {s(S_H)}")
        a(f"s_lshr_b32 {s(SCB)}, {s(S_T2)}, 2"); a(f"s_and_b32 {s(SRB)}, {s(S_T2)}, 3")
        a(f"s_and_b32 {s(S_T3)}, {s(SZ)}, 1")
        a(f"s_lshl_b32 {s(SROW)}, {s(SRB)}, 1"); a(f"s_add_u32 {s(SROW)}, {s(SROW)}, {s(S_T3)}"); a(f"s_lshl_b32 {s(SROW)}, {s(SROW)}, 6")
        if loader:
            a(f"s_mov_b32 {s(SSTR)}, 3584")
            a(f"s_mov_b32 {s(S_T2)}, {s(SCB)}")
            a(f"s_cmp_ge_u32 {s(SZ)}, 2")
            a(f"s_cselect_b32 {s(R2)}, {s(P_WU)}, {s(P_WG)}"); a(f"s_cselect_b32 {s(R2+1)}, {s(P_WU+1)}, {s(P_WG+1)}")
            a(f"s_cmp_lt_u32 {s(SCB)}, 28")
            a(f"s_cselect_b32 {s(R2+2)}, 0x1c0000, 0"); a(f"s_mov_b32 {s(R2+3)}, 0x20000")
        a(f"{Lj}:")

    VZ, VT, VA, T = 1, 2, 3, 4
    def stage1(self):
        a = self.a
        VZ, VT, VA, T = self.VZ, self.VT, self.VA, self.T
        X, XF, XR, ACC, W = 12, 16, 24, 32, 40
        SZ, SCB, SRB, SROW, SSTR = S_M, S_M+1, S_M+2, S_M+3, S_M+4
        a(f"s_and_b32 {s(SZ)}, {s(S_WAVE)}, 3")
        a(f"v_mov_b32 {v(VZ)}, 0"); a(f"v_lshlrev_b32 {v(VA)}, 4, v0")
        if self.pf:
            Lp = self.lab("nopf")
            a(f"s_cmp_ge_u32 {s(S_S)}, {self.pf}"); a(f"s_cbranch_scc1 {Lp}")
            a(f"s_getpc_b64 {s(R4,2)}")
            a(f"Lpc:")
            a(f"s_sub_u32 {s(R4)}, {s(R4)}, Lpc-{KN}"); a(f"s_subb_u32 {s(R4+1)}, {s(R4+1)}, 0")
            a(f"s_mov_b32 {s(R4+2)}, Lcode_end-{KN}"); a(f"s_mov_b32 {s(R4+3)}, 0x20000")
            a(f"s_lshl_b32 {s(S_T0)}, {s(SZ)}, 12")
            for k in range(4):
                a(f"buffer_load_dwordx4 {v(W+32+4*k,4)}, {v(VA)}, {s(R4,4)}, {s(S_T0)} offen offset:{1024*k}")
            a(f"{Lp}:")
        self.s1_geom(False)
        a("s_waitcnt lgkmcnt(0)")
        self.srd(R0, P_WS, WS_USED); self.srd(R1, P_X, 1024)
        a(f"buffer_load_dwordx4 {v(X,4)}, {v(VA)}, {s(R1,4)}, 0 offen")
        a(f"buffer_load_dword {v(VT)}, {v(VZ)}, {s(R0,4)}, 0 offen offset:{EPOCH}")
        Lb = self.lab("s1b")
        a(f"s_cmp_lg_u32 {s(SZ)}, 0"); a(f"s_cbranch_scc1 {Lb}")
        a(f"v_lshlrev_b32 {v(T+2)}, 2, v0")
        a("s_mov_b64 exec, 0xff")
        a(f"ds_write_b32 {v(T+2)}, {v(VZ)}")
        a("s_mov_b64 exec, -1")
        a("s_waitcnt lgkmcnt(0)")
        a(f"{Lb}:")
        a("s_barrier")
        a("s_waitcnt vmcnt(1)")
        self.stamp(1)
        self.layernorm(X, XF, T)
        a(f"s_lshr_b32 {s(S_T0)}, {s(SROW)}, 1")
        a(f"v_lshrrev_b32 {v(T)}, 3, v0"); a(f"v_lshl_add_u32 {v(T)}, {v(T)}, 2, {s(S_T0)}")
        for j in range(8): a(f"ds_bpermute_b32 {v(XR+j)}, {v(T)}, {v(XF+j)}")
        a("s_waitcnt vmcnt(0)")
        a(f"v_add_u32 {v(VT)}, 1, {v(VT)}"); a(f"v_readfirstlane_b32 {s(S_E)}, {v(VT)}")
        a(f"v_and_b32 {v(VT)}, {s(S_TM)}, {v(VT)}")
        a(f"s_lshl_b32 {s(S_T0)}, {s(SZ)}, 13"); a(f"v_add_u32 {v(T)}, {s(S_T0)}, {v(VA)}")
        self.lds_wait(L_ACNT, 8, VZ, T+1)
        for j in range(8): a(f"ds_read_b128 {v(W+4*j,4)}, {v(T)} offset:{L_A+1024*j}")
        for j in range(8):
            self.lgkm(7-j)
            for k in range(4):
                self.unpack(T, T+1, W+4*j+k)
                op = "v_mul_f32" if j == 0 else "v_fmac_f32"
                a(f"{op} {v(ACC+2*k)}, {v(XR+j)}, {v(T)}"); a(f"{op} {v(ACC+2*k+1)}, {v(XR+j)}, {v(T+1)}")
        self.fold("v_permlane32_swap_b32", [(ACC+e, ACC+e+4) for e in range(4)])
        self.fold("v_permlane16_swap_b32", [(ACC+e, ACC+e+2) for e in range(2)])
        self.ror("v_add_f32", [ACC, ACC+1], (8,))
        a(f"s_lshl_b32 {s(S_T0)}, {s(SZ)}, 8")
        a(f"v_and_b32 {v(T)}, 7, v0"); a(f"v_lshl_add_u32 {v(T)}, {v(T)}, 5, {s(S_T0)}")
        a(f"v_lshrrev_b32 {v(T+1)}, 4, v0"); a(f"v_lshl_add_u32 {v(T)}, {v(T+1)}, 3, {v(T)}")
        a(f"v_mov_b32 {v(T+1)}, 1")
        a("s_mov_b32 exec_lo, 0xff00ff"); a("s_mov_b32 exec_hi, 0xff00ff")
        a(f"ds_write_b64 {v(T)}, {v(ACC,2)} offset:{L_S1}")
        a("s_mov_b64 exec, 1")
        a(f"ds_add_u32 {v(VZ)}, {v(T+1)} offset:{L_S1CNT}")
        a("s_mov_b64 exec, -1")
        self.stamp(2)

    def sw0(self):
        a = self.a
        VZ, VT, VA, T = self.VZ, self.VT, self.VA, self.T
        XF, W = 16, 40
        SZ, SCB, SRB = S_M, S_M+1, S_M+2
        a(f"v_and_b32 {v(T)}, 0xf0, {v(VA)}"); a(f"v_and_b32 {v(T+2)}, 16, v0"); a(f"v_lshl_add_u32 {v(T)}, {v(T+2)}, 5, {v(T)}")
        self.lds_wait(L_S1CNT, 4, VZ, T+1, [f"ds_read_b128 {v(W,4)}, {v(T)} offset:{L_S1}", f"ds_read_b128 {v(W+4,4)}, {v(T)} offset:{L_S1+256}"])
        a(f"v_pk_add_f32 {v(W,2)}, {v(W,2)}, {v(W+4,2)}"); a(f"v_pk_add_f32 {v(W+2,2)}, {v(W+2,2)}, {v(W+6,2)}")
        Lf, Lj = self.lab("c1ffn"), self.lab("c1join")
        a(f"s_cmp_ge_u32 {s(S_S)}, 16"); a(f"s_cbranch_scc1 {Lf}")
        for r in range(4): a(f"v_mov_b32 {v(W+4+r)}, {v(W+r)}")
        self.fold("v_permlane16_swap_b32", [(W+r, W+4+r) for r in range(4)])
        a(f"v_and_b32 {v(T)}, 0xf0, {v(VA)}")
        a(f"s_lshl_b32 {s(S_T1)}, {s(S_H)}, 12"); a(f"s_lshl_b32 {s(S_T2)}, {s(SRB)}, 11"); a(f"s_add_u32 {s(S_T1)}, {s(S_T1)}, {s(S_T2)}")
        a(f"s_lshl_b32 {s(S_T2)}, {s(SCB)}, 8"); a(f"s_add_u32 {s(S_T1)}, {s(S_T1)}, {s(S_T2)}"); a(f"s_add_u32 {s(S_T1)}, {s(S_T1)}, {QBOX:#x}")
        a("s_mov_b64 exec, 0xffff")
        a(f"s_branch {Lj}")
        a(f"{Lf}:")
        a(f"v_and_b32 {v(T)}, 8, v0"); a(f"v_lshlrev_b32 {v(T)}, 7, {v(T)}")
        a(f"v_and_b32 {v(T+1)}, 0x70, {v(VA)}"); a(f"v_lshl_add_u32 {v(T+1)}, {v(T+2)}, 3, {v(T+1)}"); a(f"v_add_u32 {v(T)}, {v(T)}, {v(T+1)}")
        a(f"s_lshl_b32 {s(S_T1)}, {s(SCB)}, 11"); a(f"s_lshl_b32 {s(S_T2)}, {s(SRB)}, 8"); a(f"s_add_u32 {s(S_T1)}, {s(S_T1)}, {s(S_T2)}")
        a(f"s_add_u32 {s(S_T1)}, {s(S_T1)}, {GBOX:#x}")
        a("s_mov_b32 exec_lo, -1"); a("s_mov_b32 exec_hi, 0")
        a(f"{Lj}:")
        self.tag(range(W, W+4), VT)
        a(f"buffer_store_dwordx4 {v(W,4)}, {v(T)}, {s(R0,4)}, {s(S_T1)} offen sc1")
        a("s_mov_b64 exec, -1")
        a(f"s_lshl_b32 {s(S_T0)}, {s(S_H)}, 12"); a(f"s_add_u32 {s(S_T0)}, {s(S_T0)}, {QBOX:#x}")
        W2 = W + 8
        self.trig(self.nq, VZ, T+1)
        self.poll([(f"buffer_load_dwordx4 {v(W2+4*k,4)}, {v(VA)}, {s(R0,4)}, {s(S_T0)} offen offset:{1024*k} sc1", W2+4*k, 4) for k in range(4)], VT, T)
        for k in range(4): a(f"v_pk_add_f32 {v(W2+2*k,2)}, {v(W2+2*k,2)}, {v(W2+8+2*k,2)}")
        for k in range(4): a(f"v_cvt_pk_bf16_f32 {v(XF+k)}, {v(W2+2*k)}, {v(W2+2*k+1)}")
        a(f"v_lshlrev_b32 {v(T)}, 3, v0"); a(f"v_mov_b32 {v(T+1)}, 1")
        a(f"ds_write_b64 {v(T)}, {v(XF,2)} offset:{L_Q}"); a(f"ds_write_b64 {v(T)}, {v(XF+2,2)} offset:{L_Q+512}")
        a("s_waitcnt lgkmcnt(0)")
        a(f"ds_write_b32 {v(VZ)}, {v(T+1)} offset:{L_QFLAG}")
        self.stamp(3)
        if self.cut == 1: return self.finish(T)
        MW, LW, M, L, MA, LA, MB, LB = XF, XF+1, XF+2, XF+3, W, W+1, W+2, W+3
        a(f"v_and_b32 {v(T)}, 28, v0"); a(f"v_lshlrev_b32 {v(T)}, 3, {v(T)}")
        a(f"v_and_b32 {v(T+2)}, 3, v0"); a(f"v_lshl_add_u32 {v(T)}, {v(T+2)}, 2, {v(T)}")
        self.lds_wait(L_MLCNT, 8, VZ, T+1, [f"ds_read2_b32 {v(MW,2)}, {v(T)} offset0:{L_ML//4} offset1:{L_ML//4+4}"])
        self.stamp(4)
        a(f"s_mov_b32 {s(S_T2)}, {LOG2E:#x}")
        a(f"v_mov_b32 {v(M)}, {v(MW)}")
        self.ror("v_max_f32", [M], (4, 8))
        a(f"v_mov_b32 {v(T)}, {v(M)}"); a(f"v_permlane16_swap_b32 {v(M)}, {v(T)}"); a(f"v_max_f32 {v(M)}, {v(M)}, {v(T)}")
        a(f"v_sub_f32 {v(L)}, {v(MW)}, {v(M)}"); a(f"v_mul_f32 {v(L)}, {s(S_T2)}, {v(L)}"); a(f"v_exp_f32 {v(L)}, {v(L)}")
        a(f"v_mul_f32 {v(L)}, {v(L)}, {v(LW)}")
        self.ror("v_add_f32", [L], (4, 8))
        a(f"v_mov_b32 {v(T)}, {v(L)}"); a(f"v_permlane16_swap_b32 {v(L)}, {v(T)}"); a(f"v_add_f32 {v(L)}, {v(L)}, {v(T)}")
        self.tag([M, L], VT)
        if self.fast:
            a(f"s_getreg_b32 {s(S_M+5)}, hwreg(HW_REG_XCC_ID, 0, 4)"); a(f"s_lshl_b32 {s(S_M+5)}, {s(S_M+5)}, 12")
            a(f"v_or_b32 {v(M)}, {s(S_M+5)}, {v(M)}")
        a(f"v_lshlrev_b32 {v(T)}, 3, v0")
        a(f"s_lshl_b32 {s(S_T0)}, {s(S_H)}, 10"); a(f"s_add_u32 {s(S_T0)}, {s(S_T0)}, {MLBOX:#x}")
        a(f"s_lshl_b32 {s(S_T1)}, {s(S_S)}, 5"); a(f"s_add_u32 {s(S_T1)}, {s(S_T1)}, {s(S_T0)}")
        a("s_mov_b64 exec, 15")
        a(f"buffer_store_dwordx2 {v(M,2)}, {v(T)}, {s(R0,4)}, {s(S_T1)} offen sc1")
        a("s_mov_b64 exec, -1")
        self.trig(self.nm, VZ, T+1)
        self.poll([(f"buffer_load_dwordx2 {v(MA,2)}, {v(T)}, {s(R0,4)}, {s(S_T0)} offen sc1", MA, 2),
                   (f"buffer_load_dwordx2 {v(MB,2)}, {v(T)}, {s(R0,4)}, {s(S_T0)} offen offset:512 sc1", MB, 2)], VT, T+1)
        if self.fast:
            a(f"v_xor_b32 {v(T+2)}, {s(S_M+5)}, {v(MA)}"); a(f"v_xor_b32 {v(T+3)}, {s(S_M+5)}, {v(MB)}")
            a(f"v_or_b32 {v(T+2)}, {v(T+2)}, {v(T+3)}"); a(f"v_and_b32 {v(T+2)}, 0xf000, {v(T+2)}")
            a(f"v_cmp_ne_u32 vcc, 0, {v(T+2)}")
            a("s_cmp_eq_u64 vcc, 0"); a(f"s_cselect_b32 {s(S_M+6)}, 2, 1")
        a(f"v_and_b32 {v(MA)}, {s(S_HI)}, {v(MA)}"); a(f"v_and_b32 {v(MB)}, {s(S_HI)}, {v(MB)}")
        a(f"v_max_f32 {v(M)}, {v(MA)}, {v(MB)}")
        self.ror("v_max_f32", [M], (4, 8)); self.rows_all("v_max_f32", M, T)
        for r in (MA, MB, MW): a(f"v_sub_f32 {v(r)}, {v(r)}, {v(M)}")
        for r in (MA, MB, MW): a(f"v_mul_f32 {v(r)}, {s(S_T2)}, {v(r)}")
        for r in (MA, MB, MW): a(f"v_exp_f32 {v(r)}, {v(r)}")
        a(f"v_mul_f32 {v(L)}, {v(MA)}, {v(LA)}"); a(f"v_fmac_f32 {v(L)}, {v(MB)}, {v(LB)}")
        self.ror("v_add_f32", [L], (4, 8)); self.rows_all("v_add_f32", L, T)
        a(f"v_rcp_f32 {v(L)}, {v(L)}"); a(f"v_mul_f32 {v(MW)}, {v(MW)}, {v(L)}")
        a(f"v_and_b32 {v(T)}, 31, v0"); a(f"v_lshlrev_b32 {v(T)}, 2, {v(T)}"); a(f"v_mov_b32 {v(T+1)}, {s(S_M+6) if self.fast else 1}")
        a(f"ds_write_b32 {v(T)}, {v(MW)} offset:{L_F}")
        a("s_waitcnt lgkmcnt(0)")
        a(f"ds_write_b32 {v(VZ)}, {v(T+1)} offset:{L_FFLAG}")
        a("s_waitcnt lgkmcnt(0)")
        self.stamp(5)
        self.finish(T)

    def fblock(self, dst, t):
        a = self.a
        a(f"s_lshl_b32 {s(dst)}, {s(S_H)}, 3"); a(f"s_lshr_b32 {s(t)}, {s(S_S)}, 2"); a(f"s_add_u32 {s(dst)}, {s(dst)}, {s(t)}")

    def sw1(self):
        a = self.a
        VZ, VT, VA, T = self.VZ, self.VT, self.VA, self.T
        XC, VO, G, W = 10, 11, 12, 16
        self.fblock(S_T0, S_T1)
        a(f"s_lshl_b32 {s(S_T0)}, {s(S_T0)}, 10"); a(f"s_add_u32 {s(S_T0)}, {s(S_T0)}, {GBOX:#x}")
        self.trig(self.g_trig, VZ, T+1)
        self.poll([(f"buffer_load_dwordx4 {v(G,4)}, {v(VA)}, {s(R0,4)}, {s(S_T0)} offen sc1", G, 4)], VT, T)
        self.fold4(G)
        self.rbf1(G, G)
        a(f"v_mov_b32_dpp {v(G+1)}, {v(G)} row_ror:8 row_mask:0xf bank_mask:0xf")
        self.silu_bf(G, G, T)
        a(f"v_mul_f32 {v(G)}, {v(G)}, {v(G+1)}"); a(f"v_cvt_pk_bf16_f32 {v(G)}, {v(G)}, {v(G)}")
        a(f"v_and_b32 {v(T)}, 7, v0"); a(f"v_lshlrev_b32 {v(T)}, 3, {v(T)}")
        a(f"v_lshrrev_b32 {v(T+1)}, 4, v0"); a(f"v_lshl_add_u32 {v(T)}, {v(T+1)}, 1, {v(T)}"); a(f"v_mov_b32 {v(T+1)}, 1")
        a("s_mov_b32 exec_lo, 0xff00ff"); a("s_mov_b32 exec_hi, 0xff00ff")
        a(f"ds_write_b16 {v(T)}, {v(G)} offset:{L_H}")
        a("s_mov_b64 exec, -1")
        a("s_waitcnt lgkmcnt(0)")
        a(f"ds_write_b32 {v(VZ)}, {v(T+1)} offset:{L_HFLAG}")
        self.stamp(3)
        Lx = self.lab("sw1end")
        a(f"s_cmp_ge_u32 {s(S_WG)}, {0 if self.cut else 32}"); a(f"s_cbranch_scc1 {Lx}")
        a(f"s_lshl_b32 {s(S_T0)}, {s(S_WG)}, 5")
        a(f"v_and_b32 {v(VO)}, 3, v0"); a(f"v_lshl_add_u32 {v(VO)}, {v(VO)}, 3, {s(S_T0)}")
        a(f"v_lshrrev_b32 {v(T)}, 4, v0"); a(f"v_lshl_add_u32 {v(VO)}, {v(T)}, 1, {v(VO)}")
        a(f"buffer_load_ushort {v(XC)}, {v(VO)}, {s(R1,4)}, 0 offen")
        a(f"s_lshl_b32 {s(S_T0)}, {s(S_WG)}, 13"); a(f"s_add_u32 {s(S_T0)}, {s(S_T0)}, {HBOX:#x}"); a(f"s_add_u32 {s(S_T1)}, {s(S_T0)}, 4096")
        loads = [(f"buffer_load_dwordx4 {v(W+4*j,4)}, {v(VA)}, {s(R0,4)}, {s(S_T0+(j>>2))} offen offset:{1024*(j&3)} sc1", W+4*j, 4) for j in range(8)]
        if self.touch:
            for ld in loads: a(ld[0])
        a("s_waitcnt vmcnt(0)")
        a(f"v_lshlrev_b32 {v(XC)}, 16, {v(XC)}")
        self.srd(R1, P_OUT, 1024)
        self.stamp(4)
        a("s_barrier")
        self.stamp(5)
        self.poll(loads, VT, T, acc=G)
        self.stamp(6)
        self.fold4(G)
        self.ror("v_add_f32", [G], (8,))
        self.rbf1(G, G)
        self.silu_bf(G+1, G, T)
        a(f"v_mul_f32_dpp {v(G)}, {v(G+1)}, {v(G)} row_ror:12 row_mask:0xf bank_mask:0xf"); self.rbf1(G, G)
        a(f"v_add_f32 {v(G)}, {v(G)}, {v(XC)}"); a(f"v_cvt_pk_bf16_f32 {v(G)}, {v(G)}, {v(G)}")
        a("s_mov_b32 exec_lo, 0xf000f"); a("s_mov_b32 exec_hi, 0xf000f")
        a(f"buffer_store_short {v(G)}, {v(VO)}, {s(R1,4)}, 0 offen {self.outpol}")
        a(f"s_cmp_lg_u32 {s(S_WG)}, 0"); a(f"s_cbranch_scc1 {Lx}")
        a("s_mov_b64 exec, 1")
        a(f"v_mov_b32 {v(T)}, {s(S_E)}")
        a(f"buffer_store_dword {v(T)}, {v(VZ)}, {s(R0,4)}, 0 offen offset:{EPOCH} sc1")
        if self.amp:
            pa, pb, k = self.amp
            a("s_waitcnt vmcnt(0)"); self.stamp(7); a("s_waitcnt lgkmcnt(0)")
            a(f"s_sub_u32 {s(S_T0)}, {s(S_ST+2*pb)}, {s(S_ST+2*pa)}"); a(f"s_mul_i32 {s(S_T0)}, {s(S_T0)}, {k}")
            a(f"s_min_u32 {s(S_T0)}, {s(S_T0)}, 100000")
            a("Lamp:")
            a(f"s_memrealtime {s(S_ST+20,2)}"); a("s_waitcnt lgkmcnt(0)")
            a(f"s_sub_u32 {s(S_T1)}, {s(S_ST+20)}, {s(S_ST+14)}"); a(f"s_cmp_lt_u32 {s(S_T1)}, {s(S_T0)}"); a("s_cbranch_scc1 Lamp")
        a(f"{Lx}:")
        if self.diag: a("s_waitcnt vmcnt(0)")
        self.stamp(7)
        self.finish(T)

    def sw23(self):
        a = self.a
        VZ, VT, VA, T = self.VZ, self.VT, self.VA, self.T
        VP, VH, VB, VB2, OUT, SUM, W, HB, AW, AD, F, DD = 10, 11, 12, 13, 16, 20, 24, 56, 72, 104, 120, 152
        SZ, SFB, SCOL, SPUB, SP0, SHB, SLW = S_M+8, S_M+9, S_M+10, S_M+11, S_M, S_M+12, S_M+13
        a(f"s_and_b32 {s(SZ)}, {s(S_WAVE)}, 1")
        self.fblock(SFB, S_T1)
        a(f"s_and_b32 {s(SCOL)}, {s(S_S)}, 3"); a(f"s_lshl_b32 {s(SCOL)}, {s(SCOL)}, 1"); a(f"s_add_u32 {s(SCOL)}, {s(SCOL)}, {s(SZ)}")
        a(f"s_mul_i32 {s(SLW)}, {s(SZ)}, 12288")
        a(f"v_lshrrev_b32 {v(T)}, 4, v0"); a(f"v_lshl_add_u32 {v(T)}, {v(T)}, 10, {s(SLW)}")
        a(f"v_bfe_u32 {v(T+2)}, v0, 2, 2"); a(f"v_lshl_add_u32 {v(T)}, {v(T+2)}, 7, {v(T)}")
        a(f"v_and_b32 {v(T+2)}, 3, v0"); a(f"v_lshl_add_u32 {v(T)}, {v(T+2)}, 3, {v(T)}")
        a(f"s_lshl_b32 {s(S_T0)}, {s(S_H)}, 16"); a(f"s_add_u32 {s(S_T0)}, {s(S_T0)}, {OBOX:#x}")
        a(f"s_lshl_b32 {s(SPUB)}, {s(S_S)}, 11"); a(f"s_add_u32 {s(SPUB)}, {s(SPUB)}, {s(S_T0)}")
        a(f"s_lshr_b32 {s(S_T1)}, {s(S_S)}, 2"); a(f"s_lshl_b32 {s(S_T1)}, {s(S_T1)}, 8"); a(f"s_add_u32 {s(SP0)}, {s(S_T0)}, {s(S_T1)}")
        for k in range(1, 8): a(f"s_add_u32 {s(SP0+k)}, {s(SP0)}, {8192*k}")
        a(f"v_lshrrev_b32 {v(VP)}, 4, v0"); a(f"v_and_b32 {v(T+2)}, 0xf0, {v(VA)}"); a(f"v_lshl_add_u32 {v(VP)}, {v(VP)}, 11, {v(T+2)}")
        a(f"s_lshl_b32 {s(SHB)}, {s(SCOL)}, 15"); a(f"s_lshl_b32 {s(S_T1)}, {s(SFB)}, 7"); a(f"s_add_u32 {s(SHB)}, {s(SHB)}, {s(S_T1)}")
        a(f"s_add_u32 {s(SHB)}, {s(SHB)}, {HBOX:#x}")
        a(f"v_and_b32 {v(VH)}, 3, v0"); a(f"v_lshlrev_b32 {v(VH)}, 13, {v(VH)}")
        a(f"v_and_b32 {v(T+2)}, 4, v0"); a(f"v_lshl_add_u32 {v(VH)}, {v(T+2)}, 4, {v(VH)}")
        a(f"v_and_b32 {v(VB)}, 48, v0"); a(f"v_add_u32 {v(VH)}, {v(VH)}, {v(VB)}")
        def tr_ad():
            for t in range(4):
                for hf in range(2):
                    a(f"ds_read_b64_tr_b16 {v(AD+4*t+2*hf,2)}, {v(T)} offset:{L_W + 8192 + 512*hf + 32*t}")
        def tr_aw(t):
            for kk in range(2):
                for hf in range(2):
                    a(f"ds_read_b64_tr_b16 {v(AW+8*t+4*kk+2*hf,2)}, {v(T)} offset:{L_W + 4096*kk + 512*hf + 32*t}")
        def ffn_tags():
            a("s_mov_b32 exec_lo, 0x100010"); a("s_mov_b32 exec_hi, 0x100010")
            for t in range(4):
                self.tag(range(DD+4*t, DD+4*t+4), VT, dst=range(OUT, OUT+4))
                if t < 3: a("s_lshl_b64 exec, exec, 1")
            a("s_mov_b64 exec, -1")
        def wprep():
            if self.wdma:
                a("s_waitcnt vmcnt(9)")
                tr_ad(); tr_aw(0)
                self.lgkm(4)
                for t in range(4): a(f"v_mfma_f32_16x16x32_bf16 {v(DD+4*t,4)}, {v(AD+4*t,4)}, {v(HB,4)}, 0")
                for t in range(1, 4): tr_aw(t)
                ffn_tags()
                self.stamp(3)
                return
            self.lds_wait(L_WCNT, 8, VZ, T+2)
            tr_ad()
            self.lds_wait(L_HFLAG, 1, VZ, T+2, [f"ds_read_b128 {v(HB,4)}, {v(VB)} offset:{L_H}"])
            for t in range(4): a(f"v_mfma_f32_16x16x32_bf16 {v(DD+4*t,4)}, {v(AD+4*t,4)}, {v(HB,4)}, 0")
            for t in range(4):
                tr_aw(t)
                if t == 1: a("s_waitcnt lgkmcnt(0)")
            ffn_tags()
            a("s_waitcnt lgkmcnt(0)")
            self.stamp(3)
        if self.wdma:
            VWA, VWD, SW0, SW1 = 14, 15, R4, R4+1
            a(f"v_lshrrev_b32 {v(T+1)}, 3, v0"); a(f"v_and_b32 {v(T+2)}, 0x70, {v(VA)}")
            a(f"v_lshl_add_u32 {v(VWD)}, {v(T+1)}, 10, {v(T+2)}"); a(f"v_lshl_add_u32 {v(VWA)}, {v(T+1)}, 13, {v(T+2)}")
            a(f"s_lshl_b32 {s(SW0)}, {s(S_H)}, 19"); a(f"s_lshr_b32 {s(S_T1)}, {s(S_S)}, 2"); a(f"s_lshl_b32 {s(S_T1)}, {s(S_T1)}, 10"); a(f"s_add_u32 {s(SW0)}, {s(SW0)}, {s(S_T1)}")
            a(f"s_lshl_b32 {s(S_T1)}, {s(SCOL)}, 7"); a(f"s_add_u32 {s(SW0)}, {s(SW0)}, {s(S_T1)}")
            a(f"s_lshl_b32 {s(SW1)}, {s(SFB)}, 15"); a(f"s_add_u32 {s(SW1)}, {s(SW1)}, {s(S_T1)}")
            a(f"s_add_u32 {s(SLW)}, {s(SLW)}, {L_W}")
            self.srd(R1, P_WO, 0x400000); self.srd(R2, P_WD, 0x1c0000)
            self.lds_wait(L_HFLAG, 1, VZ, T+2, [f"ds_read_b128 {v(HB,4)}, {v(VB)} offset:{L_H}"])
        def wload():
            self.lds_wait(L_WCNT, 8, VZ, T+2, sleep=0)
            for j in list(range(8, 12)) + list(range(8)):
                a(f"s_add_u32 m0, {s(SLW)}, {1024*j}")
                if j < 8:
                    a(f"buffer_load_dwordx4 {v(VWA)}, {s(R1,4)}, {s(SW0)} offen {self.wpol} lds")
                    a(f"s_add_u32 {s(SW0)}, {s(SW0)}, 0x10000")
                else:
                    a(f"buffer_load_dwordx4 {v(VWD)}, {s(R2,4)}, {s(SW1)} offen {self.wpol} lds")
                    a(f"s_add_u32 {s(SW1)}, {s(SW1)}, 8192")
        late = self.wpos > 56 or self.wdma
        if not late: wprep()
        if self.cut: return self.finish(T)
        loads = [(f"buffer_load_dwordx4 {v(W+4*k,4)}, {v(VP)}, {s(R0,4)}, {s(SP0+k)} offen sc1", W+4*k, 4) for k in range(8)]
        if self.touch and True:
            for ld in loads: a(ld[0])
        self.lds_wait(L_FFLAG, 1, VZ, T+2, [f"ds_read_b128 {v(F+4*w,4)}, {v(VZ)} offset:{L_F+16*w}" for w in range(8)])
        a(f"s_mov_b32 {s(S_M+14)}, {s(S_T3)}")
        a(f"s_lshl_b32 {s(S_T0)}, {s(SZ)}, 10"); a(f"v_add_u32 {v(VA)}, {s(S_T0)}, {v(VA)}")
        a(f"s_lshl_b32 {s(S_T0)}, {s(SZ)}, 7"); a(f"v_add_u32 {v(VB2)}, {s(S_T0)}, {v(VB)}"); a(f"v_lshl_add_u32 {v(T+1)}, v0, 1, {s(S_T0)}")
        if self.touch: a("s_waitcnt vmcnt(0)")
        if self.wdma: wload()
        self.stamp(4)
        a("s_barrier")
        self.stamp(5)
        for w in range(8): a(f"ds_read_b128 {v(W+4*w,4)}, {v(VA)} offset:{L_O+2048*w}")
        for w in range(8):
            self.lgkm(7-w)
            for p in (0, 2):
                if w == 0: a(f"v_pk_mul_f32 {v(SUM+p,2)}, {v(W+p,2)}, {v(F+p,2)}")
                else: a(f"v_pk_fma_f32 {v(SUM+p,2)}, {v(W+4*w+p,2)}, {v(F+4*w+p,2)}, {v(SUM+p,2)}")
        if self.fast: a(f"s_cmp_eq_u32 {s(S_M+14)}, 2")
        self.tag(range(SUM, SUM+4), VT, dst=range(F, F+4))
        if self.fast:
            La, Lb = self.lab("h1l"), self.lab("h1j")
            a(f"s_cbranch_scc1 {La}")
            a(f"buffer_store_dwordx4 {v(F,4)}, {v(VA)}, {s(R0,4)}, {s(SPUB)} offen sc1")
            a(f"s_branch {Lb}")
            a(f"{La}:")
            a(f"buffer_store_dwordx4 {v(F,4)}, {v(VA)}, {s(R0,4)}, {s(SPUB)} offen")
            a(f"{Lb}:")
        else: a(f"buffer_store_dwordx4 {v(F,4)}, {v(VA)}, {s(R0,4)}, {s(SPUB)} offen sc1")
        self.stamp(6)
        pre = late and (self.prepoll or self.wdma)
        if late and not pre: wprep()
        self.poll(loads, VT, T+3, acc=SUM, between=(wprep if pre else None))
        self.stamp(7)
        self.fold4(SUM)
        a(f"v_cvt_pk_bf16_f32 {v(SUM)}, {v(SUM)}, {v(SUM)}")
        a(f"ds_write_b16 {v(T+1)}, {v(SUM)} offset:{L_OB}")
        a(f"ds_read_b128 {v(W,4)}, {v(VB2)} offset:{L_OB}"); a(f"ds_read_b128 {v(W+4,4)}, {v(VB2)} offset:{L_OB+64}")
        self.lgkm(1)
        for t in range(4): a(f"v_mfma_f32_16x16x32_bf16 {v(DD+4*t,4)}, {v(AW+8*t,4)}, {v(W,4)}, 0")
        self.lgkm(0)
        for t in range(4): a(f"v_mfma_f32_16x16x32_bf16 {v(DD+4*t,4)}, {v(AW+8*t+4,4)}, {v(W+4,4)}, {v(DD+4*t,4)}")
        a("s_mov_b32 exec_lo, 0x10001"); a("s_mov_b32 exec_hi, 0x10001")
        for t in range(4):
            self.tag(range(DD+4*t, DD+4*t+4), VT, dst=range(OUT, OUT+4))
            if t < 3: a("s_lshl_b64 exec, exec, 1")
        a("s_mov_b32 exec_lo, 0xff00ff"); a("s_mov_b32 exec_hi, 0xff00ff")
        a(f"buffer_store_dwordx4 {v(OUT,4)}, {v(VH)}, {s(R0,4)}, {s(SHB)} offen sc1")
        self.stamp(8)
        if self.fast and self.clean:
            a("s_mov_b64 exec, -1")
            a(f"buffer_store_dwordx4 {v(F,4)}, {v(VA)}, {s(R0,4)}, {s(SPUB)} offen sc1")
        if self.diag: a("s_waitcnt vmcnt(0)")
        self.stamp(9)
        self.finish(T)

    def build(self):
        a = self.a
        hdr = open("recurrent_scan__gqa_block_cached__swiglu_ffn__decode.s.ref").read().split("; @launch")[0]
        a(f'.amdgcn_target "amdgcn-amd-amdhsa--gfx950"')
        a(".text"); a(f".globl {KN}"); a(".p2align 8"); a(f".type {KN},@function"); a(f"{KN}:")
        a(f"s_load_dwordx16 {s(4,16)}, s[0:1], 0"); a(f"s_load_dwordx8 {s(20,8)}, s[0:1], 64")
        a("s_cmp_ge_u32 s2, 256"); a("s_cbranch_scc1 Lend")
        if self.diag:
            for k in range(1, 12): a(f"s_mov_b32 {s(S_ST+2*k)}, 0")
        self.stamp(0)
        a("v_lshrrev_b32 v1, 6, v0"); a("v_and_b32 v0, 63, v0"); a(f"v_readfirstlane_b32 {s(S_WAVE)}, v1")
        a(f"s_and_b32 {s(S_H)}, s2, 7"); a(f"s_lshr_b32 {s(S_S)}, s2, 3")
        a(f"s_cmp_ge_u32 {s(S_WAVE)}, 8"); a("s_cbranch_scc1 Lservice")
        self.streamer()
        a("Lservice:")
        if self.prio: a("s_setprio 3")
        a(f"s_mov_b32 {s(S_HI)}, 0xffff0000"); a(f"s_mov_b32 {s(S_TM)}, 0xfff")
        self.stage1()
        a(f"s_cmp_eq_u32 {s(S_WAVE)}, 9"); a("s_cbranch_scc1 Lsw1")
        a(f"s_cmp_gt_u32 {s(S_WAVE)}, 9"); a("s_cbranch_scc1 Lsw23")
        self.sw0()
        a("Lsw23:"); self.sw23()
        a("Lsw1:"); self.sw1()
        a("Lend:"); a("s_endpgm")
        a("Lcode_end:")
        a(".fill 64, 4, 0xbf800000")
        a('.section .rodata,"a"'); a(".p2align 6"); a(f".amdhsa_kernel {KN}")
        for d in ("next_free_vgpr 168", "next_free_sgpr 102", "accum_offset 168", "group_segment_fixed_size 0", "kernarg_size 96",
                  "user_sgpr_count 2", "user_sgpr_kernarg_segment_ptr 1", "system_sgpr_workgroup_id_x 1", "float_denorm_mode_32 3"):
            a(f".amdhsa_{d}")
        a(".end_amdhsa_kernel")
        return hdr + f"; @launch grid=(256,1,1) block=(768,1,1) lds={LDS_BYTES}\n" + a.finalize()

def gen(**kw): return G(**kw).build()
if __name__ == "__main__":
    kw = eval("dict(" + (sys.argv[2] if len(sys.argv) > 2 else "") + ")")
    open(sys.argv[1], "w").write(gen(**kw))
```

```python
import sys
from asmlib import Asm
KN = "recurrent_scan__gqa_block_cached__swiglu_ffn__decode_kernel"

EPOCH = 0
QBOX, MLBOX, GBOX, OBOX, HBOX = 0x1000, 0x9000, 0x10000, 0x20000, 0xA0000
WS_USED = 0xE0000
STAMP = 128 << 20
L_QFLAG, L_MLCNT, L_FFLAG, L_S1CNT, L_PROG, L_HFLAG, L_ACNT, L_WCNT = 0, 4, 8, 12, 16, 20, 24, 28
L_ML, L_F, L_H, L_Q, L_S1, L_OB, L_O, L_W = 64, 320, 448, 512, 1536, 2560, 2816, 19200
L_A = L_O
LDS_BYTES = L_W + 2*12288
SPIN = 1 << 16

LOG2E = 0x3fb8aa3b
SCALE = 0x3db504f3
EPS = 0x3727c5ac

def v(i, n=1): return f"v{i}" if n == 1 else f"v[{i}:{i+n-1}]"
def s(i, n=1): return f"s{i}" if n == 1 else f"s[{i}:{i+n-1}]"

S_WG, S_WAVE = 2, 3
P_X, P_K, P_V, P_WQ, P_WO, P_BX, P_WG, P_WU, P_WD, P_OUT, P_DBG, P_WS = range(4, 28, 2)
R0, R1, R2, R3, R4 = 28, 32, 36, 40, 44
S_H, S_S = 48, 49
S_T0, S_T1, S_T2, S_T3 = 50, 51, 52, 53
S_HI, S_TM, S_LO, S_HIS = 54, 55, 56, 57
S_CNT, S_E = 58, 59
S_M = 60
S_ST = 76

class G:
    def __init__(self, D=3, D2=4, nD2=58, n0=28, il=12, kvpol="nt", wpol="nt", diag=0, pf=1, nq=20, nm=56, g_trig=44,
                 outpol="sc1", prio=1, touch=0, cut=0, amp=None, trace=0, ramp=None, wpos=64, apos=1, smooth=1, wlate=0, prepoll=0, fast=1, clean=0, wdma=1, rot=1, agap=2, light=0, ldspad=0):
        self.__dict__.update(locals()); del self.__dict__['self']
        self.a = Asm(); self.nlab = 0
    def lab(self, p):
        self.nlab += 1; return f"L{p}{self.nlab}"
    def srd(self, r, ptr, size):
        a = self.a
        a(f"s_mov_b32 {s(r)}, {s(ptr)}"); a(f"s_mov_b32 {s(r+1)}, {s(ptr+1)}")
        a(f"s_mov_b32 {s(r+2)}, {size:#x}"); a(f"s_mov_b32 {s(r+3)}, 0x20000")
    def stamp(self, k):
        if self.diag or self.amp: self.a(f"s_memrealtime {s(S_ST+2*k,2)}")
    def lgkm(self, n):
        self.a(f"s_waitcnt lgkmcnt({0 if (self.diag or self.amp) else n})")
    def finish(self, vt):
        a = self.a
        if self.diag:
            a("s_waitcnt lgkmcnt(0)")
            a(f"s_mul_i32 {s(S_T0)}, {s(S_WG)}, 12"); a(f"s_add_u32 {s(S_T0)}, {s(S_T0)}, {s(S_WAVE)}")
            a(f"s_lshl_b32 {s(S_T0)}, {s(S_T0)}, 6"); a(f"s_add_u32 {s(S_T0)}, {s(S_T0)}, {STAMP:#x}")
            a("s_mov_b64 exec, 1")
            a(f"v_mov_b32 {v(vt)}, {s(S_T0)}")
            for k in range(12):
                a(f"v_mov_b32 {v(vt+1)}, {s(S_ST+2*k)}")
                a(f"global_store_dword {v(vt)}, {v(vt+1)}, {s(P_WS,2)} offset:{4*k}")
            a("s_waitcnt vmcnt(0)")
        a("s_endpgm")
    def unpack(self, lo, hi, src):
        self.a(f"v_lshlrev_b32 {v(lo)}, 16, {v(src)}"); self.a(f"v_and_b32 {v(hi)}, {s(S_HI)}, {v(src)}")
    def rbf1(self, dst, src):
        self.a(f"v_cvt_pk_bf16_f32 {v(dst)}, {v(src)}, {v(src)}"); self.a(f"v_and_b32 {v(dst)}, {s(S_HI)}, {v(dst)}")
    def rbf2(self, d0, d1, s0, s1, t):
        self.a(f"v_cvt_pk_bf16_f32 {v(t)}, {v(s0)}, {v(s1)}"); self.unpack(d0, d1, t)
    def ror(self, op, regs, steps):
        for n in steps:
            for r in regs: self.a(f"{op}_dpp {v(r)}, {v(r)}, {v(r)} row_ror:{n} row_mask:0xf bank_mask:0xf")
    def rows_all(self, op, x, t):
        a = self.a
        for sw in ("v_permlane16_swap_b32", "v_permlane32_swap_b32"):
            a(f"v_mov_b32 {v(t)}, {v(x)}"); a(f"{sw} {v(x)}, {v(t)}"); a(f"{op} {v(x)}, {v(x)}, {v(t)}")
    def fold(self, sw, pairs):
        for x, y in pairs: self.a(f"{sw} {v(x)}, {v(y)}")
        for x, y in pairs: self.a(f"v_add_f32 {v(x)}, {v(x)}, {v(y)}")
    def fold4(self, x):
        self.fold("v_permlane32_swap_b32", [(x, x+2), (x+1, x+3)])
        self.fold("v_permlane16_swap_b32", [(x, x+1)])
    def silu_bf(self, dst, x, t):
        a = self.a
        a(f"v_mul_f32 {v(t)}, {0x80000000 ^ LOG2E:#x}, {v(x)}"); a(f"v_exp_f32 {v(t)}, {v(t)}")
        a(f"v_add_f32 {v(t)}, 1.0, {v(t)}"); a(f"v_rcp_f32 {v(t)}, {v(t)}"); a(f"v_mul_f32 {v(t)}, {v(x)}, {v(t)}")
        self.rbf1(dst, t)
    def layernorm(self, X, XF, T):
        a = self.a
        for k in range(4): self.unpack(XF+2*k, XF+2*k+1, X+k)
        a(f"v_add_f32 {v(T)}, {v(XF)}, {v(XF+1)}")
        for k in range(2, 8): a(f"v_add_f32 {v(T)}, {v(T)}, {v(XF+k)}")
        self.ror("v_add_f32", [T], (8, 4, 2, 1)); self.rows_all("v_add_f32", T, T+1)
        a(f"v_mul_f32 {v(T)}, 0x3b000000, {v(T)}")
        a(f"v_sub_f32 {v(T+2)}, {v(XF)}, {v(T)}"); a(f"v_mul_f32 {v(T+3)}, {v(T+2)}, {v(T+2)}")
        for k in range(1, 8):
            a(f"v_sub_f32 {v(T+2)}, {v(XF+k)}, {v(T)}"); a(f"v_fmac_f32 {v(T+3)}, {v(T+2)}, {v(T+2)}")
        self.ror("v_add_f32", [T+3], (8, 4, 2, 1)); self.rows_all("v_add_f32", T+3, T+1)
        a(f"v_mul_f32 {v(T+3)}, 0x3b000000, {v(T+3)}")
        self.rbf2(T, T+3, T, T+3, T+1)
        a(f"v_add_f32 {v(T+3)}, {EPS:#x}, {v(T+3)}"); self.rbf1(T+3, T+3)
        a(f"v_sqrt_f32 {v(T+3)}, {v(T+3)}"); self.rbf1(T+3, T+3)
        a(f"v_rcp_f32 {v(T+2)}, {v(T+3)}")
        for k in range(8): a(f"v_sub_f32 {v(XF+k)}, {v(XF+k)}, {v(T)}")
        for k in range(4): self.rbf2(XF+2*k, XF+2*k+1, XF+2*k, XF+2*k+1, T+1)
        for k in range(8):
            a(f"v_mul_f32 {v(T+4)}, {v(XF+k)}, {v(T+2)}")
            a(f"v_fma_f32 {v(T+5)}, -{v(T+4)}, {v(T+3)}, {v(XF+k)}")
            a(f"v_fma_f32 {v(XF+k)}, {v(T+5)}, {v(T+2)}, {v(T+4)}")
        for k in range(4): self.rbf2(XF+2*k, XF+2*k+1, XF+2*k, XF+2*k+1, T+1)
    def tag(self, regs, vT, dst=None):
        for i, r in enumerate(regs):
            d = r if dst is None else dst[i]
            self.a(f"v_bfi_b32 {v(d)}, {s(S_TM)}, {v(vT)}, {v(r)}")
    def poll(self, loads, vT, t, acc=None, between=None):
        a = self.a; L = self.lab("poll"); Lo = self.lab("pollx")
        if between:
            Lc = self.lab("pollc")
            for ld in loads: a(ld[0])
            between()
            a(f"s_mov_b32 {s(S_CNT)}, {SPIN}")
            a(f"s_branch {Lc}")
        else: a(f"s_mov_b32 {s(S_CNT)}, {SPIN}")
        a(f"{L}:")
        for ld in loads: a(ld[0])
        if between: a(f"{Lc}:")
        first = True
        for j, (_, r0, n) in enumerate(loads):
            a(f"s_waitcnt vmcnt({len(loads)-1-j})")
            for w in range(r0, r0+n):
                if first: a(f"v_xor_b32 {v(t)}, {v(w)}, {v(vT)}"); first = False
                else: a(f"v_bitop3_b32 {v(t)}, {v(w)}, {v(vT)}, {v(t)} bitop3:0xbe")
            if j == len(loads) - 1:
                a(f"v_and_b32 {v(t)}, {s(S_TM)}, {v(t)}")
                a(f"v_cmp_ne_u32 vcc, 0, {v(t)}")
            if acc is not None and j >= 1:
                p = loads[0][1] if j == 1 else acc
                a(f"v_pk_add_f32 {v(acc,2)}, {v(p,2)}, {v(r0,2)}"); a(f"v_pk_add_f32 {v(acc+2,2)}, {v(p+2,2)}, {v(r0+2,2)}")
        a(f"s_sub_u32 {s(S_CNT)}, {s(S_CNT)}, 1")
        a(f"s_cbranch_scc1 {Lo}")
        a("s_mov_b64 exec, vcc")
        a(f"s_cbranch_execnz {L}")
        a(f"{Lo}:")
        a("s_mov_b64 exec, -1")
    def gather8(self, loads, vT, t, acc, vaddr, soff, lg, between=None):
        a = self.a; L = self.lab("lp"); Lo = self.lab("lpx")
        P, R, J, B, A = t+1, t+2, t+3, t+4, t+5
        for ld in loads: a(ld[0])
        if between: between()
        first = True
        for j, (_, r0, n) in enumerate(loads):
            a(f"s_waitcnt vmcnt({len(loads)-1-j})")
            for w in range(r0, r0+n):
                if first: a(f"v_xor_b32 {v(t)}, {v(w)}, {v(vT)}"); first = False
                else: a(f"v_bitop3_b32 {v(t)}, {v(w)}, {v(vT)}, {v(t)} bitop3:0xbe")
            if j == len(loads) - 1:
                a(f"v_and_b32 {v(t)}, {s(S_TM)}, {v(t)}")
                a(f"v_cmp_ne_u32 vcc, 0, {v(t)}")
            if j >= 1:
                p = loads[0][1] if j == 1 else acc
                a(f"v_pk_add_f32 {v(acc,2)}, {v(p,2)}, {v(r0,2)}"); a(f"v_pk_add_f32 {v(acc+2,2)}, {v(p+2,2)}, {v(r0+2,2)}")
        a(f"s_cbranch_vccz {Lo}")
        for r in range(acc, acc+4): a(f"v_mov_b32 {v(r)}, 0")
        a(f"v_mov_b32 {v(P)}, 0")
        def check(q):
            a(f"v_xor_b32 {v(t)}, {v(q)}, {v(vT)}")
            for w in range(q+1, q+4): a(f"v_bitop3_b32 {v(t)}, {v(w)}, {v(vT)}, {v(t)} bitop3:0xbe")
            a(f"v_and_b32 {v(t)}, {s(S_TM)}, {v(t)}")
            a(f"v_cmp_eq_u32 vcc, 0, {v(t)}")
        for j, (_, r0, n) in enumerate(loads):
            check(r0)
            a("s_mov_b64 exec, vcc")
            a(f"v_pk_add_f32 {v(acc,2)}, {v(acc,2)}, {v(r0,2)}"); a(f"v_pk_add_f32 {v(acc+2,2)}, {v(acc+2,2)}, {v(r0+2,2)}")
            a("s_not_b64 exec, vcc")
            a(f"v_or_b32 {v(P)}, {1 << j}, {v(P)}")
            a("s_mov_b64 exec, -1")
        Q = loads[0][1]
        a(f"v_mov_b32 {v(R)}, {v(P)}")
        a(f"v_cmp_ne_u32 vcc, 0, {v(P)}")
        a(f"s_mov_b32 {s(S_CNT)}, {SPIN*4}")
        a("s_mov_b64 exec, vcc")
        a(f"{L}:")
        a(f"v_ffbl_b32 {v(J)}, {v(R)}")
        a(f"v_lshl_add_u32 {v(A)}, {v(J)}, {lg}, {v(vaddr)}")
        a(f"buffer_load_dwordx4 {v(Q,4)}, {v(A)}, {s(R0,4)}, {s(soff)} offen sc1")
        a(f"v_lshlrev_b32 {v(B)}, {v(J)}, 1")
        a(f"v_xor_b32 {v(R)}, {v(R)}, {v(B)}")
        a(f"s_sub_u32 {s(S_CNT)}, {s(S_CNT)}, 1")
        a(f"s_cbranch_scc1 {Lo}")
        a("s_waitcnt vmcnt(0)")
        check(Q)
        a(f"s_and_saveexec_b64 {s(S_T2,2)}, vcc")
        a(f"v_xor_b32 {v(P)}, {v(P)}, {v(B)}")
        a(f"v_pk_add_f32 {v(acc,2)}, {v(acc,2)}, {v(Q,2)}"); a(f"v_pk_add_f32 {v(acc+2,2)}, {v(acc+2,2)}, {v(Q+2,2)}")
        a(f"s_mov_b64 exec, {s(S_T2,2)}")
        a(f"v_cmp_eq_u32 {s(S_T2,2)}, 0, {v(R)}")
        a(f"v_cmp_ne_u32 vcc, 0, {v(P)}")
        a(f"v_cndmask_b32 {v(R)}, {v(R)}, {v(P)}, {s(S_T2,2)}")
        a("s_mov_b64 exec, vcc")
        a(f"s_cbranch_execnz {L}")
        a(f"{Lo}:")
        a("s_mov_b64 exec, -1")
    def lds_wait(self, off, val, vz, t, extra=(), sleep=1):
        a = self.a; L = self.lab("lw"); Lo = self.lab("lwx")
        a(f"s_mov_b32 {s(S_CNT)}, {SPIN*16}")
        a(f"{L}:")
        a(f"ds_read_b32 {v(t)}, {v(vz)} offset:{off}")
        for e in extra: a(e)
        a("s_waitcnt lgkmcnt(0)")
        a(f"v_readfirstlane_b32 {s(S_T3)}, {v(t)}")
        a(f"s_cmp_ge_u32 {s(S_T3)}, {val}")
        a(f"s_cbranch_scc1 {Lo}")
        a(f"s_sub_u32 {s(S_CNT)}, {s(S_CNT)}, 1")
        a(f"s_cbranch_scc1 {Lo}")
        if sleep: a(f"s_sleep {sleep}")
        a(f"s_branch {L}")
        a(f"{Lo}:")
    def trig(self, what, vz, t):
        if what == "q": self.lds_wait(L_QFLAG, 1, vz, t)
        elif what == "ml": self.lds_wait(L_MLCNT, 8, vz, t)
        elif isinstance(what, int) and what > 0: self.lds_wait(L_PROG, what, vz, t)
    def streamer(self):
        a = self.a
        VK, VV, VZ, VT, VT2 = 1, 2, 3, 4, 5
        Q, S, DT, KB = 8, 12, 20, 36
        slot = lambda i: KB + 4*i
        ACC, AO, B = slot(16), slot(18), slot(23)
        SB = S_T0
        a(f"s_lshl_b32 {s(SB)}, {s(S_H)}, 23"); a(f"s_lshl_b32 {s(S_T1)}, {s(S_S)}, 18"); a(f"s_or_b32 {s(SB)}, {s(SB)}, {s(S_T1)}")
        a(f"s_lshl_b32 {s(S_T1)}, {s(S_WAVE)}, {self.il}"); a(f"s_or_b32 {s(SB)}, {s(SB)}, {s(S_T1)}")
        if self.rot == 1: a(f"s_lshl_b32 {s(S_M+9)}, {s(S_S)}, 15")
        if self.rot == 2: a(f"s_add_u32 {s(S_M+9)}, {s(S_S)}, {s(S_H)}"); a(f"s_lshl_b32 {s(S_M+9)}, {s(S_M+9)}, 15")
        a(f"v_lshlrev_b32 {v(VV)}, 4, v0")
        a(f"v_and_b32 {v(VT)}, 0xc0, {v(VV)}"); a(f"v_lshlrev_b32 {v(VT)}, 2, {v(VT)}")
        a(f"v_lshrrev_b32 {v(VK)}, 4, v0"); a(f"v_lshlrev_b32 {v(VK)}, 6, {v(VK)}")
        a(f"v_and_b32 {v(VT2)}, 48, {v(VV)}")
        a(f"v_or3_b32 {v(VK)}, {v(VK)}, {v(VT)}, {v(VT2)}")
        a(f"v_mov_b32 {v(VZ)}, 0")
        a("s_waitcnt lgkmcnt(0)")
        self.srd(R0, P_K, 0x4000000); self.srd(R1, P_V, 0x4000000)
        def off(i):
            if self.il == 12: return (i >> 2) * 32768, (i & 3) * 1024
            return i * 8192, 0
        last_so = [None]
        VWA, VWD = 6, 7
        SA, SW0, SW1, SSTR = S_M+5, S_M+6, S_M+7, S_M+4
        def regs(it):
            k, i = it
            return {'K': slot(i), 'V': slot(i % 16), 'A': slot(28 + i), 'W': (DT + 4*i if self.wpos > 40 else slot(28 + i))}[k]
        def setup_a():
            a(f"s_lshr_b32 {s(S_M)}, {s(S_WAVE)}, 1")
            self.s1_geom(True)
            a(f"s_and_b32 {s(S_T3)}, {s(S_WAVE)}, 1"); a(f"s_lshl_b32 {s(S_T3)}, {s(S_T3)}, 2"); a(f"s_add_u32 {s(S_T3)}, {s(S_T3)}, {s(S_M+3)}")
            a(f"s_mul_i32 {s(S_T3)}, {s(S_T3)}, {s(SSTR)}"); a(f"s_lshl_b32 {s(SA)}, {s(S_T2)}, 7"); a(f"s_add_u32 {s(SA)}, {s(SA)}, {s(S_T3)}")
            a(f"v_and_b32 {v(VT)}, 56, v0"); a(f"v_mul_u32_u24 {v(VT)}, {s(SSTR)}, {v(VT)}")
            a(f"v_and_b32 {v(VT2)}, 0x70, {v(VV)}"); a(f"v_add_u32 {v(VWA)}, {v(VT)}, {v(VT2)}")
        def setup_w():
            a(f"s_and_b32 {s(S_T2)}, {s(S_S)}, 3"); a(f"s_lshl_b32 {s(S_T2)}, {s(S_T2)}, 1"); a(f"s_lshr_b32 {s(S_T3)}, {s(S_WAVE)}, 2")
            a(f"s_add_u32 {s(S_T2)}, {s(S_T2)}, {s(S_T3)}"); a(f"s_lshl_b32 {s(S_T2)}, {s(S_T2)}, 7")
            a(f"s_lshl_b32 {s(SW0)}, {s(S_H)}, 19"); a(f"s_lshr_b32 {s(S_T3)}, {s(S_S)}, 2"); a(f"s_lshl_b32 {s(S_T3)}, {s(S_T3)}, 10")
            a(f"s_add_u32 {s(SW0)}, {s(SW0)}, {s(S_T3)}"); a(f"s_add_u32 {s(SW0)}, {s(SW0)}, {s(S_T2)}")
            self.fblock(SW1, S_T3)
            a(f"s_lshl_b32 {s(SW1)}, {s(SW1)}, 15"); a(f"s_add_u32 {s(SW1)}, {s(SW1)}, {s(S_T2)}")
            a(f"s_and_b32 {s(S_T2)}, {s(S_WAVE)}, 3")
            a(f"s_lshl_b32 {s(S_T3)}, {s(S_T2)}, 16"); a(f"s_add_u32 {s(SW0)}, {s(SW0)}, {s(S_T3)}")
            a(f"s_lshl_b32 {s(S_T3)}, {s(S_T2)}, 13"); a(f"s_add_u32 {s(SW1)}, {s(SW1)}, {s(S_T3)}")
            self.srd(R2, P_WO, 0x400000); self.srd(R3, P_WD, 0x1c0000)
            a(f"v_lshrrev_b32 {v(VT)}, 3, v0"); a(f"v_and_b32 {v(VT2)}, 0x70, {v(VV)}")
            a(f"v_lshl_add_u32 {v(VWD)}, {v(VT)}, 10, {v(VT2)}"); a(f"v_lshl_add_u32 {v(VWA)}, {v(VT)}, 13, {v(VT2)}")
        def load(it):
            k, i = it
            r = v(regs(it), 4)
            if k in 'KV':
                so, imm = off(i)
                if so != last_so[0]:
                    if self.rot:
                        a(f"s_add_u32 {s(S_T1)}, {s(S_M+9)}, {so}"); a(f"s_and_b32 {s(S_T1)}, {s(S_T1)}, 0x38000"); a(f"s_or_b32 {s(S_T1)}, {s(S_T1)}, {s(SB)}")
                    else: a(f"s_add_u32 {s(S_T1)}, {s(SB)}, {so}")
                    last_so[0] = so
                a(f"buffer_load_dwordx4 {r}, {v(VV if k == 'V' else VK)}, {s(R1 if k == 'V' else R0,4)}, {s(S_T1)} offen offset:{imm} {self.kvpol}")
            elif k == 'A':
                if i == 0: setup_a()
                a(f"buffer_load_dwordx4 {r}, {v(VWA)}, {s(R2,4)}, {s(SA)} offen {self.wpol}")
                if i < 3: a(f"s_add_u32 {s(SA)}, {s(SA)}, {s(SSTR)}")
            else:
                if i < 2: a(f"buffer_load_dwordx4 {r}, {v(VWA)}, {s(R2,4)}, {s(SW0)} offen {self.wpol}")
                else: a(f"buffer_load_dwordx4 {r}, {v(VWD)}, {s(R3,4)}, {s(SW1)} offen {self.wpol}")
                if i == 0: a(f"s_add_u32 {s(SW0)}, {s(SW0)}, 0x40000")
        def count(off_):
            a(f"v_mov_b32 {v(VT2)}, 1"); a("s_mov_b64 exec, 1"); a(f"ds_add_u32 {v(VZ)}, {v(VT2)} offset:{off_}"); a("s_mov_b64 exec, -1")
        def put_a():
            a(f"s_lshl_b32 {s(S_T2)}, {s(S_WAVE)}, 12"); a(f"v_add_u32 {v(VT)}, {s(S_T2)}, {v(VV)}")
            for i in range(4): a(f"ds_write_b128 {v(VT)}, {v(regs(('A', i)),4)} offset:{L_A + 1024*i}")
            count(L_ACNT)
            if not self.wdma: setup_w()
        def put_w():
            a(f"s_lshr_b32 {s(S_T2)}, {s(S_WAVE)}, 2"); a(f"s_mul_i32 {s(S_T2)}, {s(S_T2)}, 12288")
            a(f"s_and_b32 {s(S_T3)}, {s(S_WAVE)}, 3"); a(f"s_lshl_b32 {s(S_T3)}, {s(S_T3)}, 10"); a(f"s_add_u32 {s(S_T2)}, {s(S_T2)}, {s(S_T3)}")
            a(f"v_add_u32 {v(VT)}, {s(S_T2)}, {v(VV)}")
            for i in range(3): a(f"ds_write_b128 {v(VT)}, {v(regs(('W', i)),4)} offset:{L_W + 4096*i}")
            count(L_WCNT)
        def qk(j):
            for m in range(4):
                a(f"v_mfma_f32_16x16x32_bf16 {v(DT+4*m,4)}, {v(slot(4*j+m),4)}, {v(Q,4)}, 0")
            for k in range(1, 4):
                for m in range(4):
                    b = (m + k) & 3
                    other = DT+4*m+m if k == 1 else S+j
                    a(f"v_add_f32_dpp {v(S+j)}, {v(DT+4*m+b)}, {v(other)} row_ror:{(4*(m-b)) & 15} row_mask:0xf bank_mask:{1<<m:#x}")
        M, Lr = DT, DT+1
        def sm_scale(k):
            if k == 0: a(f"s_mov_b32 {s(S_M+8)}, {SCALE:#x}")
            x, y = S+2*k, S+2*k+1
            self.rbf2(x, y, x, y, VT)
            a(f"v_mul_f32 {v(x)}, {s(S_M+8)}, {v(x)}"); a(f"v_mul_f32 {v(y)}, {s(S_M+8)}, {v(y)}")
            self.rbf2(x, y, x, y, VT)
        def sm_max():
            a(f"v_max3_f32 {v(M)}, {v(S)}, {v(S+1)}, {v(S+2)}"); a(f"v_max3_f32 {v(M)}, {v(M)}, {v(S+3)}, {v(S+4)}")
            a(f"v_max3_f32 {v(M)}, {v(M)}, {v(S+5)}, {v(S+6)}"); a(f"v_max_f32 {v(M)}, {v(M)}, {v(S+7)}")
            self.ror("v_max_f32", [M], (4, 8)); self.rows_all("v_max_f32", M, VT)
        def sm_exp():
            a(f"s_mov_b32 {s(S_T2)}, {LOG2E:#x}")
            for k in range(8): a(f"v_sub_f32 {v(S+k)}, {v(S+k)}, {v(M)}")
            for k in range(8): a(f"v_mul_f32 {v(S+k)}, {s(S_T2)}, {v(S+k)}")
            for k in range(8): a(f"v_exp_f32 {v(S+k)}, {v(S+k)}")
        def sm_sum():
            a(f"v_add_f32 {v(Lr)}, {v(S)}, {v(S+1)}")
            for k in range(2, 8): a(f"v_add_f32 {v(Lr)}, {v(Lr)}, {v(S+k)}")
            self.ror("v_add_f32", [Lr], (4, 8)); self.rows_all("v_add_f32", Lr, VT)
            a(f"s_lshl_b32 {s(S_T2)}, {s(S_WAVE)}, 5")
            a(f"v_lshl_add_u32 {v(VT)}, v0, 2, {s(S_T2)}"); a(f"v_mov_b32 {v(VT2)}, 1")
            a("s_mov_b64 exec, 15")
            a(f"ds_write2_b32 {v(VT)}, {v(M)}, {v(Lr)} offset0:{L_ML//4} offset1:{L_ML//4+4}")
            a("s_mov_b64 exec, 1")
            a(f"ds_add_u32 {v(VZ)}, {v(VT2)} offset:{L_MLCNT}")
            a("s_mov_b64 exec, -1")
        def zero_acc():
            for r in range(ACC, ACC+8): a(f"v_mov_b32 {v(r)}, 0")
            for r in range(AO, AO+16): a(f"v_mov_b32 {v(r)}, 0")
        def build_a(j):
            a(f"v_cvt_pk_bf16_f32 {v(VT)}, {v(S+2*j)}, {v(S+2*j+1)}")
            for m in range(4):
                for e in range(4):
                    n = (4*(e-m)) & 15
                    ctl = f"row_ror:{n}" if n else "quad_perm:[0,1,2,3]"
                    a(f"v_mov_b32_dpp {v(AO+4*e+m)}, {v(VT)} {ctl} row_mask:0xf bank_mask:{1<<e:#x}")
        def perm1(j, m, e):
            lo, hi = slot((8*j+m) % 16), slot((8*j+4+m) % 16)
            a(f"v_perm_b32 {v(B+4*e+m)}, {v(hi+(e>>1))}, {v(lo+(e>>1))}, {s(S_HIS if e & 1 else S_LO)}")
        def mfma_pv(e):
            acc = ACC + 4*(e >> 2)
            a(f"v_mfma_f32_16x16x32_bf16 {v(acc,4)}, {v(AO+4*(e&3),4)}, {v(B+4*e,4)}, {v(acc,4)}")
        def pv_last(j):
            order = [0, 4, 1, 5, 2, 6, 3, 7]
            for k in range(3): perm1(j, 3, order[k])
            for k in range(8):
                mfma_pv(order[k])
                if k + 3 < 8: perm1(j, 3, order[k+3])
        def qwait():
            a(f"v_and_b32 {v(VT2)}, 3, v0"); a(f"v_lshlrev_b32 {v(VT2)}, 8, {v(VT2)}")
            a(f"v_and_b32 {v(VT)}, 0xc0, {v(VV)}"); a(f"v_lshrrev_b32 {v(VT)}, 2, {v(VT)}")
            a(f"v_and_b32 {v(DT)}, 0x300, {v(VV)}"); a(f"v_lshrrev_b32 {v(DT)}, 2, {v(DT)}")
            a(f"v_or3_b32 {v(VT2)}, {v(VT2)}, {v(VT)}, {v(DT)}")
            self.stamp(2)
            if not self.cut: self.lds_wait(L_QFLAG, 1, VZ, VT, [f"ds_read_b128 {v(Q,4)}, {v(VT2)} offset:{L_Q}"])
            self.stamp(3)
        kv = [('K', i) for i in range(32)] + [('V', i) for i in range(32)]
        seq = kv[:self.apos] + [('A', i) for i in range(4)] + kv[self.apos:self.wpos] + [('W', i) for i in range(0 if self.wdma else 3)] + kv[self.wpos:]
        if self.agap:
            seq = [x for x in seq if x[0] != 'A']
            for i in range(4): seq.insert(self.apos + i*(self.agap + 1), ('A', i))
        pos = {it: n for n, it in enumerate(seq)}
        N = len(seq)
        def owrite():
            self.stamp(7)
            pv_last(3)
            a(f"s_lshl_b32 {s(S_T2)}, {s(S_WAVE)}, 11")
            a(f"v_add_u32 {v(VT)}, {s(S_T2)}, {v(VV)}")
            a(f"ds_write_b128 {v(VT)}, {v(ACC,4)} offset:{L_O}")
            a(f"ds_write_b128 {v(VT)}, {v(ACC+4,4)} offset:{L_O+1024}")
            a("s_waitcnt lgkmcnt(0)")
            a("s_barrier")
        p0 = pos[('K', self.n0)]
        tasks = [(p0, -1, [], qwait)]
        for j in range(8):
            tasks.append((p0 + j, pos[('K', 4*j+3)], [('K', 4*j+m) for m in range(4)], lambda j=j: qk(j)))
            if j & 1: tasks.append((0, -1, [], lambda j=j: sm_scale(j >> 1)))
        for f in (sm_max, sm_exp, sm_sum, zero_acc): tasks.append(('next', -1, [], f))
        for j in range(4):
            tasks.append(('next', -1, [], lambda j=j: build_a(j)))
            for m in range(3): tasks.append(('next', pos[('V', 8*j+4+m)], [('V', 8*j+m), ('V', 8*j+4+m)], lambda j=j, m=m: [perm1(j, m, e) for e in range(8)]))
            tasks.append(('next', pos[('V', 8*j+7)], [('V', 8*j+3), ('V', 8*j+7)], (lambda j=j: pv_last(j)) if j < 3 else owrite))
        side = [(0, pos[('A', 3)], [('A', i) for i in range(4)], put_a)]
        if not self.wdma: side.append((0, pos[('W', 2)], [('W', i) for i in range(3)], put_w))
        trigs = {pos[kv[t]]: t for t in (self.nq, self.nm, self.g_trig) if isinstance(t, int) and t > 0}
        def Dn(n):
            if self.ramp and n < len(self.ramp): return self.ramp[n]
            return self.D2 if (self.D2 and n >= self.nD2) else self.D
        nbar = (self.ramp[0] if self.ramp else self.D) - 1
        busy = {}; landed = -1
        def run(n):
            for q in (side, tasks):
                did = False
                while q and q[0][1] <= landed:
                    e = q[0][0]
                    if e == 'next':
                        if did and n < 99 and self.smooth: break
                    elif e > n: break
                    t = q.pop(0); t[3](); did = True
                    for x in t[2]: busy.pop(regs(x))
        NM = N - 3 if self.wlate else N
        for n in range(NM):
            if n - Dn(n) > landed:
                a(f"s_waitcnt vmcnt({Dn(n)-1})"); landed = n - Dn(n)
            assert regs(seq[n]) not in busy, (n, seq[n])
            busy[regs(seq[n])] = n
            load(seq[n])
            if self.trace and seq[n] in kv:
                m = kv.index(seq[n])
                if m: a("s_waitcnt lgkmcnt(0)"); a(f"v_writelane_b32 v164, s100, {m-1}")
                a("s_memrealtime s[100:101]")
            if n == nbar:
                a(f"s_mov_b32 {s(S_HI)}, 0xffff0000"); a(f"s_mov_b32 {s(S_LO)}, 0x05040100"); a(f"s_mov_b32 {s(S_HIS)}, 0x07060302")
                a("s_barrier")
            if n in trigs:
                a(f"v_mov_b32 {v(VT)}, {trigs[n]}"); a("s_mov_b64 exec, 1"); a(f"ds_max_u32 {v(VZ)}, {v(VT)} offset:{L_PROG}"); a("s_mov_b64 exec, -1")
            if self.wdma and seq[n] == kv[min(63, self.wpos - 1)]: count(L_WCNT)
            if n == nbar + 1: self.stamp(1)
            if landed == pos[('K', 31)]: self.stamp(4)
            run(n)
        issued = NM
        while landed < N - 1:
            landed += 1
            now = issued < N and landed == NM - self.wlate
            if not now and not any(q and q[0][1] <= landed for q in (side, tasks)): continue
            a(f"s_waitcnt vmcnt({issued - 1 - landed})")
            if now:
                for n in range(NM, N):
                    busy[regs(seq[n])] = n; load(seq[n])
                issued = N
            run(99)
        assert not tasks and not side
        self.stamp(8)
        if self.trace:
            a(f"s_mul_i32 {s(S_T0)}, {s(S_WG)}, 8"); a(f"s_add_u32 {s(S_T0)}, {s(S_T0)}, {s(S_WAVE)}")
            a(f"s_lshl_b32 {s(S_T0)}, {s(S_T0)}, 8"); a(f"s_add_u32 {s(S_T0)}, {s(S_T0)}, {STAMP + (1<<20):#x}")
            a(f"v_lshl_add_u32 {v(VT)}, v0, 2, {s(S_T0)}")
            a(f"global_store_dword {v(VT)}, v164, {s(P_WS,2)}")
        self.finish(VT)

    def s1_geom(self, loader):
        a = self.a
        SZ, SCB, SRB, SROW, SSTR = S_M, S_M+1, S_M+2, S_M+3, S_M+4
        Lf, Lj = self.lab("s1ffn"), self.lab("s1join")
        a(f"s_cmp_ge_u32 {s(S_S)}, 16"); a(f"s_cbranch_scc1 {Lf}")
        a(f"s_and_b32 {s(SCB)}, {s(S_S)}, 7"); a(f"s_lshr_b32 {s(SRB)}, {s(S_S)}, 3")
        a(f"s_lshl_b32 {s(SROW)}, {s(SRB)}, 2"); a(f"s_add_u32 {s(SROW)}, {s(SROW)}, {s(SZ)}"); a(f"s_lshl_b32 {s(SROW)}, {s(SROW)}, 6")
        if loader:
            a(f"s_mov_b32 {s(SSTR)}, 8192")
            a(f"s_lshl_b32 {s(S_T2)}, {s(S_H)}, 3"); a(f"s_add_u32 {s(S_T2)}, {s(S_T2)}, {s(SCB)}")
            self.srd(R2, P_WQ, 0x400000)
        a(f"s_branch {Lj}")
        a(f"{Lf}:")
        a(f"s_sub_u32 {s(S_T2)}, {s(S_S)}, 16"); a(f"s_lshl_b32 {s(S_T2)}, {s(S_T2)}, 3"); a(f"s_add_u32 {s(S_T2)}, {s(S_T2)}, {s(S_H)}")
        a(f"s_lshr_b32 {s(SCB)}, {s(S_T2)}, 2"); a(f"s_and_b32 {s(SRB)}, {s(S_T2)}, 3")
        a(f"s_and_b32 {s(S_T3)}, {s(SZ)}, 1")
        a(f"s_lshl_b32 {s(SROW)}, {s(SRB)}, 1"); a(f"s_add_u32 {s(SROW)}, {s(SROW)}, {s(S_T3)}"); a(f"s_lshl_b32 {s(SROW)}, {s(SROW)}, 6")
        if loader:
            a(f"s_mov_b32 {s(SSTR)}, 3584")
            a(f"s_mov_b32 {s(S_T2)}, {s(SCB)}")
            a(f"s_cmp_ge_u32 {s(SZ)}, 2")
            a(f"s_cselect_b32 {s(R2)}, {s(P_WU)}, {s(P_WG)}"); a(f"s_cselect_b32 {s(R2+1)}, {s(P_WU+1)}, {s(P_WG+1)}")
            a(f"s_cmp_lt_u32 {s(SCB)}, 28")
            a(f"s_cselect_b32 {s(R2+2)}, 0x1c0000, 0"); a(f"s_mov_b32 {s(R2+3)}, 0x20000")
        a(f"{Lj}:")

    VZ, VT, VA, T = 1, 2, 3, 4
    def stage1(self):
        a = self.a
        VZ, VT, VA, T = self.VZ, self.VT, self.VA, self.T
        X, XF, XR, ACC, W = 12, 16, 24, 32, 40
        SZ, SCB, SRB, SROW, SSTR = S_M, S_M+1, S_M+2, S_M+3, S_M+4
        a(f"s_and_b32 {s(SZ)}, {s(S_WAVE)}, 3")
        a(f"v_mov_b32 {v(VZ)}, 0"); a(f"v_lshlrev_b32 {v(VA)}, 4, v0")
        if self.pf:
            Lp = self.lab("nopf")
            a(f"s_cmp_ge_u32 {s(S_S)}, {self.pf}"); a(f"s_cbranch_scc1 {Lp}")
            a(f"s_getpc_b64 {s(R4,2)}")
            a(f"Lpc:")
            a(f"s_sub_u32 {s(R4)}, {s(R4)}, Lpc-{KN}"); a(f"s_subb_u32 {s(R4+1)}, {s(R4+1)}, 0")
            a(f"s_mov_b32 {s(R4+2)}, Lcode_end-{KN}"); a(f"s_mov_b32 {s(R4+3)}, 0x20000")
            a(f"s_lshl_b32 {s(S_T0)}, {s(SZ)}, 12")
            for k in range(4):
                a(f"buffer_load_dwordx4 {v(W+32+4*k,4)}, {v(VA)}, {s(R4,4)}, {s(S_T0)} offen offset:{1024*k}")
            a(f"{Lp}:")
        self.s1_geom(False)
        a("s_waitcnt lgkmcnt(0)")
        self.srd(R0, P_WS, WS_USED); self.srd(R1, P_X, 1024)
        a(f"buffer_load_dwordx4 {v(X,4)}, {v(VA)}, {s(R1,4)}, 0 offen")
        a(f"buffer_load_dword {v(VT)}, {v(VZ)}, {s(R0,4)}, 0 offen offset:{EPOCH}")
        Lb = self.lab("s1b")
        a(f"s_cmp_lg_u32 {s(SZ)}, 0"); a(f"s_cbranch_scc1 {Lb}")
        a(f"v_lshlrev_b32 {v(T+2)}, 2, v0")
        a("s_mov_b64 exec, 0xff")
        a(f"ds_write_b32 {v(T+2)}, {v(VZ)}")
        a("s_mov_b64 exec, -1")
        a("s_waitcnt lgkmcnt(0)")
        a(f"{Lb}:")
        a("s_barrier")
        a("s_waitcnt vmcnt(1)")
        self.stamp(1)
        self.layernorm(X, XF, T)
        a(f"s_lshr_b32 {s(S_T0)}, {s(SROW)}, 1")
        a(f"v_lshrrev_b32 {v(T)}, 3, v0"); a(f"v_lshl_add_u32 {v(T)}, {v(T)}, 2, {s(S_T0)}")
        for j in range(8): a(f"ds_bpermute_b32 {v(XR+j)}, {v(T)}, {v(XF+j)}")
        a("s_waitcnt vmcnt(0)")
        a(f"v_add_u32 {v(VT)}, 1, {v(VT)}"); a(f"v_readfirstlane_b32 {s(S_E)}, {v(VT)}")
        a(f"v_and_b32 {v(VT)}, {s(S_TM)}, {v(VT)}")
        a(f"s_lshl_b32 {s(S_T0)}, {s(SZ)}, 13"); a(f"v_add_u32 {v(T)}, {s(S_T0)}, {v(VA)}")
        self.lds_wait(L_ACNT, 8, VZ, T+1)
        for j in range(8): a(f"ds_read_b128 {v(W+4*j,4)}, {v(T)} offset:{L_A+1024*j}")
        for j in range(8):
            self.lgkm(7-j)
            for k in range(4):
                self.unpack(T, T+1, W+4*j+k)
                op = "v_mul_f32" if j == 0 else "v_fmac_f32"
                a(f"{op} {v(ACC+2*k)}, {v(XR+j)}, {v(T)}"); a(f"{op} {v(ACC+2*k+1)}, {v(XR+j)}, {v(T+1)}")
        self.fold("v_permlane32_swap_b32", [(ACC+e, ACC+e+4) for e in range(4)])
        self.fold("v_permlane16_swap_b32", [(ACC+e, ACC+e+2) for e in range(2)])
        self.ror("v_add_f32", [ACC, ACC+1], (8,))
        a(f"s_lshl_b32 {s(S_T0)}, {s(SZ)}, 8")
        a(f"v_and_b32 {v(T)}, 7, v0"); a(f"v_lshl_add_u32 {v(T)}, {v(T)}, 5, {s(S_T0)}")
        a(f"v_lshrrev_b32 {v(T+1)}, 4, v0"); a(f"v_lshl_add_u32 {v(T)}, {v(T+1)}, 3, {v(T)}")
        a(f"v_mov_b32 {v(T+1)}, 1")
        a("s_mov_b32 exec_lo, 0xff00ff"); a("s_mov_b32 exec_hi, 0xff00ff")
        a(f"ds_write_b64 {v(T)}, {v(ACC,2)} offset:{L_S1}")
        a("s_mov_b64 exec, 1")
        a(f"ds_add_u32 {v(VZ)}, {v(T+1)} offset:{L_S1CNT}")
        a("s_mov_b64 exec, -1")
        self.stamp(2)

    def sw0(self):
        a = self.a
        VZ, VT, VA, T = self.VZ, self.VT, self.VA, self.T
        XF, W = 16, 40
        SZ, SCB, SRB = S_M, S_M+1, S_M+2
        a(f"v_and_b32 {v(T)}, 0xf0, {v(VA)}"); a(f"v_and_b32 {v(T+2)}, 16, v0"); a(f"v_lshl_add_u32 {v(T)}, {v(T+2)}, 5, {v(T)}")
        self.lds_wait(L_S1CNT, 4, VZ, T+1, [f"ds_read_b128 {v(W,4)}, {v(T)} offset:{L_S1}", f"ds_read_b128 {v(W+4,4)}, {v(T)} offset:{L_S1+256}"])
        a(f"v_pk_add_f32 {v(W,2)}, {v(W,2)}, {v(W+4,2)}"); a(f"v_pk_add_f32 {v(W+2,2)}, {v(W+2,2)}, {v(W+6,2)}")
        Lf, Lj = self.lab("c1ffn"), self.lab("c1join")
        a(f"s_cmp_ge_u32 {s(S_S)}, 16"); a(f"s_cbranch_scc1 {Lf}")
        for r in range(4): a(f"v_mov_b32 {v(W+4+r)}, {v(W+r)}")
        self.fold("v_permlane16_swap_b32", [(W+r, W+4+r) for r in range(4)])
        a(f"v_and_b32 {v(T)}, 0xf0, {v(VA)}")
        a(f"s_lshl_b32 {s(S_T1)}, {s(S_H)}, 12"); a(f"s_lshl_b32 {s(S_T2)}, {s(SRB)}, 11"); a(f"s_add_u32 {s(S_T1)}, {s(S_T1)}, {s(S_T2)}")
        a(f"s_lshl_b32 {s(S_T2)}, {s(SCB)}, 8"); a(f"s_add_u32 {s(S_T1)}, {s(S_T1)}, {s(S_T2)}"); a(f"s_add_u32 {s(S_T1)}, {s(S_T1)}, {QBOX:#x}")
        a("s_mov_b64 exec, 0xffff")
        a(f"s_branch {Lj}")
        a(f"{Lf}:")
        a(f"v_and_b32 {v(T)}, 8, v0"); a(f"v_lshlrev_b32 {v(T)}, 7, {v(T)}")
        a(f"v_and_b32 {v(T+1)}, 0x70, {v(VA)}"); a(f"v_lshl_add_u32 {v(T+1)}, {v(T+2)}, 3, {v(T+1)}"); a(f"v_add_u32 {v(T)}, {v(T)}, {v(T+1)}")
        a(f"s_lshl_b32 {s(S_T1)}, {s(SCB)}, 11"); a(f"s_lshl_b32 {s(S_T2)}, {s(SRB)}, 8"); a(f"s_add_u32 {s(S_T1)}, {s(S_T1)}, {s(S_T2)}")
        a(f"s_add_u32 {s(S_T1)}, {s(S_T1)}, {GBOX:#x}")
        a("s_mov_b32 exec_lo, -1"); a("s_mov_b32 exec_hi, 0")
        a(f"{Lj}:")
        self.tag(range(W, W+4), VT)
        a(f"buffer_store_dwordx4 {v(W,4)}, {v(T)}, {s(R0,4)}, {s(S_T1)} offen sc1")
        a("s_mov_b64 exec, -1")
        a(f"s_lshl_b32 {s(S_T0)}, {s(S_H)}, 12"); a(f"s_add_u32 {s(S_T0)}, {s(S_T0)}, {QBOX:#x}")
        W2 = W + 8
        self.trig(self.nq, VZ, T+1)
        self.poll([(f"buffer_load_dwordx4 {v(W2+4*k,4)}, {v(VA)}, {s(R0,4)}, {s(S_T0)} offen offset:{1024*k} sc1", W2+4*k, 4) for k in range(4)], VT, T)
        for k in range(4): a(f"v_pk_add_f32 {v(W2+2*k,2)}, {v(W2+2*k,2)}, {v(W2+8+2*k,2)}")
        for k in range(4): a(f"v_cvt_pk_bf16_f32 {v(XF+k)}, {v(W2+2*k)}, {v(W2+2*k+1)}")
        a(f"v_lshlrev_b32 {v(T)}, 3, v0"); a(f"v_mov_b32 {v(T+1)}, 1")
        a(f"ds_write_b64 {v(T)}, {v(XF,2)} offset:{L_Q}"); a(f"ds_write_b64 {v(T)}, {v(XF+2,2)} offset:{L_Q+512}")
        a("s_waitcnt lgkmcnt(0)")
        a(f"ds_write_b32 {v(VZ)}, {v(T+1)} offset:{L_QFLAG}")
        self.stamp(3)
        if self.cut == 1: return self.finish(T)
        MW, LW, M, L, MA, LA, MB, LB = XF, XF+1, XF+2, XF+3, W, W+1, W+2, W+3
        a(f"v_and_b32 {v(T)}, 28, v0"); a(f"v_lshlrev_b32 {v(T)}, 3, {v(T)}")
        a(f"v_and_b32 {v(T+2)}, 3, v0"); a(f"v_lshl_add_u32 {v(T)}, {v(T+2)}, 2, {v(T)}")
        self.lds_wait(L_MLCNT, 8, VZ, T+1, [f"ds_read2_b32 {v(MW,2)}, {v(T)} offset0:{L_ML//4} offset1:{L_ML//4+4}"])
        self.stamp(4)
        a(f"s_mov_b32 {s(S_T2)}, {LOG2E:#x}")
        a(f"v_mov_b32 {v(M)}, {v(MW)}")
        self.ror("v_max_f32", [M], (4, 8))
        a(f"v_mov_b32 {v(T)}, {v(M)}"); a(f"v_permlane16_swap_b32 {v(M)}, {v(T)}"); a(f"v_max_f32 {v(M)}, {v(M)}, {v(T)}")
        a(f"v_sub_f32 {v(L)}, {v(MW)}, {v(M)}"); a(f"v_mul_f32 {v(L)}, {s(S_T2)}, {v(L)}"); a(f"v_exp_f32 {v(L)}, {v(L)}")
        a(f"v_mul_f32 {v(L)}, {v(L)}, {v(LW)}")
        self.ror("v_add_f32", [L], (4, 8))
        a(f"v_mov_b32 {v(T)}, {v(L)}"); a(f"v_permlane16_swap_b32 {v(L)}, {v(T)}"); a(f"v_add_f32 {v(L)}, {v(L)}, {v(T)}")
        self.tag([M, L], VT)
        if self.fast:
            a(f"s_getreg_b32 {s(S_M+5)}, hwreg(HW_REG_XCC_ID, 0, 4)"); a(f"s_lshl_b32 {s(S_M+5)}, {s(S_M+5)}, 12")
            a(f"v_or_b32 {v(M)}, {s(S_M+5)}, {v(M)}")
        a(f"v_lshlrev_b32 {v(T)}, 3, v0")
        a(f"s_lshl_b32 {s(S_T0)}, {s(S_H)}, 10"); a(f"s_add_u32 {s(S_T0)}, {s(S_T0)}, {MLBOX:#x}")
        a(f"s_lshl_b32 {s(S_T1)}, {s(S_S)}, 5"); a(f"s_add_u32 {s(S_T1)}, {s(S_T1)}, {s(S_T0)}")
        a("s_mov_b64 exec, 15")
        a(f"buffer_store_dwordx2 {v(M,2)}, {v(T)}, {s(R0,4)}, {s(S_T1)} offen sc1")
        a("s_mov_b64 exec, -1")
        self.trig(self.nm, VZ, T+1)
        self.poll([(f"buffer_load_dwordx2 {v(MA,2)}, {v(T)}, {s(R0,4)}, {s(S_T0)} offen sc1", MA, 2),
                   (f"buffer_load_dwordx2 {v(MB,2)}, {v(T)}, {s(R0,4)}, {s(S_T0)} offen offset:512 sc1", MB, 2)], VT, T+1)
        if self.fast:
            a(f"v_xor_b32 {v(T+2)}, {s(S_M+5)}, {v(MA)}"); a(f"v_xor_b32 {v(T+3)}, {s(S_M+5)}, {v(MB)}")
            a(f"v_or_b32 {v(T+2)}, {v(T+2)}, {v(T+3)}"); a(f"v_and_b32 {v(T+2)}, 0xf000, {v(T+2)}")
            a(f"v_cmp_ne_u32 vcc, 0, {v(T+2)}")
            a("s_cmp_eq_u64 vcc, 0"); a(f"s_cselect_b32 {s(S_M+6)}, 2, 1")
        a(f"v_and_b32 {v(MA)}, {s(S_HI)}, {v(MA)}"); a(f"v_and_b32 {v(MB)}, {s(S_HI)}, {v(MB)}")
        a(f"v_max_f32 {v(M)}, {v(MA)}, {v(MB)}")
        self.ror("v_max_f32", [M], (4, 8)); self.rows_all("v_max_f32", M, T)
        for r in (MA, MB, MW): a(f"v_sub_f32 {v(r)}, {v(r)}, {v(M)}")
        for r in (MA, MB, MW): a(f"v_mul_f32 {v(r)}, {s(S_T2)}, {v(r)}")
        for r in (MA, MB, MW): a(f"v_exp_f32 {v(r)}, {v(r)}")
        a(f"v_mul_f32 {v(L)}, {v(MA)}, {v(LA)}"); a(f"v_fmac_f32 {v(L)}, {v(MB)}, {v(LB)}")
        self.ror("v_add_f32", [L], (4, 8)); self.rows_all("v_add_f32", L, T)
        a(f"v_rcp_f32 {v(L)}, {v(L)}"); a(f"v_mul_f32 {v(MW)}, {v(MW)}, {v(L)}")
        a(f"v_and_b32 {v(T)}, 31, v0"); a(f"v_lshlrev_b32 {v(T)}, 2, {v(T)}"); a(f"v_mov_b32 {v(T+1)}, {s(S_M+6) if self.fast else 1}")
        a(f"ds_write_b32 {v(T)}, {v(MW)} offset:{L_F}")
        a("s_waitcnt lgkmcnt(0)")
        a(f"ds_write_b32 {v(VZ)}, {v(T+1)} offset:{L_FFLAG}")
        a("s_waitcnt lgkmcnt(0)")
        self.stamp(5)
        self.finish(T)

    def fblock(self, dst, t):
        a = self.a
        a(f"s_lshl_b32 {s(dst)}, {s(S_H)}, 3"); a(f"s_lshr_b32 {s(t)}, {s(S_S)}, 2"); a(f"s_add_u32 {s(dst)}, {s(dst)}, {s(t)}")

    def sw1(self):
        a = self.a
        VZ, VT, VA, T = self.VZ, self.VT, self.VA, self.T
        XC, VO, G, W = 10, 11, 12, 16
        self.fblock(S_T0, S_T1)
        a(f"s_lshl_b32 {s(S_T0)}, {s(S_T0)}, 10"); a(f"s_add_u32 {s(S_T0)}, {s(S_T0)}, {GBOX:#x}")
        self.trig(self.g_trig, VZ, T+1)
        self.poll([(f"buffer_load_dwordx4 {v(G,4)}, {v(VA)}, {s(R0,4)}, {s(S_T0)} offen sc1", G, 4)], VT, T)
        self.fold4(G)
        self.rbf1(G, G)
        a(f"v_mov_b32_dpp {v(G+1)}, {v(G)} row_ror:8 row_mask:0xf bank_mask:0xf")
        self.silu_bf(G, G, T)
        a(f"v_mul_f32 {v(G)}, {v(G)}, {v(G+1)}"); a(f"v_cvt_pk_bf16_f32 {v(G)}, {v(G)}, {v(G)}")
        a(f"v_and_b32 {v(T)}, 7, v0"); a(f"v_lshlrev_b32 {v(T)}, 3, {v(T)}")
        a(f"v_lshrrev_b32 {v(T+1)}, 4, v0"); a(f"v_lshl_add_u32 {v(T)}, {v(T+1)}, 1, {v(T)}"); a(f"v_mov_b32 {v(T+1)}, 1")
        a("s_mov_b32 exec_lo, 0xff00ff"); a("s_mov_b32 exec_hi, 0xff00ff")
        a(f"ds_write_b16 {v(T)}, {v(G)} offset:{L_H}")
        a("s_mov_b64 exec, -1")
        a("s_waitcnt lgkmcnt(0)")
        a(f"ds_write_b32 {v(VZ)}, {v(T+1)} offset:{L_HFLAG}")
        self.stamp(3)
        Lx = self.lab("sw1end")
        a(f"s_cmp_ge_u32 {s(S_WG)}, {0 if self.cut else 32}"); a(f"s_cbranch_scc1 {Lx}")
        a(f"s_lshl_b32 {s(S_T0)}, {s(S_WG)}, 5")
        a(f"v_and_b32 {v(VO)}, 3, v0"); a(f"v_lshl_add_u32 {v(VO)}, {v(VO)}, 3, {s(S_T0)}")
        a(f"v_lshrrev_b32 {v(T)}, 4, v0"); a(f"v_lshl_add_u32 {v(VO)}, {v(T)}, 1, {v(VO)}")
        a(f"buffer_load_ushort {v(XC)}, {v(VO)}, {s(R1,4)}, 0 offen")
        a(f"s_lshl_b32 {s(S_T0)}, {s(S_WG)}, 13"); a(f"s_add_u32 {s(S_T0)}, {s(S_T0)}, {HBOX:#x}"); a(f"s_add_u32 {s(S_T1)}, {s(S_T0)}, 4096")
        loads = [(f"buffer_load_dwordx4 {v(W+4*j,4)}, {v(VA)}, {s(R0,4)}, {s(S_T0+(j>>2))} offen offset:{1024*(j&3)} sc1", W+4*j, 4) for j in range(8)]
        if self.touch:
            for ld in loads: a(ld[0])
        a("s_waitcnt vmcnt(0)")
        a(f"v_lshlrev_b32 {v(XC)}, 16, {v(XC)}")
        self.srd(R1, P_OUT, 1024)
        self.stamp(4)
        a("s_barrier")
        self.stamp(5)
        if self.light: self.gather8(loads, VT, T, G, VA, S_T0, 10)
        else: self.poll(loads, VT, T, acc=G)
        self.stamp(6)
        self.fold4(G)
        self.ror("v_add_f32", [G], (8,))
        self.rbf1(G, G)
        self.silu_bf(G+1, G, T)
        a(f"v_mul_f32_dpp {v(G)}, {v(G+1)}, {v(G)} row_ror:12 row_mask:0xf bank_mask:0xf"); self.rbf1(G, G)
        a(f"v_add_f32 {v(G)}, {v(G)}, {v(XC)}"); a(f"v_cvt_pk_bf16_f32 {v(G)}, {v(G)}, {v(G)}")
        a("s_mov_b32 exec_lo, 0xf000f"); a("s_mov_b32 exec_hi, 0xf000f")
        a(f"buffer_store_short {v(G)}, {v(VO)}, {s(R1,4)}, 0 offen {self.outpol}")
        a(f"s_cmp_lg_u32 {s(S_WG)}, 0"); a(f"s_cbranch_scc1 {Lx}")
        a("s_mov_b64 exec, 1")
        a(f"v_mov_b32 {v(T)}, {s(S_E)}")
        a(f"buffer_store_dword {v(T)}, {v(VZ)}, {s(R0,4)}, 0 offen offset:{EPOCH} sc1")
        if self.amp:
            pa, pb, k = self.amp
            a("s_waitcnt vmcnt(0)"); self.stamp(7); a("s_waitcnt lgkmcnt(0)")
            a(f"s_sub_u32 {s(S_T0)}, {s(S_ST+2*pb)}, {s(S_ST+2*pa)}"); a(f"s_mul_i32 {s(S_T0)}, {s(S_T0)}, {k}")
            a(f"s_min_u32 {s(S_T0)}, {s(S_T0)}, 100000")
            a("Lamp:")
            a(f"s_memrealtime {s(S_ST+20,2)}"); a("s_waitcnt lgkmcnt(0)")
            a(f"s_sub_u32 {s(S_T1)}, {s(S_ST+20)}, {s(S_ST+14)}"); a(f"s_cmp_lt_u32 {s(S_T1)}, {s(S_T0)}"); a("s_cbranch_scc1 Lamp")
        a(f"{Lx}:")
        if self.diag: a("s_waitcnt vmcnt(0)")
        self.stamp(7)
        self.finish(T)

    def sw23(self):
        a = self.a
        VZ, VT, VA, T = self.VZ, self.VT, self.VA, self.T
        VP, VH, VB, VB2, OUT, SUM, W, HB, AW, AD, F, DD = 10, 11, 12, 13, 16, 20, 24, 56, 72, 104, 120, 152
        SZ, SFB, SCOL, SPUB, SP0, SHB, SLW = S_M+8, S_M+9, S_M+10, S_M+11, S_M, S_M+12, S_M+13
        a(f"s_and_b32 {s(SZ)}, {s(S_WAVE)}, 1")
        self.fblock(SFB, S_T1)
        a(f"s_and_b32 {s(SCOL)}, {s(S_S)}, 3"); a(f"s_lshl_b32 {s(SCOL)}, {s(SCOL)}, 1"); a(f"s_add_u32 {s(SCOL)}, {s(SCOL)}, {s(SZ)}")
        a(f"s_mul_i32 {s(SLW)}, {s(SZ)}, 12288")
        a(f"v_lshrrev_b32 {v(T)}, 4, v0"); a(f"v_lshl_add_u32 {v(T)}, {v(T)}, 10, {s(SLW)}")
        a(f"v_bfe_u32 {v(T+2)}, v0, 2, 2"); a(f"v_lshl_add_u32 {v(T)}, {v(T+2)}, 7, {v(T)}")
        a(f"v_and_b32 {v(T+2)}, 3, v0"); a(f"v_lshl_add_u32 {v(T)}, {v(T+2)}, 3, {v(T)}")
        a(f"s_lshl_b32 {s(S_T0)}, {s(S_H)}, 16"); a(f"s_add_u32 {s(S_T0)}, {s(S_T0)}, {OBOX:#x}")
        a(f"s_lshl_b32 {s(SPUB)}, {s(S_S)}, 11"); a(f"s_add_u32 {s(SPUB)}, {s(SPUB)}, {s(S_T0)}")
        a(f"s_lshr_b32 {s(S_T1)}, {s(S_S)}, 2"); a(f"s_lshl_b32 {s(S_T1)}, {s(S_T1)}, 8"); a(f"s_add_u32 {s(SP0)}, {s(S_T0)}, {s(S_T1)}")
        for k in range(1, 8): a(f"s_add_u32 {s(SP0+k)}, {s(SP0)}, {8192*k}")
        a(f"v_lshrrev_b32 {v(VP)}, 4, v0"); a(f"v_and_b32 {v(T+2)}, 0xf0, {v(VA)}"); a(f"v_lshl_add_u32 {v(VP)}, {v(VP)}, 11, {v(T+2)}")
        a(f"s_lshl_b32 {s(SHB)}, {s(SCOL)}, 15"); a(f"s_lshl_b32 {s(S_T1)}, {s(SFB)}, 7"); a(f"s_add_u32 {s(SHB)}, {s(SHB)}, {s(S_T1)}")
        a(f"s_add_u32 {s(SHB)}, {s(SHB)}, {HBOX:#x}")
        a(f"v_and_b32 {v(VH)}, 3, v0"); a(f"v_lshlrev_b32 {v(VH)}, 13, {v(VH)}")
        a(f"v_and_b32 {v(T+2)}, 4, v0"); a(f"v_lshl_add_u32 {v(VH)}, {v(T+2)}, 4, {v(VH)}")
        a(f"v_and_b32 {v(VB)}, 48, v0"); a(f"v_add_u32 {v(VH)}, {v(VH)}, {v(VB)}")
        def tr_ad():
            for t in range(4):
                for hf in range(2):
                    a(f"ds_read_b64_tr_b16 {v(AD+4*t+2*hf,2)}, {v(T)} offset:{L_W + 8192 + 512*hf + 32*t}")
        def tr_aw(t):
            for kk in range(2):
                for hf in range(2):
                    a(f"ds_read_b64_tr_b16 {v(AW+8*t+4*kk+2*hf,2)}, {v(T)} offset:{L_W + 4096*kk + 512*hf + 32*t}")
        def ffn_tags():
            a("s_mov_b32 exec_lo, 0x100010"); a("s_mov_b32 exec_hi, 0x100010")
            for t in range(4):
                self.tag(range(DD+4*t, DD+4*t+4), VT, dst=range(OUT, OUT+4))
                if t < 3: a("s_lshl_b64 exec, exec, 1")
            a("s_mov_b64 exec, -1")
        def wprep():
            if self.wdma:
                a("s_waitcnt vmcnt(9)")
                tr_ad(); tr_aw(0)
                self.lgkm(4)
                for t in range(4): a(f"v_mfma_f32_16x16x32_bf16 {v(DD+4*t,4)}, {v(AD+4*t,4)}, {v(HB,4)}, 0")
                for t in range(1, 4): tr_aw(t)
                ffn_tags()
                self.stamp(3)
                return
            self.lds_wait(L_WCNT, 8, VZ, T+2)
            tr_ad()
            self.lds_wait(L_HFLAG, 1, VZ, T+2, [f"ds_read_b128 {v(HB,4)}, {v(VB)} offset:{L_H}"])
            for t in range(4): a(f"v_mfma_f32_16x16x32_bf16 {v(DD+4*t,4)}, {v(AD+4*t,4)}, {v(HB,4)}, 0")
            for t in range(4):
                tr_aw(t)
                if t == 1: a("s_waitcnt lgkmcnt(0)")
            ffn_tags()
            a("s_waitcnt lgkmcnt(0)")
            self.stamp(3)
        if self.wdma:
            VWA, VWD, SW0, SW1 = 14, 15, R4, R4+1
            a(f"v_lshrrev_b32 {v(T+1)}, 3, v0"); a(f"v_and_b32 {v(T+2)}, 0x70, {v(VA)}")
            a(f"v_lshl_add_u32 {v(VWD)}, {v(T+1)}, 10, {v(T+2)}"); a(f"v_lshl_add_u32 {v(VWA)}, {v(T+1)}, 13, {v(T+2)}")
            a(f"s_lshl_b32 {s(SW0)}, {s(S_H)}, 19"); a(f"s_lshr_b32 {s(S_T1)}, {s(S_S)}, 2"); a(f"s_lshl_b32 {s(S_T1)}, {s(S_T1)}, 10"); a(f"s_add_u32 {s(SW0)}, {s(SW0)}, {s(S_T1)}")
            a(f"s_lshl_b32 {s(S_T1)}, {s(SCOL)}, 7"); a(f"s_add_u32 {s(SW0)}, {s(SW0)}, {s(S_T1)}")
            a(f"s_lshl_b32 {s(SW1)}, {s(SFB)}, 15"); a(f"s_add_u32 {s(SW1)}, {s(SW1)}, {s(S_T1)}")
            a(f"s_add_u32 {s(SLW)}, {s(SLW)}, {L_W}")
            self.srd(R1, P_WO, 0x400000); self.srd(R2, P_WD, 0x1c0000)
            self.lds_wait(L_HFLAG, 1, VZ, T+2, [f"ds_read_b128 {v(HB,4)}, {v(VB)} offset:{L_H}"])
        def wload():
            self.lds_wait(L_WCNT, 8, VZ, T+2, sleep=0)
            for j in list(range(8, 12)) + list(range(8)):
                a(f"s_add_u32 m0, {s(SLW)}, {1024*j}")
                if j < 8:
                    a(f"buffer_load_dwordx4 {v(VWA)}, {s(R1,4)}, {s(SW0)} offen {self.wpol} lds")
                    a(f"s_add_u32 {s(SW0)}, {s(SW0)}, 0x10000")
                else:
                    a(f"buffer_load_dwordx4 {v(VWD)}, {s(R2,4)}, {s(SW1)} offen {self.wpol} lds")
                    a(f"s_add_u32 {s(SW1)}, {s(SW1)}, 8192")
        late = self.wpos > 56 or self.wdma
        if not late: wprep()
        if self.cut: return self.finish(T)
        loads = [(f"buffer_load_dwordx4 {v(W+4*k,4)}, {v(VP)}, {s(R0,4)}, {s(SP0+k)} offen sc1", W+4*k, 4) for k in range(8)]
        if self.touch and True:
            for ld in loads: a(ld[0])
        self.lds_wait(L_FFLAG, 1, VZ, T+2, [f"ds_read_b128 {v(F+4*w,4)}, {v(VZ)} offset:{L_F+16*w}" for w in range(8)])
        a(f"s_mov_b32 {s(S_M+14)}, {s(S_T3)}")
        a(f"s_lshl_b32 {s(S_T0)}, {s(SZ)}, 10"); a(f"v_add_u32 {v(VA)}, {s(S_T0)}, {v(VA)}")
        a(f"s_lshl_b32 {s(S_T0)}, {s(SZ)}, 7"); a(f"v_add_u32 {v(VB2)}, {s(S_T0)}, {v(VB)}"); a(f"v_lshl_add_u32 {v(T+1)}, v0, 1, {s(S_T0)}")
        if self.touch: a("s_waitcnt vmcnt(0)")
        if self.wdma: wload()
        self.stamp(4)
        a("s_barrier")
        self.stamp(5)
        for w in range(8): a(f"ds_read_b128 {v(W+4*w,4)}, {v(VA)} offset:{L_O+2048*w}")
        for w in range(8):
            self.lgkm(7-w)
            for p in (0, 2):
                if w == 0: a(f"v_pk_mul_f32 {v(SUM+p,2)}, {v(W+p,2)}, {v(F+p,2)}")
                else: a(f"v_pk_fma_f32 {v(SUM+p,2)}, {v(W+4*w+p,2)}, {v(F+4*w+p,2)}, {v(SUM+p,2)}")
        if self.fast: a(f"s_cmp_eq_u32 {s(S_M+14)}, 2")
        self.tag(range(SUM, SUM+4), VT, dst=range(F, F+4))
        if self.fast:
            La, Lb = self.lab("h1l"), self.lab("h1j")
            a(f"s_cbranch_scc1 {La}")
            a(f"buffer_store_dwordx4 {v(F,4)}, {v(VA)}, {s(R0,4)}, {s(SPUB)} offen sc1")
            a(f"s_branch {Lb}")
            a(f"{La}:")
            a(f"buffer_store_dwordx4 {v(F,4)}, {v(VA)}, {s(R0,4)}, {s(SPUB)} offen")
            a(f"{Lb}:")
        else: a(f"buffer_store_dwordx4 {v(F,4)}, {v(VA)}, {s(R0,4)}, {s(SPUB)} offen sc1")
        self.stamp(6)
        pre = late and (self.prepoll or self.wdma)
        if late and not pre: wprep()
        if self.light: self.gather8(loads, VT, HB+4, SUM, VP, SP0, 13, between=(wprep if pre else None))
        else: self.poll(loads, VT, T+3, acc=SUM, between=(wprep if pre else None))
        self.stamp(7)
        self.fold4(SUM)
        a(f"v_cvt_pk_bf16_f32 {v(SUM)}, {v(SUM)}, {v(SUM)}")
        a(f"ds_write_b16 {v(T+1)}, {v(SUM)} offset:{L_OB}")
        a(f"ds_read_b128 {v(W,4)}, {v(VB2)} offset:{L_OB}"); a(f"ds_read_b128 {v(W+4,4)}, {v(VB2)} offset:{L_OB+64}")
        self.lgkm(1)
        for t in range(4): a(f"v_mfma_f32_16x16x32_bf16 {v(DD+4*t,4)}, {v(AW+8*t,4)}, {v(W,4)}, 0")
        self.lgkm(0)
        for t in range(4): a(f"v_mfma_f32_16x16x32_bf16 {v(DD+4*t,4)}, {v(AW+8*t+4,4)}, {v(W+4,4)}, {v(DD+4*t,4)}")
        a("s_mov_b32 exec_lo, 0x10001"); a("s_mov_b32 exec_hi, 0x10001")
        for t in range(4):
            self.tag(range(DD+4*t, DD+4*t+4), VT, dst=range(OUT, OUT+4))
            if t < 3: a("s_lshl_b64 exec, exec, 1")
        a("s_mov_b32 exec_lo, 0xff00ff"); a("s_mov_b32 exec_hi, 0xff00ff")
        a(f"buffer_store_dwordx4 {v(OUT,4)}, {v(VH)}, {s(R0,4)}, {s(SHB)} offen sc1")
        self.stamp(8)
        if self.fast and self.clean:
            a("s_mov_b64 exec, -1")
            a(f"buffer_store_dwordx4 {v(F,4)}, {v(VA)}, {s(R0,4)}, {s(SPUB)} offen sc1")
        if self.diag: a("s_waitcnt vmcnt(0)")
        self.stamp(9)
        self.finish(T)

    def build(self):
        a = self.a
        hdr = open("recurrent_scan__gqa_block_cached__swiglu_ffn__decode.s.ref").read().split("; @launch")[0]
        a(f'.amdgcn_target "amdgcn-amd-amdhsa--gfx950"')
        a(".text"); a(f".globl {KN}"); a(".p2align 8"); a(f".type {KN},@function"); a(f"{KN}:")
        a(f"s_load_dwordx16 {s(4,16)}, s[0:1], 0"); a(f"s_load_dwordx8 {s(20,8)}, s[0:1], 64")
        a("s_cmp_ge_u32 s2, 256"); a("s_cbranch_scc1 Lend")
        if self.diag:
            for k in range(1, 12): a(f"s_mov_b32 {s(S_ST+2*k)}, 0")
        self.stamp(0)
        a("v_lshrrev_b32 v1, 6, v0"); a("v_and_b32 v0, 63, v0"); a(f"v_readfirstlane_b32 {s(S_WAVE)}, v1")
        a(f"s_and_b32 {s(S_H)}, s2, 7"); a(f"s_lshr_b32 {s(S_S)}, s2, 3")
        a(f"s_cmp_ge_u32 {s(S_WAVE)}, 8"); a("s_cbranch_scc1 Lservice")
        self.streamer()
        a("Lservice:")
        if self.prio: a("s_setprio 3")
        a(f"s_mov_b32 {s(S_HI)}, 0xffff0000"); a(f"s_mov_b32 {s(S_TM)}, 0xfff")
        self.stage1()
        a(f"s_cmp_eq_u32 {s(S_WAVE)}, 9"); a("s_cbranch_scc1 Lsw1")
        a(f"s_cmp_gt_u32 {s(S_WAVE)}, 9"); a("s_cbranch_scc1 Lsw23")
        self.sw0()
        a("Lsw23:"); self.sw23()
        a("Lsw1:"); self.sw1()
        a("Lend:"); a("s_endpgm")
        a("Lcode_end:")
        a(".fill 64, 4, 0xbf800000")
        a('.section .rodata,"a"'); a(".p2align 6"); a(f".amdhsa_kernel {KN}")
        for d in ("next_free_vgpr 168", "next_free_sgpr 102", "accum_offset 168", "group_segment_fixed_size 0", "kernarg_size 96",
                  "user_sgpr_count 2", "user_sgpr_kernarg_segment_ptr 1", "system_sgpr_workgroup_id_x 1", "float_denorm_mode_32 3"):
            a(f".amdhsa_{d}")
        a(".end_amdhsa_kernel")
        return hdr + f"; @launch grid=(256,1,1) block=(768,1,1) lds={LDS_BYTES + self.ldspad}\n" + a.finalize()

def gen(**kw): return G(**kw).build()
if __name__ == "__main__":
    kw = eval("dict(" + (sys.argv[2] if len(sys.argv) > 2 else "") + ")")
    open(sys.argv[1], "w").write(gen(**kw))
```

```python
import sys
from asmlib import Asm
KN = "recurrent_scan__gqa_block_cached__swiglu_ffn__decode_kernel"

EPOCH = 0
QBOX, MLBOX, PBOX, GBOX, OBOX, HBOX = 0x1000, 0x9000, 0xB000, 0x10000, 0x20000, 0xA0000
WS_USED = 0xE0000
STAMP = 128 << 20
L_QFLAG, L_MLCNT, L_FFLAG, L_S1CNT, L_PROG, L_HFLAG, L_ACNT, L_WCNT = 0, 4, 8, 12, 16, 20, 24, 28
L_CNT, L_BOOST = 32, 40
L_ML, L_F, L_H, L_Q, L_S1, L_OB, L_O = 64, 320, 448, 512, 1536, 2560, 2816
OSTR = 16*144
L_W = L_O + 8*OSTR
L_A = L_O
LDS_BYTES = L_W + 2*12288
SPIN = 1 << 16

LOG2E = 0x3fb8aa3b
SCALE = 0x3db504f3
EPS = 0x3727c5ac

def v(i, n=1): return f"v{i}" if n == 1 else f"v[{i}:{i+n-1}]"
def s(i, n=1): return f"s{i}" if n == 1 else f"s[{i}:{i+n-1}]"

S_WG, S_WAVE = 2, 3
P_X, P_K, P_V, P_WQ, P_WO, P_BX, P_WG, P_WU, P_WD, P_OUT, P_DBG, P_WS = range(4, 28, 2)
R0, R1, R2, R3, R4 = 28, 32, 36, 40, 44
S_H, S_S = 48, 49
S_T0, S_T1, S_T2, S_T3 = 50, 51, 52, 53
S_HI, S_TM, S_LO, S_HIS = 54, 55, 56, 57
S_CNT, S_E = 58, 59
S_M = 60
S_ST = 76

class G:
    def __init__(self, D=3, D2=3, nD2=58, n0=28, il=12, kvpol="nt", wpol="nt", diag=0, pf=1, nq=20, nm=56, g_trig=44,
                 outpol="sc1", prio=1, touch=0, cut=0, amp=None, trace=0, ramp=None, wpos=64, apos=1, smooth=1, wlate=0, prepoll=0, fast=1, clean=0, wdma=1, rot=1, agap=2, light=0, ldspad=0, hsleep=0, pipe=1, wsplit=12, wtouch=0, otouch=0, ctl=1, qk2=1):
        self.__dict__.update(locals()); del self.__dict__['self']
        self.a = Asm(); self.nlab = 0
        assert self.wdma
        if self.ctl == 1: self.ctl = dict(to=68, bth=0, bg=0.5, bcap=5, tth=4, tg=0.15, tcap=0, lead=0, **{'from': 8})
    def lab(self, p):
        self.nlab += 1; return f"L{p}{self.nlab}"
    def srd(self, r, ptr, size):
        a = self.a
        a(f"s_mov_b32 {s(r)}, {s(ptr)}"); a(f"s_mov_b32 {s(r+1)}, {s(ptr+1)}")
        a(f"s_mov_b32 {s(r+2)}, {size:#x}"); a(f"s_mov_b32 {s(r+3)}, 0x20000")
    def stamp(self, k):
        if self.diag or self.amp: self.a(f"s_memrealtime {s(S_ST+2*k,2)}")
    def lgkm(self, n):
        self.a(f"s_waitcnt lgkmcnt({0 if (self.diag or self.amp) else n})")
    def finish(self, vt):
        a = self.a
        if self.diag:
            a("s_waitcnt lgkmcnt(0)")
            a(f"s_mul_i32 {s(S_T0)}, {s(S_WG)}, 12"); a(f"s_add_u32 {s(S_T0)}, {s(S_T0)}, {s(S_WAVE)}")
            a(f"s_lshl_b32 {s(S_T0)}, {s(S_T0)}, 6"); a(f"s_add_u32 {s(S_T0)}, {s(S_T0)}, {STAMP:#x}")
            a("s_mov_b64 exec, 1")
            a(f"v_mov_b32 {v(vt)}, {s(S_T0)}")
            for k in range(12):
                a(f"v_mov_b32 {v(vt+1)}, {s(S_ST+2*k)}")
                a(f"global_store_dword {v(vt)}, {v(vt+1)}, {s(P_WS,2)} offset:{4*k}")
            a("s_waitcnt vmcnt(0)")
        a("s_endpgm")
    def unpack(self, lo, hi, src):
        self.a(f"v_lshlrev_b32 {v(lo)}, 16, {v(src)}"); self.a(f"v_and_b32 {v(hi)}, {s(S_HI)}, {v(src)}")
    def rbf1(self, dst, src):
        self.a(f"v_cvt_pk_bf16_f32 {v(dst)}, {v(src)}, {v(src)}"); self.a(f"v_and_b32 {v(dst)}, {s(S_HI)}, {v(dst)}")
    def rbf2(self, d0, d1, s0, s1, t):
        self.a(f"v_cvt_pk_bf16_f32 {v(t)}, {v(s0)}, {v(s1)}"); self.unpack(d0, d1, t)
    def ror(self, op, regs, steps):
        for n in steps:
            for r in regs: self.a(f"{op}_dpp {v(r)}, {v(r)}, {v(r)} row_ror:{n} row_mask:0xf bank_mask:0xf")
    def rows_all(self, op, x, t):
        a = self.a
        for sw in ("v_permlane16_swap_b32", "v_permlane32_swap_b32"):
            a(f"v_mov_b32 {v(t)}, {v(x)}"); a(f"{sw} {v(x)}, {v(t)}"); a(f"{op} {v(x)}, {v(x)}, {v(t)}")
    def fold(self, sw, pairs):
        for x, y in pairs: self.a(f"{sw} {v(x)}, {v(y)}")
        for x, y in pairs: self.a(f"v_add_f32 {v(x)}, {v(x)}, {v(y)}")
    def fold4(self, x):
        self.fold("v_permlane32_swap_b32", [(x, x+2), (x+1, x+3)])
        self.fold("v_permlane16_swap_b32", [(x, x+1)])
    def silu_bf(self, dst, x, t):
        a = self.a
        a(f"v_mul_f32 {v(t)}, {0x80000000 ^ LOG2E:#x}, {v(x)}"); a(f"v_exp_f32 {v(t)}, {v(t)}")
        a(f"v_add_f32 {v(t)}, 1.0, {v(t)}"); a(f"v_rcp_f32 {v(t)}, {v(t)}"); a(f"v_mul_f32 {v(t)}, {v(x)}, {v(t)}")
        self.rbf1(dst, t)
    def layernorm(self, X, XF, T):
        a = self.a
        for k in range(4): self.unpack(XF+2*k, XF+2*k+1, X+k)
        a(f"v_add_f32 {v(T)}, {v(XF)}, {v(XF+1)}")
        for k in range(2, 8): a(f"v_add_f32 {v(T)}, {v(T)}, {v(XF+k)}")
        self.ror("v_add_f32", [T], (8, 4, 2, 1)); self.rows_all("v_add_f32", T, T+1)
        a(f"v_mul_f32 {v(T)}, 0x3b000000, {v(T)}")
        a(f"v_sub_f32 {v(T+2)}, {v(XF)}, {v(T)}"); a(f"v_mul_f32 {v(T+3)}, {v(T+2)}, {v(T+2)}")
        for k in range(1, 8):
            a(f"v_sub_f32 {v(T+2)}, {v(XF+k)}, {v(T)}"); a(f"v_fmac_f32 {v(T+3)}, {v(T+2)}, {v(T+2)}")
        self.ror("v_add_f32", [T+3], (8, 4, 2, 1)); self.rows_all("v_add_f32", T+3, T+1)
        a(f"v_mul_f32 {v(T+3)}, 0x3b000000, {v(T+3)}")
        self.rbf2(T, T+3, T, T+3, T+1)
        a(f"v_add_f32 {v(T+3)}, {EPS:#x}, {v(T+3)}"); self.rbf1(T+3, T+3)
        a(f"v_sqrt_f32 {v(T+3)}, {v(T+3)}"); self.rbf1(T+3, T+3)
        a(f"v_rcp_f32 {v(T+2)}, {v(T+3)}")
        for k in range(8): a(f"v_sub_f32 {v(XF+k)}, {v(XF+k)}, {v(T)}")
        for k in range(4): self.rbf2(XF+2*k, XF+2*k+1, XF+2*k, XF+2*k+1, T+1)
        for k in range(8):
            a(f"v_mul_f32 {v(T+4)}, {v(XF+k)}, {v(T+2)}")
            a(f"v_fma_f32 {v(T+5)}, -{v(T+4)}, {v(T+3)}, {v(XF+k)}")
            a(f"v_fma_f32 {v(XF+k)}, {v(T+5)}, {v(T+2)}, {v(T+4)}")
        for k in range(4): self.rbf2(XF+2*k, XF+2*k+1, XF+2*k, XF+2*k+1, T+1)
    def tag(self, regs, vT, dst=None):
        for i, r in enumerate(regs):
            d = r if dst is None else dst[i]
            self.a(f"v_bfi_b32 {v(d)}, {s(S_TM)}, {v(vT)}, {v(r)}")
    def poll(self, loads, vT, t, acc=None, between=None, quad=False):
        a = self.a; L = self.lab("poll"); Lo = self.lab("pollx")
        if between:
            Lc = self.lab("pollc")
            for ld in loads: a(ld[0])
            between()
            a(f"s_mov_b32 {s(S_CNT)}, {SPIN}")
            a(f"s_branch {Lc}")
        else: a(f"s_mov_b32 {s(S_CNT)}, {SPIN}")
        a(f"{L}:")
        for ld in loads: a(ld[0])
        if between: a(f"{Lc}:")
        first = True
        for j, (_, r0, n) in enumerate(loads):
            a(f"s_waitcnt vmcnt({len(loads)-1-j})")
            for w in range(r0, r0+n):
                if first: a(f"v_xor_b32 {v(t)}, {v(w)}, {v(vT)}"); first = False
                else: a(f"v_bitop3_b32 {v(t)}, {v(w)}, {v(vT)}, {v(t)} bitop3:0xbe")
            if j == len(loads) - 1:
                if quad:
                    for p in ("[1,0,3,2]", "[2,3,0,1]"): a(f"v_or_b32_dpp {v(t)}, {v(t)}, {v(t)} quad_perm:{p} row_mask:0xf bank_mask:0xf")
                a(f"v_and_b32 {v(t)}, {s(S_TM)}, {v(t)}")
                a(f"v_cmp_ne_u32 vcc, 0, {v(t)}")
            if acc is not None and j >= 1:
                p = loads[0][1] if j == 1 else acc
                a(f"v_pk_add_f32 {v(acc,2)}, {v(p,2)}, {v(r0,2)}"); a(f"v_pk_add_f32 {v(acc+2,2)}, {v(p+2,2)}, {v(r0+2,2)}")
        a(f"s_sub_u32 {s(S_CNT)}, {s(S_CNT)}, 1")
        a(f"s_cbranch_scc1 {Lo}")
        a("s_mov_b64 exec, vcc")
        if acc is not None and self.hsleep:
            a(f"s_cbranch_execz {Lo}"); a(f"s_sleep {self.hsleep}"); a(f"s_branch {L}")
        else: a(f"s_cbranch_execnz {L}")
        a(f"{Lo}:")
        a("s_mov_b64 exec, -1")
    def poll2(self, X, Y, vT, t, acc, between=None):
        a = self.a; L = self.lab("pp"); Lo = self.lab("ppx")
        n = len(X)
        def check(loads, out=2):
            first = True
            for j, (_, r0, nr) in enumerate(loads):
                a(f"s_waitcnt vmcnt({out*n-1-j})")
                for w in range(r0, r0+nr):
                    if first: a(f"v_xor_b32 {v(t)}, {v(w)}, {v(vT)}"); first = False
                    else: a(f"v_bitop3_b32 {v(t)}, {v(w)}, {v(vT)}, {v(t)} bitop3:0xbe")
                if j == n - 1:
                    a(f"v_and_b32 {v(t)}, {s(S_TM)}, {v(t)}")
                    a(f"v_cmp_ne_u32 vcc, 0, {v(t)}")
                if j >= 1:
                    p = loads[0][1] if j == 1 else acc
                    a(f"v_pk_add_f32 {v(acc,2)}, {v(p,2)}, {v(r0,2)}"); a(f"v_pk_add_f32 {v(acc+2,2)}, {v(p+2,2)}, {v(r0+2,2)}")
            a("s_mov_b64 exec, vcc")
        for ld in X: a(ld[0])
        if between:
            between()
            check(X, 1)
            a(f"s_cbranch_execz {Lo}")
            for ld in X: a(ld[0])
        a(f"s_mov_b32 {s(S_CNT)}, {SPIN}")
        a(f"{L}:")
        for ld in Y: a(ld[0])
        check(X)
        a(f"s_cbranch_execz {Lo}")
        for ld in X: a(ld[0])
        check(Y)
        a(f"s_sub_u32 {s(S_CNT)}, {s(S_CNT)}, 1")
        a(f"s_cbranch_scc1 {Lo}")
        a(f"s_cbranch_execnz {L}")
        a(f"{Lo}:")
        a("s_mov_b64 exec, -1")
    def gather8(self, loads, vT, t, acc, vaddr, soff, lg, between=None):
        a = self.a; L = self.lab("lp"); Lo = self.lab("lpx")
        P, R, J, B, A = t+1, t+2, t+3, t+4, t+5
        for ld in loads: a(ld[0])
        if between: between()
        first = True
        for j, (_, r0, n) in enumerate(loads):
            a(f"s_waitcnt vmcnt({len(loads)-1-j})")
            for w in range(r0, r0+n):
                if first: a(f"v_xor_b32 {v(t)}, {v(w)}, {v(vT)}"); first = False
                else: a(f"v_bitop3_b32 {v(t)}, {v(w)}, {v(vT)}, {v(t)} bitop3:0xbe")
            if j == len(loads) - 1:
                a(f"v_and_b32 {v(t)}, {s(S_TM)}, {v(t)}")
                a(f"v_cmp_ne_u32 vcc, 0, {v(t)}")
            if j >= 1:
                p = loads[0][1] if j == 1 else acc
                a(f"v_pk_add_f32 {v(acc,2)}, {v(p,2)}, {v(r0,2)}"); a(f"v_pk_add_f32 {v(acc+2,2)}, {v(p+2,2)}, {v(r0+2,2)}")
        a(f"s_cbranch_vccz {Lo}")
        for r in range(acc, acc+4): a(f"v_mov_b32 {v(r)}, 0")
        a(f"v_mov_b32 {v(P)}, 0")
        def check(q):
            a(f"v_xor_b32 {v(t)}, {v(q)}, {v(vT)}")
            for w in range(q+1, q+4): a(f"v_bitop3_b32 {v(t)}, {v(w)}, {v(vT)}, {v(t)} bitop3:0xbe")
            a(f"v_and_b32 {v(t)}, {s(S_TM)}, {v(t)}")
            a(f"v_cmp_eq_u32 vcc, 0, {v(t)}")
        for j, (_, r0, n) in enumerate(loads):
            check(r0)
            a("s_mov_b64 exec, vcc")
            a(f"v_pk_add_f32 {v(acc,2)}, {v(acc,2)}, {v(r0,2)}"); a(f"v_pk_add_f32 {v(acc+2,2)}, {v(acc+2,2)}, {v(r0+2,2)}")
            a("s_not_b64 exec, vcc")
            a(f"v_or_b32 {v(P)}, {1 << j}, {v(P)}")
            a("s_mov_b64 exec, -1")
        Q = loads[0][1]
        a(f"v_mov_b32 {v(R)}, {v(P)}")
        a(f"v_cmp_ne_u32 vcc, 0, {v(P)}")
        a(f"s_mov_b32 {s(S_CNT)}, {SPIN*4}")
        a("s_mov_b64 exec, vcc")
        a(f"{L}:")
        a(f"v_ffbl_b32 {v(J)}, {v(R)}")
        a(f"v_lshl_add_u32 {v(A)}, {v(J)}, {lg}, {v(vaddr)}")
        a(f"buffer_load_dwordx4 {v(Q,4)}, {v(A)}, {s(R0,4)}, {s(soff)} offen sc1")
        a(f"v_lshlrev_b32 {v(B)}, {v(J)}, 1")
        a(f"v_xor_b32 {v(R)}, {v(R)}, {v(B)}")
        a(f"s_sub_u32 {s(S_CNT)}, {s(S_CNT)}, 1")
        a(f"s_cbranch_scc1 {Lo}")
        a("s_waitcnt vmcnt(0)")
        check(Q)
        a(f"s_and_saveexec_b64 {s(S_T2,2)}, vcc")
        a(f"v_xor_b32 {v(P)}, {v(P)}, {v(B)}")
        a(f"v_pk_add_f32 {v(acc,2)}, {v(acc,2)}, {v(Q,2)}"); a(f"v_pk_add_f32 {v(acc+2,2)}, {v(acc+2,2)}, {v(Q+2,2)}")
        a(f"s_mov_b64 exec, {s(S_T2,2)}")
        a(f"v_cmp_eq_u32 {s(S_T2,2)}, 0, {v(R)}")
        a(f"v_cmp_ne_u32 vcc, 0, {v(P)}")
        a(f"v_cndmask_b32 {v(R)}, {v(R)}, {v(P)}, {s(S_T2,2)}")
        a("s_mov_b64 exec, vcc")
        a(f"s_cbranch_execnz {L}")
        a(f"{Lo}:")
        a("s_mov_b64 exec, -1")
    def lds_wait(self, off, val, vz, t, extra=(), sleep=1):
        a = self.a; L = self.lab("lw"); Lo = self.lab("lwx")
        a(f"s_mov_b32 {s(S_CNT)}, {SPIN*16}")
        a(f"{L}:")
        a(f"ds_read_b32 {v(t)}, {v(vz)} offset:{off}")
        for e in extra: a(e)
        a("s_waitcnt lgkmcnt(0)")
        a(f"v_readfirstlane_b32 {s(S_T3)}, {v(t)}")
        a(f"s_cmp_ge_u32 {s(S_T3)}, {val}")
        a(f"s_cbranch_scc1 {Lo}")
        a(f"s_sub_u32 {s(S_CNT)}, {s(S_CNT)}, 1")
        a(f"s_cbranch_scc1 {Lo}")
        if sleep: a(f"s_sleep {sleep}")
        a(f"s_branch {L}")
        a(f"{Lo}:")
    def trig(self, what, vz, t):
        if what == "q": self.lds_wait(L_QFLAG, 1, vz, t)
        elif what == "ml": self.lds_wait(L_MLCNT, 8, vz, t)
        elif isinstance(what, int) and what > 0: self.lds_wait(L_PROG, what, vz, t)
    def streamer(self):
        a = self.a
        VK, VV, VZ, VT, VT2 = 1, 2, 3, 4, 5
        Q, S, DT, KB = 8, 12, 20, 36
        slot = lambda i: KB + 4*i
        ACC, AO, B = slot(16), slot(18), slot(23)
        SB = S_T0
        a(f"s_lshl_b32 {s(SB)}, {s(S_H)}, 23"); a(f"s_lshl_b32 {s(S_T1)}, {s(S_S)}, 18"); a(f"s_or_b32 {s(SB)}, {s(SB)}, {s(S_T1)}")
        a(f"s_lshl_b32 {s(S_T1)}, {s(S_WAVE)}, {self.il}"); a(f"s_or_b32 {s(SB)}, {s(SB)}, {s(S_T1)}")
        if self.rot == 1: a(f"s_lshl_b32 {s(S_M+9)}, {s(S_S)}, 15")
        if self.rot == 2: a(f"s_add_u32 {s(S_M+9)}, {s(S_S)}, {s(S_H)}"); a(f"s_lshl_b32 {s(S_M+9)}, {s(S_M+9)}, 15")
        a(f"v_lshlrev_b32 {v(VV)}, 4, v0")
        a(f"v_and_b32 {v(VT)}, 0xc0, {v(VV)}"); a(f"v_lshlrev_b32 {v(VT)}, 2, {v(VT)}")
        a(f"v_lshrrev_b32 {v(VK)}, 4, v0"); a(f"v_lshlrev_b32 {v(VK)}, 6, {v(VK)}")
        a(f"v_and_b32 {v(VT2)}, 48, {v(VV)}")
        a(f"v_or3_b32 {v(VK)}, {v(VK)}, {v(VT)}, {v(VT2)}")
        a(f"v_mov_b32 {v(VZ)}, 0")
        a("s_waitcnt lgkmcnt(0)")
        self.srd(R0, P_K, 0x4000000); self.srd(R1, P_V, 0x4000000)
        def off(i):
            if self.il == 12: return (i >> 2) * 32768, (i & 3) * 1024
            return i * 8192, 0
        last_so = [None]
        VWA, VWD = 6, 7
        SA, SW0, SW1, SSTR = S_M+5, S_M+6, S_M+7, S_M+4
        def regs(it):
            k, i = it
            return {'K': slot(i), 'V': slot(i % 16), 'A': slot(28 + i), 'W': (DT + 4*i if self.wpos > 40 else slot(28 + i))}[k]
        def setup_a():
            a(f"s_lshr_b32 {s(S_M)}, {s(S_WAVE)}, 1")
            self.s1_geom(True)
            a(f"s_and_b32 {s(S_T3)}, {s(S_WAVE)}, 1"); a(f"s_lshl_b32 {s(S_T3)}, {s(S_T3)}, 2"); a(f"s_add_u32 {s(S_T3)}, {s(S_T3)}, {s(S_M+3)}")
            a(f"s_mul_i32 {s(S_T3)}, {s(S_T3)}, {s(SSTR)}"); a(f"s_lshl_b32 {s(SA)}, {s(S_T2)}, 7"); a(f"s_add_u32 {s(SA)}, {s(SA)}, {s(S_T3)}")
            a(f"v_and_b32 {v(VT)}, 56, v0"); a(f"v_mul_u32_u24 {v(VT)}, {s(SSTR)}, {v(VT)}")
            a(f"v_and_b32 {v(VT2)}, 0x70, {v(VV)}"); a(f"v_add_u32 {v(VWA)}, {v(VT)}, {v(VT2)}")
        def setup_w():
            a(f"s_and_b32 {s(S_T2)}, {s(S_S)}, 3"); a(f"s_lshl_b32 {s(S_T2)}, {s(S_T2)}, 1"); a(f"s_lshr_b32 {s(S_T3)}, {s(S_WAVE)}, 2")
            a(f"s_add_u32 {s(S_T2)}, {s(S_T2)}, {s(S_T3)}"); a(f"s_lshl_b32 {s(S_T2)}, {s(S_T2)}, 7")
            a(f"s_lshl_b32 {s(SW0)}, {s(S_H)}, 19"); a(f"s_lshr_b32 {s(S_T3)}, {s(S_S)}, 2"); a(f"s_lshl_b32 {s(S_T3)}, {s(S_T3)}, 10")
            a(f"s_add_u32 {s(SW0)}, {s(SW0)}, {s(S_T3)}"); a(f"s_add_u32 {s(SW0)}, {s(SW0)}, {s(S_T2)}")
            self.fblock(SW1, S_T3)
            a(f"s_lshl_b32 {s(SW1)}, {s(SW1)}, 15"); a(f"s_add_u32 {s(SW1)}, {s(SW1)}, {s(S_T2)}")
            a(f"s_and_b32 {s(S_T2)}, {s(S_WAVE)}, 3")
            a(f"s_lshl_b32 {s(S_T3)}, {s(S_T2)}, 16"); a(f"s_add_u32 {s(SW0)}, {s(SW0)}, {s(S_T3)}")
            a(f"s_lshl_b32 {s(S_T3)}, {s(S_T2)}, 13"); a(f"s_add_u32 {s(SW1)}, {s(SW1)}, {s(S_T3)}")
            self.srd(R2, P_WO, 0x400000); self.srd(R3, P_WD, 0x1c0000)
            a(f"v_lshrrev_b32 {v(VT)}, 3, v0"); a(f"v_and_b32 {v(VT2)}, 0x70, {v(VV)}")
            a(f"v_lshl_add_u32 {v(VWD)}, {v(VT)}, 10, {v(VT2)}"); a(f"v_lshl_add_u32 {v(VWA)}, {v(VT)}, 13, {v(VT2)}")
        def load(it):
            k, i = it
            r = v(regs(it), 4)
            if k in 'KV':
                so, imm = off(i)
                if so != last_so[0]:
                    if self.rot:
                        a(f"s_add_u32 {s(S_T1)}, {s(S_M+9)}, {so}"); a(f"s_and_b32 {s(S_T1)}, {s(S_T1)}, 0x38000"); a(f"s_or_b32 {s(S_T1)}, {s(S_T1)}, {s(SB)}")
                    else: a(f"s_add_u32 {s(S_T1)}, {s(SB)}, {so}")
                    last_so[0] = so
                a(f"buffer_load_dwordx4 {r}, {v(VV if k == 'V' else VK)}, {s(R1 if k == 'V' else R0,4)}, {s(S_T1)} offen offset:{imm} {self.kvpol}")
            elif k == 'A':
                if i == 0: setup_a()
                a(f"buffer_load_dwordx4 {r}, {v(VWA)}, {s(R2,4)}, {s(SA)} offen {self.wpol}")
                if i < 3: a(f"s_add_u32 {s(SA)}, {s(SA)}, {s(SSTR)}")
            else:
                if i < 2: a(f"buffer_load_dwordx4 {r}, {v(VWA)}, {s(R2,4)}, {s(SW0)} offen {self.wpol}")
                else: a(f"buffer_load_dwordx4 {r}, {v(VWD)}, {s(R3,4)}, {s(SW1)} offen {self.wpol}")
                if i == 0: a(f"s_add_u32 {s(SW0)}, {s(SW0)}, 0x40000")
        def count(off_):
            a(f"v_mov_b32 {v(VT2)}, 1"); a("s_mov_b64 exec, 1"); a(f"ds_add_u32 {v(VZ)}, {v(VT2)} offset:{off_}"); a("s_mov_b64 exec, -1")
        def put_a():
            a(f"s_lshl_b32 {s(S_T2)}, {s(S_WAVE)}, 12"); a(f"v_add_u32 {v(VT)}, {s(S_T2)}, {v(VV)}")
            for i in range(4): a(f"ds_write_b128 {v(VT)}, {v(regs(('A', i)),4)} offset:{L_A + 1024*i}")
            count(L_ACNT)
            if not self.wdma: setup_w()
        def put_w():
            a(f"s_lshr_b32 {s(S_T2)}, {s(S_WAVE)}, 2"); a(f"s_mul_i32 {s(S_T2)}, {s(S_T2)}, 12288")
            a(f"s_and_b32 {s(S_T3)}, {s(S_WAVE)}, 3"); a(f"s_lshl_b32 {s(S_T3)}, {s(S_T3)}, 10"); a(f"s_add_u32 {s(S_T2)}, {s(S_T2)}, {s(S_T3)}")
            a(f"v_add_u32 {v(VT)}, {s(S_T2)}, {v(VV)}")
            for i in range(3): a(f"ds_write_b128 {v(VT)}, {v(regs(('W', i)),4)} offset:{L_W + 4096*i}")
            count(L_WCNT)
        def qk(j):
            for m in range(4):
                a(f"v_mfma_f32_16x16x32_bf16 {v(DT+4*m,4)}, {v(slot(4*j+m),4)}, {v(Q,4)}, 0")
            if self.qk2:
                if j == 0:
                    for m in range(1, 4):
                        a(f"s_mov_b32 {s(P_X+2*m)}, {(15 << 4*m) * 0x10001:#x}"); a(f"s_mov_b32 {s(P_X+2*m+1)}, {(15 << 4*m) * 0x10001:#x}")
                for k in range(1, 4):
                    for m in range(4):
                        b = (m + k) & 3
                        a(f"v_add_f32_dpp {v(DT+5*m)}, {v(DT+4*m+b)}, {v(DT+5*m)} row_ror:{(4*(m-b)) & 15} row_mask:0xf bank_mask:0xf")
                for m in range(1, 4):
                    a(f"v_cndmask_b32 {v(S+j)}, {v(DT if m == 1 else S+j)}, {v(DT+5*m)}, {s(P_X+2*m,2)}")
                return
            for k in range(1, 4):
                for m in range(4):
                    b = (m + k) & 3
                    other = DT+4*m+m if k == 1 else S+j
                    a(f"v_add_f32_dpp {v(S+j)}, {v(DT+4*m+b)}, {v(other)} row_ror:{(4*(m-b)) & 15} row_mask:0xf bank_mask:{1<<m:#x}")
        M, Lr = DT, DT+1
        def sm_scale(k):
            if k == 0: a(f"s_mov_b32 {s(S_M+8)}, {SCALE:#x}")
            x, y = S+2*k, S+2*k+1
            self.rbf2(x, y, x, y, VT)
            a(f"v_mul_f32 {v(x)}, {s(S_M+8)}, {v(x)}"); a(f"v_mul_f32 {v(y)}, {s(S_M+8)}, {v(y)}")
            self.rbf2(x, y, x, y, VT)
        def sm_max():
            a(f"v_max3_f32 {v(M)}, {v(S)}, {v(S+1)}, {v(S+2)}"); a(f"v_max3_f32 {v(M)}, {v(M)}, {v(S+3)}, {v(S+4)}")
            a(f"v_max3_f32 {v(M)}, {v(M)}, {v(S+5)}, {v(S+6)}"); a(f"v_max_f32 {v(M)}, {v(M)}, {v(S+7)}")
            self.ror("v_max_f32", [M], (4, 8)); self.rows_all("v_max_f32", M, VT)
        def sm_exp():
            a(f"s_mov_b32 {s(S_T2)}, {LOG2E:#x}")
            for k in range(8): a(f"v_sub_f32 {v(S+k)}, {v(S+k)}, {v(M)}")
            for k in range(8): a(f"v_mul_f32 {v(S+k)}, {s(S_T2)}, {v(S+k)}")
            for k in range(8): a(f"v_exp_f32 {v(S+k)}, {v(S+k)}")
        def sm_sum():
            a(f"v_add_f32 {v(Lr)}, {v(S)}, {v(S+1)}")
            for k in range(2, 8): a(f"v_add_f32 {v(Lr)}, {v(Lr)}, {v(S+k)}")
            self.ror("v_add_f32", [Lr], (4, 8)); self.rows_all("v_add_f32", Lr, VT)
            a(f"s_lshl_b32 {s(S_T2)}, {s(S_WAVE)}, 5")
            a(f"v_lshl_add_u32 {v(VT)}, v0, 2, {s(S_T2)}"); a(f"v_mov_b32 {v(VT2)}, 1")
            a("s_mov_b64 exec, 15")
            a(f"ds_write2_b32 {v(VT)}, {v(M)}, {v(Lr)} offset0:{L_ML//4} offset1:{L_ML//4+4}")
            a("s_mov_b64 exec, 1")
            a(f"ds_add_u32 {v(VZ)}, {v(VT2)} offset:{L_MLCNT}")
            a("s_mov_b64 exec, -1")
        def zero_acc():
            a(f"s_mul_i32 {s(S_T2)}, {s(S_WAVE)}, {OSTR}")
            a(f"v_and_b32 {v(VT)}, 15, v0"); a(f"v_mul_u32_u24 {v(VT)}, 144, {v(VT)}"); a(f"v_and_b32 {v(VWD)}, 48, v0")
            a(f"v_add3_u32 {v(VWD)}, {v(VWD)}, {v(VT)}, {s(S_T2)}")
            for r in range(ACC, ACC+8): a(f"v_mov_b32 {v(r)}, 0")
            for r in range(AO, AO+16): a(f"v_mov_b32 {v(r)}, 0")
        def build_a(j):
            a(f"v_cvt_pk_bf16_f32 {v(VT)}, {v(S+2*j)}, {v(S+2*j+1)}")
            for m in range(4):
                for e in range(4):
                    n = (4*(e-m)) & 15
                    ctl = f"row_ror:{n}" if n else "quad_perm:[0,1,2,3]"
                    a(f"v_mov_b32_dpp {v(AO+4*e+m)}, {v(VT)} {ctl} row_mask:0xf bank_mask:{1<<e:#x}")
        def perm1(j, m, e):
            lo, hi = slot((8*j+m) % 16), slot((8*j+4+m) % 16)
            a(f"v_perm_b32 {v(B+4*e+m)}, {v(hi+(e>>1))}, {v(lo+(e>>1))}, {s(S_HIS if e & 1 else S_LO)}")
        def mfma_pv(e):
            acc = ACC + 4*(e >> 2)
            a(f"v_mfma_f32_16x16x32_bf16 {v(acc,4)}, {v(AO+4*(e&3),4)}, {v(B+4*e,4)}, {v(acc,4)}")
        def pv_last(j):
            order = [0, 4, 1, 5, 2, 6, 3, 7]
            for k in range(3): perm1(j, 3, order[k])
            for k in range(8):
                mfma_pv(order[k])
                if k + 3 < 8: perm1(j, 3, order[k+3])
        def qwait():
            a(f"v_and_b32 {v(VT2)}, 3, v0"); a(f"v_lshlrev_b32 {v(VT2)}, 8, {v(VT2)}")
            a(f"v_and_b32 {v(VT)}, 0xc0, {v(VV)}"); a(f"v_lshrrev_b32 {v(VT)}, 2, {v(VT)}")
            a(f"v_and_b32 {v(DT)}, 0x300, {v(VV)}"); a(f"v_lshrrev_b32 {v(DT)}, 2, {v(DT)}")
            a(f"v_or3_b32 {v(VT2)}, {v(VT2)}, {v(VT)}, {v(DT)}")
            self.stamp(2)
            if not self.cut: self.lds_wait(L_QFLAG, 1, VZ, VT, [f"ds_read_b128 {v(Q,4)}, {v(VT2)} offset:{L_Q}"])
            self.stamp(3)
        kv = [('K', i) for i in range(32)] + [('V', i) for i in range(32)]
        seq = kv[:self.apos] + [('A', i) for i in range(4)] + kv[self.apos:self.wpos] + [('W', i) for i in range(0 if self.wdma else 3)] + kv[self.wpos:]
        if self.agap:
            seq = [x for x in seq if x[0] != 'A']
            for i in range(4): seq.insert(self.apos + i*(self.agap + 1), ('A', i))
        pos = {it: n for n, it in enumerate(seq)}
        N = len(seq)
        def owrite():
            self.stamp(7)
            pv_last(3)
            a(f"ds_write_b128 {v(VWD)}, {v(ACC,4)} offset:{L_O}")
            a(f"ds_write_b128 {v(VWD)}, {v(ACC+4,4)} offset:{L_O+64}")
            a("s_waitcnt lgkmcnt(0)")
            a("s_barrier")
        p0 = pos[('K', self.n0)]
        tasks = [(p0, -1, [], qwait)]
        for j in range(8):
            tasks.append((p0 + j, pos[('K', 4*j+3)], [('K', 4*j+m) for m in range(4)], lambda j=j: qk(j)))
            if j & 1: tasks.append((0, -1, [], lambda j=j: sm_scale(j >> 1)))
        for f in (sm_max, sm_exp, sm_sum, zero_acc): tasks.append(('next', -1, [], f))
        for j in range(4):
            tasks.append(('next', -1, [], lambda j=j: build_a(j)))
            for m in range(3): tasks.append(('next', pos[('V', 8*j+4+m)], [('V', 8*j+m), ('V', 8*j+4+m)], lambda j=j, m=m: [perm1(j, m, e) for e in range(8)]))
            tasks.append(('next', pos[('V', 8*j+7)], [('V', 8*j+3), ('V', 8*j+7)], (lambda j=j: pv_last(j)) if j < 3 else owrite))
        side = [(0, pos[('A', 3)], [('A', i) for i in range(4)], put_a)]
        if not self.wdma: side.append((0, pos[('W', 2)], [('W', i) for i in range(3)], put_w))
        trigs = {pos[kv[t]]: t for t in (self.nq, self.nm, self.g_trig) if isinstance(t, int) and t > 0}
        def Dn(n):
            if self.ramp and n < len(self.ramp): return self.ramp[n]
            return self.D2 if (self.D2 and n >= self.nD2) else self.D
        nbar = (self.ramp[0] if self.ramp else self.D) - 1
        busy = {}; landed = -1
        def run(n):
            for q in (side, tasks):
                did = False
                while q and q[0][1] <= landed:
                    e = q[0][0]
                    if e == 'next':
                        if did and n < 99 and self.smooth: break
                    elif e > n: break
                    t = q.pop(0); t[3](); did = True
                    for x in t[2]: busy.pop(regs(x))
        NM = N - 3 if self.wlate else N
        SK, SJ, VB, V1 = S_M+10, S_M+11, 164, 167
        if self.ctl:
            a(f"s_mov_b32 {s(SK)}, 0"); a(f"s_mov_b32 {s(SJ)}, 0"); a(f"v_mov_b32 {v(V1)}, 1")
        for n in range(NM):
            if self.ctl and self.ctl['from'] <= n < self.ctl['to']:
                Lb = self.lab("win"); D = Dn(n)
                if n - D - 1 > landed: a(f"s_waitcnt vmcnt({D})"); landed = n - D - 1
                if n & 1:
                    a("s_waitcnt lgkmcnt(0)"); a(f"v_readfirstlane_b32 {s(SK)}, {v(VB)}"); a(f"v_readfirstlane_b32 {s(SJ)}, {v(VB+1)}")
                a(f"s_cmp_gt_u32 {s(SK)}, {n}"); a(f"s_cbranch_scc1 {Lb}")
                a(f"s_waitcnt vmcnt({D-1})")
                if self.ctl['tcap']:
                    a(f"s_cmp_le_u32 {s(SJ)}, {n}"); a(f"s_cbranch_scc1 {Lb}")
                    a(f"s_waitcnt vmcnt({D-2})")
                a(f"{Lb}:")
            elif n - Dn(n) > landed:
                a(f"s_waitcnt vmcnt({Dn(n)-1})"); landed = n - Dn(n)
            assert regs(seq[n]) not in busy, (n, seq[n])
            busy[regs(seq[n])] = n
            load(seq[n])
            if self.trace and seq[n] in kv:
                m = kv.index(seq[n])
                if m: a("s_waitcnt lgkmcnt(0)"); a(f"v_writelane_b32 v166, s100, {m-1}")
                a("s_memrealtime s[100:101]")
            if n == nbar:
                a(f"s_mov_b32 {s(S_HI)}, 0xffff0000"); a(f"s_mov_b32 {s(S_LO)}, 0x05040100"); a(f"s_mov_b32 {s(S_HIS)}, 0x07060302")
                a("s_barrier")
            if self.ctl and nbar <= n < self.ctl['to']:
                a("s_mov_b64 exec, 1"); a(f"ds_add_u32 {v(VZ)}, {v(V1)} offset:{L_CNT}"); a("s_mov_b64 exec, -1")
                if not n & 1: a(f"ds_read_b64 {v(VB,2)}, {v(VZ)} offset:{L_BOOST}")
            if n in trigs:
                a(f"v_mov_b32 {v(VT)}, {trigs[n]}"); a("s_mov_b64 exec, 1"); a(f"ds_max_u32 {v(VZ)}, {v(VT)} offset:{L_PROG}"); a("s_mov_b64 exec, -1")
            if self.wdma and seq[n] == kv[min(63, self.wpos - 1)]: count(L_WCNT)
            if n == nbar + 1: self.stamp(1)
            if landed == pos[('K', 31)]: self.stamp(4)
            run(n)
        issued = NM
        while landed < N - 1:
            landed += 1
            now = issued < N and landed == NM - self.wlate
            if not now and not any(q and q[0][1] <= landed for q in (side, tasks)): continue
            a(f"s_waitcnt vmcnt({issued - 1 - landed})")
            if now:
                for n in range(NM, N):
                    busy[regs(seq[n])] = n; load(seq[n])
                issued = N
            run(99)
        assert not tasks and not side
        self.stamp(8)
        if self.trace:
            a(f"s_mul_i32 {s(S_T0)}, {s(S_WG)}, 8"); a(f"s_add_u32 {s(S_T0)}, {s(S_T0)}, {s(S_WAVE)}")
            a(f"s_lshl_b32 {s(S_T0)}, {s(S_T0)}, 8"); a(f"s_add_u32 {s(S_T0)}, {s(S_T0)}, {STAMP + (1<<20):#x}")
            a(f"v_lshl_add_u32 {v(VT)}, v0, 2, {s(S_T0)}")
            a(f"global_store_dword {v(VT)}, v166, {s(P_WS,2)}")
        self.finish(VT)

    def s1_geom(self, loader):
        a = self.a
        SZ, SCB, SRB, SROW, SSTR = S_M, S_M+1, S_M+2, S_M+3, S_M+4
        Lf, Lj = self.lab("s1ffn"), self.lab("s1join")
        a(f"s_cmp_ge_u32 {s(S_S)}, 16"); a(f"s_cbranch_scc1 {Lf}")
        a(f"s_and_b32 {s(SCB)}, {s(S_S)}, 7"); a(f"s_lshr_b32 {s(SRB)}, {s(S_S)}, 3")
        a(f"s_lshl_b32 {s(SROW)}, {s(SRB)}, 2"); a(f"s_add_u32 {s(SROW)}, {s(SROW)}, {s(SZ)}"); a(f"s_lshl_b32 {s(SROW)}, {s(SROW)}, 6")
        if loader:
            a(f"s_mov_b32 {s(SSTR)}, 8192")
            a(f"s_lshl_b32 {s(S_T2)}, {s(S_H)}, 3"); a(f"s_add_u32 {s(S_T2)}, {s(S_T2)}, {s(SCB)}")
            self.srd(R2, P_WQ, 0x400000)
        a(f"s_branch {Lj}")
        a(f"{Lf}:")
        a(f"s_sub_u32 {s(S_T2)}, {s(S_S)}, 16"); a(f"s_lshl_b32 {s(S_T2)}, {s(S_T2)}, 3"); a(f"s_add_u32 {s(S_T2)}, {s(S_T2)}, {s(S_H)}")
        a(f"s_lshr_b32 {s(SCB)}, {s(S_T2)}, 2"); a(f"s_and_b32 {s(SRB)}, {s(S_T2)}, 3")
        a(f"s_and_b32 {s(S_T3)}, {s(SZ)}, 1")
        a(f"s_lshl_b32 {s(SROW)}, {s(SRB)}, 1"); a(f"s_add_u32 {s(SROW)}, {s(SROW)}, {s(S_T3)}"); a(f"s_lshl_b32 {s(SROW)}, {s(SROW)}, 6")
        if loader:
            a(f"s_mov_b32 {s(SSTR)}, 3584")
            a(f"s_mov_b32 {s(S_T2)}, {s(SCB)}")
            a(f"s_cmp_ge_u32 {s(SZ)}, 2")
            a(f"s_cselect_b32 {s(R2)}, {s(P_WU)}, {s(P_WG)}"); a(f"s_cselect_b32 {s(R2+1)}, {s(P_WU+1)}, {s(P_WG+1)}")
            a(f"s_cmp_lt_u32 {s(SCB)}, 28")
            a(f"s_cselect_b32 {s(R2+2)}, 0x1c0000, 0"); a(f"s_mov_b32 {s(R2+3)}, 0x20000")
        a(f"{Lj}:")

    VZ, VT, VA, T = 1, 2, 3, 4
    def stage1(self):
        a = self.a
        VZ, VT, VA, T = self.VZ, self.VT, self.VA, self.T
        X, XF, XR, ACC, W = 12, 16, 24, 32, 40
        SZ, SCB, SRB, SROW, SSTR = S_M, S_M+1, S_M+2, S_M+3, S_M+4
        a(f"s_and_b32 {s(SZ)}, {s(S_WAVE)}, 3")
        a(f"v_mov_b32 {v(VZ)}, 0"); a(f"v_lshlrev_b32 {v(VA)}, 4, v0")
        if self.pf:
            Lp = self.lab("nopf")
            a(f"s_cmp_ge_u32 {s(S_S)}, {self.pf}"); a(f"s_cbranch_scc1 {Lp}")
            a(f"s_getpc_b64 {s(R4,2)}")
            a(f"Lpc:")
            a(f"s_sub_u32 {s(R4)}, {s(R4)}, Lpc-{KN}"); a(f"s_subb_u32 {s(R4+1)}, {s(R4+1)}, 0")
            a(f"s_mov_b32 {s(R4+2)}, Lcode_end-{KN}"); a(f"s_mov_b32 {s(R4+3)}, 0x20000")
            a(f"s_lshl_b32 {s(S_T0)}, {s(SZ)}, 12")
            for k in range(4):
                a(f"buffer_load_dwordx4 {v(W+32+4*k,4)}, {v(VA)}, {s(R4,4)}, {s(S_T0)} offen offset:{1024*k}")
            a(f"{Lp}:")
        self.s1_geom(False)
        a("s_waitcnt lgkmcnt(0)")
        self.srd(R0, P_WS, WS_USED); self.srd(R1, P_X, 1024)
        a(f"buffer_load_dwordx4 {v(X,4)}, {v(VA)}, {s(R1,4)}, 0 offen")
        a(f"buffer_load_dword {v(VT)}, {v(VZ)}, {s(R0,4)}, 0 offen offset:{EPOCH}")
        Lb = self.lab("s1b")
        a(f"s_cmp_lg_u32 {s(SZ)}, 0"); a(f"s_cbranch_scc1 {Lb}")
        a(f"v_lshlrev_b32 {v(T+2)}, 2, v0")
        a("s_mov_b64 exec, 0xffff")
        a(f"ds_write_b32 {v(T+2)}, {v(VZ)}")
        a("s_mov_b64 exec, -1")
        a("s_waitcnt lgkmcnt(0)")
        a(f"{Lb}:")
        a("s_barrier")
        a("s_waitcnt vmcnt(1)")
        self.stamp(1)
        self.layernorm(X, XF, T)
        a(f"s_lshr_b32 {s(S_T0)}, {s(SROW)}, 1")
        a(f"v_lshrrev_b32 {v(T)}, 3, v0"); a(f"v_lshl_add_u32 {v(T)}, {v(T)}, 2, {s(S_T0)}")
        for j in range(8): a(f"ds_bpermute_b32 {v(XR+j)}, {v(T)}, {v(XF+j)}")
        a("s_waitcnt vmcnt(0)")
        a(f"v_add_u32 {v(VT)}, 1, {v(VT)}"); a(f"v_readfirstlane_b32 {s(S_E)}, {v(VT)}")
        a(f"v_and_b32 {v(VT)}, {s(S_TM)}, {v(VT)}")
        a(f"s_lshl_b32 {s(S_T0)}, {s(SZ)}, 13"); a(f"v_add_u32 {v(T)}, {s(S_T0)}, {v(VA)}")
        self.lds_wait(L_ACNT, 8, VZ, T+1)
        for j in range(8): a(f"ds_read_b128 {v(W+4*j,4)}, {v(T)} offset:{L_A+1024*j}")
        for j in range(8):
            self.lgkm(7-j)
            for k in range(4):
                self.unpack(T, T+1, W+4*j+k)
                op = "v_mul_f32" if j == 0 else "v_fmac_f32"
                a(f"{op} {v(ACC+2*k)}, {v(XR+j)}, {v(T)}"); a(f"{op} {v(ACC+2*k+1)}, {v(XR+j)}, {v(T+1)}")
        self.fold("v_permlane32_swap_b32", [(ACC+e, ACC+e+4) for e in range(4)])
        self.fold("v_permlane16_swap_b32", [(ACC+e, ACC+e+2) for e in range(2)])
        self.ror("v_add_f32", [ACC, ACC+1], (8,))
        a(f"s_lshl_b32 {s(S_T0)}, {s(SZ)}, 8")
        a(f"v_and_b32 {v(T)}, 7, v0"); a(f"v_lshl_add_u32 {v(T)}, {v(T)}, 5, {s(S_T0)}")
        a(f"v_lshrrev_b32 {v(T+1)}, 4, v0"); a(f"v_lshl_add_u32 {v(T)}, {v(T+1)}, 3, {v(T)}")
        a(f"v_mov_b32 {v(T+1)}, 1")
        a("s_mov_b32 exec_lo, 0xff00ff"); a("s_mov_b32 exec_hi, 0xff00ff")
        a(f"ds_write_b64 {v(T)}, {v(ACC,2)} offset:{L_S1}")
        a("s_mov_b64 exec, 1")
        a(f"ds_add_u32 {v(VZ)}, {v(T+1)} offset:{L_S1CNT}")
        a("s_mov_b64 exec, -1")
        self.stamp(2)

    def sw0(self):
        a = self.a
        VZ, VT, VA, T = self.VZ, self.VT, self.VA, self.T
        XF, W = 16, 40
        SZ, SCB, SRB = S_M, S_M+1, S_M+2
        a(f"v_and_b32 {v(T)}, 0xf0, {v(VA)}"); a(f"v_and_b32 {v(T+2)}, 16, v0"); a(f"v_lshl_add_u32 {v(T)}, {v(T+2)}, 5, {v(T)}")
        self.lds_wait(L_S1CNT, 4, VZ, T+1, [f"ds_read_b128 {v(W,4)}, {v(T)} offset:{L_S1}", f"ds_read_b128 {v(W+4,4)}, {v(T)} offset:{L_S1+256}"])
        a(f"v_pk_add_f32 {v(W,2)}, {v(W,2)}, {v(W+4,2)}"); a(f"v_pk_add_f32 {v(W+2,2)}, {v(W+2,2)}, {v(W+6,2)}")
        Lf, Lj = self.lab("c1ffn"), self.lab("c1join")
        a(f"s_cmp_ge_u32 {s(S_S)}, 16"); a(f"s_cbranch_scc1 {Lf}")
        for r in range(4): a(f"v_mov_b32 {v(W+4+r)}, {v(W+r)}")
        self.fold("v_permlane16_swap_b32", [(W+r, W+4+r) for r in range(4)])
        a(f"v_and_b32 {v(T)}, 0xf0, {v(VA)}")
        a(f"s_lshl_b32 {s(S_T1)}, {s(S_H)}, 12"); a(f"s_lshl_b32 {s(S_T2)}, {s(SRB)}, 11"); a(f"s_add_u32 {s(S_T1)}, {s(S_T1)}, {s(S_T2)}")
        a(f"s_lshl_b32 {s(S_T2)}, {s(SCB)}, 8"); a(f"s_add_u32 {s(S_T1)}, {s(S_T1)}, {s(S_T2)}"); a(f"s_add_u32 {s(S_T1)}, {s(S_T1)}, {QBOX:#x}")
        a("s_mov_b64 exec, 0xffff")
        a(f"s_branch {Lj}")
        a(f"{Lf}:")
        a(f"v_and_b32 {v(T)}, 8, v0"); a(f"v_lshlrev_b32 {v(T)}, 7, {v(T)}")
        a(f"v_and_b32 {v(T+1)}, 0x70, {v(VA)}"); a(f"v_lshl_add_u32 {v(T+1)}, {v(T+2)}, 3, {v(T+1)}"); a(f"v_add_u32 {v(T)}, {v(T)}, {v(T+1)}")
        a(f"s_lshl_b32 {s(S_T1)}, {s(SCB)}, 11"); a(f"s_lshl_b32 {s(S_T2)}, {s(SRB)}, 8"); a(f"s_add_u32 {s(S_T1)}, {s(S_T1)}, {s(S_T2)}")
        a(f"s_add_u32 {s(S_T1)}, {s(S_T1)}, {GBOX:#x}")
        a("s_mov_b32 exec_lo, -1"); a("s_mov_b32 exec_hi, 0")
        a(f"{Lj}:")
        self.tag(range(W, W+4), VT)
        a(f"buffer_store_dwordx4 {v(W,4)}, {v(T)}, {s(R0,4)}, {s(S_T1)} offen sc1")
        a("s_mov_b64 exec, -1")
        a(f"s_lshl_b32 {s(S_T0)}, {s(S_H)}, 12"); a(f"s_add_u32 {s(S_T0)}, {s(S_T0)}, {QBOX:#x}")
        W2 = W + 8
        self.trig(self.nq, VZ, T+1)
        self.poll([(f"buffer_load_dwordx4 {v(W2+4*k,4)}, {v(VA)}, {s(R0,4)}, {s(S_T0)} offen offset:{1024*k} sc1", W2+4*k, 4) for k in range(4)], VT, T)
        for k in range(4): a(f"v_pk_add_f32 {v(W2+2*k,2)}, {v(W2+2*k,2)}, {v(W2+8+2*k,2)}")
        for k in range(4): a(f"v_cvt_pk_bf16_f32 {v(XF+k)}, {v(W2+2*k)}, {v(W2+2*k+1)}")
        a(f"v_lshlrev_b32 {v(T)}, 3, v0"); a(f"v_mov_b32 {v(T+1)}, 1")
        a(f"ds_write_b64 {v(T)}, {v(XF,2)} offset:{L_Q}"); a(f"ds_write_b64 {v(T)}, {v(XF+2,2)} offset:{L_Q+512}")
        a("s_waitcnt lgkmcnt(0)")
        a(f"ds_write_b32 {v(VZ)}, {v(T+1)} offset:{L_QFLAG}")
        self.stamp(3)
        if self.cut == 1: return self.finish(T)
        MW, LW, M, L, MA, LA, MB, LB = XF, XF+1, XF+2, XF+3, W, W+1, W+2, W+3
        a(f"v_and_b32 {v(T)}, 28, v0"); a(f"v_lshlrev_b32 {v(T)}, 3, {v(T)}")
        a(f"v_and_b32 {v(T+2)}, 3, v0"); a(f"v_lshl_add_u32 {v(T)}, {v(T+2)}, 2, {v(T)}")
        self.lds_wait(L_MLCNT, 8, VZ, T+1, [f"ds_read2_b32 {v(MW,2)}, {v(T)} offset0:{L_ML//4} offset1:{L_ML//4+4}"])
        self.stamp(4)
        a(f"s_mov_b32 {s(S_T2)}, {LOG2E:#x}")
        a(f"v_mov_b32 {v(M)}, {v(MW)}")
        self.ror("v_max_f32", [M], (4, 8))
        a(f"v_mov_b32 {v(T)}, {v(M)}"); a(f"v_permlane16_swap_b32 {v(M)}, {v(T)}"); a(f"v_max_f32 {v(M)}, {v(M)}, {v(T)}")
        a(f"v_sub_f32 {v(L)}, {v(MW)}, {v(M)}"); a(f"v_mul_f32 {v(L)}, {s(S_T2)}, {v(L)}"); a(f"v_exp_f32 {v(L)}, {v(L)}")
        a(f"v_mul_f32 {v(L)}, {v(L)}, {v(LW)}")
        self.ror("v_add_f32", [L], (4, 8))
        a(f"v_mov_b32 {v(T)}, {v(L)}"); a(f"v_permlane16_swap_b32 {v(L)}, {v(T)}"); a(f"v_add_f32 {v(L)}, {v(L)}, {v(T)}")
        self.tag([M, L], VT)
        if self.fast:
            a(f"s_getreg_b32 {s(S_M+5)}, hwreg(HW_REG_XCC_ID, 0, 4)"); a(f"s_lshl_b32 {s(S_M+5)}, {s(S_M+5)}, 12")
            a(f"v_or_b32 {v(M)}, {s(S_M+5)}, {v(M)}")
        a(f"v_lshlrev_b32 {v(T)}, 3, v0")
        a(f"s_lshl_b32 {s(S_T0)}, {s(S_H)}, 10"); a(f"s_add_u32 {s(S_T0)}, {s(S_T0)}, {MLBOX:#x}")
        a(f"s_lshl_b32 {s(S_T1)}, {s(S_S)}, 5"); a(f"s_add_u32 {s(S_T1)}, {s(S_T1)}, {s(S_T0)}")
        a("s_mov_b64 exec, 15")
        a(f"buffer_store_dwordx2 {v(M,2)}, {v(T)}, {s(R0,4)}, {s(S_T1)} offen sc1")
        a("s_mov_b64 exec, -1")
        self.trig(self.nm, VZ, T+1)
        self.poll([(f"buffer_load_dwordx2 {v(MA,2)}, {v(T)}, {s(R0,4)}, {s(S_T0)} offen sc1", MA, 2),
                   (f"buffer_load_dwordx2 {v(MB,2)}, {v(T)}, {s(R0,4)}, {s(S_T0)} offen offset:512 sc1", MB, 2)], VT, T+1, quad=True)
        if self.fast:
            a(f"v_xor_b32 {v(T+2)}, {s(S_M+5)}, {v(MA)}"); a(f"v_xor_b32 {v(T+3)}, {s(S_M+5)}, {v(MB)}")
            a(f"v_or_b32 {v(T+2)}, {v(T+2)}, {v(T+3)}"); a(f"v_and_b32 {v(T+2)}, 0xf000, {v(T+2)}")
            a(f"v_cmp_ne_u32 vcc, 0, {v(T+2)}")
            a("s_cmp_eq_u64 vcc, 0"); a(f"s_cselect_b32 {s(S_M+6)}, 2, 1")
        a(f"v_and_b32 {v(MA)}, {s(S_HI)}, {v(MA)}"); a(f"v_and_b32 {v(MB)}, {s(S_HI)}, {v(MB)}")
        a(f"v_max_f32 {v(M)}, {v(MA)}, {v(MB)}")
        self.ror("v_max_f32", [M], (4, 8)); self.rows_all("v_max_f32", M, T)
        for r in (MA, MB, MW): a(f"v_sub_f32 {v(r)}, {v(r)}, {v(M)}")
        for r in (MA, MB, MW): a(f"v_mul_f32 {v(r)}, {s(S_T2)}, {v(r)}")
        for r in (MA, MB, MW): a(f"v_exp_f32 {v(r)}, {v(r)}")
        a(f"v_mul_f32 {v(L)}, {v(MA)}, {v(LA)}"); a(f"v_fmac_f32 {v(L)}, {v(MB)}, {v(LB)}")
        self.ror("v_add_f32", [L], (4, 8)); self.rows_all("v_add_f32", L, T)
        a(f"v_rcp_f32 {v(L)}, {v(L)}"); a(f"v_mul_f32 {v(MW)}, {v(MW)}, {v(L)}")
        a(f"v_and_b32 {v(T)}, 31, v0"); a(f"v_lshlrev_b32 {v(T)}, 2, {v(T)}"); a(f"v_mov_b32 {v(T+1)}, {s(S_M+6) if self.fast else 1}")
        a(f"ds_write_b32 {v(T)}, {v(MW)} offset:{L_F}")
        a("s_waitcnt lgkmcnt(0)")
        a(f"ds_write_b32 {v(VZ)}, {v(T+1)} offset:{L_FFLAG}")
        a("s_waitcnt lgkmcnt(0)")
        self.stamp(5)
        self.finish(T)

    def fblock(self, dst, t):
        a = self.a
        a(f"s_lshl_b32 {s(dst)}, {s(S_H)}, 3"); a(f"s_lshr_b32 {s(t)}, {s(S_S)}, 2"); a(f"s_add_u32 {s(dst)}, {s(dst)}, {s(t)}")

    def sw1(self):
        a = self.a
        VZ, VT, VA, T = self.VZ, self.VT, self.VA, self.T
        XC, VO, G, W = 10, 11, 12, 16
        self.fblock(S_T0, S_T1)
        a(f"s_lshl_b32 {s(S_T0)}, {s(S_T0)}, 10"); a(f"s_add_u32 {s(S_T0)}, {s(S_T0)}, {GBOX:#x}")
        self.trig(self.g_trig, VZ, T+1)
        self.poll([(f"buffer_load_dwordx4 {v(G,4)}, {v(VA)}, {s(R0,4)}, {s(S_T0)} offen sc1", G, 4)], VT, T)
        self.fold4(G)
        self.rbf1(G, G)
        a(f"v_mov_b32_dpp {v(G+1)}, {v(G)} row_ror:8 row_mask:0xf bank_mask:0xf")
        self.silu_bf(G, G, T)
        a(f"v_mul_f32 {v(G)}, {v(G)}, {v(G+1)}"); a(f"v_cvt_pk_bf16_f32 {v(G)}, {v(G)}, {v(G)}")
        a(f"v_and_b32 {v(T)}, 7, v0"); a(f"v_lshlrev_b32 {v(T)}, 3, {v(T)}")
        a(f"v_lshrrev_b32 {v(T+1)}, 4, v0"); a(f"v_lshl_add_u32 {v(T)}, {v(T+1)}, 1, {v(T)}"); a(f"v_mov_b32 {v(T+1)}, 1")
        a("s_mov_b32 exec_lo, 0xff00ff"); a("s_mov_b32 exec_hi, 0xff00ff")
        a(f"ds_write_b16 {v(T)}, {v(G)} offset:{L_H}")
        a("s_mov_b64 exec, -1")
        a("s_waitcnt lgkmcnt(0)")
        a(f"ds_write_b32 {v(VZ)}, {v(T+1)} offset:{L_HFLAG}")
        self.stamp(3)
        Lx = self.lab("sw1end")
        a(f"s_cmp_ge_u32 {s(S_WG)}, {0 if self.cut else 32}"); a(f"s_cbranch_scc1 {Lx}")
        a(f"s_lshl_b32 {s(S_T0)}, {s(S_WG)}, 5")
        a(f"v_and_b32 {v(VO)}, 3, v0"); a(f"v_lshl_add_u32 {v(VO)}, {v(VO)}, 3, {s(S_T0)}")
        a(f"v_lshrrev_b32 {v(T)}, 4, v0"); a(f"v_lshl_add_u32 {v(VO)}, {v(T)}, 1, {v(VO)}")
        a(f"buffer_load_ushort {v(XC)}, {v(VO)}, {s(R1,4)}, 0 offen")
        a(f"s_lshl_b32 {s(S_T0)}, {s(S_WG)}, 13"); a(f"s_add_u32 {s(S_T0)}, {s(S_T0)}, {HBOX:#x}"); a(f"s_add_u32 {s(S_T1)}, {s(S_T0)}, 4096")
        loads = [(f"buffer_load_dwordx4 {v(W+4*j,4)}, {v(VA)}, {s(R0,4)}, {s(S_T0+(j>>2))} offen offset:{1024*(j&3)} sc1", W+4*j, 4) for j in range(8)]
        if self.touch:
            for ld in loads: a(ld[0])
        a("s_waitcnt vmcnt(0)")
        a(f"v_lshlrev_b32 {v(XC)}, 16, {v(XC)}")
        self.srd(R1, P_OUT, 1024)
        if self.otouch: a(f"buffer_load_ushort {v(T+5)}, {v(VO)}, {s(R1,4)}, 0 offen sc1"); a("s_waitcnt vmcnt(0)")
        self.stamp(4)
        a("s_barrier")
        self.stamp(5)
        if self.pipe:
            Y = [(f"buffer_load_dwordx4 {v(W+32+4*j,4)}, {v(VA)}, {s(R0,4)}, {s(S_T0+(j>>2))} offen offset:{1024*(j&3)} sc1", W+32+4*j, 4) for j in range(8)]
            self.poll2(loads, Y, VT, T, G)
        elif self.light: self.gather8(loads, VT, T, G, VA, S_T0, 10)
        else: self.poll(loads, VT, T, acc=G)
        self.stamp(6)
        self.fold4(G)
        self.ror("v_add_f32", [G], (8,))
        self.rbf1(G, G)
        self.silu_bf(G+1, G, T)
        a(f"v_mul_f32_dpp {v(G)}, {v(G+1)}, {v(G)} row_ror:12 row_mask:0xf bank_mask:0xf"); self.rbf1(G, G)
        a(f"v_add_f32 {v(G)}, {v(G)}, {v(XC)}"); a(f"v_cvt_pk_bf16_f32 {v(G)}, {v(G)}, {v(G)}")
        a("s_mov_b32 exec_lo, 0xf000f"); a("s_mov_b32 exec_hi, 0xf000f")
        a(f"buffer_store_short {v(G)}, {v(VO)}, {s(R1,4)}, 0 offen {self.outpol}")
        a(f"s_cmp_lg_u32 {s(S_WG)}, 0"); a(f"s_cbranch_scc1 {Lx}")
        a("s_mov_b64 exec, 1")
        a(f"v_mov_b32 {v(T)}, {s(S_E)}")
        a(f"buffer_store_dword {v(T)}, {v(VZ)}, {s(R0,4)}, 0 offen offset:{EPOCH} sc1")
        if self.amp:
            pa, pb, k = self.amp
            a("s_waitcnt vmcnt(0)"); self.stamp(7); a("s_waitcnt lgkmcnt(0)")
            a(f"s_sub_u32 {s(S_T0)}, {s(S_ST+2*pb)}, {s(S_ST+2*pa)}"); a(f"s_mul_i32 {s(S_T0)}, {s(S_T0)}, {k}")
            a(f"s_min_u32 {s(S_T0)}, {s(S_T0)}, 100000")
            a("Lamp:")
            a(f"s_memrealtime {s(S_ST+20,2)}"); a("s_waitcnt lgkmcnt(0)")
            a(f"s_sub_u32 {s(S_T1)}, {s(S_ST+20)}, {s(S_ST+14)}"); a(f"s_cmp_lt_u32 {s(S_T1)}, {s(S_T0)}"); a("s_cbranch_scc1 Lamp")
        a(f"{Lx}:")
        if self.diag: a("s_waitcnt vmcnt(0)")
        self.stamp(7)
        self.finish(T)

    def controller(self, SZ, nbar_):
        a = self.a; c = self.ctl
        VZ = self.VZ
        C, CP, E, X, Y, A, G = 24, 25, 26, 27, 28, 29, 30
        glob = c.get('gw', 0) or c['tcap']
        SG, SN = R3+1, R3+2
        import struct
        f = lambda x: hex(struct.unpack('<I', struct.pack('<f', x))[0])
        L, Lo, Ls = self.lab("ctl"), self.lab("ctlx"), self.lab("ctls")
        a(f"s_cmp_lg_u32 {s(SZ)}, 0"); a(f"s_cbranch_scc1 {Lo}")
        a(f"s_lshl_b32 {s(S_T0)}, {s(S_H)}, 7")
        a(f"v_and_b32 {v(A)}, 31, v0"); a(f"v_lshlrev_b32 {v(A)}, 2, {v(A)}")
        if glob:
            a(f"v_and_b32 {v(X)}, 7, v0"); a(f"v_lshlrev_b32 {v(X)}, 7, {v(X)}"); a(f"v_add_u32 {v(X)}, 0x400, {v(X)}"); a(f"v_subrev_u32 {v(X)}, {s(S_T0)}, {v(X)}")
            a(f"v_cmp_gt_u32 vcc, 32, v0"); a(f"v_cndmask_b32 {v(A)}, {v(X)}, {v(A)}, vcc")
            a(f"s_add_u32 {s(SN+1)}, {s(S_H)}, 32")
        a(f"s_add_u32 {s(S_T0)}, {s(S_T0)}, {PBOX:#x}")
        a(f"s_lshl_b32 {s(S_T1)}, {s(S_S)}, 2"); a(f"s_add_u32 {s(S_T1)}, {s(S_T1)}, {s(S_T0)}")
        a(f"s_lshl_b32 {s(R3)}, {s(S_E)}, 16")
        a(f"ds_read_b32 {v(CP)}, {v(VZ)} offset:{L_CNT}")
        a(f"s_mov_b32 {s(S_CNT)}, 4096")
        a(f"{L}:")
        a(f"ds_read_b32 {v(C)}, {v(VZ)} offset:{L_CNT}")
        a("s_waitcnt lgkmcnt(0)")
        a(f"v_or_b32 {v(E)}, {s(R3)}, {v(C)}")
        a(f"v_readfirstlane_b32 {s(S_T2)}, {v(C)}")
        a("s_mov_b64 exec, 1")
        a(f"buffer_store_dword {v(E)}, {v(VZ)}, {s(R0,4)}, {s(S_T1)} offen")
        a("s_mov_b64 exec, -1")
        a(f"s_cmp_ge_u32 {s(S_T2)}, {8*(c['to'] - nbar_ - 2)}"); a(f"s_cbranch_scc1 {Lo}")
        a(f"s_sub_u32 {s(S_CNT)}, {s(S_CNT)}, 1"); a(f"s_cbranch_scc1 {Lo}")
        a(f"buffer_load_dword {v(X)}, {v(A)}, {s(R0,4)}, {s(S_T0)} offen sc1")
        a(f"v_add_u32 {v(CP)}, {v(CP)}, {v(C)}"); a(f"v_cvt_f32_u32 {v(CP)}, {v(CP)}")
        a("s_waitcnt vmcnt(0)")
        a(f"ds_read_b32 {v(Y)}, {v(VZ)} offset:{L_CNT}")
        a(f"v_xor_b32 {v(X)}, {s(R3)}, {v(X)}"); a(f"v_cmp_gt_u32 vcc, 0x10000, {v(X)}")
        a(f"v_cvt_f32_u32 {v(X)}, {v(X)}"); a(f"v_cndmask_b32 {v(X)}, 0, {v(X)}, vcc")
        a(f"s_bcnt1_i32_b32 {s(S_T2)}, vcc_lo")
        if glob:
            a(f"s_bcnt1_i32_b32 {s(SN)}, vcc_hi"); a(f"v_readlane_b32 {s(SG)}, {v(X)}, {s(SN+1)}")
        self.ror("v_add_f32", [X], (8, 4, 2, 1))
        a(f"v_mov_b32 {v(E)}, {v(X)}"); a(f"v_permlane16_swap_b32 {v(X)}, {v(E)}"); a(f"v_add_f32 {v(X)}, {v(X)}, {v(E)}")
        a(f"v_cvt_f32_u32 {v(E)}, {s(S_T2)}"); a(f"v_rcp_f32 {v(E)}, {v(E)}")
        a(f"s_cmp_lt_u32 {s(S_T2)}, 24"); a(f"s_cbranch_scc1 {Ls}")
        if glob:
            a(f"v_readlane_b32 {s(S_T3)}, {v(X)}, 32")
            a(f"v_mov_b32 {v(G)}, {s(S_T3)}"); a(f"v_mul_f32 {v(G)}, {f(1/32)}, {v(G)}"); a(f"v_subrev_f32 {v(G)}, {s(SG)}, {v(G)}")
            a(f"s_cmp_eq_u32 {s(SN)}, 32"); a("s_cselect_b64 vcc, -1, 0"); a(f"v_cndmask_b32 {v(G)}, 0, {v(G)}, vcc")
        a(f"v_mul_f32 {v(X)}, {v(X)}, {v(E)}")
        if glob:
            Lr = self.lab("ctlr")
            a(f"s_cmp_lg_u32 {s(S_S)}, 5"); a(f"s_cbranch_scc1 {Lr}")
            a(f"v_cvt_u32_f32 {v(E)}, {v(X)}"); a(f"v_or_b32 {v(E)}, {s(R3)}, {v(E)}")
            a("s_mov_b64 exec, 1")
            a(f"buffer_store_dword {v(E)}, {v(VZ)}, {s(R0,4)}, {s(S_T0)} offen offset:1024 sc1")
            a("s_mov_b64 exec, -1")
            a(f"{Lr}:")
        a(f"v_fma_f32 {v(X)}, {v(CP)}, -0.5, {v(X)}")
        if c.get('gw', 0): a(f"v_fmac_f32 {v(X)}, {f(c['gw'])}, {v(G)}")
        a("s_waitcnt lgkmcnt(0)")
        a(f"v_lshrrev_b32 {v(Y)}, 3, {v(Y)}"); a(f"v_add_u32 {v(Y)}, {nbar_ + 1 + c['lead']}, {v(Y)}")
        for (dst, src, sign, th, g, cap) in ((E, X, 1, c['bth'], c['bg'], c['bcap']), (X, G, -1, c['tth'], c['tg'], c['tcap'])):
            if not cap: continue
            t = CP
            a(f"v_mul_f32 {v(t)}, {f(sign*g)}, {v(src)}"); a(f"v_min_f32 {v(t)}, {f(cap)}, {v(t)}"); a(f"v_max_f32 {v(t)}, 0, {v(t)}")
            a(f"v_cmp_{'lt' if sign > 0 else 'gt'}_f32 vcc, {f(sign*th)}, {v(src)}")
            a(f"v_cvt_u32_f32 {v(t)}, {v(t)}"); a(f"v_add_u32 {v(t)}, {v(t)}, {v(Y)}")
            a(f"v_cndmask_b32 {v(dst)}, 0, {v(t)}, vcc")
        a("s_mov_b64 exec, 1")
        a(f"ds_write_b64 {v(VZ)}, {v(E,2)} offset:{L_BOOST}")
        a("s_mov_b64 exec, -1")
        a(f"{Ls}:")
        a(f"v_mov_b32 {v(CP)}, {v(C)}")
        a(f"s_branch {L}")
        a(f"{Lo}:")

    def sw23(self):
        a = self.a
        VZ, VT, VA, T = self.VZ, self.VT, self.VA, self.T
        VP, VH, VB, VB2, OUT, SUM, W, HB, AW, AD, F, DD = 10, 11, 12, 13, 16, 20, 24, 56, 72, 104, 120, 152
        SZ, SFB, SCOL, SPUB, SP0, SHB, SLW = S_M+8, S_M+9, S_M+10, S_M+11, S_M, S_M+12, S_M+13
        a(f"s_and_b32 {s(SZ)}, {s(S_WAVE)}, 1")
        self.fblock(SFB, S_T1)
        a(f"s_and_b32 {s(SCOL)}, {s(S_S)}, 3"); a(f"s_lshl_b32 {s(SCOL)}, {s(SCOL)}, 1"); a(f"s_add_u32 {s(SCOL)}, {s(SCOL)}, {s(SZ)}")
        a(f"s_mul_i32 {s(SLW)}, {s(SZ)}, 12288")
        a(f"v_lshrrev_b32 {v(T)}, 4, v0"); a(f"v_lshl_add_u32 {v(T)}, {v(T)}, 10, {s(SLW)}")
        a(f"v_bfe_u32 {v(T+2)}, v0, 2, 2"); a(f"v_lshl_add_u32 {v(T)}, {v(T+2)}, 7, {v(T)}")
        a(f"v_and_b32 {v(T+2)}, 3, v0"); a(f"v_lshl_add_u32 {v(T)}, {v(T+2)}, 3, {v(T)}")
        a(f"s_lshl_b32 {s(S_T0)}, {s(S_H)}, 16"); a(f"s_add_u32 {s(S_T0)}, {s(S_T0)}, {OBOX:#x}")
        a(f"s_lshl_b32 {s(SPUB)}, {s(S_S)}, 11"); a(f"s_add_u32 {s(SPUB)}, {s(SPUB)}, {s(S_T0)}")
        a(f"s_lshr_b32 {s(S_T1)}, {s(S_S)}, 2"); a(f"s_lshl_b32 {s(S_T1)}, {s(S_T1)}, 8"); a(f"s_add_u32 {s(SP0)}, {s(S_T0)}, {s(S_T1)}")
        for k in range(1, 8): a(f"s_add_u32 {s(SP0+k)}, {s(SP0)}, {8192*k}")
        a(f"v_lshrrev_b32 {v(VP)}, 4, v0"); a(f"v_and_b32 {v(T+2)}, 0xf0, {v(VA)}"); a(f"v_lshl_add_u32 {v(VP)}, {v(VP)}, 11, {v(T+2)}")
        a(f"s_lshl_b32 {s(SHB)}, {s(SCOL)}, 15"); a(f"s_lshl_b32 {s(S_T1)}, {s(SFB)}, 7"); a(f"s_add_u32 {s(SHB)}, {s(SHB)}, {s(S_T1)}")
        a(f"s_add_u32 {s(SHB)}, {s(SHB)}, {HBOX:#x}")
        a(f"v_and_b32 {v(VH)}, 3, v0"); a(f"v_lshlrev_b32 {v(VH)}, 13, {v(VH)}")
        a(f"v_and_b32 {v(T+2)}, 4, v0"); a(f"v_lshl_add_u32 {v(VH)}, {v(T+2)}, 4, {v(VH)}")
        a(f"v_and_b32 {v(VB)}, 48, v0"); a(f"v_add_u32 {v(VH)}, {v(VH)}, {v(VB)}")
        def tr_ad():
            for t in range(4):
                for hf in range(2):
                    a(f"ds_read_b64_tr_b16 {v(AD+4*t+2*hf,2)}, {v(T)} offset:{L_W + 8192 + 512*hf + 32*t}")
        def tr_aw(t):
            for kk in range(2):
                for hf in range(2):
                    a(f"ds_read_b64_tr_b16 {v(AW+8*t+4*kk+2*hf,2)}, {v(T)} offset:{L_W + 4096*kk + 512*hf + 32*t}")
        def ffn_tags():
            a("s_mov_b32 exec_lo, 0x100010"); a("s_mov_b32 exec_hi, 0x100010")
            for t in range(4):
                self.tag(range(DD+4*t, DD+4*t+4), VT, dst=range(OUT, OUT+4))
                if t < 3: a("s_lshl_b64 exec, exec, 1")
            a("s_mov_b64 exec, -1")
        def wprep():
            if self.wdma:
                a(f"s_waitcnt vmcnt({9 if self.wsplit == 12 else 8})")
                tr_ad(); tr_aw(0)
                self.lgkm(4)
                for t in range(4): a(f"v_mfma_f32_16x16x32_bf16 {v(DD+4*t,4)}, {v(AD+4*t,4)}, {v(HB,4)}, 0")
                for t in range(1, 4): tr_aw(t)
                ffn_tags()
                self.stamp(3)
                return
            self.lds_wait(L_WCNT, 8, VZ, T+2)
            tr_ad()
            self.lds_wait(L_HFLAG, 1, VZ, T+2, [f"ds_read_b128 {v(HB,4)}, {v(VB)} offset:{L_H}"])
            for t in range(4): a(f"v_mfma_f32_16x16x32_bf16 {v(DD+4*t,4)}, {v(AD+4*t,4)}, {v(HB,4)}, 0")
            for t in range(4):
                tr_aw(t)
                if t == 1: a("s_waitcnt lgkmcnt(0)")
            ffn_tags()
            a("s_waitcnt lgkmcnt(0)")
            self.stamp(3)
        if self.wdma:
            VWA, VWD, SW0, SW1 = 14, 15, R4, R4+1
            a(f"v_lshrrev_b32 {v(T+1)}, 3, v0"); a(f"v_and_b32 {v(T+2)}, 0x70, {v(VA)}")
            a(f"v_lshl_add_u32 {v(VWD)}, {v(T+1)}, 10, {v(T+2)}")
            a(f"s_mul_i32 {s(S_T1)}, {s(SZ)}, {8*144}"); a(f"v_mul_u32_u24 {v(T+1)}, 144, {v(T+1)}"); a(f"v_add3_u32 {v(VWA)}, {v(T+1)}, {v(T+2)}, {s(S_T1)}")
            a(f"s_lshl_b32 {s(SW0)}, {s(S_H)}, 19"); a(f"s_lshr_b32 {s(S_T1)}, {s(S_S)}, 2"); a(f"s_lshl_b32 {s(S_T1)}, {s(S_T1)}, 14"); a(f"s_add_u32 {s(SW0)}, {s(SW0)}, {s(S_T1)}")
            a(f"s_lshl_b32 {s(S_T1)}, {s(SCOL)}, 7"); a(f"s_add_u32 {s(SW0)}, {s(SW0)}, {s(S_T1)}")
            a(f"s_lshl_b32 {s(SW1)}, {s(SFB)}, 15"); a(f"s_add_u32 {s(SW1)}, {s(SW1)}, {s(S_T1)}")
            a(f"s_add_u32 {s(SLW)}, {s(SLW)}, {L_W}")
            self.srd(R1, P_WO, 0x400000); self.srd(R2, P_WD, 0x1c0000)
            def touch_w():
                a("s_mov_b64 exec, 1")
                for h in range(4):
                    a(f"s_add_u32 {s(S_T1)}, {s(SW0)}, {0x20000*h}")
                    a(f"buffer_load_dword {v(T+3)}, {v(VZ)}, {s(R1,4)}, {s(S_T1)} offen {self.wpol}")
                a(f"buffer_load_dword {v(T+3)}, {v(VZ)}, {s(R2,4)}, {s(SW1)} offen {self.wpol}")
                a("s_mov_b64 exec, -1")
            if self.ctl: self.controller(SZ, nbar_=(self.ramp[0] if self.ramp else self.D) - 1)
            if self.wtouch == 1: touch_w()
            self.lds_wait(L_HFLAG, 1, VZ, T+2, [f"ds_read_b128 {v(HB,4)}, {v(VB)} offset:{L_H}"])
        worder = list(range(8, 12)) + list(range(8))
        def wload(js):
            for j in js:
                a(f"s_add_u32 m0, {s(SLW)}, {1024*j}")
                if j < 8:
                    a(f"buffer_load_dwordx4 {v(VWD)}, {s(R1,4)}, {s(SW0)} offen {self.wpol} lds")
                    a(f"s_add_u32 {s(SW0)}, {s(SW0)}, {0x20000 - 8192 if j & 1 else 8192:#x}")
                else:
                    a(f"buffer_load_dwordx4 {v(VWD)}, {s(R2,4)}, {s(SW1)} offen {self.wpol} lds")
                    a(f"s_add_u32 {s(SW1)}, {s(SW1)}, 8192")
        late = self.wpos > 56 or self.wdma
        if not late: wprep()
        if self.cut: return self.finish(T)
        if self.wtouch == 2: touch_w()
        loads = [(f"buffer_load_dwordx4 {v(W+4*k,4)}, {v(VP)}, {s(R0,4)}, {s(SP0+k)} offen sc1", W+4*k, 4) for k in range(8)]
        if self.touch and True:
            for ld in loads: a(ld[0])
        self.lds_wait(L_FFLAG, 1, VZ, T+2, [f"ds_read_b128 {v(F+4*w,4)}, {v(VZ)} offset:{L_F+16*w}" for w in range(8)])
        a(f"s_mov_b32 {s(S_M+14)}, {s(S_T3)}")
        if self.wtouch == 3: touch_w()
        a(f"s_lshl_b32 {s(S_T0)}, {s(SZ)}, 10"); a(f"v_add_u32 {v(VA)}, {s(S_T0)}, {v(VA)}")
        a(f"s_lshl_b32 {s(S_T0)}, {s(SZ)}, 7"); a(f"v_add_u32 {v(VB2)}, {s(S_T0)}, {v(VB)}"); a(f"v_lshl_add_u32 {v(T+1)}, v0, 1, {s(S_T0)}")
        if self.touch: a("s_waitcnt vmcnt(0)")
        if self.wdma and self.wsplit:
            self.lds_wait(L_WCNT, 8, VZ, T+2, sleep=0)
            wload(worder[:self.wsplit])
        self.stamp(4)
        a("s_barrier")
        self.stamp(5)
        for w in range(8): a(f"ds_read_b128 {v(W+4*w,4)}, {v(VWA)} offset:{L_O+OSTR*w}")
        for w in range(8):
            self.lgkm(7-w)
            for p in (0, 2):
                if w == 0: a(f"v_pk_mul_f32 {v(SUM+p,2)}, {v(W+p,2)}, {v(F+p,2)}")
                else: a(f"v_pk_fma_f32 {v(SUM+p,2)}, {v(W+4*w+p,2)}, {v(F+4*w+p,2)}, {v(SUM+p,2)}")
        if self.fast: a(f"s_cmp_eq_u32 {s(S_M+14)}, 2")
        self.tag(range(SUM, SUM+4), VT, dst=range(F, F+4))
        if self.fast:
            La, Lb = self.lab("h1l"), self.lab("h1j")
            a(f"s_cbranch_scc1 {La}")
            a(f"buffer_store_dwordx4 {v(F,4)}, {v(VA)}, {s(R0,4)}, {s(SPUB)} offen sc1")
            a(f"s_branch {Lb}")
            a(f"{La}:")
            a(f"buffer_store_dwordx4 {v(F,4)}, {v(VA)}, {s(R0,4)}, {s(SPUB)} offen")
            a(f"{Lb}:")
        else: a(f"buffer_store_dwordx4 {v(F,4)}, {v(VA)}, {s(R0,4)}, {s(SPUB)} offen sc1")
        self.stamp(6)
        if self.wdma: wload(worder[self.wsplit:])
        pre = late and (self.prepoll or self.wdma)
        if late and not pre: wprep()
        BO = W
        if self.pipe:
            yr = [AD+4*k for k in range(4)] + [F+4+4*k for k in range(4)]
            Y = [(f"buffer_load_dwordx4 {v(yr[k],4)}, {v(VP)}, {s(R0,4)}, {s(SP0+k)} offen sc1", yr[k], 4) for k in range(8)]
            self.poll2(loads, Y, VT, T+3, SUM, between=wprep)
            BO = HB
        elif self.light: self.gather8(loads, VT, HB+4, SUM, VP, SP0, 13, between=(wprep if pre else None))
        else: self.poll(loads, VT, T+3, acc=SUM, between=(wprep if pre else None))
        self.stamp(7)
        self.fold4(SUM)
        a(f"v_cvt_pk_bf16_f32 {v(SUM)}, {v(SUM)}, {v(SUM)}")
        a(f"ds_write_b16 {v(T+1)}, {v(SUM)} offset:{L_OB}")
        a(f"ds_read_b128 {v(BO,4)}, {v(VB2)} offset:{L_OB}"); a(f"ds_read_b128 {v(BO+4,4)}, {v(VB2)} offset:{L_OB+64}")
        self.lgkm(1)
        for t in range(4): a(f"v_mfma_f32_16x16x32_bf16 {v(DD+4*t,4)}, {v(AW+8*t,4)}, {v(BO,4)}, 0")
        self.lgkm(0)
        for t in range(4): a(f"v_mfma_f32_16x16x32_bf16 {v(DD+4*t,4)}, {v(AW+8*t+4,4)}, {v(BO+4,4)}, {v(DD+4*t,4)}")
        a("s_mov_b32 exec_lo, 0x10001"); a("s_mov_b32 exec_hi, 0x10001")
        for t in range(4):
            self.tag(range(DD+4*t, DD+4*t+4), VT, dst=range(OUT, OUT+4))
            if t < 3: a("s_lshl_b64 exec, exec, 1")
        a("s_mov_b32 exec_lo, 0xff00ff"); a("s_mov_b32 exec_hi, 0xff00ff")
        a(f"buffer_store_dwordx4 {v(OUT,4)}, {v(VH)}, {s(R0,4)}, {s(SHB)} offen sc1")
        self.stamp(8)
        if self.fast and self.clean:
            a("s_mov_b64 exec, -1")
            a(f"buffer_store_dwordx4 {v(F,4)}, {v(VA)}, {s(R0,4)}, {s(SPUB)} offen sc1")
        if self.diag: a("s_waitcnt vmcnt(0)")
        self.stamp(9)
        self.finish(T)

    def build(self):
        a = self.a
        hdr = open("recurrent_scan__gqa_block_cached__swiglu_ffn__decode.s.ref").read().split("; @launch")[0]
        a(f'.amdgcn_target "amdgcn-amd-amdhsa--gfx950"')
        a(".text"); a(f".globl {KN}"); a(".p2align 8"); a(f".type {KN},@function"); a(f"{KN}:")
        a(f"s_load_dwordx16 {s(4,16)}, s[0:1], 0"); a(f"s_load_dwordx8 {s(20,8)}, s[0:1], 64")
        a("s_cmp_ge_u32 s2, 256"); a("s_cbranch_scc1 Lend")
        if self.diag:
            for k in range(1, 12): a(f"s_mov_b32 {s(S_ST+2*k)}, 0")
        self.stamp(0)
        a("v_lshrrev_b32 v1, 6, v0"); a("v_and_b32 v0, 63, v0"); a(f"v_readfirstlane_b32 {s(S_WAVE)}, v1")
        a(f"s_and_b32 {s(S_H)}, s2, 7"); a(f"s_lshr_b32 {s(S_S)}, s2, 3")
        a(f"s_cmp_ge_u32 {s(S_WAVE)}, 8"); a("s_cbranch_scc1 Lservice")
        self.streamer()
        a("Lservice:")
        if self.prio: a("s_setprio 3")
        a(f"s_mov_b32 {s(S_HI)}, 0xffff0000"); a(f"s_mov_b32 {s(S_TM)}, 0x3ff")
        self.stage1()
        a(f"s_cmp_eq_u32 {s(S_WAVE)}, 9"); a("s_cbranch_scc1 Lsw1")
        a(f"s_cmp_gt_u32 {s(S_WAVE)}, 9"); a("s_cbranch_scc1 Lsw23")
        self.sw0()
        a("Lsw23:"); self.sw23()
        a("Lsw1:"); self.sw1()
        a("Lend:"); a("s_endpgm")
        a("Lcode_end:")
        a(".fill 64, 4, 0xbf800000")
        a('.section .rodata,"a"'); a(".p2align 6"); a(f".amdhsa_kernel {KN}")
        for d in ("next_free_vgpr 168", "next_free_sgpr 102", "accum_offset 168", "group_segment_fixed_size 0", "kernarg_size 96",
                  "user_sgpr_count 2", "user_sgpr_kernarg_segment_ptr 1", "system_sgpr_workgroup_id_x 1", "float_denorm_mode_32 3"):
            a(f".amdhsa_{d}")
        a(".end_amdhsa_kernel")
        return hdr + f"; @launch grid=(256,1,1) block=(768,1,1) lds={LDS_BYTES + self.ldspad}\n" + a.finalize()

def gen(**kw): return G(**kw).build()
if __name__ == "__main__":
    kw = eval("dict(" + (sys.argv[2] if len(sys.argv) > 2 else "") + ")")
    open(sys.argv[1], "w").write(gen(**kw))
```

```python
import sys
from asmlib import Asm
KN = "recurrent_scan__gqa_block_cached__swiglu_ffn__decode_kernel"

EPOCH = 0
QBOX, MLBOX, PBOX, XBOX, GBOX, OBOX, HBOX = 0x1000, 0x9000, 0xB000, 0xC000, 0x10000, 0x20000, 0xA0000
WS_USED = 0xE0000
STAMP = 128 << 20
L_QFLAG, L_MLCNT, L_FFLAG, L_S1CNT, L_PROG, L_HFLAG, L_ACNT, L_WCNT = 0, 4, 8, 12, 16, 20, 24, 28
L_CNT, L_BOOST = 32, 40
L_ML, L_F, L_H, L_Q, L_S1, L_OB, L_O = 64, 320, 448, 512, 1536, 2560, 2816
OSTR = 16*144
L_W = L_O + 8*OSTR
L_A = L_O
LDS_BYTES = L_W + 2*12288
SPIN = 1 << 16

LOG2E = 0x3fb8aa3b
SCALE = 0x3db504f3
EPS = 0x3727c5ac

def v(i, n=1): return f"v{i}" if n == 1 else f"v[{i}:{i+n-1}]"
def s(i, n=1): return f"s{i}" if n == 1 else f"s[{i}:{i+n-1}]"

S_WG, S_WAVE = 2, 3
P_X, P_K, P_V, P_WQ, P_WO, P_BX, P_WG, P_WU, P_WD, P_OUT, P_DBG, P_WS = range(4, 28, 2)
R0, R1, R2, R3, R4 = 28, 32, 36, 40, 44
S_H, S_S = 48, 49
S_T0, S_T1, S_T2, S_T3 = 50, 51, 52, 53
S_HI, S_TM, S_LO, S_HIS = 54, 55, 56, 57
S_CNT, S_E = 58, 59
S_M = 60
S_ST = 76

class G:
    def __init__(self, D=3, D2=3, nD2=58, n0=28, il=12, kvpol="nt", wpol="nt", diag=0, pf=1, nq=20, nm=56, g_trig=44,
                 outpol="", prio=1, touch=0, cut=0, amp=None, trace=0, ramp=None, wpos=64, apos=1, smooth=1, wlate=0, prepoll=0, fast=1, clean=0, wdma=1, rot=1, agap=1, light=0, ldspad=0, hsleep=0, pipe=1, wsplit=12, wtouch=0, otouch=0, ctl=1, qk2=1, hello=0):
        self.__dict__.update(locals()); del self.__dict__['self']
        self.a = Asm(); self.nlab = 0
        assert self.wdma
        if self.ctl == 1: self.ctl = dict(to=68, bth=0, bg=0.5, bcap=5, tth=4, tg=0.15, tcap=0, lead=0, exit=62, **{'from': 8})
    def lab(self, p):
        self.nlab += 1; return f"L{p}{self.nlab}"
    def srd(self, r, ptr, size):
        a = self.a
        a(f"s_mov_b32 {s(r)}, {s(ptr)}"); a(f"s_mov_b32 {s(r+1)}, {s(ptr+1)}")
        a(f"s_mov_b32 {s(r+2)}, {size:#x}"); a(f"s_mov_b32 {s(r+3)}, 0x20000")
    def stamp(self, k):
        if self.diag or self.amp: self.a(f"s_memrealtime {s(S_ST+2*k,2)}")
    def lgkm(self, n):
        self.a(f"s_waitcnt lgkmcnt({0 if (self.diag or self.amp) else n})")
    def finish(self, vt):
        a = self.a
        if self.diag:
            a("s_waitcnt lgkmcnt(0)")
            a(f"s_mul_i32 {s(S_T0)}, {s(S_WG)}, 12"); a(f"s_add_u32 {s(S_T0)}, {s(S_T0)}, {s(S_WAVE)}")
            a(f"s_lshl_b32 {s(S_T0)}, {s(S_T0)}, 6"); a(f"s_add_u32 {s(S_T0)}, {s(S_T0)}, {STAMP:#x}")
            a("s_mov_b64 exec, 1")
            a(f"v_mov_b32 {v(vt)}, {s(S_T0)}")
            for k in range(12):
                a(f"v_mov_b32 {v(vt+1)}, {s(S_ST+2*k)}")
                a(f"global_store_dword {v(vt)}, {v(vt+1)}, {s(P_WS,2)} offset:{4*k}")
            a("s_waitcnt vmcnt(0)")
        a("s_endpgm")
    def unpack(self, lo, hi, src):
        self.a(f"v_lshlrev_b32 {v(lo)}, 16, {v(src)}"); self.a(f"v_and_b32 {v(hi)}, {s(S_HI)}, {v(src)}")
    def rbf1(self, dst, src):
        self.a(f"v_cvt_pk_bf16_f32 {v(dst)}, {v(src)}, {v(src)}"); self.a(f"v_and_b32 {v(dst)}, {s(S_HI)}, {v(dst)}")
    def rbf2(self, d0, d1, s0, s1, t):
        self.a(f"v_cvt_pk_bf16_f32 {v(t)}, {v(s0)}, {v(s1)}"); self.unpack(d0, d1, t)
    def ror(self, op, regs, steps):
        for n in steps:
            for r in regs: self.a(f"{op}_dpp {v(r)}, {v(r)}, {v(r)} row_ror:{n} row_mask:0xf bank_mask:0xf")
    def rows_all(self, op, x, t):
        a = self.a
        for sw in ("v_permlane16_swap_b32", "v_permlane32_swap_b32"):
            a(f"v_mov_b32 {v(t)}, {v(x)}"); a(f"{sw} {v(x)}, {v(t)}"); a(f"{op} {v(x)}, {v(x)}, {v(t)}")
    def fold(self, sw, pairs):
        for x, y in pairs: self.a(f"{sw} {v(x)}, {v(y)}")
        for x, y in pairs: self.a(f"v_add_f32 {v(x)}, {v(x)}, {v(y)}")
    def fold4(self, x):
        self.fold("v_permlane32_swap_b32", [(x, x+2), (x+1, x+3)])
        self.fold("v_permlane16_swap_b32", [(x, x+1)])
    def silu_bf(self, dst, x, t):
        a = self.a
        a(f"v_mul_f32 {v(t)}, {0x80000000 ^ LOG2E:#x}, {v(x)}"); a(f"v_exp_f32 {v(t)}, {v(t)}")
        a(f"v_add_f32 {v(t)}, 1.0, {v(t)}"); a(f"v_rcp_f32 {v(t)}, {v(t)}"); a(f"v_mul_f32 {v(t)}, {v(x)}, {v(t)}")
        self.rbf1(dst, t)
    def layernorm(self, X, XF, T):
        a = self.a
        for k in range(4): self.unpack(XF+2*k, XF+2*k+1, X+k)
        a(f"v_add_f32 {v(T)}, {v(XF)}, {v(XF+1)}")
        for k in range(2, 8): a(f"v_add_f32 {v(T)}, {v(T)}, {v(XF+k)}")
        self.ror("v_add_f32", [T], (8, 4, 2, 1)); self.rows_all("v_add_f32", T, T+1)
        a(f"v_mul_f32 {v(T)}, 0x3b000000, {v(T)}")
        a(f"v_sub_f32 {v(T+2)}, {v(XF)}, {v(T)}"); a(f"v_mul_f32 {v(T+3)}, {v(T+2)}, {v(T+2)}")
        for k in range(1, 8):
            a(f"v_sub_f32 {v(T+2)}, {v(XF+k)}, {v(T)}"); a(f"v_fmac_f32 {v(T+3)}, {v(T+2)}, {v(T+2)}")
        self.ror("v_add_f32", [T+3], (8, 4, 2, 1)); self.rows_all("v_add_f32", T+3, T+1)
        a(f"v_mul_f32 {v(T+3)}, 0x3b000000, {v(T+3)}")
        self.rbf2(T, T+3, T, T+3, T+1)
        a(f"v_add_f32 {v(T+3)}, {EPS:#x}, {v(T+3)}"); self.rbf1(T+3, T+3)
        a(f"v_sqrt_f32 {v(T+3)}, {v(T+3)}"); self.rbf1(T+3, T+3)
        a(f"v_rcp_f32 {v(T+2)}, {v(T+3)}")
        for k in range(8): a(f"v_sub_f32 {v(XF+k)}, {v(XF+k)}, {v(T)}")
        for k in range(4): self.rbf2(XF+2*k, XF+2*k+1, XF+2*k, XF+2*k+1, T+1)
        for k in range(8):
            a(f"v_mul_f32 {v(T+4)}, {v(XF+k)}, {v(T+2)}")
            a(f"v_fma_f32 {v(T+5)}, -{v(T+4)}, {v(T+3)}, {v(XF+k)}")
            a(f"v_fma_f32 {v(XF+k)}, {v(T+5)}, {v(T+2)}, {v(T+4)}")
        for k in range(4): self.rbf2(XF+2*k, XF+2*k+1, XF+2*k, XF+2*k+1, T+1)
    def tag(self, regs, vT, dst=None):
        for i, r in enumerate(regs):
            d = r if dst is None else dst[i]
            self.a(f"v_bfi_b32 {v(d)}, {s(S_TM)}, {v(vT)}, {v(r)}")
    def poll(self, loads, vT, t, acc=None, between=None, quad=False):
        a = self.a; L = self.lab("poll"); Lo = self.lab("pollx")
        if between:
            Lc = self.lab("pollc")
            for ld in loads: a(ld[0])
            between()
            a(f"s_mov_b32 {s(S_CNT)}, {SPIN}")
            a(f"s_branch {Lc}")
        else: a(f"s_mov_b32 {s(S_CNT)}, {SPIN}")
        a(f"{L}:")
        for ld in loads: a(ld[0])
        if between: a(f"{Lc}:")
        first = True
        for j, (_, r0, n) in enumerate(loads):
            a(f"s_waitcnt vmcnt({len(loads)-1-j})")
            for w in range(r0, r0+n):
                if first: a(f"v_xor_b32 {v(t)}, {v(w)}, {v(vT)}"); first = False
                else: a(f"v_bitop3_b32 {v(t)}, {v(w)}, {v(vT)}, {v(t)} bitop3:0xbe")
            if j == len(loads) - 1:
                if quad:
                    for p in ("[1,0,3,2]", "[2,3,0,1]"): a(f"v_or_b32_dpp {v(t)}, {v(t)}, {v(t)} quad_perm:{p} row_mask:0xf bank_mask:0xf")
                a(f"v_and_b32 {v(t)}, {s(S_TM)}, {v(t)}")
                a(f"v_cmp_ne_u32 vcc, 0, {v(t)}")
            if acc is not None and j >= 1:
                p = loads[0][1] if j == 1 else acc
                a(f"v_pk_add_f32 {v(acc,2)}, {v(p,2)}, {v(r0,2)}"); a(f"v_pk_add_f32 {v(acc+2,2)}, {v(p+2,2)}, {v(r0+2,2)}")
        a(f"s_sub_u32 {s(S_CNT)}, {s(S_CNT)}, 1")
        a(f"s_cbranch_scc1 {Lo}")
        a("s_mov_b64 exec, vcc")
        if acc is not None and self.hsleep:
            a(f"s_cbranch_execz {Lo}"); a(f"s_sleep {self.hsleep}"); a(f"s_branch {L}")
        else: a(f"s_cbranch_execnz {L}")
        a(f"{Lo}:")
        a("s_mov_b64 exec, -1")
    def poll2(self, X, Y, vT, t, acc, between=None):
        a = self.a; L = self.lab("pp"); Lo = self.lab("ppx")
        n = len(X)
        def check(loads, out=2):
            first = True
            for j, (_, r0, nr) in enumerate(loads):
                a(f"s_waitcnt vmcnt({out*n-1-j})")
                for w in range(r0, r0+nr):
                    if first: a(f"v_xor_b32 {v(t)}, {v(w)}, {v(vT)}"); first = False
                    else: a(f"v_bitop3_b32 {v(t)}, {v(w)}, {v(vT)}, {v(t)} bitop3:0xbe")
                if j == n - 1:
                    a(f"v_and_b32 {v(t)}, {s(S_TM)}, {v(t)}")
                    a(f"v_cmp_ne_u32 vcc, 0, {v(t)}")
                if j >= 1:
                    p = loads[0][1] if j == 1 else acc
                    a(f"v_pk_add_f32 {v(acc,2)}, {v(p,2)}, {v(r0,2)}"); a(f"v_pk_add_f32 {v(acc+2,2)}, {v(p+2,2)}, {v(r0+2,2)}")
            a("s_mov_b64 exec, vcc")
        for ld in X: a(ld[0])
        if between:
            between()
            check(X, 1)
            a(f"s_cbranch_execz {Lo}")
            for ld in X: a(ld[0])
        a(f"s_mov_b32 {s(S_CNT)}, {SPIN}")
        a(f"{L}:")
        for ld in Y: a(ld[0])
        check(X)
        a(f"s_cbranch_execz {Lo}")
        for ld in X: a(ld[0])
        check(Y)
        a(f"s_sub_u32 {s(S_CNT)}, {s(S_CNT)}, 1")
        a(f"s_cbranch_scc1 {Lo}")
        a(f"s_cbranch_execnz {L}")
        a(f"{Lo}:")
        a("s_mov_b64 exec, -1")
    def gather8(self, loads, vT, t, acc, vaddr, soff, lg, between=None):
        a = self.a; L = self.lab("lp"); Lo = self.lab("lpx")
        P, R, J, B, A = t+1, t+2, t+3, t+4, t+5
        for ld in loads: a(ld[0])
        if between: between()
        first = True
        for j, (_, r0, n) in enumerate(loads):
            a(f"s_waitcnt vmcnt({len(loads)-1-j})")
            for w in range(r0, r0+n):
                if first: a(f"v_xor_b32 {v(t)}, {v(w)}, {v(vT)}"); first = False
                else: a(f"v_bitop3_b32 {v(t)}, {v(w)}, {v(vT)}, {v(t)} bitop3:0xbe")
            if j == len(loads) - 1:
                a(f"v_and_b32 {v(t)}, {s(S_TM)}, {v(t)}")
                a(f"v_cmp_ne_u32 vcc, 0, {v(t)}")
            if j >= 1:
                p = loads[0][1] if j == 1 else acc
                a(f"v_pk_add_f32 {v(acc,2)}, {v(p,2)}, {v(r0,2)}"); a(f"v_pk_add_f32 {v(acc+2,2)}, {v(p+2,2)}, {v(r0+2,2)}")
        a(f"s_cbranch_vccz {Lo}")
        for r in range(acc, acc+4): a(f"v_mov_b32 {v(r)}, 0")
        a(f"v_mov_b32 {v(P)}, 0")
        def check(q):
            a(f"v_xor_b32 {v(t)}, {v(q)}, {v(vT)}")
            for w in range(q+1, q+4): a(f"v_bitop3_b32 {v(t)}, {v(w)}, {v(vT)}, {v(t)} bitop3:0xbe")
            a(f"v_and_b32 {v(t)}, {s(S_TM)}, {v(t)}")
            a(f"v_cmp_eq_u32 vcc, 0, {v(t)}")
        for j, (_, r0, n) in enumerate(loads):
            check(r0)
            a("s_mov_b64 exec, vcc")
            a(f"v_pk_add_f32 {v(acc,2)}, {v(acc,2)}, {v(r0,2)}"); a(f"v_pk_add_f32 {v(acc+2,2)}, {v(acc+2,2)}, {v(r0+2,2)}")
            a("s_not_b64 exec, vcc")
            a(f"v_or_b32 {v(P)}, {1 << j}, {v(P)}")
            a("s_mov_b64 exec, -1")
        Q = loads[0][1]
        a(f"v_mov_b32 {v(R)}, {v(P)}")
        a(f"v_cmp_ne_u32 vcc, 0, {v(P)}")
        a(f"s_mov_b32 {s(S_CNT)}, {SPIN*4}")
        a("s_mov_b64 exec, vcc")
        a(f"{L}:")
        a(f"v_ffbl_b32 {v(J)}, {v(R)}")
        a(f"v_lshl_add_u32 {v(A)}, {v(J)}, {lg}, {v(vaddr)}")
        a(f"buffer_load_dwordx4 {v(Q,4)}, {v(A)}, {s(R0,4)}, {s(soff)} offen sc1")
        a(f"v_lshlrev_b32 {v(B)}, {v(J)}, 1")
        a(f"v_xor_b32 {v(R)}, {v(R)}, {v(B)}")
        a(f"s_sub_u32 {s(S_CNT)}, {s(S_CNT)}, 1")
        a(f"s_cbranch_scc1 {Lo}")
        a("s_waitcnt vmcnt(0)")
        check(Q)
        a(f"s_and_saveexec_b64 {s(S_T2,2)}, vcc")
        a(f"v_xor_b32 {v(P)}, {v(P)}, {v(B)}")
        a(f"v_pk_add_f32 {v(acc,2)}, {v(acc,2)}, {v(Q,2)}"); a(f"v_pk_add_f32 {v(acc+2,2)}, {v(acc+2,2)}, {v(Q+2,2)}")
        a(f"s_mov_b64 exec, {s(S_T2,2)}")
        a(f"v_cmp_eq_u32 {s(S_T2,2)}, 0, {v(R)}")
        a(f"v_cmp_ne_u32 vcc, 0, {v(P)}")
        a(f"v_cndmask_b32 {v(R)}, {v(R)}, {v(P)}, {s(S_T2,2)}")
        a("s_mov_b64 exec, vcc")
        a(f"s_cbranch_execnz {L}")
        a(f"{Lo}:")
        a("s_mov_b64 exec, -1")
    def lds_wait(self, off, val, vz, t, extra=(), sleep=1):
        a = self.a; L = self.lab("lw"); Lo = self.lab("lwx")
        a(f"s_mov_b32 {s(S_CNT)}, {SPIN*16}")
        a(f"{L}:")
        a(f"ds_read_b32 {v(t)}, {v(vz)} offset:{off}")
        for e in extra: a(e)
        a("s_waitcnt lgkmcnt(0)")
        a(f"v_readfirstlane_b32 {s(S_T3)}, {v(t)}")
        a(f"s_cmp_ge_u32 {s(S_T3)}, {val}")
        a(f"s_cbranch_scc1 {Lo}")
        a(f"s_sub_u32 {s(S_CNT)}, {s(S_CNT)}, 1")
        a(f"s_cbranch_scc1 {Lo}")
        if sleep: a(f"s_sleep {sleep}")
        a(f"s_branch {L}")
        a(f"{Lo}:")
    def pub(self, text, sfast):
        a = self.a
        La, Lb = self.lab("pl"), self.lab("pj")
        a(f"s_cmp_eq_u32 {s(sfast)}, 2"); a(f"s_cbranch_scc1 {La}")
        a(text + " sc1"); a(f"s_branch {Lb}")
        a(f"{La}:"); a(text); a(f"{Lb}:")
    def trig(self, what, vz, t):
        if what == "q": self.lds_wait(L_QFLAG, 1, vz, t)
        elif what == "ml": self.lds_wait(L_MLCNT, 8, vz, t)
        elif isinstance(what, int) and what > 0: self.lds_wait(L_PROG, what, vz, t)
    def streamer(self):
        a = self.a
        VK, VV, VZ, VT, VT2 = 1, 2, 3, 4, 5
        Q, S, DT, KB = 8, 12, 20, 36
        slot = lambda i: KB + 4*i
        ACC, AO, B = slot(16), slot(18), slot(23)
        SB = S_T0
        a(f"s_lshl_b32 {s(SB)}, {s(S_H)}, 23"); a(f"s_lshl_b32 {s(S_T1)}, {s(S_S)}, 18"); a(f"s_or_b32 {s(SB)}, {s(SB)}, {s(S_T1)}")
        a(f"s_lshl_b32 {s(S_T1)}, {s(S_WAVE)}, {self.il}"); a(f"s_or_b32 {s(SB)}, {s(SB)}, {s(S_T1)}")
        if self.rot == 1: a(f"s_lshl_b32 {s(S_M+9)}, {s(S_S)}, 15")
        if self.rot == 2: a(f"s_add_u32 {s(S_M+9)}, {s(S_S)}, {s(S_H)}"); a(f"s_lshl_b32 {s(S_M+9)}, {s(S_M+9)}, 15")
        a(f"v_lshlrev_b32 {v(VV)}, 4, v0")
        a(f"v_and_b32 {v(VT)}, 0xc0, {v(VV)}"); a(f"v_lshlrev_b32 {v(VT)}, 2, {v(VT)}")
        a(f"v_lshrrev_b32 {v(VK)}, 4, v0"); a(f"v_lshlrev_b32 {v(VK)}, 6, {v(VK)}")
        a(f"v_and_b32 {v(VT2)}, 48, {v(VV)}")
        a(f"v_or3_b32 {v(VK)}, {v(VK)}, {v(VT)}, {v(VT2)}")
        a(f"v_mov_b32 {v(VZ)}, 0")
        a("s_waitcnt lgkmcnt(0)")
        self.srd(R0, P_K, 0x4000000); self.srd(R1, P_V, 0x4000000)
        def off(i):
            if self.il == 12: return (i >> 2) * 32768, (i & 3) * 1024
            return i * 8192, 0
        last_so = [None]
        VWA, VWD = 6, 7
        SA, SW0, SW1, SSTR = S_M+5, S_M+6, S_M+7, S_M+4
        def regs(it):
            k, i = it
            return {'K': slot(i), 'V': slot(i % 16), 'A': slot(28 + i), 'W': (DT + 4*i if self.wpos > 40 else slot(28 + i))}[k]
        def setup_a():
            a(f"s_lshr_b32 {s(S_M)}, {s(S_WAVE)}, 1")
            self.s1_geom(True)
            a(f"s_and_b32 {s(S_T3)}, {s(S_WAVE)}, 1"); a(f"s_lshl_b32 {s(S_T3)}, {s(S_T3)}, 2"); a(f"s_add_u32 {s(S_T3)}, {s(S_T3)}, {s(S_M+3)}")
            a(f"s_mul_i32 {s(S_T3)}, {s(S_T3)}, {s(SSTR)}"); a(f"s_lshl_b32 {s(SA)}, {s(S_T2)}, 7"); a(f"s_add_u32 {s(SA)}, {s(SA)}, {s(S_T3)}")
            a(f"v_and_b32 {v(VT)}, 56, v0"); a(f"v_mul_u32_u24 {v(VT)}, {s(SSTR)}, {v(VT)}")
            a(f"v_and_b32 {v(VT2)}, 0x70, {v(VV)}"); a(f"v_add_u32 {v(VWA)}, {v(VT)}, {v(VT2)}")
        def setup_w():
            a(f"s_and_b32 {s(S_T2)}, {s(S_S)}, 3"); a(f"s_lshl_b32 {s(S_T2)}, {s(S_T2)}, 1"); a(f"s_lshr_b32 {s(S_T3)}, {s(S_WAVE)}, 2")
            a(f"s_add_u32 {s(S_T2)}, {s(S_T2)}, {s(S_T3)}"); a(f"s_lshl_b32 {s(S_T2)}, {s(S_T2)}, 7")
            a(f"s_lshl_b32 {s(SW0)}, {s(S_H)}, 19"); a(f"s_lshr_b32 {s(S_T3)}, {s(S_S)}, 2"); a(f"s_lshl_b32 {s(S_T3)}, {s(S_T3)}, 10")
            a(f"s_add_u32 {s(SW0)}, {s(SW0)}, {s(S_T3)}"); a(f"s_add_u32 {s(SW0)}, {s(SW0)}, {s(S_T2)}")
            self.fblock(SW1, S_T3)
            a(f"s_lshl_b32 {s(SW1)}, {s(SW1)}, 15"); a(f"s_add_u32 {s(SW1)}, {s(SW1)}, {s(S_T2)}")
            a(f"s_and_b32 {s(S_T2)}, {s(S_WAVE)}, 3")
            a(f"s_lshl_b32 {s(S_T3)}, {s(S_T2)}, 16"); a(f"s_add_u32 {s(SW0)}, {s(SW0)}, {s(S_T3)}")
            a(f"s_lshl_b32 {s(S_T3)}, {s(S_T2)}, 13"); a(f"s_add_u32 {s(SW1)}, {s(SW1)}, {s(S_T3)}")
            self.srd(R2, P_WO, 0x400000); self.srd(R3, P_WD, 0x1c0000)
            a(f"v_lshrrev_b32 {v(VT)}, 3, v0"); a(f"v_and_b32 {v(VT2)}, 0x70, {v(VV)}")
            a(f"v_lshl_add_u32 {v(VWD)}, {v(VT)}, 10, {v(VT2)}"); a(f"v_lshl_add_u32 {v(VWA)}, {v(VT)}, 13, {v(VT2)}")
        def load(it):
            k, i = it
            r = v(regs(it), 4)
            if k in 'KV':
                so, imm = off(i)
                if so != last_so[0]:
                    if self.rot:
                        a(f"s_add_u32 {s(S_T1)}, {s(S_M+9)}, {so}"); a(f"s_and_b32 {s(S_T1)}, {s(S_T1)}, 0x38000"); a(f"s_or_b32 {s(S_T1)}, {s(S_T1)}, {s(SB)}")
                    else: a(f"s_add_u32 {s(S_T1)}, {s(SB)}, {so}")
                    last_so[0] = so
                a(f"buffer_load_dwordx4 {r}, {v(VV if k == 'V' else VK)}, {s(R1 if k == 'V' else R0,4)}, {s(S_T1)} offen offset:{imm} {self.kvpol}")
            elif k == 'A':
                if i == 0: setup_a()
                a(f"buffer_load_dwordx4 {r}, {v(VWA)}, {s(R2,4)}, {s(SA)} offen {self.wpol}")
                if i < 3: a(f"s_add_u32 {s(SA)}, {s(SA)}, {s(SSTR)}")
            else:
                if i < 2: a(f"buffer_load_dwordx4 {r}, {v(VWA)}, {s(R2,4)}, {s(SW0)} offen {self.wpol}")
                else: a(f"buffer_load_dwordx4 {r}, {v(VWD)}, {s(R3,4)}, {s(SW1)} offen {self.wpol}")
                if i == 0: a(f"s_add_u32 {s(SW0)}, {s(SW0)}, 0x40000")
        def count(off_):
            a(f"v_mov_b32 {v(VT2)}, 1"); a("s_mov_b64 exec, 1"); a(f"ds_add_u32 {v(VZ)}, {v(VT2)} offset:{off_}"); a("s_mov_b64 exec, -1")
        def put_a():
            a(f"s_lshl_b32 {s(S_T2)}, {s(S_WAVE)}, 12"); a(f"v_add_u32 {v(VT)}, {s(S_T2)}, {v(VV)}")
            for i in range(4): a(f"ds_write_b128 {v(VT)}, {v(regs(('A', i)),4)} offset:{L_A + 1024*i}")
            count(L_ACNT)
            if not self.wdma: setup_w()
        def put_w():
            a(f"s_lshr_b32 {s(S_T2)}, {s(S_WAVE)}, 2"); a(f"s_mul_i32 {s(S_T2)}, {s(S_T2)}, 12288")
            a(f"s_and_b32 {s(S_T3)}, {s(S_WAVE)}, 3"); a(f"s_lshl_b32 {s(S_T3)}, {s(S_T3)}, 10"); a(f"s_add_u32 {s(S_T2)}, {s(S_T2)}, {s(S_T3)}")
            a(f"v_add_u32 {v(VT)}, {s(S_T2)}, {v(VV)}")
            for i in range(3): a(f"ds_write_b128 {v(VT)}, {v(regs(('W', i)),4)} offset:{L_W + 4096*i}")
            count(L_WCNT)
        def qk(j):
            for m in range(4):
                a(f"v_mfma_f32_16x16x32_bf16 {v(DT+4*m,4)}, {v(slot(4*j+m),4)}, {v(Q,4)}, 0")
            if self.qk2:
                if j == 0:
                    for m in range(1, 4):
                        a(f"s_mov_b32 {s(P_X+2*m)}, {(15 << 4*m) * 0x10001:#x}"); a(f"s_mov_b32 {s(P_X+2*m+1)}, {(15 << 4*m) * 0x10001:#x}")
                for k in range(1, 4):
                    for m in range(4):
                        b = (m + k) & 3
                        a(f"v_add_f32_dpp {v(DT+5*m)}, {v(DT+4*m+b)}, {v(DT+5*m)} row_ror:{(4*(m-b)) & 15} row_mask:0xf bank_mask:0xf")
                for m in range(1, 4):
                    a(f"v_cndmask_b32 {v(S+j)}, {v(DT if m == 1 else S+j)}, {v(DT+5*m)}, {s(P_X+2*m,2)}")
                return
            for k in range(1, 4):
                for m in range(4):
                    b = (m + k) & 3
                    other = DT+4*m+m if k == 1 else S+j
                    a(f"v_add_f32_dpp {v(S+j)}, {v(DT+4*m+b)}, {v(other)} row_ror:{(4*(m-b)) & 15} row_mask:0xf bank_mask:{1<<m:#x}")
        M, Lr = DT, DT+1
        def sm_scale(k):
            if k == 0: a(f"s_mov_b32 {s(S_M+8)}, {SCALE:#x}")
            x, y = S+2*k, S+2*k+1
            self.rbf2(x, y, x, y, VT)
            a(f"v_mul_f32 {v(x)}, {s(S_M+8)}, {v(x)}"); a(f"v_mul_f32 {v(y)}, {s(S_M+8)}, {v(y)}")
            self.rbf2(x, y, x, y, VT)
        def sm_max():
            a(f"v_max3_f32 {v(M)}, {v(S)}, {v(S+1)}, {v(S+2)}"); a(f"v_max3_f32 {v(M)}, {v(M)}, {v(S+3)}, {v(S+4)}")
            a(f"v_max3_f32 {v(M)}, {v(M)}, {v(S+5)}, {v(S+6)}"); a(f"v_max_f32 {v(M)}, {v(M)}, {v(S+7)}")
            self.ror("v_max_f32", [M], (4, 8)); self.rows_all("v_max_f32", M, VT)
        def sm_exp():
            a(f"s_mov_b32 {s(S_T2)}, {LOG2E:#x}")
            for k in range(8): a(f"v_sub_f32 {v(S+k)}, {v(S+k)}, {v(M)}")
            for k in range(8): a(f"v_mul_f32 {v(S+k)}, {s(S_T2)}, {v(S+k)}")
            for k in range(8): a(f"v_exp_f32 {v(S+k)}, {v(S+k)}")
        def sm_sum():
            a(f"v_add_f32 {v(Lr)}, {v(S)}, {v(S+1)}")
            for k in range(2, 8): a(f"v_add_f32 {v(Lr)}, {v(Lr)}, {v(S+k)}")
            self.ror("v_add_f32", [Lr], (4, 8)); self.rows_all("v_add_f32", Lr, VT)
            a(f"s_lshl_b32 {s(S_T2)}, {s(S_WAVE)}, 5")
            a(f"v_lshl_add_u32 {v(VT)}, v0, 2, {s(S_T2)}"); a(f"v_mov_b32 {v(VT2)}, 1")
            a("s_mov_b64 exec, 15")
            a(f"ds_write2_b32 {v(VT)}, {v(M)}, {v(Lr)} offset0:{L_ML//4} offset1:{L_ML//4+4}")
            a("s_mov_b64 exec, 1")
            a(f"ds_add_u32 {v(VZ)}, {v(VT2)} offset:{L_MLCNT}")
            a("s_mov_b64 exec, -1")
        def zero_acc():
            a(f"s_mul_i32 {s(S_T2)}, {s(S_WAVE)}, {OSTR}")
            a(f"v_and_b32 {v(VT)}, 15, v0"); a(f"v_mul_u32_u24 {v(VT)}, 144, {v(VT)}"); a(f"v_and_b32 {v(VWD)}, 48, v0")
            a(f"v_add3_u32 {v(VWD)}, {v(VWD)}, {v(VT)}, {s(S_T2)}")
            for r in range(ACC, ACC+8): a(f"v_mov_b32 {v(r)}, 0")
            for r in range(AO, AO+16): a(f"v_mov_b32 {v(r)}, 0")
        def build_a(j):
            a(f"v_cvt_pk_bf16_f32 {v(VT)}, {v(S+2*j)}, {v(S+2*j+1)}")
            for m in range(4):
                for e in range(4):
                    n = (4*(e-m)) & 15
                    ctl = f"row_ror:{n}" if n else "quad_perm:[0,1,2,3]"
                    a(f"v_mov_b32_dpp {v(AO+4*e+m)}, {v(VT)} {ctl} row_mask:0xf bank_mask:{1<<e:#x}")
        def perm1(j, m, e):
            lo, hi = slot((8*j+m) % 16), slot((8*j+4+m) % 16)
            a(f"v_perm_b32 {v(B+4*e+m)}, {v(hi+(e>>1))}, {v(lo+(e>>1))}, {s(S_HIS if e & 1 else S_LO)}")
        def mfma_pv(e):
            acc = ACC + 4*(e >> 2)
            a(f"v_mfma_f32_16x16x32_bf16 {v(acc,4)}, {v(AO+4*(e&3),4)}, {v(B+4*e,4)}, {v(acc,4)}")
        def pv_last(j):
            order = [0, 4, 1, 5, 2, 6, 3, 7]
            for k in range(3): perm1(j, 3, order[k])
            for k in range(8):
                mfma_pv(order[k])
                if k + 3 < 8: perm1(j, 3, order[k+3])
        def qwait():
            a(f"v_and_b32 {v(VT2)}, 3, v0"); a(f"v_lshlrev_b32 {v(VT2)}, 8, {v(VT2)}")
            a(f"v_and_b32 {v(VT)}, 0xc0, {v(VV)}"); a(f"v_lshrrev_b32 {v(VT)}, 2, {v(VT)}")
            a(f"v_and_b32 {v(DT)}, 0x300, {v(VV)}"); a(f"v_lshrrev_b32 {v(DT)}, 2, {v(DT)}")
            a(f"v_or3_b32 {v(VT2)}, {v(VT2)}, {v(VT)}, {v(DT)}")
            self.stamp(2)
            if not self.cut: self.lds_wait(L_QFLAG, 1, VZ, VT, [f"ds_read_b128 {v(Q,4)}, {v(VT2)} offset:{L_Q}"])
            self.stamp(3)
        kv = [('K', i) for i in range(32)] + [('V', i) for i in range(32)]
        seq = kv[:self.apos] + [('A', i) for i in range(4)] + kv[self.apos:self.wpos] + [('W', i) for i in range(0 if self.wdma else 3)] + kv[self.wpos:]
        if self.agap:
            seq = [x for x in seq if x[0] != 'A']
            for i in range(4): seq.insert(self.apos + i*(self.agap + 1), ('A', i))
        pos = {it: n for n, it in enumerate(seq)}
        N = len(seq)
        def owrite():
            self.stamp(7)
            pv_last(3)
            a(f"ds_write_b128 {v(VWD)}, {v(ACC,4)} offset:{L_O}")
            a(f"ds_write_b128 {v(VWD)}, {v(ACC+4,4)} offset:{L_O+64}")
            a("s_waitcnt lgkmcnt(0)")
            a("s_barrier")
        p0 = pos[('K', self.n0)]
        tasks = [(p0, -1, [], qwait)]
        for j in range(8):
            tasks.append((p0 + j, pos[('K', 4*j+3)], [('K', 4*j+m) for m in range(4)], lambda j=j: qk(j)))
            if j & 1: tasks.append((0, -1, [], lambda j=j: sm_scale(j >> 1)))
        for f in (sm_max, sm_exp, sm_sum, zero_acc): tasks.append(('next', -1, [], f))
        for j in range(4):
            tasks.append(('next', -1, [], lambda j=j: build_a(j)))
            for m in range(3): tasks.append(('next', pos[('V', 8*j+4+m)], [('V', 8*j+m), ('V', 8*j+4+m)], lambda j=j, m=m: [perm1(j, m, e) for e in range(8)]))
            tasks.append(('next', pos[('V', 8*j+7)], [('V', 8*j+3), ('V', 8*j+7)], (lambda j=j: pv_last(j)) if j < 3 else owrite))
        side = [(0, pos[('A', 3)], [('A', i) for i in range(4)], put_a)]
        if not self.wdma: side.append((0, pos[('W', 2)], [('W', i) for i in range(3)], put_w))
        trigs = {pos[kv[t]]: t for t in (self.nq, self.nm, self.g_trig) if isinstance(t, int) and t > 0}
        def Dn(n):
            if self.ramp and n < len(self.ramp): return self.ramp[n]
            return self.D2 if (self.D2 and n >= self.nD2) else self.D
        nbar = (self.ramp[0] if self.ramp else self.D) - 1
        busy = {}; landed = -1
        def run(n):
            for q in (side, tasks):
                did = False
                while q and q[0][1] <= landed:
                    e = q[0][0]
                    if e == 'next':
                        if did and n < 99 and self.smooth: break
                    elif e > n: break
                    t = q.pop(0); t[3](); did = True
                    for x in t[2]: busy.pop(regs(x))
        NM = N - 3 if self.wlate else N
        SK, SJ, VB, V1 = S_M+10, S_M+11, 164, 167
        if self.ctl:
            a(f"s_mov_b32 {s(SK)}, {self.ctl.get('init', 0)}"); a(f"s_mov_b32 {s(SJ)}, 0"); a(f"v_mov_b32 {v(V1)}, 1")
        for n in range(NM):
            if self.ctl and self.ctl['from'] <= n < self.ctl['to']:
                Lb = self.lab("win"); D = Dn(n)
                two = self.ctl.get('g2')
                top = D + (2 if two else 1)
                if n - top > landed: a(f"s_waitcnt vmcnt({top-1})"); landed = n - top
                if n & 1:
                    a("s_waitcnt lgkmcnt(0)"); a(f"v_readfirstlane_b32 {s(SK)}, {v(VB)}"); a(f"v_readfirstlane_b32 {s(SJ)}, {v(VB+1)}")
                a(f"s_cmp_gt_u32 {s(SK)}, {n}"); a(f"s_cbranch_scc1 {Lb}")
                a(f"s_waitcnt vmcnt({top-2})")
                if two:
                    a(f"s_cmp_gt_u32 {s(SJ)}, {n}"); a(f"s_cbranch_scc1 {Lb}")
                    a(f"s_waitcnt vmcnt({top-3})")
                elif self.ctl['tcap']:
                    a(f"s_cmp_le_u32 {s(SJ)}, {n}"); a(f"s_cbranch_scc1 {Lb}")
                    a(f"s_waitcnt vmcnt({D-2})")
                a(f"{Lb}:")
            elif n - Dn(n) > landed:
                a(f"s_waitcnt vmcnt({Dn(n)-1})"); landed = n - Dn(n)
            assert regs(seq[n]) not in busy, (n, seq[n])
            busy[regs(seq[n])] = n
            load(seq[n])
            if self.trace and seq[n] in kv:
                m = kv.index(seq[n])
                if m: a("s_waitcnt lgkmcnt(0)"); a(f"v_writelane_b32 v166, s100, {m-1}")
                a("s_memrealtime s[100:101]")
            if n == nbar:
                a(f"s_mov_b32 {s(S_HI)}, 0xffff0000"); a(f"s_mov_b32 {s(S_LO)}, 0x05040100"); a(f"s_mov_b32 {s(S_HIS)}, 0x07060302")
                a("s_barrier")
            if self.ctl and nbar <= n < self.ctl['to']:
                a("s_mov_b64 exec, 1"); a(f"ds_add_u32 {v(VZ)}, {v(V1)} offset:{L_CNT}"); a("s_mov_b64 exec, -1")
                if not n & 1: a(f"ds_read_b64 {v(VB,2)}, {v(VZ)} offset:{L_BOOST}")
            if n in trigs:
                a(f"v_mov_b32 {v(VT)}, {trigs[n]}"); a("s_mov_b64 exec, 1"); a(f"ds_max_u32 {v(VZ)}, {v(VT)} offset:{L_PROG}"); a("s_mov_b64 exec, -1")
            if self.wdma and seq[n] == kv[min(63, self.wpos - 1)]: count(L_WCNT)
            if n == nbar + 1: self.stamp(1)
            if landed == pos[('K', 31)]: self.stamp(4)
            run(n)
        issued = NM
        while landed < N - 1:
            landed += 1
            now = issued < N and landed == NM - self.wlate
            if not now and not any(q and q[0][1] <= landed for q in (side, tasks)): continue
            a(f"s_waitcnt vmcnt({issued - 1 - landed})")
            if now:
                for n in range(NM, N):
                    busy[regs(seq[n])] = n; load(seq[n])
                issued = N
            run(99)
        assert not tasks and not side
        self.stamp(8)
        if self.trace:
            a(f"s_mul_i32 {s(S_T0)}, {s(S_WG)}, 8"); a(f"s_add_u32 {s(S_T0)}, {s(S_T0)}, {s(S_WAVE)}")
            a(f"s_lshl_b32 {s(S_T0)}, {s(S_T0)}, 8"); a(f"s_add_u32 {s(S_T0)}, {s(S_T0)}, {STAMP + (1<<20):#x}")
            a(f"v_lshl_add_u32 {v(VT)}, v0, 2, {s(S_T0)}")
            a(f"global_store_dword {v(VT)}, v166, {s(P_WS,2)}")
        self.finish(VT)

    def s1_geom(self, loader):
        a = self.a
        SZ, SCB, SRB, SROW, SSTR = S_M, S_M+1, S_M+2, S_M+3, S_M+4
        Lf, Lj = self.lab("s1ffn"), self.lab("s1join")
        a(f"s_cmp_ge_u32 {s(S_S)}, 16"); a(f"s_cbranch_scc1 {Lf}")
        a(f"s_and_b32 {s(SCB)}, {s(S_S)}, 7"); a(f"s_lshr_b32 {s(SRB)}, {s(S_S)}, 3")
        a(f"s_lshl_b32 {s(SROW)}, {s(SRB)}, 2"); a(f"s_add_u32 {s(SROW)}, {s(SROW)}, {s(SZ)}"); a(f"s_lshl_b32 {s(SROW)}, {s(SROW)}, 6")
        if loader:
            a(f"s_mov_b32 {s(SSTR)}, 8192")
            a(f"s_lshl_b32 {s(S_T2)}, {s(S_H)}, 3"); a(f"s_add_u32 {s(S_T2)}, {s(S_T2)}, {s(SCB)}")
            self.srd(R2, P_WQ, 0x400000)
        a(f"s_branch {Lj}")
        a(f"{Lf}:")
        if self.hello in (1, 3, 5): a(f"s_sub_u32 {s(S_T2)}, {s(S_S)}, 16"); a(f"s_lshl_b32 {s(S_T3)}, {s(S_H)}, 4"); a(f"s_add_u32 {s(S_T2)}, {s(S_T2)}, {s(S_T3)}")
        else: a(f"s_sub_u32 {s(S_T2)}, {s(S_S)}, 16"); a(f"s_lshl_b32 {s(S_T2)}, {s(S_T2)}, 3"); a(f"s_add_u32 {s(S_T2)}, {s(S_T2)}, {s(S_H)}")
        a(f"s_lshr_b32 {s(SCB)}, {s(S_T2)}, 2"); a(f"s_and_b32 {s(SRB)}, {s(S_T2)}, 3")
        a(f"s_and_b32 {s(S_T3)}, {s(SZ)}, 1")
        a(f"s_lshl_b32 {s(SROW)}, {s(SRB)}, 1"); a(f"s_add_u32 {s(SROW)}, {s(SROW)}, {s(S_T3)}"); a(f"s_lshl_b32 {s(SROW)}, {s(SROW)}, 6")
        if loader:
            a(f"s_mov_b32 {s(SSTR)}, 3584")
            a(f"s_mov_b32 {s(S_T2)}, {s(SCB)}")
            a(f"s_cmp_ge_u32 {s(SZ)}, 2")
            a(f"s_cselect_b32 {s(R2)}, {s(P_WU)}, {s(P_WG)}"); a(f"s_cselect_b32 {s(R2+1)}, {s(P_WU+1)}, {s(P_WG+1)}")
            a(f"s_cmp_lt_u32 {s(SCB)}, 28")
            a(f"s_cselect_b32 {s(R2+2)}, 0x1c0000, 0"); a(f"s_mov_b32 {s(R2+3)}, 0x20000")
        a(f"{Lj}:")

    VZ, VT, VA, T = 1, 2, 3, 4
    def stage1(self):
        a = self.a
        VZ, VT, VA, T = self.VZ, self.VT, self.VA, self.T
        X, XF, XR, ACC, W = 12, 16, 24, 32, 40
        SZ, SCB, SRB, SROW, SSTR = S_M, S_M+1, S_M+2, S_M+3, S_M+4
        a(f"s_and_b32 {s(SZ)}, {s(S_WAVE)}, 3")
        a(f"v_mov_b32 {v(VZ)}, 0"); a(f"v_lshlrev_b32 {v(VA)}, 4, v0")
        if self.pf:
            Lp = self.lab("nopf")
            a(f"s_cmp_ge_u32 {s(S_S)}, {self.pf}"); a(f"s_cbranch_scc1 {Lp}")
            a(f"s_getpc_b64 {s(R4,2)}")
            a(f"Lpc:")
            a(f"s_sub_u32 {s(R4)}, {s(R4)}, Lpc-{KN}"); a(f"s_subb_u32 {s(R4+1)}, {s(R4+1)}, 0")
            a(f"s_mov_b32 {s(R4+2)}, Lcode_end-{KN}"); a(f"s_mov_b32 {s(R4+3)}, 0x20000")
            a(f"s_lshl_b32 {s(S_T0)}, {s(SZ)}, 12")
            for k in range(4):
                a(f"buffer_load_dwordx4 {v(W+32+4*k,4)}, {v(VA)}, {s(R4,4)}, {s(S_T0)} offen offset:{1024*k}")
            a(f"{Lp}:")
        self.s1_geom(False)
        a("s_waitcnt lgkmcnt(0)")
        self.srd(R0, P_WS, WS_USED); self.srd(R1, P_X, 1024)
        a(f"buffer_load_dwordx4 {v(X,4)}, {v(VA)}, {s(R1,4)}, 0 offen")
        a(f"buffer_load_dword {v(VT)}, {v(VZ)}, {s(R0,4)}, 0 offen offset:{EPOCH}")
        Lb = self.lab("s1b")
        a(f"s_cmp_lg_u32 {s(SZ)}, 0"); a(f"s_cbranch_scc1 {Lb}")
        a(f"v_lshlrev_b32 {v(T+2)}, 2, v0")
        a("s_mov_b64 exec, 0xffff")
        a(f"ds_write_b32 {v(T+2)}, {v(VZ)}")
        a("s_mov_b64 exec, -1")
        a("s_waitcnt lgkmcnt(0)")
        a(f"{Lb}:")
        a("s_barrier")
        a("s_waitcnt vmcnt(1)")
        self.stamp(1)
        self.layernorm(X, XF, T)
        a(f"s_lshr_b32 {s(S_T0)}, {s(SROW)}, 1")
        a(f"v_lshrrev_b32 {v(T)}, 3, v0"); a(f"v_lshl_add_u32 {v(T)}, {v(T)}, 2, {s(S_T0)}")
        for j in range(8): a(f"ds_bpermute_b32 {v(XR+j)}, {v(T)}, {v(XF+j)}")
        a("s_waitcnt vmcnt(0)")
        a(f"v_add_u32 {v(VT)}, 1, {v(VT)}"); a(f"v_readfirstlane_b32 {s(S_E)}, {v(VT)}")
        a(f"v_and_b32 {v(VT)}, {s(S_TM)}, {v(VT)}")
        if self.hello:
            Lh = self.lab("hello")
            a(f"s_cmp_lg_u32 {s(SZ)}, 0"); a(f"s_cbranch_scc1 {Lh}")
            a(f"s_getreg_b32 {s(S_M+5)}, hwreg(HW_REG_XCC_ID, 0, 4)"); a(f"s_lshl_b32 {s(S_T0)}, {s(S_E)}, 4"); a(f"s_or_b32 {s(S_M+5)}, {s(S_M+5)}, {s(S_T0)}")
            a(f"s_lshl_b32 {s(S_M+7)}, {s(S_H)}, 7"); a(f"s_add_u32 {s(S_M+7)}, {s(S_M+7)}, {XBOX:#x}")
            a(f"s_lshl_b32 {s(S_T0)}, {s(S_S)}, 2"); a(f"s_add_u32 {s(S_T0)}, {s(S_T0)}, {s(S_M+7)}")
            a(f"v_mov_b32 {v(T+2)}, {s(S_M+5)}")
            a("s_mov_b64 exec, 1")
            a(f"buffer_store_dword {v(T+2)}, {v(VZ)}, {s(R0,4)}, {s(S_T0)} offen" + ("" if self.hello >= 4 else " sc1"))
            a("s_mov_b64 exec, -1")
            a(f"{Lh}:")
        a(f"s_lshl_b32 {s(S_T0)}, {s(SZ)}, 13"); a(f"v_add_u32 {v(T)}, {s(S_T0)}, {v(VA)}")
        self.lds_wait(L_ACNT, 8, VZ, T+1)
        for j in range(8): a(f"ds_read_b128 {v(W+4*j,4)}, {v(T)} offset:{L_A+1024*j}")
        for j in range(8):
            self.lgkm(7-j)
            for k in range(4):
                self.unpack(T, T+1, W+4*j+k)
                op = "v_mul_f32" if j == 0 else "v_fmac_f32"
                a(f"{op} {v(ACC+2*k)}, {v(XR+j)}, {v(T)}"); a(f"{op} {v(ACC+2*k+1)}, {v(XR+j)}, {v(T+1)}")
        self.fold("v_permlane32_swap_b32", [(ACC+e, ACC+e+4) for e in range(4)])
        self.fold("v_permlane16_swap_b32", [(ACC+e, ACC+e+2) for e in range(2)])
        self.ror("v_add_f32", [ACC, ACC+1], (8,))
        a(f"s_lshl_b32 {s(S_T0)}, {s(SZ)}, 8")
        a(f"v_and_b32 {v(T)}, 7, v0"); a(f"v_lshl_add_u32 {v(T)}, {v(T)}, 5, {s(S_T0)}")
        a(f"v_lshrrev_b32 {v(T+1)}, 4, v0"); a(f"v_lshl_add_u32 {v(T)}, {v(T+1)}, 3, {v(T)}")
        a(f"v_mov_b32 {v(T+1)}, 1")
        a("s_mov_b32 exec_lo, 0xff00ff"); a("s_mov_b32 exec_hi, 0xff00ff")
        a(f"ds_write_b64 {v(T)}, {v(ACC,2)} offset:{L_S1}")
        a("s_mov_b64 exec, 1")
        a(f"ds_add_u32 {v(VZ)}, {v(T+1)} offset:{L_S1CNT}")
        a("s_mov_b64 exec, -1")
        self.stamp(2)

    def sw0(self):
        a = self.a
        VZ, VT, VA, T = self.VZ, self.VT, self.VA, self.T
        XF, W = 16, 40
        SZ, SCB, SRB = S_M, S_M+1, S_M+2
        if self.hello:
            L, Lo = self.lab("hp"), self.lab("hpx")
            self.lds_wait(L_S1CNT, 4, VZ, T+1)
            a(f"v_and_b32 {v(T)}, 31, v0"); a(f"v_lshlrev_b32 {v(T)}, 2, {v(T)}")
            a(f"s_mov_b32 {s(S_CNT)}, {SPIN}")
            a(f"{L}:")
            a(f"buffer_load_dword {v(T+1)}, {v(T)}, {s(R0,4)}, {s(S_M+7)} offen sc1")
            a("s_waitcnt vmcnt(0)")
            a(f"v_xor_b32 {v(T+1)}, {s(S_M+5)}, {v(T+1)}")
            if self.hello < 4:
                a(f"v_cmp_lt_u32 vcc, 15, {v(T+1)}")
                a(f"s_sub_u32 {s(S_CNT)}, {s(S_CNT)}, 1"); a(f"s_cbranch_scc1 {Lo}")
                a(f"s_cbranch_vccnz {L}")
            a(f"{Lo}:")
            a(f"v_cmp_ne_u32 vcc, 0, {v(T+1)}")
            a("s_cmp_eq_u64 vcc, 0"); a(f"s_cselect_b32 {s(S_M+6)}, 2, 1")
        a(f"v_and_b32 {v(T)}, 0xf0, {v(VA)}"); a(f"v_and_b32 {v(T+2)}, 16, v0"); a(f"v_lshl_add_u32 {v(T)}, {v(T+2)}, 5, {v(T)}")
        self.lds_wait(L_S1CNT, 4, VZ, T+1, [f"ds_read_b128 {v(W,4)}, {v(T)} offset:{L_S1}", f"ds_read_b128 {v(W+4,4)}, {v(T)} offset:{L_S1+256}"])
        a(f"v_pk_add_f32 {v(W,2)}, {v(W,2)}, {v(W+4,2)}"); a(f"v_pk_add_f32 {v(W+2,2)}, {v(W+2,2)}, {v(W+6,2)}")
        Lf, Lj = self.lab("c1ffn"), self.lab("c1join")
        a(f"s_cmp_ge_u32 {s(S_S)}, 16"); a(f"s_cbranch_scc1 {Lf}")
        for r in range(4): a(f"v_mov_b32 {v(W+4+r)}, {v(W+r)}")
        self.fold("v_permlane16_swap_b32", [(W+r, W+4+r) for r in range(4)])
        a(f"v_and_b32 {v(T)}, 0xf0, {v(VA)}")
        a(f"s_lshl_b32 {s(S_T1)}, {s(S_H)}, 12"); a(f"s_lshl_b32 {s(S_T2)}, {s(SRB)}, 11"); a(f"s_add_u32 {s(S_T1)}, {s(S_T1)}, {s(S_T2)}")
        a(f"s_lshl_b32 {s(S_T2)}, {s(SCB)}, 8"); a(f"s_add_u32 {s(S_T1)}, {s(S_T1)}, {s(S_T2)}"); a(f"s_add_u32 {s(S_T1)}, {s(S_T1)}, {QBOX:#x}")
        a("s_mov_b64 exec, 0xffff")
        a(f"s_branch {Lj}")
        a(f"{Lf}:")
        a(f"v_and_b32 {v(T)}, 8, v0"); a(f"v_lshlrev_b32 {v(T)}, 7, {v(T)}")
        a(f"v_and_b32 {v(T+1)}, 0x70, {v(VA)}"); a(f"v_lshl_add_u32 {v(T+1)}, {v(T+2)}, 3, {v(T+1)}"); a(f"v_add_u32 {v(T)}, {v(T)}, {v(T+1)}")
        a(f"s_lshl_b32 {s(S_T1)}, {s(SCB)}, 11"); a(f"s_lshl_b32 {s(S_T2)}, {s(SRB)}, 8"); a(f"s_add_u32 {s(S_T1)}, {s(S_T1)}, {s(S_T2)}")
        a(f"s_add_u32 {s(S_T1)}, {s(S_T1)}, {GBOX:#x}")
        a("s_mov_b32 exec_lo, -1"); a("s_mov_b32 exec_hi, 0")
        a(f"{Lj}:")
        self.tag(range(W, W+4), VT)
        if self.hello:
            if self.hello in (2, 4): a(f"s_cmp_ge_u32 {s(S_S)}, 16"); a(f"s_cselect_b32 {s(S_M+8)}, 1, {s(S_M+6)}")
            elif self.hello == 3: a(f"s_mov_b32 {s(S_M+8)}, 1")
            else: a(f"s_mov_b32 {s(S_M+8)}, {s(S_M+6)}")
            self.pub(f"buffer_store_dwordx4 {v(W,4)}, {v(T)}, {s(R0,4)}, {s(S_T1)} offen", S_M+8)
        else: a(f"buffer_store_dwordx4 {v(W,4)}, {v(T)}, {s(R0,4)}, {s(S_T1)} offen sc1")
        a("s_mov_b64 exec, -1")
        a(f"s_lshl_b32 {s(S_T0)}, {s(S_H)}, 12"); a(f"s_add_u32 {s(S_T0)}, {s(S_T0)}, {QBOX:#x}")
        W2 = W + 8
        self.trig(self.nq, VZ, T+1)
        self.poll([(f"buffer_load_dwordx4 {v(W2+4*k,4)}, {v(VA)}, {s(R0,4)}, {s(S_T0)} offen offset:{1024*k} sc1", W2+4*k, 4) for k in range(4)], VT, T)
        for k in range(4): a(f"v_pk_add_f32 {v(W2+2*k,2)}, {v(W2+2*k,2)}, {v(W2+8+2*k,2)}")
        for k in range(4): a(f"v_cvt_pk_bf16_f32 {v(XF+k)}, {v(W2+2*k)}, {v(W2+2*k+1)}")
        a(f"v_lshlrev_b32 {v(T)}, 3, v0"); a(f"v_mov_b32 {v(T+1)}, 1")
        a(f"ds_write_b64 {v(T)}, {v(XF,2)} offset:{L_Q}"); a(f"ds_write_b64 {v(T)}, {v(XF+2,2)} offset:{L_Q+512}")
        a("s_waitcnt lgkmcnt(0)")
        a(f"ds_write_b32 {v(VZ)}, {v(T+1)} offset:{L_QFLAG}")
        self.stamp(3)
        if self.cut == 1: return self.finish(T)
        MW, LW, M, L, MA, LA, MB, LB = XF, XF+1, XF+2, XF+3, W, W+1, W+2, W+3
        a(f"v_and_b32 {v(T)}, 28, v0"); a(f"v_lshlrev_b32 {v(T)}, 3, {v(T)}")
        a(f"v_and_b32 {v(T+2)}, 3, v0"); a(f"v_lshl_add_u32 {v(T)}, {v(T+2)}, 2, {v(T)}")
        self.lds_wait(L_MLCNT, 8, VZ, T+1, [f"ds_read2_b32 {v(MW,2)}, {v(T)} offset0:{L_ML//4} offset1:{L_ML//4+4}"])
        self.stamp(4)
        a(f"s_mov_b32 {s(S_T2)}, {LOG2E:#x}")
        a(f"v_mov_b32 {v(M)}, {v(MW)}")
        self.ror("v_max_f32", [M], (4, 8))
        a(f"v_mov_b32 {v(T)}, {v(M)}"); a(f"v_permlane16_swap_b32 {v(M)}, {v(T)}"); a(f"v_max_f32 {v(M)}, {v(M)}, {v(T)}")
        a(f"v_sub_f32 {v(L)}, {v(MW)}, {v(M)}"); a(f"v_mul_f32 {v(L)}, {s(S_T2)}, {v(L)}"); a(f"v_exp_f32 {v(L)}, {v(L)}")
        a(f"v_mul_f32 {v(L)}, {v(L)}, {v(LW)}")
        self.ror("v_add_f32", [L], (4, 8))
        a(f"v_mov_b32 {v(T)}, {v(L)}"); a(f"v_permlane16_swap_b32 {v(L)}, {v(T)}"); a(f"v_add_f32 {v(L)}, {v(L)}, {v(T)}")
        self.tag([M, L], VT)
        if self.fast and not self.hello:
            a(f"s_getreg_b32 {s(S_M+5)}, hwreg(HW_REG_XCC_ID, 0, 4)"); a(f"s_lshl_b32 {s(S_M+5)}, {s(S_M+5)}, 12")
            a(f"v_or_b32 {v(M)}, {s(S_M+5)}, {v(M)}")
        a(f"v_lshlrev_b32 {v(T)}, 3, v0")
        a(f"s_lshl_b32 {s(S_T0)}, {s(S_H)}, 10"); a(f"s_add_u32 {s(S_T0)}, {s(S_T0)}, {MLBOX:#x}")
        a(f"s_lshl_b32 {s(S_T1)}, {s(S_S)}, 5"); a(f"s_add_u32 {s(S_T1)}, {s(S_T1)}, {s(S_T0)}")
        a("s_mov_b64 exec, 15")
        if self.hello: self.pub(f"buffer_store_dwordx2 {v(M,2)}, {v(T)}, {s(R0,4)}, {s(S_T1)} offen", S_M+6)
        else: a(f"buffer_store_dwordx2 {v(M,2)}, {v(T)}, {s(R0,4)}, {s(S_T1)} offen sc1")
        a("s_mov_b64 exec, -1")
        self.trig(self.nm, VZ, T+1)
        self.poll([(f"buffer_load_dwordx2 {v(MA,2)}, {v(T)}, {s(R0,4)}, {s(S_T0)} offen sc1", MA, 2),
                   (f"buffer_load_dwordx2 {v(MB,2)}, {v(T)}, {s(R0,4)}, {s(S_T0)} offen offset:512 sc1", MB, 2)], VT, T+1, quad=True)
        if self.fast and not self.hello:
            a(f"v_xor_b32 {v(T+2)}, {s(S_M+5)}, {v(MA)}"); a(f"v_xor_b32 {v(T+3)}, {s(S_M+5)}, {v(MB)}")
            a(f"v_or_b32 {v(T+2)}, {v(T+2)}, {v(T+3)}"); a(f"v_and_b32 {v(T+2)}, 0xf000, {v(T+2)}")
            a(f"v_cmp_ne_u32 vcc, 0, {v(T+2)}")
            a("s_cmp_eq_u64 vcc, 0"); a(f"s_cselect_b32 {s(S_M+6)}, 2, 1")
        a(f"v_and_b32 {v(MA)}, {s(S_HI)}, {v(MA)}"); a(f"v_and_b32 {v(MB)}, {s(S_HI)}, {v(MB)}")
        a(f"v_max_f32 {v(M)}, {v(MA)}, {v(MB)}")
        self.ror("v_max_f32", [M], (4, 8)); self.rows_all("v_max_f32", M, T)
        for r in (MA, MB, MW): a(f"v_sub_f32 {v(r)}, {v(r)}, {v(M)}")
        for r in (MA, MB, MW): a(f"v_mul_f32 {v(r)}, {s(S_T2)}, {v(r)}")
        for r in (MA, MB, MW): a(f"v_exp_f32 {v(r)}, {v(r)}")
        a(f"v_mul_f32 {v(L)}, {v(MA)}, {v(LA)}"); a(f"v_fmac_f32 {v(L)}, {v(MB)}, {v(LB)}")
        self.ror("v_add_f32", [L], (4, 8)); self.rows_all("v_add_f32", L, T)
        a(f"v_rcp_f32 {v(L)}, {v(L)}"); a(f"v_mul_f32 {v(MW)}, {v(MW)}, {v(L)}")
        a(f"v_and_b32 {v(T)}, 31, v0"); a(f"v_lshlrev_b32 {v(T)}, 2, {v(T)}"); a(f"v_mov_b32 {v(T+1)}, {s(S_M+6) if self.fast else 1}")
        a(f"ds_write_b32 {v(T)}, {v(MW)} offset:{L_F}")
        a("s_waitcnt lgkmcnt(0)")
        a(f"ds_write_b32 {v(VZ)}, {v(T+1)} offset:{L_FFLAG}")
        a("s_waitcnt lgkmcnt(0)")
        self.stamp(5)
        self.finish(T)

    def fblock(self, dst, t):
        a = self.a
        a(f"s_lshl_b32 {s(dst)}, {s(S_H)}, 3"); a(f"s_lshr_b32 {s(t)}, {s(S_S)}, 2"); a(f"s_add_u32 {s(dst)}, {s(dst)}, {s(t)}")

    def sw1(self):
        a = self.a
        VZ, VT, VA, T = self.VZ, self.VT, self.VA, self.T
        XC, VO, G, W = 10, 11, 12, 16
        self.fblock(S_T0, S_T1)
        a(f"s_lshl_b32 {s(S_T0)}, {s(S_T0)}, 10"); a(f"s_add_u32 {s(S_T0)}, {s(S_T0)}, {GBOX:#x}")
        self.trig(self.g_trig, VZ, T+1)
        self.poll([(f"buffer_load_dwordx4 {v(G,4)}, {v(VA)}, {s(R0,4)}, {s(S_T0)} offen sc1", G, 4)], VT, T)
        self.fold4(G)
        self.rbf1(G, G)
        a(f"v_mov_b32_dpp {v(G+1)}, {v(G)} row_ror:8 row_mask:0xf bank_mask:0xf")
        self.silu_bf(G, G, T)
        a(f"v_mul_f32 {v(G)}, {v(G)}, {v(G+1)}"); a(f"v_cvt_pk_bf16_f32 {v(G)}, {v(G)}, {v(G)}")
        a(f"v_and_b32 {v(T)}, 7, v0"); a(f"v_lshlrev_b32 {v(T)}, 3, {v(T)}")
        a(f"v_lshrrev_b32 {v(T+1)}, 4, v0"); a(f"v_lshl_add_u32 {v(T)}, {v(T+1)}, 1, {v(T)}"); a(f"v_mov_b32 {v(T+1)}, 1")
        a("s_mov_b32 exec_lo, 0xff00ff"); a("s_mov_b32 exec_hi, 0xff00ff")
        a(f"ds_write_b16 {v(T)}, {v(G)} offset:{L_H}")
        a("s_mov_b64 exec, -1")
        a("s_waitcnt lgkmcnt(0)")
        a(f"ds_write_b32 {v(VZ)}, {v(T+1)} offset:{L_HFLAG}")
        self.stamp(3)
        Lx = self.lab("sw1end")
        a(f"s_cmp_ge_u32 {s(S_WG)}, {0 if self.cut else 32}"); a(f"s_cbranch_scc1 {Lx}")
        a(f"s_lshl_b32 {s(S_T0)}, {s(S_WG)}, 5")
        a(f"v_and_b32 {v(VO)}, 3, v0"); a(f"v_lshl_add_u32 {v(VO)}, {v(VO)}, 3, {s(S_T0)}")
        a(f"v_lshrrev_b32 {v(T)}, 4, v0"); a(f"v_lshl_add_u32 {v(VO)}, {v(T)}, 1, {v(VO)}")
        a(f"buffer_load_ushort {v(XC)}, {v(VO)}, {s(R1,4)}, 0 offen")
        a(f"s_lshl_b32 {s(S_T0)}, {s(S_WG)}, 13"); a(f"s_add_u32 {s(S_T0)}, {s(S_T0)}, {HBOX:#x}"); a(f"s_add_u32 {s(S_T1)}, {s(S_T0)}, 4096")
        loads = [(f"buffer_load_dwordx4 {v(W+4*j,4)}, {v(VA)}, {s(R0,4)}, {s(S_T0+(j>>2))} offen offset:{1024*(j&3)} sc1", W+4*j, 4) for j in range(8)]
        if self.touch:
            for ld in loads: a(ld[0])
        a("s_waitcnt vmcnt(0)")
        a(f"v_lshlrev_b32 {v(XC)}, 16, {v(XC)}")
        self.srd(R1, P_OUT, 1024)
        if self.otouch: a(f"buffer_load_ushort {v(T+5)}, {v(VO)}, {s(R1,4)}, 0 offen sc1"); a("s_waitcnt vmcnt(0)")
        self.stamp(4)
        a("s_barrier")
        self.stamp(5)
        if self.pipe:
            Y = [(f"buffer_load_dwordx4 {v(W+32+4*j,4)}, {v(VA)}, {s(R0,4)}, {s(S_T0+(j>>2))} offen offset:{1024*(j&3)} sc1", W+32+4*j, 4) for j in range(8)]
            self.poll2(loads, Y, VT, T, G)
        elif self.light: self.gather8(loads, VT, T, G, VA, S_T0, 10)
        else: self.poll(loads, VT, T, acc=G)
        self.stamp(6)
        self.fold4(G)
        self.ror("v_add_f32", [G], (8,))
        self.rbf1(G, G)
        self.silu_bf(G+1, G, T)
        a(f"v_mul_f32_dpp {v(G)}, {v(G+1)}, {v(G)} row_ror:12 row_mask:0xf bank_mask:0xf"); self.rbf1(G, G)
        a(f"v_add_f32 {v(G)}, {v(G)}, {v(XC)}"); a(f"v_cvt_pk_bf16_f32 {v(G)}, {v(G)}, {v(G)}")
        a("s_mov_b32 exec_lo, 0xf000f"); a("s_mov_b32 exec_hi, 0xf000f")
        a(f"buffer_store_short {v(G)}, {v(VO)}, {s(R1,4)}, 0 offen {self.outpol}")
        a(f"s_cmp_lg_u32 {s(S_WG)}, 0"); a(f"s_cbranch_scc1 {Lx}")
        a("s_mov_b64 exec, 1")
        a(f"v_mov_b32 {v(T)}, {s(S_E)}")
        a(f"buffer_store_dword {v(T)}, {v(VZ)}, {s(R0,4)}, 0 offen offset:{EPOCH} {self.outpol}")
        if self.amp:
            pa, pb, k = self.amp
            a("s_waitcnt vmcnt(0)"); self.stamp(7); a("s_waitcnt lgkmcnt(0)")
            a(f"s_sub_u32 {s(S_T0)}, {s(S_ST+2*pb)}, {s(S_ST+2*pa)}"); a(f"s_mul_i32 {s(S_T0)}, {s(S_T0)}, {k}")
            a(f"s_min_u32 {s(S_T0)}, {s(S_T0)}, 100000")
            a("Lamp:")
            a(f"s_memrealtime {s(S_ST+20,2)}"); a("s_waitcnt lgkmcnt(0)")
            a(f"s_sub_u32 {s(S_T1)}, {s(S_ST+20)}, {s(S_ST+14)}"); a(f"s_cmp_lt_u32 {s(S_T1)}, {s(S_T0)}"); a("s_cbranch_scc1 Lamp")
        a(f"{Lx}:")
        if self.diag: a("s_waitcnt vmcnt(0)")
        self.stamp(7)
        self.finish(T)

    def controller(self, SZ, nbar_):
        a = self.a; c = self.ctl
        VZ = self.VZ
        C, CP, E, X, Y, A, G = 24, 25, 26, 27, 28, 29, 30
        glob = c.get('gw', 0) or c['tcap'] or c.get('g2')
        SG, SPREV, SB8 = R3+1, R3+2, 4
        import struct
        f = lambda x: hex(struct.unpack('<I', struct.pack('<f', x))[0])
        L, Lo, Ls = self.lab("ctl"), self.lab("ctlx"), self.lab("ctls")
        a(f"s_cmp_lg_u32 {s(SZ)}, 0"); a(f"s_cbranch_scc1 {Lo}")
        a(f"s_lshl_b32 {s(S_T0)}, {s(S_H)}, 7")
        a(f"v_and_b32 {v(A)}, 31, v0"); a(f"v_lshlrev_b32 {v(A)}, 2, {v(A)}")
        if glob:
            a(f"v_cmp_gt_u32 vcc, 32, v0"); a(f"v_mov_b32 {v(X)}, 0x400"); a(f"v_cndmask_b32 {v(A)}, {v(X)}, {v(A)}, vcc")
            a(f"s_mov_b32 {s(SPREV)}, 0"); a(f"s_mov_b32 {s(17)}, 0")
            a(f"s_lshl_b32 {s(SPREV+1)}, {s(S_H)}, 2"); a(f"s_add_u32 {s(12)}, {s(P_DBG)}, {s(SPREV+1)}"); a(f"s_addc_u32 {s(13)}, {s(P_DBG+1)}, 0")
        a(f"s_add_u32 {s(S_T0)}, {s(S_T0)}, {PBOX:#x}")
        a(f"s_lshl_b32 {s(S_T1)}, {s(S_S)}, 2"); a(f"s_add_u32 {s(S_T1)}, {s(S_T1)}, {s(S_T0)}")
        a(f"s_lshl_b32 {s(R3)}, {s(S_E)}, 16")
        a(f"ds_read_b32 {v(CP)}, {v(VZ)} offset:{L_CNT}")
        a(f"s_mov_b32 {s(S_CNT)}, 4096")
        a(f"{L}:")
        a(f"ds_read_b32 {v(C)}, {v(VZ)} offset:{L_CNT}")
        a("s_waitcnt lgkmcnt(0)")
        a(f"v_or_b32 {v(E)}, {s(R3)}, {v(C)}")
        a(f"v_readfirstlane_b32 {s(S_T2)}, {v(C)}")
        a("s_mov_b64 exec, 1")
        a(f"buffer_store_dword {v(E)}, {v(VZ)}, {s(R0,4)}, {s(S_T1)} offen")
        a("s_mov_b64 exec, -1")
        a(f"s_cmp_ge_u32 {s(S_T2)}, {8*(c.get('exit', c['to'] - 2) - nbar_)}"); a(f"s_cbranch_scc1 {Lo}")
        a(f"s_sub_u32 {s(S_CNT)}, {s(S_CNT)}, 1"); a(f"s_cbranch_scc1 {Lo}")
        a(f"buffer_load_dword {v(X)}, {v(A)}, {s(R0,4)}, {s(S_T0)} offen sc1")
        if glob:
            Lr = self.lab("ctlr")
            a(f"s_cmp_lg_u32 {s(S_S)}, 5"); a(f"s_cbranch_scc1 {Lr}")
            a(f"s_load_dwordx8 {s(SB8,8)}, {s(P_DBG,2)}, 0 glc")
            a(f"{Lr}:")
        a(f"v_add_u32 {v(CP)}, {v(CP)}, {v(C)}"); a(f"v_cvt_f32_u32 {v(CP)}, {v(CP)}")
        a("s_waitcnt vmcnt(0)")
        a(f"ds_read_b32 {v(Y)}, {v(VZ)} offset:{L_CNT}")
        a(f"v_xor_b32 {v(X)}, {s(R3)}, {v(X)}"); a(f"v_cmp_gt_u32 vcc, 0x10000, {v(X)}")
        if glob:
            a(f"v_subrev_u32 {v(G)}, 0x8000, {v(X)}"); a(f"v_cvt_f32_i32 {v(G)}, {v(G)}"); a(f"v_cndmask_b32 {v(G)}, 0, {v(G)}, vcc")
        a(f"v_cvt_f32_u32 {v(X)}, {v(X)}"); a(f"v_cndmask_b32 {v(X)}, 0, {v(X)}, vcc")
        a(f"s_bcnt1_i32_b32 {s(S_T2)}, vcc_lo")
        if glob: a(f"v_readlane_b32 {s(SG)}, {v(G)}, 32")
        self.ror("v_add_f32", [X], (8, 4, 2, 1))
        a(f"v_mov_b32 {v(E)}, {v(X)}"); a(f"v_permlane16_swap_b32 {v(X)}, {v(E)}"); a(f"v_add_f32 {v(X)}, {v(X)}, {v(E)}")
        a(f"v_cvt_f32_u32 {v(E)}, {s(S_T2)}"); a(f"v_rcp_f32 {v(E)}, {v(E)}")
        a("s_waitcnt lgkmcnt(0)")
        a(f"s_cmp_lt_u32 {s(S_T2)}, 24"); a(f"s_cbranch_scc1 {Ls}")
        a(f"v_mul_f32 {v(X)}, {v(X)}, {v(E)}")
        if glob:
            Lr, Lv = self.lab("ctlr"), self.lab("ctlv")
            a(f"v_mov_b32 {v(G)}, {s(SG)}")
            a(f"s_cmp_lg_u32 {s(S_S)}, 5"); a(f"s_cbranch_scc1 {Lr}")
            a(f"v_cvt_u32_f32 {v(E)}, {v(X)}"); a(f"v_readfirstlane_b32 {s(S_T2)}, {v(E)}")
            a(f"s_add_u32 {s(S_T3)}, {s(SPREV)}, {s(17)}"); a(f"s_min_u32 {s(18)}, {s(SPREV)}, {s(17)}"); a(f"s_mov_b32 {s(17)}, {s(SPREV)}")
            a(f"s_sub_u32 {s(14)}, {s(S_T2)}, {s(SPREV)}"); a(f"s_mov_b32 {s(SPREV)}, {s(S_T2)}")
            a(f"s_atomic_add {s(14)}, {s(12,2)}, 0x0")
            a(f"s_min_u32 {s(15)}, {s(SB8)}, {s(SB8+1)}"); a(f"s_add_u32 {s(16)}, {s(SB8)}, {s(SB8+1)}")
            for k in range(2, 8): a(f"s_min_u32 {s(15)}, {s(15)}, {s(SB8+k)}"); a(f"s_add_u32 {s(16)}, {s(16)}, {s(SB8+k)}")
            a(f"s_min_u32 {s(15)}, {s(15)}, {s(18)}"); a(f"s_cmp_eq_u32 {s(15)}, 0"); a(f"s_cbranch_scc1 {Lr}")
            a(f"s_lshl_b32 {s(S_T3)}, {s(S_T3)}, 2")
            a(f"s_sub_u32 {s(16)}, {s(16)}, {s(S_T3)}"); a(f"s_ashr_i32 {s(16)}, {s(16)}, 3")
            a(f"s_add_u32 {s(16)}, {s(16)}, {0x8000 + c.get('gb', 0)}"); a(f"s_or_b32 {s(16)}, {s(16)}, {s(R3)}")
            a(f"v_mov_b32 {v(E)}, {s(16)}")
            a("s_mov_b64 exec, 1")
            a(f"buffer_store_dword {v(E)}, {v(VZ)}, {s(R0,4)}, {s(S_T0)} offen offset:1024")
            a("s_mov_b64 exec, -1")
            a(f"{Lr}:")
        a(f"v_fma_f32 {v(X)}, {v(CP)}, -0.5, {v(X)}")
        if c.get('gw', 0): a(f"v_fmac_f32 {v(X)}, {f(c['gw'])}, {v(G)}")
        a(f"v_lshrrev_b32 {v(Y)}, 3, {v(Y)}"); a(f"v_add_u32 {v(Y)}, {nbar_ + 1 + c['lead']}, {v(Y)}")
        for (dst, src, sign, th, g, cap) in ((E, X, 1, c['bth'], c['bg'], c['bcap']), (X, G, 1, *c['g2']) if c.get('g2') else (X, G, -1, c['tth'], c['tg'], c['tcap'])):
            if not cap: continue
            t = CP
            a(f"v_mul_f32 {v(t)}, {f(sign*g)}, {v(src)}")
            if c.get('k0') and dst == E: a(f"v_add_f32 {v(t)}, {f(c['k0'])}, {v(t)}")
            a(f"v_min_f32 {v(t)}, {f(cap)}, {v(t)}"); a(f"v_max_f32 {v(t)}, 0, {v(t)}")
            a(f"v_cmp_{'lt' if sign > 0 else 'gt'}_f32 vcc, {f(sign*th)}, {v(src)}")
            a(f"v_cvt_u32_f32 {v(t)}, {v(t)}"); a(f"v_add_u32 {v(t)}, {v(t)}, {v(Y)}")
            a(f"v_cndmask_b32 {v(dst)}, 0, {v(t)}, vcc")
        if c.get('g2'):
            a(f"v_min_u32 {v(CP)}, {v(E)}, {v(X)}"); a(f"v_max_u32 {v(X)}, {v(E)}, {v(X)}"); a(f"v_mov_b32 {v(E)}, {v(CP)}")
        a("s_mov_b64 exec, 1")
        a(f"ds_write_b64 {v(VZ)}, {v(E,2)} offset:{L_BOOST}")
        a("s_mov_b64 exec, -1")
        a(f"{Ls}:")
        a(f"v_mov_b32 {v(CP)}, {v(C)}")
        a(f"s_branch {L}")
        a(f"{Lo}:")

    def sw23(self):
        a = self.a
        VZ, VT, VA, T = self.VZ, self.VT, self.VA, self.T
        VP, VH, VB, VB2, OUT, SUM, W, HB, AW, AD, F, DD = 10, 11, 12, 13, 16, 20, 24, 56, 72, 104, 120, 152
        SZ, SFB, SCOL, SPUB, SP0, SHB, SLW = S_M+8, S_M+9, S_M+10, S_M+11, S_M, S_M+12, S_M+13
        a(f"s_and_b32 {s(SZ)}, {s(S_WAVE)}, 1")
        self.fblock(SFB, S_T1)
        a(f"s_and_b32 {s(SCOL)}, {s(S_S)}, 3"); a(f"s_lshl_b32 {s(SCOL)}, {s(SCOL)}, 1"); a(f"s_add_u32 {s(SCOL)}, {s(SCOL)}, {s(SZ)}")
        a(f"s_mul_i32 {s(SLW)}, {s(SZ)}, 12288")
        a(f"v_lshrrev_b32 {v(T)}, 4, v0"); a(f"v_lshl_add_u32 {v(T)}, {v(T)}, 10, {s(SLW)}")
        a(f"v_bfe_u32 {v(T+2)}, v0, 2, 2"); a(f"v_lshl_add_u32 {v(T)}, {v(T+2)}, 7, {v(T)}")
        a(f"v_and_b32 {v(T+2)}, 3, v0"); a(f"v_lshl_add_u32 {v(T)}, {v(T+2)}, 3, {v(T)}")
        a(f"s_lshl_b32 {s(S_T0)}, {s(S_H)}, 16"); a(f"s_add_u32 {s(S_T0)}, {s(S_T0)}, {OBOX:#x}")
        a(f"s_lshl_b32 {s(SPUB)}, {s(S_S)}, 11"); a(f"s_add_u32 {s(SPUB)}, {s(SPUB)}, {s(S_T0)}")
        a(f"s_lshr_b32 {s(S_T1)}, {s(S_S)}, 2"); a(f"s_lshl_b32 {s(S_T1)}, {s(S_T1)}, 8"); a(f"s_add_u32 {s(SP0)}, {s(S_T0)}, {s(S_T1)}")
        for k in range(1, 8): a(f"s_add_u32 {s(SP0+k)}, {s(SP0)}, {8192*k}")
        a(f"v_lshrrev_b32 {v(VP)}, 4, v0"); a(f"v_and_b32 {v(T+2)}, 0xf0, {v(VA)}"); a(f"v_lshl_add_u32 {v(VP)}, {v(VP)}, 11, {v(T+2)}")
        a(f"s_lshl_b32 {s(SHB)}, {s(SCOL)}, 15"); a(f"s_lshl_b32 {s(S_T1)}, {s(SFB)}, 7"); a(f"s_add_u32 {s(SHB)}, {s(SHB)}, {s(S_T1)}")
        a(f"s_add_u32 {s(SHB)}, {s(SHB)}, {HBOX:#x}")
        a(f"v_and_b32 {v(VH)}, 3, v0"); a(f"v_lshlrev_b32 {v(VH)}, 13, {v(VH)}")
        a(f"v_and_b32 {v(T+2)}, 4, v0"); a(f"v_lshl_add_u32 {v(VH)}, {v(T+2)}, 4, {v(VH)}")
        a(f"v_and_b32 {v(VB)}, 48, v0"); a(f"v_add_u32 {v(VH)}, {v(VH)}, {v(VB)}")
        def tr_ad():
            for t in range(4):
                for hf in range(2):
                    a(f"ds_read_b64_tr_b16 {v(AD+4*t+2*hf,2)}, {v(T)} offset:{L_W + 8192 + 512*hf + 32*t}")
        def tr_aw(t):
            for kk in range(2):
                for hf in range(2):
                    a(f"ds_read_b64_tr_b16 {v(AW+8*t+4*kk+2*hf,2)}, {v(T)} offset:{L_W + 4096*kk + 512*hf + 32*t}")
        def ffn_tags():
            a("s_mov_b32 exec_lo, 0x100010"); a("s_mov_b32 exec_hi, 0x100010")
            for t in range(4):
                self.tag(range(DD+4*t, DD+4*t+4), VT, dst=range(OUT, OUT+4))
                if t < 3: a("s_lshl_b64 exec, exec, 1")
            a("s_mov_b64 exec, -1")
        def wprep():
            if self.wdma:
                a(f"s_waitcnt vmcnt({9 if self.wsplit == 12 else 8})")
                tr_ad(); tr_aw(0)
                self.lgkm(4)
                for t in range(4): a(f"v_mfma_f32_16x16x32_bf16 {v(DD+4*t,4)}, {v(AD+4*t,4)}, {v(HB,4)}, 0")
                for t in range(1, 4): tr_aw(t)
                ffn_tags()
                self.stamp(3)
                return
            self.lds_wait(L_WCNT, 8, VZ, T+2)
            tr_ad()
            self.lds_wait(L_HFLAG, 1, VZ, T+2, [f"ds_read_b128 {v(HB,4)}, {v(VB)} offset:{L_H}"])
            for t in range(4): a(f"v_mfma_f32_16x16x32_bf16 {v(DD+4*t,4)}, {v(AD+4*t,4)}, {v(HB,4)}, 0")
            for t in range(4):
                tr_aw(t)
                if t == 1: a("s_waitcnt lgkmcnt(0)")
            ffn_tags()
            a("s_waitcnt lgkmcnt(0)")
            self.stamp(3)
        if self.wdma:
            VWA, VWD, SW0, SW1 = 14, 15, R4, R4+1
            a(f"v_lshrrev_b32 {v(T+1)}, 3, v0"); a(f"v_and_b32 {v(T+2)}, 0x70, {v(VA)}")
            a(f"v_lshl_add_u32 {v(VWD)}, {v(T+1)}, 10, {v(T+2)}")
            a(f"s_mul_i32 {s(S_T1)}, {s(SZ)}, {8*144}"); a(f"v_mul_u32_u24 {v(T+1)}, 144, {v(T+1)}"); a(f"v_add3_u32 {v(VWA)}, {v(T+1)}, {v(T+2)}, {s(S_T1)}")
            a(f"s_lshl_b32 {s(SW0)}, {s(S_H)}, 19"); a(f"s_lshr_b32 {s(S_T1)}, {s(S_S)}, 2"); a(f"s_lshl_b32 {s(S_T1)}, {s(S_T1)}, 14"); a(f"s_add_u32 {s(SW0)}, {s(SW0)}, {s(S_T1)}")
            a(f"s_lshl_b32 {s(S_T1)}, {s(SCOL)}, 7"); a(f"s_add_u32 {s(SW0)}, {s(SW0)}, {s(S_T1)}")
            a(f"s_lshl_b32 {s(SW1)}, {s(SFB)}, 15"); a(f"s_add_u32 {s(SW1)}, {s(SW1)}, {s(S_T1)}")
            a(f"s_add_u32 {s(SLW)}, {s(SLW)}, {L_W}")
            self.srd(R1, P_WO, 0x400000); self.srd(R2, P_WD, 0x1c0000)
            def touch_w():
                a("s_mov_b64 exec, 1")
                for h in range(4):
                    a(f"s_add_u32 {s(S_T1)}, {s(SW0)}, {0x20000*h}")
                    a(f"buffer_load_dword {v(T+3)}, {v(VZ)}, {s(R1,4)}, {s(S_T1)} offen {self.wpol}")
                a(f"buffer_load_dword {v(T+3)}, {v(VZ)}, {s(R2,4)}, {s(SW1)} offen {self.wpol}")
                a("s_mov_b64 exec, -1")
            if self.ctl: self.controller(SZ, nbar_=(self.ramp[0] if self.ramp else self.D) - 1)
            if self.wtouch == 1: touch_w()
            self.lds_wait(L_HFLAG, 1, VZ, T+2, [f"ds_read_b128 {v(HB,4)}, {v(VB)} offset:{L_H}"])
        worder = list(range(8, 12)) + list(range(8))
        def wload(js):
            for j in js:
                a(f"s_add_u32 m0, {s(SLW)}, {1024*j}")
                if j < 8:
                    a(f"buffer_load_dwordx4 {v(VWD)}, {s(R1,4)}, {s(SW0)} offen {self.wpol} lds")
                    a(f"s_add_u32 {s(SW0)}, {s(SW0)}, {0x20000 - 8192 if j & 1 else 8192:#x}")
                else:
                    a(f"buffer_load_dwordx4 {v(VWD)}, {s(R2,4)}, {s(SW1)} offen {self.wpol} lds")
                    a(f"s_add_u32 {s(SW1)}, {s(SW1)}, 8192")
        late = self.wpos > 56 or self.wdma
        if not late: wprep()
        if self.cut: return self.finish(T)
        if self.wtouch == 2: touch_w()
        loads = [(f"buffer_load_dwordx4 {v(W+4*k,4)}, {v(VP)}, {s(R0,4)}, {s(SP0+k)} offen sc1", W+4*k, 4) for k in range(8)]
        if self.touch and True:
            for ld in loads: a(ld[0])
        self.lds_wait(L_FFLAG, 1, VZ, T+2, [f"ds_read_b128 {v(F+4*w,4)}, {v(VZ)} offset:{L_F+16*w}" for w in range(8)])
        a(f"s_mov_b32 {s(S_M+14)}, {s(S_T3)}")
        if self.wtouch == 3: touch_w()
        a(f"s_lshl_b32 {s(S_T0)}, {s(SZ)}, 10"); a(f"v_add_u32 {v(VA)}, {s(S_T0)}, {v(VA)}")
        a(f"s_lshl_b32 {s(S_T0)}, {s(SZ)}, 7"); a(f"v_add_u32 {v(VB2)}, {s(S_T0)}, {v(VB)}"); a(f"v_lshl_add_u32 {v(T+1)}, v0, 1, {s(S_T0)}")
        if self.touch: a("s_waitcnt vmcnt(0)")
        if self.wdma and self.wsplit:
            self.lds_wait(L_WCNT, 8, VZ, T+2, sleep=0)
            wload(worder[:self.wsplit])
        self.stamp(4)
        a("s_barrier")
        self.stamp(5)
        for w in range(8): a(f"ds_read_b128 {v(W+4*w,4)}, {v(VWA)} offset:{L_O+OSTR*w}")
        for w in range(8):
            self.lgkm(7-w)
            for p in (0, 2):
                if w == 0: a(f"v_pk_mul_f32 {v(SUM+p,2)}, {v(W+p,2)}, {v(F+p,2)}")
                else: a(f"v_pk_fma_f32 {v(SUM+p,2)}, {v(W+4*w+p,2)}, {v(F+4*w+p,2)}, {v(SUM+p,2)}")
        if self.fast: a(f"s_cmp_eq_u32 {s(S_M+14)}, 2")
        self.tag(range(SUM, SUM+4), VT, dst=range(F, F+4))
        if self.fast:
            La, Lb = self.lab("h1l"), self.lab("h1j")
            a(f"s_cbranch_scc1 {La}")
            a(f"buffer_store_dwordx4 {v(F,4)}, {v(VA)}, {s(R0,4)}, {s(SPUB)} offen sc1")
            a(f"s_branch {Lb}")
            a(f"{La}:")
            a(f"buffer_store_dwordx4 {v(F,4)}, {v(VA)}, {s(R0,4)}, {s(SPUB)} offen")
            a(f"{Lb}:")
        else: a(f"buffer_store_dwordx4 {v(F,4)}, {v(VA)}, {s(R0,4)}, {s(SPUB)} offen sc1")
        self.stamp(6)
        if self.wdma: wload(worder[self.wsplit:])
        pre = late and (self.prepoll or self.wdma)
        if late and not pre: wprep()
        BO = W
        if self.pipe:
            yr = [AD+4*k for k in range(4)] + [F+4+4*k for k in range(4)]
            Y = [(f"buffer_load_dwordx4 {v(yr[k],4)}, {v(VP)}, {s(R0,4)}, {s(SP0+k)} offen sc1", yr[k], 4) for k in range(8)]
            self.poll2(loads, Y, VT, T+3, SUM, between=wprep)
            BO = HB
        elif self.light: self.gather8(loads, VT, HB+4, SUM, VP, SP0, 13, between=(wprep if pre else None))
        else: self.poll(loads, VT, T+3, acc=SUM, between=(wprep if pre else None))
        self.stamp(7)
        self.fold4(SUM)
        a(f"v_cvt_pk_bf16_f32 {v(SUM)}, {v(SUM)}, {v(SUM)}")
        a(f"ds_write_b16 {v(T+1)}, {v(SUM)} offset:{L_OB}")
        a(f"ds_read_b128 {v(BO,4)}, {v(VB2)} offset:{L_OB}"); a(f"ds_read_b128 {v(BO+4,4)}, {v(VB2)} offset:{L_OB+64}")
        self.lgkm(1)
        for t in range(4): a(f"v_mfma_f32_16x16x32_bf16 {v(DD+4*t,4)}, {v(AW+8*t,4)}, {v(BO,4)}, 0")
        self.lgkm(0)
        for t in range(4): a(f"v_mfma_f32_16x16x32_bf16 {v(DD+4*t,4)}, {v(AW+8*t+4,4)}, {v(BO+4,4)}, {v(DD+4*t,4)}")
        a("s_mov_b32 exec_lo, 0x10001"); a("s_mov_b32 exec_hi, 0x10001")
        for t in range(4):
            self.tag(range(DD+4*t, DD+4*t+4), VT, dst=range(OUT, OUT+4))
            if t < 3: a("s_lshl_b64 exec, exec, 1")
        a("s_mov_b32 exec_lo, 0xff00ff"); a("s_mov_b32 exec_hi, 0xff00ff")
        a(f"buffer_store_dwordx4 {v(OUT,4)}, {v(VH)}, {s(R0,4)}, {s(SHB)} offen sc1")
        self.stamp(8)
        if self.fast and self.clean:
            a("s_mov_b64 exec, -1")
            a(f"buffer_store_dwordx4 {v(F,4)}, {v(VA)}, {s(R0,4)}, {s(SPUB)} offen sc1")
        if self.diag: a("s_waitcnt vmcnt(0)")
        self.stamp(9)
        self.finish(T)

    def build(self):
        a = self.a
        hdr = open("recurrent_scan__gqa_block_cached__swiglu_ffn__decode.s.ref").read().split("; @launch")[0]
        a(f'.amdgcn_target "amdgcn-amd-amdhsa--gfx950"')
        a(".text"); a(f".globl {KN}"); a(".p2align 8"); a(f".type {KN},@function"); a(f"{KN}:")
        a(f"s_load_dwordx16 {s(4,16)}, s[0:1], 0"); a(f"s_load_dwordx8 {s(20,8)}, s[0:1], 64")
        a("s_cmp_ge_u32 s2, 256"); a("s_cbranch_scc1 Lend")
        if self.diag:
            for k in range(1, 12): a(f"s_mov_b32 {s(S_ST+2*k)}, 0")
        self.stamp(0)
        a("v_lshrrev_b32 v1, 6, v0"); a("v_and_b32 v0, 63, v0"); a(f"v_readfirstlane_b32 {s(S_WAVE)}, v1")
        a(f"s_and_b32 {s(S_H)}, s2, 7"); a(f"s_lshr_b32 {s(S_S)}, s2, 3")
        a(f"s_cmp_ge_u32 {s(S_WAVE)}, 8"); a("s_cbranch_scc1 Lservice")
        self.streamer()
        a("Lservice:")
        if self.prio: a("s_setprio 3")
        a(f"s_mov_b32 {s(S_HI)}, 0xffff0000"); a(f"s_mov_b32 {s(S_TM)}, 0x3ff")
        self.stage1()
        a(f"s_cmp_eq_u32 {s(S_WAVE)}, 9"); a("s_cbranch_scc1 Lsw1")
        a(f"s_cmp_gt_u32 {s(S_WAVE)}, 9"); a("s_cbranch_scc1 Lsw23")
        self.sw0()
        a("Lsw23:"); self.sw23()
        a("Lsw1:"); self.sw1()
        a("Lend:"); a("s_endpgm")
        a("Lcode_end:")
        a(".fill 64, 4, 0xbf800000")
        a('.section .rodata,"a"'); a(".p2align 6"); a(f".amdhsa_kernel {KN}")
        for d in ("next_free_vgpr 168", "next_free_sgpr 102", "accum_offset 168", "group_segment_fixed_size 0", "kernarg_size 96",
                  "user_sgpr_count 2", "user_sgpr_kernarg_segment_ptr 1", "system_sgpr_workgroup_id_x 1", "float_denorm_mode_32 3"):
            a(f".amdhsa_{d}")
        a(".end_amdhsa_kernel")
        return hdr + f"; @launch grid=(256,1,1) block=(768,1,1) lds={LDS_BYTES + self.ldspad}\n" + a.finalize()

def gen(**kw): return G(**kw).build()
if __name__ == "__main__":
    kw = eval("dict(" + (sys.argv[2] if len(sys.argv) > 2 else "") + ")")
    open(sys.argv[1], "w").write(gen(**kw))
```

```python
import sys
from asmlib import Asm
KN = "recurrent_scan__gqa_block_cached__swiglu_ffn__decode_kernel"

EPOCH = 0
QBOX, MLBOX, PBOX, XBOX, GBOX, OBOX, HBOX = 0x1000, 0x9000, 0xB000, 0xC000, 0x10000, 0x20000, 0xA0000
WS_USED = 0xE0000
STAMP = 128 << 20
L_QFLAG, L_MLCNT, L_FFLAG, L_S1CNT, L_PROG, L_HFLAG, L_ACNT, L_WCNT = 0, 4, 8, 12, 16, 20, 24, 28
L_CNT, L_BOOST = 32, 40
L_ML, L_F, L_H, L_Q, L_S1, L_OB, L_O = 64, 320, 448, 512, 1536, 2560, 2816
OSTR = 16*144
L_W = L_O + 8*OSTR
L_A = L_O
LDS_BYTES = L_W + 2*12288
SPIN = 1 << 16

LOG2E = 0x3fb8aa3b
SCALE = 0x3db504f3
EPS = 0x3727c5ac

def v(i, n=1): return f"v{i}" if n == 1 else f"v[{i}:{i+n-1}]"
def s(i, n=1): return f"s{i}" if n == 1 else f"s[{i}:{i+n-1}]"

S_WG, S_WAVE = 2, 3
P_X, P_K, P_V, P_WQ, P_WO, P_BX, P_WG, P_WU, P_WD, P_OUT, P_DBG, P_WS = range(4, 28, 2)
R0, R1, R2, R3, R4 = 28, 32, 36, 40, 44
S_H, S_S = 48, 49
S_T0, S_T1, S_T2, S_T3 = 50, 51, 52, 53
S_HI, S_TM, S_LO, S_HIS = 54, 55, 56, 57
S_CNT, S_E = 58, 59
S_M = 60
S_ST = 76

class G:
    def __init__(self, D=3, D2=3, nD2=58, n0=28, il=12, kvpol="nt", wpol="nt", diag=0, pf=1, nq=20, nm=56, g_trig=44,
                 outpol="", prio=1, touch=0, cut=0, amp=None, trace=0, ramp=None, wpos=64, apos=1, smooth=1, wlate=0, prepoll=0, fast=1, clean=0, wdma=1, rot=1, agap=1, light=0, ldspad=0, hsleep=0, pipe=1, wsplit=12, wtouch=0, otouch=0, ctl=1, qk2=1, hello=5, wprog=1, tagbits=4, plo=3):
        self.__dict__.update(locals()); del self.__dict__['self']
        self.a = Asm(); self.nlab = 0
        assert self.wdma
        if self.ctl == 1: self.ctl = dict(to=68, bth=0, bg=0.5, bcap=5, tth=4, tg=0.15, tcap=0, lead=0, exit=62, **{'from': 8})
    def lab(self, p):
        self.nlab += 1; return f"L{p}{self.nlab}"
    def srd(self, r, ptr, size):
        a = self.a
        a(f"s_mov_b32 {s(r)}, {s(ptr)}"); a(f"s_mov_b32 {s(r+1)}, {s(ptr+1)}")
        a(f"s_mov_b32 {s(r+2)}, {size:#x}"); a(f"s_mov_b32 {s(r+3)}, 0x20000")
    def stamp(self, k):
        if self.diag or self.amp: self.a(f"s_memrealtime {s(S_ST+2*k,2)}")
    def lgkm(self, n):
        self.a(f"s_waitcnt lgkmcnt({0 if (self.diag or self.amp) else n})")
    def finish(self, vt):
        a = self.a
        if self.diag:
            a("s_waitcnt lgkmcnt(0)")
            a(f"s_mul_i32 {s(S_T0)}, {s(S_WG)}, 12"); a(f"s_add_u32 {s(S_T0)}, {s(S_T0)}, {s(S_WAVE)}")
            a(f"s_lshl_b32 {s(S_T0)}, {s(S_T0)}, 6"); a(f"s_add_u32 {s(S_T0)}, {s(S_T0)}, {STAMP:#x}")
            a("s_mov_b64 exec, 1")
            a(f"v_mov_b32 {v(vt)}, {s(S_T0)}")
            for k in range(12):
                a(f"v_mov_b32 {v(vt+1)}, {s(S_ST+2*k)}")
                a(f"global_store_dword {v(vt)}, {v(vt+1)}, {s(P_WS,2)} offset:{4*k}")
            a("s_waitcnt vmcnt(0)")
        a("s_endpgm")
    def unpack(self, lo, hi, src):
        self.a(f"v_lshlrev_b32 {v(lo)}, 16, {v(src)}"); self.a(f"v_and_b32 {v(hi)}, {s(S_HI)}, {v(src)}")
    def rbf1(self, dst, src):
        self.a(f"v_cvt_pk_bf16_f32 {v(dst)}, {v(src)}, {v(src)}"); self.a(f"v_and_b32 {v(dst)}, {s(S_HI)}, {v(dst)}")
    def rbf2(self, d0, d1, s0, s1, t):
        self.a(f"v_cvt_pk_bf16_f32 {v(t)}, {v(s0)}, {v(s1)}"); self.unpack(d0, d1, t)
    def ror(self, op, regs, steps):
        for n in steps:
            for r in regs: self.a(f"{op}_dpp {v(r)}, {v(r)}, {v(r)} row_ror:{n} row_mask:0xf bank_mask:0xf")
    def rows_all(self, op, x, t):
        a = self.a
        for sw in ("v_permlane16_swap_b32", "v_permlane32_swap_b32"):
            a(f"v_mov_b32 {v(t)}, {v(x)}"); a(f"{sw} {v(x)}, {v(t)}"); a(f"{op} {v(x)}, {v(x)}, {v(t)}")
    def fold(self, sw, pairs):
        for x, y in pairs: self.a(f"{sw} {v(x)}, {v(y)}")
        for x, y in pairs: self.a(f"v_add_f32 {v(x)}, {v(x)}, {v(y)}")
    def fold4(self, x):
        self.fold("v_permlane32_swap_b32", [(x, x+2), (x+1, x+3)])
        self.fold("v_permlane16_swap_b32", [(x, x+1)])
    def silu_bf(self, dst, x, t):
        a = self.a
        a(f"v_mul_f32 {v(t)}, {0x80000000 ^ LOG2E:#x}, {v(x)}"); a(f"v_exp_f32 {v(t)}, {v(t)}")
        a(f"v_add_f32 {v(t)}, 1.0, {v(t)}"); a(f"v_rcp_f32 {v(t)}, {v(t)}"); a(f"v_mul_f32 {v(t)}, {v(x)}, {v(t)}")
        self.rbf1(dst, t)
    def layernorm(self, X, XF, T):
        a = self.a
        for k in range(4): self.unpack(XF+2*k, XF+2*k+1, X+k)
        a(f"v_add_f32 {v(T)}, {v(XF)}, {v(XF+1)}")
        for k in range(2, 8): a(f"v_add_f32 {v(T)}, {v(T)}, {v(XF+k)}")
        self.ror("v_add_f32", [T], (8, 4, 2, 1)); self.rows_all("v_add_f32", T, T+1)
        a(f"v_mul_f32 {v(T)}, 0x3b000000, {v(T)}")
        a(f"v_sub_f32 {v(T+2)}, {v(XF)}, {v(T)}"); a(f"v_mul_f32 {v(T+3)}, {v(T+2)}, {v(T+2)}")
        for k in range(1, 8):
            a(f"v_sub_f32 {v(T+2)}, {v(XF+k)}, {v(T)}"); a(f"v_fmac_f32 {v(T+3)}, {v(T+2)}, {v(T+2)}")
        self.ror("v_add_f32", [T+3], (8, 4, 2, 1)); self.rows_all("v_add_f32", T+3, T+1)
        a(f"v_mul_f32 {v(T+3)}, 0x3b000000, {v(T+3)}")
        self.rbf2(T, T+3, T, T+3, T+1)
        a(f"v_add_f32 {v(T+3)}, {EPS:#x}, {v(T+3)}"); self.rbf1(T+3, T+3)
        a(f"v_sqrt_f32 {v(T+3)}, {v(T+3)}"); self.rbf1(T+3, T+3)
        a(f"v_rcp_f32 {v(T+2)}, {v(T+3)}")
        for k in range(8): a(f"v_sub_f32 {v(XF+k)}, {v(XF+k)}, {v(T)}")
        for k in range(4): self.rbf2(XF+2*k, XF+2*k+1, XF+2*k, XF+2*k+1, T+1)
        for k in range(8):
            a(f"v_mul_f32 {v(T+4)}, {v(XF+k)}, {v(T+2)}")
            a(f"v_fma_f32 {v(T+5)}, -{v(T+4)}, {v(T+3)}, {v(XF+k)}")
            a(f"v_fma_f32 {v(XF+k)}, {v(T+5)}, {v(T+2)}, {v(T+4)}")
        for k in range(4): self.rbf2(XF+2*k, XF+2*k+1, XF+2*k, XF+2*k+1, T+1)
    def tag(self, regs, vT, dst=None):
        for i, r in enumerate(regs):
            d = r if dst is None else dst[i]
            self.a(f"v_bfi_b32 {v(d)}, {s(S_TM)}, {v(vT)}, {v(r)}")
    def joint(self, t, quad=False):
        perms = ["quad_perm:[1,0,3,2]", "quad_perm:[2,3,0,1]"] + ([] if quad else ["row_half_mirror"])
        if quad or self.tagbits < 10:
            for p in perms: self.a(f"v_or_b32_dpp {v(t)}, {v(t)}, {v(t)} {p} row_mask:0xf bank_mask:0xf")
    def poll(self, loads, vT, t, acc=None, between=None, quad=False):
        a = self.a; L = self.lab("poll"); Lo = self.lab("pollx")
        if between:
            Lc = self.lab("pollc")
            for ld in loads: a(ld[0])
            between()
            a(f"s_mov_b32 {s(S_CNT)}, {SPIN}")
            a(f"s_branch {Lc}")
        else: a(f"s_mov_b32 {s(S_CNT)}, {SPIN}")
        a(f"{L}:")
        for ld in loads: a(ld[0])
        if between: a(f"{Lc}:")
        first = True
        for j, (_, r0, n) in enumerate(loads):
            a(f"s_waitcnt vmcnt({len(loads)-1-j})")
            for w in range(r0, r0+n):
                if first: a(f"v_xor_b32 {v(t)}, {v(w)}, {v(vT)}"); first = False
                else: a(f"v_bitop3_b32 {v(t)}, {v(w)}, {v(vT)}, {v(t)} bitop3:0xbe")
            if j == len(loads) - 1:
                self.joint(t, quad)
                a(f"v_and_b32 {v(t)}, {s(S_TM)}, {v(t)}")
                a(f"v_cmp_ne_u32 vcc, 0, {v(t)}")
            if acc is not None and j >= 1:
                p = loads[0][1] if j == 1 else acc
                a(f"v_pk_add_f32 {v(acc,2)}, {v(p,2)}, {v(r0,2)}"); a(f"v_pk_add_f32 {v(acc+2,2)}, {v(p+2,2)}, {v(r0+2,2)}")
        a(f"s_sub_u32 {s(S_CNT)}, {s(S_CNT)}, 1")
        a(f"s_cbranch_scc1 {Lo}")
        a("s_mov_b64 exec, vcc")
        if acc is not None and self.hsleep:
            a(f"s_cbranch_execz {Lo}"); a(f"s_sleep {self.hsleep}"); a(f"s_branch {L}")
        else: a(f"s_cbranch_execnz {L}")
        a(f"{Lo}:")
        a("s_mov_b64 exec, -1")
    def poll2(self, X, Y, vT, t, acc, between=None):
        a = self.a; L = self.lab("pp"); Lo = self.lab("ppx")
        n = len(X)
        def check(loads, out=2):
            first = True
            for j, (_, r0, nr) in enumerate(loads):
                a(f"s_waitcnt vmcnt({out*n-1-j})")
                for w in range(r0, r0+nr):
                    if first: a(f"v_xor_b32 {v(t)}, {v(w)}, {v(vT)}"); first = False
                    else: a(f"v_bitop3_b32 {v(t)}, {v(w)}, {v(vT)}, {v(t)} bitop3:0xbe")
                if j >= 1:
                    p = loads[0][1] if j == 1 else acc
                    a(f"v_pk_add_f32 {v(acc,2)}, {v(p,2)}, {v(r0,2)}"); a(f"v_pk_add_f32 {v(acc+2,2)}, {v(p+2,2)}, {v(r0+2,2)}")
                if j == n - 1:
                    self.joint(t)
                    a(f"v_and_b32 {v(t)}, {s(S_TM)}, {v(t)}")
                    a(f"v_cmp_ne_u32 vcc, 0, {v(t)}")
            a("s_mov_b64 exec, vcc")
        for ld in X: a(ld[0])
        if between:
            between()
            check(X, 1)
            a(f"s_cbranch_execz {Lo}")
            for ld in X: a(ld[0])
        a(f"s_mov_b32 {s(S_CNT)}, {SPIN}")
        a(f"{L}:")
        for ld in Y: a(ld[0])
        check(X)
        a(f"s_cbranch_execz {Lo}")
        for ld in X: a(ld[0])
        check(Y)
        a(f"s_sub_u32 {s(S_CNT)}, {s(S_CNT)}, 1")
        a(f"s_cbranch_scc1 {Lo}")
        a(f"s_cbranch_execnz {L}")
        a(f"{Lo}:")
        a("s_mov_b64 exec, -1")
    def gather8(self, loads, vT, t, acc, vaddr, soff, lg, between=None):
        a = self.a; L = self.lab("lp"); Lo = self.lab("lpx")
        P, R, J, B, A = t+1, t+2, t+3, t+4, t+5
        for ld in loads: a(ld[0])
        if between: between()
        first = True
        for j, (_, r0, n) in enumerate(loads):
            a(f"s_waitcnt vmcnt({len(loads)-1-j})")
            for w in range(r0, r0+n):
                if first: a(f"v_xor_b32 {v(t)}, {v(w)}, {v(vT)}"); first = False
                else: a(f"v_bitop3_b32 {v(t)}, {v(w)}, {v(vT)}, {v(t)} bitop3:0xbe")
            if j == len(loads) - 1:
                a(f"v_and_b32 {v(t)}, {s(S_TM)}, {v(t)}")
                a(f"v_cmp_ne_u32 vcc, 0, {v(t)}")
            if j >= 1:
                p = loads[0][1] if j == 1 else acc
                a(f"v_pk_add_f32 {v(acc,2)}, {v(p,2)}, {v(r0,2)}"); a(f"v_pk_add_f32 {v(acc+2,2)}, {v(p+2,2)}, {v(r0+2,2)}")
        a(f"s_cbranch_vccz {Lo}")
        for r in range(acc, acc+4): a(f"v_mov_b32 {v(r)}, 0")
        a(f"v_mov_b32 {v(P)}, 0")
        def check(q):
            a(f"v_xor_b32 {v(t)}, {v(q)}, {v(vT)}")
            for w in range(q+1, q+4): a(f"v_bitop3_b32 {v(t)}, {v(w)}, {v(vT)}, {v(t)} bitop3:0xbe")
            a(f"v_and_b32 {v(t)}, {s(S_TM)}, {v(t)}")
            a(f"v_cmp_eq_u32 vcc, 0, {v(t)}")
        for j, (_, r0, n) in enumerate(loads):
            check(r0)
            a("s_mov_b64 exec, vcc")
            a(f"v_pk_add_f32 {v(acc,2)}, {v(acc,2)}, {v(r0,2)}"); a(f"v_pk_add_f32 {v(acc+2,2)}, {v(acc+2,2)}, {v(r0+2,2)}")
            a("s_not_b64 exec, vcc")
            a(f"v_or_b32 {v(P)}, {1 << j}, {v(P)}")
            a("s_mov_b64 exec, -1")
        Q = loads[0][1]
        a(f"v_mov_b32 {v(R)}, {v(P)}")
        a(f"v_cmp_ne_u32 vcc, 0, {v(P)}")
        a(f"s_mov_b32 {s(S_CNT)}, {SPIN*4}")
        a("s_mov_b64 exec, vcc")
        a(f"{L}:")
        a(f"v_ffbl_b32 {v(J)}, {v(R)}")
        a(f"v_lshl_add_u32 {v(A)}, {v(J)}, {lg}, {v(vaddr)}")
        a(f"buffer_load_dwordx4 {v(Q,4)}, {v(A)}, {s(R0,4)}, {s(soff)} offen sc1")
        a(f"v_lshlrev_b32 {v(B)}, {v(J)}, 1")
        a(f"v_xor_b32 {v(R)}, {v(R)}, {v(B)}")
        a(f"s_sub_u32 {s(S_CNT)}, {s(S_CNT)}, 1")
        a(f"s_cbranch_scc1 {Lo}")
        a("s_waitcnt vmcnt(0)")
        check(Q)
        a(f"s_and_saveexec_b64 {s(S_T2,2)}, vcc")
        a(f"v_xor_b32 {v(P)}, {v(P)}, {v(B)}")
        a(f"v_pk_add_f32 {v(acc,2)}, {v(acc,2)}, {v(Q,2)}"); a(f"v_pk_add_f32 {v(acc+2,2)}, {v(acc+2,2)}, {v(Q+2,2)}")
        a(f"s_mov_b64 exec, {s(S_T2,2)}")
        a(f"v_cmp_eq_u32 {s(S_T2,2)}, 0, {v(R)}")
        a(f"v_cmp_ne_u32 vcc, 0, {v(P)}")
        a(f"v_cndmask_b32 {v(R)}, {v(R)}, {v(P)}, {s(S_T2,2)}")
        a("s_mov_b64 exec, vcc")
        a(f"s_cbranch_execnz {L}")
        a(f"{Lo}:")
        a("s_mov_b64 exec, -1")
    def lds_wait(self, off, val, vz, t, extra=(), sleep=1):
        a = self.a; L = self.lab("lw"); Lo = self.lab("lwx")
        a(f"s_mov_b32 {s(S_CNT)}, {SPIN*16}")
        a(f"{L}:")
        a(f"ds_read_b32 {v(t)}, {v(vz)} offset:{off}")
        for e in extra: a(e)
        a("s_waitcnt lgkmcnt(0)")
        a(f"v_readfirstlane_b32 {s(S_T3)}, {v(t)}")
        a(f"s_cmp_ge_u32 {s(S_T3)}, {val}")
        a(f"s_cbranch_scc1 {Lo}")
        a(f"s_sub_u32 {s(S_CNT)}, {s(S_CNT)}, 1")
        a(f"s_cbranch_scc1 {Lo}")
        if sleep: a(f"s_sleep {sleep}")
        a(f"s_branch {L}")
        a(f"{Lo}:")
    def pub(self, text, sfast):
        a = self.a
        La, Lb = self.lab("pl"), self.lab("pj")
        a(f"s_cmp_eq_u32 {s(sfast)}, 2"); a(f"s_cbranch_scc1 {La}")
        a(text + " sc1"); a(f"s_branch {Lb}")
        a(f"{La}:"); a(text); a(f"{Lb}:")
    def trig(self, what, vz, t):
        if what == "q": self.lds_wait(L_QFLAG, 1, vz, t)
        elif what == "ml": self.lds_wait(L_MLCNT, 8, vz, t)
        elif isinstance(what, int) and what > 0: self.lds_wait(L_PROG, what, vz, t)
    def streamer(self):
        a = self.a
        VK, VV, VZ, VT, VT2 = 1, 2, 3, 4, 5
        Q, S, DT, KB = 8, 12, 20, 36
        slot = lambda i: KB + 4*i
        ACC, AO, B = slot(16), slot(18), slot(23)
        SB = S_T0
        a(f"s_lshl_b32 {s(SB)}, {s(S_H)}, 23"); a(f"s_lshl_b32 {s(S_T1)}, {s(S_S)}, 18"); a(f"s_or_b32 {s(SB)}, {s(SB)}, {s(S_T1)}")
        a(f"s_lshl_b32 {s(S_T1)}, {s(S_WAVE)}, {self.il}"); a(f"s_or_b32 {s(SB)}, {s(SB)}, {s(S_T1)}")
        if self.rot == 1: a(f"s_lshl_b32 {s(S_M+9)}, {s(S_S)}, 15")
        if self.rot == 2: a(f"s_add_u32 {s(S_M+9)}, {s(S_S)}, {s(S_H)}"); a(f"s_lshl_b32 {s(S_M+9)}, {s(S_M+9)}, 15")
        a(f"v_lshlrev_b32 {v(VV)}, 4, v0")
        a(f"v_and_b32 {v(VT)}, 0xc0, {v(VV)}"); a(f"v_lshlrev_b32 {v(VT)}, 2, {v(VT)}")
        a(f"v_lshrrev_b32 {v(VK)}, 4, v0"); a(f"v_lshlrev_b32 {v(VK)}, 6, {v(VK)}")
        a(f"v_and_b32 {v(VT2)}, 48, {v(VV)}")
        a(f"v_or3_b32 {v(VK)}, {v(VK)}, {v(VT)}, {v(VT2)}")
        a(f"v_mov_b32 {v(VZ)}, 0")
        a("s_waitcnt lgkmcnt(0)")
        self.srd(R0, P_K, 0x4000000); self.srd(R1, P_V, 0x4000000)
        def off(i):
            if self.il == 12: return (i >> 2) * 32768, (i & 3) * 1024
            return i * 8192, 0
        last_so = [None]
        VWA, VWD = 6, 7
        SA, SW0, SW1, SSTR = S_M+5, S_M+6, S_M+7, S_M+4
        def regs(it):
            k, i = it
            return {'K': slot(i), 'V': slot(i % 16), 'A': slot(28 + i), 'W': (DT + 4*i if self.wpos > 40 else slot(28 + i))}[k]
        def setup_a():
            a(f"s_lshr_b32 {s(S_M)}, {s(S_WAVE)}, 1")
            self.s1_geom(True)
            a(f"s_and_b32 {s(S_T3)}, {s(S_WAVE)}, 1"); a(f"s_lshl_b32 {s(S_T3)}, {s(S_T3)}, 2"); a(f"s_add_u32 {s(S_T3)}, {s(S_T3)}, {s(S_M+3)}")
            a(f"s_mul_i32 {s(S_T3)}, {s(S_T3)}, {s(SSTR)}"); a(f"s_lshl_b32 {s(SA)}, {s(S_T2)}, 7"); a(f"s_add_u32 {s(SA)}, {s(SA)}, {s(S_T3)}")
            a(f"v_and_b32 {v(VT)}, 56, v0"); a(f"v_mul_u32_u24 {v(VT)}, {s(SSTR)}, {v(VT)}")
            a(f"v_and_b32 {v(VT2)}, 0x70, {v(VV)}"); a(f"v_add_u32 {v(VWA)}, {v(VT)}, {v(VT2)}")
        def setup_w():
            a(f"s_and_b32 {s(S_T2)}, {s(S_S)}, 3"); a(f"s_lshl_b32 {s(S_T2)}, {s(S_T2)}, 1"); a(f"s_lshr_b32 {s(S_T3)}, {s(S_WAVE)}, 2")
            a(f"s_add_u32 {s(S_T2)}, {s(S_T2)}, {s(S_T3)}"); a(f"s_lshl_b32 {s(S_T2)}, {s(S_T2)}, 7")
            a(f"s_lshl_b32 {s(SW0)}, {s(S_H)}, 19"); a(f"s_lshr_b32 {s(S_T3)}, {s(S_S)}, 2"); a(f"s_lshl_b32 {s(S_T3)}, {s(S_T3)}, 10")
            a(f"s_add_u32 {s(SW0)}, {s(SW0)}, {s(S_T3)}"); a(f"s_add_u32 {s(SW0)}, {s(SW0)}, {s(S_T2)}")
            self.fblock(SW1, S_T3)
            a(f"s_lshl_b32 {s(SW1)}, {s(SW1)}, 15"); a(f"s_add_u32 {s(SW1)}, {s(SW1)}, {s(S_T2)}")
            a(f"s_and_b32 {s(S_T2)}, {s(S_WAVE)}, 3")
            a(f"s_lshl_b32 {s(S_T3)}, {s(S_T2)}, 16"); a(f"s_add_u32 {s(SW0)}, {s(SW0)}, {s(S_T3)}")
            a(f"s_lshl_b32 {s(S_T3)}, {s(S_T2)}, 13"); a(f"s_add_u32 {s(SW1)}, {s(SW1)}, {s(S_T3)}")
            self.srd(R2, P_WO, 0x400000); self.srd(R3, P_WD, 0x1c0000)
            a(f"v_lshrrev_b32 {v(VT)}, 3, v0"); a(f"v_and_b32 {v(VT2)}, 0x70, {v(VV)}")
            a(f"v_lshl_add_u32 {v(VWD)}, {v(VT)}, 10, {v(VT2)}"); a(f"v_lshl_add_u32 {v(VWA)}, {v(VT)}, 13, {v(VT2)}")
        def load(it):
            k, i = it
            r = v(regs(it), 4)
            if k in 'KV':
                so, imm = off(i)
                if so != last_so[0]:
                    if self.rot:
                        a(f"s_add_u32 {s(S_T1)}, {s(S_M+9)}, {so}"); a(f"s_and_b32 {s(S_T1)}, {s(S_T1)}, 0x38000"); a(f"s_or_b32 {s(S_T1)}, {s(S_T1)}, {s(SB)}")
                    else: a(f"s_add_u32 {s(S_T1)}, {s(SB)}, {so}")
                    last_so[0] = so
                a(f"buffer_load_dwordx4 {r}, {v(VV if k == 'V' else VK)}, {s(R1 if k == 'V' else R0,4)}, {s(S_T1)} offen offset:{imm} {self.kvpol}")
            elif k == 'A':
                if i == 0: setup_a()
                a(f"buffer_load_dwordx4 {r}, {v(VWA)}, {s(R2,4)}, {s(SA)} offen {self.wpol}")
                if i < 3: a(f"s_add_u32 {s(SA)}, {s(SA)}, {s(SSTR)}")
            else:
                if i < 2: a(f"buffer_load_dwordx4 {r}, {v(VWA)}, {s(R2,4)}, {s(SW0)} offen {self.wpol}")
                else: a(f"buffer_load_dwordx4 {r}, {v(VWD)}, {s(R3,4)}, {s(SW1)} offen {self.wpol}")
                if i == 0: a(f"s_add_u32 {s(SW0)}, {s(SW0)}, 0x40000")
        def count(off_):
            a(f"v_mov_b32 {v(VT2)}, 1"); a("s_mov_b64 exec, 1"); a(f"ds_add_u32 {v(VZ)}, {v(VT2)} offset:{off_}"); a("s_mov_b64 exec, -1")
        def put_a():
            a(f"s_lshl_b32 {s(S_T2)}, {s(S_WAVE)}, 12"); a(f"v_add_u32 {v(VT)}, {s(S_T2)}, {v(VV)}")
            for i in range(4): a(f"ds_write_b128 {v(VT)}, {v(regs(('A', i)),4)} offset:{L_A + 1024*i}")
            count(L_ACNT)
            if not self.wdma: setup_w()
        def put_w():
            a(f"s_lshr_b32 {s(S_T2)}, {s(S_WAVE)}, 2"); a(f"s_mul_i32 {s(S_T2)}, {s(S_T2)}, 12288")
            a(f"s_and_b32 {s(S_T3)}, {s(S_WAVE)}, 3"); a(f"s_lshl_b32 {s(S_T3)}, {s(S_T3)}, 10"); a(f"s_add_u32 {s(S_T2)}, {s(S_T2)}, {s(S_T3)}")
            a(f"v_add_u32 {v(VT)}, {s(S_T2)}, {v(VV)}")
            for i in range(3): a(f"ds_write_b128 {v(VT)}, {v(regs(('W', i)),4)} offset:{L_W + 4096*i}")
            count(L_WCNT)
        def qk(j):
            for m in range(4):
                a(f"v_mfma_f32_16x16x32_bf16 {v(DT+4*m,4)}, {v(slot(4*j+m),4)}, {v(Q,4)}, 0")
            if self.qk2:
                if j == 0:
                    for m in range(1, 4):
                        a(f"s_mov_b32 {s(P_X+2*m)}, {(15 << 4*m) * 0x10001:#x}"); a(f"s_mov_b32 {s(P_X+2*m+1)}, {(15 << 4*m) * 0x10001:#x}")
                for k in range(1, 4):
                    for m in range(4):
                        b = (m + k) & 3
                        a(f"v_add_f32_dpp {v(DT+5*m)}, {v(DT+4*m+b)}, {v(DT+5*m)} row_ror:{(4*(m-b)) & 15} row_mask:0xf bank_mask:0xf")
                for m in range(1, 4):
                    a(f"v_cndmask_b32 {v(S+j)}, {v(DT if m == 1 else S+j)}, {v(DT+5*m)}, {s(P_X+2*m,2)}")
                return
            for k in range(1, 4):
                for m in range(4):
                    b = (m + k) & 3
                    other = DT+4*m+m if k == 1 else S+j
                    a(f"v_add_f32_dpp {v(S+j)}, {v(DT+4*m+b)}, {v(other)} row_ror:{(4*(m-b)) & 15} row_mask:0xf bank_mask:{1<<m:#x}")
        M, Lr = DT, DT+1
        def sm_scale(k):
            if k == 0: a(f"s_mov_b32 {s(S_M+8)}, {SCALE:#x}")
            x, y = S+2*k, S+2*k+1
            self.rbf2(x, y, x, y, VT)
            a(f"v_mul_f32 {v(x)}, {s(S_M+8)}, {v(x)}"); a(f"v_mul_f32 {v(y)}, {s(S_M+8)}, {v(y)}")
            self.rbf2(x, y, x, y, VT)
        def sm_max():
            a(f"v_max3_f32 {v(M)}, {v(S)}, {v(S+1)}, {v(S+2)}"); a(f"v_max3_f32 {v(M)}, {v(M)}, {v(S+3)}, {v(S+4)}")
            a(f"v_max3_f32 {v(M)}, {v(M)}, {v(S+5)}, {v(S+6)}"); a(f"v_max_f32 {v(M)}, {v(M)}, {v(S+7)}")
            self.ror("v_max_f32", [M], (4, 8)); self.rows_all("v_max_f32", M, VT)
        def sm_exp():
            a(f"s_mov_b32 {s(S_T2)}, {LOG2E:#x}")
            for k in range(8): a(f"v_sub_f32 {v(S+k)}, {v(S+k)}, {v(M)}")
            for k in range(8): a(f"v_mul_f32 {v(S+k)}, {s(S_T2)}, {v(S+k)}")
            for k in range(8): a(f"v_exp_f32 {v(S+k)}, {v(S+k)}")
        def sm_sum():
            a(f"v_add_f32 {v(Lr)}, {v(S)}, {v(S+1)}")
            for k in range(2, 8): a(f"v_add_f32 {v(Lr)}, {v(Lr)}, {v(S+k)}")
            self.ror("v_add_f32", [Lr], (4, 8)); self.rows_all("v_add_f32", Lr, VT)
            a(f"s_lshl_b32 {s(S_T2)}, {s(S_WAVE)}, 5")
            a(f"v_lshl_add_u32 {v(VT)}, v0, 2, {s(S_T2)}"); a(f"v_mov_b32 {v(VT2)}, 1")
            a("s_mov_b64 exec, 15")
            a(f"ds_write2_b32 {v(VT)}, {v(M)}, {v(Lr)} offset0:{L_ML//4} offset1:{L_ML//4+4}")
            a("s_mov_b64 exec, 1")
            a(f"ds_add_u32 {v(VZ)}, {v(VT2)} offset:{L_MLCNT}")
            a("s_mov_b64 exec, -1")
        def zero_acc():
            a(f"s_mul_i32 {s(S_T2)}, {s(S_WAVE)}, {OSTR}")
            a(f"v_and_b32 {v(VT)}, 15, v0"); a(f"v_mul_u32_u24 {v(VT)}, 144, {v(VT)}"); a(f"v_and_b32 {v(VWD)}, 48, v0")
            a(f"v_add3_u32 {v(VWD)}, {v(VWD)}, {v(VT)}, {s(S_T2)}")
            for r in range(ACC, ACC+8): a(f"v_mov_b32 {v(r)}, 0")
            for r in range(AO, AO+16): a(f"v_mov_b32 {v(r)}, 0")
            if self.plo:
                for r in range(DT, DT+16): a(f"v_mov_b32 {v(r)}, 0")
        AL = DT
        def build_lo(j):
            a(f"v_cvt_pk_bf16_f32 {v(VT)}, {v(S+2*j)}, {v(S+2*j+1)}")
            self.unpack(Q, Q+1, VT)
            a(f"v_sub_f32 {v(Q)}, {v(S+2*j)}, {v(Q)}"); a(f"v_sub_f32 {v(Q+1)}, {v(S+2*j+1)}, {v(Q+1)}")
            a(f"v_cvt_pk_bf16_f32 {v(VT)}, {v(Q)}, {v(Q+1)}")
            for m in range(4):
                for e in range(4):
                    n = (4*(e-m)) & 15
                    ctl = f"row_ror:{n}" if n else "quad_perm:[0,1,2,3]"
                    a(f"v_mov_b32_dpp {v(AL+4*e+m)}, {v(VT)} {ctl} row_mask:0xf bank_mask:{1<<e:#x}")
        def build_a(j):
            a(f"v_cvt_pk_bf16_f32 {v(VT)}, {v(S+2*j)}, {v(S+2*j+1)}")
            for m in range(4):
                for e in range(4):
                    n = (4*(e-m)) & 15
                    ctl = f"row_ror:{n}" if n else "quad_perm:[0,1,2,3]"
                    a(f"v_mov_b32_dpp {v(AO+4*e+m)}, {v(VT)} {ctl} row_mask:0xf bank_mask:{1<<e:#x}")
        def perm1(j, m, e):
            lo, hi = slot((8*j+m) % 16), slot((8*j+4+m) % 16)
            a(f"v_perm_b32 {v(B+4*e+m)}, {v(hi+(e>>1))}, {v(lo+(e>>1))}, {s(S_HIS if e & 1 else S_LO)}")
        def mfma_pv(e, j):
            acc = ACC + 4*(e >> 2)
            a(f"v_mfma_f32_16x16x32_bf16 {v(acc,4)}, {v(AO+4*(e&3),4)}, {v(B+4*e,4)}, {v(acc,4)}")
            if j < self.plo: a(f"v_mfma_f32_16x16x32_bf16 {v(acc,4)}, {v(AL+4*(e&3),4)}, {v(B+4*e,4)}, {v(acc,4)}")
        def pv_last(j):
            order = [0, 4, 1, 5, 2, 6, 3, 7]
            for k in range(3): perm1(j, 3, order[k])
            for k in range(8):
                mfma_pv(order[k], j)
                if k + 3 < 8: perm1(j, 3, order[k+3])
        def qwait():
            a(f"v_and_b32 {v(VT2)}, 3, v0"); a(f"v_lshlrev_b32 {v(VT2)}, 8, {v(VT2)}")
            a(f"v_and_b32 {v(VT)}, 0xc0, {v(VV)}"); a(f"v_lshrrev_b32 {v(VT)}, 2, {v(VT)}")
            a(f"v_and_b32 {v(DT)}, 0x300, {v(VV)}"); a(f"v_lshrrev_b32 {v(DT)}, 2, {v(DT)}")
            a(f"v_or3_b32 {v(VT2)}, {v(VT2)}, {v(VT)}, {v(DT)}")
            self.stamp(2)
            if not self.cut: self.lds_wait(L_QFLAG, 1, VZ, VT, [f"ds_read_b128 {v(Q,4)}, {v(VT2)} offset:{L_Q}"])
            self.stamp(3)
        kv = [('K', i) for i in range(32)] + [('V', i) for i in range(32)]
        seq = kv[:self.apos] + [('A', i) for i in range(4)] + kv[self.apos:self.wpos] + [('W', i) for i in range(0 if self.wdma else 3)] + kv[self.wpos:]
        if self.agap:
            seq = [x for x in seq if x[0] != 'A']
            for i in range(4): seq.insert(self.apos + i*(self.agap + 1), ('A', i))
        pos = {it: n for n, it in enumerate(seq)}
        N = len(seq)
        def owrite():
            self.stamp(7)
            pv_last(3)
            a(f"ds_write_b128 {v(VWD)}, {v(ACC,4)} offset:{L_O}")
            a(f"ds_write_b128 {v(VWD)}, {v(ACC+4,4)} offset:{L_O+64}")
            a("s_waitcnt lgkmcnt(0)")
            a("s_barrier")
        p0 = pos[('K', self.n0)]
        tasks = [(p0, -1, [], qwait)]
        for j in range(8):
            tasks.append((p0 + j, pos[('K', 4*j+3)], [('K', 4*j+m) for m in range(4)], lambda j=j: qk(j)))
            if j & 1: tasks.append((0, -1, [], lambda j=j: sm_scale(j >> 1)))
        for f in (sm_max, sm_exp, sm_sum, zero_acc): tasks.append(('next', -1, [], f))
        for j in range(4):
            tasks.append(('next', -1, [], lambda j=j: build_a(j)))
            if j < self.plo: tasks.append(('next', -1, [], lambda j=j: build_lo(j)))
            for m in range(3): tasks.append(('next', pos[('V', 8*j+4+m)], [('V', 8*j+m), ('V', 8*j+4+m)], lambda j=j, m=m: [perm1(j, m, e) for e in range(8)]))
            tasks.append(('next', pos[('V', 8*j+7)], [('V', 8*j+3), ('V', 8*j+7)], (lambda j=j: pv_last(j)) if j < 3 else owrite))
        side = [(0, pos[('A', 3)], [('A', i) for i in range(4)], put_a)]
        if not self.wdma: side.append((0, pos[('W', 2)], [('W', i) for i in range(3)], put_w))
        trigs = {pos[kv[t]]: t for t in (self.nq, self.nm, self.g_trig) if isinstance(t, int) and t > 0}
        def Dn(n):
            if self.ramp and n < len(self.ramp): return self.ramp[n]
            return self.D2 if (self.D2 and n >= self.nD2) else self.D
        nbar = (self.ramp[0] if self.ramp else self.D) - 1
        busy = {}; landed = -1
        def run(n):
            for q in (side, tasks):
                did = False
                while q and q[0][1] <= landed:
                    e = q[0][0]
                    if e == 'next':
                        if did and n < 99 and self.smooth: break
                    elif e > n: break
                    t = q.pop(0); t[3](); did = True
                    for x in t[2]: busy.pop(regs(x))
        NM = N - 3 if self.wlate else N
        SK, SJ, VB, V1 = S_M+10, S_M+11, 164, 167
        if self.ctl:
            a(f"s_mov_b32 {s(SK)}, {self.ctl.get('init', 0)}"); a(f"s_mov_b32 {s(SJ)}, 0"); a(f"v_mov_b32 {v(V1)}, 1")
        for n in range(NM):
            if self.ctl and self.ctl['from'] <= n < self.ctl['to']:
                Lb = self.lab("win"); D = Dn(n)
                two = self.ctl.get('g2')
                top = D + (2 if two else 1)
                if n - top > landed: a(f"s_waitcnt vmcnt({top-1})"); landed = n - top
                if n & 1:
                    a("s_waitcnt lgkmcnt(0)"); a(f"v_readfirstlane_b32 {s(SK)}, {v(VB)}"); a(f"v_readfirstlane_b32 {s(SJ)}, {v(VB+1)}")
                a(f"s_cmp_gt_u32 {s(SK)}, {n}"); a(f"s_cbranch_scc1 {Lb}")
                a(f"s_waitcnt vmcnt({top-2})")
                if two:
                    a(f"s_cmp_gt_u32 {s(SJ)}, {n}"); a(f"s_cbranch_scc1 {Lb}")
                    a(f"s_waitcnt vmcnt({top-3})")
                elif self.ctl['tcap']:
                    a(f"s_cmp_le_u32 {s(SJ)}, {n}"); a(f"s_cbranch_scc1 {Lb}")
                    a(f"s_waitcnt vmcnt({D-2})")
                a(f"{Lb}:")
            elif n - Dn(n) > landed:
                a(f"s_waitcnt vmcnt({Dn(n)-1})"); landed = n - Dn(n)
            assert regs(seq[n]) not in busy, (n, seq[n])
            busy[regs(seq[n])] = n
            load(seq[n])
            if self.trace and seq[n] in kv:
                m = kv.index(seq[n])
                if m: a("s_waitcnt lgkmcnt(0)"); a(f"v_writelane_b32 v166, s100, {m-1}")
                a("s_memrealtime s[100:101]")
            if n == nbar:
                a(f"s_mov_b32 {s(S_HI)}, 0xffff0000"); a(f"s_mov_b32 {s(S_LO)}, 0x05040100"); a(f"s_mov_b32 {s(S_HIS)}, 0x07060302")
                a("s_barrier")
            if self.ctl and nbar <= n < self.ctl['to']:
                a("s_mov_b64 exec, 1"); a(f"ds_add_u32 {v(VZ)}, {v(V1)} offset:{L_CNT}"); a("s_mov_b64 exec, -1")
                if not n & 1: a(f"ds_read_b64 {v(VB,2)}, {v(VZ)} offset:{L_BOOST}")
            if n in trigs:
                a(f"v_mov_b32 {v(VT)}, {trigs[n]}"); a("s_mov_b64 exec, 1"); a(f"ds_max_u32 {v(VZ)}, {v(VT)} offset:{L_PROG}"); a("s_mov_b64 exec, -1")
            if self.wdma and seq[n] == kv[min(63, self.wpos - 1)]: count(L_WCNT)
            if n == nbar + 1: self.stamp(1)
            if landed == pos[('K', 31)]: self.stamp(4)
            run(n)
        issued = NM
        while landed < N - 1:
            landed += 1
            now = issued < N and landed == NM - self.wlate
            if not now and not any(q and q[0][1] <= landed for q in (side, tasks)): continue
            a(f"s_waitcnt vmcnt({issued - 1 - landed})")
            if now:
                for n in range(NM, N):
                    busy[regs(seq[n])] = n; load(seq[n])
                issued = N
            run(99)
        assert not tasks and not side
        self.stamp(8)
        if self.trace:
            a(f"s_mul_i32 {s(S_T0)}, {s(S_WG)}, 8"); a(f"s_add_u32 {s(S_T0)}, {s(S_T0)}, {s(S_WAVE)}")
            a(f"s_lshl_b32 {s(S_T0)}, {s(S_T0)}, 8"); a(f"s_add_u32 {s(S_T0)}, {s(S_T0)}, {STAMP + (1<<20):#x}")
            a(f"v_lshl_add_u32 {v(VT)}, v0, 2, {s(S_T0)}")
            a(f"global_store_dword {v(VT)}, v166, {s(P_WS,2)}")
        self.finish(VT)

    def s1_geom(self, loader):
        a = self.a
        SZ, SCB, SRB, SROW, SSTR = S_M, S_M+1, S_M+2, S_M+3, S_M+4
        Lf, Lj = self.lab("s1ffn"), self.lab("s1join")
        a(f"s_cmp_ge_u32 {s(S_S)}, 16"); a(f"s_cbranch_scc1 {Lf}")
        a(f"s_and_b32 {s(SCB)}, {s(S_S)}, 7"); a(f"s_lshr_b32 {s(SRB)}, {s(S_S)}, 3")
        a(f"s_lshl_b32 {s(SROW)}, {s(SRB)}, 2"); a(f"s_add_u32 {s(SROW)}, {s(SROW)}, {s(SZ)}"); a(f"s_lshl_b32 {s(SROW)}, {s(SROW)}, 6")
        if loader:
            a(f"s_mov_b32 {s(SSTR)}, 8192")
            a(f"s_lshl_b32 {s(S_T2)}, {s(S_H)}, 3"); a(f"s_add_u32 {s(S_T2)}, {s(S_T2)}, {s(SCB)}")
            self.srd(R2, P_WQ, 0x400000)
        a(f"s_branch {Lj}")
        a(f"{Lf}:")
        if self.hello in (1, 3, 5): a(f"s_sub_u32 {s(S_T2)}, {s(S_S)}, 16"); a(f"s_lshl_b32 {s(S_T3)}, {s(S_H)}, 4"); a(f"s_add_u32 {s(S_T2)}, {s(S_T2)}, {s(S_T3)}")
        else: a(f"s_sub_u32 {s(S_T2)}, {s(S_S)}, 16"); a(f"s_lshl_b32 {s(S_T2)}, {s(S_T2)}, 3"); a(f"s_add_u32 {s(S_T2)}, {s(S_T2)}, {s(S_H)}")
        a(f"s_lshr_b32 {s(SCB)}, {s(S_T2)}, 2"); a(f"s_and_b32 {s(SRB)}, {s(S_T2)}, 3")
        a(f"s_and_b32 {s(S_T3)}, {s(SZ)}, 1")
        a(f"s_lshl_b32 {s(SROW)}, {s(SRB)}, 1"); a(f"s_add_u32 {s(SROW)}, {s(SROW)}, {s(S_T3)}"); a(f"s_lshl_b32 {s(SROW)}, {s(SROW)}, 6")
        if loader:
            a(f"s_mov_b32 {s(SSTR)}, 3584")
            a(f"s_mov_b32 {s(S_T2)}, {s(SCB)}")
            a(f"s_cmp_ge_u32 {s(SZ)}, 2")
            a(f"s_cselect_b32 {s(R2)}, {s(P_WU)}, {s(P_WG)}"); a(f"s_cselect_b32 {s(R2+1)}, {s(P_WU+1)}, {s(P_WG+1)}")
            a(f"s_cmp_lt_u32 {s(SCB)}, 28")
            a(f"s_cselect_b32 {s(R2+2)}, 0x1c0000, 0"); a(f"s_mov_b32 {s(R2+3)}, 0x20000")
        a(f"{Lj}:")

    VZ, VT, VA, T = 1, 2, 3, 4
    def stage1(self):
        a = self.a
        VZ, VT, VA, T = self.VZ, self.VT, self.VA, self.T
        X, XF, XR, ACC, W = 12, 16, 24, 32, 40
        SZ, SCB, SRB, SROW, SSTR = S_M, S_M+1, S_M+2, S_M+3, S_M+4
        a(f"s_and_b32 {s(SZ)}, {s(S_WAVE)}, 3")
        a(f"v_mov_b32 {v(VZ)}, 0"); a(f"v_lshlrev_b32 {v(VA)}, 4, v0")
        if self.pf:
            Lp = self.lab("nopf")
            a(f"s_cmp_ge_u32 {s(S_S)}, {self.pf}"); a(f"s_cbranch_scc1 {Lp}")
            a(f"s_getpc_b64 {s(R4,2)}")
            a(f"Lpc:")
            a(f"s_sub_u32 {s(R4)}, {s(R4)}, Lpc-{KN}"); a(f"s_subb_u32 {s(R4+1)}, {s(R4+1)}, 0")
            a(f"s_mov_b32 {s(R4+2)}, Lcode_end-{KN}"); a(f"s_mov_b32 {s(R4+3)}, 0x20000")
            a(f"s_lshl_b32 {s(S_T0)}, {s(SZ)}, 10")
            for k in range(5):
                a(f"buffer_load_dwordx4 {v(W+32+4*k,4)}, {v(VA)}, {s(R4,4)}, {s(S_T0)} offen")
                if k < 4: a(f"s_add_u32 {s(S_T0)}, {s(S_T0)}, 4096")
            a(f"{Lp}:")
        self.s1_geom(False)
        a("s_waitcnt lgkmcnt(0)")
        self.srd(R0, P_WS, WS_USED); self.srd(R1, P_X, 1024)
        a(f"buffer_load_dwordx4 {v(X,4)}, {v(VA)}, {s(R1,4)}, 0 offen")
        a(f"buffer_load_dword {v(VT)}, {v(VZ)}, {s(R0,4)}, 0 offen offset:{EPOCH}")
        Lb = self.lab("s1b")
        a(f"s_cmp_lg_u32 {s(SZ)}, 0"); a(f"s_cbranch_scc1 {Lb}")
        a(f"v_lshlrev_b32 {v(T+2)}, 2, v0")
        a("s_mov_b64 exec, 0xffff")
        a(f"ds_write_b32 {v(T+2)}, {v(VZ)}")
        a("s_mov_b64 exec, -1")
        a("s_waitcnt lgkmcnt(0)")
        a(f"{Lb}:")
        a("s_barrier")
        a("s_waitcnt vmcnt(1)")
        self.stamp(1)
        self.layernorm(X, XF, T)
        a(f"s_lshr_b32 {s(S_T0)}, {s(SROW)}, 1")
        a(f"v_lshrrev_b32 {v(T)}, 3, v0"); a(f"v_lshl_add_u32 {v(T)}, {v(T)}, 2, {s(S_T0)}")
        for j in range(8): a(f"ds_bpermute_b32 {v(XR+j)}, {v(T)}, {v(XF+j)}")
        a("s_waitcnt vmcnt(0)")
        a(f"v_add_u32 {v(VT)}, 1, {v(VT)}"); a(f"v_readfirstlane_b32 {s(S_E)}, {v(VT)}")
        a(f"v_and_b32 {v(VT)}, 0x3ff, {v(VT)}")
        if self.hello:
            Lh = self.lab("hello")
            a(f"s_cmp_lg_u32 {s(SZ)}, 0"); a(f"s_cbranch_scc1 {Lh}")
            a(f"s_getreg_b32 {s(S_M+5)}, hwreg(HW_REG_XCC_ID, 0, 4)"); a(f"s_lshl_b32 {s(S_T0)}, {s(S_E)}, 4"); a(f"s_or_b32 {s(S_M+5)}, {s(S_M+5)}, {s(S_T0)}")
            a(f"s_lshl_b32 {s(S_M+7)}, {s(S_H)}, 7"); a(f"s_add_u32 {s(S_M+7)}, {s(S_M+7)}, {XBOX:#x}")
            a(f"s_lshl_b32 {s(S_T0)}, {s(S_S)}, 2"); a(f"s_add_u32 {s(S_T0)}, {s(S_T0)}, {s(S_M+7)}")
            a(f"v_mov_b32 {v(T+2)}, {s(S_M+5)}")
            a("s_mov_b64 exec, 1")
            a(f"buffer_store_dword {v(T+2)}, {v(VZ)}, {s(R0,4)}, {s(S_T0)} offen" + ("" if self.hello >= 4 else " sc1"))
            a("s_mov_b64 exec, -1")
            a(f"{Lh}:")
        a(f"s_lshl_b32 {s(S_T0)}, {s(SZ)}, 13"); a(f"v_add_u32 {v(T)}, {s(S_T0)}, {v(VA)}")
        self.lds_wait(L_ACNT, 8, VZ, T+1)
        for j in range(8): a(f"ds_read_b128 {v(W+4*j,4)}, {v(T)} offset:{L_A+1024*j}")
        for j in range(8):
            self.lgkm(7-j)
            for k in range(4):
                self.unpack(T, T+1, W+4*j+k)
                op = "v_mul_f32" if j == 0 else "v_fmac_f32"
                a(f"{op} {v(ACC+2*k)}, {v(XR+j)}, {v(T)}"); a(f"{op} {v(ACC+2*k+1)}, {v(XR+j)}, {v(T+1)}")
        self.fold("v_permlane32_swap_b32", [(ACC+e, ACC+e+4) for e in range(4)])
        self.fold("v_permlane16_swap_b32", [(ACC+e, ACC+e+2) for e in range(2)])
        self.ror("v_add_f32", [ACC, ACC+1], (8,))
        a(f"s_lshl_b32 {s(S_T0)}, {s(SZ)}, 8")
        a(f"v_and_b32 {v(T)}, 7, v0"); a(f"v_lshl_add_u32 {v(T)}, {v(T)}, 5, {s(S_T0)}")
        a(f"v_lshrrev_b32 {v(T+1)}, 4, v0"); a(f"v_lshl_add_u32 {v(T)}, {v(T+1)}, 3, {v(T)}")
        a(f"v_mov_b32 {v(T+1)}, 1")
        a("s_mov_b32 exec_lo, 0xff00ff"); a("s_mov_b32 exec_hi, 0xff00ff")
        a(f"ds_write_b64 {v(T)}, {v(ACC,2)} offset:{L_S1}")
        a("s_mov_b64 exec, 1")
        a(f"ds_add_u32 {v(VZ)}, {v(T+1)} offset:{L_S1CNT}")
        a("s_mov_b64 exec, -1")
        self.stamp(2)

    def sw0(self):
        a = self.a
        VZ, VT, VA, T = self.VZ, self.VT, self.VA, self.T
        XF, W = 16, 40
        SZ, SCB, SRB = S_M, S_M+1, S_M+2
        def hello_check():
            a(f"v_and_b32 {v(T+4)}, 31, v0"); a(f"v_lshlrev_b32 {v(T+4)}, 2, {v(T+4)}")
            a(f"buffer_load_dword {v(T+5)}, {v(T+4)}, {s(R0,4)}, {s(S_M+7)} offen sc1")
            a("s_waitcnt vmcnt(0)")
            a(f"v_cmp_ne_u32 vcc, {s(S_M+5)}, {v(T+5)}")
            a("s_cmp_eq_u64 vcc, 0"); a(f"s_cselect_b32 {s(S_M+6)}, 2, 1")
        if self.hello:
            assert self.hello >= 4
            self.lds_wait(L_S1CNT, 4, VZ, T+1)
            hello_check()
        a(f"v_and_b32 {v(T)}, 0xf0, {v(VA)}"); a(f"v_and_b32 {v(T+2)}, 16, v0"); a(f"v_lshl_add_u32 {v(T)}, {v(T+2)}, 5, {v(T)}")
        self.lds_wait(L_S1CNT, 4, VZ, T+1, [f"ds_read_b128 {v(W,4)}, {v(T)} offset:{L_S1}", f"ds_read_b128 {v(W+4,4)}, {v(T)} offset:{L_S1+256}"])
        a(f"v_pk_add_f32 {v(W,2)}, {v(W,2)}, {v(W+4,2)}"); a(f"v_pk_add_f32 {v(W+2,2)}, {v(W+2,2)}, {v(W+6,2)}")
        Lf, Lj = self.lab("c1ffn"), self.lab("c1join")
        a(f"s_cmp_ge_u32 {s(S_S)}, 16"); a(f"s_cbranch_scc1 {Lf}")
        for r in range(4): a(f"v_mov_b32 {v(W+4+r)}, {v(W+r)}")
        self.fold("v_permlane16_swap_b32", [(W+r, W+4+r) for r in range(4)])
        a(f"v_and_b32 {v(T)}, 0xf0, {v(VA)}")
        a(f"s_lshl_b32 {s(S_T1)}, {s(S_H)}, 12"); a(f"s_lshl_b32 {s(S_T2)}, {s(SRB)}, 11"); a(f"s_add_u32 {s(S_T1)}, {s(S_T1)}, {s(S_T2)}")
        a(f"s_lshl_b32 {s(S_T2)}, {s(SCB)}, 8"); a(f"s_add_u32 {s(S_T1)}, {s(S_T1)}, {s(S_T2)}"); a(f"s_add_u32 {s(S_T1)}, {s(S_T1)}, {QBOX:#x}")
        a("s_mov_b64 exec, 0xffff")
        a(f"s_branch {Lj}")
        a(f"{Lf}:")
        a(f"v_and_b32 {v(T)}, 8, v0"); a(f"v_lshlrev_b32 {v(T)}, 7, {v(T)}")
        a(f"v_and_b32 {v(T+1)}, 0x70, {v(VA)}"); a(f"v_lshl_add_u32 {v(T+1)}, {v(T+2)}, 3, {v(T+1)}"); a(f"v_add_u32 {v(T)}, {v(T)}, {v(T+1)}")
        a(f"s_lshl_b32 {s(S_T1)}, {s(SCB)}, 11"); a(f"s_lshl_b32 {s(S_T2)}, {s(SRB)}, 8"); a(f"s_add_u32 {s(S_T1)}, {s(S_T1)}, {s(S_T2)}")
        a(f"s_add_u32 {s(S_T1)}, {s(S_T1)}, {GBOX:#x}")
        a("s_mov_b32 exec_lo, -1"); a("s_mov_b32 exec_hi, 0")
        a(f"{Lj}:")
        self.tag(range(W, W+4), VT)
        if self.hello:
            if self.hello in (2, 4): a(f"s_cmp_ge_u32 {s(S_S)}, 16"); a(f"s_cselect_b32 {s(S_M+8)}, 1, {s(S_M+6)}")
            elif self.hello == 3: a(f"s_mov_b32 {s(S_M+8)}, 1")
            else: a(f"s_mov_b32 {s(S_M+8)}, {s(S_M+6)}")
            self.pub(f"buffer_store_dwordx4 {v(W,4)}, {v(T)}, {s(R0,4)}, {s(S_T1)} offen", S_M+8)
        else: a(f"buffer_store_dwordx4 {v(W,4)}, {v(T)}, {s(R0,4)}, {s(S_T1)} offen sc1")
        a("s_mov_b64 exec, -1")
        a(f"s_lshl_b32 {s(S_T0)}, {s(S_H)}, 12"); a(f"s_add_u32 {s(S_T0)}, {s(S_T0)}, {QBOX:#x}")
        W2 = W + 8
        self.trig(self.nq, VZ, T+1)
        self.poll([(f"buffer_load_dwordx4 {v(W2+4*k,4)}, {v(VA)}, {s(R0,4)}, {s(S_T0)} offen offset:{1024*k} sc1", W2+4*k, 4) for k in range(4)], VT, T)
        for k in range(4): a(f"v_pk_add_f32 {v(W2+2*k,2)}, {v(W2+2*k,2)}, {v(W2+8+2*k,2)}")
        for k in range(4): a(f"v_cvt_pk_bf16_f32 {v(XF+k)}, {v(W2+2*k)}, {v(W2+2*k+1)}")
        a(f"v_lshlrev_b32 {v(T)}, 3, v0"); a(f"v_mov_b32 {v(T+1)}, 1")
        a(f"ds_write_b64 {v(T)}, {v(XF,2)} offset:{L_Q}"); a(f"ds_write_b64 {v(T)}, {v(XF+2,2)} offset:{L_Q+512}")
        a("s_waitcnt lgkmcnt(0)")
        a(f"ds_write_b32 {v(VZ)}, {v(T+1)} offset:{L_QFLAG}")
        self.stamp(3)
        if self.cut == 1: return self.finish(T)
        if self.hello:
            Lk = self.lab("known")
            a(f"s_cmp_eq_u32 {s(S_M+6)}, 2"); a(f"s_cbranch_scc1 {Lk}")
            hello_check()
            a(f"{Lk}:")
        MW, LW, M, L, MA, LA, MB, LB = XF, XF+1, XF+2, XF+3, W, W+1, W+2, W+3
        a(f"v_and_b32 {v(T)}, 28, v0"); a(f"v_lshlrev_b32 {v(T)}, 3, {v(T)}")
        a(f"v_and_b32 {v(T+2)}, 3, v0"); a(f"v_lshl_add_u32 {v(T)}, {v(T+2)}, 2, {v(T)}")
        self.lds_wait(L_MLCNT, 8, VZ, T+1, [f"ds_read2_b32 {v(MW,2)}, {v(T)} offset0:{L_ML//4} offset1:{L_ML//4+4}"])
        self.stamp(4)
        a(f"s_mov_b32 {s(S_T2)}, {LOG2E:#x}")
        a(f"v_mov_b32 {v(M)}, {v(MW)}")
        self.ror("v_max_f32", [M], (4, 8))
        a(f"v_mov_b32 {v(T)}, {v(M)}"); a(f"v_permlane16_swap_b32 {v(M)}, {v(T)}"); a(f"v_max_f32 {v(M)}, {v(M)}, {v(T)}")
        a(f"v_sub_f32 {v(L)}, {v(MW)}, {v(M)}"); a(f"v_mul_f32 {v(L)}, {s(S_T2)}, {v(L)}"); a(f"v_exp_f32 {v(L)}, {v(L)}")
        a(f"v_mul_f32 {v(L)}, {v(L)}, {v(LW)}")
        self.ror("v_add_f32", [L], (4, 8))
        a(f"v_mov_b32 {v(T)}, {v(L)}"); a(f"v_permlane16_swap_b32 {v(L)}, {v(T)}"); a(f"v_add_f32 {v(L)}, {v(L)}, {v(T)}")
        a(f"s_mov_b32 {s(S_TM)}, 0x3ff")
        self.tag([M, L], VT)
        if self.fast and not self.hello:
            a(f"s_getreg_b32 {s(S_M+5)}, hwreg(HW_REG_XCC_ID, 0, 4)"); a(f"s_lshl_b32 {s(S_M+5)}, {s(S_M+5)}, 12")
            a(f"v_or_b32 {v(M)}, {s(S_M+5)}, {v(M)}")
        a(f"v_lshlrev_b32 {v(T)}, 3, v0")
        a(f"s_lshl_b32 {s(S_T0)}, {s(S_H)}, 10"); a(f"s_add_u32 {s(S_T0)}, {s(S_T0)}, {MLBOX:#x}")
        a(f"s_lshl_b32 {s(S_T1)}, {s(S_S)}, 5"); a(f"s_add_u32 {s(S_T1)}, {s(S_T1)}, {s(S_T0)}")
        a("s_mov_b64 exec, 15")
        if self.hello: self.pub(f"buffer_store_dwordx2 {v(M,2)}, {v(T)}, {s(R0,4)}, {s(S_T1)} offen", S_M+6)
        else: a(f"buffer_store_dwordx2 {v(M,2)}, {v(T)}, {s(R0,4)}, {s(S_T1)} offen sc1")
        a("s_mov_b64 exec, -1")
        self.trig(self.nm, VZ, T+1)
        self.poll([(f"buffer_load_dwordx2 {v(MA,2)}, {v(T)}, {s(R0,4)}, {s(S_T0)} offen sc1", MA, 2),
                   (f"buffer_load_dwordx2 {v(MB,2)}, {v(T)}, {s(R0,4)}, {s(S_T0)} offen offset:512 sc1", MB, 2)], VT, T+1, quad=True)
        if self.fast and not self.hello:
            a(f"v_xor_b32 {v(T+2)}, {s(S_M+5)}, {v(MA)}"); a(f"v_xor_b32 {v(T+3)}, {s(S_M+5)}, {v(MB)}")
            a(f"v_or_b32 {v(T+2)}, {v(T+2)}, {v(T+3)}"); a(f"v_and_b32 {v(T+2)}, 0xf000, {v(T+2)}")
            a(f"v_cmp_ne_u32 vcc, 0, {v(T+2)}")
            a("s_cmp_eq_u64 vcc, 0"); a(f"s_cselect_b32 {s(S_M+6)}, 2, 1")
        a(f"v_and_b32 {v(MA)}, {s(S_HI)}, {v(MA)}"); a(f"v_and_b32 {v(MB)}, {s(S_HI)}, {v(MB)}")
        a(f"v_max_f32 {v(M)}, {v(MA)}, {v(MB)}")
        self.ror("v_max_f32", [M], (4, 8)); self.rows_all("v_max_f32", M, T)
        for r in (MA, MB, MW): a(f"v_sub_f32 {v(r)}, {v(r)}, {v(M)}")
        for r in (MA, MB, MW): a(f"v_mul_f32 {v(r)}, {s(S_T2)}, {v(r)}")
        for r in (MA, MB, MW): a(f"v_exp_f32 {v(r)}, {v(r)}")
        a(f"v_mul_f32 {v(L)}, {v(MA)}, {v(LA)}"); a(f"v_fmac_f32 {v(L)}, {v(MB)}, {v(LB)}")
        self.ror("v_add_f32", [L], (4, 8)); self.rows_all("v_add_f32", L, T)
        a(f"v_rcp_f32 {v(L)}, {v(L)}"); a(f"v_mul_f32 {v(MW)}, {v(MW)}, {v(L)}")
        a(f"v_and_b32 {v(T)}, 31, v0"); a(f"v_lshlrev_b32 {v(T)}, 2, {v(T)}"); a(f"v_mov_b32 {v(T+1)}, {s(S_M+6) if self.fast else 1}")
        a(f"ds_write_b32 {v(T)}, {v(MW)} offset:{L_F}")
        a("s_waitcnt lgkmcnt(0)")
        a(f"ds_write_b32 {v(VZ)}, {v(T+1)} offset:{L_FFLAG}")
        a("s_waitcnt lgkmcnt(0)")
        self.stamp(5)
        self.finish(T)

    def fblock(self, dst, t):
        a = self.a
        a(f"s_lshl_b32 {s(dst)}, {s(S_H)}, 3"); a(f"s_lshr_b32 {s(t)}, {s(S_S)}, 2"); a(f"s_add_u32 {s(dst)}, {s(dst)}, {s(t)}")

    def sw1(self):
        a = self.a
        VZ, VT, VA, T = self.VZ, self.VT, self.VA, self.T
        XC, VO, G, W = 10, 11, 12, 16
        self.fblock(S_T0, S_T1)
        a(f"s_lshl_b32 {s(S_T0)}, {s(S_T0)}, 10"); a(f"s_add_u32 {s(S_T0)}, {s(S_T0)}, {GBOX:#x}")
        self.trig(self.g_trig, VZ, T+1)
        self.poll([(f"buffer_load_dwordx4 {v(G,4)}, {v(VA)}, {s(R0,4)}, {s(S_T0)} offen sc1", G, 4)], VT, T)
        self.fold4(G)
        self.rbf1(G, G)
        a(f"v_mov_b32_dpp {v(G+1)}, {v(G)} row_ror:8 row_mask:0xf bank_mask:0xf")
        self.silu_bf(G, G, T)
        a(f"v_mul_f32 {v(G)}, {v(G)}, {v(G+1)}"); a(f"v_cvt_pk_bf16_f32 {v(G)}, {v(G)}, {v(G)}")
        a(f"v_and_b32 {v(T)}, 7, v0"); a(f"v_lshlrev_b32 {v(T)}, 3, {v(T)}")
        a(f"v_lshrrev_b32 {v(T+1)}, 4, v0"); a(f"v_lshl_add_u32 {v(T)}, {v(T+1)}, 1, {v(T)}"); a(f"v_mov_b32 {v(T+1)}, 1")
        a("s_mov_b32 exec_lo, 0xff00ff"); a("s_mov_b32 exec_hi, 0xff00ff")
        a(f"ds_write_b16 {v(T)}, {v(G)} offset:{L_H}")
        a("s_mov_b64 exec, -1")
        a("s_waitcnt lgkmcnt(0)")
        a(f"ds_write_b32 {v(VZ)}, {v(T+1)} offset:{L_HFLAG}")
        self.stamp(3)
        Lx = self.lab("sw1end")
        a(f"s_cmp_ge_u32 {s(S_WG)}, {0 if self.cut else 32}"); a(f"s_cbranch_scc1 {Lx}")
        a(f"s_lshl_b32 {s(S_T0)}, {s(S_WG)}, 5")
        a(f"v_and_b32 {v(VO)}, 3, v0"); a(f"v_lshl_add_u32 {v(VO)}, {v(VO)}, 3, {s(S_T0)}")
        a(f"v_lshrrev_b32 {v(T)}, 4, v0"); a(f"v_lshl_add_u32 {v(VO)}, {v(T)}, 1, {v(VO)}")
        a(f"buffer_load_ushort {v(XC)}, {v(VO)}, {s(R1,4)}, 0 offen")
        a(f"s_lshl_b32 {s(S_T0)}, {s(S_WG)}, 13"); a(f"s_add_u32 {s(S_T0)}, {s(S_T0)}, {HBOX:#x}"); a(f"s_add_u32 {s(S_T1)}, {s(S_T0)}, 4096")
        loads = [(f"buffer_load_dwordx4 {v(W+4*j,4)}, {v(VA)}, {s(R0,4)}, {s(S_T0+(j>>2))} offen offset:{1024*(j&3)} sc1", W+4*j, 4) for j in range(8)]
        if self.touch:
            for ld in loads: a(ld[0])
        a("s_waitcnt vmcnt(0)")
        a(f"v_lshlrev_b32 {v(XC)}, 16, {v(XC)}")
        self.srd(R1, P_OUT, 1024)
        if self.otouch: a(f"buffer_load_ushort {v(T+5)}, {v(VO)}, {s(R1,4)}, 0 offen sc1"); a("s_waitcnt vmcnt(0)")
        self.stamp(4)
        a("s_barrier")
        self.stamp(5)
        if self.pipe:
            Y = [(f"buffer_load_dwordx4 {v(W+32+4*j,4)}, {v(VA)}, {s(R0,4)}, {s(S_T0+(j>>2))} offen offset:{1024*(j&3)} sc1", W+32+4*j, 4) for j in range(8)]
            self.poll2(loads, Y, VT, T, G)
        elif self.light: self.gather8(loads, VT, T, G, VA, S_T0, 10)
        else: self.poll(loads, VT, T, acc=G)
        self.stamp(6)
        self.fold4(G)
        self.ror("v_add_f32", [G], (8,))
        self.rbf1(G, G)
        self.silu_bf(G+1, G, T)
        a(f"v_mul_f32_dpp {v(G)}, {v(G+1)}, {v(G)} row_ror:12 row_mask:0xf bank_mask:0xf"); self.rbf1(G, G)
        a(f"v_add_f32 {v(G)}, {v(G)}, {v(XC)}"); a(f"v_cvt_pk_bf16_f32 {v(G)}, {v(G)}, {v(G)}")
        a("s_mov_b32 exec_lo, 0xf000f"); a("s_mov_b32 exec_hi, 0xf000f")
        a(f"buffer_store_short {v(G)}, {v(VO)}, {s(R1,4)}, 0 offen {self.outpol}")
        a(f"s_cmp_lg_u32 {s(S_WG)}, 0"); a(f"s_cbranch_scc1 {Lx}")
        a("s_mov_b64 exec, 1")
        a(f"v_mov_b32 {v(T)}, {s(S_E)}")
        a(f"buffer_store_dword {v(T)}, {v(VZ)}, {s(R0,4)}, 0 offen offset:{EPOCH} {self.outpol}")
        if self.amp:
            pa, pb, k = self.amp
            a("s_waitcnt vmcnt(0)"); self.stamp(7); a("s_waitcnt lgkmcnt(0)")
            a(f"s_sub_u32 {s(S_T0)}, {s(S_ST+2*pb)}, {s(S_ST+2*pa)}"); a(f"s_mul_i32 {s(S_T0)}, {s(S_T0)}, {k}")
            a(f"s_min_u32 {s(S_T0)}, {s(S_T0)}, 100000")
            a("Lamp:")
            a(f"s_memrealtime {s(S_ST+20,2)}"); a("s_waitcnt lgkmcnt(0)")
            a(f"s_sub_u32 {s(S_T1)}, {s(S_ST+20)}, {s(S_ST+14)}"); a(f"s_cmp_lt_u32 {s(S_T1)}, {s(S_T0)}"); a("s_cbranch_scc1 Lamp")
        a(f"{Lx}:")
        if self.diag: a("s_waitcnt vmcnt(0)")
        self.stamp(7)
        self.finish(T)

    def controller(self, SZ, nbar_):
        a = self.a; c = self.ctl
        VZ = self.VZ
        C, CP, E, X, Y, A, G = 24, 25, 26, 27, 28, 29, 30
        glob = c.get('gw', 0) or c['tcap'] or c.get('g2')
        SG, SPREV, SB8 = R3+1, R3+2, 4
        import struct
        f = lambda x: hex(struct.unpack('<I', struct.pack('<f', x))[0])
        L, Lo, Ls = self.lab("ctl"), self.lab("ctlx"), self.lab("ctls")
        a(f"s_cmp_lg_u32 {s(SZ)}, 0"); a(f"s_cbranch_scc1 {Lo}")
        a(f"s_lshl_b32 {s(S_T0)}, {s(S_H)}, 7")
        a(f"v_and_b32 {v(A)}, 31, v0"); a(f"v_lshlrev_b32 {v(A)}, 2, {v(A)}")
        if glob:
            a(f"v_cmp_gt_u32 vcc, 32, v0"); a(f"v_mov_b32 {v(X)}, 0x400"); a(f"v_cndmask_b32 {v(A)}, {v(X)}, {v(A)}, vcc")
            a(f"s_mov_b32 {s(SPREV)}, 0"); a(f"s_mov_b32 {s(17)}, 0")
            a(f"s_lshl_b32 {s(SPREV+1)}, {s(S_H)}, 2"); a(f"s_add_u32 {s(12)}, {s(P_DBG)}, {s(SPREV+1)}"); a(f"s_addc_u32 {s(13)}, {s(P_DBG+1)}, 0")
        a(f"s_add_u32 {s(S_T0)}, {s(S_T0)}, {PBOX:#x}")
        a(f"s_lshl_b32 {s(S_T1)}, {s(S_S)}, 2"); a(f"s_add_u32 {s(S_T1)}, {s(S_T1)}, {s(S_T0)}")
        a(f"s_lshl_b32 {s(R3)}, {s(S_E)}, 16")
        a(f"ds_read_b32 {v(CP)}, {v(VZ)} offset:{L_CNT}")
        a(f"s_mov_b32 {s(S_CNT)}, 4096")
        a(f"{L}:")
        a(f"ds_read_b32 {v(C)}, {v(VZ)} offset:{L_CNT}")
        a("s_waitcnt lgkmcnt(0)")
        a(f"v_or_b32 {v(E)}, {s(R3)}, {v(C)}")
        a(f"v_readfirstlane_b32 {s(S_T2)}, {v(C)}")
        a("s_mov_b64 exec, 1")
        a(f"buffer_store_dword {v(E)}, {v(VZ)}, {s(R0,4)}, {s(S_T1)} offen")
        a("s_mov_b64 exec, -1")
        a(f"s_cmp_ge_u32 {s(S_T2)}, {8*(c.get('exit', c['to'] - 2) - nbar_)}"); a(f"s_cbranch_scc1 {Lo}")
        a(f"s_sub_u32 {s(S_CNT)}, {s(S_CNT)}, 1"); a(f"s_cbranch_scc1 {Lo}")
        a(f"buffer_load_dword {v(X)}, {v(A)}, {s(R0,4)}, {s(S_T0)} offen sc1")
        if glob:
            Lr = self.lab("ctlr")
            a(f"s_cmp_lg_u32 {s(S_S)}, 5"); a(f"s_cbranch_scc1 {Lr}")
            a(f"s_load_dwordx8 {s(SB8,8)}, {s(P_DBG,2)}, 0 glc")
            a(f"{Lr}:")
        a(f"v_add_u32 {v(CP)}, {v(CP)}, {v(C)}"); a(f"v_cvt_f32_u32 {v(CP)}, {v(CP)}")
        a("s_waitcnt vmcnt(0)")
        a(f"ds_read_b32 {v(Y)}, {v(VZ)} offset:{L_CNT}")
        a(f"v_xor_b32 {v(X)}, {s(R3)}, {v(X)}"); a(f"v_cmp_gt_u32 vcc, 0x10000, {v(X)}")
        if glob:
            a(f"v_subrev_u32 {v(G)}, 0x8000, {v(X)}"); a(f"v_cvt_f32_i32 {v(G)}, {v(G)}"); a(f"v_cndmask_b32 {v(G)}, 0, {v(G)}, vcc")
        a(f"v_cvt_f32_u32 {v(X)}, {v(X)}"); a(f"v_cndmask_b32 {v(X)}, 0, {v(X)}, vcc")
        a(f"s_bcnt1_i32_b32 {s(S_T2)}, vcc_lo")
        if glob: a(f"v_readlane_b32 {s(SG)}, {v(G)}, 32")
        self.ror("v_add_f32", [X], (8, 4, 2, 1))
        a(f"v_mov_b32 {v(E)}, {v(X)}"); a(f"v_permlane16_swap_b32 {v(X)}, {v(E)}"); a(f"v_add_f32 {v(X)}, {v(X)}, {v(E)}")
        a(f"v_cvt_f32_u32 {v(E)}, {s(S_T2)}"); a(f"v_rcp_f32 {v(E)}, {v(E)}")
        a("s_waitcnt lgkmcnt(0)")
        a(f"s_cmp_lt_u32 {s(S_T2)}, 24"); a(f"s_cbranch_scc1 {Ls}")
        a(f"v_mul_f32 {v(X)}, {v(X)}, {v(E)}")
        if glob:
            Lr, Lv = self.lab("ctlr"), self.lab("ctlv")
            a(f"v_mov_b32 {v(G)}, {s(SG)}")
            a(f"s_cmp_lg_u32 {s(S_S)}, 5"); a(f"s_cbranch_scc1 {Lr}")
            a(f"v_cvt_u32_f32 {v(E)}, {v(X)}"); a(f"v_readfirstlane_b32 {s(S_T2)}, {v(E)}")
            a(f"s_add_u32 {s(S_T3)}, {s(SPREV)}, {s(17)}"); a(f"s_min_u32 {s(18)}, {s(SPREV)}, {s(17)}"); a(f"s_mov_b32 {s(17)}, {s(SPREV)}")
            a(f"s_sub_u32 {s(14)}, {s(S_T2)}, {s(SPREV)}"); a(f"s_mov_b32 {s(SPREV)}, {s(S_T2)}")
            a(f"s_atomic_add {s(14)}, {s(12,2)}, 0x0")
            a(f"s_min_u32 {s(15)}, {s(SB8)}, {s(SB8+1)}"); a(f"s_add_u32 {s(16)}, {s(SB8)}, {s(SB8+1)}")
            for k in range(2, 8): a(f"s_min_u32 {s(15)}, {s(15)}, {s(SB8+k)}"); a(f"s_add_u32 {s(16)}, {s(16)}, {s(SB8+k)}")
            a(f"s_min_u32 {s(15)}, {s(15)}, {s(18)}"); a(f"s_cmp_eq_u32 {s(15)}, 0"); a(f"s_cbranch_scc1 {Lr}")
            a(f"s_lshl_b32 {s(S_T3)}, {s(S_T3)}, 2")
            a(f"s_sub_u32 {s(16)}, {s(16)}, {s(S_T3)}"); a(f"s_ashr_i32 {s(16)}, {s(16)}, 3")
            a(f"s_add_u32 {s(16)}, {s(16)}, {0x8000 + c.get('gb', 0)}"); a(f"s_or_b32 {s(16)}, {s(16)}, {s(R3)}")
            a(f"v_mov_b32 {v(E)}, {s(16)}")
            a("s_mov_b64 exec, 1")
            a(f"buffer_store_dword {v(E)}, {v(VZ)}, {s(R0,4)}, {s(S_T0)} offen offset:1024")
            a("s_mov_b64 exec, -1")
            a(f"{Lr}:")
        a(f"v_fma_f32 {v(X)}, {v(CP)}, -0.5, {v(X)}")
        if c.get('gw', 0): a(f"v_fmac_f32 {v(X)}, {f(c['gw'])}, {v(G)}")
        a(f"v_lshrrev_b32 {v(Y)}, 3, {v(Y)}"); a(f"v_add_u32 {v(Y)}, {nbar_ + 1 + c['lead']}, {v(Y)}")
        for (dst, src, sign, th, g, cap) in ((E, X, 1, c['bth'], c['bg'], c['bcap']), (X, G, 1, *c['g2']) if c.get('g2') else (X, G, -1, c['tth'], c['tg'], c['tcap'])):
            if not cap: continue
            t = CP
            a(f"v_mul_f32 {v(t)}, {f(sign*g)}, {v(src)}")
            if c.get('k0') and dst == E: a(f"v_add_f32 {v(t)}, {f(c['k0'])}, {v(t)}")
            a(f"v_min_f32 {v(t)}, {f(cap)}, {v(t)}"); a(f"v_max_f32 {v(t)}, 0, {v(t)}")
            a(f"v_cmp_{'lt' if sign > 0 else 'gt'}_f32 vcc, {f(sign*th)}, {v(src)}")
            a(f"v_cvt_u32_f32 {v(t)}, {v(t)}"); a(f"v_add_u32 {v(t)}, {v(t)}, {v(Y)}")
            a(f"v_cndmask_b32 {v(dst)}, 0, {v(t)}, vcc")
        if c.get('g2'):
            a(f"v_min_u32 {v(CP)}, {v(E)}, {v(X)}"); a(f"v_max_u32 {v(X)}, {v(E)}, {v(X)}"); a(f"v_mov_b32 {v(E)}, {v(CP)}")
        a("s_mov_b64 exec, 1")
        a(f"ds_write_b64 {v(VZ)}, {v(E,2)} offset:{L_BOOST}")
        a("s_mov_b64 exec, -1")
        a(f"{Ls}:")
        a(f"v_mov_b32 {v(CP)}, {v(C)}")
        a(f"s_branch {L}")
        a(f"{Lo}:")

    def sw23(self):
        a = self.a
        VZ, VT, VA, T = self.VZ, self.VT, self.VA, self.T
        VP, VH, VB, VB2, OUT, SUM, W, HB, AW, AD, F, DD = 10, 11, 12, 13, 16, 20, 24, 56, 72, 104, 120, 152
        SZ, SFB, SCOL, SPUB, SP0, SHB, SLW = S_M+8, S_M+9, S_M+10, S_M+11, S_M, S_M+12, S_M+13
        a(f"s_and_b32 {s(SZ)}, {s(S_WAVE)}, 1")
        self.fblock(SFB, S_T1)
        a(f"s_and_b32 {s(SCOL)}, {s(S_S)}, 3"); a(f"s_lshl_b32 {s(SCOL)}, {s(SCOL)}, 1"); a(f"s_add_u32 {s(SCOL)}, {s(SCOL)}, {s(SZ)}")
        a(f"s_mul_i32 {s(SLW)}, {s(SZ)}, 12288")
        a(f"v_lshrrev_b32 {v(T)}, 4, v0"); a(f"v_lshl_add_u32 {v(T)}, {v(T)}, 10, {s(SLW)}")
        a(f"v_bfe_u32 {v(T+2)}, v0, 2, 2"); a(f"v_lshl_add_u32 {v(T)}, {v(T+2)}, 7, {v(T)}")
        a(f"v_and_b32 {v(T+2)}, 3, v0"); a(f"v_lshl_add_u32 {v(T)}, {v(T+2)}, 3, {v(T)}")
        a(f"s_lshl_b32 {s(S_T0)}, {s(S_H)}, 16"); a(f"s_add_u32 {s(S_T0)}, {s(S_T0)}, {OBOX:#x}")
        a(f"s_lshl_b32 {s(SPUB)}, {s(S_S)}, 11"); a(f"s_add_u32 {s(SPUB)}, {s(SPUB)}, {s(S_T0)}")
        a(f"s_lshr_b32 {s(S_T1)}, {s(S_S)}, 2"); a(f"s_lshl_b32 {s(S_T1)}, {s(S_T1)}, 8"); a(f"s_add_u32 {s(SP0)}, {s(S_T0)}, {s(S_T1)}")
        for k in range(1, 8): a(f"s_add_u32 {s(SP0+k)}, {s(SP0)}, {8192*k}")
        a(f"v_lshrrev_b32 {v(VP)}, 4, v0"); a(f"v_and_b32 {v(T+2)}, 0xf0, {v(VA)}"); a(f"v_lshl_add_u32 {v(VP)}, {v(VP)}, 11, {v(T+2)}")
        a(f"s_lshl_b32 {s(SHB)}, {s(SCOL)}, 15"); a(f"s_lshl_b32 {s(S_T1)}, {s(SFB)}, 7"); a(f"s_add_u32 {s(SHB)}, {s(SHB)}, {s(S_T1)}")
        a(f"s_add_u32 {s(SHB)}, {s(SHB)}, {HBOX:#x}")
        a(f"v_and_b32 {v(VH)}, 3, v0"); a(f"v_lshlrev_b32 {v(VH)}, 13, {v(VH)}")
        a(f"v_and_b32 {v(T+2)}, 4, v0"); a(f"v_lshl_add_u32 {v(VH)}, {v(T+2)}, 4, {v(VH)}")
        a(f"v_and_b32 {v(VB)}, 48, v0"); a(f"v_add_u32 {v(VH)}, {v(VH)}, {v(VB)}")
        def tr_ad():
            for t in range(4):
                for hf in range(2):
                    a(f"ds_read_b64_tr_b16 {v(AD+4*t+2*hf,2)}, {v(T)} offset:{L_W + 8192 + 512*hf + 32*t}")
        def tr_aw(t):
            for kk in range(2):
                for hf in range(2):
                    a(f"ds_read_b64_tr_b16 {v(AW+8*t+4*kk+2*hf,2)}, {v(T)} offset:{L_W + 4096*kk + 512*hf + 32*t}")
        def ffn_tags():
            a("s_mov_b32 exec_lo, 0x100010"); a("s_mov_b32 exec_hi, 0x100010")
            for t in range(4):
                self.tag(range(DD+4*t, DD+4*t+4), VT, dst=range(OUT, OUT+4))
                if t < 3: a("s_lshl_b64 exec, exec, 1")
            a("s_mov_b64 exec, -1")
        def wprep():
            if self.wprog:
                assert self.wsplit == 12
                a("s_waitcnt vmcnt(17)")
                tr_ad()
                self.lgkm(0)
                for t in range(4): a(f"v_mfma_f32_16x16x32_bf16 {v(DD+4*t,4)}, {v(AD+4*t,4)}, {v(HB,4)}, 0")
                ffn_tags()
                for kk in range(2):
                    a(f"s_waitcnt vmcnt({13 - 4*kk})")
                    for t in range(4):
                        for hf in range(2):
                            a(f"ds_read_b64_tr_b16 {v(AW+8*t+4*kk+2*hf,2)}, {v(T)} offset:{L_W + 4096*kk + 512*hf + 32*t}")
                self.stamp(3)
                return
            if self.wdma:
                a(f"s_waitcnt vmcnt({9 if self.wsplit == 12 else 8})")
                tr_ad(); tr_aw(0)
                self.lgkm(4)
                for t in range(4): a(f"v_mfma_f32_16x16x32_bf16 {v(DD+4*t,4)}, {v(AD+4*t,4)}, {v(HB,4)}, 0")
                for t in range(1, 4): tr_aw(t)
                ffn_tags()
                self.stamp(3)
                return
            self.lds_wait(L_WCNT, 8, VZ, T+2)
            tr_ad()
            self.lds_wait(L_HFLAG, 1, VZ, T+2, [f"ds_read_b128 {v(HB,4)}, {v(VB)} offset:{L_H}"])
            for t in range(4): a(f"v_mfma_f32_16x16x32_bf16 {v(DD+4*t,4)}, {v(AD+4*t,4)}, {v(HB,4)}, 0")
            for t in range(4):
                tr_aw(t)
                if t == 1: a("s_waitcnt lgkmcnt(0)")
            ffn_tags()
            a("s_waitcnt lgkmcnt(0)")
            self.stamp(3)
        if self.wdma:
            VWA, VWD, SW0, SW1 = 14, 15, R4, R4+1
            a(f"v_lshrrev_b32 {v(T+1)}, 3, v0"); a(f"v_and_b32 {v(T+2)}, 0x70, {v(VA)}")
            a(f"v_lshl_add_u32 {v(VWD)}, {v(T+1)}, 10, {v(T+2)}")
            a(f"s_mul_i32 {s(S_T1)}, {s(SZ)}, {8*144}"); a(f"v_mul_u32_u24 {v(T+1)}, 144, {v(T+1)}"); a(f"v_add3_u32 {v(VWA)}, {v(T+1)}, {v(T+2)}, {s(S_T1)}")
            a(f"s_lshl_b32 {s(SW0)}, {s(S_H)}, 19"); a(f"s_lshr_b32 {s(S_T1)}, {s(S_S)}, 2"); a(f"s_lshl_b32 {s(S_T1)}, {s(S_T1)}, 14"); a(f"s_add_u32 {s(SW0)}, {s(SW0)}, {s(S_T1)}")
            a(f"s_lshl_b32 {s(S_T1)}, {s(SCOL)}, 7"); a(f"s_add_u32 {s(SW0)}, {s(SW0)}, {s(S_T1)}")
            a(f"s_lshl_b32 {s(SW1)}, {s(SFB)}, 15"); a(f"s_add_u32 {s(SW1)}, {s(SW1)}, {s(S_T1)}")
            a(f"s_add_u32 {s(SLW)}, {s(SLW)}, {L_W}")
            self.srd(R1, P_WO, 0x400000); self.srd(R2, P_WD, 0x1c0000)
            def touch_w():
                a("s_mov_b64 exec, 1")
                for h in range(4):
                    a(f"s_add_u32 {s(S_T1)}, {s(SW0)}, {0x20000*h}")
                    a(f"buffer_load_dword {v(T+3)}, {v(VZ)}, {s(R1,4)}, {s(S_T1)} offen {self.wpol}")
                a(f"buffer_load_dword {v(T+3)}, {v(VZ)}, {s(R2,4)}, {s(SW1)} offen {self.wpol}")
                a("s_mov_b64 exec, -1")
            if self.ctl: self.controller(SZ, nbar_=(self.ramp[0] if self.ramp else self.D) - 1)
            if self.wtouch == 1: touch_w()
            self.lds_wait(L_HFLAG, 1, VZ, T+2, [f"ds_read_b128 {v(HB,4)}, {v(VB)} offset:{L_H}"])
        worder = list(range(8, 12)) + list(range(8))
        def wload(js):
            for j in js:
                a(f"s_add_u32 m0, {s(SLW)}, {1024*j}")
                if j < 8:
                    a(f"buffer_load_dwordx4 {v(VWD)}, {s(R1,4)}, {s(SW0)} offen {self.wpol} lds")
                    a(f"s_add_u32 {s(SW0)}, {s(SW0)}, {0x20000 - 8192 if j & 1 else 8192:#x}")
                else:
                    a(f"buffer_load_dwordx4 {v(VWD)}, {s(R2,4)}, {s(SW1)} offen {self.wpol} lds")
                    a(f"s_add_u32 {s(SW1)}, {s(SW1)}, 8192")
        late = self.wpos > 56 or self.wdma
        if not late: wprep()
        if self.cut: return self.finish(T)
        if self.wtouch == 2: touch_w()
        loads = [(f"buffer_load_dwordx4 {v(W+4*k,4)}, {v(VP)}, {s(R0,4)}, {s(SP0+k)} offen sc1", W+4*k, 4) for k in range(8)]
        if self.touch and True:
            for ld in loads: a(ld[0])
        self.lds_wait(L_FFLAG, 1, VZ, T+2, [f"ds_read_b128 {v(F+4*w,4)}, {v(VZ)} offset:{L_F+16*w}" for w in range(8)])
        a(f"s_mov_b32 {s(S_M+14)}, {s(S_T3)}")
        if self.wtouch == 3: touch_w()
        a(f"s_lshl_b32 {s(S_T0)}, {s(SZ)}, 10"); a(f"v_add_u32 {v(VA)}, {s(S_T0)}, {v(VA)}")
        a(f"s_lshl_b32 {s(S_T0)}, {s(SZ)}, 7"); a(f"v_add_u32 {v(VB2)}, {s(S_T0)}, {v(VB)}"); a(f"v_lshl_add_u32 {v(T+1)}, v0, 1, {s(S_T0)}")
        if self.touch: a("s_waitcnt vmcnt(0)")
        if self.wdma and self.wsplit:
            self.lds_wait(L_WCNT, 8, VZ, T+2, sleep=0)
            wload(worder[:self.wsplit])
        self.stamp(4)
        a("s_barrier")
        self.stamp(5)
        for w in range(8): a(f"ds_read_b128 {v(W+4*w,4)}, {v(VWA)} offset:{L_O+OSTR*w}")
        for w in range(8):
            self.lgkm(7-w)
            for p in (0, 2):
                if w == 0: a(f"v_pk_mul_f32 {v(SUM+p,2)}, {v(W+p,2)}, {v(F+p,2)}")
                else: a(f"v_pk_fma_f32 {v(SUM+p,2)}, {v(W+4*w+p,2)}, {v(F+4*w+p,2)}, {v(SUM+p,2)}")
        if self.fast: a(f"s_cmp_eq_u32 {s(S_M+14)}, 2")
        self.tag(range(SUM, SUM+4), VT, dst=range(F, F+4))
        if self.fast:
            La, Lb = self.lab("h1l"), self.lab("h1j")
            a(f"s_cbranch_scc1 {La}")
            a(f"buffer_store_dwordx4 {v(F,4)}, {v(VA)}, {s(R0,4)}, {s(SPUB)} offen sc1")
            a(f"s_branch {Lb}")
            a(f"{La}:")
            a(f"buffer_store_dwordx4 {v(F,4)}, {v(VA)}, {s(R0,4)}, {s(SPUB)} offen")
            a(f"{Lb}:")
        else: a(f"buffer_store_dwordx4 {v(F,4)}, {v(VA)}, {s(R0,4)}, {s(SPUB)} offen sc1")
        self.stamp(6)
        if self.wdma: wload(worder[self.wsplit:])
        pre = late and (self.prepoll or self.wdma)
        if late and not pre: wprep()
        BO = W
        if self.pipe:
            yr = [AD+4*k for k in range(4)] + [F+4+4*k for k in range(4)]
            Y = [(f"buffer_load_dwordx4 {v(yr[k],4)}, {v(VP)}, {s(R0,4)}, {s(SP0+k)} offen sc1", yr[k], 4) for k in range(8)]
            self.poll2(loads, Y, VT, T+3, SUM, between=wprep)
            BO = HB
        elif self.light: self.gather8(loads, VT, HB+4, SUM, VP, SP0, 13, between=(wprep if pre else None))
        else: self.poll(loads, VT, T+3, acc=SUM, between=(wprep if pre else None))
        self.stamp(7)
        self.fold4(SUM)
        a(f"v_cvt_pk_bf16_f32 {v(SUM)}, {v(SUM)}, {v(SUM)}")
        a(f"ds_write_b16 {v(T+1)}, {v(SUM)} offset:{L_OB}")
        a(f"ds_read_b128 {v(BO,4)}, {v(VB2)} offset:{L_OB}"); a(f"ds_read_b128 {v(BO+4,4)}, {v(VB2)} offset:{L_OB+64}")
        a("s_mov_b32 exec_lo, 0x10001"); a("s_mov_b32 exec_hi, 0x10001")
        self.lgkm(1)
        for t in range(2): a(f"v_mfma_f32_16x16x32_bf16 {v(DD+4*t,4)}, {v(AW+8*t,4)}, {v(BO,4)}, 0")
        self.lgkm(0)
        for t in range(2): a(f"v_mfma_f32_16x16x32_bf16 {v(DD+4*t,4)}, {v(AW+8*t+4,4)}, {v(BO+4,4)}, {v(DD+4*t,4)}")
        for t in range(2, 4):
            a(f"v_mfma_f32_16x16x32_bf16 {v(DD+4*t,4)}, {v(AW+8*t,4)}, {v(BO,4)}, 0")
            a(f"v_mfma_f32_16x16x32_bf16 {v(DD+4*t,4)}, {v(AW+8*t+4,4)}, {v(BO+4,4)}, {v(DD+4*t,4)}")
        for t in range(4):
            self.tag(range(DD+4*t, DD+4*t+4), VT, dst=range(OUT, OUT+4))
            if t < 3: a("s_lshl_b64 exec, exec, 1")
        a("s_mov_b32 exec_lo, 0xff00ff"); a("s_mov_b32 exec_hi, 0xff00ff")
        a(f"buffer_store_dwordx4 {v(OUT,4)}, {v(VH)}, {s(R0,4)}, {s(SHB)} offen sc1")
        self.stamp(8)
        if self.fast and self.clean:
            a("s_mov_b64 exec, -1")
            a(f"buffer_store_dwordx4 {v(F,4)}, {v(VA)}, {s(R0,4)}, {s(SPUB)} offen sc1")
        if self.diag: a("s_waitcnt vmcnt(0)")
        self.stamp(9)
        self.finish(T)

    def build(self):
        a = self.a
        hdr = open("recurrent_scan__gqa_block_cached__swiglu_ffn__decode.s.ref").read().split("; @launch")[0]
        a(f'.amdgcn_target "amdgcn-amd-amdhsa--gfx950"')
        a(".text"); a(f".globl {KN}"); a(".p2align 8"); a(f".type {KN},@function"); a(f"{KN}:")
        a(f"s_load_dwordx16 {s(4,16)}, s[0:1], 0"); a(f"s_load_dwordx8 {s(20,8)}, s[0:1], 64")
        a("s_cmp_ge_u32 s2, 256"); a("s_cbranch_scc1 Lend")
        if self.diag:
            for k in range(1, 12): a(f"s_mov_b32 {s(S_ST+2*k)}, 0")
        self.stamp(0)
        a("v_lshrrev_b32 v1, 6, v0"); a("v_and_b32 v0, 63, v0"); a(f"v_readfirstlane_b32 {s(S_WAVE)}, v1")
        a(f"s_and_b32 {s(S_H)}, s2, 7"); a(f"s_lshr_b32 {s(S_S)}, s2, 3")
        a(f"s_cmp_ge_u32 {s(S_WAVE)}, 8"); a("s_cbranch_scc1 Lservice")
        self.streamer()
        a("Lservice:")
        if self.prio: a("s_setprio 3")
        a(f"s_mov_b32 {s(S_HI)}, 0xffff0000"); a(f"s_mov_b32 {s(S_TM)}, {(1 << self.tagbits) - 1:#x}")
        self.stage1()
        a(f"s_cmp_eq_u32 {s(S_WAVE)}, 9"); a("s_cbranch_scc1 Lsw1")
        a(f"s_cmp_gt_u32 {s(S_WAVE)}, 9"); a("s_cbranch_scc1 Lsw23")
        self.sw0()
        a("Lsw23:"); self.sw23()
        a("Lsw1:"); self.sw1()
        a("Lend:"); a("s_endpgm")
        a("Lcode_end:")
        a(".fill 64, 4, 0xbf800000")
        a('.section .rodata,"a"'); a(".p2align 6"); a(f".amdhsa_kernel {KN}")
        for d in ("next_free_vgpr 168", "next_free_sgpr 102", "accum_offset 168", "group_segment_fixed_size 0", "kernarg_size 96",
                  "user_sgpr_count 2", "user_sgpr_kernarg_segment_ptr 1", "system_sgpr_workgroup_id_x 1", "float_denorm_mode_32 3"):
            a(f".amdhsa_{d}")
        a(".end_amdhsa_kernel")
        return hdr + f"; @launch grid=(256,1,1) block=(768,1,1) lds={LDS_BYTES + self.ldspad}\n" + a.finalize()

def gen(**kw): return G(**kw).build()
if __name__ == "__main__":
    kw = eval("dict(" + (sys.argv[2] if len(sys.argv) > 2 else "") + ")")
    open(sys.argv[1], "w").write(gen(**kw))
```

```python
import sys
from asmlib import Asm
KN = "recurrent_scan__gqa_block_cached__swiglu_ffn__decode_kernel"

EPOCH = 0
QBOX, MLBOX, PBOX, XBOX, GBOX, OBOX, HBOX = 0x1000, 0x9000, 0xB000, 0xC000, 0x10000, 0x20000, 0xA0000
WS_USED = 0xE0000
STAMP = 128 << 20
L_QFLAG, L_MLCNT, L_FFLAG, L_S1CNT, L_PROG, L_HFLAG, L_ACNT, L_WCNT = 0, 4, 8, 12, 16, 20, 24, 28
L_CNT, L_BOOST = 32, 40
L_ML, L_F, L_H, L_Q, L_S1, L_OB, L_O = 64, 320, 448, 512, 1536, 2560, 2816
OSTR = 16*144
L_W = L_O + 8*OSTR
L_A = L_O
LDS_BYTES = L_W + 2*12288
SPIN = 1 << 16

LOG2E = 0x3fb8aa3b
SCALE = 0x3db504f3
EPS = 0x3727c5ac

def v(i, n=1): return f"v{i}" if n == 1 else f"v[{i}:{i+n-1}]"
def s(i, n=1): return f"s{i}" if n == 1 else f"s[{i}:{i+n-1}]"

S_WG, S_WAVE = 2, 3
P_X, P_K, P_V, P_WQ, P_WO, P_BX, P_WG, P_WU, P_WD, P_OUT, P_DBG, P_WS = range(4, 28, 2)
R0, R1, R2, R3, R4 = 28, 32, 36, 40, 44
S_H, S_S = 48, 49
S_T0, S_T1, S_T2, S_T3 = 50, 51, 52, 53
S_HI, S_TM, S_LO, S_HIS = 54, 55, 56, 57
S_CNT, S_E = 58, 59
S_M = 60
S_ST = 76

class G:
    def __init__(self, D=3, D2=3, nD2=58, n0=28, il=12, kvpol="nt", wpol="nt", diag=0, pf=1, nq=20, nm=56, g_trig=44,
                 outpol="", prio=1, touch=0, cut=0, amp=None, trace=0, ramp=None, wpos=64, apos=1, smooth=1, wlate=0, prepoll=0, fast=1, clean=0, wdma=1, rot=1, agap=1, light=0, ldspad=0, hsleep=0, pipe=1, wsplit=12, wtouch=0, otouch=0, ctl=1, qk2=1, hello=5, wprog=1, tagbits=4, plo=3, amp2=None, pfe=1, pf2=0):
        self.__dict__.update(locals()); del self.__dict__['self']
        self.a = Asm(); self.nlab = 0
        assert self.wdma
        if self.ctl == 1: self.ctl = dict(to=68, bth=0, bg=0.5, bcap=5, tth=4, tg=0.15, tcap=0, lead=0, exit=62, **{'from': 8})
    def lab(self, p):
        self.nlab += 1; return f"L{p}{self.nlab}"
    def srd(self, r, ptr, size):
        a = self.a
        a(f"s_mov_b32 {s(r)}, {s(ptr)}"); a(f"s_mov_b32 {s(r+1)}, {s(ptr+1)}")
        a(f"s_mov_b32 {s(r+2)}, {size:#x}"); a(f"s_mov_b32 {s(r+3)}, 0x20000")
    def stamp(self, k):
        if self.diag or self.amp or self.amp2: self.a(f"s_memrealtime {s(S_ST+2*k,2)}")
    def lgkm(self, n):
        self.a(f"s_waitcnt lgkmcnt({0 if (self.diag or self.amp or self.amp2) else n})")
    def finish(self, vt):
        a = self.a
        if self.diag:
            a("s_waitcnt lgkmcnt(0)")
            a(f"s_mul_i32 {s(S_T0)}, {s(S_WG)}, 12"); a(f"s_add_u32 {s(S_T0)}, {s(S_T0)}, {s(S_WAVE)}")
            a(f"s_lshl_b32 {s(S_T0)}, {s(S_T0)}, 6"); a(f"s_add_u32 {s(S_T0)}, {s(S_T0)}, {STAMP:#x}")
            a("s_mov_b64 exec, 1")
            a(f"v_mov_b32 {v(vt)}, {s(S_T0)}")
            for k in range(12):
                a(f"v_mov_b32 {v(vt+1)}, {s(S_ST+2*k)}")
                a(f"global_store_dword {v(vt)}, {v(vt+1)}, {s(P_WS,2)} offset:{4*k}")
            a("s_waitcnt vmcnt(0)")
        a("s_endpgm")
    def unpack(self, lo, hi, src):
        self.a(f"v_lshlrev_b32 {v(lo)}, 16, {v(src)}"); self.a(f"v_and_b32 {v(hi)}, {s(S_HI)}, {v(src)}")
    def rbf1(self, dst, src):
        self.a(f"v_cvt_pk_bf16_f32 {v(dst)}, {v(src)}, {v(src)}"); self.a(f"v_and_b32 {v(dst)}, {s(S_HI)}, {v(dst)}")
    def rbf2(self, d0, d1, s0, s1, t):
        self.a(f"v_cvt_pk_bf16_f32 {v(t)}, {v(s0)}, {v(s1)}"); self.unpack(d0, d1, t)
    def ror(self, op, regs, steps):
        for n in steps:
            for r in regs: self.a(f"{op}_dpp {v(r)}, {v(r)}, {v(r)} row_ror:{n} row_mask:0xf bank_mask:0xf")
    def rows_all(self, op, x, t):
        a = self.a
        for sw in ("v_permlane16_swap_b32", "v_permlane32_swap_b32"):
            a(f"v_mov_b32 {v(t)}, {v(x)}"); a(f"{sw} {v(x)}, {v(t)}"); a(f"{op} {v(x)}, {v(x)}, {v(t)}")
    def fold(self, sw, pairs):
        for x, y in pairs: self.a(f"{sw} {v(x)}, {v(y)}")
        for x, y in pairs: self.a(f"v_add_f32 {v(x)}, {v(x)}, {v(y)}")
    def fold4(self, x):
        self.fold("v_permlane32_swap_b32", [(x, x+2), (x+1, x+3)])
        self.fold("v_permlane16_swap_b32", [(x, x+1)])
    def silu_bf(self, dst, x, t):
        a = self.a
        a(f"v_mul_f32 {v(t)}, {0x80000000 ^ LOG2E:#x}, {v(x)}"); a(f"v_exp_f32 {v(t)}, {v(t)}")
        a(f"v_add_f32 {v(t)}, 1.0, {v(t)}"); a(f"v_rcp_f32 {v(t)}, {v(t)}"); a(f"v_mul_f32 {v(t)}, {v(x)}, {v(t)}")
        self.rbf1(dst, t)
    def layernorm(self, X, XF, T):
        a = self.a
        for k in range(4): self.unpack(XF+2*k, XF+2*k+1, X+k)
        a(f"v_add_f32 {v(T)}, {v(XF)}, {v(XF+1)}")
        for k in range(2, 8): a(f"v_add_f32 {v(T)}, {v(T)}, {v(XF+k)}")
        self.ror("v_add_f32", [T], (8, 4, 2, 1)); self.rows_all("v_add_f32", T, T+1)
        a(f"v_mul_f32 {v(T)}, 0x3b000000, {v(T)}")
        a(f"v_sub_f32 {v(T+2)}, {v(XF)}, {v(T)}"); a(f"v_mul_f32 {v(T+3)}, {v(T+2)}, {v(T+2)}")
        for k in range(1, 8):
            a(f"v_sub_f32 {v(T+2)}, {v(XF+k)}, {v(T)}"); a(f"v_fmac_f32 {v(T+3)}, {v(T+2)}, {v(T+2)}")
        self.ror("v_add_f32", [T+3], (8, 4, 2, 1)); self.rows_all("v_add_f32", T+3, T+1)
        a(f"v_mul_f32 {v(T+3)}, 0x3b000000, {v(T+3)}")
        self.rbf2(T, T+3, T, T+3, T+1)
        a(f"v_add_f32 {v(T+3)}, {EPS:#x}, {v(T+3)}"); self.rbf1(T+3, T+3)
        a(f"v_sqrt_f32 {v(T+3)}, {v(T+3)}"); self.rbf1(T+3, T+3)
        a(f"v_rcp_f32 {v(T+2)}, {v(T+3)}")
        for k in range(8): a(f"v_sub_f32 {v(XF+k)}, {v(XF+k)}, {v(T)}")
        for k in range(4): self.rbf2(XF+2*k, XF+2*k+1, XF+2*k, XF+2*k+1, T+1)
        for k in range(8):
            a(f"v_mul_f32 {v(T+4)}, {v(XF+k)}, {v(T+2)}")
            a(f"v_fma_f32 {v(T+5)}, -{v(T+4)}, {v(T+3)}, {v(XF+k)}")
            a(f"v_fma_f32 {v(XF+k)}, {v(T+5)}, {v(T+2)}, {v(T+4)}")
        for k in range(4): self.rbf2(XF+2*k, XF+2*k+1, XF+2*k, XF+2*k+1, T+1)
    def tag(self, regs, vT, dst=None):
        for i, r in enumerate(regs):
            d = r if dst is None else dst[i]
            self.a(f"v_bfi_b32 {v(d)}, {s(S_TM)}, {v(vT)}, {v(r)}")
    def joint(self, t, quad=False):
        perms = ["quad_perm:[1,0,3,2]", "quad_perm:[2,3,0,1]"] + ([] if quad else ["row_half_mirror"])
        if quad or self.tagbits < 10:
            for p in perms: self.a(f"v_or_b32_dpp {v(t)}, {v(t)}, {v(t)} {p} row_mask:0xf bank_mask:0xf")
    def poll(self, loads, vT, t, acc=None, between=None, quad=False):
        a = self.a; L = self.lab("poll"); Lo = self.lab("pollx")
        if between:
            Lc = self.lab("pollc")
            for ld in loads: a(ld[0])
            between()
            a(f"s_mov_b32 {s(S_CNT)}, {SPIN}")
            a(f"s_branch {Lc}")
        else: a(f"s_mov_b32 {s(S_CNT)}, {SPIN}")
        a(f"{L}:")
        for ld in loads: a(ld[0])
        if between: a(f"{Lc}:")
        first = True
        for j, (_, r0, n) in enumerate(loads):
            a(f"s_waitcnt vmcnt({len(loads)-1-j})")
            for w in range(r0, r0+n):
                if first: a(f"v_xor_b32 {v(t)}, {v(w)}, {v(vT)}"); first = False
                else: a(f"v_bitop3_b32 {v(t)}, {v(w)}, {v(vT)}, {v(t)} bitop3:0xbe")
            if j == len(loads) - 1:
                self.joint(t, quad)
                a(f"v_and_b32 {v(t)}, {s(S_TM)}, {v(t)}")
                a(f"v_cmp_ne_u32 vcc, 0, {v(t)}")
            if acc is not None and j >= 1:
                p = loads[0][1] if j == 1 else acc
                a(f"v_pk_add_f32 {v(acc,2)}, {v(p,2)}, {v(r0,2)}"); a(f"v_pk_add_f32 {v(acc+2,2)}, {v(p+2,2)}, {v(r0+2,2)}")
        a(f"s_sub_u32 {s(S_CNT)}, {s(S_CNT)}, 1")
        a(f"s_cbranch_scc1 {Lo}")
        a("s_mov_b64 exec, vcc")
        if acc is not None and self.hsleep:
            a(f"s_cbranch_execz {Lo}"); a(f"s_sleep {self.hsleep}"); a(f"s_branch {L}")
        else: a(f"s_cbranch_execnz {L}")
        a(f"{Lo}:")
        a("s_mov_b64 exec, -1")
    def poll2(self, X, Y, vT, t, acc, between=None):
        a = self.a; L = self.lab("pp"); Lo = self.lab("ppx")
        n = len(X)
        def check(loads, out=2):
            first = True
            for j, (_, r0, nr) in enumerate(loads):
                a(f"s_waitcnt vmcnt({out*n-1-j})")
                for w in range(r0, r0+nr):
                    if first: a(f"v_xor_b32 {v(t)}, {v(w)}, {v(vT)}"); first = False
                    else: a(f"v_bitop3_b32 {v(t)}, {v(w)}, {v(vT)}, {v(t)} bitop3:0xbe")
                if j >= 1:
                    p = loads[0][1] if j == 1 else acc
                    a(f"v_pk_add_f32 {v(acc,2)}, {v(p,2)}, {v(r0,2)}"); a(f"v_pk_add_f32 {v(acc+2,2)}, {v(p+2,2)}, {v(r0+2,2)}")
                if j == n - 1:
                    self.joint(t)
                    a(f"v_and_b32 {v(t)}, {s(S_TM)}, {v(t)}")
                    a(f"v_cmp_ne_u32 vcc, 0, {v(t)}")
            a("s_mov_b64 exec, vcc")
        for ld in X: a(ld[0])
        if between:
            between()
            check(X, 1)
            a(f"s_cbranch_execz {Lo}")
            for ld in X: a(ld[0])
        a(f"s_mov_b32 {s(S_CNT)}, {SPIN}")
        a(f"{L}:")
        for ld in Y: a(ld[0])
        check(X)
        a(f"s_cbranch_execz {Lo}")
        for ld in X: a(ld[0])
        check(Y)
        a(f"s_sub_u32 {s(S_CNT)}, {s(S_CNT)}, 1")
        a(f"s_cbranch_scc1 {Lo}")
        a(f"s_cbranch_execnz {L}")
        a(f"{Lo}:")
        a("s_mov_b64 exec, -1")
    def gather8(self, loads, vT, t, acc, vaddr, soff, lg, between=None):
        a = self.a; L = self.lab("lp"); Lo = self.lab("lpx")
        P, R, J, B, A = t+1, t+2, t+3, t+4, t+5
        for ld in loads: a(ld[0])
        if between: between()
        first = True
        for j, (_, r0, n) in enumerate(loads):
            a(f"s_waitcnt vmcnt({len(loads)-1-j})")
            for w in range(r0, r0+n):
                if first: a(f"v_xor_b32 {v(t)}, {v(w)}, {v(vT)}"); first = False
                else: a(f"v_bitop3_b32 {v(t)}, {v(w)}, {v(vT)}, {v(t)} bitop3:0xbe")
            if j == len(loads) - 1:
                a(f"v_and_b32 {v(t)}, {s(S_TM)}, {v(t)}")
                a(f"v_cmp_ne_u32 vcc, 0, {v(t)}")
            if j >= 1:
                p = loads[0][1] if j == 1 else acc
                a(f"v_pk_add_f32 {v(acc,2)}, {v(p,2)}, {v(r0,2)}"); a(f"v_pk_add_f32 {v(acc+2,2)}, {v(p+2,2)}, {v(r0+2,2)}")
        a(f"s_cbranch_vccz {Lo}")
        for r in range(acc, acc+4): a(f"v_mov_b32 {v(r)}, 0")
        a(f"v_mov_b32 {v(P)}, 0")
        def check(q):
            a(f"v_xor_b32 {v(t)}, {v(q)}, {v(vT)}")
            for w in range(q+1, q+4): a(f"v_bitop3_b32 {v(t)}, {v(w)}, {v(vT)}, {v(t)} bitop3:0xbe")
            a(f"v_and_b32 {v(t)}, {s(S_TM)}, {v(t)}")
            a(f"v_cmp_eq_u32 vcc, 0, {v(t)}")
        for j, (_, r0, n) in enumerate(loads):
            check(r0)
            a("s_mov_b64 exec, vcc")
            a(f"v_pk_add_f32 {v(acc,2)}, {v(acc,2)}, {v(r0,2)}"); a(f"v_pk_add_f32 {v(acc+2,2)}, {v(acc+2,2)}, {v(r0+2,2)}")
            a("s_not_b64 exec, vcc")
            a(f"v_or_b32 {v(P)}, {1 << j}, {v(P)}")
            a("s_mov_b64 exec, -1")
        Q = loads[0][1]
        a(f"v_mov_b32 {v(R)}, {v(P)}")
        a(f"v_cmp_ne_u32 vcc, 0, {v(P)}")
        a(f"s_mov_b32 {s(S_CNT)}, {SPIN*4}")
        a("s_mov_b64 exec, vcc")
        a(f"{L}:")
        a(f"v_ffbl_b32 {v(J)}, {v(R)}")
        a(f"v_lshl_add_u32 {v(A)}, {v(J)}, {lg}, {v(vaddr)}")
        a(f"buffer_load_dwordx4 {v(Q,4)}, {v(A)}, {s(R0,4)}, {s(soff)} offen sc1")
        a(f"v_lshlrev_b32 {v(B)}, {v(J)}, 1")
        a(f"v_xor_b32 {v(R)}, {v(R)}, {v(B)}")
        a(f"s_sub_u32 {s(S_CNT)}, {s(S_CNT)}, 1")
        a(f"s_cbranch_scc1 {Lo}")
        a("s_waitcnt vmcnt(0)")
        check(Q)
        a(f"s_and_saveexec_b64 {s(S_T2,2)}, vcc")
        a(f"v_xor_b32 {v(P)}, {v(P)}, {v(B)}")
        a(f"v_pk_add_f32 {v(acc,2)}, {v(acc,2)}, {v(Q,2)}"); a(f"v_pk_add_f32 {v(acc+2,2)}, {v(acc+2,2)}, {v(Q+2,2)}")
        a(f"s_mov_b64 exec, {s(S_T2,2)}")
        a(f"v_cmp_eq_u32 {s(S_T2,2)}, 0, {v(R)}")
        a(f"v_cmp_ne_u32 vcc, 0, {v(P)}")
        a(f"v_cndmask_b32 {v(R)}, {v(R)}, {v(P)}, {s(S_T2,2)}")
        a("s_mov_b64 exec, vcc")
        a(f"s_cbranch_execnz {L}")
        a(f"{Lo}:")
        a("s_mov_b64 exec, -1")
    def lds_wait(self, off, val, vz, t, extra=(), sleep=1):
        a = self.a; L = self.lab("lw"); Lo = self.lab("lwx")
        a(f"s_mov_b32 {s(S_CNT)}, {SPIN*16}")
        a(f"{L}:")
        a(f"ds_read_b32 {v(t)}, {v(vz)} offset:{off}")
        for e in extra: a(e)
        a("s_waitcnt lgkmcnt(0)")
        a(f"v_readfirstlane_b32 {s(S_T3)}, {v(t)}")
        a(f"s_cmp_ge_u32 {s(S_T3)}, {val}")
        a(f"s_cbranch_scc1 {Lo}")
        a(f"s_sub_u32 {s(S_CNT)}, {s(S_CNT)}, 1")
        a(f"s_cbranch_scc1 {Lo}")
        if sleep: a(f"s_sleep {sleep}")
        a(f"s_branch {L}")
        a(f"{Lo}:")
    def pub(self, text, sfast):
        a = self.a
        La, Lb = self.lab("pl"), self.lab("pj")
        a(f"s_cmp_eq_u32 {s(sfast)}, 2"); a(f"s_cbranch_scc1 {La}")
        a(text + " sc1"); a(f"s_branch {Lb}")
        a(f"{La}:"); a(text); a(f"{Lb}:")
    def trig(self, what, vz, t):
        if what == "q": self.lds_wait(L_QFLAG, 1, vz, t)
        elif what == "ml": self.lds_wait(L_MLCNT, 8, vz, t)
        elif isinstance(what, int) and what > 0: self.lds_wait(L_PROG, what, vz, t)
    def streamer(self):
        a = self.a
        VK, VV, VZ, VT, VT2 = 1, 2, 3, 4, 5
        Q, S, DT, KB = 8, 12, 20, 36
        slot = lambda i: KB + 4*i
        ACC, AO, B = slot(16), slot(18), slot(23)
        SB = S_T0
        a(f"s_lshl_b32 {s(SB)}, {s(S_H)}, 23"); a(f"s_lshl_b32 {s(S_T1)}, {s(S_S)}, 18"); a(f"s_or_b32 {s(SB)}, {s(SB)}, {s(S_T1)}")
        a(f"s_lshl_b32 {s(S_T1)}, {s(S_WAVE)}, {self.il}"); a(f"s_or_b32 {s(SB)}, {s(SB)}, {s(S_T1)}")
        if self.rot == 1: a(f"s_lshl_b32 {s(S_M+9)}, {s(S_S)}, 15")
        if self.rot == 2: a(f"s_add_u32 {s(S_M+9)}, {s(S_S)}, {s(S_H)}"); a(f"s_lshl_b32 {s(S_M+9)}, {s(S_M+9)}, 15")
        a(f"v_lshlrev_b32 {v(VV)}, 4, v0")
        a(f"v_and_b32 {v(VT)}, 0xc0, {v(VV)}"); a(f"v_lshlrev_b32 {v(VT)}, 2, {v(VT)}")
        a(f"v_lshrrev_b32 {v(VK)}, 4, v0"); a(f"v_lshlrev_b32 {v(VK)}, 6, {v(VK)}")
        a(f"v_and_b32 {v(VT2)}, 48, {v(VV)}")
        a(f"v_or3_b32 {v(VK)}, {v(VK)}, {v(VT)}, {v(VT2)}")
        a(f"v_mov_b32 {v(VZ)}, 0")
        a("s_waitcnt lgkmcnt(0)")
        self.srd(R0, P_K, 0x4000000); self.srd(R1, P_V, 0x4000000)
        def off(i):
            if self.il == 12: return (i >> 2) * 32768, (i & 3) * 1024
            return i * 8192, 0
        last_so = [None]
        VWA, VWD = 6, 7
        SA, SW0, SW1, SSTR = S_M+5, S_M+6, S_M+7, S_M+4
        def regs(it):
            k, i = it
            return {'K': slot(i), 'V': slot(i % 16), 'A': slot(28 + i), 'W': (DT + 4*i if self.wpos > 40 else slot(28 + i))}[k]
        def setup_a():
            a(f"s_lshr_b32 {s(S_M)}, {s(S_WAVE)}, 1")
            self.s1_geom(True)
            a(f"s_and_b32 {s(S_T3)}, {s(S_WAVE)}, 1"); a(f"s_lshl_b32 {s(S_T3)}, {s(S_T3)}, 2"); a(f"s_add_u32 {s(S_T3)}, {s(S_T3)}, {s(S_M+3)}")
            a(f"s_mul_i32 {s(S_T3)}, {s(S_T3)}, {s(SSTR)}"); a(f"s_lshl_b32 {s(SA)}, {s(S_T2)}, 7"); a(f"s_add_u32 {s(SA)}, {s(SA)}, {s(S_T3)}")
            a(f"v_and_b32 {v(VT)}, 56, v0"); a(f"v_mul_u32_u24 {v(VT)}, {s(SSTR)}, {v(VT)}")
            a(f"v_and_b32 {v(VT2)}, 0x70, {v(VV)}"); a(f"v_add_u32 {v(VWA)}, {v(VT)}, {v(VT2)}")
        def setup_w():
            a(f"s_and_b32 {s(S_T2)}, {s(S_S)}, 3"); a(f"s_lshl_b32 {s(S_T2)}, {s(S_T2)}, 1"); a(f"s_lshr_b32 {s(S_T3)}, {s(S_WAVE)}, 2")
            a(f"s_add_u32 {s(S_T2)}, {s(S_T2)}, {s(S_T3)}"); a(f"s_lshl_b32 {s(S_T2)}, {s(S_T2)}, 7")
            a(f"s_lshl_b32 {s(SW0)}, {s(S_H)}, 19"); a(f"s_lshr_b32 {s(S_T3)}, {s(S_S)}, 2"); a(f"s_lshl_b32 {s(S_T3)}, {s(S_T3)}, 10")
            a(f"s_add_u32 {s(SW0)}, {s(SW0)}, {s(S_T3)}"); a(f"s_add_u32 {s(SW0)}, {s(SW0)}, {s(S_T2)}")
            self.fblock(SW1, S_T3)
            a(f"s_lshl_b32 {s(SW1)}, {s(SW1)}, 15"); a(f"s_add_u32 {s(SW1)}, {s(SW1)}, {s(S_T2)}")
            a(f"s_and_b32 {s(S_T2)}, {s(S_WAVE)}, 3")
            a(f"s_lshl_b32 {s(S_T3)}, {s(S_T2)}, 16"); a(f"s_add_u32 {s(SW0)}, {s(SW0)}, {s(S_T3)}")
            a(f"s_lshl_b32 {s(S_T3)}, {s(S_T2)}, 13"); a(f"s_add_u32 {s(SW1)}, {s(SW1)}, {s(S_T3)}")
            self.srd(R2, P_WO, 0x400000); self.srd(R3, P_WD, 0x1c0000)
            a(f"v_lshrrev_b32 {v(VT)}, 3, v0"); a(f"v_and_b32 {v(VT2)}, 0x70, {v(VV)}")
            a(f"v_lshl_add_u32 {v(VWD)}, {v(VT)}, 10, {v(VT2)}"); a(f"v_lshl_add_u32 {v(VWA)}, {v(VT)}, 13, {v(VT2)}")
        def load(it):
            k, i = it
            r = v(regs(it), 4)
            if k in 'KV':
                so, imm = off(i)
                if so != last_so[0]:
                    if self.rot:
                        a(f"s_add_u32 {s(S_T1)}, {s(S_M+9)}, {so}"); a(f"s_and_b32 {s(S_T1)}, {s(S_T1)}, 0x38000"); a(f"s_or_b32 {s(S_T1)}, {s(S_T1)}, {s(SB)}")
                    else: a(f"s_add_u32 {s(S_T1)}, {s(SB)}, {so}")
                    last_so[0] = so
                a(f"buffer_load_dwordx4 {r}, {v(VV if k == 'V' else VK)}, {s(R1 if k == 'V' else R0,4)}, {s(S_T1)} offen offset:{imm} {self.kvpol}")
            elif k == 'A':
                if i == 0: setup_a()
                a(f"buffer_load_dwordx4 {r}, {v(VWA)}, {s(R2,4)}, {s(SA)} offen {self.wpol}")
                if i < 3: a(f"s_add_u32 {s(SA)}, {s(SA)}, {s(SSTR)}")
            else:
                if i < 2: a(f"buffer_load_dwordx4 {r}, {v(VWA)}, {s(R2,4)}, {s(SW0)} offen {self.wpol}")
                else: a(f"buffer_load_dwordx4 {r}, {v(VWD)}, {s(R3,4)}, {s(SW1)} offen {self.wpol}")
                if i == 0: a(f"s_add_u32 {s(SW0)}, {s(SW0)}, 0x40000")
        def count(off_):
            a(f"v_mov_b32 {v(VT2)}, 1"); a("s_mov_b64 exec, 1"); a(f"ds_add_u32 {v(VZ)}, {v(VT2)} offset:{off_}"); a("s_mov_b64 exec, -1")
        def put_a():
            a(f"s_lshl_b32 {s(S_T2)}, {s(S_WAVE)}, 12"); a(f"v_add_u32 {v(VT)}, {s(S_T2)}, {v(VV)}")
            for i in range(4): a(f"ds_write_b128 {v(VT)}, {v(regs(('A', i)),4)} offset:{L_A + 1024*i}")
            count(L_ACNT)
            if not self.wdma: setup_w()
        def put_w():
            a(f"s_lshr_b32 {s(S_T2)}, {s(S_WAVE)}, 2"); a(f"s_mul_i32 {s(S_T2)}, {s(S_T2)}, 12288")
            a(f"s_and_b32 {s(S_T3)}, {s(S_WAVE)}, 3"); a(f"s_lshl_b32 {s(S_T3)}, {s(S_T3)}, 10"); a(f"s_add_u32 {s(S_T2)}, {s(S_T2)}, {s(S_T3)}")
            a(f"v_add_u32 {v(VT)}, {s(S_T2)}, {v(VV)}")
            for i in range(3): a(f"ds_write_b128 {v(VT)}, {v(regs(('W', i)),4)} offset:{L_W + 4096*i}")
            count(L_WCNT)
        def qk(j):
            for m in range(4):
                a(f"v_mfma_f32_16x16x32_bf16 {v(DT+4*m,4)}, {v(slot(4*j+m),4)}, {v(Q,4)}, 0")
            if self.qk2:
                if j == 0:
                    for m in range(1, 4):
                        a(f"s_mov_b32 {s(P_X+2*m)}, {(15 << 4*m) * 0x10001:#x}"); a(f"s_mov_b32 {s(P_X+2*m+1)}, {(15 << 4*m) * 0x10001:#x}")
                for k in range(1, 4):
                    for m in range(4):
                        b = (m + k) & 3
                        a(f"v_add_f32_dpp {v(DT+5*m)}, {v(DT+4*m+b)}, {v(DT+5*m)} row_ror:{(4*(m-b)) & 15} row_mask:0xf bank_mask:0xf")
                for m in range(1, 4):
                    a(f"v_cndmask_b32 {v(S+j)}, {v(DT if m == 1 else S+j)}, {v(DT+5*m)}, {s(P_X+2*m,2)}")
                return
            for k in range(1, 4):
                for m in range(4):
                    b = (m + k) & 3
                    other = DT+4*m+m if k == 1 else S+j
                    a(f"v_add_f32_dpp {v(S+j)}, {v(DT+4*m+b)}, {v(other)} row_ror:{(4*(m-b)) & 15} row_mask:0xf bank_mask:{1<<m:#x}")
        M, Lr = DT, DT+1
        def sm_scale(k):
            if k == 0: a(f"s_mov_b32 {s(S_M+8)}, {SCALE:#x}")
            x, y = S+2*k, S+2*k+1
            self.rbf2(x, y, x, y, VT)
            a(f"v_mul_f32 {v(x)}, {s(S_M+8)}, {v(x)}"); a(f"v_mul_f32 {v(y)}, {s(S_M+8)}, {v(y)}")
            self.rbf2(x, y, x, y, VT)
        def sm_max():
            a(f"v_max3_f32 {v(M)}, {v(S)}, {v(S+1)}, {v(S+2)}"); a(f"v_max3_f32 {v(M)}, {v(M)}, {v(S+3)}, {v(S+4)}")
            a(f"v_max3_f32 {v(M)}, {v(M)}, {v(S+5)}, {v(S+6)}"); a(f"v_max_f32 {v(M)}, {v(M)}, {v(S+7)}")
            self.ror("v_max_f32", [M], (4, 8)); self.rows_all("v_max_f32", M, VT)
        def sm_exp():
            a(f"s_mov_b32 {s(S_T2)}, {LOG2E:#x}")
            for k in range(8): a(f"v_sub_f32 {v(S+k)}, {v(S+k)}, {v(M)}")
            for k in range(8): a(f"v_mul_f32 {v(S+k)}, {s(S_T2)}, {v(S+k)}")
            for k in range(8): a(f"v_exp_f32 {v(S+k)}, {v(S+k)}")
        def sm_sum():
            a(f"v_add_f32 {v(Lr)}, {v(S)}, {v(S+1)}")
            for k in range(2, 8): a(f"v_add_f32 {v(Lr)}, {v(Lr)}, {v(S+k)}")
            self.ror("v_add_f32", [Lr], (4, 8)); self.rows_all("v_add_f32", Lr, VT)
            a(f"s_lshl_b32 {s(S_T2)}, {s(S_WAVE)}, 5")
            a(f"v_lshl_add_u32 {v(VT)}, v0, 2, {s(S_T2)}"); a(f"v_mov_b32 {v(VT2)}, 1")
            a("s_mov_b64 exec, 15")
            a(f"ds_write2_b32 {v(VT)}, {v(M)}, {v(Lr)} offset0:{L_ML//4} offset1:{L_ML//4+4}")
            a("s_mov_b64 exec, 1")
            a(f"ds_add_u32 {v(VZ)}, {v(VT2)} offset:{L_MLCNT}")
            a("s_mov_b64 exec, -1")
        def zero_acc():
            a(f"s_mul_i32 {s(S_T2)}, {s(S_WAVE)}, {OSTR}")
            a(f"v_and_b32 {v(VT)}, 15, v0"); a(f"v_mul_u32_u24 {v(VT)}, 144, {v(VT)}"); a(f"v_and_b32 {v(VWD)}, 48, v0")
            a(f"v_add3_u32 {v(VWD)}, {v(VWD)}, {v(VT)}, {s(S_T2)}")
            for r in range(ACC, ACC+8): a(f"v_mov_b32 {v(r)}, 0")
            for r in range(AO, AO+16): a(f"v_mov_b32 {v(r)}, 0")
            if self.plo:
                for r in range(DT, DT+16): a(f"v_mov_b32 {v(r)}, 0")
        AL = DT
        def build_lo(j):
            a(f"v_cvt_pk_bf16_f32 {v(VT)}, {v(S+2*j)}, {v(S+2*j+1)}")
            self.unpack(Q, Q+1, VT)
            a(f"v_sub_f32 {v(Q)}, {v(S+2*j)}, {v(Q)}"); a(f"v_sub_f32 {v(Q+1)}, {v(S+2*j+1)}, {v(Q+1)}")
            a(f"v_cvt_pk_bf16_f32 {v(VT)}, {v(Q)}, {v(Q+1)}")
            for m in range(4):
                for e in range(4):
                    n = (4*(e-m)) & 15
                    ctl = f"row_ror:{n}" if n else "quad_perm:[0,1,2,3]"
                    a(f"v_mov_b32_dpp {v(AL+4*e+m)}, {v(VT)} {ctl} row_mask:0xf bank_mask:{1<<e:#x}")
        def build_a(j):
            a(f"v_cvt_pk_bf16_f32 {v(VT)}, {v(S+2*j)}, {v(S+2*j+1)}")
            for m in range(4):
                for e in range(4):
                    n = (4*(e-m)) & 15
                    ctl = f"row_ror:{n}" if n else "quad_perm:[0,1,2,3]"
                    a(f"v_mov_b32_dpp {v(AO+4*e+m)}, {v(VT)} {ctl} row_mask:0xf bank_mask:{1<<e:#x}")
        def perm1(j, m, e):
            lo, hi = slot((8*j+m) % 16), slot((8*j+4+m) % 16)
            a(f"v_perm_b32 {v(B+4*e+m)}, {v(hi+(e>>1))}, {v(lo+(e>>1))}, {s(S_HIS if e & 1 else S_LO)}")
        def mfma_pv(e, j):
            acc = ACC + 4*(e >> 2)
            a(f"v_mfma_f32_16x16x32_bf16 {v(acc,4)}, {v(AO+4*(e&3),4)}, {v(B+4*e,4)}, {v(acc,4)}")
            if j < self.plo: a(f"v_mfma_f32_16x16x32_bf16 {v(acc,4)}, {v(AL+4*(e&3),4)}, {v(B+4*e,4)}, {v(acc,4)}")
        def pv_last(j):
            order = [0, 4, 1, 5, 2, 6, 3, 7]
            for k in range(3): perm1(j, 3, order[k])
            for k in range(8):
                mfma_pv(order[k], j)
                if k + 3 < 8: perm1(j, 3, order[k+3])
        def qwait():
            a(f"v_and_b32 {v(VT2)}, 3, v0"); a(f"v_lshlrev_b32 {v(VT2)}, 8, {v(VT2)}")
            a(f"v_and_b32 {v(VT)}, 0xc0, {v(VV)}"); a(f"v_lshrrev_b32 {v(VT)}, 2, {v(VT)}")
            a(f"v_and_b32 {v(DT)}, 0x300, {v(VV)}"); a(f"v_lshrrev_b32 {v(DT)}, 2, {v(DT)}")
            a(f"v_or3_b32 {v(VT2)}, {v(VT2)}, {v(VT)}, {v(DT)}")
            self.stamp(2)
            if not self.cut: self.lds_wait(L_QFLAG, 1, VZ, VT, [f"ds_read_b128 {v(Q,4)}, {v(VT2)} offset:{L_Q}"])
            self.stamp(3)
        kv = [('K', i) for i in range(32)] + [('V', i) for i in range(32)]
        seq = kv[:self.apos] + [('A', i) for i in range(4)] + kv[self.apos:self.wpos] + [('W', i) for i in range(0 if self.wdma else 3)] + kv[self.wpos:]
        if self.agap:
            seq = [x for x in seq if x[0] != 'A']
            for i in range(4): seq.insert(self.apos + i*(self.agap + 1), ('A', i))
        pos = {it: n for n, it in enumerate(seq)}
        N = len(seq)
        def owrite():
            self.stamp(7)
            pv_last(3)
            a(f"ds_write_b128 {v(VWD)}, {v(ACC,4)} offset:{L_O}")
            a(f"ds_write_b128 {v(VWD)}, {v(ACC+4,4)} offset:{L_O+64}")
            a("s_waitcnt lgkmcnt(0)")
            a("s_barrier")
        p0 = pos[('K', self.n0)]
        tasks = [(p0, -1, [], qwait)]
        for j in range(8):
            tasks.append((p0 + j, pos[('K', 4*j+3)], [('K', 4*j+m) for m in range(4)], lambda j=j: qk(j)))
            if j & 1: tasks.append((0, -1, [], lambda j=j: sm_scale(j >> 1)))
        for f in (sm_max, sm_exp, sm_sum, zero_acc): tasks.append(('next', -1, [], f))
        for j in range(4):
            tasks.append(('next', -1, [], lambda j=j: build_a(j)))
            if j < self.plo: tasks.append(('next', -1, [], lambda j=j: build_lo(j)))
            for m in range(3): tasks.append(('next', pos[('V', 8*j+4+m)], [('V', 8*j+m), ('V', 8*j+4+m)], lambda j=j, m=m: [perm1(j, m, e) for e in range(8)]))
            tasks.append(('next', pos[('V', 8*j+7)], [('V', 8*j+3), ('V', 8*j+7)], (lambda j=j: pv_last(j)) if j < 3 else owrite))
        side = [(0, pos[('A', 3)], [('A', i) for i in range(4)], put_a)]
        if not self.wdma: side.append((0, pos[('W', 2)], [('W', i) for i in range(3)], put_w))
        trigs = {pos[kv[t]]: t for t in (self.nq, self.nm, self.g_trig) if isinstance(t, int) and t > 0}
        def Dn(n):
            if self.ramp and n < len(self.ramp): return self.ramp[n]
            return self.D2 if (self.D2 and n >= self.nD2) else self.D
        nbar = (self.ramp[0] if self.ramp else self.D) - 1
        busy = {}; landed = -1
        def run(n):
            for q in (side, tasks):
                did = False
                while q and q[0][1] <= landed:
                    e = q[0][0]
                    if e == 'next':
                        if did and n < 99 and self.smooth: break
                    elif e > n: break
                    t = q.pop(0); t[3](); did = True
                    for x in t[2]: busy.pop(regs(x))
        NM = N - 3 if self.wlate else N
        SK, SJ, VB, V1 = S_M+10, S_M+11, 164, 167
        if self.ctl:
            a(f"s_mov_b32 {s(SK)}, {self.ctl.get('init', 0)}"); a(f"s_mov_b32 {s(SJ)}, 0"); a(f"v_mov_b32 {v(V1)}, 1")
        for n in range(NM):
            if self.ctl and self.ctl['from'] <= n < self.ctl['to']:
                Lb = self.lab("win"); D = Dn(n)
                two = self.ctl.get('g2')
                top = D + (2 if two else 1)
                if n - top > landed: a(f"s_waitcnt vmcnt({top-1})"); landed = n - top
                if n & 1:
                    a("s_waitcnt lgkmcnt(0)"); a(f"v_readfirstlane_b32 {s(SK)}, {v(VB)}"); a(f"v_readfirstlane_b32 {s(SJ)}, {v(VB+1)}")
                a(f"s_cmp_gt_u32 {s(SK)}, {n}"); a(f"s_cbranch_scc1 {Lb}")
                a(f"s_waitcnt vmcnt({top-2})")
                if two:
                    a(f"s_cmp_gt_u32 {s(SJ)}, {n}"); a(f"s_cbranch_scc1 {Lb}")
                    a(f"s_waitcnt vmcnt({top-3})")
                elif self.ctl['tcap']:
                    a(f"s_cmp_le_u32 {s(SJ)}, {n}"); a(f"s_cbranch_scc1 {Lb}")
                    a(f"s_waitcnt vmcnt({D-2})")
                a(f"{Lb}:")
            elif n - Dn(n) > landed:
                a(f"s_waitcnt vmcnt({Dn(n)-1})"); landed = n - Dn(n)
            assert regs(seq[n]) not in busy, (n, seq[n])
            busy[regs(seq[n])] = n
            load(seq[n])
            if self.trace and seq[n] in kv:
                m = kv.index(seq[n])
                if m: a("s_waitcnt lgkmcnt(0)"); a(f"v_writelane_b32 v166, s100, {m-1}")
                a("s_memrealtime s[100:101]")
            if n == nbar:
                a(f"s_mov_b32 {s(S_HI)}, 0xffff0000"); a(f"s_mov_b32 {s(S_LO)}, 0x05040100"); a(f"s_mov_b32 {s(S_HIS)}, 0x07060302")
                a("s_barrier")
            if self.ctl and nbar <= n < self.ctl['to']:
                a("s_mov_b64 exec, 1"); a(f"ds_add_u32 {v(VZ)}, {v(V1)} offset:{L_CNT}"); a("s_mov_b64 exec, -1")
                if not n & 1: a(f"ds_read_b64 {v(VB,2)}, {v(VZ)} offset:{L_BOOST}")
            if n in trigs:
                a(f"v_mov_b32 {v(VT)}, {trigs[n]}"); a("s_mov_b64 exec, 1"); a(f"ds_max_u32 {v(VZ)}, {v(VT)} offset:{L_PROG}"); a("s_mov_b64 exec, -1")
            if self.wdma and seq[n] == kv[min(63, self.wpos - 1)]: count(L_WCNT)
            if n == nbar + 1: self.stamp(1)
            if landed == pos[('K', 31)]: self.stamp(4)
            run(n)
        issued = NM
        while landed < N - 1:
            landed += 1
            now = issued < N and landed == NM - self.wlate
            if not now and not any(q and q[0][1] <= landed for q in (side, tasks)): continue
            a(f"s_waitcnt vmcnt({issued - 1 - landed})")
            if now:
                for n in range(NM, N):
                    busy[regs(seq[n])] = n; load(seq[n])
                issued = N
            run(99)
        assert not tasks and not side
        self.stamp(8)
        if self.trace:
            a(f"s_mul_i32 {s(S_T0)}, {s(S_WG)}, 8"); a(f"s_add_u32 {s(S_T0)}, {s(S_T0)}, {s(S_WAVE)}")
            a(f"s_lshl_b32 {s(S_T0)}, {s(S_T0)}, 8"); a(f"s_add_u32 {s(S_T0)}, {s(S_T0)}, {STAMP + (1<<20):#x}")
            a(f"v_lshl_add_u32 {v(VT)}, v0, 2, {s(S_T0)}")
            a(f"global_store_dword {v(VT)}, v166, {s(P_WS,2)}")
        self.finish(VT)

    def prefetch(self, VA, R):
        a = self.a
        Lp = self.lab("nopf")
        a(f"s_cmp_ge_u32 {s(S_S)}, {self.pf}"); a(f"s_cbranch_scc1 {Lp}")
        a(f"s_getpc_b64 {s(R4,2)}")
        a(f"Lpc:")
        a(f"s_sub_u32 {s(R4)}, {s(R4)}, Lpc-{KN}"); a(f"s_subb_u32 {s(R4+1)}, {s(R4+1)}, 0")
        a(f"s_mov_b32 {s(R4+2)}, Lcode_end-{KN}"); a(f"s_mov_b32 {s(R4+3)}, 0x20000")
        a(f"s_and_b32 {s(S_T0)}, {s(S_WAVE)}, 3"); a(f"s_lshl_b32 {s(S_T0)}, {s(S_T0)}, 10")
        for k in range(5):
            a(f"buffer_load_dwordx4 {v(R+4*k,4)}, {v(VA)}, {s(R4,4)}, {s(S_T0)} offen")
            if k < 4: a(f"s_add_u32 {s(S_T0)}, {s(S_T0)}, 4096")
        a(f"{Lp}:")

    def s1_geom(self, loader):
        a = self.a
        SZ, SCB, SRB, SROW, SSTR = S_M, S_M+1, S_M+2, S_M+3, S_M+4
        Lf, Lj = self.lab("s1ffn"), self.lab("s1join")
        a(f"s_cmp_ge_u32 {s(S_S)}, 16"); a(f"s_cbranch_scc1 {Lf}")
        a(f"s_and_b32 {s(SCB)}, {s(S_S)}, 7"); a(f"s_lshr_b32 {s(SRB)}, {s(S_S)}, 3")
        a(f"s_lshl_b32 {s(SROW)}, {s(SRB)}, 2"); a(f"s_add_u32 {s(SROW)}, {s(SROW)}, {s(SZ)}"); a(f"s_lshl_b32 {s(SROW)}, {s(SROW)}, 6")
        if loader:
            a(f"s_mov_b32 {s(SSTR)}, 8192")
            a(f"s_lshl_b32 {s(S_T2)}, {s(S_H)}, 3"); a(f"s_add_u32 {s(S_T2)}, {s(S_T2)}, {s(SCB)}")
            self.srd(R2, P_WQ, 0x400000)
        a(f"s_branch {Lj}")
        a(f"{Lf}:")
        if self.hello in (1, 3, 5): a(f"s_sub_u32 {s(S_T2)}, {s(S_S)}, 16"); a(f"s_lshl_b32 {s(S_T3)}, {s(S_H)}, 4"); a(f"s_add_u32 {s(S_T2)}, {s(S_T2)}, {s(S_T3)}")
        else: a(f"s_sub_u32 {s(S_T2)}, {s(S_S)}, 16"); a(f"s_lshl_b32 {s(S_T2)}, {s(S_T2)}, 3"); a(f"s_add_u32 {s(S_T2)}, {s(S_T2)}, {s(S_H)}")
        a(f"s_lshr_b32 {s(SCB)}, {s(S_T2)}, 2"); a(f"s_and_b32 {s(SRB)}, {s(S_T2)}, 3")
        a(f"s_and_b32 {s(S_T3)}, {s(SZ)}, 1")
        a(f"s_lshl_b32 {s(SROW)}, {s(SRB)}, 1"); a(f"s_add_u32 {s(SROW)}, {s(SROW)}, {s(S_T3)}"); a(f"s_lshl_b32 {s(SROW)}, {s(SROW)}, 6")
        if loader:
            a(f"s_mov_b32 {s(SSTR)}, 3584")
            a(f"s_mov_b32 {s(S_T2)}, {s(SCB)}")
            a(f"s_cmp_ge_u32 {s(SZ)}, 2")
            a(f"s_cselect_b32 {s(R2)}, {s(P_WU)}, {s(P_WG)}"); a(f"s_cselect_b32 {s(R2+1)}, {s(P_WU+1)}, {s(P_WG+1)}")
            a(f"s_cmp_lt_u32 {s(SCB)}, 28")
            a(f"s_cselect_b32 {s(R2+2)}, 0x1c0000, 0"); a(f"s_mov_b32 {s(R2+3)}, 0x20000")
        a(f"{Lj}:")

    VZ, VT, VA, T = 1, 2, 3, 4
    def stage1(self):
        a = self.a
        VZ, VT, VA, T = self.VZ, self.VT, self.VA, self.T
        X, XF, XR, ACC, W = 12, 16, 24, 32, 40
        SZ, SCB, SRB, SROW, SSTR = S_M, S_M+1, S_M+2, S_M+3, S_M+4
        a(f"s_and_b32 {s(SZ)}, {s(S_WAVE)}, 3")
        a(f"v_mov_b32 {v(VZ)}, 0"); a(f"v_lshlrev_b32 {v(VA)}, 4, v0")
        if self.pf and not self.pfe: self.prefetch(VA, W+32)
        self.s1_geom(False)
        a("s_waitcnt lgkmcnt(0)")
        self.srd(R0, P_WS, WS_USED); self.srd(R1, P_X, 1024)
        a(f"buffer_load_dwordx4 {v(X,4)}, {v(VA)}, {s(R1,4)}, 0 offen")
        a(f"buffer_load_dword {v(VT)}, {v(VZ)}, {s(R0,4)}, 0 offen offset:{EPOCH}")
        Lb = self.lab("s1b")
        a(f"s_cmp_lg_u32 {s(SZ)}, 0"); a(f"s_cbranch_scc1 {Lb}")
        a(f"v_lshlrev_b32 {v(T+2)}, 2, v0")
        a("s_mov_b64 exec, 0xffff")
        a(f"ds_write_b32 {v(T+2)}, {v(VZ)}")
        a("s_mov_b64 exec, -1")
        a("s_waitcnt lgkmcnt(0)")
        a(f"{Lb}:")
        a("s_barrier")
        a("s_waitcnt vmcnt(1)")
        self.stamp(1)
        self.layernorm(X, XF, T)
        a(f"s_lshr_b32 {s(S_T0)}, {s(SROW)}, 1")
        a(f"v_lshrrev_b32 {v(T)}, 3, v0"); a(f"v_lshl_add_u32 {v(T)}, {v(T)}, 2, {s(S_T0)}")
        for j in range(8): a(f"ds_bpermute_b32 {v(XR+j)}, {v(T)}, {v(XF+j)}")
        a("s_waitcnt vmcnt(0)")
        a(f"v_add_u32 {v(VT)}, 1, {v(VT)}"); a(f"v_readfirstlane_b32 {s(S_E)}, {v(VT)}")
        a(f"v_and_b32 {v(VT)}, 0x3ff, {v(VT)}")
        if self.hello:
            Lh = self.lab("hello")
            a(f"s_cmp_lg_u32 {s(SZ)}, 0"); a(f"s_cbranch_scc1 {Lh}")
            a(f"s_getreg_b32 {s(S_M+5)}, hwreg(HW_REG_XCC_ID, 0, 4)"); a(f"s_lshl_b32 {s(S_T0)}, {s(S_E)}, 4"); a(f"s_or_b32 {s(S_M+5)}, {s(S_M+5)}, {s(S_T0)}")
            a(f"s_lshl_b32 {s(S_M+7)}, {s(S_H)}, 7"); a(f"s_add_u32 {s(S_M+7)}, {s(S_M+7)}, {XBOX:#x}")
            a(f"s_lshl_b32 {s(S_T0)}, {s(S_S)}, 2"); a(f"s_add_u32 {s(S_T0)}, {s(S_T0)}, {s(S_M+7)}")
            a(f"v_mov_b32 {v(T+2)}, {s(S_M+5)}")
            a("s_mov_b64 exec, 1")
            a(f"buffer_store_dword {v(T+2)}, {v(VZ)}, {s(R0,4)}, {s(S_T0)} offen" + ("" if self.hello >= 4 else " sc1"))
            a("s_mov_b64 exec, -1")
            a(f"{Lh}:")
        a(f"s_lshl_b32 {s(S_T0)}, {s(SZ)}, 13"); a(f"v_add_u32 {v(T)}, {s(S_T0)}, {v(VA)}")
        self.lds_wait(L_ACNT, 8, VZ, T+1)
        for j in range(8): a(f"ds_read_b128 {v(W+4*j,4)}, {v(T)} offset:{L_A+1024*j}")
        for j in range(8):
            self.lgkm(7-j)
            for k in range(4):
                self.unpack(T, T+1, W+4*j+k)
                op = "v_mul_f32" if j == 0 else "v_fmac_f32"
                a(f"{op} {v(ACC+2*k)}, {v(XR+j)}, {v(T)}"); a(f"{op} {v(ACC+2*k+1)}, {v(XR+j)}, {v(T+1)}")
        self.fold("v_permlane32_swap_b32", [(ACC+e, ACC+e+4) for e in range(4)])
        self.fold("v_permlane16_swap_b32", [(ACC+e, ACC+e+2) for e in range(2)])
        self.ror("v_add_f32", [ACC, ACC+1], (8,))
        a(f"s_lshl_b32 {s(S_T0)}, {s(SZ)}, 8")
        a(f"v_and_b32 {v(T)}, 7, v0"); a(f"v_lshl_add_u32 {v(T)}, {v(T)}, 5, {s(S_T0)}")
        a(f"v_lshrrev_b32 {v(T+1)}, 4, v0"); a(f"v_lshl_add_u32 {v(T)}, {v(T+1)}, 3, {v(T)}")
        a(f"v_mov_b32 {v(T+1)}, 1")
        a("s_mov_b32 exec_lo, 0xff00ff"); a("s_mov_b32 exec_hi, 0xff00ff")
        a(f"ds_write_b64 {v(T)}, {v(ACC,2)} offset:{L_S1}")
        a("s_mov_b64 exec, 1")
        a(f"ds_add_u32 {v(VZ)}, {v(T+1)} offset:{L_S1CNT}")
        a("s_mov_b64 exec, -1")
        self.stamp(2)

    def sw0(self):
        a = self.a
        VZ, VT, VA, T = self.VZ, self.VT, self.VA, self.T
        XF, W = 16, 40
        SZ, SCB, SRB = S_M, S_M+1, S_M+2
        def hello_check():
            a(f"v_and_b32 {v(T+4)}, 31, v0"); a(f"v_lshlrev_b32 {v(T+4)}, 2, {v(T+4)}")
            a(f"buffer_load_dword {v(T+5)}, {v(T+4)}, {s(R0,4)}, {s(S_M+7)} offen sc1")
            a("s_waitcnt vmcnt(0)")
            a(f"v_cmp_ne_u32 vcc, {s(S_M+5)}, {v(T+5)}")
            a("s_cmp_eq_u64 vcc, 0"); a(f"s_cselect_b32 {s(S_M+6)}, 2, 1")
        if self.hello:
            assert self.hello >= 4
            self.lds_wait(L_S1CNT, 4, VZ, T+1)
            hello_check()
        a(f"v_and_b32 {v(T)}, 0xf0, {v(VA)}"); a(f"v_and_b32 {v(T+2)}, 16, v0"); a(f"v_lshl_add_u32 {v(T)}, {v(T+2)}, 5, {v(T)}")
        self.lds_wait(L_S1CNT, 4, VZ, T+1, [f"ds_read_b128 {v(W,4)}, {v(T)} offset:{L_S1}", f"ds_read_b128 {v(W+4,4)}, {v(T)} offset:{L_S1+256}"])
        a(f"v_pk_add_f32 {v(W,2)}, {v(W,2)}, {v(W+4,2)}"); a(f"v_pk_add_f32 {v(W+2,2)}, {v(W+2,2)}, {v(W+6,2)}")
        Lf, Lj = self.lab("c1ffn"), self.lab("c1join")
        a(f"s_cmp_ge_u32 {s(S_S)}, 16"); a(f"s_cbranch_scc1 {Lf}")
        for r in range(4): a(f"v_mov_b32 {v(W+4+r)}, {v(W+r)}")
        self.fold("v_permlane16_swap_b32", [(W+r, W+4+r) for r in range(4)])
        a(f"v_and_b32 {v(T)}, 0xf0, {v(VA)}")
        a(f"s_lshl_b32 {s(S_T1)}, {s(S_H)}, 12"); a(f"s_lshl_b32 {s(S_T2)}, {s(SRB)}, 11"); a(f"s_add_u32 {s(S_T1)}, {s(S_T1)}, {s(S_T2)}")
        a(f"s_lshl_b32 {s(S_T2)}, {s(SCB)}, 8"); a(f"s_add_u32 {s(S_T1)}, {s(S_T1)}, {s(S_T2)}"); a(f"s_add_u32 {s(S_T1)}, {s(S_T1)}, {QBOX:#x}")
        a("s_mov_b64 exec, 0xffff")
        a(f"s_branch {Lj}")
        a(f"{Lf}:")
        a(f"v_and_b32 {v(T)}, 8, v0"); a(f"v_lshlrev_b32 {v(T)}, 7, {v(T)}")
        a(f"v_and_b32 {v(T+1)}, 0x70, {v(VA)}"); a(f"v_lshl_add_u32 {v(T+1)}, {v(T+2)}, 3, {v(T+1)}"); a(f"v_add_u32 {v(T)}, {v(T)}, {v(T+1)}")
        a(f"s_lshl_b32 {s(S_T1)}, {s(SCB)}, 11"); a(f"s_lshl_b32 {s(S_T2)}, {s(SRB)}, 8"); a(f"s_add_u32 {s(S_T1)}, {s(S_T1)}, {s(S_T2)}")
        a(f"s_add_u32 {s(S_T1)}, {s(S_T1)}, {GBOX:#x}")
        a("s_mov_b32 exec_lo, -1"); a("s_mov_b32 exec_hi, 0")
        a(f"{Lj}:")
        self.tag(range(W, W+4), VT)
        if self.hello:
            if self.hello in (2, 4): a(f"s_cmp_ge_u32 {s(S_S)}, 16"); a(f"s_cselect_b32 {s(S_M+8)}, 1, {s(S_M+6)}")
            elif self.hello == 3: a(f"s_mov_b32 {s(S_M+8)}, 1")
            else: a(f"s_mov_b32 {s(S_M+8)}, {s(S_M+6)}")
            self.pub(f"buffer_store_dwordx4 {v(W,4)}, {v(T)}, {s(R0,4)}, {s(S_T1)} offen", S_M+8)
        else: a(f"buffer_store_dwordx4 {v(W,4)}, {v(T)}, {s(R0,4)}, {s(S_T1)} offen sc1")
        a("s_mov_b64 exec, -1")
        a(f"s_lshl_b32 {s(S_T0)}, {s(S_H)}, 12"); a(f"s_add_u32 {s(S_T0)}, {s(S_T0)}, {QBOX:#x}")
        W2 = W + 8
        self.trig(self.nq, VZ, T+1)
        self.poll([(f"buffer_load_dwordx4 {v(W2+4*k,4)}, {v(VA)}, {s(R0,4)}, {s(S_T0)} offen offset:{1024*k} sc1", W2+4*k, 4) for k in range(4)], VT, T)
        for k in range(4): a(f"v_pk_add_f32 {v(W2+2*k,2)}, {v(W2+2*k,2)}, {v(W2+8+2*k,2)}")
        for k in range(4): a(f"v_cvt_pk_bf16_f32 {v(XF+k)}, {v(W2+2*k)}, {v(W2+2*k+1)}")
        a(f"v_lshlrev_b32 {v(T)}, 3, v0"); a(f"v_mov_b32 {v(T+1)}, 1")
        a(f"ds_write_b64 {v(T)}, {v(XF,2)} offset:{L_Q}"); a(f"ds_write_b64 {v(T)}, {v(XF+2,2)} offset:{L_Q+512}")
        a("s_waitcnt lgkmcnt(0)")
        a(f"ds_write_b32 {v(VZ)}, {v(T+1)} offset:{L_QFLAG}")
        self.stamp(3)
        if self.cut == 1: return self.finish(T)
        if self.hello:
            Lk = self.lab("known")
            a(f"s_cmp_eq_u32 {s(S_M+6)}, 2"); a(f"s_cbranch_scc1 {Lk}")
            hello_check()
            a(f"{Lk}:")
        MW, LW, M, L, MA, LA, MB, LB = XF, XF+1, XF+2, XF+3, W, W+1, W+2, W+3
        a(f"v_and_b32 {v(T)}, 28, v0"); a(f"v_lshlrev_b32 {v(T)}, 3, {v(T)}")
        a(f"v_and_b32 {v(T+2)}, 3, v0"); a(f"v_lshl_add_u32 {v(T)}, {v(T+2)}, 2, {v(T)}")
        self.lds_wait(L_MLCNT, 8, VZ, T+1, [f"ds_read2_b32 {v(MW,2)}, {v(T)} offset0:{L_ML//4} offset1:{L_ML//4+4}"])
        self.stamp(4)
        a(f"s_mov_b32 {s(S_T2)}, {LOG2E:#x}")
        a(f"v_mov_b32 {v(M)}, {v(MW)}")
        self.ror("v_max_f32", [M], (4, 8))
        a(f"v_mov_b32 {v(T)}, {v(M)}"); a(f"v_permlane16_swap_b32 {v(M)}, {v(T)}"); a(f"v_max_f32 {v(M)}, {v(M)}, {v(T)}")
        a(f"v_sub_f32 {v(L)}, {v(MW)}, {v(M)}"); a(f"v_mul_f32 {v(L)}, {s(S_T2)}, {v(L)}"); a(f"v_exp_f32 {v(L)}, {v(L)}")
        a(f"v_mul_f32 {v(L)}, {v(L)}, {v(LW)}")
        self.ror("v_add_f32", [L], (4, 8))
        a(f"v_mov_b32 {v(T)}, {v(L)}"); a(f"v_permlane16_swap_b32 {v(L)}, {v(T)}"); a(f"v_add_f32 {v(L)}, {v(L)}, {v(T)}")
        a(f"s_mov_b32 {s(S_TM)}, 0x3ff")
        self.tag([M, L], VT)
        if self.fast and not self.hello:
            a(f"s_getreg_b32 {s(S_M+5)}, hwreg(HW_REG_XCC_ID, 0, 4)"); a(f"s_lshl_b32 {s(S_M+5)}, {s(S_M+5)}, 12")
            a(f"v_or_b32 {v(M)}, {s(S_M+5)}, {v(M)}")
        a(f"v_lshlrev_b32 {v(T)}, 3, v0")
        a(f"s_lshl_b32 {s(S_T0)}, {s(S_H)}, 10"); a(f"s_add_u32 {s(S_T0)}, {s(S_T0)}, {MLBOX:#x}")
        a(f"s_lshl_b32 {s(S_T1)}, {s(S_S)}, 5"); a(f"s_add_u32 {s(S_T1)}, {s(S_T1)}, {s(S_T0)}")
        a("s_mov_b64 exec, 15")
        if self.hello: self.pub(f"buffer_store_dwordx2 {v(M,2)}, {v(T)}, {s(R0,4)}, {s(S_T1)} offen", S_M+6)
        else: a(f"buffer_store_dwordx2 {v(M,2)}, {v(T)}, {s(R0,4)}, {s(S_T1)} offen sc1")
        a("s_mov_b64 exec, -1")
        self.trig(self.nm, VZ, T+1)
        self.poll([(f"buffer_load_dwordx2 {v(MA,2)}, {v(T)}, {s(R0,4)}, {s(S_T0)} offen sc1", MA, 2),
                   (f"buffer_load_dwordx2 {v(MB,2)}, {v(T)}, {s(R0,4)}, {s(S_T0)} offen offset:512 sc1", MB, 2)], VT, T+1, quad=True)
        if self.fast and not self.hello:
            a(f"v_xor_b32 {v(T+2)}, {s(S_M+5)}, {v(MA)}"); a(f"v_xor_b32 {v(T+3)}, {s(S_M+5)}, {v(MB)}")
            a(f"v_or_b32 {v(T+2)}, {v(T+2)}, {v(T+3)}"); a(f"v_and_b32 {v(T+2)}, 0xf000, {v(T+2)}")
            a(f"v_cmp_ne_u32 vcc, 0, {v(T+2)}")
            a("s_cmp_eq_u64 vcc, 0"); a(f"s_cselect_b32 {s(S_M+6)}, 2, 1")
        a(f"v_and_b32 {v(MA)}, {s(S_HI)}, {v(MA)}"); a(f"v_and_b32 {v(MB)}, {s(S_HI)}, {v(MB)}")
        a(f"v_max_f32 {v(M)}, {v(MA)}, {v(MB)}")
        self.ror("v_max_f32", [M], (4, 8)); self.rows_all("v_max_f32", M, T)
        for r in (MA, MB, MW): a(f"v_sub_f32 {v(r)}, {v(r)}, {v(M)}")
        for r in (MA, MB, MW): a(f"v_mul_f32 {v(r)}, {s(S_T2)}, {v(r)}")
        for r in (MA, MB, MW): a(f"v_exp_f32 {v(r)}, {v(r)}")
        a(f"v_mul_f32 {v(L)}, {v(MA)}, {v(LA)}"); a(f"v_fmac_f32 {v(L)}, {v(MB)}, {v(LB)}")
        self.ror("v_add_f32", [L], (4, 8)); self.rows_all("v_add_f32", L, T)
        a(f"v_rcp_f32 {v(L)}, {v(L)}"); a(f"v_mul_f32 {v(MW)}, {v(MW)}, {v(L)}")
        a(f"v_and_b32 {v(T)}, 31, v0"); a(f"v_lshlrev_b32 {v(T)}, 2, {v(T)}"); a(f"v_mov_b32 {v(T+1)}, {s(S_M+6) if self.fast else 1}")
        a(f"ds_write_b32 {v(T)}, {v(MW)} offset:{L_F}")
        a("s_waitcnt lgkmcnt(0)")
        a(f"ds_write_b32 {v(VZ)}, {v(T+1)} offset:{L_FFLAG}")
        a("s_waitcnt lgkmcnt(0)")
        self.stamp(5)
        self.finish(T)

    def fblock(self, dst, t):
        a = self.a
        a(f"s_lshl_b32 {s(dst)}, {s(S_H)}, 3"); a(f"s_lshr_b32 {s(t)}, {s(S_S)}, 2"); a(f"s_add_u32 {s(dst)}, {s(dst)}, {s(t)}")

    def sw1(self):
        a = self.a
        VZ, VT, VA, T = self.VZ, self.VT, self.VA, self.T
        XC, VO, G, W = 10, 11, 12, 16
        self.fblock(S_T0, S_T1)
        a(f"s_lshl_b32 {s(S_T0)}, {s(S_T0)}, 10"); a(f"s_add_u32 {s(S_T0)}, {s(S_T0)}, {GBOX:#x}")
        self.trig(self.g_trig, VZ, T+1)
        self.poll([(f"buffer_load_dwordx4 {v(G,4)}, {v(VA)}, {s(R0,4)}, {s(S_T0)} offen sc1", G, 4)], VT, T)
        self.fold4(G)
        self.rbf1(G, G)
        a(f"v_mov_b32_dpp {v(G+1)}, {v(G)} row_ror:8 row_mask:0xf bank_mask:0xf")
        self.silu_bf(G, G, T)
        a(f"v_mul_f32 {v(G)}, {v(G)}, {v(G+1)}"); a(f"v_cvt_pk_bf16_f32 {v(G)}, {v(G)}, {v(G)}")
        a(f"v_and_b32 {v(T)}, 7, v0"); a(f"v_lshlrev_b32 {v(T)}, 3, {v(T)}")
        a(f"v_lshrrev_b32 {v(T+1)}, 4, v0"); a(f"v_lshl_add_u32 {v(T)}, {v(T+1)}, 1, {v(T)}"); a(f"v_mov_b32 {v(T+1)}, 1")
        a("s_mov_b32 exec_lo, 0xff00ff"); a("s_mov_b32 exec_hi, 0xff00ff")
        a(f"ds_write_b16 {v(T)}, {v(G)} offset:{L_H}")
        a("s_mov_b64 exec, -1")
        a("s_waitcnt lgkmcnt(0)")
        a(f"ds_write_b32 {v(VZ)}, {v(T+1)} offset:{L_HFLAG}")
        self.stamp(3)
        if self.pf2:
            Lp = self.lab("nopf2")
            a(f"s_cmp_lg_u32 {s(S_S)}, 31"); a(f"s_cbranch_scc1 {Lp}")
            a(f"s_getpc_b64 {s(R4,2)}")
            a("Lpc2:")
            a(f"s_sub_u32 {s(R4)}, {s(R4)}, Lpc2-Lsw23"); a(f"s_subb_u32 {s(R4+1)}, {s(R4+1)}, 0")
            a(f"s_mov_b32 {s(R4+2)}, Lcode_end-Lsw23"); a(f"s_mov_b32 {s(R4+3)}, 0x20000")
            a(f"s_mov_b32 {s(S_T0)}, 4096")
            for k in range(7): a(f"buffer_load_dwordx4 {v(W+4*k,4)}, {v(VA)}, {s(R4,4)}, {s(S_T0) if k >= 4 else 0} offen offset:{1024*(k&3)}")
            a(f"{Lp}:")
        Lx = self.lab("sw1end")
        a(f"s_cmp_ge_u32 {s(S_WG)}, {0 if self.cut else 32}"); a(f"s_cbranch_scc1 {Lx}")
        a(f"s_lshl_b32 {s(S_T0)}, {s(S_WG)}, 5")
        a(f"v_and_b32 {v(VO)}, 3, v0"); a(f"v_lshl_add_u32 {v(VO)}, {v(VO)}, 3, {s(S_T0)}")
        a(f"v_lshrrev_b32 {v(T)}, 4, v0"); a(f"v_lshl_add_u32 {v(VO)}, {v(T)}, 1, {v(VO)}")
        a(f"buffer_load_ushort {v(XC)}, {v(VO)}, {s(R1,4)}, 0 offen")
        a(f"s_lshl_b32 {s(S_T0)}, {s(S_WG)}, 13"); a(f"s_add_u32 {s(S_T0)}, {s(S_T0)}, {HBOX:#x}"); a(f"s_add_u32 {s(S_T1)}, {s(S_T0)}, 4096")
        loads = [(f"buffer_load_dwordx4 {v(W+4*j,4)}, {v(VA)}, {s(R0,4)}, {s(S_T0+(j>>2))} offen offset:{1024*(j&3)} sc1", W+4*j, 4) for j in range(8)]
        if self.touch:
            for ld in loads: a(ld[0])
        a("s_waitcnt vmcnt(0)")
        a(f"v_lshlrev_b32 {v(XC)}, 16, {v(XC)}")
        self.srd(R1, P_OUT, 1024)
        if self.otouch: a(f"buffer_load_ushort {v(T+5)}, {v(VO)}, {s(R1,4)}, 0 offen sc1"); a("s_waitcnt vmcnt(0)")
        self.stamp(4)
        a("s_barrier")
        self.stamp(5)
        if self.pipe:
            Y = [(f"buffer_load_dwordx4 {v(W+32+4*j,4)}, {v(VA)}, {s(R0,4)}, {s(S_T0+(j>>2))} offen offset:{1024*(j&3)} sc1", W+32+4*j, 4) for j in range(8)]
            self.poll2(loads, Y, VT, T, G)
        elif self.light: self.gather8(loads, VT, T, G, VA, S_T0, 10)
        else: self.poll(loads, VT, T, acc=G)
        self.stamp(6)
        self.fold4(G)
        self.ror("v_add_f32", [G], (8,))
        self.rbf1(G, G)
        self.silu_bf(G+1, G, T)
        a(f"v_mul_f32_dpp {v(G)}, {v(G+1)}, {v(G)} row_ror:12 row_mask:0xf bank_mask:0xf"); self.rbf1(G, G)
        a(f"v_add_f32 {v(G)}, {v(G)}, {v(XC)}"); a(f"v_cvt_pk_bf16_f32 {v(G)}, {v(G)}, {v(G)}")
        a("s_mov_b32 exec_lo, 0xf000f"); a("s_mov_b32 exec_hi, 0xf000f")
        a(f"buffer_store_short {v(G)}, {v(VO)}, {s(R1,4)}, 0 offen {self.outpol}")
        a(f"s_cmp_lg_u32 {s(S_WG)}, 0"); a(f"s_cbranch_scc1 {Lx}")
        a("s_mov_b64 exec, 1")
        a(f"v_mov_b32 {v(T)}, {s(S_E)}")
        a(f"buffer_store_dword {v(T)}, {v(VZ)}, {s(R0,4)}, 0 offen offset:{EPOCH} {self.outpol}")
        if self.amp:
            pa, pb, k = self.amp
            a("s_waitcnt vmcnt(0)"); self.stamp(7); a("s_waitcnt lgkmcnt(0)")
            a(f"s_sub_u32 {s(S_T0)}, {s(S_ST+2*pb)}, {s(S_ST+2*pa)}"); a(f"s_mul_i32 {s(S_T0)}, {s(S_T0)}, {k}")
            a(f"s_min_u32 {s(S_T0)}, {s(S_T0)}, 100000")
            a("Lamp:")
            a(f"s_memrealtime {s(S_ST+20,2)}"); a("s_waitcnt lgkmcnt(0)")
            a(f"s_sub_u32 {s(S_T1)}, {s(S_ST+20)}, {s(S_ST+14)}"); a(f"s_cmp_lt_u32 {s(S_T1)}, {s(S_T0)}"); a("s_cbranch_scc1 Lamp")
        a(f"{Lx}:")
        if self.diag: a("s_waitcnt vmcnt(0)")
        self.stamp(7)
        self.finish(T)

    def controller(self, SZ, nbar_):
        a = self.a; c = self.ctl
        VZ = self.VZ
        C, CP, E, X, Y, A, G = 24, 25, 26, 27, 28, 29, 30
        glob = c.get('gw', 0) or c['tcap'] or c.get('g2')
        SG, SPREV, SB8 = R3+1, R3+2, 4
        import struct
        f = lambda x: hex(struct.unpack('<I', struct.pack('<f', x))[0])
        L, Lo, Ls = self.lab("ctl"), self.lab("ctlx"), self.lab("ctls")
        a(f"s_cmp_lg_u32 {s(SZ)}, 0"); a(f"s_cbranch_scc1 {Lo}")
        a(f"s_lshl_b32 {s(S_T0)}, {s(S_H)}, 7")
        a(f"v_and_b32 {v(A)}, 31, v0"); a(f"v_lshlrev_b32 {v(A)}, 2, {v(A)}")
        if glob:
            a(f"v_cmp_gt_u32 vcc, 32, v0"); a(f"v_mov_b32 {v(X)}, 0x400"); a(f"v_cndmask_b32 {v(A)}, {v(X)}, {v(A)}, vcc")
            a(f"s_mov_b32 {s(SPREV)}, 0"); a(f"s_mov_b32 {s(17)}, 0")
            a(f"s_lshl_b32 {s(SPREV+1)}, {s(S_H)}, 2"); a(f"s_add_u32 {s(12)}, {s(P_DBG)}, {s(SPREV+1)}"); a(f"s_addc_u32 {s(13)}, {s(P_DBG+1)}, 0")
        a(f"s_add_u32 {s(S_T0)}, {s(S_T0)}, {PBOX:#x}")
        a(f"s_lshl_b32 {s(S_T1)}, {s(S_S)}, 2"); a(f"s_add_u32 {s(S_T1)}, {s(S_T1)}, {s(S_T0)}")
        a(f"s_lshl_b32 {s(R3)}, {s(S_E)}, 16")
        a(f"ds_read_b32 {v(CP)}, {v(VZ)} offset:{L_CNT}")
        a(f"s_mov_b32 {s(S_CNT)}, 4096")
        a(f"{L}:")
        a(f"ds_read_b32 {v(C)}, {v(VZ)} offset:{L_CNT}")
        a("s_waitcnt lgkmcnt(0)")
        a(f"v_or_b32 {v(E)}, {s(R3)}, {v(C)}")
        a(f"v_readfirstlane_b32 {s(S_T2)}, {v(C)}")
        a("s_mov_b64 exec, 1")
        a(f"buffer_store_dword {v(E)}, {v(VZ)}, {s(R0,4)}, {s(S_T1)} offen")
        a("s_mov_b64 exec, -1")
        a(f"s_cmp_ge_u32 {s(S_T2)}, {8*(c.get('exit', c['to'] - 2) - nbar_)}"); a(f"s_cbranch_scc1 {Lo}")
        a(f"s_sub_u32 {s(S_CNT)}, {s(S_CNT)}, 1"); a(f"s_cbranch_scc1 {Lo}")
        a(f"buffer_load_dword {v(X)}, {v(A)}, {s(R0,4)}, {s(S_T0)} offen sc1")
        if glob:
            Lr = self.lab("ctlr")
            a(f"s_cmp_lg_u32 {s(S_S)}, 5"); a(f"s_cbranch_scc1 {Lr}")
            a(f"s_load_dwordx8 {s(SB8,8)}, {s(P_DBG,2)}, 0 glc")
            a(f"{Lr}:")
        a(f"v_add_u32 {v(CP)}, {v(CP)}, {v(C)}"); a(f"v_cvt_f32_u32 {v(CP)}, {v(CP)}")
        a("s_waitcnt vmcnt(0)")
        a(f"ds_read_b32 {v(Y)}, {v(VZ)} offset:{L_CNT}")
        a(f"v_xor_b32 {v(X)}, {s(R3)}, {v(X)}"); a(f"v_cmp_gt_u32 vcc, 0x10000, {v(X)}")
        if glob:
            a(f"v_subrev_u32 {v(G)}, 0x8000, {v(X)}"); a(f"v_cvt_f32_i32 {v(G)}, {v(G)}"); a(f"v_cndmask_b32 {v(G)}, 0, {v(G)}, vcc")
        a(f"v_cvt_f32_u32 {v(X)}, {v(X)}"); a(f"v_cndmask_b32 {v(X)}, 0, {v(X)}, vcc")
        a(f"s_bcnt1_i32_b32 {s(S_T2)}, vcc_lo")
        if glob: a(f"v_readlane_b32 {s(SG)}, {v(G)}, 32")
        self.ror("v_add_f32", [X], (8, 4, 2, 1))
        a(f"v_mov_b32 {v(E)}, {v(X)}"); a(f"v_permlane16_swap_b32 {v(X)}, {v(E)}"); a(f"v_add_f32 {v(X)}, {v(X)}, {v(E)}")
        a(f"v_cvt_f32_u32 {v(E)}, {s(S_T2)}"); a(f"v_rcp_f32 {v(E)}, {v(E)}")
        a("s_waitcnt lgkmcnt(0)")
        a(f"s_cmp_lt_u32 {s(S_T2)}, 24"); a(f"s_cbranch_scc1 {Ls}")
        a(f"v_mul_f32 {v(X)}, {v(X)}, {v(E)}")
        if glob:
            Lr, Lv = self.lab("ctlr"), self.lab("ctlv")
            a(f"v_mov_b32 {v(G)}, {s(SG)}")
            a(f"s_cmp_lg_u32 {s(S_S)}, 5"); a(f"s_cbranch_scc1 {Lr}")
            a(f"v_cvt_u32_f32 {v(E)}, {v(X)}"); a(f"v_readfirstlane_b32 {s(S_T2)}, {v(E)}")
            a(f"s_add_u32 {s(S_T3)}, {s(SPREV)}, {s(17)}"); a(f"s_min_u32 {s(18)}, {s(SPREV)}, {s(17)}"); a(f"s_mov_b32 {s(17)}, {s(SPREV)}")
            a(f"s_sub_u32 {s(14)}, {s(S_T2)}, {s(SPREV)}"); a(f"s_mov_b32 {s(SPREV)}, {s(S_T2)}")
            a(f"s_atomic_add {s(14)}, {s(12,2)}, 0x0")
            a(f"s_min_u32 {s(15)}, {s(SB8)}, {s(SB8+1)}"); a(f"s_add_u32 {s(16)}, {s(SB8)}, {s(SB8+1)}")
            for k in range(2, 8): a(f"s_min_u32 {s(15)}, {s(15)}, {s(SB8+k)}"); a(f"s_add_u32 {s(16)}, {s(16)}, {s(SB8+k)}")
            a(f"s_min_u32 {s(15)}, {s(15)}, {s(18)}"); a(f"s_cmp_eq_u32 {s(15)}, 0"); a(f"s_cbranch_scc1 {Lr}")
            a(f"s_lshl_b32 {s(S_T3)}, {s(S_T3)}, 2")
            a(f"s_sub_u32 {s(16)}, {s(16)}, {s(S_T3)}"); a(f"s_ashr_i32 {s(16)}, {s(16)}, 3")
            a(f"s_add_u32 {s(16)}, {s(16)}, {0x8000 + c.get('gb', 0)}"); a(f"s_or_b32 {s(16)}, {s(16)}, {s(R3)}")
            a(f"v_mov_b32 {v(E)}, {s(16)}")
            a("s_mov_b64 exec, 1")
            a(f"buffer_store_dword {v(E)}, {v(VZ)}, {s(R0,4)}, {s(S_T0)} offen offset:1024")
            a("s_mov_b64 exec, -1")
            a(f"{Lr}:")
        a(f"v_fma_f32 {v(X)}, {v(CP)}, -0.5, {v(X)}")
        if c.get('gw', 0): a(f"v_fmac_f32 {v(X)}, {f(c['gw'])}, {v(G)}")
        a(f"v_lshrrev_b32 {v(Y)}, 3, {v(Y)}"); a(f"v_add_u32 {v(Y)}, {nbar_ + 1 + c['lead']}, {v(Y)}")
        for (dst, src, sign, th, g, cap) in ((E, X, 1, c['bth'], c['bg'], c['bcap']), (X, G, 1, *c['g2']) if c.get('g2') else (X, G, -1, c['tth'], c['tg'], c['tcap'])):
            if not cap: continue
            t = CP
            a(f"v_mul_f32 {v(t)}, {f(sign*g)}, {v(src)}")
            if c.get('k0') and dst == E: a(f"v_add_f32 {v(t)}, {f(c['k0'])}, {v(t)}")
            a(f"v_min_f32 {v(t)}, {f(cap)}, {v(t)}"); a(f"v_max_f32 {v(t)}, 0, {v(t)}")
            a(f"v_cmp_{'lt' if sign > 0 else 'gt'}_f32 vcc, {f(sign*th)}, {v(src)}")
            a(f"v_cvt_u32_f32 {v(t)}, {v(t)}"); a(f"v_add_u32 {v(t)}, {v(t)}, {v(Y)}")
            a(f"v_cndmask_b32 {v(dst)}, 0, {v(t)}, vcc")
        if c.get('g2'):
            a(f"v_min_u32 {v(CP)}, {v(E)}, {v(X)}"); a(f"v_max_u32 {v(X)}, {v(E)}, {v(X)}"); a(f"v_mov_b32 {v(E)}, {v(CP)}")
        a("s_mov_b64 exec, 1")
        a(f"ds_write_b64 {v(VZ)}, {v(E,2)} offset:{L_BOOST}")
        a("s_mov_b64 exec, -1")
        a(f"{Ls}:")
        a(f"v_mov_b32 {v(CP)}, {v(C)}")
        a(f"s_branch {L}")
        a(f"{Lo}:")

    def sw23(self):
        a = self.a
        VZ, VT, VA, T = self.VZ, self.VT, self.VA, self.T
        VP, VH, VB, VB2, OUT, SUM, W, HB, AW, AD, F, DD = 10, 11, 12, 13, 16, 20, 24, 56, 72, 104, 120, 152
        SZ, SFB, SCOL, SPUB, SP0, SHB, SLW = S_M+8, S_M+9, S_M+10, S_M+11, S_M, S_M+12, S_M+13
        a(f"s_and_b32 {s(SZ)}, {s(S_WAVE)}, 1")
        self.fblock(SFB, S_T1)
        a(f"s_and_b32 {s(SCOL)}, {s(S_S)}, 3"); a(f"s_lshl_b32 {s(SCOL)}, {s(SCOL)}, 1"); a(f"s_add_u32 {s(SCOL)}, {s(SCOL)}, {s(SZ)}")
        a(f"s_mul_i32 {s(SLW)}, {s(SZ)}, 12288")
        a(f"v_lshrrev_b32 {v(T)}, 4, v0"); a(f"v_lshl_add_u32 {v(T)}, {v(T)}, 10, {s(SLW)}")
        a(f"v_bfe_u32 {v(T+2)}, v0, 2, 2"); a(f"v_lshl_add_u32 {v(T)}, {v(T+2)}, 7, {v(T)}")
        a(f"v_and_b32 {v(T+2)}, 3, v0"); a(f"v_lshl_add_u32 {v(T)}, {v(T+2)}, 3, {v(T)}")
        a(f"s_lshl_b32 {s(S_T0)}, {s(S_H)}, 16"); a(f"s_add_u32 {s(S_T0)}, {s(S_T0)}, {OBOX:#x}")
        a(f"s_lshl_b32 {s(SPUB)}, {s(S_S)}, 11"); a(f"s_add_u32 {s(SPUB)}, {s(SPUB)}, {s(S_T0)}")
        a(f"s_lshr_b32 {s(S_T1)}, {s(S_S)}, 2"); a(f"s_lshl_b32 {s(S_T1)}, {s(S_T1)}, 8"); a(f"s_add_u32 {s(SP0)}, {s(S_T0)}, {s(S_T1)}")
        for k in range(1, 8): a(f"s_add_u32 {s(SP0+k)}, {s(SP0)}, {8192*k}")
        a(f"v_lshrrev_b32 {v(VP)}, 4, v0"); a(f"v_and_b32 {v(T+2)}, 0xf0, {v(VA)}"); a(f"v_lshl_add_u32 {v(VP)}, {v(VP)}, 11, {v(T+2)}")
        a(f"s_lshl_b32 {s(SHB)}, {s(SCOL)}, 15"); a(f"s_lshl_b32 {s(S_T1)}, {s(SFB)}, 7"); a(f"s_add_u32 {s(SHB)}, {s(SHB)}, {s(S_T1)}")
        a(f"s_add_u32 {s(SHB)}, {s(SHB)}, {HBOX:#x}")
        a(f"v_and_b32 {v(VH)}, 3, v0"); a(f"v_lshlrev_b32 {v(VH)}, 13, {v(VH)}")
        a(f"v_and_b32 {v(T+2)}, 4, v0"); a(f"v_lshl_add_u32 {v(VH)}, {v(T+2)}, 4, {v(VH)}")
        a(f"v_and_b32 {v(VB)}, 48, v0"); a(f"v_add_u32 {v(VH)}, {v(VH)}, {v(VB)}")
        def tr_ad():
            for t in range(4):
                for hf in range(2):
                    a(f"ds_read_b64_tr_b16 {v(AD+4*t+2*hf,2)}, {v(T)} offset:{L_W + 8192 + 512*hf + 32*t}")
        def tr_aw(t):
            for kk in range(2):
                for hf in range(2):
                    a(f"ds_read_b64_tr_b16 {v(AW+8*t+4*kk+2*hf,2)}, {v(T)} offset:{L_W + 4096*kk + 512*hf + 32*t}")
        def ffn_tags():
            a("s_mov_b32 exec_lo, 0x100010"); a("s_mov_b32 exec_hi, 0x100010")
            for t in range(4):
                self.tag(range(DD+4*t, DD+4*t+4), VT, dst=range(OUT, OUT+4))
                if t < 3: a("s_lshl_b64 exec, exec, 1")
            a("s_mov_b64 exec, -1")
        def wprep():
            if self.wprog:
                assert self.wsplit == 12
                a("s_waitcnt vmcnt(17)")
                tr_ad()
                self.lgkm(0)
                for t in range(4): a(f"v_mfma_f32_16x16x32_bf16 {v(DD+4*t,4)}, {v(AD+4*t,4)}, {v(HB,4)}, 0")
                ffn_tags()
                for kk in range(2):
                    a(f"s_waitcnt vmcnt({13 - 4*kk})")
                    for t in range(4):
                        for hf in range(2):
                            a(f"ds_read_b64_tr_b16 {v(AW+8*t+4*kk+2*hf,2)}, {v(T)} offset:{L_W + 4096*kk + 512*hf + 32*t}")
                self.stamp(3)
                return
            if self.wdma:
                a(f"s_waitcnt vmcnt({9 if self.wsplit == 12 else 8})")
                tr_ad(); tr_aw(0)
                self.lgkm(4)
                for t in range(4): a(f"v_mfma_f32_16x16x32_bf16 {v(DD+4*t,4)}, {v(AD+4*t,4)}, {v(HB,4)}, 0")
                for t in range(1, 4): tr_aw(t)
                ffn_tags()
                self.stamp(3)
                return
            self.lds_wait(L_WCNT, 8, VZ, T+2)
            tr_ad()
            self.lds_wait(L_HFLAG, 1, VZ, T+2, [f"ds_read_b128 {v(HB,4)}, {v(VB)} offset:{L_H}"])
            for t in range(4): a(f"v_mfma_f32_16x16x32_bf16 {v(DD+4*t,4)}, {v(AD+4*t,4)}, {v(HB,4)}, 0")
            for t in range(4):
                tr_aw(t)
                if t == 1: a("s_waitcnt lgkmcnt(0)")
            ffn_tags()
            a("s_waitcnt lgkmcnt(0)")
            self.stamp(3)
        if self.wdma:
            VWA, VWD, SW0, SW1 = 14, 15, R4, R4+1
            a(f"v_lshrrev_b32 {v(T+1)}, 3, v0"); a(f"v_and_b32 {v(T+2)}, 0x70, {v(VA)}")
            a(f"v_lshl_add_u32 {v(VWD)}, {v(T+1)}, 10, {v(T+2)}")
            a(f"s_mul_i32 {s(S_T1)}, {s(SZ)}, {8*144}"); a(f"v_mul_u32_u24 {v(T+1)}, 144, {v(T+1)}"); a(f"v_add3_u32 {v(VWA)}, {v(T+1)}, {v(T+2)}, {s(S_T1)}")
            a(f"s_lshl_b32 {s(SW0)}, {s(S_H)}, 19"); a(f"s_lshr_b32 {s(S_T1)}, {s(S_S)}, 2"); a(f"s_lshl_b32 {s(S_T1)}, {s(S_T1)}, 14"); a(f"s_add_u32 {s(SW0)}, {s(SW0)}, {s(S_T1)}")
            a(f"s_lshl_b32 {s(S_T1)}, {s(SCOL)}, 7"); a(f"s_add_u32 {s(SW0)}, {s(SW0)}, {s(S_T1)}")
            a(f"s_lshl_b32 {s(SW1)}, {s(SFB)}, 15"); a(f"s_add_u32 {s(SW1)}, {s(SW1)}, {s(S_T1)}")
            a(f"s_add_u32 {s(SLW)}, {s(SLW)}, {L_W}")
            self.srd(R1, P_WO, 0x400000); self.srd(R2, P_WD, 0x1c0000)
            def touch_w():
                a("s_mov_b64 exec, 1")
                for h in range(4):
                    a(f"s_add_u32 {s(S_T1)}, {s(SW0)}, {0x20000*h}")
                    a(f"buffer_load_dword {v(T+3)}, {v(VZ)}, {s(R1,4)}, {s(S_T1)} offen {self.wpol}")
                a(f"buffer_load_dword {v(T+3)}, {v(VZ)}, {s(R2,4)}, {s(SW1)} offen {self.wpol}")
                a("s_mov_b64 exec, -1")
            if self.ctl: self.controller(SZ, nbar_=(self.ramp[0] if self.ramp else self.D) - 1)
            if self.wtouch == 1: touch_w()
            self.lds_wait(L_HFLAG, 1, VZ, T+2, [f"ds_read_b128 {v(HB,4)}, {v(VB)} offset:{L_H}"])
        worder = list(range(8, 12)) + list(range(8))
        def wload(js):
            for j in js:
                a(f"s_add_u32 m0, {s(SLW)}, {1024*j}")
                if j < 8:
                    a(f"buffer_load_dwordx4 {v(VWD)}, {s(R1,4)}, {s(SW0)} offen {self.wpol} lds")
                    a(f"s_add_u32 {s(SW0)}, {s(SW0)}, {0x20000 - 8192 if j & 1 else 8192:#x}")
                else:
                    a(f"buffer_load_dwordx4 {v(VWD)}, {s(R2,4)}, {s(SW1)} offen {self.wpol} lds")
                    a(f"s_add_u32 {s(SW1)}, {s(SW1)}, 8192")
        late = self.wpos > 56 or self.wdma
        if not late: wprep()
        if self.cut: return self.finish(T)
        if self.wtouch == 2: touch_w()
        loads = [(f"buffer_load_dwordx4 {v(W+4*k,4)}, {v(VP)}, {s(R0,4)}, {s(SP0+k)} offen sc1", W+4*k, 4) for k in range(8)]
        if self.touch and True:
            for ld in loads: a(ld[0])
        self.lds_wait(L_FFLAG, 1, VZ, T+2, [f"ds_read_b128 {v(F+4*w,4)}, {v(VZ)} offset:{L_F+16*w}" for w in range(8)])
        a(f"s_mov_b32 {s(S_M+14)}, {s(S_T3)}")
        if self.wtouch == 3: touch_w()
        a(f"s_lshl_b32 {s(S_T0)}, {s(SZ)}, 10"); a(f"v_add_u32 {v(VA)}, {s(S_T0)}, {v(VA)}")
        a(f"s_lshl_b32 {s(S_T0)}, {s(SZ)}, 7"); a(f"v_add_u32 {v(VB2)}, {s(S_T0)}, {v(VB)}"); a(f"v_lshl_add_u32 {v(T+1)}, v0, 1, {s(S_T0)}")
        if self.touch: a("s_waitcnt vmcnt(0)")
        if self.wdma and self.wsplit:
            self.lds_wait(L_WCNT, 8, VZ, T+2, sleep=0)
            wload(worder[:self.wsplit])
        self.stamp(4)
        a("s_barrier")
        self.stamp(5)
        for w in range(8): a(f"ds_read_b128 {v(W+4*w,4)}, {v(VWA)} offset:{L_O+OSTR*w}")
        for w in range(8):
            self.lgkm(7-w)
            for p in (0, 2):
                if w == 0: a(f"v_pk_mul_f32 {v(SUM+p,2)}, {v(W+p,2)}, {v(F+p,2)}")
                else: a(f"v_pk_fma_f32 {v(SUM+p,2)}, {v(W+4*w+p,2)}, {v(F+4*w+p,2)}, {v(SUM+p,2)}")
        if self.fast: a(f"s_cmp_eq_u32 {s(S_M+14)}, 2")
        self.tag(range(SUM, SUM+4), VT, dst=range(F, F+4))
        if self.fast:
            La, Lb = self.lab("h1l"), self.lab("h1j")
            a(f"s_cbranch_scc1 {La}")
            a(f"buffer_store_dwordx4 {v(F,4)}, {v(VA)}, {s(R0,4)}, {s(SPUB)} offen sc1")
            a(f"s_branch {Lb}")
            a(f"{La}:")
            a(f"buffer_store_dwordx4 {v(F,4)}, {v(VA)}, {s(R0,4)}, {s(SPUB)} offen")
            a(f"{Lb}:")
        else: a(f"buffer_store_dwordx4 {v(F,4)}, {v(VA)}, {s(R0,4)}, {s(SPUB)} offen sc1")
        self.stamp(6)
        if self.wdma: wload(worder[self.wsplit:])
        pre = late and (self.prepoll or self.wdma)
        if late and not pre: wprep()
        BO = W
        if self.pipe:
            yr = [AD+4*k for k in range(4)] + [F+4+4*k for k in range(4)]
            Y = [(f"buffer_load_dwordx4 {v(yr[k],4)}, {v(VP)}, {s(R0,4)}, {s(SP0+k)} offen sc1", yr[k], 4) for k in range(8)]
            self.poll2(loads, Y, VT, T+3, SUM, between=wprep)
            BO = HB
        elif self.light: self.gather8(loads, VT, HB+4, SUM, VP, SP0, 13, between=(wprep if pre else None))
        else: self.poll(loads, VT, T+3, acc=SUM, between=(wprep if pre else None))
        self.stamp(7)
        self.fold4(SUM)
        a(f"v_cvt_pk_bf16_f32 {v(SUM)}, {v(SUM)}, {v(SUM)}")
        a(f"ds_write_b16 {v(T+1)}, {v(SUM)} offset:{L_OB}")
        a(f"ds_read_b128 {v(BO,4)}, {v(VB2)} offset:{L_OB}"); a(f"ds_read_b128 {v(BO+4,4)}, {v(VB2)} offset:{L_OB+64}")
        a("s_mov_b32 exec_lo, 0x10001"); a("s_mov_b32 exec_hi, 0x10001")
        self.lgkm(1)
        for t in range(2): a(f"v_mfma_f32_16x16x32_bf16 {v(DD+4*t,4)}, {v(AW+8*t,4)}, {v(BO,4)}, 0")
        self.lgkm(0)
        for t in range(2): a(f"v_mfma_f32_16x16x32_bf16 {v(DD+4*t,4)}, {v(AW+8*t+4,4)}, {v(BO+4,4)}, {v(DD+4*t,4)}")
        for t in range(2, 4):
            a(f"v_mfma_f32_16x16x32_bf16 {v(DD+4*t,4)}, {v(AW+8*t,4)}, {v(BO,4)}, 0")
            a(f"v_mfma_f32_16x16x32_bf16 {v(DD+4*t,4)}, {v(AW+8*t+4,4)}, {v(BO+4,4)}, {v(DD+4*t,4)}")
        for t in range(4):
            self.tag(range(DD+4*t, DD+4*t+4), VT, dst=range(OUT, OUT+4))
            if t < 3: a("s_lshl_b64 exec, exec, 1")
        a("s_mov_b32 exec_lo, 0xff00ff"); a("s_mov_b32 exec_hi, 0xff00ff")
        a(f"buffer_store_dwordx4 {v(OUT,4)}, {v(VH)}, {s(R0,4)}, {s(SHB)} offen sc1")
        self.stamp(8)
        if self.fast and self.clean:
            a("s_mov_b64 exec, -1")
            a(f"buffer_store_dwordx4 {v(F,4)}, {v(VA)}, {s(R0,4)}, {s(SPUB)} offen sc1")
        if self.amp2:
            pa, pb, k = self.amp2
            a(f"s_add_u32 {s(S_T0)}, {s(S_WG)}, {s(SZ)}"); a(f"s_cmp_lg_u32 {s(S_T0)}, 0"); a("s_cbranch_scc1 Lamp2x")
            a("s_waitcnt lgkmcnt(0)")
            a(f"s_sub_u32 {s(S_T0)}, {s(S_ST+2*pb)}, {s(S_ST+2*pa)}"); a(f"s_mul_i32 {s(S_T0)}, {s(S_T0)}, {k}")
            a(f"s_min_u32 {s(S_T0)}, {s(S_T0)}, 100000")
            a("Lamp2:")
            a(f"s_memrealtime {s(S_ST+20,2)}"); a("s_waitcnt lgkmcnt(0)")
            a(f"s_sub_u32 {s(S_T1)}, {s(S_ST+20)}, {s(S_ST+16)}"); a(f"s_cmp_lt_u32 {s(S_T1)}, {s(S_T0)}"); a("s_cbranch_scc1 Lamp2")
            a("Lamp2x:")
        if self.diag: a("s_waitcnt vmcnt(0)")
        self.stamp(9)
        self.finish(T)

    def build(self):
        a = self.a
        hdr = open("recurrent_scan__gqa_block_cached__swiglu_ffn__decode.s.ref").read().split("; @launch")[0]
        a(f'.amdgcn_target "amdgcn-amd-amdhsa--gfx950"')
        a(".text"); a(f".globl {KN}"); a(".p2align 8"); a(f".type {KN},@function"); a(f"{KN}:")
        a(f"s_load_dwordx16 {s(4,16)}, s[0:1], 0"); a(f"s_load_dwordx8 {s(20,8)}, s[0:1], 64")
        a("s_cmp_ge_u32 s2, 256"); a("s_cbranch_scc1 Lend")
        if self.diag:
            for k in range(1, 12): a(f"s_mov_b32 {s(S_ST+2*k)}, 0")
        self.stamp(0)
        a("v_lshrrev_b32 v1, 6, v0"); a("v_and_b32 v0, 63, v0"); a(f"v_readfirstlane_b32 {s(S_WAVE)}, v1")
        a(f"s_and_b32 {s(S_H)}, s2, 7"); a(f"s_lshr_b32 {s(S_S)}, s2, 3")
        if self.pf and self.pfe:
            a(f"s_cmp_lt_u32 {s(S_WAVE)}, 8"); a("s_cbranch_scc1 Lstream")
            a("v_lshlrev_b32 v3, 4, v0")
            self.prefetch(3, 72)
            a("s_branch Lservice")
            a("Lstream:")
        else:
            a(f"s_cmp_ge_u32 {s(S_WAVE)}, 8"); a("s_cbranch_scc1 Lservice")
        self.streamer()
        a("Lservice:")
        if self.prio: a("s_setprio 3")
        a(f"s_mov_b32 {s(S_HI)}, 0xffff0000"); a(f"s_mov_b32 {s(S_TM)}, {(1 << self.tagbits) - 1:#x}")
        self.stage1()
        a(f"s_cmp_eq_u32 {s(S_WAVE)}, 9"); a("s_cbranch_scc1 Lsw1")
        a(f"s_cmp_gt_u32 {s(S_WAVE)}, 9"); a("s_cbranch_scc1 Lsw23")
        self.sw0()
        a("Lsw23:"); self.sw23()
        a("Lsw1:"); self.sw1()
        a("Lend:"); a("s_endpgm")
        a("Lcode_end:")
        a(".fill 64, 4, 0xbf800000")
        a('.section .rodata,"a"'); a(".p2align 6"); a(f".amdhsa_kernel {KN}")
        for d in ("next_free_vgpr 168", "next_free_sgpr 102", "accum_offset 168", "group_segment_fixed_size 0", "kernarg_size 96",
                  "user_sgpr_count 2", "user_sgpr_kernarg_segment_ptr 1", "system_sgpr_workgroup_id_x 1", "float_denorm_mode_32 3"):
            a(f".amdhsa_{d}")
        a(".end_amdhsa_kernel")
        return hdr + f"; @launch grid=(256,1,1) block=(768,1,1) lds={LDS_BYTES + self.ldspad}\n" + a.finalize()

def gen(**kw): return G(**kw).build()
if __name__ == "__main__":
    kw = eval("dict(" + (sys.argv[2] if len(sys.argv) > 2 else "") + ")")
    open(sys.argv[1], "w").write(gen(**kw))
```

```python
import sys
from asmlib import Asm
KN = "recurrent_scan__gqa_block_cached__swiglu_ffn__decode_kernel"

EPOCH = 0
QBOX, MLBOX, PBOX, XBOX, GBOX, OBOX, HBOX = 0x1000, 0x9000, 0xB000, 0xC000, 0x10000, 0x20000, 0xA0000
WS_USED = 0xE0000
STAMP = 128 << 20
L_QFLAG, L_MLCNT, L_FFLAG, L_S1CNT, L_PROG, L_HFLAG, L_ACNT, L_WCNT = 0, 4, 8, 12, 16, 20, 24, 28
L_CNT, L_PUB, L_BOOST, L_OFLAG = 32, 36, 40, 48
L_ML, L_F, L_H, L_Q, L_S1, L_OB, L_O = 64, 320, 448, 512, 1536, 2560, 2816
OSTR = 16*144
L_W = L_O + 8*OSTR
L_A = L_O
LDS_BYTES = L_W + 2*12288
SPIN = 1 << 16

LOG2E = 0x3fb8aa3b
SCALE = 0x3db504f3
EPS = 0x3727c5ac

DOC = '''; ------------------------------------------------------------------------------------------------
;
; Workgroup (H = id & 7, S = id >> 3) owns 1024 keys of KV head H. 12 waves:
;   waves 0-7  "streamers": 128 keys each. K (all of it) then V go straight to registers, a few 1 KiB
;              They also fetch the stage-1 weight tile (wq or w_gate/w_up) into LDS.
;              max / sum inside the head group -> per-wave factors exp(m_w - M) / L
;              workgroup), 64 x 128 tile of wo and 32 x 128 tile of w_down by MFMA, hop 2 to the reducers
;
; use sc1 loads and re-read until a whole message shows the tag. Writers use sc1 (write-through) stores,
; or ordinary stores once all 32 workgroups of the head group have reported the writer's own XCC id.
; ------------------------------------------------------------------------------------------------
'''

def v(i, n=1): return f"v{i}" if n == 1 else f"v[{i}:{i+n-1}]"
def s(i, n=1): return f"s{i}" if n == 1 else f"s[{i}:{i+n-1}]"

S_WG, S_WAVE = 2, 3
P_X, P_K, P_V, P_WQ, P_WO, P_BX, P_WG, P_WU, P_WD, P_OUT, P_DBG, P_WS = range(4, 28, 2)
R0, R1, R2, R3, R4 = 28, 32, 36, 40, 44
S_H, S_S = 48, 49
S_T0, S_T1, S_T2, S_T3 = 50, 51, 52, 53
S_HI, S_TM, S_LO, S_HIS = 54, 55, 56, 57
S_CNT, S_E = 58, 59
S_M = 60
S_ST = 76

class G:
    def __init__(self, D=3, D2=3, nD2=58, n0=28, il=12, kvpol="nt", wpol="nt", diag=0, pf=1, nq=20, nm=56, g_trig=44,
                 outpol="", prio=1, touch=0, cut=0, amp=None, trace=0, ramp=None, wpos=64, apos=1, smooth=1, wlate=0, prepoll=0, fast=1, clean=0, wdma=1, rot=1, agap=1, light=0, ldspad=0, hsleep=0, pipe=1, wsplit=12, wtouch=0, otouch=0, ctl=1, qk2=1, hello=5, wprog=1, tagbits=4, plo=3, amp2=None, pfe=1, pf2=0, afake=0, rdelay=2, wdrain=None, pfirst=0, solo=1):
        self.__dict__.update(locals()); del self.__dict__['self']
        self.a = Asm(); self.nlab = 0
        assert self.wdma
        if self.ctl == 1: self.ctl = dict(to=68, bth=0, bg=0.5, bcap=5, tth=4, tg=0.15, tcap=0, lead=0, exit=62, **{'from': 8})
    def lab(self, p):
        self.nlab += 1; return f"L{p}{self.nlab}"
    def srd(self, r, ptr, size):
        a = self.a
        a(f"s_mov_b32 {s(r)}, {s(ptr)}"); a(f"s_mov_b32 {s(r+1)}, {s(ptr+1)}")
        a(f"s_mov_b32 {s(r+2)}, {size:#x}"); a(f"s_mov_b32 {s(r+3)}, 0x20000")
    def stamp(self, k):
        if self.diag or self.amp or self.amp2: self.a(f"s_memrealtime {s(S_ST+2*k,2)}")
    def lgkm(self, n):
        self.a(f"s_waitcnt lgkmcnt({0 if (self.diag or self.amp or self.amp2) else n})")
    def finish(self, vt):
        a = self.a
        if self.diag:
            a("s_waitcnt lgkmcnt(0)")
            a(f"s_mul_i32 {s(S_T0)}, {s(S_WG)}, 12"); a(f"s_add_u32 {s(S_T0)}, {s(S_T0)}, {s(S_WAVE)}")
            a(f"s_lshl_b32 {s(S_T0)}, {s(S_T0)}, 6"); a(f"s_add_u32 {s(S_T0)}, {s(S_T0)}, {STAMP:#x}")
            a("s_mov_b64 exec, 1")
            a(f"v_mov_b32 {v(vt)}, {s(S_T0)}")
            for k in range(12):
                a(f"v_mov_b32 {v(vt+1)}, {s(S_ST+2*k)}")
                a(f"global_store_dword {v(vt)}, {v(vt+1)}, {s(P_WS,2)} offset:{4*k}")
            a("s_waitcnt vmcnt(0)")
        a("s_endpgm")
    def unpack(self, lo, hi, src):
        self.a(f"v_lshlrev_b32 {v(lo)}, 16, {v(src)}"); self.a(f"v_and_b32 {v(hi)}, {s(S_HI)}, {v(src)}")
    def rbf1(self, dst, src):
        self.a(f"v_cvt_pk_bf16_f32 {v(dst)}, {v(src)}, {v(src)}"); self.a(f"v_and_b32 {v(dst)}, {s(S_HI)}, {v(dst)}")
    def rbf2(self, d0, d1, s0, s1, t):
        self.a(f"v_cvt_pk_bf16_f32 {v(t)}, {v(s0)}, {v(s1)}"); self.unpack(d0, d1, t)
    def ror(self, op, regs, steps):
        for n in steps:
            for r in regs: self.a(f"{op}_dpp {v(r)}, {v(r)}, {v(r)} row_ror:{n} row_mask:0xf bank_mask:0xf")
    def rows_all(self, op, x, t):
        a = self.a
        for sw in ("v_permlane16_swap_b32", "v_permlane32_swap_b32"):
            a(f"v_mov_b32 {v(t)}, {v(x)}"); a(f"{sw} {v(x)}, {v(t)}"); a(f"{op} {v(x)}, {v(x)}, {v(t)}")
    def fold(self, sw, pairs):
        for x, y in pairs: self.a(f"{sw} {v(x)}, {v(y)}")
        for x, y in pairs: self.a(f"v_add_f32 {v(x)}, {v(x)}, {v(y)}")
    def fold4(self, x):
        self.fold("v_permlane32_swap_b32", [(x, x+2), (x+1, x+3)])
        self.fold("v_permlane16_swap_b32", [(x, x+1)])
    def silu_bf(self, dst, x, t):
        a = self.a
        a(f"v_mul_f32 {v(t)}, {0x80000000 ^ LOG2E:#x}, {v(x)}"); a(f"v_exp_f32 {v(t)}, {v(t)}")
        a(f"v_add_f32 {v(t)}, 1.0, {v(t)}"); a(f"v_rcp_f32 {v(t)}, {v(t)}"); a(f"v_mul_f32 {v(t)}, {v(x)}, {v(t)}")
        self.rbf1(dst, t)
    def layernorm(self, X, XF, T):
        a = self.a
        for k in range(4): self.unpack(XF+2*k, XF+2*k+1, X+k)
        a(f"v_add_f32 {v(T)}, {v(XF)}, {v(XF+1)}")
        for k in range(2, 8): a(f"v_add_f32 {v(T)}, {v(T)}, {v(XF+k)}")
        self.ror("v_add_f32", [T], (8, 4, 2, 1)); self.rows_all("v_add_f32", T, T+1)
        a(f"v_mul_f32 {v(T)}, 0x3b000000, {v(T)}")
        a(f"v_sub_f32 {v(T+2)}, {v(XF)}, {v(T)}"); a(f"v_mul_f32 {v(T+3)}, {v(T+2)}, {v(T+2)}")
        for k in range(1, 8):
            a(f"v_sub_f32 {v(T+2)}, {v(XF+k)}, {v(T)}"); a(f"v_fmac_f32 {v(T+3)}, {v(T+2)}, {v(T+2)}")
        self.ror("v_add_f32", [T+3], (8, 4, 2, 1)); self.rows_all("v_add_f32", T+3, T+1)
        a(f"v_mul_f32 {v(T+3)}, 0x3b000000, {v(T+3)}")
        self.rbf2(T, T+3, T, T+3, T+1)
        a(f"v_add_f32 {v(T+3)}, {EPS:#x}, {v(T+3)}"); self.rbf1(T+3, T+3)
        a(f"v_sqrt_f32 {v(T+3)}, {v(T+3)}"); self.rbf1(T+3, T+3)
        a(f"v_rcp_f32 {v(T+2)}, {v(T+3)}")
        for k in range(8): a(f"v_sub_f32 {v(XF+k)}, {v(XF+k)}, {v(T)}")
        for k in range(4): self.rbf2(XF+2*k, XF+2*k+1, XF+2*k, XF+2*k+1, T+1)
        for k in range(8):
            a(f"v_mul_f32 {v(T+4)}, {v(XF+k)}, {v(T+2)}")
            a(f"v_fma_f32 {v(T+5)}, -{v(T+4)}, {v(T+3)}, {v(XF+k)}")
            a(f"v_fma_f32 {v(XF+k)}, {v(T+5)}, {v(T+2)}, {v(T+4)}")
        for k in range(4): self.rbf2(XF+2*k, XF+2*k+1, XF+2*k, XF+2*k+1, T+1)
    def tag(self, regs, vT, dst=None):
        for i, r in enumerate(regs):
            d = r if dst is None else dst[i]
            self.a(f"v_bfi_b32 {v(d)}, {s(S_TM)}, {v(vT)}, {v(r)}")
    def joint(self, t, quad=False):
        perms = ["quad_perm:[1,0,3,2]", "quad_perm:[2,3,0,1]"] + ([] if quad else ["row_half_mirror"])
        if quad or self.tagbits < 10:
            for p in perms: self.a(f"v_or_b32_dpp {v(t)}, {v(t)}, {v(t)} {p} row_mask:0xf bank_mask:0xf")
    def poll(self, loads, vT, t, acc=None, between=None, quad=False):
        a = self.a; L = self.lab("poll"); Lo = self.lab("pollx")
        if between:
            Lc = self.lab("pollc")
            for ld in loads: a(ld[0])
            between()
            a(f"s_mov_b32 {s(S_CNT)}, {SPIN}")
            a(f"s_branch {Lc}")
        else: a(f"s_mov_b32 {s(S_CNT)}, {SPIN}")
        a(f"{L}:")
        for ld in loads: a(ld[0])
        if between: a(f"{Lc}:")
        first = True
        for j, (_, r0, n) in enumerate(loads):
            a(f"s_waitcnt vmcnt({len(loads)-1-j})")
            for w in range(r0, r0+n):
                if first: a(f"v_xor_b32 {v(t)}, {v(w)}, {v(vT)}"); first = False
                else: a(f"v_bitop3_b32 {v(t)}, {v(w)}, {v(vT)}, {v(t)} bitop3:0xbe")
            if j == len(loads) - 1:
                self.joint(t, quad)
                a(f"v_and_b32 {v(t)}, {s(S_TM)}, {v(t)}")
                a(f"v_cmp_ne_u32 vcc, 0, {v(t)}")
            if acc is not None and j >= 1:
                p = loads[0][1] if j == 1 else acc
                a(f"v_pk_add_f32 {v(acc,2)}, {v(p,2)}, {v(r0,2)}"); a(f"v_pk_add_f32 {v(acc+2,2)}, {v(p+2,2)}, {v(r0+2,2)}")
        a(f"s_sub_u32 {s(S_CNT)}, {s(S_CNT)}, 1")
        a(f"s_cbranch_scc1 {Lo}")
        a("s_mov_b64 exec, vcc")
        if acc is not None and self.hsleep:
            a(f"s_cbranch_execz {Lo}"); a(f"s_sleep {self.hsleep}"); a(f"s_branch {L}")
        else: a(f"s_cbranch_execnz {L}")
        a(f"{Lo}:")
        a("s_mov_b64 exec, -1")
    def poll2(self, X, Y, vT, t, acc, between=None):
        a = self.a; L = self.lab("pp"); Lo = self.lab("ppx")
        n = len(X)
        def check(loads, out=2):
            first = True
            for j, (_, r0, nr) in enumerate(loads):
                a(f"s_waitcnt vmcnt({out*n-1-j})")
                for w in range(r0, r0+nr):
                    if first: a(f"v_xor_b32 {v(t)}, {v(w)}, {v(vT)}"); first = False
                    else: a(f"v_bitop3_b32 {v(t)}, {v(w)}, {v(vT)}, {v(t)} bitop3:0xbe")
                if j >= 1:
                    p = loads[0][1] if j == 1 else acc
                    a(f"v_pk_add_f32 {v(acc,2)}, {v(p,2)}, {v(r0,2)}"); a(f"v_pk_add_f32 {v(acc+2,2)}, {v(p+2,2)}, {v(r0+2,2)}")
                if j == n - 1:
                    self.joint(t)
                    a(f"v_and_b32 {v(t)}, {s(S_TM)}, {v(t)}")
                    a(f"v_cmp_ne_u32 vcc, 0, {v(t)}")
            a("s_mov_b64 exec, vcc")
        for ld in X: a(ld[0])
        if between:
            between()
            if self.pfirst:
                check(X, 1)
                a(f"s_cbranch_execz {Lo}")
                for ld in X: a(ld[0])
        a(f"s_mov_b32 {s(S_CNT)}, {SPIN}")
        a(f"{L}:")
        for ld in Y: a(ld[0])
        check(X)
        a(f"s_cbranch_execz {Lo}")
        for ld in X: a(ld[0])
        check(Y)
        a(f"s_sub_u32 {s(S_CNT)}, {s(S_CNT)}, 1")
        a(f"s_cbranch_scc1 {Lo}")
        a(f"s_cbranch_execnz {L}")
        a(f"{Lo}:")
        a("s_mov_b64 exec, -1")
    def gather8(self, loads, vT, t, acc, vaddr, soff, lg, between=None):
        a = self.a; L = self.lab("lp"); Lo = self.lab("lpx")
        P, R, J, B, A = t+1, t+2, t+3, t+4, t+5
        for ld in loads: a(ld[0])
        if between: between()
        first = True
        for j, (_, r0, n) in enumerate(loads):
            a(f"s_waitcnt vmcnt({len(loads)-1-j})")
            for w in range(r0, r0+n):
                if first: a(f"v_xor_b32 {v(t)}, {v(w)}, {v(vT)}"); first = False
                else: a(f"v_bitop3_b32 {v(t)}, {v(w)}, {v(vT)}, {v(t)} bitop3:0xbe")
            if j == len(loads) - 1:
                a(f"v_and_b32 {v(t)}, {s(S_TM)}, {v(t)}")
                a(f"v_cmp_ne_u32 vcc, 0, {v(t)}")
            if j >= 1:
                p = loads[0][1] if j == 1 else acc
                a(f"v_pk_add_f32 {v(acc,2)}, {v(p,2)}, {v(r0,2)}"); a(f"v_pk_add_f32 {v(acc+2,2)}, {v(p+2,2)}, {v(r0+2,2)}")
        a(f"s_cbranch_vccz {Lo}")
        for r in range(acc, acc+4): a(f"v_mov_b32 {v(r)}, 0")
        a(f"v_mov_b32 {v(P)}, 0")
        def check(q):
            a(f"v_xor_b32 {v(t)}, {v(q)}, {v(vT)}")
            for w in range(q+1, q+4): a(f"v_bitop3_b32 {v(t)}, {v(w)}, {v(vT)}, {v(t)} bitop3:0xbe")
            a(f"v_and_b32 {v(t)}, {s(S_TM)}, {v(t)}")
            a(f"v_cmp_eq_u32 vcc, 0, {v(t)}")
        for j, (_, r0, n) in enumerate(loads):
            check(r0)
            a("s_mov_b64 exec, vcc")
            a(f"v_pk_add_f32 {v(acc,2)}, {v(acc,2)}, {v(r0,2)}"); a(f"v_pk_add_f32 {v(acc+2,2)}, {v(acc+2,2)}, {v(r0+2,2)}")
            a("s_not_b64 exec, vcc")
            a(f"v_or_b32 {v(P)}, {1 << j}, {v(P)}")
            a("s_mov_b64 exec, -1")
        Q = loads[0][1]
        a(f"v_mov_b32 {v(R)}, {v(P)}")
        a(f"v_cmp_ne_u32 vcc, 0, {v(P)}")
        a(f"s_mov_b32 {s(S_CNT)}, {SPIN*4}")
        a("s_mov_b64 exec, vcc")
        a(f"{L}:")
        a(f"v_ffbl_b32 {v(J)}, {v(R)}")
        a(f"v_lshl_add_u32 {v(A)}, {v(J)}, {lg}, {v(vaddr)}")
        a(f"buffer_load_dwordx4 {v(Q,4)}, {v(A)}, {s(R0,4)}, {s(soff)} offen sc1")
        a(f"v_lshlrev_b32 {v(B)}, {v(J)}, 1")
        a(f"v_xor_b32 {v(R)}, {v(R)}, {v(B)}")
        a(f"s_sub_u32 {s(S_CNT)}, {s(S_CNT)}, 1")
        a(f"s_cbranch_scc1 {Lo}")
        a("s_waitcnt vmcnt(0)")
        check(Q)
        a(f"s_and_saveexec_b64 {s(S_T2,2)}, vcc")
        a(f"v_xor_b32 {v(P)}, {v(P)}, {v(B)}")
        a(f"v_pk_add_f32 {v(acc,2)}, {v(acc,2)}, {v(Q,2)}"); a(f"v_pk_add_f32 {v(acc+2,2)}, {v(acc+2,2)}, {v(Q+2,2)}")
        a(f"s_mov_b64 exec, {s(S_T2,2)}")
        a(f"v_cmp_eq_u32 {s(S_T2,2)}, 0, {v(R)}")
        a(f"v_cmp_ne_u32 vcc, 0, {v(P)}")
        a(f"v_cndmask_b32 {v(R)}, {v(R)}, {v(P)}, {s(S_T2,2)}")
        a("s_mov_b64 exec, vcc")
        a(f"s_cbranch_execnz {L}")
        a(f"{Lo}:")
        a("s_mov_b64 exec, -1")
    def lds_wait(self, off, val, vz, t, extra=(), sleep=1):
        a = self.a; L = self.lab("lw"); Lo = self.lab("lwx")
        a(f"s_mov_b32 {s(S_CNT)}, {SPIN*16}")
        a(f"{L}:")
        a(f"ds_read_b32 {v(t)}, {v(vz)} offset:{off}")
        for e in extra: a(e)
        a("s_waitcnt lgkmcnt(0)")
        a(f"v_readfirstlane_b32 {s(S_T3)}, {v(t)}")
        a(f"s_cmp_ge_u32 {s(S_T3)}, {val}")
        a(f"s_cbranch_scc1 {Lo}")
        a(f"s_sub_u32 {s(S_CNT)}, {s(S_CNT)}, 1")
        a(f"s_cbranch_scc1 {Lo}")
        if sleep: a(f"s_sleep {sleep}")
        a(f"s_branch {L}")
        a(f"{Lo}:")
    def pub(self, text, sfast):
        a = self.a
        La, Lb = self.lab("pl"), self.lab("pj")
        a(f"s_cmp_eq_u32 {s(sfast)}, 2"); a(f"s_cbranch_scc1 {La}")
        a(text + " sc1"); a(f"s_branch {Lb}")
        a(f"{La}:"); a(text); a(f"{Lb}:")
    def trig(self, what, vz, t):
        if what == "q": self.lds_wait(L_QFLAG, 1, vz, t)
        elif what == "ml": self.lds_wait(L_MLCNT, 8, vz, t)
        elif isinstance(what, int) and what > 0: self.lds_wait(L_PROG, what, vz, t)
    def streamer(self):
        a = self.a
        VK, VV, VZ, VT, VT2 = 1, 2, 3, 4, 5
        Q, S, DT, KB = 8, 12, 20, 36
        slot = lambda i: KB + 4*i
        ACC, AO, B = slot(16), slot(18), slot(23)
        SB = S_T0
        a("; ==== streamer: lane offsets (K: quad-permuted 1 KiB, V: linear), descriptors, paced load sequence ====")
        a(f"s_lshl_b32 {s(SB)}, {s(S_H)}, 23"); a(f"s_lshl_b32 {s(S_T1)}, {s(S_S)}, 18"); a(f"s_or_b32 {s(SB)}, {s(SB)}, {s(S_T1)}")
        a(f"s_lshl_b32 {s(S_T1)}, {s(S_WAVE)}, {self.il}"); a(f"s_or_b32 {s(SB)}, {s(SB)}, {s(S_T1)}")
        if self.rot == 1: a(f"s_lshl_b32 {s(S_M+9)}, {s(S_S)}, 15")
        if self.rot == 2: a(f"s_add_u32 {s(S_M+9)}, {s(S_S)}, {s(S_H)}"); a(f"s_lshl_b32 {s(S_M+9)}, {s(S_M+9)}, 15")
        a(f"v_lshlrev_b32 {v(VV)}, 4, v0")
        a(f"v_and_b32 {v(VT)}, 0xc0, {v(VV)}"); a(f"v_lshlrev_b32 {v(VT)}, 2, {v(VT)}")
        a(f"v_lshrrev_b32 {v(VK)}, 4, v0"); a(f"v_lshlrev_b32 {v(VK)}, 6, {v(VK)}")
        a(f"v_and_b32 {v(VT2)}, 48, {v(VV)}")
        a(f"v_or3_b32 {v(VK)}, {v(VK)}, {v(VT)}, {v(VT2)}")
        a(f"v_mov_b32 {v(VZ)}, 0")
        a("s_waitcnt lgkmcnt(0)")
        self.srd(R0, P_K, 0x4000000); self.srd(R1, P_V, 0x4000000)
        def off(i):
            if self.il == 12: return (i >> 2) * 32768, (i & 3) * 1024
            return i * 8192, 0
        last_so = [None]
        VWA, VWD = 6, 7
        SA, SW0, SW1, SSTR = S_M+5, S_M+6, S_M+7, S_M+4
        def regs(it):
            k, i = it
            return {'K': slot(i), 'V': slot(i % 16), 'A': slot(28 + i), 'W': (DT + 4*i if self.wpos > 40 else slot(28 + i))}[k]
        def setup_a():
            a("; stage-1 tile geometry")
            a(f"s_lshr_b32 {s(S_M)}, {s(S_WAVE)}, 1")
            self.s1_geom(True)
            a(f"s_and_b32 {s(S_T3)}, {s(S_WAVE)}, 1"); a(f"s_lshl_b32 {s(S_T3)}, {s(S_T3)}, 2"); a(f"s_add_u32 {s(S_T3)}, {s(S_T3)}, {s(S_M+3)}")
            a(f"s_mul_i32 {s(S_T3)}, {s(S_T3)}, {s(SSTR)}"); a(f"s_lshl_b32 {s(SA)}, {s(S_T2)}, 7"); a(f"s_add_u32 {s(SA)}, {s(SA)}, {s(S_T3)}")
            a(f"v_and_b32 {v(VT)}, 56, v0"); a(f"v_mul_u32_u24 {v(VT)}, {s(SSTR)}, {v(VT)}")
            a(f"v_and_b32 {v(VT2)}, 0x70, {v(VV)}"); a(f"v_add_u32 {v(VWA)}, {v(VT)}, {v(VT2)}")
            if self.afake:
                lg = 3 + self.afake
                a(f"v_lshrrev_b32 {v(VT)}, {lg}, v0"); a(f"v_mul_u32_u24 {v(VT)}, {s(SSTR)}, {v(VT)}")
                a(f"v_and_b32 {v(VT2)}, {(16 << lg) - 16:#x}, {v(VV)}"); a(f"v_add_u32 {v(VWA)}, {v(VT)}, {v(VT2)}")
                a(f"s_and_b32 {s(S_T3)}, {s(S_S)}, 15"); a(f"s_lshl_b32 {s(S_T3)}, {s(S_T3)}, 3"); a(f"s_add_u32 {s(S_T3)}, {s(S_T3)}, {s(S_WAVE)}")
                a(f"s_and_b32 {s(SA)}, {s(S_T3)}, {(8 >> self.afake) - 1}"); a(f"s_lshl_b32 {s(SA)}, {s(SA)}, {7 + self.afake}")
                a(f"s_lshr_b32 {s(S_T3)}, {s(S_T3)}, {3 - self.afake}"); a(f"s_lshl_b32 {s(S_T3)}, {s(S_T3)}, {5 - self.afake}")
                a(f"s_mul_i32 {s(S_T3)}, {s(S_T3)}, {s(SSTR)}"); a(f"s_add_u32 {s(SA)}, {s(SA)}, {s(S_T3)}")
                a(f"s_cmp_ge_u32 {s(S_S)}, 16"); a(f"s_cselect_b32 {s(S_T3)}, 7, 16"); a(f"s_lshl_b32 {s(S_T3)}, {s(S_T3)}, 6"); a(f"s_mul_i32 {s(S_T3)}, {s(S_T3)}, {s(S_H)}"); a(f"s_and_b32 {s(S_T3)}, {s(S_T3)}, 0xffffff80")
                a(f"s_add_u32 {s(SA)}, {s(SA)}, {s(S_T3)}")
                a(f"s_lshl_b32 {s(SSTR)}, {s(SSTR)}, {3 - self.afake}")
        def setup_w():
            a(f"s_and_b32 {s(S_T2)}, {s(S_S)}, 3"); a(f"s_lshl_b32 {s(S_T2)}, {s(S_T2)}, 1"); a(f"s_lshr_b32 {s(S_T3)}, {s(S_WAVE)}, 2")
            a(f"s_add_u32 {s(S_T2)}, {s(S_T2)}, {s(S_T3)}"); a(f"s_lshl_b32 {s(S_T2)}, {s(S_T2)}, 7")
            a(f"s_lshl_b32 {s(SW0)}, {s(S_H)}, 19"); a(f"s_lshr_b32 {s(S_T3)}, {s(S_S)}, 2"); a(f"s_lshl_b32 {s(S_T3)}, {s(S_T3)}, 10")
            a(f"s_add_u32 {s(SW0)}, {s(SW0)}, {s(S_T3)}"); a(f"s_add_u32 {s(SW0)}, {s(SW0)}, {s(S_T2)}")
            self.fblock(SW1, S_T3)
            a(f"s_lshl_b32 {s(SW1)}, {s(SW1)}, 15"); a(f"s_add_u32 {s(SW1)}, {s(SW1)}, {s(S_T2)}")
            a(f"s_and_b32 {s(S_T2)}, {s(S_WAVE)}, 3")
            a(f"s_lshl_b32 {s(S_T3)}, {s(S_T2)}, 16"); a(f"s_add_u32 {s(SW0)}, {s(SW0)}, {s(S_T3)}")
            a(f"s_lshl_b32 {s(S_T3)}, {s(S_T2)}, 13"); a(f"s_add_u32 {s(SW1)}, {s(SW1)}, {s(S_T3)}")
            self.srd(R2, P_WO, 0x400000); self.srd(R3, P_WD, 0x1c0000)
            a(f"v_lshrrev_b32 {v(VT)}, 3, v0"); a(f"v_and_b32 {v(VT2)}, 0x70, {v(VV)}")
            a(f"v_lshl_add_u32 {v(VWD)}, {v(VT)}, 10, {v(VT2)}"); a(f"v_lshl_add_u32 {v(VWA)}, {v(VT)}, 13, {v(VT2)}")
        def load(it):
            k, i = it
            r = v(regs(it), 4)
            if k in 'KV':
                so, imm = off(i)
                if so != last_so[0]:
                    if self.rot:
                        a(f"s_add_u32 {s(S_T1)}, {s(S_M+9)}, {so}"); a(f"s_and_b32 {s(S_T1)}, {s(S_T1)}, 0x38000"); a(f"s_or_b32 {s(S_T1)}, {s(S_T1)}, {s(SB)}")
                    else: a(f"s_add_u32 {s(S_T1)}, {s(SB)}, {so}")
                    last_so[0] = so
                a(f"buffer_load_dwordx4 {r}, {v(VV if k == 'V' else VK)}, {s(R1 if k == 'V' else R0,4)}, {s(S_T1)} offen offset:{imm} {self.kvpol}")
            elif k == 'A':
                if i == 0: setup_a()
                a(f"buffer_load_dwordx4 {r}, {v(VWA)}, {s(R2,4)}, {s(SA)} offen {self.wpol}")
                if i < 3: a(f"s_add_u32 {s(SA)}, {s(SA)}, {s(SSTR)}")
            else:
                if i < 2: a(f"buffer_load_dwordx4 {r}, {v(VWA)}, {s(R2,4)}, {s(SW0)} offen {self.wpol}")
                else: a(f"buffer_load_dwordx4 {r}, {v(VWD)}, {s(R3,4)}, {s(SW1)} offen {self.wpol}")
                if i == 0: a(f"s_add_u32 {s(SW0)}, {s(SW0)}, 0x40000")
        def count(off_):
            a(f"v_mov_b32 {v(VT2)}, 1"); a("s_mov_b64 exec, 1"); a(f"ds_add_u32 {v(VZ)}, {v(VT2)} offset:{off_}"); a("s_mov_b64 exec, -1")
        def put_a():
            a("; stage-1 tiles -> LDS")
            a(f"s_lshl_b32 {s(S_T2)}, {s(S_WAVE)}, 12"); a(f"v_add_u32 {v(VT)}, {s(S_T2)}, {v(VV)}")
            for i in range(4): a(f"ds_write_b128 {v(VT)}, {v(regs(('A', i)),4)} offset:{L_A + 1024*i}")
            count(L_ACNT)
            if not self.wdma: setup_w()
        def put_w():
            a(f"s_lshr_b32 {s(S_T2)}, {s(S_WAVE)}, 2"); a(f"s_mul_i32 {s(S_T2)}, {s(S_T2)}, 12288")
            a(f"s_and_b32 {s(S_T3)}, {s(S_WAVE)}, 3"); a(f"s_lshl_b32 {s(S_T3)}, {s(S_T3)}, 10"); a(f"s_add_u32 {s(S_T2)}, {s(S_T2)}, {s(S_T3)}")
            a(f"v_add_u32 {v(VT)}, {s(S_T2)}, {v(VV)}")
            for i in range(3): a(f"ds_write_b128 {v(VT)}, {v(regs(('W', i)),4)} offset:{L_W + 4096*i}")
            count(L_WCNT)
        def qk(j):
            for m in range(4):
                a(f"v_mfma_f32_16x16x32_bf16 {v(DT+4*m,4)}, {v(slot(4*j+m),4)}, {v(Q,4)}, 0")
            if self.qk2:
                if j == 0:
                    for m in range(1, 4):
                        a(f"s_mov_b32 {s(P_X+2*m)}, {(15 << 4*m) * 0x10001:#x}"); a(f"s_mov_b32 {s(P_X+2*m+1)}, {(15 << 4*m) * 0x10001:#x}")
                for k in range(1, 4):
                    for m in range(4):
                        b = (m + k) & 3
                        a(f"v_add_f32_dpp {v(DT+5*m)}, {v(DT+4*m+b)}, {v(DT+5*m)} row_ror:{(4*(m-b)) & 15} row_mask:0xf bank_mask:0xf")
                for m in range(1, 4):
                    a(f"v_cndmask_b32 {v(S+j)}, {v(DT if m == 1 else S+j)}, {v(DT+5*m)}, {s(P_X+2*m,2)}")
                return
            for k in range(1, 4):
                for m in range(4):
                    b = (m + k) & 3
                    other = DT+4*m+m if k == 1 else S+j
                    a(f"v_add_f32_dpp {v(S+j)}, {v(DT+4*m+b)}, {v(other)} row_ror:{(4*(m-b)) & 15} row_mask:0xf bank_mask:{1<<m:#x}")
        M, Lr = DT, DT+1
        def sm_scale(k):
            if k == 0: a(f"s_mov_b32 {s(S_M+8)}, {SCALE:#x}")
            x, y = S+2*k, S+2*k+1
            self.rbf2(x, y, x, y, VT)
            a(f"v_mul_f32 {v(x)}, {s(S_M+8)}, {v(x)}"); a(f"v_mul_f32 {v(y)}, {s(S_M+8)}, {v(y)}")
            self.rbf2(x, y, x, y, VT)
        def sm_max():
            a("; true row max over this wave's 128 keys")
            a(f"v_max3_f32 {v(M)}, {v(S)}, {v(S+1)}, {v(S+2)}"); a(f"v_max3_f32 {v(M)}, {v(M)}, {v(S+3)}, {v(S+4)}")
            a(f"v_max3_f32 {v(M)}, {v(M)}, {v(S+5)}, {v(S+6)}"); a(f"v_max_f32 {v(M)}, {v(M)}, {v(S+7)}")
            self.ror("v_max_f32", [M], (4, 8)); self.rows_all("v_max_f32", M, VT)
        def sm_exp():
            a(f"s_mov_b32 {s(S_T2)}, {LOG2E:#x}")
            for k in range(8): a(f"v_sub_f32 {v(S+k)}, {v(S+k)}, {v(M)}")
            for k in range(8): a(f"v_mul_f32 {v(S+k)}, {s(S_T2)}, {v(S+k)}")
            for k in range(8): a(f"v_exp_f32 {v(S+k)}, {v(S+k)}")
        def sm_sum():
            a(f"v_add_f32 {v(Lr)}, {v(S)}, {v(S+1)}")
            for k in range(2, 8): a(f"v_add_f32 {v(Lr)}, {v(Lr)}, {v(S+k)}")
            self.ror("v_add_f32", [Lr], (4, 8)); self.rows_all("v_add_f32", Lr, VT)
            a(f"s_lshl_b32 {s(S_T2)}, {s(S_WAVE)}, 5")
            a(f"v_lshl_add_u32 {v(VT)}, v0, 2, {s(S_T2)}"); a(f"v_mov_b32 {v(VT2)}, 1")
            a("s_mov_b64 exec, 15")
            a(f"ds_write2_b32 {v(VT)}, {v(M)}, {v(Lr)} offset0:{L_ML//4} offset1:{L_ML//4+4}")
            a("s_mov_b64 exec, 1")
            a(f"ds_add_u32 {v(VZ)}, {v(VT2)} offset:{L_MLCNT}")
            a("s_mov_b64 exec, -1")
        def zero_acc():
            a(f"s_mul_i32 {s(S_T2)}, {s(S_WAVE)}, {OSTR}")
            a(f"v_and_b32 {v(VT)}, 15, v0"); a(f"v_mul_u32_u24 {v(VT)}, 144, {v(VT)}"); a(f"v_and_b32 {v(VWD)}, 48, v0")
            a(f"v_add3_u32 {v(VWD)}, {v(VWD)}, {v(VT)}, {s(S_T2)}")
            for r in range(ACC, ACC+8): a(f"v_mov_b32 {v(r)}, 0")
            for r in range(AO, AO+16): a(f"v_mov_b32 {v(r)}, 0")
            if self.plo:
                for r in range(DT, DT+16): a(f"v_mov_b32 {v(r)}, 0")
        AL = DT
        def build_lo(j):
            a(f"v_cvt_pk_bf16_f32 {v(VT)}, {v(S+2*j)}, {v(S+2*j+1)}")
            self.unpack(Q, Q+1, VT)
            a(f"v_sub_f32 {v(Q)}, {v(S+2*j)}, {v(Q)}"); a(f"v_sub_f32 {v(Q+1)}, {v(S+2*j+1)}, {v(Q+1)}")
            a(f"v_cvt_pk_bf16_f32 {v(VT)}, {v(Q)}, {v(Q+1)}")
            for m in range(4):
                for e in range(4):
                    n = (4*(e-m)) & 15
                    ctl = f"row_ror:{n}" if n else "quad_perm:[0,1,2,3]"
                    a(f"v_mov_b32_dpp {v(AL+4*e+m)}, {v(VT)} {ctl} row_mask:0xf bank_mask:{1<<e:#x}")
        def build_a(j):
            a(f"v_cvt_pk_bf16_f32 {v(VT)}, {v(S+2*j)}, {v(S+2*j+1)}")
            for m in range(4):
                for e in range(4):
                    n = (4*(e-m)) & 15
                    ctl = f"row_ror:{n}" if n else "quad_perm:[0,1,2,3]"
                    a(f"v_mov_b32_dpp {v(AO+4*e+m)}, {v(VT)} {ctl} row_mask:0xf bank_mask:{1<<e:#x}")
        def perm1(j, m, e):
            lo, hi = slot((8*j+m) % 16), slot((8*j+4+m) % 16)
            a(f"v_perm_b32 {v(B+4*e+m)}, {v(hi+(e>>1))}, {v(lo+(e>>1))}, {s(S_HIS if e & 1 else S_LO)}")
        def mfma_pv(e, j):
            acc = ACC + 4*(e >> 2)
            a(f"v_mfma_f32_16x16x32_bf16 {v(acc,4)}, {v(AO+4*(e&3),4)}, {v(B+4*e,4)}, {v(acc,4)}")
            if j < self.plo: a(f"v_mfma_f32_16x16x32_bf16 {v(acc,4)}, {v(AL+4*(e&3),4)}, {v(B+4*e,4)}, {v(acc,4)}")
        def pv_last(j):
            order = [0, 4, 1, 5, 2, 6, 3, 7]
            for k in range(3): perm1(j, 3, order[k])
            for k in range(8):
                mfma_pv(order[k], j)
                if k + 3 < 8: perm1(j, 3, order[k+3])
        def qwait():
            a("; wait for q (B operand of QK^T)")
            a(f"v_and_b32 {v(VT2)}, 3, v0"); a(f"v_lshlrev_b32 {v(VT2)}, 8, {v(VT2)}")
            a(f"v_and_b32 {v(VT)}, 0xc0, {v(VV)}"); a(f"v_lshrrev_b32 {v(VT)}, 2, {v(VT)}")
            a(f"v_and_b32 {v(DT)}, 0x300, {v(VV)}"); a(f"v_lshrrev_b32 {v(DT)}, 2, {v(DT)}")
            a(f"v_or3_b32 {v(VT2)}, {v(VT2)}, {v(VT)}, {v(DT)}")
            self.stamp(2)
            if not self.cut: self.lds_wait(L_QFLAG, 1, VZ, VT, [f"ds_read_b128 {v(Q,4)}, {v(VT2)} offset:{L_Q}"])
            self.stamp(3)
        kv = [('K', i) for i in range(32)] + [('V', i) for i in range(32)]
        seq = kv[:self.apos] + [('A', i) for i in range(4)] + kv[self.apos:self.wpos] + [('W', i) for i in range(0 if self.wdma else 3)] + kv[self.wpos:]
        if self.agap:
            seq = [x for x in seq if x[0] != 'A']
            for i in range(4): seq.insert(self.apos + i*(self.agap + 1), ('A', i))
        pos = {it: n for n, it in enumerate(seq)}
        N = len(seq)
        def owrite():
            a("; last PV group, partial o -> LDS")
            self.stamp(7)
            pv_last(3)
            a(f"ds_write_b128 {v(VWD)}, {v(ACC,4)} offset:{L_O}")
            a(f"ds_write_b128 {v(VWD)}, {v(ACC+4,4)} offset:{L_O+64}")
            a("s_waitcnt lgkmcnt(0)")
            a("s_barrier")
        p0 = pos[('K', self.n0)]
        tasks = [(p0, -1, [], qwait)]
        for j in range(8):
            tasks.append((p0 + j, pos[('K', 4*j+3)], [('K', 4*j+m) for m in range(4)], lambda j=j: qk(j)))
            if j & 1: tasks.append((0, -1, [], lambda j=j: sm_scale(j >> 1)))
        for f in (sm_max, sm_exp, sm_sum, zero_acc): tasks.append(('next', -1, [], f))
        for j in range(4):
            tasks.append(('next', -1, [], lambda j=j: build_a(j)))
            if j < self.plo: tasks.append(('next', -1, [], lambda j=j: build_lo(j)))
            for m in range(3): tasks.append(('next', pos[('V', 8*j+4+m)], [('V', 8*j+m), ('V', 8*j+4+m)], lambda j=j, m=m: [perm1(j, m, e) for e in range(8)]))
            tasks.append(('next', pos[('V', 8*j+7)], [('V', 8*j+3), ('V', 8*j+7)], (lambda j=j: pv_last(j)) if j < 3 else owrite))
        side = [(0, pos[('A', 3)], [('A', i) for i in range(4)], put_a)]
        if not self.wdma: side.append((0, pos[('W', 2)], [('W', i) for i in range(3)], put_w))
        trigs = {pos[kv[t]]: t for t in (self.nq, self.nm, self.g_trig) if isinstance(t, int) and t > 0}
        def Dn(n):
            if self.ramp and n < len(self.ramp): return self.ramp[n]
            return self.D2 if (self.D2 and n >= self.nD2) else self.D
        nbar = (self.ramp[0] if self.ramp else self.D) - 1
        busy = {}; landed = -1
        def run(n):
            for q in (side, tasks):
                did = False
                while q and q[0][1] <= landed:
                    e = q[0][0]
                    if e == 'next':
                        if did and n < 99 and self.smooth: break
                    elif e > n: break
                    t = q.pop(0); t[3](); did = True
                    for x in t[2]: busy.pop(regs(x))
        NM = N - 3 if self.wlate else N
        SK, SJ, VB, V1 = S_M+10, S_M+11, 164, 167
        if self.ctl:
            a(f"s_mov_b32 {s(SK)}, {self.ctl.get('init', 0)}"); a(f"s_mov_b32 {s(SJ)}, 0"); a(f"v_mov_b32 {v(V1)}, 1")
        for n in range(NM):
            if self.ctl and self.ctl['from'] <= n < self.ctl['to']:
                Lb = self.lab("win"); D = Dn(n)
                two = self.ctl.get('g2')
                top = D + (2 if two else 1)
                if n - top > landed: a(f"s_waitcnt vmcnt({top-1})"); landed = n - top
                if n & 1:
                    a("s_waitcnt lgkmcnt(0)"); a(f"v_readfirstlane_b32 {s(SK)}, {v(VB)}"); a(f"v_readfirstlane_b32 {s(SJ)}, {v(VB+1)}")
                a(f"s_cmp_gt_u32 {s(SK)}, {n}"); a(f"s_cbranch_scc1 {Lb}")
                a(f"s_waitcnt vmcnt({top-2})")
                if two:
                    a(f"s_cmp_gt_u32 {s(SJ)}, {n}"); a(f"s_cbranch_scc1 {Lb}")
                    a(f"s_waitcnt vmcnt({top-3})")
                elif self.ctl['tcap']:
                    a(f"s_cmp_le_u32 {s(SJ)}, {n}"); a(f"s_cbranch_scc1 {Lb}")
                    a(f"s_waitcnt vmcnt({D-2})")
                a(f"{Lb}:")
            elif n - Dn(n) > landed:
                a(f"s_waitcnt vmcnt({Dn(n)-1})"); landed = n - Dn(n)
            assert regs(seq[n]) not in busy, (n, seq[n])
            busy[regs(seq[n])] = n
            load(seq[n])
            if self.trace and seq[n] in kv:
                m = kv.index(seq[n])
                if m: a("s_waitcnt lgkmcnt(0)"); a(f"v_writelane_b32 v166, s100, {m-1}")
                a("s_memrealtime s[100:101]")
            if n == nbar:
                a(f"s_mov_b32 {s(S_HI)}, 0xffff0000"); a(f"s_mov_b32 {s(S_LO)}, 0x05040100"); a(f"s_mov_b32 {s(S_HIS)}, 0x07060302")
                a("s_barrier")
            if self.ctl and nbar <= n < self.ctl['to']:
                a("s_mov_b64 exec, 1"); a(f"ds_add_u32 {v(VZ)}, {v(V1)} offset:{L_CNT}"); a("s_mov_b64 exec, -1")
                if not n & 1: a(f"ds_read_b64 {v(VB,2)}, {v(VZ)} offset:{L_BOOST}")
            if n in trigs:
                a(f"v_mov_b32 {v(VT)}, {trigs[n]}"); a("s_mov_b64 exec, 1"); a(f"ds_max_u32 {v(VZ)}, {v(VT)} offset:{L_PROG}"); a("s_mov_b64 exec, -1")
            if self.wdma and self.wdrain is None and seq[n] == kv[min(63, self.wpos - 1)]: count(L_WCNT)
            if n == nbar + 1: self.stamp(1)
            if landed == pos[('K', 31)]: self.stamp(4)
            run(n)
        issued = NM
        while landed < N - 1:
            landed += 1
            now = issued < N and landed == NM - self.wlate
            sig = self.wdrain is not None and N - 1 - landed == self.wdrain
            if not now and not sig and not any(q and q[0][1] <= landed for q in (side, tasks)): continue
            a(f"s_waitcnt vmcnt({issued - 1 - landed})")
            if sig: count(L_WCNT)
            if now:
                for n in range(NM, N):
                    busy[regs(seq[n])] = n; load(seq[n])
                issued = N
            run(99)
        assert not tasks and not side
        self.stamp(8)
        if self.trace:
            a(f"s_mul_i32 {s(S_T0)}, {s(S_WG)}, 8"); a(f"s_add_u32 {s(S_T0)}, {s(S_T0)}, {s(S_WAVE)}")
            a(f"s_lshl_b32 {s(S_T0)}, {s(S_T0)}, 8"); a(f"s_add_u32 {s(S_T0)}, {s(S_T0)}, {STAMP + (1<<20):#x}")
            a(f"v_lshl_add_u32 {v(VT)}, v0, 2, {s(S_T0)}")
            a(f"global_store_dword {v(VT)}, v166, {s(P_WS,2)}")
        self.finish(VT)

    def prefetch(self, VA, R):
        a = self.a
        Lp = self.lab("nopf")
        a(f"s_cmp_ge_u32 {s(S_S)}, {self.pf}"); a(f"s_cbranch_scc1 {Lp}")
        a(f"s_getpc_b64 {s(R4,2)}")
        a(f"Lpc:")
        a(f"s_sub_u32 {s(R4)}, {s(R4)}, Lpc-{KN}"); a(f"s_subb_u32 {s(R4+1)}, {s(R4+1)}, 0")
        a(f"s_mov_b32 {s(R4+2)}, Lcode_end-{KN}"); a(f"s_mov_b32 {s(R4+3)}, 0x20000")
        a(f"s_and_b32 {s(S_T0)}, {s(S_WAVE)}, 3"); a(f"s_lshl_b32 {s(S_T0)}, {s(S_T0)}, 10")
        for k in range(5):
            a(f"buffer_load_dwordx4 {v(R+4*k,4)}, {v(VA)}, {s(R4,4)}, {s(S_T0)} offen")
            if k < 4: a(f"s_add_u32 {s(S_T0)}, {s(S_T0)}, 4096")
        a(f"{Lp}:")

    def s1_geom(self, loader):
        a = self.a
        SZ, SCB, SRB, SROW, SSTR = S_M, S_M+1, S_M+2, S_M+3, S_M+4
        Lf, Lj = self.lab("s1ffn"), self.lab("s1join")
        a(f"s_cmp_ge_u32 {s(S_S)}, 16"); a(f"s_cbranch_scc1 {Lf}")
        a(f"s_and_b32 {s(SCB)}, {s(S_S)}, 7"); a(f"s_lshr_b32 {s(SRB)}, {s(S_S)}, 3")
        a(f"s_lshl_b32 {s(SROW)}, {s(SRB)}, 2"); a(f"s_add_u32 {s(SROW)}, {s(SROW)}, {s(SZ)}"); a(f"s_lshl_b32 {s(SROW)}, {s(SROW)}, 6")
        if loader:
            a(f"s_mov_b32 {s(SSTR)}, 8192")
            a(f"s_lshl_b32 {s(S_T2)}, {s(S_H)}, 3"); a(f"s_add_u32 {s(S_T2)}, {s(S_T2)}, {s(SCB)}")
            self.srd(R2, P_WQ, 0x400000)
        a(f"s_branch {Lj}")
        a(f"{Lf}:")
        if self.hello in (1, 3, 5): a(f"s_sub_u32 {s(S_T2)}, {s(S_S)}, 16"); a(f"s_lshl_b32 {s(S_T3)}, {s(S_H)}, 4"); a(f"s_add_u32 {s(S_T2)}, {s(S_T2)}, {s(S_T3)}")
        else: a(f"s_sub_u32 {s(S_T2)}, {s(S_S)}, 16"); a(f"s_lshl_b32 {s(S_T2)}, {s(S_T2)}, 3"); a(f"s_add_u32 {s(S_T2)}, {s(S_T2)}, {s(S_H)}")
        a(f"s_lshr_b32 {s(SCB)}, {s(S_T2)}, 2"); a(f"s_and_b32 {s(SRB)}, {s(S_T2)}, 3")
        a(f"s_and_b32 {s(S_T3)}, {s(SZ)}, 1")
        a(f"s_lshl_b32 {s(SROW)}, {s(SRB)}, 1"); a(f"s_add_u32 {s(SROW)}, {s(SROW)}, {s(S_T3)}"); a(f"s_lshl_b32 {s(SROW)}, {s(SROW)}, 6")
        if loader:
            a(f"s_mov_b32 {s(SSTR)}, 3584")
            a(f"s_mov_b32 {s(S_T2)}, {s(SCB)}")
            a(f"s_cmp_ge_u32 {s(SZ)}, 2")
            a(f"s_cselect_b32 {s(R2)}, {s(P_WU)}, {s(P_WG)}"); a(f"s_cselect_b32 {s(R2+1)}, {s(P_WU+1)}, {s(P_WG+1)}")
            a(f"s_cmp_lt_u32 {s(SCB)}, 28")
            a(f"s_cselect_b32 {s(R2+2)}, 0x1c0000, 0"); a(f"s_mov_b32 {s(R2+3)}, 0x20000")
        a(f"{Lj}:")

    VZ, VT, VA, T = 1, 2, 3, 4
    def stage1(self):
        a = self.a
        VZ, VT, VA, T = self.VZ, self.VT, self.VA, self.T
        X, XF, XR, ACC, W = 12, 16, 24, 32, 40
        SZ, SCB, SRB, SROW, SSTR = S_M, S_M+1, S_M+2, S_M+3, S_M+4
        a(f"s_and_b32 {s(SZ)}, {s(S_WAVE)}, 3")
        a(f"v_mov_b32 {v(VZ)}, 0"); a(f"v_lshlrev_b32 {v(VA)}, 4, v0")
        if self.pf and not self.pfe: self.prefetch(VA, W+32)
        self.s1_geom(False)
        a("s_waitcnt lgkmcnt(0)")
        self.srd(R0, P_WS, WS_USED); self.srd(R1, P_X, 1024)
        a(f"buffer_load_dwordx4 {v(X,4)}, {v(VA)}, {s(R1,4)}, 0 offen")
        a(f"buffer_load_dword {v(VT)}, {v(VZ)}, {s(R0,4)}, 0 offen offset:{EPOCH}")
        Lb = self.lab("s1b")
        a(f"s_cmp_lg_u32 {s(SZ)}, 0"); a(f"s_cbranch_scc1 {Lb}")
        a(f"v_lshlrev_b32 {v(T+2)}, 2, v0")
        a("s_mov_b64 exec, 0xffff")
        a(f"ds_write_b32 {v(T+2)}, {v(VZ)}")
        a("s_mov_b64 exec, -1")
        a("s_waitcnt lgkmcnt(0)")
        a(f"{Lb}:")
        a("s_barrier")
        a("s_waitcnt vmcnt(1)")
        self.stamp(1)
        self.layernorm(X, XF, T)
        a(f"s_lshr_b32 {s(S_T0)}, {s(SROW)}, 1")
        a(f"v_lshrrev_b32 {v(T)}, 3, v0"); a(f"v_lshl_add_u32 {v(T)}, {v(T)}, 2, {s(S_T0)}")
        for j in range(8): a(f"ds_bpermute_b32 {v(XR+j)}, {v(T)}, {v(XF+j)}")
        a("s_waitcnt vmcnt(0)")
        a(f"v_add_u32 {v(VT)}, 1, {v(VT)}"); a(f"v_readfirstlane_b32 {s(S_E)}, {v(VT)}")
        a(f"v_and_b32 {v(VT)}, 0x3ff, {v(VT)}")
        if self.hello:
            Lh = self.lab("hello")
            a(f"s_cmp_lg_u32 {s(SZ)}, 0"); a(f"s_cbranch_scc1 {Lh}")
            a(f"s_getreg_b32 {s(S_M+5)}, hwreg(HW_REG_XCC_ID, 0, 4)"); a(f"s_lshl_b32 {s(S_T0)}, {s(S_E)}, 4"); a(f"s_or_b32 {s(S_M+5)}, {s(S_M+5)}, {s(S_T0)}")
            a(f"s_lshl_b32 {s(S_M+7)}, {s(S_H)}, 7"); a(f"s_add_u32 {s(S_M+7)}, {s(S_M+7)}, {XBOX:#x}")
            a(f"s_lshl_b32 {s(S_T0)}, {s(S_S)}, 2"); a(f"s_add_u32 {s(S_T0)}, {s(S_T0)}, {s(S_M+7)}")
            a(f"v_mov_b32 {v(T+2)}, {s(S_M+5)}")
            a("s_mov_b64 exec, 1")
            a(f"buffer_store_dword {v(T+2)}, {v(VZ)}, {s(R0,4)}, {s(S_T0)} offen" + ("" if self.hello >= 4 else " sc1"))
            a("s_mov_b64 exec, -1")
            a(f"{Lh}:")
        a(f"s_lshl_b32 {s(S_T0)}, {s(SZ)}, 13"); a(f"v_add_u32 {v(T)}, {s(S_T0)}, {v(VA)}")
        self.lds_wait(L_ACNT, 8, VZ, T+1)
        for j in range(8): a(f"ds_read_b128 {v(W+4*j,4)}, {v(T)} offset:{L_A+1024*j}")
        for j in range(8):
            self.lgkm(7-j)
            for k in range(4):
                self.unpack(T, T+1, W+4*j+k)
                op = "v_mul_f32" if j == 0 else "v_fmac_f32"
                a(f"{op} {v(ACC+2*k)}, {v(XR+j)}, {v(T)}"); a(f"{op} {v(ACC+2*k+1)}, {v(XR+j)}, {v(T+1)}")
        self.fold("v_permlane32_swap_b32", [(ACC+e, ACC+e+4) for e in range(4)])
        self.fold("v_permlane16_swap_b32", [(ACC+e, ACC+e+2) for e in range(2)])
        self.ror("v_add_f32", [ACC, ACC+1], (8,))
        a(f"s_lshl_b32 {s(S_T0)}, {s(SZ)}, 8")
        a(f"v_and_b32 {v(T)}, 7, v0"); a(f"v_lshl_add_u32 {v(T)}, {v(T)}, 5, {s(S_T0)}")
        a(f"v_lshrrev_b32 {v(T+1)}, 4, v0"); a(f"v_lshl_add_u32 {v(T)}, {v(T+1)}, 3, {v(T)}")
        a(f"v_mov_b32 {v(T+1)}, 1")
        a("s_mov_b32 exec_lo, 0xff00ff"); a("s_mov_b32 exec_hi, 0xff00ff")
        a(f"ds_write_b64 {v(T)}, {v(ACC,2)} offset:{L_S1}")
        a("s_mov_b64 exec, 1")
        a(f"ds_add_u32 {v(VZ)}, {v(T+1)} offset:{L_S1CNT}")
        a("s_mov_b64 exec, -1")
        self.stamp(2)

    def sw0(self):
        a = self.a
        VZ, VT, VA, T = self.VZ, self.VT, self.VA, self.T
        XF, W = 16, 40
        SZ, SCB, SRB = S_M, S_M+1, S_M+2
        def hello_check():
            a(f"v_and_b32 {v(T+4)}, 31, v0"); a(f"v_lshlrev_b32 {v(T+4)}, 2, {v(T+4)}")
            a(f"buffer_load_dword {v(T+5)}, {v(T+4)}, {s(R0,4)}, {s(S_M+7)} offen sc1")
            a("s_waitcnt vmcnt(0)")
            a(f"v_cmp_ne_u32 vcc, {s(S_M+5)}, {v(T+5)}")
            a("s_cmp_eq_u64 vcc, 0"); a(f"s_cselect_b32 {s(S_M+6)}, 2, 1")
        if self.hello:
            assert self.hello >= 4
            self.lds_wait(L_S1CNT, 4, VZ, T+1)
            hello_check()
        a(f"v_and_b32 {v(T)}, 0xf0, {v(VA)}"); a(f"v_and_b32 {v(T+2)}, 16, v0"); a(f"v_lshl_add_u32 {v(T)}, {v(T+2)}, 5, {v(T)}")
        self.lds_wait(L_S1CNT, 4, VZ, T+1, [f"ds_read_b128 {v(W,4)}, {v(T)} offset:{L_S1}", f"ds_read_b128 {v(W+4,4)}, {v(T)} offset:{L_S1+256}"])
        a(f"v_pk_add_f32 {v(W,2)}, {v(W,2)}, {v(W+4,2)}"); a(f"v_pk_add_f32 {v(W+2,2)}, {v(W+2,2)}, {v(W+6,2)}")
        Lf, Lj = self.lab("c1ffn"), self.lab("c1join")
        a(f"s_cmp_ge_u32 {s(S_S)}, 16"); a(f"s_cbranch_scc1 {Lf}")
        for r in range(4): a(f"v_mov_b32 {v(W+4+r)}, {v(W+r)}")
        self.fold("v_permlane16_swap_b32", [(W+r, W+4+r) for r in range(4)])
        a(f"v_and_b32 {v(T)}, 0xf0, {v(VA)}")
        a(f"s_lshl_b32 {s(S_T1)}, {s(S_H)}, 12"); a(f"s_lshl_b32 {s(S_T2)}, {s(SRB)}, 11"); a(f"s_add_u32 {s(S_T1)}, {s(S_T1)}, {s(S_T2)}")
        a(f"s_lshl_b32 {s(S_T2)}, {s(SCB)}, 8"); a(f"s_add_u32 {s(S_T1)}, {s(S_T1)}, {s(S_T2)}"); a(f"s_add_u32 {s(S_T1)}, {s(S_T1)}, {QBOX:#x}")
        a("s_mov_b64 exec, 0xffff")
        a(f"s_branch {Lj}")
        a(f"{Lf}:")
        a(f"v_and_b32 {v(T)}, 8, v0"); a(f"v_lshlrev_b32 {v(T)}, 7, {v(T)}")
        a(f"v_and_b32 {v(T+1)}, 0x70, {v(VA)}"); a(f"v_lshl_add_u32 {v(T+1)}, {v(T+2)}, 3, {v(T+1)}"); a(f"v_add_u32 {v(T)}, {v(T)}, {v(T+1)}")
        a(f"s_lshl_b32 {s(S_T1)}, {s(SCB)}, 11"); a(f"s_lshl_b32 {s(S_T2)}, {s(SRB)}, 8"); a(f"s_add_u32 {s(S_T1)}, {s(S_T1)}, {s(S_T2)}")
        a(f"s_add_u32 {s(S_T1)}, {s(S_T1)}, {GBOX:#x}")
        a("s_mov_b32 exec_lo, -1"); a("s_mov_b32 exec_hi, 0")
        a(f"{Lj}:")
        self.tag(range(W, W+4), VT)
        if self.hello:
            if self.hello in (2, 4): a(f"s_cmp_ge_u32 {s(S_S)}, 16"); a(f"s_cselect_b32 {s(S_M+8)}, 1, {s(S_M+6)}")
            elif self.hello == 3: a(f"s_mov_b32 {s(S_M+8)}, 1")
            else: a(f"s_mov_b32 {s(S_M+8)}, {s(S_M+6)}")
            self.pub(f"buffer_store_dwordx4 {v(W,4)}, {v(T)}, {s(R0,4)}, {s(S_T1)} offen", S_M+8)
        else: a(f"buffer_store_dwordx4 {v(W,4)}, {v(T)}, {s(R0,4)}, {s(S_T1)} offen sc1")
        a("s_mov_b64 exec, -1")
        a(f"s_lshl_b32 {s(S_T0)}, {s(S_H)}, 12"); a(f"s_add_u32 {s(S_T0)}, {s(S_T0)}, {QBOX:#x}")
        W2 = W + 8
        self.trig(self.nq, VZ, T+1)
        self.poll([(f"buffer_load_dwordx4 {v(W2+4*k,4)}, {v(VA)}, {s(R0,4)}, {s(S_T0)} offen offset:{1024*k} sc1", W2+4*k, 4) for k in range(4)], VT, T)
        for k in range(4): a(f"v_pk_add_f32 {v(W2+2*k,2)}, {v(W2+2*k,2)}, {v(W2+8+2*k,2)}")
        for k in range(4): a(f"v_cvt_pk_bf16_f32 {v(XF+k)}, {v(W2+2*k)}, {v(W2+2*k+1)}")
        a(f"v_lshlrev_b32 {v(T)}, 3, v0"); a(f"v_mov_b32 {v(T+1)}, 1")
        a(f"ds_write_b64 {v(T)}, {v(XF,2)} offset:{L_Q}"); a(f"ds_write_b64 {v(T)}, {v(XF+2,2)} offset:{L_Q+512}")
        a("s_waitcnt lgkmcnt(0)")
        a(f"ds_write_b32 {v(VZ)}, {v(T+1)} offset:{L_QFLAG}")
        self.stamp(3)
        if self.cut == 1: return self.finish(T)
        if self.hello:
            Lk = self.lab("known")
            a(f"s_cmp_eq_u32 {s(S_M+6)}, 2"); a(f"s_cbranch_scc1 {Lk}")
            hello_check()
            a(f"{Lk}:")
        MW, LW, M, L, MA, LA, MB, LB = XF, XF+1, XF+2, XF+3, W, W+1, W+2, W+3
        a("; softmax statistics: workgroup -> head group -> per-wave factors")
        a(f"v_and_b32 {v(T)}, 28, v0"); a(f"v_lshlrev_b32 {v(T)}, 3, {v(T)}")
        a(f"v_and_b32 {v(T+2)}, 3, v0"); a(f"v_lshl_add_u32 {v(T)}, {v(T+2)}, 2, {v(T)}")
        self.lds_wait(L_MLCNT, 8, VZ, T+1, [f"ds_read2_b32 {v(MW,2)}, {v(T)} offset0:{L_ML//4} offset1:{L_ML//4+4}"])
        self.stamp(4)
        a(f"s_mov_b32 {s(S_T2)}, {LOG2E:#x}")
        a(f"v_mov_b32 {v(M)}, {v(MW)}")
        self.ror("v_max_f32", [M], (4, 8))
        a(f"v_mov_b32 {v(T)}, {v(M)}"); a(f"v_permlane16_swap_b32 {v(M)}, {v(T)}"); a(f"v_max_f32 {v(M)}, {v(M)}, {v(T)}")
        a(f"v_sub_f32 {v(L)}, {v(MW)}, {v(M)}"); a(f"v_mul_f32 {v(L)}, {s(S_T2)}, {v(L)}"); a(f"v_exp_f32 {v(L)}, {v(L)}")
        a(f"v_mul_f32 {v(L)}, {v(L)}, {v(LW)}")
        self.ror("v_add_f32", [L], (4, 8))
        a(f"v_mov_b32 {v(T)}, {v(L)}"); a(f"v_permlane16_swap_b32 {v(L)}, {v(T)}"); a(f"v_add_f32 {v(L)}, {v(L)}, {v(T)}")
        a(f"s_mov_b32 {s(S_TM)}, 0x3ff")
        self.tag([M, L], VT)
        if self.fast and not self.hello:
            a(f"s_getreg_b32 {s(S_M+5)}, hwreg(HW_REG_XCC_ID, 0, 4)"); a(f"s_lshl_b32 {s(S_M+5)}, {s(S_M+5)}, 12")
            a(f"v_or_b32 {v(M)}, {s(S_M+5)}, {v(M)}")
        a(f"v_lshlrev_b32 {v(T)}, 3, v0")
        a(f"s_lshl_b32 {s(S_T0)}, {s(S_H)}, 10"); a(f"s_add_u32 {s(S_T0)}, {s(S_T0)}, {MLBOX:#x}")
        a(f"s_lshl_b32 {s(S_T1)}, {s(S_S)}, 5"); a(f"s_add_u32 {s(S_T1)}, {s(S_T1)}, {s(S_T0)}")
        a("s_mov_b64 exec, 15")
        if self.hello: self.pub(f"buffer_store_dwordx2 {v(M,2)}, {v(T)}, {s(R0,4)}, {s(S_T1)} offen", S_M+6)
        else: a(f"buffer_store_dwordx2 {v(M,2)}, {v(T)}, {s(R0,4)}, {s(S_T1)} offen sc1")
        a("s_mov_b64 exec, -1")
        self.trig(self.nm, VZ, T+1)
        self.poll([(f"buffer_load_dwordx2 {v(MA,2)}, {v(T)}, {s(R0,4)}, {s(S_T0)} offen sc1", MA, 2),
                   (f"buffer_load_dwordx2 {v(MB,2)}, {v(T)}, {s(R0,4)}, {s(S_T0)} offen offset:512 sc1", MB, 2)], VT, T+1, quad=True)
        if self.fast and not self.hello:
            a(f"v_xor_b32 {v(T+2)}, {s(S_M+5)}, {v(MA)}"); a(f"v_xor_b32 {v(T+3)}, {s(S_M+5)}, {v(MB)}")
            a(f"v_or_b32 {v(T+2)}, {v(T+2)}, {v(T+3)}"); a(f"v_and_b32 {v(T+2)}, 0xf000, {v(T+2)}")
            a(f"v_cmp_ne_u32 vcc, 0, {v(T+2)}")
            a("s_cmp_eq_u64 vcc, 0"); a(f"s_cselect_b32 {s(S_M+6)}, 2, 1")
        a(f"v_and_b32 {v(MA)}, {s(S_HI)}, {v(MA)}"); a(f"v_and_b32 {v(MB)}, {s(S_HI)}, {v(MB)}")
        a(f"v_max_f32 {v(M)}, {v(MA)}, {v(MB)}")
        self.ror("v_max_f32", [M], (4, 8)); self.rows_all("v_max_f32", M, T)
        for r in (MA, MB, MW): a(f"v_sub_f32 {v(r)}, {v(r)}, {v(M)}")
        for r in (MA, MB, MW): a(f"v_mul_f32 {v(r)}, {s(S_T2)}, {v(r)}")
        for r in (MA, MB, MW): a(f"v_exp_f32 {v(r)}, {v(r)}")
        a(f"v_mul_f32 {v(L)}, {v(MA)}, {v(LA)}"); a(f"v_fmac_f32 {v(L)}, {v(MB)}, {v(LB)}")
        self.ror("v_add_f32", [L], (4, 8)); self.rows_all("v_add_f32", L, T)
        a(f"v_rcp_f32 {v(L)}, {v(L)}"); a(f"v_mul_f32 {v(MW)}, {v(MW)}, {v(L)}")
        a(f"v_and_b32 {v(T)}, 31, v0"); a(f"v_lshlrev_b32 {v(T)}, 2, {v(T)}"); a(f"v_mov_b32 {v(T+1)}, {s(S_M+6) if self.fast else 1}")
        a(f"ds_write_b32 {v(T)}, {v(MW)} offset:{L_F}")
        a("s_waitcnt lgkmcnt(0)")
        a(f"ds_write_b32 {v(VZ)}, {v(T+1)} offset:{L_FFLAG}")
        a("s_waitcnt lgkmcnt(0)")
        self.stamp(5)
        self.finish(T)

    def fblock(self, dst, t):
        a = self.a
        a(f"s_lshl_b32 {s(dst)}, {s(S_H)}, 3"); a(f"s_lshr_b32 {s(t)}, {s(S_S)}, 2"); a(f"s_add_u32 {s(dst)}, {s(dst)}, {s(t)}")

    def sw1(self):
        a = self.a
        VZ, VT, VA, T = self.VZ, self.VT, self.VA, self.T
        XC, VO, G, W = 10, 11, 12, 16
        self.fblock(S_T0, S_T1)
        a(f"s_lshl_b32 {s(S_T0)}, {s(S_T0)}, 10"); a(f"s_add_u32 {s(S_T0)}, {s(S_T0)}, {GBOX:#x}")
        self.trig(self.g_trig, VZ, T+1)
        self.poll([(f"buffer_load_dwordx4 {v(G,4)}, {v(VA)}, {s(R0,4)}, {s(S_T0)} offen sc1", G, 4)], VT, T)
        self.fold4(G)
        self.rbf1(G, G)
        a(f"v_mov_b32_dpp {v(G+1)}, {v(G)} row_ror:8 row_mask:0xf bank_mask:0xf")
        self.silu_bf(G, G, T)
        a(f"v_mul_f32 {v(G)}, {v(G)}, {v(G+1)}"); a(f"v_cvt_pk_bf16_f32 {v(G)}, {v(G)}, {v(G)}")
        a(f"v_and_b32 {v(T)}, 7, v0"); a(f"v_lshlrev_b32 {v(T)}, 3, {v(T)}")
        a(f"v_lshrrev_b32 {v(T+1)}, 4, v0"); a(f"v_lshl_add_u32 {v(T)}, {v(T+1)}, 1, {v(T)}"); a(f"v_mov_b32 {v(T+1)}, 1")
        a("s_mov_b32 exec_lo, 0xff00ff"); a("s_mov_b32 exec_hi, 0xff00ff")
        a(f"ds_write_b16 {v(T)}, {v(G)} offset:{L_H}")
        a("s_mov_b64 exec, -1")
        a("s_waitcnt lgkmcnt(0)")
        a(f"ds_write_b32 {v(VZ)}, {v(T+1)} offset:{L_HFLAG}")
        self.stamp(3)
        if self.pf2:
            Lp = self.lab("nopf2")
            a(f"s_cmp_lg_u32 {s(S_S)}, 31"); a(f"s_cbranch_scc1 {Lp}")
            a(f"s_getpc_b64 {s(R4,2)}")
            a("Lpc2:")
            a(f"s_sub_u32 {s(R4)}, {s(R4)}, Lpc2-Lsw23"); a(f"s_subb_u32 {s(R4+1)}, {s(R4+1)}, 0")
            a(f"s_mov_b32 {s(R4+2)}, Lcode_end-Lsw23"); a(f"s_mov_b32 {s(R4+3)}, 0x20000")
            a(f"s_mov_b32 {s(S_T0)}, 4096")
            for k in range(7): a(f"buffer_load_dwordx4 {v(W+4*k,4)}, {v(VA)}, {s(R4,4)}, {s(S_T0) if k >= 4 else 0} offen offset:{1024*(k&3)}")
            a(f"{Lp}:")
        Lx = self.lab("sw1end")
        a(f"s_cmp_ge_u32 {s(S_WG)}, {0 if self.cut else 32}"); a(f"s_cbranch_scc1 {Lx}")
        a(f"s_lshl_b32 {s(S_T0)}, {s(S_WG)}, 5")
        a(f"v_and_b32 {v(VO)}, 3, v0"); a(f"v_lshl_add_u32 {v(VO)}, {v(VO)}, 3, {s(S_T0)}")
        a(f"v_lshrrev_b32 {v(T)}, 4, v0"); a(f"v_lshl_add_u32 {v(VO)}, {v(T)}, 1, {v(VO)}")
        a(f"buffer_load_ushort {v(XC)}, {v(VO)}, {s(R1,4)}, 0 offen")
        a(f"s_lshl_b32 {s(S_T0)}, {s(S_WG)}, 13"); a(f"s_add_u32 {s(S_T0)}, {s(S_T0)}, {HBOX:#x}"); a(f"s_add_u32 {s(S_T1)}, {s(S_T0)}, 4096")
        loads = [(f"buffer_load_dwordx4 {v(W+4*j,4)}, {v(VA)}, {s(R0,4)}, {s(S_T0+(j>>2))} offen offset:{1024*(j&3)} sc1", W+4*j, 4) for j in range(8)]
        if self.touch:
            for ld in loads: a(ld[0])
        a("s_waitcnt vmcnt(0)")
        a(f"v_lshlrev_b32 {v(XC)}, 16, {v(XC)}")
        self.srd(R1, P_OUT, 1024)
        if self.otouch: a(f"buffer_load_ushort {v(T+5)}, {v(VO)}, {s(R1,4)}, 0 offen sc1"); a("s_waitcnt vmcnt(0)")
        self.stamp(4)
        a("s_barrier")
        if self.rdelay: self.lds_wait(L_PUB, 2 if self.rdelay >= 3 else 1, VZ, T+1, sleep=0)
        self.stamp(5)
        if self.pipe:
            Y = [(f"buffer_load_dwordx4 {v(W+32+4*j,4)}, {v(VA)}, {s(R0,4)}, {s(S_T0+(j>>2))} offen offset:{1024*(j&3)} sc1", W+32+4*j, 4) for j in range(8)]
            self.poll2(loads, Y, VT, T, G)
        elif self.light: self.gather8(loads, VT, T, G, VA, S_T0, 10)
        else: self.poll(loads, VT, T, acc=G)
        self.stamp(6)
        self.fold4(G)
        self.ror("v_add_f32", [G], (8,))
        self.rbf1(G, G)
        self.silu_bf(G+1, G, T)
        a(f"v_mul_f32_dpp {v(G)}, {v(G+1)}, {v(G)} row_ror:12 row_mask:0xf bank_mask:0xf"); self.rbf1(G, G)
        a(f"v_add_f32 {v(G)}, {v(G)}, {v(XC)}"); a(f"v_cvt_pk_bf16_f32 {v(G)}, {v(G)}, {v(G)}")
        a("s_mov_b32 exec_lo, 0xf000f"); a("s_mov_b32 exec_hi, 0xf000f")
        a(f"buffer_store_short {v(G)}, {v(VO)}, {s(R1,4)}, 0 offen {self.outpol}")
        a(f"s_cmp_lg_u32 {s(S_WG)}, 0"); a(f"s_cbranch_scc1 {Lx}")
        a("s_mov_b64 exec, 1")
        a(f"v_mov_b32 {v(T)}, {s(S_E)}")
        a(f"buffer_store_dword {v(T)}, {v(VZ)}, {s(R0,4)}, 0 offen offset:{EPOCH} {self.outpol}")
        if self.amp:
            pa, pb, k = self.amp
            a("s_waitcnt vmcnt(0)"); self.stamp(7); a("s_waitcnt lgkmcnt(0)")
            a(f"s_sub_u32 {s(S_T0)}, {s(S_ST+2*pb)}, {s(S_ST+2*pa)}"); a(f"s_mul_i32 {s(S_T0)}, {s(S_T0)}, {k}")
            a(f"s_min_u32 {s(S_T0)}, {s(S_T0)}, 100000")
            a("Lamp:")
            a(f"s_memrealtime {s(S_ST+20,2)}"); a("s_waitcnt lgkmcnt(0)")
            a(f"s_sub_u32 {s(S_T1)}, {s(S_ST+20)}, {s(S_ST+14)}"); a(f"s_cmp_lt_u32 {s(S_T1)}, {s(S_T0)}"); a("s_cbranch_scc1 Lamp")
        a(f"{Lx}:")
        if self.diag: a("s_waitcnt vmcnt(0)")
        self.stamp(7)
        self.finish(T)

    def controller(self, SZ, nbar_):
        a = self.a; c = self.ctl
        VZ = self.VZ
        C, CP, E, X, Y, A, G = 24, 25, 26, 27, 28, 29, 30
        glob = c.get('gw', 0) or c['tcap'] or c.get('g2')
        SG, SPREV, SB8 = R3+1, R3+2, 4
        import struct
        f = lambda x: hex(struct.unpack('<I', struct.pack('<f', x))[0])
        L, Lo, Ls = self.lab("ctl"), self.lab("ctlx"), self.lab("ctls")
        a(f"s_cmp_lg_u32 {s(SZ)}, 0"); a(f"s_cbranch_scc1 {Lo}")
        a(f"s_lshl_b32 {s(S_T0)}, {s(S_H)}, 7")
        a(f"v_and_b32 {v(A)}, 31, v0"); a(f"v_lshlrev_b32 {v(A)}, 2, {v(A)}")
        if glob:
            a(f"v_cmp_gt_u32 vcc, 32, v0"); a(f"v_mov_b32 {v(X)}, 0x400"); a(f"v_cndmask_b32 {v(A)}, {v(X)}, {v(A)}, vcc")
            a(f"s_mov_b32 {s(SPREV)}, 0"); a(f"s_mov_b32 {s(17)}, 0")
            a(f"s_lshl_b32 {s(SPREV+1)}, {s(S_H)}, 2"); a(f"s_add_u32 {s(12)}, {s(P_DBG)}, {s(SPREV+1)}"); a(f"s_addc_u32 {s(13)}, {s(P_DBG+1)}, 0")
        a(f"s_add_u32 {s(S_T0)}, {s(S_T0)}, {PBOX:#x}")
        a(f"s_lshl_b32 {s(S_T1)}, {s(S_S)}, 2"); a(f"s_add_u32 {s(S_T1)}, {s(S_T1)}, {s(S_T0)}")
        a(f"s_lshl_b32 {s(R3)}, {s(S_E)}, 16")
        a(f"ds_read_b32 {v(CP)}, {v(VZ)} offset:{L_CNT}")
        a(f"s_mov_b32 {s(S_CNT)}, 4096")
        a(f"{L}:")
        a(f"ds_read_b32 {v(C)}, {v(VZ)} offset:{L_CNT}")
        a("s_waitcnt lgkmcnt(0)")
        a(f"v_or_b32 {v(E)}, {s(R3)}, {v(C)}")
        a(f"v_readfirstlane_b32 {s(S_T2)}, {v(C)}")
        a("s_mov_b64 exec, 1")
        a(f"buffer_store_dword {v(E)}, {v(VZ)}, {s(R0,4)}, {s(S_T1)} offen")
        a("s_mov_b64 exec, -1")
        a(f"s_cmp_ge_u32 {s(S_T2)}, {8*(c.get('exit', c['to'] - 2) - nbar_)}"); a(f"s_cbranch_scc1 {Lo}")
        a(f"s_sub_u32 {s(S_CNT)}, {s(S_CNT)}, 1"); a(f"s_cbranch_scc1 {Lo}")
        a(f"buffer_load_dword {v(X)}, {v(A)}, {s(R0,4)}, {s(S_T0)} offen sc1")
        if glob:
            Lr = self.lab("ctlr")
            a(f"s_cmp_lg_u32 {s(S_S)}, 5"); a(f"s_cbranch_scc1 {Lr}")
            if c.get('plain'):
                for k in range(8): a(f"s_load_dword {s(SB8+k)}, {s(P_WS,2)}, {PBOX + 0x800 + 128*k:#x} glc")
            else: a(f"s_load_dwordx8 {s(SB8,8)}, {s(P_DBG,2)}, 0 glc")
            a(f"{Lr}:")
        a(f"v_add_u32 {v(CP)}, {v(CP)}, {v(C)}"); a(f"v_cvt_f32_u32 {v(CP)}, {v(CP)}")
        a("s_waitcnt vmcnt(0)")
        a(f"ds_read_b32 {v(Y)}, {v(VZ)} offset:{L_CNT}")
        a(f"v_xor_b32 {v(X)}, {s(R3)}, {v(X)}"); a(f"v_cmp_gt_u32 vcc, 0x10000, {v(X)}")
        if glob:
            a(f"v_subrev_u32 {v(G)}, 0x8000, {v(X)}"); a(f"v_cvt_f32_i32 {v(G)}, {v(G)}"); a(f"v_cndmask_b32 {v(G)}, 0, {v(G)}, vcc")
        a(f"v_cvt_f32_u32 {v(X)}, {v(X)}"); a(f"v_cndmask_b32 {v(X)}, 0, {v(X)}, vcc")
        a(f"s_bcnt1_i32_b32 {s(S_T2)}, vcc_lo")
        if glob: a(f"v_readlane_b32 {s(SG)}, {v(G)}, 32")
        self.ror("v_add_f32", [X], (8, 4, 2, 1))
        a(f"v_mov_b32 {v(E)}, {v(X)}"); a(f"v_permlane16_swap_b32 {v(X)}, {v(E)}"); a(f"v_add_f32 {v(X)}, {v(X)}, {v(E)}")
        a(f"v_cvt_f32_u32 {v(E)}, {s(S_T2)}"); a(f"v_rcp_f32 {v(E)}, {v(E)}")
        a("s_waitcnt lgkmcnt(0)")
        a(f"s_cmp_lt_u32 {s(S_T2)}, 24"); a(f"s_cbranch_scc1 {Ls}")
        a(f"v_mul_f32 {v(X)}, {v(X)}, {v(E)}")
        if glob:
            Lr, Lv = self.lab("ctlr"), self.lab("ctlv")
            a(f"v_mov_b32 {v(G)}, {s(SG)}")
            a(f"s_cmp_lg_u32 {s(S_S)}, 5"); a(f"s_cbranch_scc1 {Lr}")
            a(f"v_cvt_u32_f32 {v(E)}, {v(X)}"); a(f"v_readfirstlane_b32 {s(S_T2)}, {v(E)}")
            a(f"s_add_u32 {s(S_T3)}, {s(SPREV)}, {s(17)}"); a(f"s_min_u32 {s(18)}, {s(SPREV)}, {s(17)}"); a(f"s_mov_b32 {s(17)}, {s(SPREV)}")
            a(f"s_sub_u32 {s(14)}, {s(S_T2)}, {s(SPREV)}"); a(f"s_mov_b32 {s(SPREV)}, {s(S_T2)}")
            if c.get('plain'):
                a(f"v_or_b32 {v(E)}, {s(R3)}, {v(E)}")
                a("s_mov_b64 exec, 1")
                a(f"buffer_store_dword {v(E)}, {v(VZ)}, {s(R0,4)}, {s(S_T0)} offen offset:2048")
                a("s_mov_b64 exec, -1")
                for k in range(8):
                    a(f"s_xor_b32 {s(SB8+k)}, {s(SB8+k)}, {s(R3)}"); a(f"s_cmp_lt_u32 {s(SB8+k)}, 0x10000"); a(f"s_cselect_b32 {s(SB8+k)}, {s(SB8+k)}, 0")
            else: a(f"s_atomic_add {s(14)}, {s(12,2)}, 0x0")
            a(f"s_min_u32 {s(15)}, {s(SB8)}, {s(SB8+1)}"); a(f"s_add_u32 {s(16)}, {s(SB8)}, {s(SB8+1)}")
            for k in range(2, 8): a(f"s_min_u32 {s(15)}, {s(15)}, {s(SB8+k)}"); a(f"s_add_u32 {s(16)}, {s(16)}, {s(SB8+k)}")
            a(f"s_min_u32 {s(15)}, {s(15)}, {s(18)}"); a(f"s_cmp_eq_u32 {s(15)}, 0"); a(f"s_cbranch_scc1 {Lr}")
            a(f"s_lshl_b32 {s(S_T3)}, {s(S_T3)}, 2")
            a(f"s_sub_u32 {s(16)}, {s(16)}, {s(S_T3)}"); a(f"s_ashr_i32 {s(16)}, {s(16)}, 3")
            a(f"s_add_u32 {s(16)}, {s(16)}, {0x8000 + c.get('gb', 0)}"); a(f"s_or_b32 {s(16)}, {s(16)}, {s(R3)}")
            a(f"v_mov_b32 {v(E)}, {s(16)}")
            a("s_mov_b64 exec, 1")
            a(f"buffer_store_dword {v(E)}, {v(VZ)}, {s(R0,4)}, {s(S_T0)} offen offset:1024")
            a("s_mov_b64 exec, -1")
            a(f"{Lr}:")
        a(f"v_fma_f32 {v(X)}, {v(CP)}, -0.5, {v(X)}")
        if c.get('gw', 0): a(f"v_fmac_f32 {v(X)}, {f(c['gw'])}, {v(G)}")
        a(f"v_lshrrev_b32 {v(Y)}, 3, {v(Y)}"); a(f"v_add_u32 {v(Y)}, {nbar_ + 1 + c['lead']}, {v(Y)}")
        for (dst, src, sign, th, g, cap) in ((E, X, 1, c['bth'], c['bg'], c['bcap']), (X, G, 1, *c['g2']) if c.get('g2') else (X, G, -1, c['tth'], c['tg'], c['tcap'])):
            if not cap: continue
            t = CP
            a(f"v_mul_f32 {v(t)}, {f(sign*g)}, {v(src)}")
            if c.get('k0') and dst == E: a(f"v_add_f32 {v(t)}, {f(c['k0'])}, {v(t)}")
            a(f"v_min_f32 {v(t)}, {f(cap)}, {v(t)}"); a(f"v_max_f32 {v(t)}, 0, {v(t)}")
            a(f"v_cmp_{'lt' if sign > 0 else 'gt'}_f32 vcc, {f(sign*th)}, {v(src)}")
            a(f"v_cvt_u32_f32 {v(t)}, {v(t)}"); a(f"v_add_u32 {v(t)}, {v(t)}, {v(Y)}")
            a(f"v_cndmask_b32 {v(dst)}, 0, {v(t)}, vcc")
        if c.get('g2'):
            a(f"v_min_u32 {v(CP)}, {v(E)}, {v(X)}"); a(f"v_max_u32 {v(X)}, {v(E)}, {v(X)}"); a(f"v_mov_b32 {v(E)}, {v(CP)}")
        a("s_mov_b64 exec, 1")
        a(f"ds_write_b64 {v(VZ)}, {v(E,2)} offset:{L_BOOST}")
        a("s_mov_b64 exec, -1")
        a(f"{Ls}:")
        a(f"v_mov_b32 {v(CP)}, {v(C)}")
        a(f"s_branch {L}")
        a(f"{Lo}:")
        if glob and self.diag: a(f"s_mov_b32 {s(S_ST+20)}, {s(16)}"); a(f"s_mov_b32 {s(S_ST+22)}, {s(15)}")

    def sw23(self):
        a = self.a
        VZ, VT, VA, T = self.VZ, self.VT, self.VA, self.T
        VP, VH, VB, VB2, OUT, SUM, W, HB, AW, AD, F, DD = 10, 11, 12, 13, 16, 20, 24, 56, 72, 104, 120, 152
        SZ, SFB, SCOL, SPUB, SP0, SHB, SLW = S_M+8, S_M+9, S_M+10, S_M+11, S_M, S_M+12, S_M+13
        a(f"s_and_b32 {s(SZ)}, {s(S_WAVE)}, 1")
        self.fblock(SFB, S_T1)
        a(f"s_and_b32 {s(SCOL)}, {s(S_S)}, 3"); a(f"s_lshl_b32 {s(SCOL)}, {s(SCOL)}, 1"); a(f"s_add_u32 {s(SCOL)}, {s(SCOL)}, {s(SZ)}")
        a(f"s_mul_i32 {s(SLW)}, {s(SZ)}, 12288")
        a(f"v_lshrrev_b32 {v(T)}, 4, v0"); a(f"v_lshl_add_u32 {v(T)}, {v(T)}, 10, {s(SLW)}")
        a(f"v_bfe_u32 {v(T+2)}, v0, 2, 2"); a(f"v_lshl_add_u32 {v(T)}, {v(T+2)}, 7, {v(T)}")
        a(f"v_and_b32 {v(T+2)}, 3, v0"); a(f"v_lshl_add_u32 {v(T)}, {v(T+2)}, 3, {v(T)}")
        a(f"s_lshl_b32 {s(S_T0)}, {s(S_H)}, 16"); a(f"s_add_u32 {s(S_T0)}, {s(S_T0)}, {OBOX:#x}")
        a(f"s_lshl_b32 {s(SPUB)}, {s(S_S)}, 11"); a(f"s_add_u32 {s(SPUB)}, {s(SPUB)}, {s(S_T0)}")
        a(f"s_lshr_b32 {s(S_T1)}, {s(S_S)}, 2"); a(f"s_lshl_b32 {s(S_T1)}, {s(S_T1)}, 8"); a(f"s_add_u32 {s(SP0)}, {s(S_T0)}, {s(S_T1)}")
        for k in range(1, 8): a(f"s_add_u32 {s(SP0+k)}, {s(SP0)}, {8192*k}")
        a(f"v_lshrrev_b32 {v(VP)}, 4, v0"); a(f"v_and_b32 {v(T+2)}, 0xf0, {v(VA)}"); a(f"v_lshl_add_u32 {v(VP)}, {v(VP)}, 11, {v(T+2)}")
        a(f"s_lshl_b32 {s(SHB)}, {s(SCOL)}, 15"); a(f"s_lshl_b32 {s(S_T1)}, {s(SFB)}, 7"); a(f"s_add_u32 {s(SHB)}, {s(SHB)}, {s(S_T1)}")
        a(f"s_add_u32 {s(SHB)}, {s(SHB)}, {HBOX:#x}")
        a(f"v_and_b32 {v(VH)}, 3, v0"); a(f"v_lshlrev_b32 {v(VH)}, 13, {v(VH)}")
        a(f"v_and_b32 {v(T+2)}, 4, v0"); a(f"v_lshl_add_u32 {v(VH)}, {v(T+2)}, 4, {v(VH)}")
        a(f"v_and_b32 {v(VB)}, 48, v0"); a(f"v_add_u32 {v(VH)}, {v(VH)}, {v(VB)}")
        def tr_ad():
            for t in range(4):
                for hf in range(2):
                    a(f"ds_read_b64_tr_b16 {v(AD+4*t+2*hf,2)}, {v(T)} offset:{L_W + 8192 + 512*hf + 32*t}")
        def tr_aw(t):
            for kk in range(2):
                for hf in range(2):
                    a(f"ds_read_b64_tr_b16 {v(AW+8*t+4*kk+2*hf,2)}, {v(T)} offset:{L_W + 4096*kk + 512*hf + 32*t}")
        def ffn_tags():
            a("s_mov_b32 exec_lo, 0x100010"); a("s_mov_b32 exec_hi, 0x100010")
            for t in range(4):
                self.tag(range(DD+4*t, DD+4*t+4), VT, dst=range(OUT, OUT+4))
                if t < 3: a("s_lshl_b64 exec, exec, 1")
            a("s_mov_b64 exec, -1")
        def wprep(less=0):
            if self.wprog:
                assert self.wsplit == 12
                a(f"s_waitcnt vmcnt({17 - less})")
                tr_ad()
                self.lgkm(0)
                for t in range(4): a(f"v_mfma_f32_16x16x32_bf16 {v(DD+4*t,4)}, {v(AD+4*t,4)}, {v(HB,4)}, 0")
                ffn_tags()
                for kk in range(2):
                    a(f"s_waitcnt vmcnt({13 - 4*kk - less})")
                    for t in range(4):
                        for hf in range(2):
                            a(f"ds_read_b64_tr_b16 {v(AW+8*t+4*kk+2*hf,2)}, {v(T)} offset:{L_W + 4096*kk + 512*hf + 32*t}")
                self.stamp(3)
                return
            if self.wdma:
                a(f"s_waitcnt vmcnt({9 if self.wsplit == 12 else 8})")
                tr_ad(); tr_aw(0)
                self.lgkm(4)
                for t in range(4): a(f"v_mfma_f32_16x16x32_bf16 {v(DD+4*t,4)}, {v(AD+4*t,4)}, {v(HB,4)}, 0")
                for t in range(1, 4): tr_aw(t)
                ffn_tags()
                self.stamp(3)
                return
            self.lds_wait(L_WCNT, 8, VZ, T+2)
            tr_ad()
            self.lds_wait(L_HFLAG, 1, VZ, T+2, [f"ds_read_b128 {v(HB,4)}, {v(VB)} offset:{L_H}"])
            for t in range(4): a(f"v_mfma_f32_16x16x32_bf16 {v(DD+4*t,4)}, {v(AD+4*t,4)}, {v(HB,4)}, 0")
            for t in range(4):
                tr_aw(t)
                if t == 1: a("s_waitcnt lgkmcnt(0)")
            ffn_tags()
            a("s_waitcnt lgkmcnt(0)")
            self.stamp(3)
        if self.wdma:
            VWA, VWD, SW0, SW1 = 14, 15, R4, R4+1
            a(f"v_lshrrev_b32 {v(T+1)}, 3, v0"); a(f"v_and_b32 {v(T+2)}, 0x70, {v(VA)}")
            a(f"v_lshl_add_u32 {v(VWD)}, {v(T+1)}, 10, {v(T+2)}")
            a(f"s_mul_i32 {s(S_T1)}, {s(SZ)}, {8*144}"); a(f"v_mul_u32_u24 {v(T+1)}, 144, {v(T+1)}"); a(f"v_add3_u32 {v(VWA)}, {v(T+1)}, {v(T+2)}, {s(S_T1)}")
            a(f"s_lshl_b32 {s(SW0)}, {s(S_H)}, 19"); a(f"s_lshr_b32 {s(S_T1)}, {s(S_S)}, 2"); a(f"s_lshl_b32 {s(S_T1)}, {s(S_T1)}, 14"); a(f"s_add_u32 {s(SW0)}, {s(SW0)}, {s(S_T1)}")
            a(f"s_lshl_b32 {s(S_T1)}, {s(SCOL)}, 7"); a(f"s_add_u32 {s(SW0)}, {s(SW0)}, {s(S_T1)}")
            a(f"s_lshl_b32 {s(SW1)}, {s(SFB)}, 15"); a(f"s_add_u32 {s(SW1)}, {s(SW1)}, {s(S_T1)}")
            a(f"s_add_u32 {s(SLW)}, {s(SLW)}, {L_W}")
            self.srd(R1, P_WO, 0x400000); self.srd(R2, P_WD, 0x1c0000)
            def touch_w():
                a("s_mov_b64 exec, 1")
                for h in range(4):
                    a(f"s_add_u32 {s(S_T1)}, {s(SW0)}, {0x20000*h}")
                    a(f"buffer_load_dword {v(T+3)}, {v(VZ)}, {s(R1,4)}, {s(S_T1)} offen {self.wpol}")
                a(f"buffer_load_dword {v(T+3)}, {v(VZ)}, {s(R2,4)}, {s(SW1)} offen {self.wpol}")
                a("s_mov_b64 exec, -1")
            if self.ctl: self.controller(SZ, nbar_=(self.ramp[0] if self.ramp else self.D) - 1)
            if self.wtouch == 1: touch_w()
            self.lds_wait(L_HFLAG, 1, VZ, T+2, [f"ds_read_b128 {v(HB,4)}, {v(VB)} offset:{L_H}"])
        worder = list(range(8, 12)) + list(range(8))
        def wload(js):
            for j in js:
                a(f"s_add_u32 m0, {s(SLW)}, {1024*j}")
                if j < 8:
                    a(f"buffer_load_dwordx4 {v(VWD)}, {s(R1,4)}, {s(SW0)} offen {self.wpol} lds")
                    a(f"s_add_u32 {s(SW0)}, {s(SW0)}, {0x20000 - 8192 if j & 1 else 8192:#x}")
                else:
                    a(f"buffer_load_dwordx4 {v(VWD)}, {s(R2,4)}, {s(SW1)} offen {self.wpol} lds")
                    a(f"s_add_u32 {s(SW1)}, {s(SW1)}, 8192")
        late = self.wpos > 56 or self.wdma
        if not late: wprep()
        if self.cut: return self.finish(T)
        if self.wtouch == 2: touch_w()
        loads = [(f"buffer_load_dwordx4 {v(W+4*k,4)}, {v(VP)}, {s(R0,4)}, {s(SP0+k)} offen sc1", W+4*k, 4) for k in range(8)]
        if self.touch and True:
            for ld in loads: a(ld[0])
        self.lds_wait(L_FFLAG, 1, VZ, T+2, [f"ds_read_b128 {v(F+4*w,4)}, {v(VZ)} offset:{L_F+16*w}" for w in range(8)])
        a(f"s_mov_b32 {s(S_M+14)}, {s(S_T3)}")
        if self.wtouch == 3: touch_w()
        a(f"s_lshl_b32 {s(S_T0)}, {s(SZ)}, 10"); a(f"v_add_u32 {v(VA)}, {s(S_T0)}, {v(VA)}")
        a(f"s_lshl_b32 {s(S_T0)}, {s(SZ)}, 7"); a(f"v_add_u32 {v(VB2)}, {s(S_T0)}, {v(VB)}"); a(f"v_lshl_add_u32 {v(T+1)}, v0, 1, {s(S_T0)}")
        if self.touch: a("s_waitcnt vmcnt(0)")
        if self.wdma and self.wsplit:
            self.lds_wait(L_WCNT, 8, VZ, T+2, sleep=0)
            wload(worder[:self.wsplit])
        self.stamp(4)
        if self.solo: a(f"v_mov_b32 {v(T+2)}, 1")
        a("s_barrier")
        self.stamp(5)
        for w in range(8): a(f"ds_read_b128 {v(W+4*w,4)}, {v(VWA)} offset:{L_O+OSTR*w}")
        for w in range(8):
            self.lgkm(7-w)
            for p in (0, 2):
                if w == 0: a(f"v_pk_mul_f32 {v(SUM+p,2)}, {v(W+p,2)}, {v(F+p,2)}")
                else: a(f"v_pk_fma_f32 {v(SUM+p,2)}, {v(W+4*w+p,2)}, {v(F+4*w+p,2)}, {v(SUM+p,2)}")
        if self.fast: a(f"s_cmp_eq_u32 {s(S_M+14)}, 2")
        self.tag(range(SUM, SUM+4), VT, dst=range(F, F+4))
        if self.fast:
            La, Lb = self.lab("h1l"), self.lab("h1j")
            a(f"s_cbranch_scc1 {La}")
            a(f"buffer_store_dwordx4 {v(F,4)}, {v(VA)}, {s(R0,4)}, {s(SPUB)} offen sc1")
            a(f"s_branch {Lb}")
            a(f"{La}:")
            a(f"buffer_store_dwordx4 {v(F,4)}, {v(VA)}, {s(R0,4)}, {s(SPUB)} offen")
            a(f"{Lb}:")
        else: a(f"buffer_store_dwordx4 {v(F,4)}, {v(VA)}, {s(R0,4)}, {s(SPUB)} offen sc1")
        self.stamp(6)
        if self.wdma: wload(worder[self.wsplit:])
        pre = late and (self.prepoll or self.wdma)
        if late and not pre: wprep()
        if self.solo:
            BO = HB
            L1, L2 = self.lab("solo1"), self.lab("solo2")
            breads = [f"ds_read_b128 {v(BO,4)}, {v(VB)} offset:{L_OB}", f"ds_read_b128 {v(BO+4,4)}, {v(VB)} offset:{L_OB+64}"]
            a(f"s_cmp_lg_u32 {s(SZ)}, 0"); a(f"s_cbranch_scc1 {L1}")
            if self.solo == 2:
                yr = [AD+4*k for k in range(4)] + [F+4+4*k for k in range(4)]
                Y = [(f"buffer_load_dwordx4 {v(yr[k],4)}, {v(VP)}, {s(R0,4)}, {s(SP0+k)} offen sc1", yr[k], 4) for k in range(8)]
                self.poll2(loads, Y, VT, T+3, SUM, between=wprep)
            else: self.poll(loads, VT, T+3, acc=SUM, between=wprep)
            self.stamp(7)
            self.fold4(SUM)
            a(f"v_cvt_pk_bf16_f32 {v(SUM)}, {v(SUM)}, {v(SUM)}")
            a(f"ds_write_b16 {v(T+1)}, {v(SUM)} offset:{L_OB}")
            a(f"ds_write_b32 {v(VZ)}, {v(T+2)} offset:{L_OFLAG}")
            for b in breads: a(b)
            a(f"s_branch {L2}")
            a(f"{L1}:")
            wprep(8)
            self.lds_wait(L_OFLAG, 1, VZ, T+2, breads, sleep=0)
            self.stamp(7)
            a(f"{L2}:")
        else:
            BO = W
            if self.pipe:
                yr = [AD+4*k for k in range(4)] + [F+4+4*k for k in range(4)]
                Y = [(f"buffer_load_dwordx4 {v(yr[k],4)}, {v(VP)}, {s(R0,4)}, {s(SP0+k)} offen sc1", yr[k], 4) for k in range(8)]
                self.poll2(loads, Y, VT, T+3, SUM, between=wprep)
                BO = HB
            elif self.light: self.gather8(loads, VT, HB+4, SUM, VP, SP0, 13, between=(wprep if pre else None))
            else: self.poll(loads, VT, T+3, acc=SUM, between=(wprep if pre else None))
            self.stamp(7)
            if self.rdelay == 1: a(f"v_mov_b32 {v(T+2)}, 1"); a(f"ds_write_b32 {v(VZ)}, {v(T+2)} offset:{L_PUB}")
            self.fold4(SUM)
            a(f"v_cvt_pk_bf16_f32 {v(SUM)}, {v(SUM)}, {v(SUM)}")
            a(f"ds_write_b16 {v(T+1)}, {v(SUM)} offset:{L_OB}")
            a(f"ds_read_b128 {v(BO,4)}, {v(VB2)} offset:{L_OB}"); a(f"ds_read_b128 {v(BO+4,4)}, {v(VB2)} offset:{L_OB+64}")
        a("s_mov_b32 exec_lo, 0x10001"); a("s_mov_b32 exec_hi, 0x10001")
        self.lgkm(1)
        for t in range(2): a(f"v_mfma_f32_16x16x32_bf16 {v(DD+4*t,4)}, {v(AW+8*t,4)}, {v(BO,4)}, 0")
        self.lgkm(0)
        for t in range(2): a(f"v_mfma_f32_16x16x32_bf16 {v(DD+4*t,4)}, {v(AW+8*t+4,4)}, {v(BO+4,4)}, {v(DD+4*t,4)}")
        for t in range(2, 4):
            a(f"v_mfma_f32_16x16x32_bf16 {v(DD+4*t,4)}, {v(AW+8*t,4)}, {v(BO,4)}, 0")
            a(f"v_mfma_f32_16x16x32_bf16 {v(DD+4*t,4)}, {v(AW+8*t+4,4)}, {v(BO+4,4)}, {v(DD+4*t,4)}")
        for t in range(4):
            self.tag(range(DD+4*t, DD+4*t+4), VT, dst=range(OUT, OUT+4))
            if t < 3: a("s_lshl_b64 exec, exec, 1")
        a("s_mov_b32 exec_lo, 0xff00ff"); a("s_mov_b32 exec_hi, 0xff00ff")
        a(f"buffer_store_dwordx4 {v(OUT,4)}, {v(VH)}, {s(R0,4)}, {s(SHB)} offen sc1")
        self.stamp(8)
        if self.rdelay >= 2:
            a(f"v_mov_b32 {v(T+2)}, 1"); a("s_mov_b64 exec, 1")
            if self.rdelay != 3: a("s_waitcnt vmcnt(0)")
            a(f"ds_add_u32 {v(VZ)}, {v(T+2)} offset:{L_PUB}")
        if self.fast and self.clean:
            a("s_mov_b64 exec, -1")
            a(f"buffer_store_dwordx4 {v(F,4)}, {v(VA)}, {s(R0,4)}, {s(SPUB)} offen sc1")
        if self.amp2:
            pa, pb, k = self.amp2
            a(f"s_add_u32 {s(S_T0)}, {s(S_WG)}, {s(SZ)}"); a(f"s_cmp_lg_u32 {s(S_T0)}, 0"); a("s_cbranch_scc1 Lamp2x")
            a("s_waitcnt lgkmcnt(0)")
            a(f"s_sub_u32 {s(S_T0)}, {s(S_ST+2*pb)}, {s(S_ST+2*pa)}"); a(f"s_mul_i32 {s(S_T0)}, {s(S_T0)}, {k}")
            a(f"s_min_u32 {s(S_T0)}, {s(S_T0)}, 100000")
            a("Lamp2:")
            a(f"s_memrealtime {s(S_ST+20,2)}"); a("s_waitcnt lgkmcnt(0)")
            a(f"s_sub_u32 {s(S_T1)}, {s(S_ST+20)}, {s(S_ST+16)}"); a(f"s_cmp_lt_u32 {s(S_T1)}, {s(S_T0)}"); a("s_cbranch_scc1 Lamp2")
            a("Lamp2x:")
        if self.diag: a("s_waitcnt vmcnt(0)")
        self.stamp(9)
        self.finish(T)

    def build(self):
        a = self.a
        hdr = open("recurrent_scan__gqa_block_cached__swiglu_ffn__decode.s.ref").read().split("; @launch")[0]
        a(f'.amdgcn_target "amdgcn-amd-amdhsa--gfx950"')
        a(".text"); a(f".globl {KN}"); a(".p2align 8"); a(f".type {KN},@function"); a(f"{KN}:")
        a(f"s_load_dwordx16 {s(4,16)}, s[0:1], 0"); a(f"s_load_dwordx8 {s(20,8)}, s[0:1], 64")
        a("s_cmp_ge_u32 s2, 256"); a("s_cbranch_scc1 Lend")
        if self.diag:
            for k in range(1, 12): a(f"s_mov_b32 {s(S_ST+2*k)}, 0")
        self.stamp(0)
        a("v_lshrrev_b32 v1, 6, v0"); a("v_and_b32 v0, 63, v0"); a(f"v_readfirstlane_b32 {s(S_WAVE)}, v1")
        a(f"s_and_b32 {s(S_H)}, s2, 7"); a(f"s_lshr_b32 {s(S_S)}, s2, 3")
        if self.pf and self.pfe:
            a(f"s_cmp_lt_u32 {s(S_WAVE)}, 8"); a("s_cbranch_scc1 Lstream")
            a("v_lshlrev_b32 v3, 4, v0")
            self.prefetch(3, 72)
            a("s_branch Lservice")
            a("Lstream:")
        else:
            a(f"s_cmp_ge_u32 {s(S_WAVE)}, 8"); a("s_cbranch_scc1 Lservice")
        self.streamer()
        a("Lservice:")
        if self.prio: a("s_setprio 3")
        a(f"s_mov_b32 {s(S_HI)}, 0xffff0000"); a(f"s_mov_b32 {s(S_TM)}, {(1 << self.tagbits) - 1:#x}")
        self.stage1()
        a(f"s_cmp_eq_u32 {s(S_WAVE)}, 9"); a("s_cbranch_scc1 Lsw1")
        a(f"s_cmp_gt_u32 {s(S_WAVE)}, 9"); a("s_cbranch_scc1 Lsw23")
        self.sw0()
        a("Lsw23:"); self.sw23()
        a("Lsw1:"); self.sw1()
        a("Lend:"); a("s_endpgm")
        a("Lcode_end:")
        a(".fill 64, 4, 0xbf800000")
        a('.section .rodata,"a"'); a(".p2align 6"); a(f".amdhsa_kernel {KN}")
        for d in ("next_free_vgpr 168", "next_free_sgpr 102", "accum_offset 168", "group_segment_fixed_size 0", "kernarg_size 96",
                  "user_sgpr_count 2", "user_sgpr_kernarg_segment_ptr 1", "system_sgpr_workgroup_id_x 1", "float_denorm_mode_32 3"):
            a(f".amdhsa_{d}")
        a(".end_amdhsa_kernel")
        return hdr + f"; @launch grid=(256,1,1) block=(768,1,1) lds={LDS_BYTES + self.ldspad}\n" + DOC + a.finalize()

def gen(**kw): return G(**kw).build()
if __name__ == "__main__":
    kw = eval("dict(" + (sys.argv[2] if len(sys.argv) > 2 else "") + ")")
    open(sys.argv[1], "w").write(gen(**kw))
```

```python
import sys
from asmlib import Asm
KN = "recurrent_scan__gqa_block_cached__swiglu_ffn__decode_kernel"

EPOCH = 0
QBOX, MLBOX, PBOX, XBOX, GBOX, OBOX, HBOX = 0x1000, 0x9000, 0xB000, 0xC000, 0x10000, 0x20000, 0xA0000
WS_USED = 0xE0000
STAMP = 128 << 20
L_QFLAG, L_MLCNT, L_FFLAG, L_S1CNT, L_PROG, L_HFLAG, L_ACNT, L_WCNT = 0, 4, 8, 12, 16, 20, 24, 28
L_CNT, L_PUB, L_BOOST, L_OFLAG = 32, 36, 40, 48
L_ML, L_F, L_H, L_Q, L_S1, L_OB, L_O = 64, 320, 448, 512, 1536, 2560, 2816
OSTR = 16*144
L_W = L_O + 8*OSTR
L_A = L_O
LDS_BYTES = L_W + 2*12288
SPIN = 1 << 16

LOG2E = 0x3fb8aa3b
SCALE = 0x3db504f3
EPS = 0x3727c5ac

DOC = '''; ------------------------------------------------------------------------------------------------
;
; Workgroup (H = id & 7, S = id >> 3) owns 1024 keys of KV head H. 12 waves:
;   waves 0-7  "streamers": 128 keys each. K (all of it) then V go straight to registers, a few 1 KiB
;              They also fetch the stage-1 weight tile (wq or w_gate/w_up) into LDS.
;              max / sum inside the head group -> per-wave factors exp(m_w - M) / L
;              workgroup), 64 x 128 tile of wo and 32 x 128 tile of w_down by MFMA, hop 2 to the reducers
;
; use sc1 loads and re-read until a whole message shows the tag. Writers use sc1 (write-through) stores,
; or ordinary stores once all 32 workgroups of the head group have reported the writer's own XCC id.
; ------------------------------------------------------------------------------------------------
'''

def v(i, n=1): return f"v{i}" if n == 1 else f"v[{i}:{i+n-1}]"
def s(i, n=1): return f"s{i}" if n == 1 else f"s[{i}:{i+n-1}]"

S_WG, S_WAVE = 2, 3
P_X, P_K, P_V, P_WQ, P_WO, P_BX, P_WG, P_WU, P_WD, P_OUT, P_DBG, P_WS = range(4, 28, 2)
R0, R1, R2, R3, R4 = 28, 32, 36, 40, 44
S_H, S_S = 48, 49
S_T0, S_T1, S_T2, S_T3 = 50, 51, 52, 53
S_HI, S_TM, S_LO, S_HIS = 54, 55, 56, 57
S_CNT, S_E = 58, 59
S_M = 60
S_ST = 76

class G:
    def __init__(self, D=3, D2=3, nD2=58, n0=28, il=12, kvpol="nt", wpol="nt", diag=0, pf=1, nq=20, nm=56, g_trig=44,
                 outpol="", prio=1, touch=0, cut=0, amp=None, trace=0, ramp=None, wpos=64, apos=1, smooth=1, wlate=0, prepoll=0, fast=1, clean=0, wdma=1, rot=1, agap=1, light=0, ldspad=0, hsleep=0, pipe=1, wsplit=12, wtouch=0, otouch=0, ctl=1, qk2=1, hello=5, wprog=1, tagbits=4, plo=3, amp2=None, pfe=1, pf2=0, afake=0, rdelay=2, wdrain=None, pfirst=0, solo=1, dirty=0, red2=1, ebar=1):
        self.__dict__.update(locals()); del self.__dict__['self']
        self.a = Asm(); self.nlab = 0
        assert self.wdma
        if self.ctl == 1: self.ctl = dict(to=68, bth=0, bg=0.5, bcap=5, tth=4, tg=0.15, tcap=0, lead=0, exit=62, **{'from': 8})
    def lab(self, p):
        self.nlab += 1; return f"L{p}{self.nlab}"
    def srd(self, r, ptr, size):
        a = self.a
        a(f"s_mov_b32 {s(r)}, {s(ptr)}"); a(f"s_mov_b32 {s(r+1)}, {s(ptr+1)}")
        a(f"s_mov_b32 {s(r+2)}, {size:#x}"); a(f"s_mov_b32 {s(r+3)}, 0x20000")
    def stamp(self, k):
        if self.diag or self.amp or self.amp2: self.a(f"s_memrealtime {s(S_ST+2*k,2)}")
    def lgkm(self, n):
        self.a(f"s_waitcnt lgkmcnt({0 if (self.diag or self.amp or self.amp2) else n})")
    def finish(self, vt):
        a = self.a
        if self.diag:
            a("s_waitcnt lgkmcnt(0)")
            a(f"s_mul_i32 {s(S_T0)}, {s(S_WG)}, 12"); a(f"s_add_u32 {s(S_T0)}, {s(S_T0)}, {s(S_WAVE)}")
            a(f"s_lshl_b32 {s(S_T0)}, {s(S_T0)}, 6"); a(f"s_add_u32 {s(S_T0)}, {s(S_T0)}, {STAMP:#x}")
            a("s_mov_b64 exec, 1")
            a(f"v_mov_b32 {v(vt)}, {s(S_T0)}")
            for k in range(12):
                a(f"v_mov_b32 {v(vt+1)}, {s(S_ST+2*k)}")
                a(f"global_store_dword {v(vt)}, {v(vt+1)}, {s(P_WS,2)} offset:{4*k}")
            a("s_waitcnt vmcnt(0)")
        a("s_endpgm")
    def unpack(self, lo, hi, src):
        self.a(f"v_lshlrev_b32 {v(lo)}, 16, {v(src)}"); self.a(f"v_and_b32 {v(hi)}, {s(S_HI)}, {v(src)}")
    def rbf1(self, dst, src):
        self.a(f"v_cvt_pk_bf16_f32 {v(dst)}, {v(src)}, {v(src)}"); self.a(f"v_and_b32 {v(dst)}, {s(S_HI)}, {v(dst)}")
    def rbf2(self, d0, d1, s0, s1, t):
        self.a(f"v_cvt_pk_bf16_f32 {v(t)}, {v(s0)}, {v(s1)}"); self.unpack(d0, d1, t)
    def ror(self, op, regs, steps):
        for n in steps:
            for r in regs: self.a(f"{op}_dpp {v(r)}, {v(r)}, {v(r)} row_ror:{n} row_mask:0xf bank_mask:0xf")
    def rows_all(self, op, x, t):
        a = self.a
        for sw in ("v_permlane16_swap_b32", "v_permlane32_swap_b32"):
            a(f"v_mov_b32 {v(t)}, {v(x)}"); a(f"{sw} {v(x)}, {v(t)}"); a(f"{op} {v(x)}, {v(x)}, {v(t)}")
    def fold(self, sw, pairs):
        for x, y in pairs: self.a(f"{sw} {v(x)}, {v(y)}")
        for x, y in pairs: self.a(f"v_add_f32 {v(x)}, {v(x)}, {v(y)}")
    def fold4(self, x):
        self.fold("v_permlane32_swap_b32", [(x, x+2), (x+1, x+3)])
        self.fold("v_permlane16_swap_b32", [(x, x+1)])
    def silu_bf(self, dst, x, t):
        a = self.a
        a(f"v_mul_f32 {v(t)}, {0x80000000 ^ LOG2E:#x}, {v(x)}"); a(f"v_exp_f32 {v(t)}, {v(t)}")
        a(f"v_add_f32 {v(t)}, 1.0, {v(t)}"); a(f"v_rcp_f32 {v(t)}, {v(t)}"); a(f"v_mul_f32 {v(t)}, {v(x)}, {v(t)}")
        self.rbf1(dst, t)
    def layernorm(self, X, XF, T):
        a = self.a
        for k in range(4): self.unpack(XF+2*k, XF+2*k+1, X+k)
        a(f"v_add_f32 {v(T)}, {v(XF)}, {v(XF+1)}")
        for k in range(2, 8): a(f"v_add_f32 {v(T)}, {v(T)}, {v(XF+k)}")
        self.ror("v_add_f32", [T], (8, 4, 2, 1)); self.rows_all("v_add_f32", T, T+1)
        a(f"v_mul_f32 {v(T)}, 0x3b000000, {v(T)}")
        a(f"v_sub_f32 {v(T+2)}, {v(XF)}, {v(T)}"); a(f"v_mul_f32 {v(T+3)}, {v(T+2)}, {v(T+2)}")
        for k in range(1, 8):
            a(f"v_sub_f32 {v(T+2)}, {v(XF+k)}, {v(T)}"); a(f"v_fmac_f32 {v(T+3)}, {v(T+2)}, {v(T+2)}")
        self.ror("v_add_f32", [T+3], (8, 4, 2, 1)); self.rows_all("v_add_f32", T+3, T+1)
        a(f"v_mul_f32 {v(T+3)}, 0x3b000000, {v(T+3)}")
        self.rbf2(T, T+3, T, T+3, T+1)
        a(f"v_add_f32 {v(T+3)}, {EPS:#x}, {v(T+3)}"); self.rbf1(T+3, T+3)
        a(f"v_sqrt_f32 {v(T+3)}, {v(T+3)}"); self.rbf1(T+3, T+3)
        a(f"v_rcp_f32 {v(T+2)}, {v(T+3)}")
        for k in range(8): a(f"v_sub_f32 {v(XF+k)}, {v(XF+k)}, {v(T)}")
        for k in range(4): self.rbf2(XF+2*k, XF+2*k+1, XF+2*k, XF+2*k+1, T+1)
        for k in range(8):
            a(f"v_mul_f32 {v(T+4)}, {v(XF+k)}, {v(T+2)}")
            a(f"v_fma_f32 {v(T+5)}, -{v(T+4)}, {v(T+3)}, {v(XF+k)}")
            a(f"v_fma_f32 {v(XF+k)}, {v(T+5)}, {v(T+2)}, {v(T+4)}")
        for k in range(4): self.rbf2(XF+2*k, XF+2*k+1, XF+2*k, XF+2*k+1, T+1)
    def tag(self, regs, vT, dst=None):
        for i, r in enumerate(regs):
            d = r if dst is None else dst[i]
            self.a(f"v_bfi_b32 {v(d)}, {s(S_TM)}, {v(vT)}, {v(r)}")
    def joint(self, t, quad=False):
        perms = ["quad_perm:[1,0,3,2]", "quad_perm:[2,3,0,1]"] + ([] if quad else ["row_half_mirror"])
        if quad or self.tagbits < 10:
            for p in perms: self.a(f"v_or_b32_dpp {v(t)}, {v(t)}, {v(t)} {p} row_mask:0xf bank_mask:0xf")
    def poll(self, loads, vT, t, acc=None, between=None, quad=False):
        a = self.a; L = self.lab("poll"); Lo = self.lab("pollx")
        if between:
            Lc = self.lab("pollc")
            for ld in loads: a(ld[0])
            between()
            a(f"s_mov_b32 {s(S_CNT)}, {SPIN}")
            a(f"s_branch {Lc}")
        else: a(f"s_mov_b32 {s(S_CNT)}, {SPIN}")
        a(f"{L}:")
        for ld in loads: a(ld[0])
        if between: a(f"{Lc}:")
        first = True
        for j, (_, r0, n) in enumerate(loads):
            a(f"s_waitcnt vmcnt({len(loads)-1-j})")
            for w in range(r0, r0+n):
                if first: a(f"v_xor_b32 {v(t)}, {v(w)}, {v(vT)}"); first = False
                else: a(f"v_bitop3_b32 {v(t)}, {v(w)}, {v(vT)}, {v(t)} bitop3:0xbe")
            if j == len(loads) - 1:
                self.joint(t, quad)
                a(f"v_and_b32 {v(t)}, {s(S_TM)}, {v(t)}")
                a(f"v_cmp_ne_u32 vcc, 0, {v(t)}")
            if acc is not None and j >= 1:
                p = loads[0][1] if j == 1 else acc
                a(f"v_pk_add_f32 {v(acc,2)}, {v(p,2)}, {v(r0,2)}"); a(f"v_pk_add_f32 {v(acc+2,2)}, {v(p+2,2)}, {v(r0+2,2)}")
        a(f"s_sub_u32 {s(S_CNT)}, {s(S_CNT)}, 1")
        a(f"s_cbranch_scc1 {Lo}")
        a("s_mov_b64 exec, vcc")
        if acc is not None and self.hsleep:
            a(f"s_cbranch_execz {Lo}"); a(f"s_sleep {self.hsleep}"); a(f"s_branch {L}")
        else: a(f"s_cbranch_execnz {L}")
        a(f"{Lo}:")
        a("s_mov_b64 exec, -1")
    def poll2(self, X, Y, vT, t, acc, between=None, quad=False):
        a = self.a; L = self.lab("pp"); Lo = self.lab("ppx")
        n = len(X)
        def check(loads, out=2):
            first = True
            for j, (_, r0, nr) in enumerate(loads):
                a(f"s_waitcnt vmcnt({out*n-1-j})")
                for w in range(r0, r0+nr):
                    if first: a(f"v_xor_b32 {v(t)}, {v(w)}, {v(vT)}"); first = False
                    else: a(f"v_bitop3_b32 {v(t)}, {v(w)}, {v(vT)}, {v(t)} bitop3:0xbe")
                if j >= 1:
                    p = loads[0][1] if j == 1 else acc
                    a(f"v_pk_add_f32 {v(acc,2)}, {v(p,2)}, {v(r0,2)}"); a(f"v_pk_add_f32 {v(acc+2,2)}, {v(p+2,2)}, {v(r0+2,2)}")
                if j == n - 1:
                    self.joint(t, quad)
                    a(f"v_and_b32 {v(t)}, {s(S_TM)}, {v(t)}")
                    a(f"v_cmp_ne_u32 vcc, 0, {v(t)}")
            a("s_mov_b64 exec, vcc")
        for ld in X: a(ld[0])
        if between:
            between()
            if self.pfirst:
                check(X, 1)
                a(f"s_cbranch_execz {Lo}")
                for ld in X: a(ld[0])
        a(f"s_mov_b32 {s(S_CNT)}, {SPIN}")
        a(f"{L}:")
        for ld in Y: a(ld[0])
        check(X)
        a(f"s_cbranch_execz {Lo}")
        for ld in X: a(ld[0])
        check(Y)
        a(f"s_sub_u32 {s(S_CNT)}, {s(S_CNT)}, 1")
        a(f"s_cbranch_scc1 {Lo}")
        a(f"s_cbranch_execnz {L}")
        a(f"{Lo}:")
        a("s_mov_b64 exec, -1")
    def gather8(self, loads, vT, t, acc, vaddr, soff, lg, between=None):
        a = self.a; L = self.lab("lp"); Lo = self.lab("lpx")
        P, R, J, B, A = t+1, t+2, t+3, t+4, t+5
        for ld in loads: a(ld[0])
        if between: between()
        first = True
        for j, (_, r0, n) in enumerate(loads):
            a(f"s_waitcnt vmcnt({len(loads)-1-j})")
            for w in range(r0, r0+n):
                if first: a(f"v_xor_b32 {v(t)}, {v(w)}, {v(vT)}"); first = False
                else: a(f"v_bitop3_b32 {v(t)}, {v(w)}, {v(vT)}, {v(t)} bitop3:0xbe")
            if j == len(loads) - 1:
                a(f"v_and_b32 {v(t)}, {s(S_TM)}, {v(t)}")
                a(f"v_cmp_ne_u32 vcc, 0, {v(t)}")
            if j >= 1:
                p = loads[0][1] if j == 1 else acc
                a(f"v_pk_add_f32 {v(acc,2)}, {v(p,2)}, {v(r0,2)}"); a(f"v_pk_add_f32 {v(acc+2,2)}, {v(p+2,2)}, {v(r0+2,2)}")
        a(f"s_cbranch_vccz {Lo}")
        for r in range(acc, acc+4): a(f"v_mov_b32 {v(r)}, 0")
        a(f"v_mov_b32 {v(P)}, 0")
        def check(q):
            a(f"v_xor_b32 {v(t)}, {v(q)}, {v(vT)}")
            for w in range(q+1, q+4): a(f"v_bitop3_b32 {v(t)}, {v(w)}, {v(vT)}, {v(t)} bitop3:0xbe")
            a(f"v_and_b32 {v(t)}, {s(S_TM)}, {v(t)}")
            a(f"v_cmp_eq_u32 vcc, 0, {v(t)}")
        for j, (_, r0, n) in enumerate(loads):
            check(r0)
            a("s_mov_b64 exec, vcc")
            a(f"v_pk_add_f32 {v(acc,2)}, {v(acc,2)}, {v(r0,2)}"); a(f"v_pk_add_f32 {v(acc+2,2)}, {v(acc+2,2)}, {v(r0+2,2)}")
            a("s_not_b64 exec, vcc")
            a(f"v_or_b32 {v(P)}, {1 << j}, {v(P)}")
            a("s_mov_b64 exec, -1")
        Q = loads[0][1]
        a(f"v_mov_b32 {v(R)}, {v(P)}")
        a(f"v_cmp_ne_u32 vcc, 0, {v(P)}")
        a(f"s_mov_b32 {s(S_CNT)}, {SPIN*4}")
        a("s_mov_b64 exec, vcc")
        a(f"{L}:")
        a(f"v_ffbl_b32 {v(J)}, {v(R)}")
        a(f"v_lshl_add_u32 {v(A)}, {v(J)}, {lg}, {v(vaddr)}")
        a(f"buffer_load_dwordx4 {v(Q,4)}, {v(A)}, {s(R0,4)}, {s(soff)} offen sc1")
        a(f"v_lshlrev_b32 {v(B)}, {v(J)}, 1")
        a(f"v_xor_b32 {v(R)}, {v(R)}, {v(B)}")
        a(f"s_sub_u32 {s(S_CNT)}, {s(S_CNT)}, 1")
        a(f"s_cbranch_scc1 {Lo}")
        a("s_waitcnt vmcnt(0)")
        check(Q)
        a(f"s_and_saveexec_b64 {s(S_T2,2)}, vcc")
        a(f"v_xor_b32 {v(P)}, {v(P)}, {v(B)}")
        a(f"v_pk_add_f32 {v(acc,2)}, {v(acc,2)}, {v(Q,2)}"); a(f"v_pk_add_f32 {v(acc+2,2)}, {v(acc+2,2)}, {v(Q+2,2)}")
        a(f"s_mov_b64 exec, {s(S_T2,2)}")
        a(f"v_cmp_eq_u32 {s(S_T2,2)}, 0, {v(R)}")
        a(f"v_cmp_ne_u32 vcc, 0, {v(P)}")
        a(f"v_cndmask_b32 {v(R)}, {v(R)}, {v(P)}, {s(S_T2,2)}")
        a("s_mov_b64 exec, vcc")
        a(f"s_cbranch_execnz {L}")
        a(f"{Lo}:")
        a("s_mov_b64 exec, -1")
    def lds_wait(self, off, val, vz, t, extra=(), sleep=1):
        a = self.a; L = self.lab("lw"); Lo = self.lab("lwx")
        a(f"s_mov_b32 {s(S_CNT)}, {SPIN*16}")
        a(f"{L}:")
        a(f"ds_read_b32 {v(t)}, {v(vz)} offset:{off}")
        for e in extra: a(e)
        a("s_waitcnt lgkmcnt(0)")
        a(f"v_readfirstlane_b32 {s(S_T3)}, {v(t)}")
        a(f"s_cmp_ge_u32 {s(S_T3)}, {val}")
        a(f"s_cbranch_scc1 {Lo}")
        a(f"s_sub_u32 {s(S_CNT)}, {s(S_CNT)}, 1")
        a(f"s_cbranch_scc1 {Lo}")
        if sleep: a(f"s_sleep {sleep}")
        a(f"s_branch {L}")
        a(f"{Lo}:")
    def pub(self, text, sfast):
        a = self.a
        La, Lb = self.lab("pl"), self.lab("pj")
        a(f"s_cmp_eq_u32 {s(sfast)}, 2"); a(f"s_cbranch_scc1 {La}")
        a(text + " sc1"); a(f"s_branch {Lb}")
        a(f"{La}:"); a(text); a(f"{Lb}:")
    def trig(self, what, vz, t):
        if what == "q": self.lds_wait(L_QFLAG, 1, vz, t)
        elif what == "ml": self.lds_wait(L_MLCNT, 8, vz, t)
        elif isinstance(what, int) and what > 0: self.lds_wait(L_PROG, what, vz, t)
    def streamer(self):
        a = self.a
        VK, VV, VZ, VT, VT2 = 1, 2, 3, 4, 5
        Q, S, DT, KB = 8, 12, 20, 36
        slot = lambda i: KB + 4*i
        ACC, AO, B = slot(16), slot(18), slot(23)
        SB = S_T0
        a("; ==== streamer: lane offsets (K: quad-permuted 1 KiB, V: linear), descriptors, paced load sequence ====")
        a(f"s_lshl_b32 {s(SB)}, {s(S_H)}, 23"); a(f"s_lshl_b32 {s(S_T1)}, {s(S_S)}, 18"); a(f"s_or_b32 {s(SB)}, {s(SB)}, {s(S_T1)}")
        a(f"s_lshl_b32 {s(S_T1)}, {s(S_WAVE)}, {self.il}"); a(f"s_or_b32 {s(SB)}, {s(SB)}, {s(S_T1)}")
        if self.rot == 1: a(f"s_lshl_b32 {s(S_M+9)}, {s(S_S)}, 15")
        if self.rot == 2: a(f"s_add_u32 {s(S_M+9)}, {s(S_S)}, {s(S_H)}"); a(f"s_lshl_b32 {s(S_M+9)}, {s(S_M+9)}, 15")
        a(f"v_lshlrev_b32 {v(VV)}, 4, v0")
        a(f"v_and_b32 {v(VT)}, 0xc0, {v(VV)}"); a(f"v_lshlrev_b32 {v(VT)}, 2, {v(VT)}")
        a(f"v_lshrrev_b32 {v(VK)}, 4, v0"); a(f"v_lshlrev_b32 {v(VK)}, 6, {v(VK)}")
        a(f"v_and_b32 {v(VT2)}, 48, {v(VV)}")
        a(f"v_or3_b32 {v(VK)}, {v(VK)}, {v(VT)}, {v(VT2)}")
        a(f"v_mov_b32 {v(VZ)}, 0")
        a("s_waitcnt lgkmcnt(0)")
        self.srd(R0, P_K, 0x4000000); self.srd(R1, P_V, 0x4000000)
        def off(i):
            if self.il == 12: return (i >> 2) * 32768, (i & 3) * 1024
            return i * 8192, 0
        last_so = [None]
        VWA, VWD = 6, 7
        SA, SW0, SW1, SSTR = S_M+5, S_M+6, S_M+7, S_M+4
        def regs(it):
            k, i = it
            return {'K': slot(i), 'V': slot(i % 16), 'A': slot(28 + i), 'W': (DT + 4*i if self.wpos > 40 else slot(28 + i))}[k]
        def setup_a():
            a("; stage-1 tile geometry")
            a(f"s_lshr_b32 {s(S_M)}, {s(S_WAVE)}, 1")
            self.s1_geom(True)
            a(f"s_and_b32 {s(S_T3)}, {s(S_WAVE)}, 1"); a(f"s_lshl_b32 {s(S_T3)}, {s(S_T3)}, 2"); a(f"s_add_u32 {s(S_T3)}, {s(S_T3)}, {s(S_M+3)}")
            a(f"s_mul_i32 {s(S_T3)}, {s(S_T3)}, {s(SSTR)}"); a(f"s_lshl_b32 {s(SA)}, {s(S_T2)}, 7"); a(f"s_add_u32 {s(SA)}, {s(SA)}, {s(S_T3)}")
            a(f"v_and_b32 {v(VT)}, 56, v0"); a(f"v_mul_u32_u24 {v(VT)}, {s(SSTR)}, {v(VT)}")
            a(f"v_and_b32 {v(VT2)}, 0x70, {v(VV)}"); a(f"v_add_u32 {v(VWA)}, {v(VT)}, {v(VT2)}")
            if self.afake:
                lg = 3 + self.afake
                a(f"v_lshrrev_b32 {v(VT)}, {lg}, v0"); a(f"v_mul_u32_u24 {v(VT)}, {s(SSTR)}, {v(VT)}")
                a(f"v_and_b32 {v(VT2)}, {(16 << lg) - 16:#x}, {v(VV)}"); a(f"v_add_u32 {v(VWA)}, {v(VT)}, {v(VT2)}")
                a(f"s_and_b32 {s(S_T3)}, {s(S_S)}, 15"); a(f"s_lshl_b32 {s(S_T3)}, {s(S_T3)}, 3"); a(f"s_add_u32 {s(S_T3)}, {s(S_T3)}, {s(S_WAVE)}")
                a(f"s_and_b32 {s(SA)}, {s(S_T3)}, {(8 >> self.afake) - 1}"); a(f"s_lshl_b32 {s(SA)}, {s(SA)}, {7 + self.afake}")
                a(f"s_lshr_b32 {s(S_T3)}, {s(S_T3)}, {3 - self.afake}"); a(f"s_lshl_b32 {s(S_T3)}, {s(S_T3)}, {5 - self.afake}")
                a(f"s_mul_i32 {s(S_T3)}, {s(S_T3)}, {s(SSTR)}"); a(f"s_add_u32 {s(SA)}, {s(SA)}, {s(S_T3)}")
                a(f"s_cmp_ge_u32 {s(S_S)}, 16"); a(f"s_cselect_b32 {s(S_T3)}, 7, 16"); a(f"s_lshl_b32 {s(S_T3)}, {s(S_T3)}, 6"); a(f"s_mul_i32 {s(S_T3)}, {s(S_T3)}, {s(S_H)}"); a(f"s_and_b32 {s(S_T3)}, {s(S_T3)}, 0xffffff80")
                a(f"s_add_u32 {s(SA)}, {s(SA)}, {s(S_T3)}")
                a(f"s_lshl_b32 {s(SSTR)}, {s(SSTR)}, {3 - self.afake}")
        def setup_w():
            a(f"s_and_b32 {s(S_T2)}, {s(S_S)}, 3"); a(f"s_lshl_b32 {s(S_T2)}, {s(S_T2)}, 1"); a(f"s_lshr_b32 {s(S_T3)}, {s(S_WAVE)}, 2")
            a(f"s_add_u32 {s(S_T2)}, {s(S_T2)}, {s(S_T3)}"); a(f"s_lshl_b32 {s(S_T2)}, {s(S_T2)}, 7")
            a(f"s_lshl_b32 {s(SW0)}, {s(S_H)}, 19"); a(f"s_lshr_b32 {s(S_T3)}, {s(S_S)}, 2"); a(f"s_lshl_b32 {s(S_T3)}, {s(S_T3)}, 10")
            a(f"s_add_u32 {s(SW0)}, {s(SW0)}, {s(S_T3)}"); a(f"s_add_u32 {s(SW0)}, {s(SW0)}, {s(S_T2)}")
            self.fblock(SW1, S_T3)
            a(f"s_lshl_b32 {s(SW1)}, {s(SW1)}, 15"); a(f"s_add_u32 {s(SW1)}, {s(SW1)}, {s(S_T2)}")
            a(f"s_and_b32 {s(S_T2)}, {s(S_WAVE)}, 3")
            a(f"s_lshl_b32 {s(S_T3)}, {s(S_T2)}, 16"); a(f"s_add_u32 {s(SW0)}, {s(SW0)}, {s(S_T3)}")
            a(f"s_lshl_b32 {s(S_T3)}, {s(S_T2)}, 13"); a(f"s_add_u32 {s(SW1)}, {s(SW1)}, {s(S_T3)}")
            self.srd(R2, P_WO, 0x400000); self.srd(R3, P_WD, 0x1c0000)
            a(f"v_lshrrev_b32 {v(VT)}, 3, v0"); a(f"v_and_b32 {v(VT2)}, 0x70, {v(VV)}")
            a(f"v_lshl_add_u32 {v(VWD)}, {v(VT)}, 10, {v(VT2)}"); a(f"v_lshl_add_u32 {v(VWA)}, {v(VT)}, 13, {v(VT2)}")
        def load(it):
            k, i = it
            r = v(regs(it), 4)
            if k in 'KV':
                so, imm = off(i)
                if so != last_so[0]:
                    if self.rot:
                        a(f"s_add_u32 {s(S_T1)}, {s(S_M+9)}, {so}"); a(f"s_and_b32 {s(S_T1)}, {s(S_T1)}, 0x38000"); a(f"s_or_b32 {s(S_T1)}, {s(S_T1)}, {s(SB)}")
                    else: a(f"s_add_u32 {s(S_T1)}, {s(SB)}, {so}")
                    last_so[0] = so
                a(f"buffer_load_dwordx4 {r}, {v(VV if k == 'V' else VK)}, {s(R1 if k == 'V' else R0,4)}, {s(S_T1)} offen offset:{imm} {self.kvpol}")
            elif k == 'A':
                if i == 0: setup_a()
                a(f"buffer_load_dwordx4 {r}, {v(VWA)}, {s(R2,4)}, {s(SA)} offen {self.wpol}")
                if i < 3: a(f"s_add_u32 {s(SA)}, {s(SA)}, {s(SSTR)}")
            else:
                if i < 2: a(f"buffer_load_dwordx4 {r}, {v(VWA)}, {s(R2,4)}, {s(SW0)} offen {self.wpol}")
                else: a(f"buffer_load_dwordx4 {r}, {v(VWD)}, {s(R3,4)}, {s(SW1)} offen {self.wpol}")
                if i == 0: a(f"s_add_u32 {s(SW0)}, {s(SW0)}, 0x40000")
        def count(off_):
            a(f"v_mov_b32 {v(VT2)}, 1"); a("s_mov_b64 exec, 1"); a(f"ds_add_u32 {v(VZ)}, {v(VT2)} offset:{off_}"); a("s_mov_b64 exec, -1")
        def put_a():
            a("; stage-1 tiles -> LDS")
            a(f"s_lshl_b32 {s(S_T2)}, {s(S_WAVE)}, 12"); a(f"v_add_u32 {v(VT)}, {s(S_T2)}, {v(VV)}")
            for i in range(4): a(f"ds_write_b128 {v(VT)}, {v(regs(('A', i)),4)} offset:{L_A + 1024*i}")
            count(L_ACNT)
            if not self.wdma: setup_w()
            if self.dirty:
                a(f"s_mul_i32 {s(S_T2)}, {s(S_WG)}, 8"); a(f"s_add_u32 {s(S_T2)}, {s(S_T2)}, {s(S_WAVE)}"); a(f"s_lshl_b32 {s(S_T2)}, {s(S_T2)}, 10")
                a(f"s_add_u32 {s(S_T2)}, {s(S_T2)}, 0x400000"); a(f"v_add_u32 {v(VT)}, {s(S_T2)}, {v(VV)}")
        def put_w():
            a(f"s_lshr_b32 {s(S_T2)}, {s(S_WAVE)}, 2"); a(f"s_mul_i32 {s(S_T2)}, {s(S_T2)}, 12288")
            a(f"s_and_b32 {s(S_T3)}, {s(S_WAVE)}, 3"); a(f"s_lshl_b32 {s(S_T3)}, {s(S_T3)}, 10"); a(f"s_add_u32 {s(S_T2)}, {s(S_T2)}, {s(S_T3)}")
            a(f"v_add_u32 {v(VT)}, {s(S_T2)}, {v(VV)}")
            for i in range(3): a(f"ds_write_b128 {v(VT)}, {v(regs(('W', i)),4)} offset:{L_W + 4096*i}")
            count(L_WCNT)
        def qk(j):
            for m in range(4):
                a(f"v_mfma_f32_16x16x32_bf16 {v(DT+4*m,4)}, {v(slot(4*j+m),4)}, {v(Q,4)}, 0")
            if self.qk2:
                if j == 0:
                    for m in range(1, 4):
                        a(f"s_mov_b32 {s(P_X+2*m)}, {(15 << 4*m) * 0x10001:#x}"); a(f"s_mov_b32 {s(P_X+2*m+1)}, {(15 << 4*m) * 0x10001:#x}")
                for k in range(1, 4):
                    for m in range(4):
                        b = (m + k) & 3
                        a(f"v_add_f32_dpp {v(DT+5*m)}, {v(DT+4*m+b)}, {v(DT+5*m)} row_ror:{(4*(m-b)) & 15} row_mask:0xf bank_mask:0xf")
                for m in range(1, 4):
                    a(f"v_cndmask_b32 {v(S+j)}, {v(DT if m == 1 else S+j)}, {v(DT+5*m)}, {s(P_X+2*m,2)}")
                return
            for k in range(1, 4):
                for m in range(4):
                    b = (m + k) & 3
                    other = DT+4*m+m if k == 1 else S+j
                    a(f"v_add_f32_dpp {v(S+j)}, {v(DT+4*m+b)}, {v(other)} row_ror:{(4*(m-b)) & 15} row_mask:0xf bank_mask:{1<<m:#x}")
        M, Lr = DT, DT+1
        def sm_scale(k):
            if k == 0: a(f"s_mov_b32 {s(S_M+8)}, {SCALE:#x}")
            x, y = S+2*k, S+2*k+1
            self.rbf2(x, y, x, y, VT)
            a(f"v_mul_f32 {v(x)}, {s(S_M+8)}, {v(x)}"); a(f"v_mul_f32 {v(y)}, {s(S_M+8)}, {v(y)}")
            self.rbf2(x, y, x, y, VT)
        def sm_max():
            a("; true row max over this wave's 128 keys")
            a(f"v_max3_f32 {v(M)}, {v(S)}, {v(S+1)}, {v(S+2)}"); a(f"v_max3_f32 {v(M)}, {v(M)}, {v(S+3)}, {v(S+4)}")
            a(f"v_max3_f32 {v(M)}, {v(M)}, {v(S+5)}, {v(S+6)}"); a(f"v_max_f32 {v(M)}, {v(M)}, {v(S+7)}")
            self.ror("v_max_f32", [M], (4, 8)); self.rows_all("v_max_f32", M, VT)
        def sm_exp():
            a(f"s_mov_b32 {s(S_T2)}, {LOG2E:#x}")
            for k in range(8): a(f"v_sub_f32 {v(S+k)}, {v(S+k)}, {v(M)}")
            for k in range(8): a(f"v_mul_f32 {v(S+k)}, {s(S_T2)}, {v(S+k)}")
            for k in range(8): a(f"v_exp_f32 {v(S+k)}, {v(S+k)}")
        def sm_sum():
            a(f"v_add_f32 {v(Lr)}, {v(S)}, {v(S+1)}")
            for k in range(2, 8): a(f"v_add_f32 {v(Lr)}, {v(Lr)}, {v(S+k)}")
            self.ror("v_add_f32", [Lr], (4, 8)); self.rows_all("v_add_f32", Lr, VT)
            a(f"s_lshl_b32 {s(S_T2)}, {s(S_WAVE)}, 5")
            a(f"v_lshl_add_u32 {v(VT)}, v0, 2, {s(S_T2)}"); a(f"v_mov_b32 {v(VT2)}, 1")
            a("s_mov_b64 exec, 15")
            a(f"ds_write2_b32 {v(VT)}, {v(M)}, {v(Lr)} offset0:{L_ML//4} offset1:{L_ML//4+4}")
            a("s_mov_b64 exec, 1")
            a(f"ds_add_u32 {v(VZ)}, {v(VT2)} offset:{L_MLCNT}")
            a("s_mov_b64 exec, -1")
        def zero_acc():
            a(f"s_mul_i32 {s(S_T2)}, {s(S_WAVE)}, {OSTR}")
            a(f"v_and_b32 {v(VT)}, 15, v0"); a(f"v_mul_u32_u24 {v(VT)}, 144, {v(VT)}"); a(f"v_and_b32 {v(VWD)}, 48, v0")
            a(f"v_add3_u32 {v(VWD)}, {v(VWD)}, {v(VT)}, {s(S_T2)}")
            for r in range(ACC, ACC+8): a(f"v_mov_b32 {v(r)}, 0")
            for r in range(AO, AO+16): a(f"v_mov_b32 {v(r)}, 0")
            if self.plo:
                for r in range(DT, DT+16): a(f"v_mov_b32 {v(r)}, 0")
        AL = DT
        def build_lo(j):
            a(f"v_cvt_pk_bf16_f32 {v(VT)}, {v(S+2*j)}, {v(S+2*j+1)}")
            self.unpack(Q, Q+1, VT)
            a(f"v_sub_f32 {v(Q)}, {v(S+2*j)}, {v(Q)}"); a(f"v_sub_f32 {v(Q+1)}, {v(S+2*j+1)}, {v(Q+1)}")
            a(f"v_cvt_pk_bf16_f32 {v(VT)}, {v(Q)}, {v(Q+1)}")
            for m in range(4):
                for e in range(4):
                    n = (4*(e-m)) & 15
                    ctl = f"row_ror:{n}" if n else "quad_perm:[0,1,2,3]"
                    a(f"v_mov_b32_dpp {v(AL+4*e+m)}, {v(VT)} {ctl} row_mask:0xf bank_mask:{1<<e:#x}")
        def build_a(j):
            a(f"v_cvt_pk_bf16_f32 {v(VT)}, {v(S+2*j)}, {v(S+2*j+1)}")
            for m in range(4):
                for e in range(4):
                    n = (4*(e-m)) & 15
                    ctl = f"row_ror:{n}" if n else "quad_perm:[0,1,2,3]"
                    a(f"v_mov_b32_dpp {v(AO+4*e+m)}, {v(VT)} {ctl} row_mask:0xf bank_mask:{1<<e:#x}")
        def perm1(j, m, e):
            lo, hi = slot((8*j+m) % 16), slot((8*j+4+m) % 16)
            a(f"v_perm_b32 {v(B+4*e+m)}, {v(hi+(e>>1))}, {v(lo+(e>>1))}, {s(S_HIS if e & 1 else S_LO)}")
        def mfma_pv(e, j):
            acc = ACC + 4*(e >> 2)
            a(f"v_mfma_f32_16x16x32_bf16 {v(acc,4)}, {v(AO+4*(e&3),4)}, {v(B+4*e,4)}, {v(acc,4)}")
            if j < self.plo: a(f"v_mfma_f32_16x16x32_bf16 {v(acc,4)}, {v(AL+4*(e&3),4)}, {v(B+4*e,4)}, {v(acc,4)}")
        def pv_last(j):
            order = [0, 4, 1, 5, 2, 6, 3, 7]
            for k in range(3): perm1(j, 3, order[k])
            for k in range(8):
                mfma_pv(order[k], j)
                if k + 3 < 8: perm1(j, 3, order[k+3])
        def qwait():
            a("; wait for q (B operand of QK^T)")
            a(f"v_and_b32 {v(VT2)}, 3, v0"); a(f"v_lshlrev_b32 {v(VT2)}, 8, {v(VT2)}")
            a(f"v_and_b32 {v(VT)}, 0xc0, {v(VV)}"); a(f"v_lshrrev_b32 {v(VT)}, 2, {v(VT)}")
            a(f"v_and_b32 {v(DT)}, 0x300, {v(VV)}"); a(f"v_lshrrev_b32 {v(DT)}, 2, {v(DT)}")
            a(f"v_or3_b32 {v(VT2)}, {v(VT2)}, {v(VT)}, {v(DT)}")
            self.stamp(2)
            if not self.cut: self.lds_wait(L_QFLAG, 1, VZ, VT, [f"ds_read_b128 {v(Q,4)}, {v(VT2)} offset:{L_Q}"])
            self.stamp(3)
        kv = [('K', i) for i in range(32)] + [('V', i) for i in range(32)]
        seq = kv[:self.apos] + [('A', i) for i in range(4)] + kv[self.apos:self.wpos] + [('W', i) for i in range(0 if self.wdma else 3)] + kv[self.wpos:]
        if self.agap:
            seq = [x for x in seq if x[0] != 'A']
            for i in range(4): seq.insert(self.apos + i*(self.agap + 1), ('A', i))
        pos = {it: n for n, it in enumerate(seq)}
        N = len(seq)
        def owrite():
            a("; last PV group, partial o -> LDS")
            self.stamp(7)
            pv_last(3)
            a(f"ds_write_b128 {v(VWD)}, {v(ACC,4)} offset:{L_O}")
            a(f"ds_write_b128 {v(VWD)}, {v(ACC+4,4)} offset:{L_O+64}")
            a("s_waitcnt lgkmcnt(0)")
            a("s_barrier")
            if self.dirty:
                a(f"s_mul_i32 {s(S_T2)}, {s(S_WG)}, 8"); a(f"s_add_u32 {s(S_T2)}, {s(S_T2)}, {s(S_WAVE)}"); a(f"s_lshl_b32 {s(S_T2)}, {s(S_T2)}, 10")
                a(f"s_add_u32 {s(S_T2)}, {s(S_T2)}, 0x400000"); a(f"v_add_u32 {v(VT)}, {s(S_T2)}, {v(VV)}")
                a(f"s_cmp_ge_u32 {s(S_WAVE)}, {self.dirty}"); a("s_cbranch_scc1 Lnodirty")
                a(f"global_store_dwordx4 {v(VT)}, {v(ACC,4)}, {s(P_WS,2)}")
                a("Lnodirty:")
        p0 = pos[('K', self.n0)]
        tasks = [(p0, -1, [], qwait)]
        for j in range(8):
            tasks.append((p0 + j, pos[('K', 4*j+3)], [('K', 4*j+m) for m in range(4)], lambda j=j: qk(j)))
            if j & 1: tasks.append((0, -1, [], lambda j=j: sm_scale(j >> 1)))
        for f in (sm_max, sm_exp, sm_sum, zero_acc): tasks.append(('next', -1, [], f))
        for j in range(4):
            tasks.append(('next', -1, [], lambda j=j: build_a(j)))
            if j < self.plo: tasks.append(('next', -1, [], lambda j=j: build_lo(j)))
            for m in range(3): tasks.append(('next', pos[('V', 8*j+4+m)], [('V', 8*j+m), ('V', 8*j+4+m)], lambda j=j, m=m: [perm1(j, m, e) for e in range(8)]))
            tasks.append(('next', pos[('V', 8*j+7)], [('V', 8*j+3), ('V', 8*j+7)], (lambda j=j: pv_last(j)) if j < 3 else owrite))
        side = [(0, pos[('A', 3)], [('A', i) for i in range(4)], put_a)]
        if not self.wdma: side.append((0, pos[('W', 2)], [('W', i) for i in range(3)], put_w))
        trigs = {pos[kv[t]]: t for t in (self.nq, self.nm, self.g_trig) if isinstance(t, int) and t > 0}
        def Dn(n):
            if self.ramp and n < len(self.ramp): return self.ramp[n]
            return self.D2 if (self.D2 and n >= self.nD2) else self.D
        nbar = (self.ramp[0] if self.ramp else self.D) - 1
        busy = {}; landed = -1
        def run(n):
            for q in (side, tasks):
                did = False
                while q and q[0][1] <= landed:
                    e = q[0][0]
                    if e == 'next':
                        if did and n < 99 and self.smooth: break
                    elif e > n: break
                    t = q.pop(0); t[3](); did = True
                    for x in t[2]: busy.pop(regs(x))
        NM = N - 3 if self.wlate else N
        SK, SJ, VB, V1 = S_M+10, S_M+11, 164, 167
        if self.ctl:
            a(f"s_mov_b32 {s(SK)}, {self.ctl.get('init', 0)}"); a(f"s_mov_b32 {s(SJ)}, 0"); a(f"v_mov_b32 {v(V1)}, 1")
        for n in range(NM):
            if self.ctl and self.ctl['from'] <= n < self.ctl['to']:
                Lb = self.lab("win"); D = Dn(n)
                two = self.ctl.get('g2') or (self.ctl.get('l2') and n >= self.ctl.get('l2from', 0))
                top = D + (2 if two else 1)
                if n - top > landed: a(f"s_waitcnt vmcnt({top-1})"); landed = n - top
                if n & 1:
                    a("s_waitcnt lgkmcnt(0)"); a(f"v_readfirstlane_b32 {s(SK)}, {v(VB)}"); a(f"v_readfirstlane_b32 {s(SJ)}, {v(VB+1)}")
                a(f"s_cmp_gt_u32 {s(SJ if (self.ctl.get('l2') and not two) else SK)}, {n}"); a(f"s_cbranch_scc1 {Lb}")
                a(f"s_waitcnt vmcnt({top-2})")
                if two:
                    a(f"s_cmp_gt_u32 {s(SJ)}, {n}"); a(f"s_cbranch_scc1 {Lb}")
                    a(f"s_waitcnt vmcnt({top-3})")
                elif self.ctl['tcap']:
                    a(f"s_cmp_le_u32 {s(SJ)}, {n}"); a(f"s_cbranch_scc1 {Lb}")
                    a(f"s_waitcnt vmcnt({D-2})")
                a(f"{Lb}:")
            elif n - Dn(n) > landed:
                a(f"s_waitcnt vmcnt({Dn(n)-1})"); landed = n - Dn(n)
            assert regs(seq[n]) not in busy, (n, seq[n])
            busy[regs(seq[n])] = n
            load(seq[n])
            if self.trace and seq[n] in kv:
                m = kv.index(seq[n])
                if m: a("s_waitcnt lgkmcnt(0)"); a(f"v_writelane_b32 v166, s100, {m-1}")
                a("s_memrealtime s[100:101]")
            if n == nbar:
                a(f"s_mov_b32 {s(S_HI)}, 0xffff0000"); a(f"s_mov_b32 {s(S_LO)}, 0x05040100"); a(f"s_mov_b32 {s(S_HIS)}, 0x07060302")
                if self.ebar:
                    Lb = self.lab("flags")
                    a(f"s_cmp_lg_u32 {s(S_WAVE)}, 0"); a(f"s_cbranch_scc1 {Lb}")
                    a(f"v_lshlrev_b32 {v(VT)}, 2, v0")
                    a("s_mov_b64 exec, 0xffff")
                    a(f"ds_write_b32 {v(VT)}, {v(VZ)}")
                    a("s_mov_b64 exec, -1")
                    a("s_waitcnt lgkmcnt(0)")
                    a(f"{Lb}:")
                a("s_barrier")
            if self.ctl and nbar <= n < self.ctl['to']:
                a("s_mov_b64 exec, 1"); a(f"ds_add_u32 {v(VZ)}, {v(V1)} offset:{L_CNT}"); a("s_mov_b64 exec, -1")
                if not n & 1: a(f"ds_read_b64 {v(VB,2)}, {v(VZ)} offset:{L_BOOST}")
            if n in trigs:
                a(f"v_mov_b32 {v(VT)}, {trigs[n]}"); a("s_mov_b64 exec, 1"); a(f"ds_max_u32 {v(VZ)}, {v(VT)} offset:{L_PROG}"); a("s_mov_b64 exec, -1")
            if self.wdma and self.wdrain is None and seq[n] == kv[min(63, self.wpos - 1)]: count(L_WCNT)
            if n == nbar + 1: self.stamp(1)
            if landed == pos[('K', 31)]: self.stamp(4)
            run(n)
        issued = NM
        while landed < N - 1:
            landed += 1
            now = issued < N and landed == NM - self.wlate
            sig = self.wdrain is not None and N - 1 - landed == self.wdrain
            if not now and not sig and not any(q and q[0][1] <= landed for q in (side, tasks)): continue
            a(f"s_waitcnt vmcnt({issued - 1 - landed})")
            if sig: count(L_WCNT)
            if now:
                for n in range(NM, N):
                    busy[regs(seq[n])] = n; load(seq[n])
                issued = N
            run(99)
        assert not tasks and not side
        self.stamp(8)
        if self.trace:
            a(f"s_mul_i32 {s(S_T0)}, {s(S_WG)}, 8"); a(f"s_add_u32 {s(S_T0)}, {s(S_T0)}, {s(S_WAVE)}")
            a(f"s_lshl_b32 {s(S_T0)}, {s(S_T0)}, 8"); a(f"s_add_u32 {s(S_T0)}, {s(S_T0)}, {STAMP + (1<<20):#x}")
            a(f"v_lshl_add_u32 {v(VT)}, v0, 2, {s(S_T0)}")
            a(f"global_store_dword {v(VT)}, v166, {s(P_WS,2)}")
        self.finish(VT)

    def prefetch(self, VA, R):
        a = self.a
        Lp = self.lab("nopf")
        a(f"s_cmp_ge_u32 {s(S_S)}, {self.pf}"); a(f"s_cbranch_scc1 {Lp}")
        a(f"s_getpc_b64 {s(R4,2)}")
        a(f"Lpc:")
        a(f"s_sub_u32 {s(R4)}, {s(R4)}, Lpc-{KN}"); a(f"s_subb_u32 {s(R4+1)}, {s(R4+1)}, 0")
        a(f"s_mov_b32 {s(R4+2)}, Lcode_end-{KN}"); a(f"s_mov_b32 {s(R4+3)}, 0x20000")
        a(f"s_and_b32 {s(S_T0)}, {s(S_WAVE)}, 3"); a(f"s_lshl_b32 {s(S_T0)}, {s(S_T0)}, 10")
        for k in range(5):
            a(f"buffer_load_dwordx4 {v(R+4*k,4)}, {v(VA)}, {s(R4,4)}, {s(S_T0)} offen")
            if k < 4: a(f"s_add_u32 {s(S_T0)}, {s(S_T0)}, 4096")
        a(f"{Lp}:")

    def s1_geom(self, loader):
        a = self.a
        SZ, SCB, SRB, SROW, SSTR = S_M, S_M+1, S_M+2, S_M+3, S_M+4
        Lf, Lj = self.lab("s1ffn"), self.lab("s1join")
        a(f"s_cmp_ge_u32 {s(S_S)}, 16"); a(f"s_cbranch_scc1 {Lf}")
        a(f"s_and_b32 {s(SCB)}, {s(S_S)}, 7"); a(f"s_lshr_b32 {s(SRB)}, {s(S_S)}, 3")
        a(f"s_lshl_b32 {s(SROW)}, {s(SRB)}, 2"); a(f"s_add_u32 {s(SROW)}, {s(SROW)}, {s(SZ)}"); a(f"s_lshl_b32 {s(SROW)}, {s(SROW)}, 6")
        if loader:
            a(f"s_mov_b32 {s(SSTR)}, 8192")
            a(f"s_lshl_b32 {s(S_T2)}, {s(S_H)}, 3"); a(f"s_add_u32 {s(S_T2)}, {s(S_T2)}, {s(SCB)}")
            self.srd(R2, P_WQ, 0x400000)
        a(f"s_branch {Lj}")
        a(f"{Lf}:")
        if self.hello in (1, 3, 5): a(f"s_sub_u32 {s(S_T2)}, {s(S_S)}, 16"); a(f"s_lshl_b32 {s(S_T3)}, {s(S_H)}, 4"); a(f"s_add_u32 {s(S_T2)}, {s(S_T2)}, {s(S_T3)}")
        else: a(f"s_sub_u32 {s(S_T2)}, {s(S_S)}, 16"); a(f"s_lshl_b32 {s(S_T2)}, {s(S_T2)}, 3"); a(f"s_add_u32 {s(S_T2)}, {s(S_T2)}, {s(S_H)}")
        a(f"s_lshr_b32 {s(SCB)}, {s(S_T2)}, 2"); a(f"s_and_b32 {s(SRB)}, {s(S_T2)}, 3")
        a(f"s_and_b32 {s(S_T3)}, {s(SZ)}, 1")
        a(f"s_lshl_b32 {s(SROW)}, {s(SRB)}, 1"); a(f"s_add_u32 {s(SROW)}, {s(SROW)}, {s(S_T3)}"); a(f"s_lshl_b32 {s(SROW)}, {s(SROW)}, 6")
        if loader:
            a(f"s_mov_b32 {s(SSTR)}, 3584")
            a(f"s_mov_b32 {s(S_T2)}, {s(SCB)}")
            a(f"s_cmp_ge_u32 {s(SZ)}, 2")
            a(f"s_cselect_b32 {s(R2)}, {s(P_WU)}, {s(P_WG)}"); a(f"s_cselect_b32 {s(R2+1)}, {s(P_WU+1)}, {s(P_WG+1)}")
            a(f"s_cmp_lt_u32 {s(SCB)}, 28")
            a(f"s_cselect_b32 {s(R2+2)}, 0x1c0000, 0"); a(f"s_mov_b32 {s(R2+3)}, 0x20000")
        a(f"{Lj}:")

    VZ, VT, VA, T = 1, 2, 3, 4
    def stage1(self):
        a = self.a
        VZ, VT, VA, T = self.VZ, self.VT, self.VA, self.T
        X, XF, XR, ACC, W = 12, 16, 24, 32, 40
        SZ, SCB, SRB, SROW, SSTR = S_M, S_M+1, S_M+2, S_M+3, S_M+4
        a(f"s_and_b32 {s(SZ)}, {s(S_WAVE)}, 3")
        a(f"v_mov_b32 {v(VZ)}, 0"); a(f"v_lshlrev_b32 {v(VA)}, 4, v0")
        if self.pf and not self.pfe: self.prefetch(VA, W+32)
        self.s1_geom(False)
        a("s_waitcnt lgkmcnt(0)")
        self.srd(R0, P_WS, WS_USED); self.srd(R1, P_X, 1024)
        a(f"buffer_load_dwordx4 {v(X,4)}, {v(VA)}, {s(R1,4)}, 0 offen")
        a(f"buffer_load_dword {v(VT)}, {v(VZ)}, {s(R0,4)}, 0 offen offset:{EPOCH}")
        if not self.ebar:
            Lb = self.lab("s1b")
            a(f"s_cmp_lg_u32 {s(SZ)}, 0"); a(f"s_cbranch_scc1 {Lb}")
            a(f"v_lshlrev_b32 {v(T+2)}, 2, v0")
            a("s_mov_b64 exec, 0xffff")
            a(f"ds_write_b32 {v(T+2)}, {v(VZ)}")
            a("s_mov_b64 exec, -1")
            a("s_waitcnt lgkmcnt(0)")
            a(f"{Lb}:")
            a("s_barrier")
        a("s_waitcnt vmcnt(1)")
        self.stamp(1)
        self.layernorm(X, XF, T)
        a(f"s_lshr_b32 {s(S_T0)}, {s(SROW)}, 1")
        a(f"v_lshrrev_b32 {v(T)}, 3, v0"); a(f"v_lshl_add_u32 {v(T)}, {v(T)}, 2, {s(S_T0)}")
        for j in range(8): a(f"ds_bpermute_b32 {v(XR+j)}, {v(T)}, {v(XF+j)}")
        a("s_waitcnt vmcnt(0)")
        a(f"v_add_u32 {v(VT)}, 1, {v(VT)}"); a(f"v_readfirstlane_b32 {s(S_E)}, {v(VT)}")
        a(f"v_and_b32 {v(VT)}, 0x3ff, {v(VT)}")
        if self.hello:
            Lh = self.lab("hello")
            a(f"s_cmp_lg_u32 {s(SZ)}, 0"); a(f"s_cbranch_scc1 {Lh}")
            a(f"s_getreg_b32 {s(S_M+5)}, hwreg(HW_REG_XCC_ID, 0, 4)"); a(f"s_lshl_b32 {s(S_T0)}, {s(S_E)}, 4"); a(f"s_or_b32 {s(S_M+5)}, {s(S_M+5)}, {s(S_T0)}")
            a(f"s_lshl_b32 {s(S_M+7)}, {s(S_H)}, 7"); a(f"s_add_u32 {s(S_M+7)}, {s(S_M+7)}, {XBOX:#x}")
            a(f"s_lshl_b32 {s(S_T0)}, {s(S_S)}, 2"); a(f"s_add_u32 {s(S_T0)}, {s(S_T0)}, {s(S_M+7)}")
            a(f"v_mov_b32 {v(T+2)}, {s(S_M+5)}")
            a("s_mov_b64 exec, 1")
            a(f"buffer_store_dword {v(T+2)}, {v(VZ)}, {s(R0,4)}, {s(S_T0)} offen" + ("" if self.hello >= 4 else " sc1"))
            a("s_mov_b64 exec, -1")
            a(f"{Lh}:")
        a(f"s_lshl_b32 {s(S_T0)}, {s(SZ)}, 13"); a(f"v_add_u32 {v(T)}, {s(S_T0)}, {v(VA)}")
        self.lds_wait(L_ACNT, 8, VZ, T+1)
        for j in range(8): a(f"ds_read_b128 {v(W+4*j,4)}, {v(T)} offset:{L_A+1024*j}")
        for j in range(8):
            self.lgkm(7-j)
            for k in range(4):
                self.unpack(T, T+1, W+4*j+k)
                op = "v_mul_f32" if j == 0 else "v_fmac_f32"
                a(f"{op} {v(ACC+2*k)}, {v(XR+j)}, {v(T)}"); a(f"{op} {v(ACC+2*k+1)}, {v(XR+j)}, {v(T+1)}")
        self.fold("v_permlane32_swap_b32", [(ACC+e, ACC+e+4) for e in range(4)])
        self.fold("v_permlane16_swap_b32", [(ACC+e, ACC+e+2) for e in range(2)])
        self.ror("v_add_f32", [ACC, ACC+1], (8,))
        a(f"s_lshl_b32 {s(S_T0)}, {s(SZ)}, 8")
        a(f"v_and_b32 {v(T)}, 7, v0"); a(f"v_lshl_add_u32 {v(T)}, {v(T)}, 5, {s(S_T0)}")
        a(f"v_lshrrev_b32 {v(T+1)}, 4, v0"); a(f"v_lshl_add_u32 {v(T)}, {v(T+1)}, 3, {v(T)}")
        a(f"v_mov_b32 {v(T+1)}, 1")
        a("s_mov_b32 exec_lo, 0xff00ff"); a("s_mov_b32 exec_hi, 0xff00ff")
        a(f"ds_write_b64 {v(T)}, {v(ACC,2)} offset:{L_S1}")
        a("s_mov_b64 exec, 1")
        a(f"ds_add_u32 {v(VZ)}, {v(T+1)} offset:{L_S1CNT}")
        a("s_mov_b64 exec, -1")
        self.stamp(2)

    def sw0(self):
        a = self.a
        VZ, VT, VA, T = self.VZ, self.VT, self.VA, self.T
        XF, W = 16, 40
        SZ, SCB, SRB = S_M, S_M+1, S_M+2
        def hello_check():
            a(f"v_and_b32 {v(T+4)}, 31, v0"); a(f"v_lshlrev_b32 {v(T+4)}, 2, {v(T+4)}")
            a(f"buffer_load_dword {v(T+5)}, {v(T+4)}, {s(R0,4)}, {s(S_M+7)} offen sc1")
            a("s_waitcnt vmcnt(0)")
            a(f"v_cmp_ne_u32 vcc, {s(S_M+5)}, {v(T+5)}")
            a("s_cmp_eq_u64 vcc, 0"); a(f"s_cselect_b32 {s(S_M+6)}, 2, 1")
        if self.hello:
            assert self.hello >= 4
            self.lds_wait(L_S1CNT, 4, VZ, T+1)
            hello_check()
        a(f"v_and_b32 {v(T)}, 0xf0, {v(VA)}"); a(f"v_and_b32 {v(T+2)}, 16, v0"); a(f"v_lshl_add_u32 {v(T)}, {v(T+2)}, 5, {v(T)}")
        self.lds_wait(L_S1CNT, 4, VZ, T+1, [f"ds_read_b128 {v(W,4)}, {v(T)} offset:{L_S1}", f"ds_read_b128 {v(W+4,4)}, {v(T)} offset:{L_S1+256}"])
        a(f"v_pk_add_f32 {v(W,2)}, {v(W,2)}, {v(W+4,2)}"); a(f"v_pk_add_f32 {v(W+2,2)}, {v(W+2,2)}, {v(W+6,2)}")
        Lf, Lj = self.lab("c1ffn"), self.lab("c1join")
        a(f"s_cmp_ge_u32 {s(S_S)}, 16"); a(f"s_cbranch_scc1 {Lf}")
        for r in range(4): a(f"v_mov_b32 {v(W+4+r)}, {v(W+r)}")
        self.fold("v_permlane16_swap_b32", [(W+r, W+4+r) for r in range(4)])
        a(f"v_and_b32 {v(T)}, 0xf0, {v(VA)}")
        a(f"s_lshl_b32 {s(S_T1)}, {s(S_H)}, 12"); a(f"s_lshl_b32 {s(S_T2)}, {s(SRB)}, 11"); a(f"s_add_u32 {s(S_T1)}, {s(S_T1)}, {s(S_T2)}")
        a(f"s_lshl_b32 {s(S_T2)}, {s(SCB)}, 8"); a(f"s_add_u32 {s(S_T1)}, {s(S_T1)}, {s(S_T2)}"); a(f"s_add_u32 {s(S_T1)}, {s(S_T1)}, {QBOX:#x}")
        a("s_mov_b64 exec, 0xffff")
        a(f"s_branch {Lj}")
        a(f"{Lf}:")
        a(f"v_and_b32 {v(T)}, 8, v0"); a(f"v_lshlrev_b32 {v(T)}, 7, {v(T)}")
        a(f"v_and_b32 {v(T+1)}, 0x70, {v(VA)}"); a(f"v_lshl_add_u32 {v(T+1)}, {v(T+2)}, 3, {v(T+1)}"); a(f"v_add_u32 {v(T)}, {v(T)}, {v(T+1)}")
        a(f"s_lshl_b32 {s(S_T1)}, {s(SCB)}, 11"); a(f"s_lshl_b32 {s(S_T2)}, {s(SRB)}, 8"); a(f"s_add_u32 {s(S_T1)}, {s(S_T1)}, {s(S_T2)}")
        a(f"s_add_u32 {s(S_T1)}, {s(S_T1)}, {GBOX:#x}")
        a("s_mov_b32 exec_lo, -1"); a("s_mov_b32 exec_hi, 0")
        a(f"{Lj}:")
        self.tag(range(W, W+4), VT)
        if self.hello:
            if self.hello in (2, 4): a(f"s_cmp_ge_u32 {s(S_S)}, 16"); a(f"s_cselect_b32 {s(S_M+8)}, 1, {s(S_M+6)}")
            elif self.hello == 3: a(f"s_mov_b32 {s(S_M+8)}, 1")
            else: a(f"s_mov_b32 {s(S_M+8)}, {s(S_M+6)}")
            self.pub(f"buffer_store_dwordx4 {v(W,4)}, {v(T)}, {s(R0,4)}, {s(S_T1)} offen", S_M+8)
        else: a(f"buffer_store_dwordx4 {v(W,4)}, {v(T)}, {s(R0,4)}, {s(S_T1)} offen sc1")
        a("s_mov_b64 exec, -1")
        a(f"s_lshl_b32 {s(S_T0)}, {s(S_H)}, 12"); a(f"s_add_u32 {s(S_T0)}, {s(S_T0)}, {QBOX:#x}")
        W2 = W + 8
        self.trig(self.nq, VZ, T+1)
        self.poll([(f"buffer_load_dwordx4 {v(W2+4*k,4)}, {v(VA)}, {s(R0,4)}, {s(S_T0)} offen offset:{1024*k} sc1", W2+4*k, 4) for k in range(4)], VT, T)
        for k in range(4): a(f"v_pk_add_f32 {v(W2+2*k,2)}, {v(W2+2*k,2)}, {v(W2+8+2*k,2)}")
        for k in range(4): a(f"v_cvt_pk_bf16_f32 {v(XF+k)}, {v(W2+2*k)}, {v(W2+2*k+1)}")
        a(f"v_lshlrev_b32 {v(T)}, 3, v0"); a(f"v_mov_b32 {v(T+1)}, 1")
        a(f"ds_write_b64 {v(T)}, {v(XF,2)} offset:{L_Q}"); a(f"ds_write_b64 {v(T)}, {v(XF+2,2)} offset:{L_Q+512}")
        a("s_waitcnt lgkmcnt(0)")
        a(f"ds_write_b32 {v(VZ)}, {v(T+1)} offset:{L_QFLAG}")
        self.stamp(3)
        if self.cut == 1: return self.finish(T)
        if self.hello:
            Lk = self.lab("known")
            a(f"s_cmp_eq_u32 {s(S_M+6)}, 2"); a(f"s_cbranch_scc1 {Lk}")
            hello_check()
            a(f"{Lk}:")
        MW, LW, M, L, MA, LA, MB, LB = XF, XF+1, XF+2, XF+3, W, W+1, W+2, W+3
        a("; softmax statistics: workgroup -> head group -> per-wave factors")
        a(f"v_and_b32 {v(T)}, 28, v0"); a(f"v_lshlrev_b32 {v(T)}, 3, {v(T)}")
        a(f"v_and_b32 {v(T+2)}, 3, v0"); a(f"v_lshl_add_u32 {v(T)}, {v(T+2)}, 2, {v(T)}")
        self.lds_wait(L_MLCNT, 8, VZ, T+1, [f"ds_read2_b32 {v(MW,2)}, {v(T)} offset0:{L_ML//4} offset1:{L_ML//4+4}"])
        self.stamp(4)
        a(f"s_mov_b32 {s(S_T2)}, {LOG2E:#x}")
        a(f"v_mov_b32 {v(M)}, {v(MW)}")
        self.ror("v_max_f32", [M], (4, 8))
        a(f"v_mov_b32 {v(T)}, {v(M)}"); a(f"v_permlane16_swap_b32 {v(M)}, {v(T)}"); a(f"v_max_f32 {v(M)}, {v(M)}, {v(T)}")
        a(f"v_sub_f32 {v(L)}, {v(MW)}, {v(M)}"); a(f"v_mul_f32 {v(L)}, {s(S_T2)}, {v(L)}"); a(f"v_exp_f32 {v(L)}, {v(L)}")
        a(f"v_mul_f32 {v(L)}, {v(L)}, {v(LW)}")
        self.ror("v_add_f32", [L], (4, 8))
        a(f"v_mov_b32 {v(T)}, {v(L)}"); a(f"v_permlane16_swap_b32 {v(L)}, {v(T)}"); a(f"v_add_f32 {v(L)}, {v(L)}, {v(T)}")
        a(f"s_mov_b32 {s(S_TM)}, 0x3ff")
        self.tag([M, L], VT)
        if self.fast and not self.hello:
            a(f"s_getreg_b32 {s(S_M+5)}, hwreg(HW_REG_XCC_ID, 0, 4)"); a(f"s_lshl_b32 {s(S_M+5)}, {s(S_M+5)}, 12")
            a(f"v_or_b32 {v(M)}, {s(S_M+5)}, {v(M)}")
        a(f"v_lshlrev_b32 {v(T)}, 3, v0")
        a(f"s_lshl_b32 {s(S_T0)}, {s(S_H)}, 10"); a(f"s_add_u32 {s(S_T0)}, {s(S_T0)}, {MLBOX:#x}")
        a(f"s_lshl_b32 {s(S_T1)}, {s(S_S)}, 5"); a(f"s_add_u32 {s(S_T1)}, {s(S_T1)}, {s(S_T0)}")
        a("s_mov_b64 exec, 15")
        if self.hello: self.pub(f"buffer_store_dwordx2 {v(M,2)}, {v(T)}, {s(R0,4)}, {s(S_T1)} offen", S_M+6)
        else: a(f"buffer_store_dwordx2 {v(M,2)}, {v(T)}, {s(R0,4)}, {s(S_T1)} offen sc1")
        a("s_mov_b64 exec, -1")
        self.trig(self.nm, VZ, T+1)
        self.poll([(f"buffer_load_dwordx2 {v(MA,2)}, {v(T)}, {s(R0,4)}, {s(S_T0)} offen sc1", MA, 2),
                   (f"buffer_load_dwordx2 {v(MB,2)}, {v(T)}, {s(R0,4)}, {s(S_T0)} offen offset:512 sc1", MB, 2)], VT, T+1, quad=True)
        if self.fast and not self.hello:
            a(f"v_xor_b32 {v(T+2)}, {s(S_M+5)}, {v(MA)}"); a(f"v_xor_b32 {v(T+3)}, {s(S_M+5)}, {v(MB)}")
            a(f"v_or_b32 {v(T+2)}, {v(T+2)}, {v(T+3)}"); a(f"v_and_b32 {v(T+2)}, 0xf000, {v(T+2)}")
            a(f"v_cmp_ne_u32 vcc, 0, {v(T+2)}")
            a("s_cmp_eq_u64 vcc, 0"); a(f"s_cselect_b32 {s(S_M+6)}, 2, 1")
        a(f"v_and_b32 {v(MA)}, {s(S_HI)}, {v(MA)}"); a(f"v_and_b32 {v(MB)}, {s(S_HI)}, {v(MB)}")
        a(f"v_max_f32 {v(M)}, {v(MA)}, {v(MB)}")
        self.ror("v_max_f32", [M], (4, 8)); self.rows_all("v_max_f32", M, T)
        for r in (MA, MB, MW): a(f"v_sub_f32 {v(r)}, {v(r)}, {v(M)}")
        for r in (MA, MB, MW): a(f"v_mul_f32 {v(r)}, {s(S_T2)}, {v(r)}")
        for r in (MA, MB, MW): a(f"v_exp_f32 {v(r)}, {v(r)}")
        a(f"v_mul_f32 {v(L)}, {v(MA)}, {v(LA)}"); a(f"v_fmac_f32 {v(L)}, {v(MB)}, {v(LB)}")
        self.ror("v_add_f32", [L], (4, 8)); self.rows_all("v_add_f32", L, T)
        a(f"v_rcp_f32 {v(L)}, {v(L)}"); a(f"v_mul_f32 {v(MW)}, {v(MW)}, {v(L)}")
        a(f"v_and_b32 {v(T)}, 31, v0"); a(f"v_lshlrev_b32 {v(T)}, 2, {v(T)}"); a(f"v_mov_b32 {v(T+1)}, {s(S_M+6) if self.fast else 1}")
        a(f"ds_write_b32 {v(T)}, {v(MW)} offset:{L_F}")
        a("s_waitcnt lgkmcnt(0)")
        a(f"ds_write_b32 {v(VZ)}, {v(T+1)} offset:{L_FFLAG}")
        a("s_waitcnt lgkmcnt(0)")
        self.stamp(5)
        self.finish(T)

    def fblock(self, dst, t):
        a = self.a
        a(f"s_lshl_b32 {s(dst)}, {s(S_H)}, 3"); a(f"s_lshr_b32 {s(t)}, {s(S_S)}, 2"); a(f"s_add_u32 {s(dst)}, {s(dst)}, {s(t)}")

    def sw1(self):
        a = self.a
        VZ, VT, VA, T = self.VZ, self.VT, self.VA, self.T
        XC, VO, G, W = 10, 11, 12, 16
        self.fblock(S_T0, S_T1)
        a(f"s_lshl_b32 {s(S_T0)}, {s(S_T0)}, 10"); a(f"s_add_u32 {s(S_T0)}, {s(S_T0)}, {GBOX:#x}")
        self.trig(self.g_trig, VZ, T+1)
        self.poll([(f"buffer_load_dwordx4 {v(G,4)}, {v(VA)}, {s(R0,4)}, {s(S_T0)} offen sc1", G, 4)], VT, T)
        self.fold4(G)
        self.rbf1(G, G)
        a(f"v_mov_b32_dpp {v(G+1)}, {v(G)} row_ror:8 row_mask:0xf bank_mask:0xf")
        self.silu_bf(G, G, T)
        a(f"v_mul_f32 {v(G)}, {v(G)}, {v(G+1)}"); a(f"v_cvt_pk_bf16_f32 {v(G)}, {v(G)}, {v(G)}")
        a(f"v_and_b32 {v(T)}, 7, v0"); a(f"v_lshlrev_b32 {v(T)}, 3, {v(T)}")
        a(f"v_lshrrev_b32 {v(T+1)}, 4, v0"); a(f"v_lshl_add_u32 {v(T)}, {v(T+1)}, 1, {v(T)}"); a(f"v_mov_b32 {v(T+1)}, 1")
        a("s_mov_b32 exec_lo, 0xff00ff"); a("s_mov_b32 exec_hi, 0xff00ff")
        a(f"ds_write_b16 {v(T)}, {v(G)} offset:{L_H}")
        a("s_mov_b64 exec, -1")
        a("s_waitcnt lgkmcnt(0)")
        a(f"ds_write_b32 {v(VZ)}, {v(T+1)} offset:{L_HFLAG}")
        self.stamp(3)
        if self.pf2:
            Lp = self.lab("nopf2")
            a(f"s_cmp_lg_u32 {s(S_S)}, 31"); a(f"s_cbranch_scc1 {Lp}")
            a(f"s_getpc_b64 {s(R4,2)}")
            a("Lpc2:")
            a(f"s_sub_u32 {s(R4)}, {s(R4)}, Lpc2-Lsw23"); a(f"s_subb_u32 {s(R4+1)}, {s(R4+1)}, 0")
            a(f"s_mov_b32 {s(R4+2)}, Lcode_end-Lsw23"); a(f"s_mov_b32 {s(R4+3)}, 0x20000")
            a(f"s_mov_b32 {s(S_T0)}, 4096")
            for k in range(7): a(f"buffer_load_dwordx4 {v(W+4*k,4)}, {v(VA)}, {s(R4,4)}, {s(S_T0) if k >= 4 else 0} offen offset:{1024*(k&3)}")
            a(f"{Lp}:")
        if self.red2: return self.finish(T)
        Lx = self.lab("sw1end")
        a(f"s_cmp_ge_u32 {s(S_WG)}, {0 if self.cut else 32}"); a(f"s_cbranch_scc1 {Lx}")
        a(f"s_lshl_b32 {s(S_T0)}, {s(S_WG)}, 5")
        a(f"v_and_b32 {v(VO)}, 3, v0"); a(f"v_lshl_add_u32 {v(VO)}, {v(VO)}, 3, {s(S_T0)}")
        a(f"v_lshrrev_b32 {v(T)}, 4, v0"); a(f"v_lshl_add_u32 {v(VO)}, {v(T)}, 1, {v(VO)}")
        a(f"buffer_load_ushort {v(XC)}, {v(VO)}, {s(R1,4)}, 0 offen")
        a(f"s_lshl_b32 {s(S_T0)}, {s(S_WG)}, 13"); a(f"s_add_u32 {s(S_T0)}, {s(S_T0)}, {HBOX:#x}"); a(f"s_add_u32 {s(S_T1)}, {s(S_T0)}, 4096")
        loads = [(f"buffer_load_dwordx4 {v(W+4*j,4)}, {v(VA)}, {s(R0,4)}, {s(S_T0+(j>>2))} offen offset:{1024*(j&3)} sc1", W+4*j, 4) for j in range(8)]
        if self.touch:
            for ld in loads: a(ld[0])
        a("s_waitcnt vmcnt(0)")
        a(f"v_lshlrev_b32 {v(XC)}, 16, {v(XC)}")
        self.srd(R1, P_OUT, 1024)
        if self.otouch: a(f"buffer_load_ushort {v(T+5)}, {v(VO)}, {s(R1,4)}, 0 offen sc1"); a("s_waitcnt vmcnt(0)")
        self.stamp(4)
        a("s_barrier")
        if self.rdelay: self.lds_wait(L_PUB, 2 if self.rdelay >= 3 else 1, VZ, T+1, sleep=0)
        self.stamp(5)
        if self.pipe:
            Y = [(f"buffer_load_dwordx4 {v(W+32+4*j,4)}, {v(VA)}, {s(R0,4)}, {s(S_T0+(j>>2))} offen offset:{1024*(j&3)} sc1", W+32+4*j, 4) for j in range(8)]
            self.poll2(loads, Y, VT, T, G)
        elif self.light: self.gather8(loads, VT, T, G, VA, S_T0, 10)
        else: self.poll(loads, VT, T, acc=G)
        self.stamp(6)
        self.fold4(G)
        self.ror("v_add_f32", [G], (8,))
        self.rbf1(G, G)
        self.silu_bf(G+1, G, T)
        a(f"v_mul_f32_dpp {v(G)}, {v(G+1)}, {v(G)} row_ror:12 row_mask:0xf bank_mask:0xf"); self.rbf1(G, G)
        a(f"v_add_f32 {v(G)}, {v(G)}, {v(XC)}"); a(f"v_cvt_pk_bf16_f32 {v(G)}, {v(G)}, {v(G)}")
        a("s_mov_b32 exec_lo, 0xf000f"); a("s_mov_b32 exec_hi, 0xf000f")
        a(f"buffer_store_short {v(G)}, {v(VO)}, {s(R1,4)}, 0 offen {self.outpol}")
        a(f"s_cmp_lg_u32 {s(S_WG)}, 0"); a(f"s_cbranch_scc1 {Lx}")
        a("s_mov_b64 exec, 1")
        a(f"v_mov_b32 {v(T)}, {s(S_E)}")
        a(f"buffer_store_dword {v(T)}, {v(VZ)}, {s(R0,4)}, 0 offen offset:{EPOCH} {self.outpol}")
        if self.amp:
            pa, pb, k = self.amp
            a("s_waitcnt vmcnt(0)"); self.stamp(7); a("s_waitcnt lgkmcnt(0)")
            a(f"s_sub_u32 {s(S_T0)}, {s(S_ST+2*pb)}, {s(S_ST+2*pa)}"); a(f"s_mul_i32 {s(S_T0)}, {s(S_T0)}, {k}")
            a(f"s_min_u32 {s(S_T0)}, {s(S_T0)}, 100000")
            a("Lamp:")
            a(f"s_memrealtime {s(S_ST+20,2)}"); a("s_waitcnt lgkmcnt(0)")
            a(f"s_sub_u32 {s(S_T1)}, {s(S_ST+20)}, {s(S_ST+14)}"); a(f"s_cmp_lt_u32 {s(S_T1)}, {s(S_T0)}"); a("s_cbranch_scc1 Lamp")
        a(f"{Lx}:")
        if self.diag: a("s_waitcnt vmcnt(0)")
        self.stamp(7)
        self.finish(T)

    def controller(self, SZ, nbar_):
        a = self.a; c = self.ctl
        VZ = self.VZ
        C, CP, E, X, Y, A, G = 24, 25, 26, 27, 28, 29, 30
        glob = c.get('gw', 0) or c['tcap'] or c.get('g2')
        SG, SPREV, SB8 = R3+1, R3+2, 4
        import struct
        f = lambda x: hex(struct.unpack('<I', struct.pack('<f', x))[0])
        L, Lo, Ls = self.lab("ctl"), self.lab("ctlx"), self.lab("ctls")
        a(f"s_cmp_lg_u32 {s(SZ)}, 0"); a(f"s_cbranch_scc1 {Lo}")
        a(f"s_lshl_b32 {s(S_T0)}, {s(S_H)}, 7")
        a(f"v_and_b32 {v(A)}, 31, v0"); a(f"v_lshlrev_b32 {v(A)}, 2, {v(A)}")
        if glob:
            a(f"v_cmp_gt_u32 vcc, 32, v0"); a(f"v_mov_b32 {v(X)}, 0x400"); a(f"v_cndmask_b32 {v(A)}, {v(X)}, {v(A)}, vcc")
            a(f"s_mov_b32 {s(SPREV)}, 0"); a(f"s_mov_b32 {s(17)}, 0")
            a(f"s_lshl_b32 {s(SPREV+1)}, {s(S_H)}, 2"); a(f"s_add_u32 {s(12)}, {s(P_DBG)}, {s(SPREV+1)}"); a(f"s_addc_u32 {s(13)}, {s(P_DBG+1)}, 0")
        a(f"s_add_u32 {s(S_T0)}, {s(S_T0)}, {PBOX:#x}")
        a(f"s_lshl_b32 {s(S_T1)}, {s(S_S)}, 2"); a(f"s_add_u32 {s(S_T1)}, {s(S_T1)}, {s(S_T0)}")
        a(f"s_lshl_b32 {s(R3)}, {s(S_E)}, 16")
        a(f"ds_read_b32 {v(CP)}, {v(VZ)} offset:{L_CNT}")
        a(f"s_mov_b32 {s(S_CNT)}, 4096")
        a(f"{L}:")
        a(f"ds_read_b32 {v(C)}, {v(VZ)} offset:{L_CNT}")
        a("s_waitcnt lgkmcnt(0)")
        a(f"v_or_b32 {v(E)}, {s(R3)}, {v(C)}")
        a(f"v_readfirstlane_b32 {s(S_T2)}, {v(C)}")
        a("s_mov_b64 exec, 1")
        a(f"buffer_store_dword {v(E)}, {v(VZ)}, {s(R0,4)}, {s(S_T1)} offen")
        a("s_mov_b64 exec, -1")
        a(f"s_cmp_ge_u32 {s(S_T2)}, {8*(c.get('exit', c['to'] - 2) - nbar_)}"); a(f"s_cbranch_scc1 {Lo}")
        a(f"s_sub_u32 {s(S_CNT)}, {s(S_CNT)}, 1"); a(f"s_cbranch_scc1 {Lo}")
        a(f"buffer_load_dword {v(X)}, {v(A)}, {s(R0,4)}, {s(S_T0)} offen sc1")
        if glob:
            Lr = self.lab("ctlr")
            a(f"s_cmp_lg_u32 {s(S_S)}, 5"); a(f"s_cbranch_scc1 {Lr}")
            if c.get('plain'):
                for k in range(8): a(f"s_load_dword {s(SB8+k)}, {s(P_WS,2)}, {PBOX + 0x800 + 128*k:#x} glc")
            else: a(f"s_load_dwordx8 {s(SB8,8)}, {s(P_DBG,2)}, 0 glc")
            a(f"{Lr}:")
        a(f"v_add_u32 {v(CP)}, {v(CP)}, {v(C)}"); a(f"v_cvt_f32_u32 {v(CP)}, {v(CP)}")
        a("s_waitcnt vmcnt(0)")
        a(f"ds_read_b32 {v(Y)}, {v(VZ)} offset:{L_CNT}")
        a(f"v_xor_b32 {v(X)}, {s(R3)}, {v(X)}"); a(f"v_cmp_gt_u32 vcc, 0x10000, {v(X)}")
        if glob:
            a(f"v_subrev_u32 {v(G)}, 0x8000, {v(X)}"); a(f"v_cvt_f32_i32 {v(G)}, {v(G)}"); a(f"v_cndmask_b32 {v(G)}, 0, {v(G)}, vcc")
        a(f"v_cvt_f32_u32 {v(X)}, {v(X)}"); a(f"v_cndmask_b32 {v(X)}, 0, {v(X)}, vcc")
        a(f"s_bcnt1_i32_b32 {s(S_T2)}, vcc_lo")
        if glob: a(f"v_readlane_b32 {s(SG)}, {v(G)}, 32")
        self.ror("v_add_f32", [X], (8, 4, 2, 1))
        a(f"v_mov_b32 {v(E)}, {v(X)}"); a(f"v_permlane16_swap_b32 {v(X)}, {v(E)}"); a(f"v_add_f32 {v(X)}, {v(X)}, {v(E)}")
        a(f"v_cvt_f32_u32 {v(E)}, {s(S_T2)}"); a(f"v_rcp_f32 {v(E)}, {v(E)}")
        a("s_waitcnt lgkmcnt(0)")
        a(f"s_cmp_lt_u32 {s(S_T2)}, 24"); a(f"s_cbranch_scc1 {Ls}")
        a(f"v_mul_f32 {v(X)}, {v(X)}, {v(E)}")
        if glob:
            Lr, Lv = self.lab("ctlr"), self.lab("ctlv")
            a(f"v_mov_b32 {v(G)}, {s(SG)}")
            a(f"s_cmp_lg_u32 {s(S_S)}, 5"); a(f"s_cbranch_scc1 {Lr}")
            a(f"v_cvt_u32_f32 {v(E)}, {v(X)}"); a(f"v_readfirstlane_b32 {s(S_T2)}, {v(E)}")
            a(f"s_add_u32 {s(S_T3)}, {s(SPREV)}, {s(17)}"); a(f"s_min_u32 {s(18)}, {s(SPREV)}, {s(17)}"); a(f"s_mov_b32 {s(17)}, {s(SPREV)}")
            a(f"s_sub_u32 {s(14)}, {s(S_T2)}, {s(SPREV)}"); a(f"s_mov_b32 {s(SPREV)}, {s(S_T2)}")
            if c.get('plain'):
                a(f"v_or_b32 {v(E)}, {s(R3)}, {v(E)}")
                a("s_mov_b64 exec, 1")
                a(f"buffer_store_dword {v(E)}, {v(VZ)}, {s(R0,4)}, {s(S_T0)} offen offset:2048")
                a("s_mov_b64 exec, -1")
                for k in range(8):
                    a(f"s_xor_b32 {s(SB8+k)}, {s(SB8+k)}, {s(R3)}"); a(f"s_cmp_lt_u32 {s(SB8+k)}, 0x10000"); a(f"s_cselect_b32 {s(SB8+k)}, {s(SB8+k)}, 0")
            else: a(f"s_atomic_add {s(14)}, {s(12,2)}, 0x0")
            a(f"s_min_u32 {s(15)}, {s(SB8)}, {s(SB8+1)}"); a(f"s_add_u32 {s(16)}, {s(SB8)}, {s(SB8+1)}")
            for k in range(2, 8): a(f"s_min_u32 {s(15)}, {s(15)}, {s(SB8+k)}"); a(f"s_add_u32 {s(16)}, {s(16)}, {s(SB8+k)}")
            a(f"s_min_u32 {s(15)}, {s(15)}, {s(18)}"); a(f"s_cmp_eq_u32 {s(15)}, 0"); a(f"s_cbranch_scc1 {Lr}")
            a(f"s_lshl_b32 {s(S_T3)}, {s(S_T3)}, 2")
            a(f"s_sub_u32 {s(16)}, {s(16)}, {s(S_T3)}"); a(f"s_ashr_i32 {s(16)}, {s(16)}, 3")
            a(f"s_add_u32 {s(16)}, {s(16)}, {0x8000 + c.get('gb', 0)}"); a(f"s_or_b32 {s(16)}, {s(16)}, {s(R3)}")
            a(f"v_mov_b32 {v(E)}, {s(16)}")
            a("s_mov_b64 exec, 1")
            a(f"buffer_store_dword {v(E)}, {v(VZ)}, {s(R0,4)}, {s(S_T0)} offen offset:1024")
            a("s_mov_b64 exec, -1")
            a(f"{Lr}:")
        a(f"v_fma_f32 {v(X)}, {v(CP)}, -0.5, {v(X)}")
        if c.get('gw', 0): a(f"v_fmac_f32 {v(X)}, {f(c['gw'])}, {v(G)}")
        a(f"v_lshrrev_b32 {v(Y)}, 3, {v(Y)}"); a(f"v_add_u32 {v(Y)}, {nbar_ + 1 + c['lead']}, {v(Y)}")
        for (dst, src, sign, th, g, cap) in ((E, X, 1, c['bth'], c['bg'], c['bcap']), (X, G, 1, *c['g2']) if c.get('g2') else (X, X, 1, *c['l2']) if c.get('l2') else (X, G, -1, c['tth'], c['tg'], c['tcap'])):
            if not cap: continue
            t = CP
            a(f"v_mul_f32 {v(t)}, {f(sign*g)}, {v(src)}")
            if c.get('k0') and dst == E: a(f"v_add_f32 {v(t)}, {f(c['k0'])}, {v(t)}")
            a(f"v_min_f32 {v(t)}, {f(cap)}, {v(t)}"); a(f"v_max_f32 {v(t)}, 0, {v(t)}")
            a(f"v_cmp_{'lt' if sign > 0 else 'gt'}_f32 vcc, {f(sign*th)}, {v(src)}")
            a(f"v_cvt_u32_f32 {v(t)}, {v(t)}"); a(f"v_add_u32 {v(t)}, {v(t)}, {v(Y)}")
            a(f"v_cndmask_b32 {v(dst)}, 0, {v(t)}, vcc")
        if c.get('g2') or c.get('l2'):
            a(f"v_min_u32 {v(CP)}, {v(E)}, {v(X)}"); a(f"v_max_u32 {v(X)}, {v(E)}, {v(X)}"); a(f"v_mov_b32 {v(E)}, {v(CP)}")
        a("s_mov_b64 exec, 1")
        a(f"ds_write_b64 {v(VZ)}, {v(E,2)} offset:{L_BOOST}")
        a("s_mov_b64 exec, -1")
        a(f"{Ls}:")
        a(f"v_mov_b32 {v(CP)}, {v(C)}")
        a(f"s_branch {L}")
        a(f"{Lo}:")
        if glob and self.diag: a(f"s_mov_b32 {s(S_ST+20)}, {s(16)}"); a(f"s_mov_b32 {s(S_ST+22)}, {s(15)}")

    def sw23(self):
        a = self.a
        VZ, VT, VA, T = self.VZ, self.VT, self.VA, self.T
        VP, VH, VB, VB2, OUT, SUM, W, HB, AW, AD, F, DD = 10, 11, 12, 13, 16, 20, 24, 56, 72, 104, 120, 152
        SZ, SFB, SCOL, SPUB, SP0, SHB, SLW = S_M+8, S_M+9, S_M+10, S_M+11, S_M, S_M+12, S_M+13
        a(f"s_and_b32 {s(SZ)}, {s(S_WAVE)}, 1")
        self.fblock(SFB, S_T1)
        a(f"s_and_b32 {s(SCOL)}, {s(S_S)}, 3"); a(f"s_lshl_b32 {s(SCOL)}, {s(SCOL)}, 1"); a(f"s_add_u32 {s(SCOL)}, {s(SCOL)}, {s(SZ)}")
        a(f"s_mul_i32 {s(SLW)}, {s(SZ)}, 12288")
        a(f"v_lshrrev_b32 {v(T)}, 4, v0"); a(f"v_lshl_add_u32 {v(T)}, {v(T)}, 10, {s(SLW)}")
        a(f"v_bfe_u32 {v(T+2)}, v0, 2, 2"); a(f"v_lshl_add_u32 {v(T)}, {v(T+2)}, 7, {v(T)}")
        a(f"v_and_b32 {v(T+2)}, 3, v0"); a(f"v_lshl_add_u32 {v(T)}, {v(T+2)}, 3, {v(T)}")
        a(f"s_lshl_b32 {s(S_T0)}, {s(S_H)}, 16"); a(f"s_add_u32 {s(S_T0)}, {s(S_T0)}, {OBOX:#x}")
        a(f"s_lshl_b32 {s(SPUB)}, {s(S_S)}, 11"); a(f"s_add_u32 {s(SPUB)}, {s(SPUB)}, {s(S_T0)}")
        a(f"s_lshr_b32 {s(S_T1)}, {s(S_S)}, 2"); a(f"s_lshl_b32 {s(S_T1)}, {s(S_T1)}, 8"); a(f"s_add_u32 {s(SP0)}, {s(S_T0)}, {s(S_T1)}")
        for k in range(1, 8): a(f"s_add_u32 {s(SP0+k)}, {s(SP0)}, {8192*k}")
        a(f"v_lshrrev_b32 {v(VP)}, 4, v0"); a(f"v_and_b32 {v(T+2)}, 0xf0, {v(VA)}"); a(f"v_lshl_add_u32 {v(VP)}, {v(VP)}, 11, {v(T+2)}")
        a(f"s_lshl_b32 {s(SHB)}, {s(SCOL)}, 15"); a(f"s_lshl_b32 {s(S_T1)}, {s(SFB)}, 7"); a(f"s_add_u32 {s(SHB)}, {s(SHB)}, {s(S_T1)}")
        a(f"s_add_u32 {s(SHB)}, {s(SHB)}, {HBOX:#x}")
        a(f"v_and_b32 {v(VH)}, 3, v0"); a(f"v_lshlrev_b32 {v(VH)}, 13, {v(VH)}")
        a(f"v_and_b32 {v(T+2)}, 4, v0"); a(f"v_lshl_add_u32 {v(VH)}, {v(T+2)}, 4, {v(VH)}")
        a(f"v_and_b32 {v(VB)}, 48, v0"); a(f"v_add_u32 {v(VH)}, {v(VH)}, {v(VB)}")
        def tr_ad():
            for t in range(4):
                for hf in range(2):
                    a(f"ds_read_b64_tr_b16 {v(AD+4*t+2*hf,2)}, {v(T)} offset:{L_W + 8192 + 512*hf + 32*t}")
        def tr_aw(t):
            for kk in range(2):
                for hf in range(2):
                    a(f"ds_read_b64_tr_b16 {v(AW+8*t+4*kk+2*hf,2)}, {v(T)} offset:{L_W + 4096*kk + 512*hf + 32*t}")
        def ffn_tags():
            a("s_mov_b32 exec_lo, 0x100010"); a("s_mov_b32 exec_hi, 0x100010")
            for t in range(4):
                self.tag(range(DD+4*t, DD+4*t+4), VT, dst=range(OUT, OUT+4))
                if t < 3: a("s_lshl_b64 exec, exec, 1")
            a("s_mov_b64 exec, -1")
        def wprep(less=0):
            if self.wprog:
                assert self.wsplit == 12
                a(f"s_waitcnt vmcnt({17 - less})")
                tr_ad()
                self.lgkm(0)
                for t in range(4): a(f"v_mfma_f32_16x16x32_bf16 {v(DD+4*t,4)}, {v(AD+4*t,4)}, {v(HB,4)}, 0")
                ffn_tags()
                for kk in range(2):
                    a(f"s_waitcnt vmcnt({13 - 4*kk - less})")
                    for t in range(4):
                        for hf in range(2):
                            a(f"ds_read_b64_tr_b16 {v(AW+8*t+4*kk+2*hf,2)}, {v(T)} offset:{L_W + 4096*kk + 512*hf + 32*t}")
                self.stamp(3)
                return
            if self.wdma:
                a(f"s_waitcnt vmcnt({9 if self.wsplit == 12 else 8})")
                tr_ad(); tr_aw(0)
                self.lgkm(4)
                for t in range(4): a(f"v_mfma_f32_16x16x32_bf16 {v(DD+4*t,4)}, {v(AD+4*t,4)}, {v(HB,4)}, 0")
                for t in range(1, 4): tr_aw(t)
                ffn_tags()
                self.stamp(3)
                return
            self.lds_wait(L_WCNT, 8, VZ, T+2)
            tr_ad()
            self.lds_wait(L_HFLAG, 1, VZ, T+2, [f"ds_read_b128 {v(HB,4)}, {v(VB)} offset:{L_H}"])
            for t in range(4): a(f"v_mfma_f32_16x16x32_bf16 {v(DD+4*t,4)}, {v(AD+4*t,4)}, {v(HB,4)}, 0")
            for t in range(4):
                tr_aw(t)
                if t == 1: a("s_waitcnt lgkmcnt(0)")
            ffn_tags()
            a("s_waitcnt lgkmcnt(0)")
            self.stamp(3)
        if self.wdma:
            VWA, VWD, SW0, SW1 = 14, 15, R4, R4+1
            a(f"v_lshrrev_b32 {v(T+1)}, 3, v0"); a(f"v_and_b32 {v(T+2)}, 0x70, {v(VA)}")
            a(f"v_lshl_add_u32 {v(VWD)}, {v(T+1)}, 10, {v(T+2)}")
            a(f"s_mul_i32 {s(S_T1)}, {s(SZ)}, {8*144}"); a(f"v_mul_u32_u24 {v(T+1)}, 144, {v(T+1)}"); a(f"v_add3_u32 {v(VWA)}, {v(T+1)}, {v(T+2)}, {s(S_T1)}")
            a(f"s_lshl_b32 {s(SW0)}, {s(S_H)}, 19"); a(f"s_lshr_b32 {s(S_T1)}, {s(S_S)}, 2"); a(f"s_lshl_b32 {s(S_T1)}, {s(S_T1)}, 14"); a(f"s_add_u32 {s(SW0)}, {s(SW0)}, {s(S_T1)}")
            a(f"s_lshl_b32 {s(S_T1)}, {s(SCOL)}, 7"); a(f"s_add_u32 {s(SW0)}, {s(SW0)}, {s(S_T1)}")
            a(f"s_lshl_b32 {s(SW1)}, {s(SFB)}, 15"); a(f"s_add_u32 {s(SW1)}, {s(SW1)}, {s(S_T1)}")
            a(f"s_add_u32 {s(SLW)}, {s(SLW)}, {L_W}")
            self.srd(R1, P_WO, 0x400000); self.srd(R2, P_WD, 0x1c0000)
            def touch_w():
                a("s_mov_b64 exec, 1")
                for h in range(4):
                    a(f"s_add_u32 {s(S_T1)}, {s(SW0)}, {0x20000*h}")
                    a(f"buffer_load_dword {v(T+3)}, {v(VZ)}, {s(R1,4)}, {s(S_T1)} offen {self.wpol}")
                a(f"buffer_load_dword {v(T+3)}, {v(VZ)}, {s(R2,4)}, {s(SW1)} offen {self.wpol}")
                a("s_mov_b64 exec, -1")
            if self.red2:
                XC, VOUT = 66, 67
                a(f"s_lshl_b32 {s(S_T0)}, {s(S_WG)}, 5"); a(f"s_lshl_b32 {s(S_T1)}, {s(SZ)}, 4"); a(f"s_add_u32 {s(S_T0)}, {s(S_T0)}, {s(S_T1)}")
                a(f"v_and_b32 {v(VOUT)}, 1, v0"); a(f"v_lshl_add_u32 {v(VOUT)}, {v(VOUT)}, 3, {s(S_T0)}")
                a(f"v_lshrrev_b32 {v(T+1)}, 4, v0"); a(f"v_lshl_add_u32 {v(VOUT)}, {v(T+1)}, 1, {v(VOUT)}")
                a(f"s_mov_b32 {s(P_X+2)}, 1024"); a(f"s_mov_b32 {s(P_X+3)}, 0x20000")
                a(f"buffer_load_ushort {v(XC)}, {v(VOUT)}, {s(P_X,4)}, 0 offen")
            if self.ctl: self.controller(SZ, nbar_=(self.ramp[0] if self.ramp else self.D) - 1)
            if self.wtouch == 1: touch_w()
            self.lds_wait(L_HFLAG, 1, VZ, T+2, [f"ds_read_b128 {v(HB,4)}, {v(VB)} offset:{L_H}"])
        worder = list(range(8, 12)) + list(range(8))
        def wload(js):
            for j in js:
                a(f"s_add_u32 m0, {s(SLW)}, {1024*j}")
                if j < 8:
                    a(f"buffer_load_dwordx4 {v(VWD)}, {s(R1,4)}, {s(SW0)} offen {self.wpol} lds")
                    a(f"s_add_u32 {s(SW0)}, {s(SW0)}, {0x20000 - 8192 if j & 1 else 8192:#x}")
                else:
                    a(f"buffer_load_dwordx4 {v(VWD)}, {s(R2,4)}, {s(SW1)} offen {self.wpol} lds")
                    a(f"s_add_u32 {s(SW1)}, {s(SW1)}, 8192")
        late = self.wpos > 56 or self.wdma
        if not late: wprep()
        if self.cut: return self.finish(T)
        if self.wtouch == 2: touch_w()
        loads = [(f"buffer_load_dwordx4 {v(W+4*k,4)}, {v(VP)}, {s(R0,4)}, {s(SP0+k)} offen sc1", W+4*k, 4) for k in range(8)]
        if self.touch and True:
            for ld in loads: a(ld[0])
        self.lds_wait(L_FFLAG, 1, VZ, T+2, [f"ds_read_b128 {v(F+4*w,4)}, {v(VZ)} offset:{L_F+16*w}" for w in range(8)])
        a(f"s_mov_b32 {s(S_M+14)}, {s(S_T3)}")
        if self.wtouch == 3: touch_w()
        a(f"s_lshl_b32 {s(S_T0)}, {s(SZ)}, 10"); a(f"v_add_u32 {v(VA)}, {s(S_T0)}, {v(VA)}")
        a(f"s_lshl_b32 {s(S_T0)}, {s(SZ)}, 7"); a(f"v_add_u32 {v(VB2)}, {s(S_T0)}, {v(VB)}"); a(f"v_lshl_add_u32 {v(T+1)}, v0, 1, {s(S_T0)}")
        if self.touch: a("s_waitcnt vmcnt(0)")
        if self.wdma and self.wsplit:
            self.lds_wait(L_WCNT, 8, VZ, T+2, sleep=0)
            wload(worder[:self.wsplit])
        self.stamp(4)
        if self.solo: a(f"v_mov_b32 {v(T+2)}, 1")
        a("s_barrier")
        self.stamp(5)
        for w in range(8): a(f"ds_read_b128 {v(W+4*w,4)}, {v(VWA)} offset:{L_O+OSTR*w}")
        for w in range(8):
            self.lgkm(7-w)
            for p in (0, 2):
                if w == 0: a(f"v_pk_mul_f32 {v(SUM+p,2)}, {v(W+p,2)}, {v(F+p,2)}")
                else: a(f"v_pk_fma_f32 {v(SUM+p,2)}, {v(W+4*w+p,2)}, {v(F+4*w+p,2)}, {v(SUM+p,2)}")
        if self.fast: a(f"s_cmp_eq_u32 {s(S_M+14)}, 2")
        self.tag(range(SUM, SUM+4), VT, dst=range(F, F+4))
        if self.fast:
            La, Lb = self.lab("h1l"), self.lab("h1j")
            a(f"s_cbranch_scc1 {La}")
            a(f"buffer_store_dwordx4 {v(F,4)}, {v(VA)}, {s(R0,4)}, {s(SPUB)} offen sc1")
            a(f"s_branch {Lb}")
            a(f"{La}:")
            a(f"buffer_store_dwordx4 {v(F,4)}, {v(VA)}, {s(R0,4)}, {s(SPUB)} offen")
            a(f"{Lb}:")
        else: a(f"buffer_store_dwordx4 {v(F,4)}, {v(VA)}, {s(R0,4)}, {s(SPUB)} offen sc1")
        self.stamp(6)
        if self.wdma: wload(worder[self.wsplit:])
        pre = late and (self.prepoll or self.wdma)
        if late and not pre: wprep()
        if self.solo:
            BO = HB
            L1, L2 = self.lab("solo1"), self.lab("solo2")
            breads = [f"ds_read_b128 {v(BO,4)}, {v(VB)} offset:{L_OB}", f"ds_read_b128 {v(BO+4,4)}, {v(VB)} offset:{L_OB+64}"]
            a(f"s_cmp_lg_u32 {s(SZ)}, 0"); a(f"s_cbranch_scc1 {L1}")
            if self.solo == 2:
                yr = [AD+4*k for k in range(4)] + [F+4+4*k for k in range(4)]
                Y = [(f"buffer_load_dwordx4 {v(yr[k],4)}, {v(VP)}, {s(R0,4)}, {s(SP0+k)} offen sc1", yr[k], 4) for k in range(8)]
                self.poll2(loads, Y, VT, T+3, SUM, between=wprep)
            else: self.poll(loads, VT, T+3, acc=SUM, between=wprep)
            self.stamp(7)
            self.fold4(SUM)
            a(f"v_cvt_pk_bf16_f32 {v(SUM)}, {v(SUM)}, {v(SUM)}")
            a(f"ds_write_b16 {v(T+1)}, {v(SUM)} offset:{L_OB}")
            a(f"ds_write_b32 {v(VZ)}, {v(T+2)} offset:{L_OFLAG}")
            for b in breads: a(b)
            a(f"s_branch {L2}")
            a(f"{L1}:")
            wprep(8)
            self.lds_wait(L_OFLAG, 1, VZ, T+2, breads, sleep=0)
            self.stamp(7)
            a(f"{L2}:")
        else:
            BO = W
            if self.pipe:
                yr = [AD+4*k for k in range(4)] + [F+4+4*k for k in range(4)]
                Y = [(f"buffer_load_dwordx4 {v(yr[k],4)}, {v(VP)}, {s(R0,4)}, {s(SP0+k)} offen sc1", yr[k], 4) for k in range(8)]
                self.poll2(loads, Y, VT, T+3, SUM, between=wprep)
                BO = HB
            elif self.light: self.gather8(loads, VT, HB+4, SUM, VP, SP0, 13, between=(wprep if pre else None))
            else: self.poll(loads, VT, T+3, acc=SUM, between=(wprep if pre else None))
            self.stamp(7)
            if self.rdelay == 1: a(f"v_mov_b32 {v(T+2)}, 1"); a(f"ds_write_b32 {v(VZ)}, {v(T+2)} offset:{L_PUB}")
            self.fold4(SUM)
            a(f"v_cvt_pk_bf16_f32 {v(SUM)}, {v(SUM)}, {v(SUM)}")
            a(f"ds_write_b16 {v(T+1)}, {v(SUM)} offset:{L_OB}")
            a(f"ds_read_b128 {v(BO,4)}, {v(VB2)} offset:{L_OB}"); a(f"ds_read_b128 {v(BO+4,4)}, {v(VB2)} offset:{L_OB+64}")
        a("s_mov_b32 exec_lo, 0x10001"); a("s_mov_b32 exec_hi, 0x10001")
        self.lgkm(1)
        for t in range(2): a(f"v_mfma_f32_16x16x32_bf16 {v(DD+4*t,4)}, {v(AW+8*t,4)}, {v(BO,4)}, 0")
        self.lgkm(0)
        for t in range(2): a(f"v_mfma_f32_16x16x32_bf16 {v(DD+4*t,4)}, {v(AW+8*t+4,4)}, {v(BO+4,4)}, {v(DD+4*t,4)}")
        for t in range(2, 4):
            a(f"v_mfma_f32_16x16x32_bf16 {v(DD+4*t,4)}, {v(AW+8*t,4)}, {v(BO,4)}, 0")
            a(f"v_mfma_f32_16x16x32_bf16 {v(DD+4*t,4)}, {v(AW+8*t+4,4)}, {v(BO+4,4)}, {v(DD+4*t,4)}")
        for t in range(4):
            self.tag(range(DD+4*t, DD+4*t+4), VT, dst=range(OUT, OUT+4))
            if t < 3: a("s_lshl_b64 exec, exec, 1")
        a("s_mov_b32 exec_lo, 0xff00ff"); a("s_mov_b32 exec_hi, 0xff00ff")
        a(f"buffer_store_dwordx4 {v(OUT,4)}, {v(VH)}, {s(R0,4)}, {s(SHB)} offen sc1")
        self.stamp(8)
        if self.red2:
            Lx = self.lab("tailend")
            G = SUM
            a(f"s_cmp_ge_u32 {s(S_WG)}, 32"); a(f"s_cbranch_scc1 {Lx}")
            a("s_mov_b64 exec, -1")
            a(f"v_lshrrev_b32 {v(VP)}, 2, v0"); a(f"v_lshlrev_b32 {v(VP)}, 7, {v(VP)}")
            a(f"v_and_b32 {v(T)}, 2, v0"); a(f"v_lshl_add_u32 {v(VP)}, {v(T)}, 5, {v(VP)}")
            a(f"v_and_b32 {v(T)}, 1, v0"); a(f"v_lshl_add_u32 {v(VP)}, {v(T)}, 4, {v(VP)}")
            a(f"s_lshl_b32 {s(S_T0)}, {s(S_WG)}, 13"); a(f"s_lshl_b32 {s(S_T1)}, {s(SZ)}, 5"); a(f"s_add_u32 {s(S_T0)}, {s(S_T0)}, {s(S_T1)}")
            a(f"s_add_u32 {s(S_T0)}, {s(S_T0)}, {HBOX:#x}"); a(f"s_add_u32 {s(S_T1)}, {s(S_T0)}, 4096")
            a(f"v_lshlrev_b32 {v(XC)}, 16, {v(XC)}")
            self.srd(R1, P_OUT, 1024)
            mk = lambda r0: [(f"buffer_load_dwordx4 {v(r0+4*j,4)}, {v(VP)}, {s(R0,4)}, {s(S_T0+(j>>1))} offen offset:{2048*(j&1)} sc1", r0+4*j, 4) for j in range(4)]
            a("s_waitcnt vmcnt(0)")
            self.stamp(9)
            if self.red2 == 1: self.poll2(mk(W), mk(W+16), VT, T, G, quad=True)
            else: self.poll(mk(W), VT, T, acc=G, quad=True)
            self.stamp(10)
            self.fold4(G)
            self.ror("v_add_f32", [G], (4, 8))
            self.rbf1(G, G)
            self.silu_bf(G+1, G, T)
            a(f"v_mul_f32_dpp {v(G)}, {v(G+1)}, {v(G)} quad_perm:[2,3,2,3] row_mask:0xf bank_mask:0xf"); self.rbf1(G, G)
            a(f"v_add_f32 {v(G)}, {v(G)}, {v(XC)}"); a(f"v_cvt_pk_bf16_f32 {v(G)}, {v(G)}, {v(G)}")
            a("s_mov_b32 exec_lo, 0x30003"); a("s_mov_b32 exec_hi, 0x30003")
            a(f"buffer_store_short {v(G)}, {v(VOUT)}, {s(R1,4)}, 0 offen {self.outpol}")
            a(f"s_or_b32 {s(S_T0)}, {s(S_WG)}, {s(SZ)}"); a(f"s_cbranch_scc1 {Lx}")
            a("s_mov_b64 exec, 1")
            a(f"v_mov_b32 {v(T)}, {s(S_E)}")
            a(f"buffer_store_dword {v(T)}, {v(VZ)}, {s(R0,4)}, 0 offen offset:{EPOCH} {self.outpol}")
            a(f"{Lx}:")
            if self.diag: a("s_waitcnt vmcnt(0)")
            self.stamp(11)
            return self.finish(T)
        if self.rdelay >= 2:
            a(f"v_mov_b32 {v(T+2)}, 1"); a("s_mov_b64 exec, 1")
            if self.rdelay != 3: a("s_waitcnt vmcnt(0)")
            a(f"ds_add_u32 {v(VZ)}, {v(T+2)} offset:{L_PUB}")
        if self.fast and self.clean:
            a("s_mov_b64 exec, -1")
            a(f"buffer_store_dwordx4 {v(F,4)}, {v(VA)}, {s(R0,4)}, {s(SPUB)} offen sc1")
        if self.amp2:
            pa, pb, k = self.amp2
            a(f"s_add_u32 {s(S_T0)}, {s(S_WG)}, {s(SZ)}"); a(f"s_cmp_lg_u32 {s(S_T0)}, 0"); a("s_cbranch_scc1 Lamp2x")
            a("s_waitcnt lgkmcnt(0)")
            a(f"s_sub_u32 {s(S_T0)}, {s(S_ST+2*pb)}, {s(S_ST+2*pa)}"); a(f"s_mul_i32 {s(S_T0)}, {s(S_T0)}, {k}")
            a(f"s_min_u32 {s(S_T0)}, {s(S_T0)}, 100000")
            a("Lamp2:")
            a(f"s_memrealtime {s(S_ST+20,2)}"); a("s_waitcnt lgkmcnt(0)")
            a(f"s_sub_u32 {s(S_T1)}, {s(S_ST+20)}, {s(S_ST+16)}"); a(f"s_cmp_lt_u32 {s(S_T1)}, {s(S_T0)}"); a("s_cbranch_scc1 Lamp2")
            a("Lamp2x:")
        if self.diag: a("s_waitcnt vmcnt(0)")
        self.stamp(9)
        self.finish(T)

    def build(self):
        a = self.a
        hdr = open("recurrent_scan__gqa_block_cached__swiglu_ffn__decode.s.ref").read().split("; @launch")[0]
        a(f'.amdgcn_target "amdgcn-amd-amdhsa--gfx950"')
        a(".text"); a(f".globl {KN}"); a(".p2align 8"); a(f".type {KN},@function"); a(f"{KN}:")
        if not (self.pf and self.pfe): self.ebar = 0
        a(f"s_load_dwordx16 {s(4,16)}, s[0:1], 0")
        if self.diag or not self.ebar: a(f"s_load_dwordx8 {s(20,8)}, s[0:1], 64")
        a("s_cmp_ge_u32 s2, 256"); a("s_cbranch_scc1 Lend")
        if self.diag:
            for k in range(1, 12): a(f"s_mov_b32 {s(S_ST+2*k)}, 0")
        self.stamp(0)
        a("v_lshrrev_b32 v1, 6, v0"); a("v_and_b32 v0, 63, v0"); a(f"v_readfirstlane_b32 {s(S_WAVE)}, v1")
        a(f"s_and_b32 {s(S_H)}, s2, 7"); a(f"s_lshr_b32 {s(S_S)}, s2, 3")
        if self.pf and self.pfe:
            a(f"s_cmp_lt_u32 {s(S_WAVE)}, 8"); a("s_cbranch_scc1 Lstream")
            a("v_lshlrev_b32 v3, 4, v0")
            if self.ebar and not self.diag: a(f"s_load_dwordx8 {s(20,8)}, s[0:1], 64")
            self.prefetch(3, 72)
            if self.ebar: a("s_barrier")
            a("s_branch Lservice")
            a("Lstream:")
        else:
            a(f"s_cmp_ge_u32 {s(S_WAVE)}, 8"); a("s_cbranch_scc1 Lservice")
        self.streamer()
        a("Lservice:")
        if self.prio: a("s_setprio 3")
        a(f"s_mov_b32 {s(S_HI)}, 0xffff0000"); a(f"s_mov_b32 {s(S_TM)}, {(1 << self.tagbits) - 1:#x}")
        self.stage1()
        a(f"s_cmp_eq_u32 {s(S_WAVE)}, 9"); a("s_cbranch_scc1 Lsw1")
        a(f"s_cmp_gt_u32 {s(S_WAVE)}, 9"); a("s_cbranch_scc1 Lsw23")
        self.sw0()
        a("Lsw23:"); self.sw23()
        a("Lsw1:"); self.sw1()
        a("Lend:"); a("s_endpgm")
        a("Lcode_end:")
        a(".fill 64, 4, 0xbf800000")
        a('.section .rodata,"a"'); a(".p2align 6"); a(f".amdhsa_kernel {KN}")
        for d in ("next_free_vgpr 168", "next_free_sgpr 102", "accum_offset 168", "group_segment_fixed_size 0", "kernarg_size 96",
                  "user_sgpr_count 2", "user_sgpr_kernarg_segment_ptr 1", "system_sgpr_workgroup_id_x 1", "float_denorm_mode_32 3"):
            a(f".amdhsa_{d}")
        a(".end_amdhsa_kernel")
        return hdr + f"; @launch grid=(256,1,1) block=(768,1,1) lds={LDS_BYTES + self.ldspad}\n" + DOC + a.finalize()

def gen(**kw): return G(**kw).build()
if __name__ == "__main__":
    kw = eval("dict(" + (sys.argv[2] if len(sys.argv) > 2 else "") + ")")
    open(sys.argv[1], "w").write(gen(**kw))
```

```python
import sys
from asmlib import Asm
KN = "recurrent_scan__gqa_block_cached__swiglu_ffn__decode_kernel"

EPOCH = 0
QBOX, MLBOX, PBOX, XBOX, GBOX, OBOX, HBOX = 0x1000, 0x9000, 0xB000, 0xC000, 0x10000, 0x20000, 0xA0000
WS_USED = 0xE0000
STAMP = 128 << 20
L_QFLAG, L_MLCNT, L_FFLAG, L_S1CNT, L_PROG, L_HFLAG, L_ACNT, L_WCNT = 0, 4, 8, 12, 16, 20, 24, 28
L_CNT, L_PUB, L_BOOST, L_OFLAG = 32, 36, 40, 48
L_ML, L_F, L_H, L_Q, L_S1, L_OB, L_O = 64, 320, 448, 512, 1536, 2560, 2816
OSTR = 16*144
L_W = L_O + 8*OSTR
L_A = L_O
LDS_BYTES = L_W + 2*12288
SPIN = 1 << 16

LOG2E = 0x3fb8aa3b
SCALE = 0x3db504f3
EPS = 0x3727c5ac

DOC = '''; ------------------------------------------------------------------------------------------------
;
; Workgroup (H = id & 7, S = id >> 3) owns 1024 keys of KV head H. 12 waves:
;   waves 0-7  "streamers": 128 keys each. K (all of it) then V go straight to registers, a few 1 KiB
;              They also fetch the stage-1 weight tile (wq or w_gate/w_up) into LDS.
;              max / sum inside the head group -> per-wave factors exp(m_w - M) / L
;              workgroup), 64 x 128 tile of wo and 32 x 128 tile of w_down by MFMA, hop 2 to the reducers
;
; use sc1 loads and re-read until a whole message shows the tag. Writers use sc1 (write-through) stores,
; or ordinary stores once all 32 workgroups of the head group have reported the writer's own XCC id.
; ------------------------------------------------------------------------------------------------
'''

def v(i, n=1): return f"v{i}" if n == 1 else f"v[{i}:{i+n-1}]"
def s(i, n=1): return f"s{i}" if n == 1 else f"s[{i}:{i+n-1}]"

S_WG, S_WAVE = 2, 3
P_X, P_K, P_V, P_WQ, P_WO, P_BX, P_WG, P_WU, P_WD, P_OUT, P_DBG, P_WS = range(4, 28, 2)
R0, R1, R2, R3, R4 = 28, 32, 36, 40, 44
S_H, S_S = 48, 49
S_T0, S_T1, S_T2, S_T3 = 50, 51, 52, 53
S_HI, S_TM, S_LO, S_HIS = 54, 55, 56, 57
S_CNT, S_E = 58, 59
S_M = 60
S_ST = 76

class G:
    def __init__(self, D=3, D2=3, nD2=58, n0=28, il=12, kvpol="nt", wpol="nt", diag=0, pf=1, nq=16, nm=56, g_trig=44,
                 outpol="", prio=1, touch=0, cut=0, amp=None, trace=0, ramp=None, wpos=64, apos=1, smooth=1, wlate=0, prepoll=0, fast=1, clean=0, wdma=1, rot=1, agap=1, light=0, ldspad=0, hsleep=0, pipe=1, wsplit=12, wtouch=0, otouch=0, ctl=1, qk2=1, hello=5, wprog=1, tagbits=4, plo=3, amp2=None, pfe=1, pf2=0, afake=0, rdelay=2, wdrain=None, pfirst=0, solo=1, dirty=0, red2=1, ebar=1, qgap=1, early=1):
        self.__dict__.update(locals()); del self.__dict__['self']
        self.a = Asm(); self.nlab = 0
        assert self.wdma
        if self.ctl == 1: self.ctl = dict(to=68, bth=0, bg=0.5, bcap=5, tth=4, tg=0.15, tcap=0, lead=0, exit=62, **{'from': 8})
    def lab(self, p):
        self.nlab += 1; return f"L{p}{self.nlab}"
    def srd(self, r, ptr, size):
        a = self.a
        a(f"s_mov_b32 {s(r)}, {s(ptr)}"); a(f"s_mov_b32 {s(r+1)}, {s(ptr+1)}")
        a(f"s_mov_b32 {s(r+2)}, {size:#x}"); a(f"s_mov_b32 {s(r+3)}, 0x20000")
    def stamp(self, k):
        if self.diag or self.amp or self.amp2: self.a(f"s_memrealtime {s(S_ST+2*k,2)}")
    def lgkm(self, n):
        self.a(f"s_waitcnt lgkmcnt({0 if (self.diag or self.amp or self.amp2) else n})")
    def finish(self, vt):
        a = self.a
        if self.diag:
            a("s_waitcnt lgkmcnt(0)")
            a(f"s_mul_i32 {s(S_T0)}, {s(S_WG)}, 12"); a(f"s_add_u32 {s(S_T0)}, {s(S_T0)}, {s(S_WAVE)}")
            a(f"s_lshl_b32 {s(S_T0)}, {s(S_T0)}, 6"); a(f"s_add_u32 {s(S_T0)}, {s(S_T0)}, {STAMP:#x}")
            a("s_mov_b64 exec, 1")
            a(f"v_mov_b32 {v(vt)}, {s(S_T0)}")
            for k in range(12):
                a(f"v_mov_b32 {v(vt+1)}, {s(S_ST+2*k)}")
                a(f"global_store_dword {v(vt)}, {v(vt+1)}, {s(P_WS,2)} offset:{4*k}")
            a("s_waitcnt vmcnt(0)")
        a("s_endpgm")
    def unpack(self, lo, hi, src):
        self.a(f"v_lshlrev_b32 {v(lo)}, 16, {v(src)}"); self.a(f"v_and_b32 {v(hi)}, {s(S_HI)}, {v(src)}")
    def rbf1(self, dst, src):
        self.a(f"v_cvt_pk_bf16_f32 {v(dst)}, {v(src)}, {v(src)}"); self.a(f"v_and_b32 {v(dst)}, {s(S_HI)}, {v(dst)}")
    def rbf2(self, d0, d1, s0, s1, t):
        self.a(f"v_cvt_pk_bf16_f32 {v(t)}, {v(s0)}, {v(s1)}"); self.unpack(d0, d1, t)
    def ror(self, op, regs, steps):
        for n in steps:
            for r in regs: self.a(f"{op}_dpp {v(r)}, {v(r)}, {v(r)} row_ror:{n} row_mask:0xf bank_mask:0xf")
    def rows_all(self, op, x, t):
        a = self.a
        for sw in ("v_permlane16_swap_b32", "v_permlane32_swap_b32"):
            a(f"v_mov_b32 {v(t)}, {v(x)}"); a(f"{sw} {v(x)}, {v(t)}"); a(f"{op} {v(x)}, {v(x)}, {v(t)}")
    def fold(self, sw, pairs):
        for x, y in pairs: self.a(f"{sw} {v(x)}, {v(y)}")
        for x, y in pairs: self.a(f"v_add_f32 {v(x)}, {v(x)}, {v(y)}")
    def fold4(self, x):
        self.fold("v_permlane32_swap_b32", [(x, x+2), (x+1, x+3)])
        self.fold("v_permlane16_swap_b32", [(x, x+1)])
    def silu_bf(self, dst, x, t):
        a = self.a
        a(f"v_mul_f32 {v(t)}, {0x80000000 ^ LOG2E:#x}, {v(x)}"); a(f"v_exp_f32 {v(t)}, {v(t)}")
        a(f"v_add_f32 {v(t)}, 1.0, {v(t)}"); a(f"v_rcp_f32 {v(t)}, {v(t)}"); a(f"v_mul_f32 {v(t)}, {v(x)}, {v(t)}")
        self.rbf1(dst, t)
    def layernorm(self, X, XF, T):
        a = self.a
        for k in range(4): self.unpack(XF+2*k, XF+2*k+1, X+k)
        a(f"v_add_f32 {v(T)}, {v(XF)}, {v(XF+1)}")
        for k in range(2, 8): a(f"v_add_f32 {v(T)}, {v(T)}, {v(XF+k)}")
        self.ror("v_add_f32", [T], (8, 4, 2, 1)); self.rows_all("v_add_f32", T, T+1)
        a(f"v_mul_f32 {v(T)}, 0x3b000000, {v(T)}")
        a(f"v_sub_f32 {v(T+2)}, {v(XF)}, {v(T)}"); a(f"v_mul_f32 {v(T+3)}, {v(T+2)}, {v(T+2)}")
        for k in range(1, 8):
            a(f"v_sub_f32 {v(T+2)}, {v(XF+k)}, {v(T)}"); a(f"v_fmac_f32 {v(T+3)}, {v(T+2)}, {v(T+2)}")
        self.ror("v_add_f32", [T+3], (8, 4, 2, 1)); self.rows_all("v_add_f32", T+3, T+1)
        a(f"v_mul_f32 {v(T+3)}, 0x3b000000, {v(T+3)}")
        self.rbf2(T, T+3, T, T+3, T+1)
        a(f"v_add_f32 {v(T+3)}, {EPS:#x}, {v(T+3)}"); self.rbf1(T+3, T+3)
        a(f"v_sqrt_f32 {v(T+3)}, {v(T+3)}"); self.rbf1(T+3, T+3)
        a(f"v_rcp_f32 {v(T+2)}, {v(T+3)}")
        for k in range(8): a(f"v_sub_f32 {v(XF+k)}, {v(XF+k)}, {v(T)}")
        for k in range(4): self.rbf2(XF+2*k, XF+2*k+1, XF+2*k, XF+2*k+1, T+1)
        for k in range(8):
            a(f"v_mul_f32 {v(T+4)}, {v(XF+k)}, {v(T+2)}")
            a(f"v_fma_f32 {v(T+5)}, -{v(T+4)}, {v(T+3)}, {v(XF+k)}")
            a(f"v_fma_f32 {v(XF+k)}, {v(T+5)}, {v(T+2)}, {v(T+4)}")
        for k in range(4): self.rbf2(XF+2*k, XF+2*k+1, XF+2*k, XF+2*k+1, T+1)
    def tag(self, regs, vT, dst=None):
        for i, r in enumerate(regs):
            d = r if dst is None else dst[i]
            self.a(f"v_bfi_b32 {v(d)}, {s(S_TM)}, {v(vT)}, {v(r)}")
    def joint(self, t, quad=False):
        perms = ["quad_perm:[1,0,3,2]", "quad_perm:[2,3,0,1]"] + ([] if quad else ["row_half_mirror"])
        if quad or self.tagbits < 10:
            for p in perms: self.a(f"v_or_b32_dpp {v(t)}, {v(t)}, {v(t)} {p} row_mask:0xf bank_mask:0xf")
    def poll(self, loads, vT, t, acc=None, between=None, quad=False):
        a = self.a; L = self.lab("poll"); Lo = self.lab("pollx")
        if between:
            Lc = self.lab("pollc")
            for ld in loads: a(ld[0])
            between()
            a(f"s_mov_b32 {s(S_CNT)}, {SPIN}")
            a(f"s_branch {Lc}")
        else: a(f"s_mov_b32 {s(S_CNT)}, {SPIN}")
        a(f"{L}:")
        for ld in loads: a(ld[0])
        if between: a(f"{Lc}:")
        first = True
        for j, (_, r0, n) in enumerate(loads):
            a(f"s_waitcnt vmcnt({len(loads)-1-j})")
            for w in range(r0, r0+n):
                if first: a(f"v_xor_b32 {v(t)}, {v(w)}, {v(vT)}"); first = False
                else: a(f"v_bitop3_b32 {v(t)}, {v(w)}, {v(vT)}, {v(t)} bitop3:0xbe")
            if j == len(loads) - 1:
                self.joint(t, quad)
                a(f"v_and_b32 {v(t)}, {s(S_TM)}, {v(t)}")
                a(f"v_cmp_ne_u32 vcc, 0, {v(t)}")
            if acc is not None and j >= 1:
                p = loads[0][1] if j == 1 else acc
                a(f"v_pk_add_f32 {v(acc,2)}, {v(p,2)}, {v(r0,2)}"); a(f"v_pk_add_f32 {v(acc+2,2)}, {v(p+2,2)}, {v(r0+2,2)}")
        a(f"s_sub_u32 {s(S_CNT)}, {s(S_CNT)}, 1")
        a(f"s_cbranch_scc1 {Lo}")
        a("s_mov_b64 exec, vcc")
        if acc is not None and self.hsleep:
            a(f"s_cbranch_execz {Lo}"); a(f"s_sleep {self.hsleep}"); a(f"s_branch {L}")
        else: a(f"s_cbranch_execnz {L}")
        a(f"{Lo}:")
        a("s_mov_b64 exec, -1")
    def poll2(self, X, Y, vT, t, acc, between=None, quad=False):
        a = self.a; L = self.lab("pp"); Lo = self.lab("ppx")
        n = len(X)
        def check(loads, out=2):
            first = True
            for j, (_, r0, nr) in enumerate(loads):
                a(f"s_waitcnt vmcnt({out*n-1-j})")
                for w in range(r0, r0+nr):
                    if first: a(f"v_xor_b32 {v(t)}, {v(w)}, {v(vT)}"); first = False
                    else: a(f"v_bitop3_b32 {v(t)}, {v(w)}, {v(vT)}, {v(t)} bitop3:0xbe")
                if j >= 1:
                    p = loads[0][1] if j == 1 else acc
                    a(f"v_pk_add_f32 {v(acc,2)}, {v(p,2)}, {v(r0,2)}"); a(f"v_pk_add_f32 {v(acc+2,2)}, {v(p+2,2)}, {v(r0+2,2)}")
                if j == n - 1:
                    self.joint(t, quad)
                    a(f"v_and_b32 {v(t)}, {s(S_TM)}, {v(t)}")
                    a(f"v_cmp_ne_u32 vcc, 0, {v(t)}")
            a("s_mov_b64 exec, vcc")
        for ld in X: a(ld[0])
        if between:
            between()
            if self.pfirst:
                check(X, 1)
                a(f"s_cbranch_execz {Lo}")
                for ld in X: a(ld[0])
        a(f"s_mov_b32 {s(S_CNT)}, {SPIN}")
        a(f"{L}:")
        for ld in Y: a(ld[0])
        check(X)
        a(f"s_cbranch_execz {Lo}")
        for ld in X: a(ld[0])
        check(Y)
        a(f"s_sub_u32 {s(S_CNT)}, {s(S_CNT)}, 1")
        a(f"s_cbranch_scc1 {Lo}")
        a(f"s_cbranch_execnz {L}")
        a(f"{Lo}:")
        a("s_mov_b64 exec, -1")
    def gather8(self, loads, vT, t, acc, vaddr, soff, lg, between=None):
        a = self.a; L = self.lab("lp"); Lo = self.lab("lpx")
        P, R, J, B, A = t+1, t+2, t+3, t+4, t+5
        for ld in loads: a(ld[0])
        if between: between()
        first = True
        for j, (_, r0, n) in enumerate(loads):
            a(f"s_waitcnt vmcnt({len(loads)-1-j})")
            for w in range(r0, r0+n):
                if first: a(f"v_xor_b32 {v(t)}, {v(w)}, {v(vT)}"); first = False
                else: a(f"v_bitop3_b32 {v(t)}, {v(w)}, {v(vT)}, {v(t)} bitop3:0xbe")
            if j == len(loads) - 1:
                a(f"v_and_b32 {v(t)}, {s(S_TM)}, {v(t)}")
                a(f"v_cmp_ne_u32 vcc, 0, {v(t)}")
            if j >= 1:
                p = loads[0][1] if j == 1 else acc
                a(f"v_pk_add_f32 {v(acc,2)}, {v(p,2)}, {v(r0,2)}"); a(f"v_pk_add_f32 {v(acc+2,2)}, {v(p+2,2)}, {v(r0+2,2)}")
        a(f"s_cbranch_vccz {Lo}")
        for r in range(acc, acc+4): a(f"v_mov_b32 {v(r)}, 0")
        a(f"v_mov_b32 {v(P)}, 0")
        def check(q):
            a(f"v_xor_b32 {v(t)}, {v(q)}, {v(vT)}")
            for w in range(q+1, q+4): a(f"v_bitop3_b32 {v(t)}, {v(w)}, {v(vT)}, {v(t)} bitop3:0xbe")
            a(f"v_and_b32 {v(t)}, {s(S_TM)}, {v(t)}")
            a(f"v_cmp_eq_u32 vcc, 0, {v(t)}")
        for j, (_, r0, n) in enumerate(loads):
            check(r0)
            a("s_mov_b64 exec, vcc")
            a(f"v_pk_add_f32 {v(acc,2)}, {v(acc,2)}, {v(r0,2)}"); a(f"v_pk_add_f32 {v(acc+2,2)}, {v(acc+2,2)}, {v(r0+2,2)}")
            a("s_not_b64 exec, vcc")
            a(f"v_or_b32 {v(P)}, {1 << j}, {v(P)}")
            a("s_mov_b64 exec, -1")
        Q = loads[0][1]
        a(f"v_mov_b32 {v(R)}, {v(P)}")
        a(f"v_cmp_ne_u32 vcc, 0, {v(P)}")
        a(f"s_mov_b32 {s(S_CNT)}, {SPIN*4}")
        a("s_mov_b64 exec, vcc")
        a(f"{L}:")
        a(f"v_ffbl_b32 {v(J)}, {v(R)}")
        a(f"v_lshl_add_u32 {v(A)}, {v(J)}, {lg}, {v(vaddr)}")
        a(f"buffer_load_dwordx4 {v(Q,4)}, {v(A)}, {s(R0,4)}, {s(soff)} offen sc1")
        a(f"v_lshlrev_b32 {v(B)}, {v(J)}, 1")
        a(f"v_xor_b32 {v(R)}, {v(R)}, {v(B)}")
        a(f"s_sub_u32 {s(S_CNT)}, {s(S_CNT)}, 1")
        a(f"s_cbranch_scc1 {Lo}")
        a("s_waitcnt vmcnt(0)")
        check(Q)
        a(f"s_and_saveexec_b64 {s(S_T2,2)}, vcc")
        a(f"v_xor_b32 {v(P)}, {v(P)}, {v(B)}")
        a(f"v_pk_add_f32 {v(acc,2)}, {v(acc,2)}, {v(Q,2)}"); a(f"v_pk_add_f32 {v(acc+2,2)}, {v(acc+2,2)}, {v(Q+2,2)}")
        a(f"s_mov_b64 exec, {s(S_T2,2)}")
        a(f"v_cmp_eq_u32 {s(S_T2,2)}, 0, {v(R)}")
        a(f"v_cmp_ne_u32 vcc, 0, {v(P)}")
        a(f"v_cndmask_b32 {v(R)}, {v(R)}, {v(P)}, {s(S_T2,2)}")
        a("s_mov_b64 exec, vcc")
        a(f"s_cbranch_execnz {L}")
        a(f"{Lo}:")
        a("s_mov_b64 exec, -1")
    def lds_wait(self, off, val, vz, t, extra=(), sleep=1):
        a = self.a; L = self.lab("lw"); Lo = self.lab("lwx")
        a(f"s_mov_b32 {s(S_CNT)}, {SPIN*16}")
        a(f"{L}:")
        a(f"ds_read_b32 {v(t)}, {v(vz)} offset:{off}")
        for e in extra: a(e)
        a("s_waitcnt lgkmcnt(0)")
        a(f"v_readfirstlane_b32 {s(S_T3)}, {v(t)}")
        a(f"s_cmp_ge_u32 {s(S_T3)}, {val}")
        a(f"s_cbranch_scc1 {Lo}")
        a(f"s_sub_u32 {s(S_CNT)}, {s(S_CNT)}, 1")
        a(f"s_cbranch_scc1 {Lo}")
        if sleep: a(f"s_sleep {sleep}")
        a(f"s_branch {L}")
        a(f"{Lo}:")
    def pub(self, text, sfast):
        a = self.a
        La, Lb = self.lab("pl"), self.lab("pj")
        a(f"s_cmp_eq_u32 {s(sfast)}, 2"); a(f"s_cbranch_scc1 {La}")
        a(text + " sc1"); a(f"s_branch {Lb}")
        a(f"{La}:"); a(text); a(f"{Lb}:")
    def trig(self, what, vz, t):
        if what == "q": self.lds_wait(L_QFLAG, 1, vz, t)
        elif what == "ml": self.lds_wait(L_MLCNT, 8, vz, t)
        elif isinstance(what, int) and what > 0: self.lds_wait(L_PROG, what, vz, t)
    def streamer(self):
        a = self.a
        VK, VV, VZ, VT, VT2 = 1, 2, 3, 4, 5
        Q, S, DT, KB = 8, 12, 20, 36
        slot = lambda i: KB + 4*i
        ACC, AO, B = slot(16), slot(18), slot(23)
        SB = S_T0
        a("; ==== streamer: lane offsets (K: quad-permuted 1 KiB, V: linear), descriptors, paced load sequence ====")
        a(f"s_lshl_b32 {s(SB)}, {s(S_H)}, 23"); a(f"s_lshl_b32 {s(S_T1)}, {s(S_S)}, 18"); a(f"s_or_b32 {s(SB)}, {s(SB)}, {s(S_T1)}")
        a(f"s_lshl_b32 {s(S_T1)}, {s(S_WAVE)}, {self.il}"); a(f"s_or_b32 {s(SB)}, {s(SB)}, {s(S_T1)}")
        if self.rot == 1: a(f"s_lshl_b32 {s(S_M+9)}, {s(S_S)}, 15")
        if self.rot == 2: a(f"s_add_u32 {s(S_M+9)}, {s(S_S)}, {s(S_H)}"); a(f"s_lshl_b32 {s(S_M+9)}, {s(S_M+9)}, 15")
        a(f"v_lshlrev_b32 {v(VV)}, 4, v0")
        a(f"v_and_b32 {v(VT)}, 0xc0, {v(VV)}"); a(f"v_lshlrev_b32 {v(VT)}, 2, {v(VT)}")
        a(f"v_lshrrev_b32 {v(VK)}, 4, v0"); a(f"v_lshlrev_b32 {v(VK)}, 6, {v(VK)}")
        a(f"v_and_b32 {v(VT2)}, 48, {v(VV)}")
        a(f"v_or3_b32 {v(VK)}, {v(VK)}, {v(VT)}, {v(VT2)}")
        a(f"v_mov_b32 {v(VZ)}, 0")
        if not self.early:
            a("s_waitcnt lgkmcnt(0)")
            self.srd(R0, P_K, 0x4000000); self.srd(R1, P_V, 0x4000000)
        def off(i):
            if self.il == 12: return (i >> 2) * 32768, (i & 3) * 1024
            return i * 8192, 0
        last_so = [None]
        VWA, VWD = 6, 7
        SA, SW0, SW1, SSTR = S_M+5, S_M+6, S_M+7, S_M+4
        def regs(it):
            k, i = it
            return {'K': slot(i), 'V': slot(i % 16), 'A': slot(28 + i), 'W': (DT + 4*i if self.wpos > 40 else slot(28 + i))}[k]
        def setup_a():
            a("; stage-1 tile geometry")
            a(f"s_lshr_b32 {s(S_M)}, {s(S_WAVE)}, 1")
            self.s1_geom(True)
            a(f"s_and_b32 {s(S_T3)}, {s(S_WAVE)}, 1"); a(f"s_lshl_b32 {s(S_T3)}, {s(S_T3)}, 2"); a(f"s_add_u32 {s(S_T3)}, {s(S_T3)}, {s(S_M+3)}")
            a(f"s_mul_i32 {s(S_T3)}, {s(S_T3)}, {s(SSTR)}"); a(f"s_lshl_b32 {s(SA)}, {s(S_T2)}, 7"); a(f"s_add_u32 {s(SA)}, {s(SA)}, {s(S_T3)}")
            a(f"v_and_b32 {v(VT)}, 56, v0"); a(f"v_mul_u32_u24 {v(VT)}, {s(SSTR)}, {v(VT)}")
            a(f"v_and_b32 {v(VT2)}, 0x70, {v(VV)}"); a(f"v_add_u32 {v(VWA)}, {v(VT)}, {v(VT2)}")
            if self.afake:
                lg = 3 + self.afake
                a(f"v_lshrrev_b32 {v(VT)}, {lg}, v0"); a(f"v_mul_u32_u24 {v(VT)}, {s(SSTR)}, {v(VT)}")
                a(f"v_and_b32 {v(VT2)}, {(16 << lg) - 16:#x}, {v(VV)}"); a(f"v_add_u32 {v(VWA)}, {v(VT)}, {v(VT2)}")
                a(f"s_and_b32 {s(S_T3)}, {s(S_S)}, 15"); a(f"s_lshl_b32 {s(S_T3)}, {s(S_T3)}, 3"); a(f"s_add_u32 {s(S_T3)}, {s(S_T3)}, {s(S_WAVE)}")
                a(f"s_and_b32 {s(SA)}, {s(S_T3)}, {(8 >> self.afake) - 1}"); a(f"s_lshl_b32 {s(SA)}, {s(SA)}, {7 + self.afake}")
                a(f"s_lshr_b32 {s(S_T3)}, {s(S_T3)}, {3 - self.afake}"); a(f"s_lshl_b32 {s(S_T3)}, {s(S_T3)}, {5 - self.afake}")
                a(f"s_mul_i32 {s(S_T3)}, {s(S_T3)}, {s(SSTR)}"); a(f"s_add_u32 {s(SA)}, {s(SA)}, {s(S_T3)}")
                a(f"s_cmp_ge_u32 {s(S_S)}, 16"); a(f"s_cselect_b32 {s(S_T3)}, 7, 16"); a(f"s_lshl_b32 {s(S_T3)}, {s(S_T3)}, 6"); a(f"s_mul_i32 {s(S_T3)}, {s(S_T3)}, {s(S_H)}"); a(f"s_and_b32 {s(S_T3)}, {s(S_T3)}, 0xffffff80")
                a(f"s_add_u32 {s(SA)}, {s(SA)}, {s(S_T3)}")
                a(f"s_lshl_b32 {s(SSTR)}, {s(SSTR)}, {3 - self.afake}")
        def setup_w():
            a(f"s_and_b32 {s(S_T2)}, {s(S_S)}, 3"); a(f"s_lshl_b32 {s(S_T2)}, {s(S_T2)}, 1"); a(f"s_lshr_b32 {s(S_T3)}, {s(S_WAVE)}, 2")
            a(f"s_add_u32 {s(S_T2)}, {s(S_T2)}, {s(S_T3)}"); a(f"s_lshl_b32 {s(S_T2)}, {s(S_T2)}, 7")
            a(f"s_lshl_b32 {s(SW0)}, {s(S_H)}, 19"); a(f"s_lshr_b32 {s(S_T3)}, {s(S_S)}, 2"); a(f"s_lshl_b32 {s(S_T3)}, {s(S_T3)}, 10")
            a(f"s_add_u32 {s(SW0)}, {s(SW0)}, {s(S_T3)}"); a(f"s_add_u32 {s(SW0)}, {s(SW0)}, {s(S_T2)}")
            self.fblock(SW1, S_T3)
            a(f"s_lshl_b32 {s(SW1)}, {s(SW1)}, 15"); a(f"s_add_u32 {s(SW1)}, {s(SW1)}, {s(S_T2)}")
            a(f"s_and_b32 {s(S_T2)}, {s(S_WAVE)}, 3")
            a(f"s_lshl_b32 {s(S_T3)}, {s(S_T2)}, 16"); a(f"s_add_u32 {s(SW0)}, {s(SW0)}, {s(S_T3)}")
            a(f"s_lshl_b32 {s(S_T3)}, {s(S_T2)}, 13"); a(f"s_add_u32 {s(SW1)}, {s(SW1)}, {s(S_T3)}")
            self.srd(R2, P_WO, 0x400000); self.srd(R3, P_WD, 0x1c0000)
            a(f"v_lshrrev_b32 {v(VT)}, 3, v0"); a(f"v_and_b32 {v(VT2)}, 0x70, {v(VV)}")
            a(f"v_lshl_add_u32 {v(VWD)}, {v(VT)}, 10, {v(VT2)}"); a(f"v_lshl_add_u32 {v(VWA)}, {v(VT)}, 13, {v(VT2)}")
        def load(it):
            k, i = it
            r = v(regs(it), 4)
            if k in 'KV':
                so, imm = off(i)
                if so != last_so[0]:
                    if self.rot:
                        a(f"s_add_u32 {s(S_T1)}, {s(S_M+9)}, {so}"); a(f"s_and_b32 {s(S_T1)}, {s(S_T1)}, 0x38000"); a(f"s_or_b32 {s(S_T1)}, {s(S_T1)}, {s(SB)}")
                    else: a(f"s_add_u32 {s(S_T1)}, {s(SB)}, {so}")
                    last_so[0] = so
                a(f"buffer_load_dwordx4 {r}, {v(VV if k == 'V' else VK)}, {s(R1 if k == 'V' else R0,4)}, {s(S_T1)} offen offset:{imm} {self.kvpol}")
            elif k == 'A':
                if i == 0 and not self.early: setup_a()
                if i == 0 and self.early:
                    if self.early == 2: setup_a()
                    a(f"s_cmp_ge_u32 {s(S_WAVE)}, 4")
                    a(f"s_cselect_b32 {s(R2)}, {s(P_WU)}, {s(P_WG)}"); a(f"s_cselect_b32 {s(R2+1)}, {s(P_WU+1)}, {s(P_WG+1)}")
                    a(f"s_cmp_ge_u32 {s(S_S)}, 16")
                    a(f"s_cselect_b32 {s(R2)}, {s(R2)}, {s(P_WQ)}"); a(f"s_cselect_b32 {s(R2+1)}, {s(R2+1)}, {s(P_WQ+1)}")
                a(f"buffer_load_dwordx4 {r}, {v(VWA)}, {s(R2,4)}, {s(SA)} offen {self.wpol}")
                if i < 3: a(f"s_add_u32 {s(SA)}, {s(SA)}, {s(SSTR)}")
            else:
                if i < 2: a(f"buffer_load_dwordx4 {r}, {v(VWA)}, {s(R2,4)}, {s(SW0)} offen {self.wpol}")
                else: a(f"buffer_load_dwordx4 {r}, {v(VWD)}, {s(R3,4)}, {s(SW1)} offen {self.wpol}")
                if i == 0: a(f"s_add_u32 {s(SW0)}, {s(SW0)}, 0x40000")
        def count(off_):
            a(f"v_mov_b32 {v(VT2)}, 1"); a("s_mov_b64 exec, 1"); a(f"ds_add_u32 {v(VZ)}, {v(VT2)} offset:{off_}"); a("s_mov_b64 exec, -1")
        def put_a():
            a("; stage-1 tiles -> LDS")
            a(f"s_lshl_b32 {s(S_T2)}, {s(S_WAVE)}, 12"); a(f"v_add_u32 {v(VT)}, {s(S_T2)}, {v(VV)}")
            for i in range(4): a(f"ds_write_b128 {v(VT)}, {v(regs(('A', i)),4)} offset:{L_A + 1024*i}")
            count(L_ACNT)
            if not self.wdma: setup_w()
            if self.dirty:
                a(f"s_mul_i32 {s(S_T2)}, {s(S_WG)}, 8"); a(f"s_add_u32 {s(S_T2)}, {s(S_T2)}, {s(S_WAVE)}"); a(f"s_lshl_b32 {s(S_T2)}, {s(S_T2)}, 10")
                a(f"s_add_u32 {s(S_T2)}, {s(S_T2)}, 0x400000"); a(f"v_add_u32 {v(VT)}, {s(S_T2)}, {v(VV)}")
        def put_w():
            a(f"s_lshr_b32 {s(S_T2)}, {s(S_WAVE)}, 2"); a(f"s_mul_i32 {s(S_T2)}, {s(S_T2)}, 12288")
            a(f"s_and_b32 {s(S_T3)}, {s(S_WAVE)}, 3"); a(f"s_lshl_b32 {s(S_T3)}, {s(S_T3)}, 10"); a(f"s_add_u32 {s(S_T2)}, {s(S_T2)}, {s(S_T3)}")
            a(f"v_add_u32 {v(VT)}, {s(S_T2)}, {v(VV)}")
            for i in range(3): a(f"ds_write_b128 {v(VT)}, {v(regs(('W', i)),4)} offset:{L_W + 4096*i}")
            count(L_WCNT)
        def qk(j):
            for m in range(4):
                a(f"v_mfma_f32_16x16x32_bf16 {v(DT+4*m,4)}, {v(slot(4*j+m),4)}, {v(Q,4)}, 0")
            if self.qk2:
                if j == 0:
                    for m in range(1, 4):
                        a(f"s_mov_b32 {s(P_X+2*m)}, {(15 << 4*m) * 0x10001:#x}"); a(f"s_mov_b32 {s(P_X+2*m+1)}, {(15 << 4*m) * 0x10001:#x}")
                for k in range(1, 4):
                    for m in range(4):
                        b = (m + k) & 3
                        a(f"v_add_f32_dpp {v(DT+5*m)}, {v(DT+4*m+b)}, {v(DT+5*m)} row_ror:{(4*(m-b)) & 15} row_mask:0xf bank_mask:0xf")
                for m in range(1, 4):
                    a(f"v_cndmask_b32 {v(S+j)}, {v(DT if m == 1 else S+j)}, {v(DT+5*m)}, {s(P_X+2*m,2)}")
                return
            for k in range(1, 4):
                for m in range(4):
                    b = (m + k) & 3
                    other = DT+4*m+m if k == 1 else S+j
                    a(f"v_add_f32_dpp {v(S+j)}, {v(DT+4*m+b)}, {v(other)} row_ror:{(4*(m-b)) & 15} row_mask:0xf bank_mask:{1<<m:#x}")
        M, Lr = DT, DT+1
        def sm_scale(k):
            if k == 0: a(f"s_mov_b32 {s(S_M+8)}, {SCALE:#x}")
            x, y = S+2*k, S+2*k+1
            self.rbf2(x, y, x, y, VT)
            a(f"v_mul_f32 {v(x)}, {s(S_M+8)}, {v(x)}"); a(f"v_mul_f32 {v(y)}, {s(S_M+8)}, {v(y)}")
            self.rbf2(x, y, x, y, VT)
        def sm_max():
            a("; true row max over this wave's 128 keys")
            a(f"v_max3_f32 {v(M)}, {v(S)}, {v(S+1)}, {v(S+2)}"); a(f"v_max3_f32 {v(M)}, {v(M)}, {v(S+3)}, {v(S+4)}")
            a(f"v_max3_f32 {v(M)}, {v(M)}, {v(S+5)}, {v(S+6)}"); a(f"v_max_f32 {v(M)}, {v(M)}, {v(S+7)}")
            self.ror("v_max_f32", [M], (4, 8)); self.rows_all("v_max_f32", M, VT)
        def sm_exp():
            a(f"s_mov_b32 {s(S_T2)}, {LOG2E:#x}")
            for k in range(8): a(f"v_sub_f32 {v(S+k)}, {v(S+k)}, {v(M)}")
            for k in range(8): a(f"v_mul_f32 {v(S+k)}, {s(S_T2)}, {v(S+k)}")
            for k in range(8): a(f"v_exp_f32 {v(S+k)}, {v(S+k)}")
        def sm_sum():
            a(f"v_add_f32 {v(Lr)}, {v(S)}, {v(S+1)}")
            for k in range(2, 8): a(f"v_add_f32 {v(Lr)}, {v(Lr)}, {v(S+k)}")
            self.ror("v_add_f32", [Lr], (4, 8)); self.rows_all("v_add_f32", Lr, VT)
            a(f"s_lshl_b32 {s(S_T2)}, {s(S_WAVE)}, 5")
            a(f"v_lshl_add_u32 {v(VT)}, v0, 2, {s(S_T2)}"); a(f"v_mov_b32 {v(VT2)}, 1")
            a("s_mov_b64 exec, 15")
            a(f"ds_write2_b32 {v(VT)}, {v(M)}, {v(Lr)} offset0:{L_ML//4} offset1:{L_ML//4+4}")
            a("s_mov_b64 exec, 1")
            a(f"ds_add_u32 {v(VZ)}, {v(VT2)} offset:{L_MLCNT}")
            a("s_mov_b64 exec, -1")
        def zero_acc():
            a(f"s_mul_i32 {s(S_T2)}, {s(S_WAVE)}, {OSTR}")
            a(f"v_and_b32 {v(VT)}, 15, v0"); a(f"v_mul_u32_u24 {v(VT)}, 144, {v(VT)}"); a(f"v_and_b32 {v(VWD)}, 48, v0")
            a(f"v_add3_u32 {v(VWD)}, {v(VWD)}, {v(VT)}, {s(S_T2)}")
            for r in range(ACC, ACC+8): a(f"v_mov_b32 {v(r)}, 0")
            for r in range(AO, AO+16): a(f"v_mov_b32 {v(r)}, 0")
            if self.plo:
                for r in range(DT, DT+16): a(f"v_mov_b32 {v(r)}, 0")
        AL = DT
        def build_lo(j):
            a(f"v_cvt_pk_bf16_f32 {v(VT)}, {v(S+2*j)}, {v(S+2*j+1)}")
            self.unpack(Q, Q+1, VT)
            a(f"v_sub_f32 {v(Q)}, {v(S+2*j)}, {v(Q)}"); a(f"v_sub_f32 {v(Q+1)}, {v(S+2*j+1)}, {v(Q+1)}")
            a(f"v_cvt_pk_bf16_f32 {v(VT)}, {v(Q)}, {v(Q+1)}")
            for m in range(4):
                for e in range(4):
                    n = (4*(e-m)) & 15
                    ctl = f"row_ror:{n}" if n else "quad_perm:[0,1,2,3]"
                    a(f"v_mov_b32_dpp {v(AL+4*e+m)}, {v(VT)} {ctl} row_mask:0xf bank_mask:{1<<e:#x}")
        def build_a(j):
            a(f"v_cvt_pk_bf16_f32 {v(VT)}, {v(S+2*j)}, {v(S+2*j+1)}")
            for m in range(4):
                for e in range(4):
                    n = (4*(e-m)) & 15
                    ctl = f"row_ror:{n}" if n else "quad_perm:[0,1,2,3]"
                    a(f"v_mov_b32_dpp {v(AO+4*e+m)}, {v(VT)} {ctl} row_mask:0xf bank_mask:{1<<e:#x}")
        def perm1(j, m, e):
            lo, hi = slot((8*j+m) % 16), slot((8*j+4+m) % 16)
            a(f"v_perm_b32 {v(B+4*e+m)}, {v(hi+(e>>1))}, {v(lo+(e>>1))}, {s(S_HIS if e & 1 else S_LO)}")
        def mfma_pv(e, j):
            acc = ACC + 4*(e >> 2)
            a(f"v_mfma_f32_16x16x32_bf16 {v(acc,4)}, {v(AO+4*(e&3),4)}, {v(B+4*e,4)}, {v(acc,4)}")
            if j < self.plo: a(f"v_mfma_f32_16x16x32_bf16 {v(acc,4)}, {v(AL+4*(e&3),4)}, {v(B+4*e,4)}, {v(acc,4)}")
        def pv_last(j):
            order = [0, 4, 1, 5, 2, 6, 3, 7]
            for k in range(3): perm1(j, 3, order[k])
            for k in range(8):
                mfma_pv(order[k], j)
                if k + 3 < 8: perm1(j, 3, order[k+3])
        def qwait():
            a("; wait for q (B operand of QK^T)")
            a(f"v_and_b32 {v(VT2)}, 3, v0"); a(f"v_lshlrev_b32 {v(VT2)}, 8, {v(VT2)}")
            a(f"v_and_b32 {v(VT)}, 0xc0, {v(VV)}"); a(f"v_lshrrev_b32 {v(VT)}, 2, {v(VT)}")
            a(f"v_and_b32 {v(DT)}, 0x300, {v(VV)}"); a(f"v_lshrrev_b32 {v(DT)}, 2, {v(DT)}")
            a(f"v_or3_b32 {v(VT2)}, {v(VT2)}, {v(VT)}, {v(DT)}")
            self.stamp(2)
            if not self.cut: self.lds_wait(L_QFLAG, 1, VZ, VT, [f"ds_read_b128 {v(Q,4)}, {v(VT2)} offset:{L_Q}"])
            self.stamp(3)
        kv = [('K', i) for i in range(32)] + [('V', i) for i in range(32)]
        seq = kv[:self.apos] + [('A', i) for i in range(4)] + kv[self.apos:self.wpos] + [('W', i) for i in range(0 if self.wdma else 3)] + kv[self.wpos:]
        if self.agap:
            seq = [x for x in seq if x[0] != 'A']
            for i in range(4): seq.insert(self.apos + i*(self.agap + 1), ('A', i))
        pos = {it: n for n, it in enumerate(seq)}
        N = len(seq)
        def owrite():
            a("; last PV group, partial o -> LDS")
            self.stamp(7)
            pv_last(3)
            a(f"ds_write_b128 {v(VWD)}, {v(ACC,4)} offset:{L_O}")
            a(f"ds_write_b128 {v(VWD)}, {v(ACC+4,4)} offset:{L_O+64}")
            a("s_waitcnt lgkmcnt(0)")
            a("s_barrier")
            if self.dirty:
                a(f"s_mul_i32 {s(S_T2)}, {s(S_WG)}, 8"); a(f"s_add_u32 {s(S_T2)}, {s(S_T2)}, {s(S_WAVE)}"); a(f"s_lshl_b32 {s(S_T2)}, {s(S_T2)}, 10")
                a(f"s_add_u32 {s(S_T2)}, {s(S_T2)}, 0x400000"); a(f"v_add_u32 {v(VT)}, {s(S_T2)}, {v(VV)}")
                a(f"s_cmp_ge_u32 {s(S_WAVE)}, {self.dirty}"); a("s_cbranch_scc1 Lnodirty")
                a(f"global_store_dwordx4 {v(VT)}, {v(ACC,4)}, {s(P_WS,2)}")
                a("Lnodirty:")
        p0 = pos[('K', self.n0)]
        tasks = [(p0, -1, [], qwait)]
        for j in range(8):
            tasks.append((p0 + int(j*self.qgap), pos[('K', 4*j+3)], [('K', 4*j+m) for m in range(4)], lambda j=j: qk(j)))
            if j & 1: tasks.append((0, -1, [], lambda j=j: sm_scale(j >> 1)))
        for f in (sm_max, sm_exp, sm_sum, zero_acc): tasks.append(('next', -1, [], f))
        for j in range(4):
            tasks.append(('next', -1, [], lambda j=j: build_a(j)))
            if j < self.plo: tasks.append(('next', -1, [], lambda j=j: build_lo(j)))
            for m in range(3): tasks.append(('next', pos[('V', 8*j+4+m)], [('V', 8*j+m), ('V', 8*j+4+m)], lambda j=j, m=m: [perm1(j, m, e) for e in range(8)]))
            tasks.append(('next', pos[('V', 8*j+7)], [('V', 8*j+3), ('V', 8*j+7)], (lambda j=j: pv_last(j)) if j < 3 else owrite))
        side = [(0, pos[('A', 3)], [('A', i) for i in range(4)], put_a)]
        if not self.wdma: side.append((0, pos[('W', 2)], [('W', i) for i in range(3)], put_w))
        trigs = {pos[kv[t]]: t for t in (self.nq, self.nm, self.g_trig) if isinstance(t, int) and t > 0}
        def Dn(n):
            if self.ramp and n < len(self.ramp): return self.ramp[n]
            return self.D2 if (self.D2 and n >= self.nD2) else self.D
        nbar = (self.ramp[0] if self.ramp else self.D) - 1
        busy = {}; landed = -1
        def run(n):
            for q in (side, tasks):
                did = False
                while q and q[0][1] <= landed:
                    e = q[0][0]
                    if e == 'next':
                        if did and n < 99 and self.smooth: break
                    elif e > n: break
                    t = q.pop(0); t[3](); did = True
                    for x in t[2]: busy.pop(regs(x))
        NM = N - 3 if self.wlate else N
        if self.early:
            if self.early == 1: setup_a()
            for r in (R0, R1): a(f"s_mov_b32 {s(r+2)}, 0x4000000"); a(f"s_mov_b32 {s(r+3)}, 0x20000")
            assert seq[0] == ('K', 0) and self.rot
            a(f"s_and_b32 {s(S_T1)}, {s(S_M+9)}, 0x38000"); a(f"s_or_b32 {s(S_T1)}, {s(S_T1)}, {s(SB)}"); last_so[0] = 0
        SK, SJ, VB, V1 = S_M+10, S_M+11, 164, 167
        if self.ctl:
            a(f"s_mov_b32 {s(SK)}, {self.ctl.get('init', 0)}"); a(f"s_mov_b32 {s(SJ)}, 0"); a(f"v_mov_b32 {v(V1)}, 1")
        if self.early:
            a("s_waitcnt lgkmcnt(0)")
            a(f"s_mov_b64 {s(R0,2)}, {s(P_K,2)}")
        for n in range(NM):
            if self.early and n == 1: a(f"s_mov_b64 {s(R1,2)}, {s(P_V,2)}")
            if self.ctl and self.ctl['from'] <= n < self.ctl['to']:
                Lb = self.lab("win"); D = Dn(n)
                two = self.ctl.get('g2') or (self.ctl.get('l2') and n >= self.ctl.get('l2from', 0))
                top = D + (2 if two else 1)
                if n - top > landed: a(f"s_waitcnt vmcnt({top-1})"); landed = n - top
                if n & 1:
                    a("s_waitcnt lgkmcnt(0)"); a(f"v_readfirstlane_b32 {s(SK)}, {v(VB)}"); a(f"v_readfirstlane_b32 {s(SJ)}, {v(VB+1)}")
                a(f"s_cmp_gt_u32 {s(SJ if (self.ctl.get('l2') and not two) else SK)}, {n}"); a(f"s_cbranch_scc1 {Lb}")
                a(f"s_waitcnt vmcnt({top-2})")
                if two:
                    a(f"s_cmp_gt_u32 {s(SJ)}, {n}"); a(f"s_cbranch_scc1 {Lb}")
                    a(f"s_waitcnt vmcnt({top-3})")
                elif self.ctl['tcap']:
                    a(f"s_cmp_le_u32 {s(SJ)}, {n}"); a(f"s_cbranch_scc1 {Lb}")
                    a(f"s_waitcnt vmcnt({D-2})")
                a(f"{Lb}:")
            elif n - Dn(n) > landed:
                a(f"s_waitcnt vmcnt({Dn(n)-1})"); landed = n - Dn(n)
            assert regs(seq[n]) not in busy, (n, seq[n])
            busy[regs(seq[n])] = n
            load(seq[n])
            if self.trace and seq[n] in kv:
                m = kv.index(seq[n])
                if m: a("s_waitcnt lgkmcnt(0)"); a(f"v_writelane_b32 v166, s100, {m-1}")
                a("s_memrealtime s[100:101]")
            if n == nbar:
                a(f"s_mov_b32 {s(S_HI)}, 0xffff0000"); a(f"s_mov_b32 {s(S_LO)}, 0x05040100"); a(f"s_mov_b32 {s(S_HIS)}, 0x07060302")
                if self.ebar:
                    Lb = self.lab("flags")
                    a(f"s_cmp_lg_u32 {s(S_WAVE)}, 0"); a(f"s_cbranch_scc1 {Lb}")
                    a(f"v_lshlrev_b32 {v(VT)}, 2, v0")
                    a("s_mov_b64 exec, 0xffff")
                    a(f"ds_write_b32 {v(VT)}, {v(VZ)}")
                    a("s_mov_b64 exec, -1")
                    a("s_waitcnt lgkmcnt(0)")
                    a(f"{Lb}:")
                a("s_barrier")
            if self.ctl and nbar <= n < self.ctl['to']:
                a("s_mov_b64 exec, 1"); a(f"ds_add_u32 {v(VZ)}, {v(V1)} offset:{L_CNT}"); a("s_mov_b64 exec, -1")
                if not n & 1: a(f"ds_read_b64 {v(VB,2)}, {v(VZ)} offset:{L_BOOST}")
            if n in trigs:
                a(f"v_mov_b32 {v(VT)}, {trigs[n]}"); a("s_mov_b64 exec, 1"); a(f"ds_max_u32 {v(VZ)}, {v(VT)} offset:{L_PROG}"); a("s_mov_b64 exec, -1")
            if self.wdma and self.wdrain is None and seq[n] == kv[min(63, self.wpos - 1)]: count(L_WCNT)
            if n == nbar + 1: self.stamp(1)
            if landed == pos[('K', 31)]: self.stamp(4)
            run(n)
        issued = NM
        while landed < N - 1:
            landed += 1
            now = issued < N and landed == NM - self.wlate
            sig = self.wdrain is not None and N - 1 - landed == self.wdrain
            if not now and not sig and not any(q and q[0][1] <= landed for q in (side, tasks)): continue
            a(f"s_waitcnt vmcnt({issued - 1 - landed})")
            if sig: count(L_WCNT)
            if now:
                for n in range(NM, N):
                    busy[regs(seq[n])] = n; load(seq[n])
                issued = N
            run(99)
        assert not tasks and not side
        self.stamp(8)
        if self.trace:
            a(f"s_mul_i32 {s(S_T0)}, {s(S_WG)}, 8"); a(f"s_add_u32 {s(S_T0)}, {s(S_T0)}, {s(S_WAVE)}")
            a(f"s_lshl_b32 {s(S_T0)}, {s(S_T0)}, 8"); a(f"s_add_u32 {s(S_T0)}, {s(S_T0)}, {STAMP + (1<<20):#x}")
            a(f"v_lshl_add_u32 {v(VT)}, v0, 2, {s(S_T0)}")
            a(f"global_store_dword {v(VT)}, v166, {s(P_WS,2)}")
        self.finish(VT)

    def prefetch(self, VA, R):
        a = self.a
        Lp = self.lab("nopf")
        a(f"s_cmp_ge_u32 {s(S_S)}, {self.pf}"); a(f"s_cbranch_scc1 {Lp}")
        a(f"s_getpc_b64 {s(R4,2)}")
        a(f"Lpc:")
        a(f"s_sub_u32 {s(R4)}, {s(R4)}, Lpc-{KN}"); a(f"s_subb_u32 {s(R4+1)}, {s(R4+1)}, 0")
        a(f"s_mov_b32 {s(R4+2)}, Lcode_end-{KN}"); a(f"s_mov_b32 {s(R4+3)}, 0x20000")
        a(f"s_and_b32 {s(S_T0)}, {s(S_WAVE)}, 3"); a(f"s_lshl_b32 {s(S_T0)}, {s(S_T0)}, 10")
        for k in range(5):
            a(f"buffer_load_dwordx4 {v(R+4*k,4)}, {v(VA)}, {s(R4,4)}, {s(S_T0)} offen")
            if k < 4: a(f"s_add_u32 {s(S_T0)}, {s(S_T0)}, 4096")
        a(f"{Lp}:")

    def s1_geom(self, loader):
        a = self.a
        SZ, SCB, SRB, SROW, SSTR = S_M, S_M+1, S_M+2, S_M+3, S_M+4
        Lf, Lj = self.lab("s1ffn"), self.lab("s1join")
        a(f"s_cmp_ge_u32 {s(S_S)}, 16"); a(f"s_cbranch_scc1 {Lf}")
        a(f"s_and_b32 {s(SCB)}, {s(S_S)}, 7"); a(f"s_lshr_b32 {s(SRB)}, {s(S_S)}, 3")
        a(f"s_lshl_b32 {s(SROW)}, {s(SRB)}, 2"); a(f"s_add_u32 {s(SROW)}, {s(SROW)}, {s(SZ)}"); a(f"s_lshl_b32 {s(SROW)}, {s(SROW)}, 6")
        if loader:
            a(f"s_mov_b32 {s(SSTR)}, 8192")
            a(f"s_lshl_b32 {s(S_T2)}, {s(S_H)}, 3"); a(f"s_add_u32 {s(S_T2)}, {s(S_T2)}, {s(SCB)}")
            if self.early: a(f"s_mov_b32 {s(R2+2)}, 0x400000"); a(f"s_mov_b32 {s(R2+3)}, 0x20000")
            else: self.srd(R2, P_WQ, 0x400000)
        a(f"s_branch {Lj}")
        a(f"{Lf}:")
        if self.hello in (1, 3, 5): a(f"s_sub_u32 {s(S_T2)}, {s(S_S)}, 16"); a(f"s_lshl_b32 {s(S_T3)}, {s(S_H)}, 4"); a(f"s_add_u32 {s(S_T2)}, {s(S_T2)}, {s(S_T3)}")
        else: a(f"s_sub_u32 {s(S_T2)}, {s(S_S)}, 16"); a(f"s_lshl_b32 {s(S_T2)}, {s(S_T2)}, 3"); a(f"s_add_u32 {s(S_T2)}, {s(S_T2)}, {s(S_H)}")
        a(f"s_lshr_b32 {s(SCB)}, {s(S_T2)}, 2"); a(f"s_and_b32 {s(SRB)}, {s(S_T2)}, 3")
        a(f"s_and_b32 {s(S_T3)}, {s(SZ)}, 1")
        a(f"s_lshl_b32 {s(SROW)}, {s(SRB)}, 1"); a(f"s_add_u32 {s(SROW)}, {s(SROW)}, {s(S_T3)}"); a(f"s_lshl_b32 {s(SROW)}, {s(SROW)}, 6")
        if loader:
            a(f"s_mov_b32 {s(SSTR)}, 3584")
            a(f"s_mov_b32 {s(S_T2)}, {s(SCB)}")
            if not self.early:
                a(f"s_cmp_ge_u32 {s(SZ)}, 2")
                a(f"s_cselect_b32 {s(R2)}, {s(P_WU)}, {s(P_WG)}"); a(f"s_cselect_b32 {s(R2+1)}, {s(P_WU+1)}, {s(P_WG+1)}")
            a(f"s_cmp_lt_u32 {s(SCB)}, 28")
            a(f"s_cselect_b32 {s(R2+2)}, 0x1c0000, 0"); a(f"s_mov_b32 {s(R2+3)}, 0x20000")
        a(f"{Lj}:")

    VZ, VT, VA, T = 1, 2, 3, 4
    def stage1(self):
        a = self.a
        VZ, VT, VA, T = self.VZ, self.VT, self.VA, self.T
        X, XF, XR, ACC, W = 12, 16, 24, 32, 40
        SZ, SCB, SRB, SROW, SSTR = S_M, S_M+1, S_M+2, S_M+3, S_M+4
        a(f"s_and_b32 {s(SZ)}, {s(S_WAVE)}, 3")
        a(f"v_mov_b32 {v(VZ)}, 0"); a(f"v_lshlrev_b32 {v(VA)}, 4, v0")
        if self.pf and not self.pfe: self.prefetch(VA, W+32)
        self.s1_geom(False)
        a("s_waitcnt lgkmcnt(0)")
        self.srd(R0, P_WS, WS_USED); self.srd(R1, P_X, 1024)
        a(f"buffer_load_dwordx4 {v(X,4)}, {v(VA)}, {s(R1,4)}, 0 offen")
        a(f"buffer_load_dword {v(VT)}, {v(VZ)}, {s(R0,4)}, 0 offen offset:{EPOCH}")
        if not self.ebar:
            Lb = self.lab("s1b")
            a(f"s_cmp_lg_u32 {s(SZ)}, 0"); a(f"s_cbranch_scc1 {Lb}")
            a(f"v_lshlrev_b32 {v(T+2)}, 2, v0")
            a("s_mov_b64 exec, 0xffff")
            a(f"ds_write_b32 {v(T+2)}, {v(VZ)}")
            a("s_mov_b64 exec, -1")
            a("s_waitcnt lgkmcnt(0)")
            a(f"{Lb}:")
            a("s_barrier")
        a("s_waitcnt vmcnt(1)")
        self.stamp(1)
        self.layernorm(X, XF, T)
        a(f"s_lshr_b32 {s(S_T0)}, {s(SROW)}, 1")
        a(f"v_lshrrev_b32 {v(T)}, 3, v0"); a(f"v_lshl_add_u32 {v(T)}, {v(T)}, 2, {s(S_T0)}")
        for j in range(8): a(f"ds_bpermute_b32 {v(XR+j)}, {v(T)}, {v(XF+j)}")
        a("s_waitcnt vmcnt(0)")
        a(f"v_add_u32 {v(VT)}, 1, {v(VT)}"); a(f"v_readfirstlane_b32 {s(S_E)}, {v(VT)}")
        a(f"v_and_b32 {v(VT)}, 0x3ff, {v(VT)}")
        if self.hello:
            Lh = self.lab("hello")
            a(f"s_cmp_lg_u32 {s(SZ)}, 0"); a(f"s_cbranch_scc1 {Lh}")
            a(f"s_getreg_b32 {s(S_M+5)}, hwreg(HW_REG_XCC_ID, 0, 4)"); a(f"s_lshl_b32 {s(S_T0)}, {s(S_E)}, 4"); a(f"s_or_b32 {s(S_M+5)}, {s(S_M+5)}, {s(S_T0)}")
            a(f"s_lshl_b32 {s(S_M+7)}, {s(S_H)}, 7"); a(f"s_add_u32 {s(S_M+7)}, {s(S_M+7)}, {XBOX:#x}")
            a(f"s_lshl_b32 {s(S_T0)}, {s(S_S)}, 2"); a(f"s_add_u32 {s(S_T0)}, {s(S_T0)}, {s(S_M+7)}")
            a(f"v_mov_b32 {v(T+2)}, {s(S_M+5)}")
            a("s_mov_b64 exec, 1")
            a(f"buffer_store_dword {v(T+2)}, {v(VZ)}, {s(R0,4)}, {s(S_T0)} offen" + ("" if self.hello >= 4 else " sc1"))
            a("s_mov_b64 exec, -1")
            a(f"{Lh}:")
        a(f"s_lshl_b32 {s(S_T0)}, {s(SZ)}, 13"); a(f"v_add_u32 {v(T)}, {s(S_T0)}, {v(VA)}")
        self.lds_wait(L_ACNT, 8, VZ, T+1)
        for j in range(8): a(f"ds_read_b128 {v(W+4*j,4)}, {v(T)} offset:{L_A+1024*j}")
        for j in range(8):
            self.lgkm(7-j)
            for k in range(4):
                self.unpack(T, T+1, W+4*j+k)
                op = "v_mul_f32" if j == 0 else "v_fmac_f32"
                a(f"{op} {v(ACC+2*k)}, {v(XR+j)}, {v(T)}"); a(f"{op} {v(ACC+2*k+1)}, {v(XR+j)}, {v(T+1)}")
        self.fold("v_permlane32_swap_b32", [(ACC+e, ACC+e+4) for e in range(4)])
        self.fold("v_permlane16_swap_b32", [(ACC+e, ACC+e+2) for e in range(2)])
        self.ror("v_add_f32", [ACC, ACC+1], (8,))
        a(f"s_lshl_b32 {s(S_T0)}, {s(SZ)}, 8")
        a(f"v_and_b32 {v(T)}, 7, v0"); a(f"v_lshl_add_u32 {v(T)}, {v(T)}, 5, {s(S_T0)}")
        a(f"v_lshrrev_b32 {v(T+1)}, 4, v0"); a(f"v_lshl_add_u32 {v(T)}, {v(T+1)}, 3, {v(T)}")
        a(f"v_mov_b32 {v(T+1)}, 1")
        a("s_mov_b32 exec_lo, 0xff00ff"); a("s_mov_b32 exec_hi, 0xff00ff")
        a(f"ds_write_b64 {v(T)}, {v(ACC,2)} offset:{L_S1}")
        a("s_mov_b64 exec, 1")
        a(f"ds_add_u32 {v(VZ)}, {v(T+1)} offset:{L_S1CNT}")
        a("s_mov_b64 exec, -1")
        self.stamp(2)

    def sw0(self):
        a = self.a
        VZ, VT, VA, T = self.VZ, self.VT, self.VA, self.T
        XF, W = 16, 40
        SZ, SCB, SRB = S_M, S_M+1, S_M+2
        def hello_check():
            a(f"v_and_b32 {v(T+4)}, 31, v0"); a(f"v_lshlrev_b32 {v(T+4)}, 2, {v(T+4)}")
            a(f"buffer_load_dword {v(T+5)}, {v(T+4)}, {s(R0,4)}, {s(S_M+7)} offen sc1")
            a("s_waitcnt vmcnt(0)")
            a(f"v_cmp_ne_u32 vcc, {s(S_M+5)}, {v(T+5)}")
            a("s_cmp_eq_u64 vcc, 0"); a(f"s_cselect_b32 {s(S_M+6)}, 2, 1")
        if self.hello:
            assert self.hello >= 4
            self.lds_wait(L_S1CNT, 4, VZ, T+1)
            hello_check()
        a(f"v_and_b32 {v(T)}, 0xf0, {v(VA)}"); a(f"v_and_b32 {v(T+2)}, 16, v0"); a(f"v_lshl_add_u32 {v(T)}, {v(T+2)}, 5, {v(T)}")
        self.lds_wait(L_S1CNT, 4, VZ, T+1, [f"ds_read_b128 {v(W,4)}, {v(T)} offset:{L_S1}", f"ds_read_b128 {v(W+4,4)}, {v(T)} offset:{L_S1+256}"])
        a(f"v_pk_add_f32 {v(W,2)}, {v(W,2)}, {v(W+4,2)}"); a(f"v_pk_add_f32 {v(W+2,2)}, {v(W+2,2)}, {v(W+6,2)}")
        Lf, Lj = self.lab("c1ffn"), self.lab("c1join")
        a(f"s_cmp_ge_u32 {s(S_S)}, 16"); a(f"s_cbranch_scc1 {Lf}")
        for r in range(4): a(f"v_mov_b32 {v(W+4+r)}, {v(W+r)}")
        self.fold("v_permlane16_swap_b32", [(W+r, W+4+r) for r in range(4)])
        a(f"v_and_b32 {v(T)}, 0xf0, {v(VA)}")
        a(f"s_lshl_b32 {s(S_T1)}, {s(S_H)}, 12"); a(f"s_lshl_b32 {s(S_T2)}, {s(SRB)}, 11"); a(f"s_add_u32 {s(S_T1)}, {s(S_T1)}, {s(S_T2)}")
        a(f"s_lshl_b32 {s(S_T2)}, {s(SCB)}, 8"); a(f"s_add_u32 {s(S_T1)}, {s(S_T1)}, {s(S_T2)}"); a(f"s_add_u32 {s(S_T1)}, {s(S_T1)}, {QBOX:#x}")
        a("s_mov_b64 exec, 0xffff")
        a(f"s_branch {Lj}")
        a(f"{Lf}:")
        a(f"v_and_b32 {v(T)}, 8, v0"); a(f"v_lshlrev_b32 {v(T)}, 7, {v(T)}")
        a(f"v_and_b32 {v(T+1)}, 0x70, {v(VA)}"); a(f"v_lshl_add_u32 {v(T+1)}, {v(T+2)}, 3, {v(T+1)}"); a(f"v_add_u32 {v(T)}, {v(T)}, {v(T+1)}")
        a(f"s_lshl_b32 {s(S_T1)}, {s(SCB)}, 11"); a(f"s_lshl_b32 {s(S_T2)}, {s(SRB)}, 8"); a(f"s_add_u32 {s(S_T1)}, {s(S_T1)}, {s(S_T2)}")
        a(f"s_add_u32 {s(S_T1)}, {s(S_T1)}, {GBOX:#x}")
        a("s_mov_b32 exec_lo, -1"); a("s_mov_b32 exec_hi, 0")
        a(f"{Lj}:")
        self.tag(range(W, W+4), VT)
        if self.hello:
            if self.hello in (2, 4): a(f"s_cmp_ge_u32 {s(S_S)}, 16"); a(f"s_cselect_b32 {s(S_M+8)}, 1, {s(S_M+6)}")
            elif self.hello == 3: a(f"s_mov_b32 {s(S_M+8)}, 1")
            else: a(f"s_mov_b32 {s(S_M+8)}, {s(S_M+6)}")
            self.pub(f"buffer_store_dwordx4 {v(W,4)}, {v(T)}, {s(R0,4)}, {s(S_T1)} offen", S_M+8)
        else: a(f"buffer_store_dwordx4 {v(W,4)}, {v(T)}, {s(R0,4)}, {s(S_T1)} offen sc1")
        a("s_mov_b64 exec, -1")
        a(f"s_lshl_b32 {s(S_T0)}, {s(S_H)}, 12"); a(f"s_add_u32 {s(S_T0)}, {s(S_T0)}, {QBOX:#x}")
        W2 = W + 8
        self.trig(self.nq, VZ, T+1)
        self.poll([(f"buffer_load_dwordx4 {v(W2+4*k,4)}, {v(VA)}, {s(R0,4)}, {s(S_T0)} offen offset:{1024*k} sc1", W2+4*k, 4) for k in range(4)], VT, T)
        for k in range(4): a(f"v_pk_add_f32 {v(W2+2*k,2)}, {v(W2+2*k,2)}, {v(W2+8+2*k,2)}")
        for k in range(4): a(f"v_cvt_pk_bf16_f32 {v(XF+k)}, {v(W2+2*k)}, {v(W2+2*k+1)}")
        a(f"v_lshlrev_b32 {v(T)}, 3, v0"); a(f"v_mov_b32 {v(T+1)}, 1")
        a(f"ds_write_b64 {v(T)}, {v(XF,2)} offset:{L_Q}"); a(f"ds_write_b64 {v(T)}, {v(XF+2,2)} offset:{L_Q+512}")
        a("s_waitcnt lgkmcnt(0)")
        a(f"ds_write_b32 {v(VZ)}, {v(T+1)} offset:{L_QFLAG}")
        self.stamp(3)
        if self.cut == 1: return self.finish(T)
        if self.hello:
            Lk = self.lab("known")
            a(f"s_cmp_eq_u32 {s(S_M+6)}, 2"); a(f"s_cbranch_scc1 {Lk}")
            hello_check()
            a(f"{Lk}:")
        MW, LW, M, L, MA, LA, MB, LB = XF, XF+1, XF+2, XF+3, W, W+1, W+2, W+3
        a("; softmax statistics: workgroup -> head group -> per-wave factors")
        a(f"v_and_b32 {v(T)}, 28, v0"); a(f"v_lshlrev_b32 {v(T)}, 3, {v(T)}")
        a(f"v_and_b32 {v(T+2)}, 3, v0"); a(f"v_lshl_add_u32 {v(T)}, {v(T+2)}, 2, {v(T)}")
        self.lds_wait(L_MLCNT, 8, VZ, T+1, [f"ds_read2_b32 {v(MW,2)}, {v(T)} offset0:{L_ML//4} offset1:{L_ML//4+4}"])
        self.stamp(4)
        a(f"s_mov_b32 {s(S_T2)}, {LOG2E:#x}")
        a(f"v_mov_b32 {v(M)}, {v(MW)}")
        self.ror("v_max_f32", [M], (4, 8))
        a(f"v_mov_b32 {v(T)}, {v(M)}"); a(f"v_permlane16_swap_b32 {v(M)}, {v(T)}"); a(f"v_max_f32 {v(M)}, {v(M)}, {v(T)}")
        a(f"v_sub_f32 {v(L)}, {v(MW)}, {v(M)}"); a(f"v_mul_f32 {v(L)}, {s(S_T2)}, {v(L)}"); a(f"v_exp_f32 {v(L)}, {v(L)}")
        a(f"v_mul_f32 {v(L)}, {v(L)}, {v(LW)}")
        self.ror("v_add_f32", [L], (4, 8))
        a(f"v_mov_b32 {v(T)}, {v(L)}"); a(f"v_permlane16_swap_b32 {v(L)}, {v(T)}"); a(f"v_add_f32 {v(L)}, {v(L)}, {v(T)}")
        a(f"s_mov_b32 {s(S_TM)}, 0x3ff")
        self.tag([M, L], VT)
        if self.fast and not self.hello:
            a(f"s_getreg_b32 {s(S_M+5)}, hwreg(HW_REG_XCC_ID, 0, 4)"); a(f"s_lshl_b32 {s(S_M+5)}, {s(S_M+5)}, 12")
            a(f"v_or_b32 {v(M)}, {s(S_M+5)}, {v(M)}")
        a(f"v_lshlrev_b32 {v(T)}, 3, v0")
        a(f"s_lshl_b32 {s(S_T0)}, {s(S_H)}, 10"); a(f"s_add_u32 {s(S_T0)}, {s(S_T0)}, {MLBOX:#x}")
        a(f"s_lshl_b32 {s(S_T1)}, {s(S_S)}, 5"); a(f"s_add_u32 {s(S_T1)}, {s(S_T1)}, {s(S_T0)}")
        a("s_mov_b64 exec, 15")
        if self.hello: self.pub(f"buffer_store_dwordx2 {v(M,2)}, {v(T)}, {s(R0,4)}, {s(S_T1)} offen", S_M+6)
        else: a(f"buffer_store_dwordx2 {v(M,2)}, {v(T)}, {s(R0,4)}, {s(S_T1)} offen sc1")
        a("s_mov_b64 exec, -1")
        self.trig(self.nm, VZ, T+1)
        self.poll([(f"buffer_load_dwordx2 {v(MA,2)}, {v(T)}, {s(R0,4)}, {s(S_T0)} offen sc1", MA, 2),
                   (f"buffer_load_dwordx2 {v(MB,2)}, {v(T)}, {s(R0,4)}, {s(S_T0)} offen offset:512 sc1", MB, 2)], VT, T+1, quad=True)
        if self.fast and not self.hello:
            a(f"v_xor_b32 {v(T+2)}, {s(S_M+5)}, {v(MA)}"); a(f"v_xor_b32 {v(T+3)}, {s(S_M+5)}, {v(MB)}")
            a(f"v_or_b32 {v(T+2)}, {v(T+2)}, {v(T+3)}"); a(f"v_and_b32 {v(T+2)}, 0xf000, {v(T+2)}")
            a(f"v_cmp_ne_u32 vcc, 0, {v(T+2)}")
            a("s_cmp_eq_u64 vcc, 0"); a(f"s_cselect_b32 {s(S_M+6)}, 2, 1")
        a(f"v_and_b32 {v(MA)}, {s(S_HI)}, {v(MA)}"); a(f"v_and_b32 {v(MB)}, {s(S_HI)}, {v(MB)}")
        a(f"v_max_f32 {v(M)}, {v(MA)}, {v(MB)}")
        self.ror("v_max_f32", [M], (4, 8)); self.rows_all("v_max_f32", M, T)
        for r in (MA, MB, MW): a(f"v_sub_f32 {v(r)}, {v(r)}, {v(M)}")
        for r in (MA, MB, MW): a(f"v_mul_f32 {v(r)}, {s(S_T2)}, {v(r)}")
        for r in (MA, MB, MW): a(f"v_exp_f32 {v(r)}, {v(r)}")
        a(f"v_mul_f32 {v(L)}, {v(MA)}, {v(LA)}"); a(f"v_fmac_f32 {v(L)}, {v(MB)}, {v(LB)}")
        self.ror("v_add_f32", [L], (4, 8)); self.rows_all("v_add_f32", L, T)
        a(f"v_rcp_f32 {v(L)}, {v(L)}"); a(f"v_mul_f32 {v(MW)}, {v(MW)}, {v(L)}")
        a(f"v_and_b32 {v(T)}, 31, v0"); a(f"v_lshlrev_b32 {v(T)}, 2, {v(T)}"); a(f"v_mov_b32 {v(T+1)}, {s(S_M+6) if self.fast else 1}")
        a(f"ds_write_b32 {v(T)}, {v(MW)} offset:{L_F}")
        a("s_waitcnt lgkmcnt(0)")
        a(f"ds_write_b32 {v(VZ)}, {v(T+1)} offset:{L_FFLAG}")
        a("s_waitcnt lgkmcnt(0)")
        self.stamp(5)
        self.finish(T)

    def fblock(self, dst, t):
        a = self.a
        a(f"s_lshl_b32 {s(dst)}, {s(S_H)}, 3"); a(f"s_lshr_b32 {s(t)}, {s(S_S)}, 2"); a(f"s_add_u32 {s(dst)}, {s(dst)}, {s(t)}")

    def sw1(self):
        a = self.a
        VZ, VT, VA, T = self.VZ, self.VT, self.VA, self.T
        XC, VO, G, W = 10, 11, 12, 16
        self.fblock(S_T0, S_T1)
        a(f"s_lshl_b32 {s(S_T0)}, {s(S_T0)}, 10"); a(f"s_add_u32 {s(S_T0)}, {s(S_T0)}, {GBOX:#x}")
        self.trig(self.g_trig, VZ, T+1)
        self.poll([(f"buffer_load_dwordx4 {v(G,4)}, {v(VA)}, {s(R0,4)}, {s(S_T0)} offen sc1", G, 4)], VT, T)
        self.fold4(G)
        self.rbf1(G, G)
        a(f"v_mov_b32_dpp {v(G+1)}, {v(G)} row_ror:8 row_mask:0xf bank_mask:0xf")
        self.silu_bf(G, G, T)
        a(f"v_mul_f32 {v(G)}, {v(G)}, {v(G+1)}"); a(f"v_cvt_pk_bf16_f32 {v(G)}, {v(G)}, {v(G)}")
        a(f"v_and_b32 {v(T)}, 7, v0"); a(f"v_lshlrev_b32 {v(T)}, 3, {v(T)}")
        a(f"v_lshrrev_b32 {v(T+1)}, 4, v0"); a(f"v_lshl_add_u32 {v(T)}, {v(T+1)}, 1, {v(T)}"); a(f"v_mov_b32 {v(T+1)}, 1")
        a("s_mov_b32 exec_lo, 0xff00ff"); a("s_mov_b32 exec_hi, 0xff00ff")
        a(f"ds_write_b16 {v(T)}, {v(G)} offset:{L_H}")
        a("s_mov_b64 exec, -1")
        a("s_waitcnt lgkmcnt(0)")
        a(f"ds_write_b32 {v(VZ)}, {v(T+1)} offset:{L_HFLAG}")
        self.stamp(3)
        if self.pf2:
            Lp = self.lab("nopf2")
            a(f"s_cmp_lg_u32 {s(S_S)}, 31"); a(f"s_cbranch_scc1 {Lp}")
            a(f"s_getpc_b64 {s(R4,2)}")
            a("Lpc2:")
            a(f"s_sub_u32 {s(R4)}, {s(R4)}, Lpc2-Lsw23"); a(f"s_subb_u32 {s(R4+1)}, {s(R4+1)}, 0")
            a(f"s_mov_b32 {s(R4+2)}, Lcode_end-Lsw23"); a(f"s_mov_b32 {s(R4+3)}, 0x20000")
            a(f"s_mov_b32 {s(S_T0)}, 4096")
            for k in range(7): a(f"buffer_load_dwordx4 {v(W+4*k,4)}, {v(VA)}, {s(R4,4)}, {s(S_T0) if k >= 4 else 0} offen offset:{1024*(k&3)}")
            a(f"{Lp}:")
        if self.red2: return self.finish(T)
        Lx = self.lab("sw1end")
        a(f"s_cmp_ge_u32 {s(S_WG)}, {0 if self.cut else 32}"); a(f"s_cbranch_scc1 {Lx}")
        a(f"s_lshl_b32 {s(S_T0)}, {s(S_WG)}, 5")
        a(f"v_and_b32 {v(VO)}, 3, v0"); a(f"v_lshl_add_u32 {v(VO)}, {v(VO)}, 3, {s(S_T0)}")
        a(f"v_lshrrev_b32 {v(T)}, 4, v0"); a(f"v_lshl_add_u32 {v(VO)}, {v(T)}, 1, {v(VO)}")
        a(f"buffer_load_ushort {v(XC)}, {v(VO)}, {s(R1,4)}, 0 offen")
        a(f"s_lshl_b32 {s(S_T0)}, {s(S_WG)}, 13"); a(f"s_add_u32 {s(S_T0)}, {s(S_T0)}, {HBOX:#x}"); a(f"s_add_u32 {s(S_T1)}, {s(S_T0)}, 4096")
        loads = [(f"buffer_load_dwordx4 {v(W+4*j,4)}, {v(VA)}, {s(R0,4)}, {s(S_T0+(j>>2))} offen offset:{1024*(j&3)} sc1", W+4*j, 4) for j in range(8)]
        if self.touch:
            for ld in loads: a(ld[0])
        a("s_waitcnt vmcnt(0)")
        a(f"v_lshlrev_b32 {v(XC)}, 16, {v(XC)}")
        self.srd(R1, P_OUT, 1024)
        if self.otouch: a(f"buffer_load_ushort {v(T+5)}, {v(VO)}, {s(R1,4)}, 0 offen sc1"); a("s_waitcnt vmcnt(0)")
        self.stamp(4)
        a("s_barrier")
        if self.rdelay: self.lds_wait(L_PUB, 2 if self.rdelay >= 3 else 1, VZ, T+1, sleep=0)
        self.stamp(5)
        if self.pipe:
            Y = [(f"buffer_load_dwordx4 {v(W+32+4*j,4)}, {v(VA)}, {s(R0,4)}, {s(S_T0+(j>>2))} offen offset:{1024*(j&3)} sc1", W+32+4*j, 4) for j in range(8)]
            self.poll2(loads, Y, VT, T, G)
        elif self.light: self.gather8(loads, VT, T, G, VA, S_T0, 10)
        else: self.poll(loads, VT, T, acc=G)
        self.stamp(6)
        self.fold4(G)
        self.ror("v_add_f32", [G], (8,))
        self.rbf1(G, G)
        self.silu_bf(G+1, G, T)
        a(f"v_mul_f32_dpp {v(G)}, {v(G+1)}, {v(G)} row_ror:12 row_mask:0xf bank_mask:0xf"); self.rbf1(G, G)
        a(f"v_add_f32 {v(G)}, {v(G)}, {v(XC)}"); a(f"v_cvt_pk_bf16_f32 {v(G)}, {v(G)}, {v(G)}")
        a("s_mov_b32 exec_lo, 0xf000f"); a("s_mov_b32 exec_hi, 0xf000f")
        a(f"buffer_store_short {v(G)}, {v(VO)}, {s(R1,4)}, 0 offen {self.outpol}")
        a(f"s_cmp_lg_u32 {s(S_WG)}, 0"); a(f"s_cbranch_scc1 {Lx}")
        a("s_mov_b64 exec, 1")
        a(f"v_mov_b32 {v(T)}, {s(S_E)}")
        a(f"buffer_store_dword {v(T)}, {v(VZ)}, {s(R0,4)}, 0 offen offset:{EPOCH} {self.outpol}")
        if self.amp:
            pa, pb, k = self.amp
            a("s_waitcnt vmcnt(0)"); self.stamp(7); a("s_waitcnt lgkmcnt(0)")
            a(f"s_sub_u32 {s(S_T0)}, {s(S_ST+2*pb)}, {s(S_ST+2*pa)}"); a(f"s_mul_i32 {s(S_T0)}, {s(S_T0)}, {k}")
            a(f"s_min_u32 {s(S_T0)}, {s(S_T0)}, 100000")
            a("Lamp:")
            a(f"s_memrealtime {s(S_ST+20,2)}"); a("s_waitcnt lgkmcnt(0)")
            a(f"s_sub_u32 {s(S_T1)}, {s(S_ST+20)}, {s(S_ST+14)}"); a(f"s_cmp_lt_u32 {s(S_T1)}, {s(S_T0)}"); a("s_cbranch_scc1 Lamp")
        a(f"{Lx}:")
        if self.diag: a("s_waitcnt vmcnt(0)")
        self.stamp(7)
        self.finish(T)

    def controller(self, SZ, nbar_):
        a = self.a; c = self.ctl
        VZ = self.VZ
        C, CP, E, X, Y, A, G = 24, 25, 26, 27, 28, 29, 30
        glob = c.get('gw', 0) or c['tcap'] or c.get('g2')
        SG, SPREV, SB8 = R3+1, R3+2, 4
        import struct
        f = lambda x: hex(struct.unpack('<I', struct.pack('<f', x))[0])
        L, Lo, Ls = self.lab("ctl"), self.lab("ctlx"), self.lab("ctls")
        a(f"s_cmp_lg_u32 {s(SZ)}, 0"); a(f"s_cbranch_scc1 {Lo}")
        a(f"s_lshl_b32 {s(S_T0)}, {s(S_H)}, 7")
        a(f"v_and_b32 {v(A)}, 31, v0"); a(f"v_lshlrev_b32 {v(A)}, 2, {v(A)}")
        if glob:
            a(f"v_cmp_gt_u32 vcc, 32, v0"); a(f"v_mov_b32 {v(X)}, 0x400"); a(f"v_cndmask_b32 {v(A)}, {v(X)}, {v(A)}, vcc")
            a(f"s_mov_b32 {s(SPREV)}, 0"); a(f"s_mov_b32 {s(17)}, 0")
            a(f"s_lshl_b32 {s(SPREV+1)}, {s(S_H)}, 2"); a(f"s_add_u32 {s(12)}, {s(P_DBG)}, {s(SPREV+1)}"); a(f"s_addc_u32 {s(13)}, {s(P_DBG+1)}, 0")
        a(f"s_add_u32 {s(S_T0)}, {s(S_T0)}, {PBOX:#x}")
        a(f"s_lshl_b32 {s(S_T1)}, {s(S_S)}, 2"); a(f"s_add_u32 {s(S_T1)}, {s(S_T1)}, {s(S_T0)}")
        a(f"s_lshl_b32 {s(R3)}, {s(S_E)}, 16")
        a(f"ds_read_b32 {v(CP)}, {v(VZ)} offset:{L_CNT}")
        a(f"s_mov_b32 {s(S_CNT)}, 4096")
        a(f"{L}:")
        a(f"ds_read_b32 {v(C)}, {v(VZ)} offset:{L_CNT}")
        a("s_waitcnt lgkmcnt(0)")
        a(f"v_or_b32 {v(E)}, {s(R3)}, {v(C)}")
        a(f"v_readfirstlane_b32 {s(S_T2)}, {v(C)}")
        a("s_mov_b64 exec, 1")
        a(f"buffer_store_dword {v(E)}, {v(VZ)}, {s(R0,4)}, {s(S_T1)} offen")
        a("s_mov_b64 exec, -1")
        a(f"s_cmp_ge_u32 {s(S_T2)}, {8*(c.get('exit', c['to'] - 2) - nbar_)}"); a(f"s_cbranch_scc1 {Lo}")
        a(f"s_sub_u32 {s(S_CNT)}, {s(S_CNT)}, 1"); a(f"s_cbranch_scc1 {Lo}")
        a(f"buffer_load_dword {v(X)}, {v(A)}, {s(R0,4)}, {s(S_T0)} offen sc1")
        if glob:
            Lr = self.lab("ctlr")
            a(f"s_cmp_lg_u32 {s(S_S)}, 5"); a(f"s_cbranch_scc1 {Lr}")
            if c.get('plain'):
                for k in range(8): a(f"s_load_dword {s(SB8+k)}, {s(P_WS,2)}, {PBOX + 0x800 + 128*k:#x} glc")
            else: a(f"s_load_dwordx8 {s(SB8,8)}, {s(P_DBG,2)}, 0 glc")
            a(f"{Lr}:")
        a(f"v_add_u32 {v(CP)}, {v(CP)}, {v(C)}"); a(f"v_cvt_f32_u32 {v(CP)}, {v(CP)}")
        a("s_waitcnt vmcnt(0)")
        a(f"ds_read_b32 {v(Y)}, {v(VZ)} offset:{L_CNT}")
        a(f"v_xor_b32 {v(X)}, {s(R3)}, {v(X)}"); a(f"v_cmp_gt_u32 vcc, 0x10000, {v(X)}")
        if glob:
            a(f"v_subrev_u32 {v(G)}, 0x8000, {v(X)}"); a(f"v_cvt_f32_i32 {v(G)}, {v(G)}"); a(f"v_cndmask_b32 {v(G)}, 0, {v(G)}, vcc")
        a(f"v_cvt_f32_u32 {v(X)}, {v(X)}"); a(f"v_cndmask_b32 {v(X)}, 0, {v(X)}, vcc")
        a(f"s_bcnt1_i32_b32 {s(S_T2)}, vcc_lo")
        if glob: a(f"v_readlane_b32 {s(SG)}, {v(G)}, 32")
        self.ror("v_add_f32", [X], (8, 4, 2, 1))
        a(f"v_mov_b32 {v(E)}, {v(X)}"); a(f"v_permlane16_swap_b32 {v(X)}, {v(E)}"); a(f"v_add_f32 {v(X)}, {v(X)}, {v(E)}")
        a(f"v_cvt_f32_u32 {v(E)}, {s(S_T2)}"); a(f"v_rcp_f32 {v(E)}, {v(E)}")
        a("s_waitcnt lgkmcnt(0)")
        a(f"s_cmp_lt_u32 {s(S_T2)}, 24"); a(f"s_cbranch_scc1 {Ls}")
        a(f"v_mul_f32 {v(X)}, {v(X)}, {v(E)}")
        if glob:
            Lr, Lv = self.lab("ctlr"), self.lab("ctlv")
            a(f"v_mov_b32 {v(G)}, {s(SG)}")
            a(f"s_cmp_lg_u32 {s(S_S)}, 5"); a(f"s_cbranch_scc1 {Lr}")
            a(f"v_cvt_u32_f32 {v(E)}, {v(X)}"); a(f"v_readfirstlane_b32 {s(S_T2)}, {v(E)}")
            a(f"s_add_u32 {s(S_T3)}, {s(SPREV)}, {s(17)}"); a(f"s_min_u32 {s(18)}, {s(SPREV)}, {s(17)}"); a(f"s_mov_b32 {s(17)}, {s(SPREV)}")
            a(f"s_sub_u32 {s(14)}, {s(S_T2)}, {s(SPREV)}"); a(f"s_mov_b32 {s(SPREV)}, {s(S_T2)}")
            if c.get('plain'):
                a(f"v_or_b32 {v(E)}, {s(R3)}, {v(E)}")
                a("s_mov_b64 exec, 1")
                a(f"buffer_store_dword {v(E)}, {v(VZ)}, {s(R0,4)}, {s(S_T0)} offen offset:2048")
                a("s_mov_b64 exec, -1")
                for k in range(8):
                    a(f"s_xor_b32 {s(SB8+k)}, {s(SB8+k)}, {s(R3)}"); a(f"s_cmp_lt_u32 {s(SB8+k)}, 0x10000"); a(f"s_cselect_b32 {s(SB8+k)}, {s(SB8+k)}, 0")
            else: a(f"s_atomic_add {s(14)}, {s(12,2)}, 0x0")
            a(f"s_min_u32 {s(15)}, {s(SB8)}, {s(SB8+1)}"); a(f"s_add_u32 {s(16)}, {s(SB8)}, {s(SB8+1)}")
            for k in range(2, 8): a(f"s_min_u32 {s(15)}, {s(15)}, {s(SB8+k)}"); a(f"s_add_u32 {s(16)}, {s(16)}, {s(SB8+k)}")
            a(f"s_min_u32 {s(15)}, {s(15)}, {s(18)}"); a(f"s_cmp_eq_u32 {s(15)}, 0"); a(f"s_cbranch_scc1 {Lr}")
            a(f"s_lshl_b32 {s(S_T3)}, {s(S_T3)}, 2")
            a(f"s_sub_u32 {s(16)}, {s(16)}, {s(S_T3)}"); a(f"s_ashr_i32 {s(16)}, {s(16)}, 3")
            a(f"s_add_u32 {s(16)}, {s(16)}, {0x8000 + c.get('gb', 0)}"); a(f"s_or_b32 {s(16)}, {s(16)}, {s(R3)}")
            a(f"v_mov_b32 {v(E)}, {s(16)}")
            a("s_mov_b64 exec, 1")
            a(f"buffer_store_dword {v(E)}, {v(VZ)}, {s(R0,4)}, {s(S_T0)} offen offset:1024")
            a("s_mov_b64 exec, -1")
            a(f"{Lr}:")
        a(f"v_fma_f32 {v(X)}, {v(CP)}, -0.5, {v(X)}")
        if c.get('gw', 0): a(f"v_fmac_f32 {v(X)}, {f(c['gw'])}, {v(G)}")
        a(f"v_lshrrev_b32 {v(Y)}, 3, {v(Y)}"); a(f"v_add_u32 {v(Y)}, {nbar_ + 1 + c['lead']}, {v(Y)}")
        for (dst, src, sign, th, g, cap) in ((E, X, 1, c['bth'], c['bg'], c['bcap']), (X, G, 1, *c['g2']) if c.get('g2') else (X, X, 1, *c['l2']) if c.get('l2') else (X, G, -1, c['tth'], c['tg'], c['tcap'])):
            if not cap: continue
            t = CP
            a(f"v_mul_f32 {v(t)}, {f(sign*g)}, {v(src)}")
            if c.get('k0') and dst == E: a(f"v_add_f32 {v(t)}, {f(c['k0'])}, {v(t)}")
            a(f"v_min_f32 {v(t)}, {f(cap)}, {v(t)}"); a(f"v_max_f32 {v(t)}, 0, {v(t)}")
            a(f"v_cmp_{'lt' if sign > 0 else 'gt'}_f32 vcc, {f(sign*th)}, {v(src)}")
            a(f"v_cvt_u32_f32 {v(t)}, {v(t)}"); a(f"v_add_u32 {v(t)}, {v(t)}, {v(Y)}")
            a(f"v_cndmask_b32 {v(dst)}, 0, {v(t)}, vcc")
        if c.get('g2') or c.get('l2'):
            a(f"v_min_u32 {v(CP)}, {v(E)}, {v(X)}"); a(f"v_max_u32 {v(X)}, {v(E)}, {v(X)}"); a(f"v_mov_b32 {v(E)}, {v(CP)}")
        a("s_mov_b64 exec, 1")
        a(f"ds_write_b64 {v(VZ)}, {v(E,2)} offset:{L_BOOST}")
        a("s_mov_b64 exec, -1")
        a(f"{Ls}:")
        a(f"v_mov_b32 {v(CP)}, {v(C)}")
        a(f"s_branch {L}")
        a(f"{Lo}:")
        if glob and self.diag: a(f"s_mov_b32 {s(S_ST+20)}, {s(16)}"); a(f"s_mov_b32 {s(S_ST+22)}, {s(15)}")

    def sw23(self):
        a = self.a
        VZ, VT, VA, T = self.VZ, self.VT, self.VA, self.T
        VP, VH, VB, VB2, OUT, SUM, W, HB, AW, AD, F, DD = 10, 11, 12, 13, 16, 20, 24, 56, 72, 104, 120, 152
        SZ, SFB, SCOL, SPUB, SP0, SHB, SLW = S_M+8, S_M+9, S_M+10, S_M+11, S_M, S_M+12, S_M+13
        a(f"s_and_b32 {s(SZ)}, {s(S_WAVE)}, 1")
        self.fblock(SFB, S_T1)
        a(f"s_and_b32 {s(SCOL)}, {s(S_S)}, 3"); a(f"s_lshl_b32 {s(SCOL)}, {s(SCOL)}, 1"); a(f"s_add_u32 {s(SCOL)}, {s(SCOL)}, {s(SZ)}")
        a(f"s_mul_i32 {s(SLW)}, {s(SZ)}, 12288")
        a(f"v_lshrrev_b32 {v(T)}, 4, v0"); a(f"v_lshl_add_u32 {v(T)}, {v(T)}, 10, {s(SLW)}")
        a(f"v_bfe_u32 {v(T+2)}, v0, 2, 2"); a(f"v_lshl_add_u32 {v(T)}, {v(T+2)}, 7, {v(T)}")
        a(f"v_and_b32 {v(T+2)}, 3, v0"); a(f"v_lshl_add_u32 {v(T)}, {v(T+2)}, 3, {v(T)}")
        a(f"s_lshl_b32 {s(S_T0)}, {s(S_H)}, 16"); a(f"s_add_u32 {s(S_T0)}, {s(S_T0)}, {OBOX:#x}")
        a(f"s_lshl_b32 {s(SPUB)}, {s(S_S)}, 11"); a(f"s_add_u32 {s(SPUB)}, {s(SPUB)}, {s(S_T0)}")
        a(f"s_lshr_b32 {s(S_T1)}, {s(S_S)}, 2"); a(f"s_lshl_b32 {s(S_T1)}, {s(S_T1)}, 8"); a(f"s_add_u32 {s(SP0)}, {s(S_T0)}, {s(S_T1)}")
        for k in range(1, 8): a(f"s_add_u32 {s(SP0+k)}, {s(SP0)}, {8192*k}")
        a(f"v_lshrrev_b32 {v(VP)}, 4, v0"); a(f"v_and_b32 {v(T+2)}, 0xf0, {v(VA)}"); a(f"v_lshl_add_u32 {v(VP)}, {v(VP)}, 11, {v(T+2)}")
        a(f"s_lshl_b32 {s(SHB)}, {s(SCOL)}, 15"); a(f"s_lshl_b32 {s(S_T1)}, {s(SFB)}, 7"); a(f"s_add_u32 {s(SHB)}, {s(SHB)}, {s(S_T1)}")
        a(f"s_add_u32 {s(SHB)}, {s(SHB)}, {HBOX:#x}")
        a(f"v_and_b32 {v(VH)}, 3, v0"); a(f"v_lshlrev_b32 {v(VH)}, 13, {v(VH)}")
        a(f"v_and_b32 {v(T+2)}, 4, v0"); a(f"v_lshl_add_u32 {v(VH)}, {v(T+2)}, 4, {v(VH)}")
        a(f"v_and_b32 {v(VB)}, 48, v0"); a(f"v_add_u32 {v(VH)}, {v(VH)}, {v(VB)}")
        def tr_ad():
            for t in range(4):
                for hf in range(2):
                    a(f"ds_read_b64_tr_b16 {v(AD+4*t+2*hf,2)}, {v(T)} offset:{L_W + 8192 + 512*hf + 32*t}")
        def tr_aw(t):
            for kk in range(2):
                for hf in range(2):
                    a(f"ds_read_b64_tr_b16 {v(AW+8*t+4*kk+2*hf,2)}, {v(T)} offset:{L_W + 4096*kk + 512*hf + 32*t}")
        def ffn_tags():
            a("s_mov_b32 exec_lo, 0x100010"); a("s_mov_b32 exec_hi, 0x100010")
            for t in range(4):
                self.tag(range(DD+4*t, DD+4*t+4), VT, dst=range(OUT, OUT+4))
                if t < 3: a("s_lshl_b64 exec, exec, 1")
            a("s_mov_b64 exec, -1")
        def wprep(less=0):
            if self.wprog:
                assert self.wsplit == 12
                a(f"s_waitcnt vmcnt({16 - less})")
                tr_ad()
                self.lgkm(0)
                for t in range(4): a(f"v_mfma_f32_16x16x32_bf16 {v(DD+4*t,4)}, {v(AD+4*t,4)}, {v(HB,4)}, 0")
                ffn_tags()
                for kk in range(2):
                    a(f"s_waitcnt vmcnt({12 - 4*kk - less})")
                    for t in range(4):
                        for hf in range(2):
                            a(f"ds_read_b64_tr_b16 {v(AW+8*t+4*kk+2*hf,2)}, {v(T)} offset:{L_W + 4096*kk + 512*hf + 32*t}")
                self.stamp(3)
                return
            if self.wdma:
                a(f"s_waitcnt vmcnt({9 if self.wsplit == 12 else 8})")
                tr_ad(); tr_aw(0)
                self.lgkm(4)
                for t in range(4): a(f"v_mfma_f32_16x16x32_bf16 {v(DD+4*t,4)}, {v(AD+4*t,4)}, {v(HB,4)}, 0")
                for t in range(1, 4): tr_aw(t)
                ffn_tags()
                self.stamp(3)
                return
            self.lds_wait(L_WCNT, 8, VZ, T+2)
            tr_ad()
            self.lds_wait(L_HFLAG, 1, VZ, T+2, [f"ds_read_b128 {v(HB,4)}, {v(VB)} offset:{L_H}"])
            for t in range(4): a(f"v_mfma_f32_16x16x32_bf16 {v(DD+4*t,4)}, {v(AD+4*t,4)}, {v(HB,4)}, 0")
            for t in range(4):
                tr_aw(t)
                if t == 1: a("s_waitcnt lgkmcnt(0)")
            ffn_tags()
            a("s_waitcnt lgkmcnt(0)")
            self.stamp(3)
        if self.wdma:
            VWA, VWD, SW0, SW1 = 14, 15, R4, R4+1
            a(f"v_lshrrev_b32 {v(T+1)}, 3, v0"); a(f"v_and_b32 {v(T+2)}, 0x70, {v(VA)}")
            a(f"v_lshl_add_u32 {v(VWD)}, {v(T+1)}, 10, {v(T+2)}")
            a(f"s_mul_i32 {s(S_T1)}, {s(SZ)}, {8*144}"); a(f"v_mul_u32_u24 {v(T+1)}, 144, {v(T+1)}"); a(f"v_add3_u32 {v(VWA)}, {v(T+1)}, {v(T+2)}, {s(S_T1)}")
            a(f"s_lshl_b32 {s(SW0)}, {s(S_H)}, 19"); a(f"s_lshr_b32 {s(S_T1)}, {s(S_S)}, 2"); a(f"s_lshl_b32 {s(S_T1)}, {s(S_T1)}, 14"); a(f"s_add_u32 {s(SW0)}, {s(SW0)}, {s(S_T1)}")
            a(f"s_lshl_b32 {s(S_T1)}, {s(SCOL)}, 7"); a(f"s_add_u32 {s(SW0)}, {s(SW0)}, {s(S_T1)}")
            a(f"s_lshl_b32 {s(SW1)}, {s(SFB)}, 15"); a(f"s_add_u32 {s(SW1)}, {s(SW1)}, {s(S_T1)}")
            a(f"s_add_u32 {s(SLW)}, {s(SLW)}, {L_W}")
            self.srd(R1, P_WO, 0x400000); self.srd(R2, P_WD, 0x1c0000)
            def touch_w():
                a("s_mov_b64 exec, 1")
                for h in range(4):
                    a(f"s_add_u32 {s(S_T1)}, {s(SW0)}, {0x20000*h}")
                    a(f"buffer_load_dword {v(T+3)}, {v(VZ)}, {s(R1,4)}, {s(S_T1)} offen {self.wpol}")
                a(f"buffer_load_dword {v(T+3)}, {v(VZ)}, {s(R2,4)}, {s(SW1)} offen {self.wpol}")
                a("s_mov_b64 exec, -1")
            if self.red2:
                XC, VOUT = 66, 67
                a(f"s_lshl_b32 {s(S_T0)}, {s(S_WG)}, 5"); a(f"s_lshl_b32 {s(S_T1)}, {s(SZ)}, 4"); a(f"s_add_u32 {s(S_T0)}, {s(S_T0)}, {s(S_T1)}")
                a(f"v_and_b32 {v(VOUT)}, 1, v0"); a(f"v_lshl_add_u32 {v(VOUT)}, {v(VOUT)}, 3, {s(S_T0)}")
                a(f"v_lshrrev_b32 {v(T+1)}, 4, v0"); a(f"v_lshl_add_u32 {v(VOUT)}, {v(T+1)}, 1, {v(VOUT)}")
                a(f"s_mov_b32 {s(P_X+2)}, 1024"); a(f"s_mov_b32 {s(P_X+3)}, 0x20000")
                a(f"buffer_load_ushort {v(XC)}, {v(VOUT)}, {s(P_X,4)}, 0 offen")
            if self.ctl: self.controller(SZ, nbar_=(self.ramp[0] if self.ramp else self.D) - 1)
            if self.wtouch == 1: touch_w()
            self.lds_wait(L_HFLAG, 1, VZ, T+2, [f"ds_read_b128 {v(HB,4)}, {v(VB)} offset:{L_H}"])
        worder = list(range(8, 12)) + list(range(8))
        def wload(js):
            for j in js:
                a(f"s_add_u32 m0, {s(SLW)}, {1024*j}")
                if j < 8:
                    a(f"buffer_load_dwordx4 {v(VWD)}, {s(R1,4)}, {s(SW0)} offen {self.wpol} lds")
                    a(f"s_add_u32 {s(SW0)}, {s(SW0)}, {0x20000 - 8192 if j & 1 else 8192:#x}")
                else:
                    a(f"buffer_load_dwordx4 {v(VWD)}, {s(R2,4)}, {s(SW1)} offen {self.wpol} lds")
                    a(f"s_add_u32 {s(SW1)}, {s(SW1)}, 8192")
        late = self.wpos > 56 or self.wdma
        if not late: wprep()
        if self.cut: return self.finish(T)
        if self.wtouch == 2: touch_w()
        loads = [(f"buffer_load_dwordx4 {v(W+4*k,4)}, {v(VP)}, {s(R0,4)}, {s(SP0+k)} offen sc1", W+4*k, 4) for k in range(8)]
        if self.touch and True:
            for ld in loads: a(ld[0])
        self.lds_wait(L_FFLAG, 1, VZ, T+2, [f"ds_read_b128 {v(F+4*w,4)}, {v(VZ)} offset:{L_F+16*w}" for w in range(8)])
        a(f"s_mov_b32 {s(S_M+14)}, {s(S_T3)}")
        if self.wtouch == 3: touch_w()
        a(f"s_lshl_b32 {s(S_T0)}, {s(SZ)}, 10"); a(f"v_add_u32 {v(VA)}, {s(S_T0)}, {v(VA)}")
        a(f"s_lshl_b32 {s(S_T0)}, {s(SZ)}, 7"); a(f"v_add_u32 {v(VB2)}, {s(S_T0)}, {v(VB)}"); a(f"v_lshl_add_u32 {v(T+1)}, v0, 1, {s(S_T0)}")
        if self.touch: a("s_waitcnt vmcnt(0)")
        if self.wdma and self.wsplit:
            self.lds_wait(L_WCNT, 8, VZ, T+2, sleep=0)
            wload(worder[:self.wsplit])
        self.stamp(4)
        if self.solo: a(f"v_mov_b32 {v(T+2)}, 1")
        a("s_barrier")
        self.stamp(5)
        for w in range(8): a(f"ds_read_b128 {v(W+4*w,4)}, {v(VWA)} offset:{L_O+OSTR*w}")
        for w in range(8):
            self.lgkm(7-w)
            for p in (0, 2):
                if w == 0: a(f"v_pk_mul_f32 {v(SUM+p,2)}, {v(W+p,2)}, {v(F+p,2)}")
                else: a(f"v_pk_fma_f32 {v(SUM+p,2)}, {v(W+4*w+p,2)}, {v(F+4*w+p,2)}, {v(SUM+p,2)}")
        if self.fast: a(f"s_cmp_eq_u32 {s(S_M+14)}, 2")
        self.tag(range(SUM, SUM+4), VT, dst=range(F, F+4))
        if self.fast:
            La, Lb = self.lab("h1l"), self.lab("h1j")
            a(f"s_cbranch_scc1 {La}")
            a(f"buffer_store_dwordx4 {v(F,4)}, {v(VA)}, {s(R0,4)}, {s(SPUB)} offen sc1")
            a(f"s_branch {Lb}")
            a(f"{La}:")
            a(f"buffer_store_dwordx4 {v(F,4)}, {v(VA)}, {s(R0,4)}, {s(SPUB)} offen")
            a(f"{Lb}:")
        else: a(f"buffer_store_dwordx4 {v(F,4)}, {v(VA)}, {s(R0,4)}, {s(SPUB)} offen sc1")
        self.stamp(6)
        if self.wdma: wload(worder[self.wsplit:])
        pre = late and (self.prepoll or self.wdma)
        if late and not pre: wprep()
        if self.solo:
            BO = HB
            L1, L2 = self.lab("solo1"), self.lab("solo2")
            breads = [f"ds_read_b128 {v(BO,4)}, {v(VB)} offset:{L_OB}", f"ds_read_b128 {v(BO+4,4)}, {v(VB)} offset:{L_OB+64}"]
            a(f"s_cmp_lg_u32 {s(SZ)}, 0"); a(f"s_cbranch_scc1 {L1}")
            if self.solo == 2:
                yr = [AD+4*k for k in range(4)] + [F+4+4*k for k in range(4)]
                Y = [(f"buffer_load_dwordx4 {v(yr[k],4)}, {v(VP)}, {s(R0,4)}, {s(SP0+k)} offen sc1", yr[k], 4) for k in range(8)]
                self.poll2(loads, Y, VT, T+3, SUM, between=wprep)
            else: self.poll(loads, VT, T+3, acc=SUM, between=wprep)
            self.stamp(7)
            self.fold4(SUM)
            a(f"v_cvt_pk_bf16_f32 {v(SUM)}, {v(SUM)}, {v(SUM)}")
            a(f"ds_write_b16 {v(T+1)}, {v(SUM)} offset:{L_OB}")
            a("s_mov_b64 exec, 1"); a(f"ds_write_b32 {v(VZ)}, {v(T+2)} offset:{L_OFLAG}"); a("s_mov_b64 exec, -1")
            for b in breads: a(b)
            a(f"s_branch {L2}")
            a(f"{L1}:")
            wprep(8)
            self.lds_wait(L_OFLAG, 1, VZ, T+2, breads, sleep=0)
            self.stamp(7)
            a(f"{L2}:")
        else:
            BO = W
            if self.pipe:
                yr = [AD+4*k for k in range(4)] + [F+4+4*k for k in range(4)]
                Y = [(f"buffer_load_dwordx4 {v(yr[k],4)}, {v(VP)}, {s(R0,4)}, {s(SP0+k)} offen sc1", yr[k], 4) for k in range(8)]
                self.poll2(loads, Y, VT, T+3, SUM, between=wprep)
                BO = HB
            elif self.light: self.gather8(loads, VT, HB+4, SUM, VP, SP0, 13, between=(wprep if pre else None))
            else: self.poll(loads, VT, T+3, acc=SUM, between=(wprep if pre else None))
            self.stamp(7)
            if self.rdelay == 1: a(f"v_mov_b32 {v(T+2)}, 1"); a(f"ds_write_b32 {v(VZ)}, {v(T+2)} offset:{L_PUB}")
            self.fold4(SUM)
            a(f"v_cvt_pk_bf16_f32 {v(SUM)}, {v(SUM)}, {v(SUM)}")
            a(f"ds_write_b16 {v(T+1)}, {v(SUM)} offset:{L_OB}")
            a(f"ds_read_b128 {v(BO,4)}, {v(VB2)} offset:{L_OB}"); a(f"ds_read_b128 {v(BO+4,4)}, {v(VB2)} offset:{L_OB+64}")
        a("s_mov_b32 exec_lo, 0x10001"); a("s_mov_b32 exec_hi, 0x10001")
        self.lgkm(1)
        for t in range(2): a(f"v_mfma_f32_16x16x32_bf16 {v(DD+4*t,4)}, {v(AW+8*t,4)}, {v(BO,4)}, 0")
        self.lgkm(0)
        for t in range(2): a(f"v_mfma_f32_16x16x32_bf16 {v(DD+4*t,4)}, {v(AW+8*t+4,4)}, {v(BO+4,4)}, {v(DD+4*t,4)}")
        for t in range(2, 4):
            a(f"v_mfma_f32_16x16x32_bf16 {v(DD+4*t,4)}, {v(AW+8*t,4)}, {v(BO,4)}, 0")
            a(f"v_mfma_f32_16x16x32_bf16 {v(DD+4*t,4)}, {v(AW+8*t+4,4)}, {v(BO+4,4)}, {v(DD+4*t,4)}")
        for t in range(4):
            self.tag(range(DD+4*t, DD+4*t+4), VT, dst=range(OUT, OUT+4))
            if t < 3: a("s_lshl_b64 exec, exec, 1")
        a("s_mov_b32 exec_lo, 0xff00ff"); a("s_mov_b32 exec_hi, 0xff00ff")
        a(f"buffer_store_dwordx4 {v(OUT,4)}, {v(VH)}, {s(R0,4)}, {s(SHB)} offen sc1")
        self.stamp(8)
        if self.red2:
            Lx = self.lab("tailend")
            G = SUM
            a(f"s_cmp_ge_u32 {s(S_WG)}, 32"); a(f"s_cbranch_scc1 {Lx}")
            a("s_mov_b64 exec, -1")
            a(f"v_lshrrev_b32 {v(VP)}, 2, v0"); a(f"v_lshlrev_b32 {v(VP)}, 7, {v(VP)}")
            a(f"v_and_b32 {v(T)}, 2, v0"); a(f"v_lshl_add_u32 {v(VP)}, {v(T)}, 5, {v(VP)}")
            a(f"v_and_b32 {v(T)}, 1, v0"); a(f"v_lshl_add_u32 {v(VP)}, {v(T)}, 4, {v(VP)}")
            a(f"s_lshl_b32 {s(S_T0)}, {s(S_WG)}, 13"); a(f"s_lshl_b32 {s(S_T1)}, {s(SZ)}, 5"); a(f"s_add_u32 {s(S_T0)}, {s(S_T0)}, {s(S_T1)}")
            a(f"s_add_u32 {s(S_T0)}, {s(S_T0)}, {HBOX:#x}"); a(f"s_add_u32 {s(S_T1)}, {s(S_T0)}, 4096")
            a(f"v_lshlrev_b32 {v(XC)}, 16, {v(XC)}")
            self.srd(R1, P_OUT, 1024)
            mk = lambda r0: [(f"buffer_load_dwordx4 {v(r0+4*j,4)}, {v(VP)}, {s(R0,4)}, {s(S_T0+(j>>1))} offen offset:{2048*(j&1)} sc1", r0+4*j, 4) for j in range(4)]
            a("s_waitcnt vmcnt(0)")
            self.stamp(9)
            if self.red2 == 1: self.poll2(mk(W), mk(W+16), VT, T, G, quad=True)
            else: self.poll(mk(W), VT, T, acc=G, quad=True)
            self.stamp(10)
            self.fold4(G)
            self.ror("v_add_f32", [G], (4, 8))
            self.rbf1(G, G)
            self.silu_bf(G+1, G, T)
            a(f"v_mul_f32_dpp {v(G)}, {v(G+1)}, {v(G)} quad_perm:[2,3,2,3] row_mask:0xf bank_mask:0xf"); self.rbf1(G, G)
            a(f"v_add_f32 {v(G)}, {v(G)}, {v(XC)}"); a(f"v_cvt_pk_bf16_f32 {v(G)}, {v(G)}, {v(G)}")
            a("s_mov_b32 exec_lo, 0x30003"); a("s_mov_b32 exec_hi, 0x30003")
            a(f"buffer_store_short {v(G)}, {v(VOUT)}, {s(R1,4)}, 0 offen {self.outpol}")
            a(f"s_or_b32 {s(S_T0)}, {s(S_WG)}, {s(SZ)}"); a(f"s_cbranch_scc1 {Lx}")
            a("s_mov_b64 exec, 1")
            a(f"v_mov_b32 {v(T)}, {s(S_E)}")
            a(f"buffer_store_dword {v(T)}, {v(VZ)}, {s(R0,4)}, 0 offen offset:{EPOCH} {self.outpol}")
            a(f"{Lx}:")
            if self.diag: a("s_waitcnt vmcnt(0)")
            self.stamp(11)
            return self.finish(T)
        if self.rdelay >= 2:
            a(f"v_mov_b32 {v(T+2)}, 1"); a("s_mov_b64 exec, 1")
            if self.rdelay != 3: a("s_waitcnt vmcnt(0)")
            a(f"ds_add_u32 {v(VZ)}, {v(T+2)} offset:{L_PUB}")
        if self.fast and self.clean:
            a("s_mov_b64 exec, -1")
            a(f"buffer_store_dwordx4 {v(F,4)}, {v(VA)}, {s(R0,4)}, {s(SPUB)} offen sc1")
        if self.amp2:
            pa, pb, k = self.amp2
            a(f"s_add_u32 {s(S_T0)}, {s(S_WG)}, {s(SZ)}"); a(f"s_cmp_lg_u32 {s(S_T0)}, 0"); a("s_cbranch_scc1 Lamp2x")
            a("s_waitcnt lgkmcnt(0)")
            a(f"s_sub_u32 {s(S_T0)}, {s(S_ST+2*pb)}, {s(S_ST+2*pa)}"); a(f"s_mul_i32 {s(S_T0)}, {s(S_T0)}, {k}")
            a(f"s_min_u32 {s(S_T0)}, {s(S_T0)}, 100000")
            a("Lamp2:")
            a(f"s_memrealtime {s(S_ST+20,2)}"); a("s_waitcnt lgkmcnt(0)")
            a(f"s_sub_u32 {s(S_T1)}, {s(S_ST+20)}, {s(S_ST+16)}"); a(f"s_cmp_lt_u32 {s(S_T1)}, {s(S_T0)}"); a("s_cbranch_scc1 Lamp2")
            a("Lamp2x:")
        if self.diag: a("s_waitcnt vmcnt(0)")
        self.stamp(9)
        self.finish(T)

    def build(self):
        a = self.a
        hdr = open("recurrent_scan__gqa_block_cached__swiglu_ffn__decode.s.ref").read().split("; @launch")[0]
        a(f'.amdgcn_target "amdgcn-amd-amdhsa--gfx950"')
        a(".text"); a(f".globl {KN}"); a(".p2align 8"); a(f".type {KN},@function"); a(f"{KN}:")
        if not (self.pf and self.pfe): self.ebar = 0
        a(f"s_load_dwordx16 {s(4,16)}, s[0:1], 0")
        if self.diag or not self.ebar: a(f"s_load_dwordx8 {s(20,8)}, s[0:1], 64")
        a("s_cmp_ge_u32 s2, 256"); a("s_cbranch_scc1 Lend")
        if self.diag:
            for k in range(1, 12): a(f"s_mov_b32 {s(S_ST+2*k)}, 0")
        self.stamp(0)
        a("v_lshrrev_b32 v1, 6, v0"); a("v_and_b32 v0, 63, v0"); a(f"v_readfirstlane_b32 {s(S_WAVE)}, v1")
        a(f"s_and_b32 {s(S_H)}, s2, 7"); a(f"s_lshr_b32 {s(S_S)}, s2, 3")
        if self.pf and self.pfe:
            a(f"s_cmp_lt_u32 {s(S_WAVE)}, 8"); a("s_cbranch_scc1 Lstream")
            a("v_lshlrev_b32 v3, 4, v0")
            if self.ebar and not self.diag: a(f"s_load_dwordx8 {s(20,8)}, s[0:1], 64")
            self.prefetch(3, 72)
            if self.ebar: a("s_barrier")
            a("s_branch Lservice")
            a("Lstream:")
        else:
            a(f"s_cmp_ge_u32 {s(S_WAVE)}, 8"); a("s_cbranch_scc1 Lservice")
        self.streamer()
        a("Lservice:")
        if self.prio: a("s_setprio 3")
        a(f"s_mov_b32 {s(S_HI)}, 0xffff0000"); a(f"s_mov_b32 {s(S_TM)}, {(1 << self.tagbits) - 1:#x}")
        self.stage1()
        a(f"s_cmp_eq_u32 {s(S_WAVE)}, 9"); a("s_cbranch_scc1 Lsw1")
        a(f"s_cmp_gt_u32 {s(S_WAVE)}, 9"); a("s_cbranch_scc1 Lsw23")
        self.sw0()
        a("Lsw23:"); self.sw23()
        a("Lsw1:"); self.sw1()
        a("Lend:"); a("s_endpgm")
        a("Lcode_end:")
        a(".fill 64, 4, 0xbf800000")
        a('.section .rodata,"a"'); a(".p2align 6"); a(f".amdhsa_kernel {KN}")
        for d in ("next_free_vgpr 168", "next_free_sgpr 102", "accum_offset 168", "group_segment_fixed_size 0", "kernarg_size 96",
                  "user_sgpr_count 2", "user_sgpr_kernarg_segment_ptr 1", "system_sgpr_workgroup_id_x 1", "float_denorm_mode_32 3"):
            a(f".amdhsa_{d}")
        a(".end_amdhsa_kernel")
        return hdr + f"; @launch grid=(256,1,1) block=(768,1,1) lds={LDS_BYTES + self.ldspad}\n" + DOC + a.finalize()

def gen(**kw): return G(**kw).build()
if __name__ == "__main__":
    kw = eval("dict(" + (sys.argv[2] if len(sys.argv) > 2 else "") + ")")
    open(sys.argv[1], "w").write(gen(**kw))
```

```python
import sys
from asmlib import Asm
KN = "recurrent_scan__gqa_block_cached__swiglu_ffn__decode_kernel"

EPOCH = 0
QBOX, MLBOX, PBOX, XBOX, GBOX, OBOX, HBOX = 0x1000, 0x9000, 0xB000, 0xC000, 0x10000, 0x20000, 0xA0000
WS_USED = 0xE0000
STAMP = 128 << 20
L_QFLAG, L_MLCNT, L_FFLAG, L_S1CNT, L_PROG, L_HFLAG, L_ACNT, L_WCNT = 0, 4, 8, 12, 16, 20, 24, 28
L_CNT, L_PUB, L_BOOST, L_OFLAG = 32, 36, 40, 48
L_ML, L_F, L_H, L_Q, L_S1, L_OB, L_O = 64, 320, 448, 512, 1536, 2560, 2816
OSTR = 16*144
L_W = L_O + 8*OSTR
L_A = L_O
LDS_BYTES = L_W + 2*12288
SPIN = 1 << 16

LOG2E = 0x3fb8aa3b
SCALE = 0x3db504f3
EPS = 0x3727c5ac

DOC = '''; ------------------------------------------------------------------------------------------------
;
; Workgroup (H = id & 7, S = id >> 3) owns 1024 keys of KV head H. 12 waves:
;   waves 0-7  "streamers": 128 keys each. K (all of it) then V go straight to registers, a few 1 KiB
;              They also fetch the stage-1 weight tile (wq or w_gate/w_up) into LDS.
;              max / sum inside the head group -> per-wave factors exp(m_w - M) / L
;              workgroup), 64 x 128 tile of wo and 32 x 128 tile of w_down by MFMA, hop 2 to the reducers
;
; its value. Writers use sc1 (write-through) stores,
; or ordinary stores once all 32 workgroups of the head group have reported the writer's own XCC id.
; ------------------------------------------------------------------------------------------------
'''

def v(i, n=1): return f"v{i}" if n == 1 else f"v[{i}:{i+n-1}]"
def s(i, n=1): return f"s{i}" if n == 1 else f"s[{i}:{i+n-1}]"

S_WG, S_WAVE = 2, 3
P_X, P_K, P_V, P_WQ, P_WO, P_BX, P_WG, P_WU, P_WD, P_OUT, P_DBG, P_WS = range(4, 28, 2)
R0, R1, R2, R3, R4 = 28, 32, 36, 40, 44
S_H, S_S = 48, 49
S_T0, S_T1, S_T2, S_T3 = 50, 51, 52, 53
S_HI, S_TM, S_LO, S_HIS = 54, 55, 56, 57
S_CNT, S_E = 58, 59
S_M = 60
S_ST = 76

class G:
    def __init__(self, D=3, D2=3, nD2=58, n0=28, il=12, kvpol="nt", wpol="nt", diag=0, pf=1, nq=16, nm=56, g_trig=44,
                 outpol="", prio=1, touch=0, cut=0, amp=None, trace=0, ramp=None, wpos=64, apos=1, smooth=1, wlate=0, prepoll=0, fast=1, clean=0, wdma=1, rot=1, agap=1, light=0, ldspad=0, hsleep=0, pipe=1, wsplit=12, wtouch=0, otouch=0, ctl=1, qk2=1, hello=5, wprog=1, tagbits=4, plo=3, amp2=None, pfe=1, pf2=0, afake=0, rdelay=2, wdrain=None, pfirst=0, solo=1, dirty=0, red2=1, ebar=1, qgap=1, early=1, strip=1):
        self.__dict__.update(locals()); del self.__dict__['self']
        self.a = Asm(); self.nlab = 0
        assert self.wdma
        if self.ctl == 1: self.ctl = dict(to=68, bth=0, bg=0.5, bcap=5, tth=4, tg=0.15, tcap=0, lead=0, exit=62, **{'from': 8})
    def lab(self, p):
        self.nlab += 1; return f"L{p}{self.nlab}"
    def srd(self, r, ptr, size):
        a = self.a
        a(f"s_mov_b32 {s(r)}, {s(ptr)}"); a(f"s_mov_b32 {s(r+1)}, {s(ptr+1)}")
        a(f"s_mov_b32 {s(r+2)}, {size:#x}"); a(f"s_mov_b32 {s(r+3)}, 0x20000")
    def stamp(self, k):
        if self.diag or self.amp or self.amp2: self.a(f"s_memrealtime {s(S_ST+2*k,2)}")
    def lgkm(self, n):
        self.a(f"s_waitcnt lgkmcnt({0 if (self.diag or self.amp or self.amp2) else n})")
    def finish(self, vt):
        a = self.a
        if self.diag:
            a("s_waitcnt lgkmcnt(0)")
            a(f"s_mul_i32 {s(S_T0)}, {s(S_WG)}, 12"); a(f"s_add_u32 {s(S_T0)}, {s(S_T0)}, {s(S_WAVE)}")
            a(f"s_lshl_b32 {s(S_T0)}, {s(S_T0)}, 6"); a(f"s_add_u32 {s(S_T0)}, {s(S_T0)}, {STAMP:#x}")
            a("s_mov_b64 exec, 1")
            a(f"v_mov_b32 {v(vt)}, {s(S_T0)}")
            for k in range(12):
                a(f"v_mov_b32 {v(vt+1)}, {s(S_ST+2*k)}")
                a(f"global_store_dword {v(vt)}, {v(vt+1)}, {s(P_WS,2)} offset:{4*k}")
            a("s_waitcnt vmcnt(0)")
        a("s_endpgm")
    def unpack(self, lo, hi, src):
        self.a(f"v_lshlrev_b32 {v(lo)}, 16, {v(src)}"); self.a(f"v_and_b32 {v(hi)}, {s(S_HI)}, {v(src)}")
    def rbf1(self, dst, src):
        self.a(f"v_cvt_pk_bf16_f32 {v(dst)}, {v(src)}, {v(src)}"); self.a(f"v_and_b32 {v(dst)}, {s(S_HI)}, {v(dst)}")
    def rbf2(self, d0, d1, s0, s1, t):
        self.a(f"v_cvt_pk_bf16_f32 {v(t)}, {v(s0)}, {v(s1)}"); self.unpack(d0, d1, t)
    def ror(self, op, regs, steps):
        for n in steps:
            for r in regs: self.a(f"{op}_dpp {v(r)}, {v(r)}, {v(r)} row_ror:{n} row_mask:0xf bank_mask:0xf")
    def rows_all(self, op, x, t):
        a = self.a
        for sw in ("v_permlane16_swap_b32", "v_permlane32_swap_b32"):
            a(f"v_mov_b32 {v(t)}, {v(x)}"); a(f"{sw} {v(x)}, {v(t)}"); a(f"{op} {v(x)}, {v(x)}, {v(t)}")
    def fold(self, sw, pairs):
        for x, y in pairs: self.a(f"{sw} {v(x)}, {v(y)}")
        for x, y in pairs: self.a(f"v_add_f32 {v(x)}, {v(x)}, {v(y)}")
    def fold4(self, x):
        self.fold("v_permlane32_swap_b32", [(x, x+2), (x+1, x+3)])
        self.fold("v_permlane16_swap_b32", [(x, x+1)])
    def silu_bf(self, dst, x, t):
        a = self.a
        a(f"v_mul_f32 {v(t)}, {0x80000000 ^ LOG2E:#x}, {v(x)}"); a(f"v_exp_f32 {v(t)}, {v(t)}")
        a(f"v_add_f32 {v(t)}, 1.0, {v(t)}"); a(f"v_rcp_f32 {v(t)}, {v(t)}"); a(f"v_mul_f32 {v(t)}, {v(x)}, {v(t)}")
        self.rbf1(dst, t)
    def layernorm(self, X, XF, T):
        a = self.a
        for k in range(4): self.unpack(XF+2*k, XF+2*k+1, X+k)
        a(f"v_add_f32 {v(T)}, {v(XF)}, {v(XF+1)}")
        for k in range(2, 8): a(f"v_add_f32 {v(T)}, {v(T)}, {v(XF+k)}")
        self.ror("v_add_f32", [T], (8, 4, 2, 1)); self.rows_all("v_add_f32", T, T+1)
        a(f"v_mul_f32 {v(T)}, 0x3b000000, {v(T)}")
        a(f"v_sub_f32 {v(T+2)}, {v(XF)}, {v(T)}"); a(f"v_mul_f32 {v(T+3)}, {v(T+2)}, {v(T+2)}")
        for k in range(1, 8):
            a(f"v_sub_f32 {v(T+2)}, {v(XF+k)}, {v(T)}"); a(f"v_fmac_f32 {v(T+3)}, {v(T+2)}, {v(T+2)}")
        self.ror("v_add_f32", [T+3], (8, 4, 2, 1)); self.rows_all("v_add_f32", T+3, T+1)
        a(f"v_mul_f32 {v(T+3)}, 0x3b000000, {v(T+3)}")
        self.rbf2(T, T+3, T, T+3, T+1)
        a(f"v_add_f32 {v(T+3)}, {EPS:#x}, {v(T+3)}"); self.rbf1(T+3, T+3)
        a(f"v_sqrt_f32 {v(T+3)}, {v(T+3)}"); self.rbf1(T+3, T+3)
        a(f"v_rcp_f32 {v(T+2)}, {v(T+3)}")
        for k in range(8): a(f"v_sub_f32 {v(XF+k)}, {v(XF+k)}, {v(T)}")
        for k in range(4): self.rbf2(XF+2*k, XF+2*k+1, XF+2*k, XF+2*k+1, T+1)
        for k in range(8):
            a(f"v_mul_f32 {v(T+4)}, {v(XF+k)}, {v(T+2)}")
            a(f"v_fma_f32 {v(T+5)}, -{v(T+4)}, {v(T+3)}, {v(XF+k)}")
            a(f"v_fma_f32 {v(XF+k)}, {v(T+5)}, {v(T+2)}, {v(T+4)}")
        for k in range(4): self.rbf2(XF+2*k, XF+2*k+1, XF+2*k, XF+2*k+1, T+1)
    def tag(self, regs, vT, dst=None):
        for i, r in enumerate(regs):
            d = r if dst is None else dst[i]
            self.a(f"v_bfi_b32 {v(d)}, {s(S_TM)}, {v(vT)}, {v(r)}")
    def words(self, t, r0, n, vT, first):
        a = self.a
        if not self.strip:
            for w in range(r0, r0+n):
                if first: a(f"v_xor_b32 {v(t)}, {v(w)}, {v(vT)}"); first = False
                else: a(f"v_bitop3_b32 {v(t)}, {v(w)}, {v(vT)}, {v(t)} bitop3:0xbe")
            return
        for w in range(r0, r0+n): a(f"v_xor_b32 {v(w)}, {v(w)}, {v(vT)}")
        for w in range(r0, r0+n, 2):
            if first: a(f"v_or_b32 {v(t)}, {v(w)}, {v(w+1)}"); first = False
            else: a(f"v_or3_b32 {v(t)}, {v(w)}, {v(w+1)}, {v(t)}")
    def joint(self, t, quad=False):
        perms = ["quad_perm:[1,0,3,2]", "quad_perm:[2,3,0,1]"] + ([] if quad else ["row_half_mirror"])
        if quad or self.tagbits < 10:
            for p in perms: self.a(f"v_or_b32_dpp {v(t)}, {v(t)}, {v(t)} {p} row_mask:0xf bank_mask:0xf")
    def poll(self, loads, vT, t, acc=None, between=None, quad=False):
        a = self.a; L = self.lab("poll"); Lo = self.lab("pollx")
        if between:
            Lc = self.lab("pollc")
            for ld in loads: a(ld[0])
            between()
            a(f"s_mov_b32 {s(S_CNT)}, {SPIN}")
            a(f"s_branch {Lc}")
        else: a(f"s_mov_b32 {s(S_CNT)}, {SPIN}")
        a(f"{L}:")
        for ld in loads: a(ld[0])
        if between: a(f"{Lc}:")
        first = True
        for j, (_, r0, n) in enumerate(loads):
            a(f"s_waitcnt vmcnt({len(loads)-1-j})")
            self.words(t, r0, n, vT, first); first = False
            if j == len(loads) - 1:
                self.joint(t, quad)
                a(f"v_and_b32 {v(t)}, {s(S_TM)}, {v(t)}")
                a(f"v_cmp_ne_u32 vcc, 0, {v(t)}")
            if acc is not None and j >= 1:
                p = loads[0][1] if j == 1 else acc
                a(f"v_pk_add_f32 {v(acc,2)}, {v(p,2)}, {v(r0,2)}"); a(f"v_pk_add_f32 {v(acc+2,2)}, {v(p+2,2)}, {v(r0+2,2)}")
        a(f"s_sub_u32 {s(S_CNT)}, {s(S_CNT)}, 1")
        a(f"s_cbranch_scc1 {Lo}")
        a("s_mov_b64 exec, vcc")
        if acc is not None and self.hsleep:
            a(f"s_cbranch_execz {Lo}"); a(f"s_sleep {self.hsleep}"); a(f"s_branch {L}")
        else: a(f"s_cbranch_execnz {L}")
        a(f"{Lo}:")
        a("s_mov_b64 exec, -1")
    def poll2(self, X, Y, vT, t, acc, between=None, quad=False):
        a = self.a; L = self.lab("pp"); Lo = self.lab("ppx")
        n = len(X)
        def check(loads, out=2):
            first = True
            for j, (_, r0, nr) in enumerate(loads):
                a(f"s_waitcnt vmcnt({out*n-1-j})")
                self.words(t, r0, nr, vT, first); first = False
                if j >= 1:
                    p = loads[0][1] if j == 1 else acc
                    a(f"v_pk_add_f32 {v(acc,2)}, {v(p,2)}, {v(r0,2)}"); a(f"v_pk_add_f32 {v(acc+2,2)}, {v(p+2,2)}, {v(r0+2,2)}")
                if j == n - 1:
                    self.joint(t, quad)
                    a(f"v_and_b32 {v(t)}, {s(S_TM)}, {v(t)}")
                    a(f"v_cmp_ne_u32 vcc, 0, {v(t)}")
            a("s_mov_b64 exec, vcc")
        for ld in X: a(ld[0])
        if between:
            between()
            if self.pfirst:
                check(X, 1)
                a(f"s_cbranch_execz {Lo}")
                for ld in X: a(ld[0])
        a(f"s_mov_b32 {s(S_CNT)}, {SPIN}")
        a(f"{L}:")
        for ld in Y: a(ld[0])
        check(X)
        a(f"s_cbranch_execz {Lo}")
        for ld in X: a(ld[0])
        check(Y)
        a(f"s_sub_u32 {s(S_CNT)}, {s(S_CNT)}, 1")
        a(f"s_cbranch_scc1 {Lo}")
        a(f"s_cbranch_execnz {L}")
        a(f"{Lo}:")
        a("s_mov_b64 exec, -1")
    def gather8(self, loads, vT, t, acc, vaddr, soff, lg, between=None):
        a = self.a; L = self.lab("lp"); Lo = self.lab("lpx")
        P, R, J, B, A = t+1, t+2, t+3, t+4, t+5
        for ld in loads: a(ld[0])
        if between: between()
        first = True
        for j, (_, r0, n) in enumerate(loads):
            a(f"s_waitcnt vmcnt({len(loads)-1-j})")
            for w in range(r0, r0+n):
                if first: a(f"v_xor_b32 {v(t)}, {v(w)}, {v(vT)}"); first = False
                else: a(f"v_bitop3_b32 {v(t)}, {v(w)}, {v(vT)}, {v(t)} bitop3:0xbe")
            if j == len(loads) - 1:
                a(f"v_and_b32 {v(t)}, {s(S_TM)}, {v(t)}")
                a(f"v_cmp_ne_u32 vcc, 0, {v(t)}")
            if j >= 1:
                p = loads[0][1] if j == 1 else acc
                a(f"v_pk_add_f32 {v(acc,2)}, {v(p,2)}, {v(r0,2)}"); a(f"v_pk_add_f32 {v(acc+2,2)}, {v(p+2,2)}, {v(r0+2,2)}")
        a(f"s_cbranch_vccz {Lo}")
        for r in range(acc, acc+4): a(f"v_mov_b32 {v(r)}, 0")
        a(f"v_mov_b32 {v(P)}, 0")
        def check(q):
            a(f"v_xor_b32 {v(t)}, {v(q)}, {v(vT)}")
            for w in range(q+1, q+4): a(f"v_bitop3_b32 {v(t)}, {v(w)}, {v(vT)}, {v(t)} bitop3:0xbe")
            a(f"v_and_b32 {v(t)}, {s(S_TM)}, {v(t)}")
            a(f"v_cmp_eq_u32 vcc, 0, {v(t)}")
        for j, (_, r0, n) in enumerate(loads):
            check(r0)
            a("s_mov_b64 exec, vcc")
            a(f"v_pk_add_f32 {v(acc,2)}, {v(acc,2)}, {v(r0,2)}"); a(f"v_pk_add_f32 {v(acc+2,2)}, {v(acc+2,2)}, {v(r0+2,2)}")
            a("s_not_b64 exec, vcc")
            a(f"v_or_b32 {v(P)}, {1 << j}, {v(P)}")
            a("s_mov_b64 exec, -1")
        Q = loads[0][1]
        a(f"v_mov_b32 {v(R)}, {v(P)}")
        a(f"v_cmp_ne_u32 vcc, 0, {v(P)}")
        a(f"s_mov_b32 {s(S_CNT)}, {SPIN*4}")
        a("s_mov_b64 exec, vcc")
        a(f"{L}:")
        a(f"v_ffbl_b32 {v(J)}, {v(R)}")
        a(f"v_lshl_add_u32 {v(A)}, {v(J)}, {lg}, {v(vaddr)}")
        a(f"buffer_load_dwordx4 {v(Q,4)}, {v(A)}, {s(R0,4)}, {s(soff)} offen sc1")
        a(f"v_lshlrev_b32 {v(B)}, {v(J)}, 1")
        a(f"v_xor_b32 {v(R)}, {v(R)}, {v(B)}")
        a(f"s_sub_u32 {s(S_CNT)}, {s(S_CNT)}, 1")
        a(f"s_cbranch_scc1 {Lo}")
        a("s_waitcnt vmcnt(0)")
        check(Q)
        a(f"s_and_saveexec_b64 {s(S_T2,2)}, vcc")
        a(f"v_xor_b32 {v(P)}, {v(P)}, {v(B)}")
        a(f"v_pk_add_f32 {v(acc,2)}, {v(acc,2)}, {v(Q,2)}"); a(f"v_pk_add_f32 {v(acc+2,2)}, {v(acc+2,2)}, {v(Q+2,2)}")
        a(f"s_mov_b64 exec, {s(S_T2,2)}")
        a(f"v_cmp_eq_u32 {s(S_T2,2)}, 0, {v(R)}")
        a(f"v_cmp_ne_u32 vcc, 0, {v(P)}")
        a(f"v_cndmask_b32 {v(R)}, {v(R)}, {v(P)}, {s(S_T2,2)}")
        a("s_mov_b64 exec, vcc")
        a(f"s_cbranch_execnz {L}")
        a(f"{Lo}:")
        a("s_mov_b64 exec, -1")
    def lds_wait(self, off, val, vz, t, extra=(), sleep=1):
        a = self.a; L = self.lab("lw"); Lo = self.lab("lwx")
        a(f"s_mov_b32 {s(S_CNT)}, {SPIN*16}")
        a(f"{L}:")
        a(f"ds_read_b32 {v(t)}, {v(vz)} offset:{off}")
        for e in extra: a(e)
        a("s_waitcnt lgkmcnt(0)")
        a(f"v_readfirstlane_b32 {s(S_T3)}, {v(t)}")
        a(f"s_cmp_ge_u32 {s(S_T3)}, {val}")
        a(f"s_cbranch_scc1 {Lo}")
        a(f"s_sub_u32 {s(S_CNT)}, {s(S_CNT)}, 1")
        a(f"s_cbranch_scc1 {Lo}")
        if sleep: a(f"s_sleep {sleep}")
        a(f"s_branch {L}")
        a(f"{Lo}:")
    def pub(self, text, sfast):
        a = self.a
        La, Lb = self.lab("pl"), self.lab("pj")
        a(f"s_cmp_eq_u32 {s(sfast)}, 2"); a(f"s_cbranch_scc1 {La}")
        a(text + " sc1"); a(f"s_branch {Lb}")
        a(f"{La}:"); a(text); a(f"{Lb}:")
    def trig(self, what, vz, t):
        if what == "q": self.lds_wait(L_QFLAG, 1, vz, t)
        elif what == "ml": self.lds_wait(L_MLCNT, 8, vz, t)
        elif isinstance(what, int) and what > 0: self.lds_wait(L_PROG, what, vz, t)
    def streamer(self):
        a = self.a
        VK, VV, VZ, VT, VT2 = 1, 2, 3, 4, 5
        Q, S, DT, KB = 8, 12, 20, 36
        slot = lambda i: KB + 4*i
        ACC, AO, B = slot(16), slot(18), slot(23)
        SB = S_T0
        a("; ==== streamer: lane offsets (K: quad-permuted 1 KiB, V: linear), descriptors, paced load sequence ====")
        a(f"s_lshl_b32 {s(SB)}, {s(S_H)}, 23"); a(f"s_lshl_b32 {s(S_T1)}, {s(S_S)}, 18"); a(f"s_or_b32 {s(SB)}, {s(SB)}, {s(S_T1)}")
        a(f"s_lshl_b32 {s(S_T1)}, {s(S_WAVE)}, {self.il}"); a(f"s_or_b32 {s(SB)}, {s(SB)}, {s(S_T1)}")
        if self.rot == 1: a(f"s_lshl_b32 {s(S_M+9)}, {s(S_S)}, 15")
        if self.rot == 2: a(f"s_add_u32 {s(S_M+9)}, {s(S_S)}, {s(S_H)}"); a(f"s_lshl_b32 {s(S_M+9)}, {s(S_M+9)}, 15")
        a(f"v_lshlrev_b32 {v(VV)}, 4, v0")
        a(f"v_and_b32 {v(VT)}, 0xc0, {v(VV)}"); a(f"v_lshlrev_b32 {v(VT)}, 2, {v(VT)}")
        a(f"v_lshrrev_b32 {v(VK)}, 4, v0"); a(f"v_lshlrev_b32 {v(VK)}, 6, {v(VK)}")
        a(f"v_and_b32 {v(VT2)}, 48, {v(VV)}")
        a(f"v_or3_b32 {v(VK)}, {v(VK)}, {v(VT)}, {v(VT2)}")
        a(f"v_mov_b32 {v(VZ)}, 0")
        if not self.early:
            a("s_waitcnt lgkmcnt(0)")
            self.srd(R0, P_K, 0x4000000); self.srd(R1, P_V, 0x4000000)
        def off(i):
            if self.il == 12: return (i >> 2) * 32768, (i & 3) * 1024
            return i * 8192, 0
        last_so = [None]
        VWA, VWD = 6, 7
        SA, SW0, SW1, SSTR = S_M+5, S_M+6, S_M+7, S_M+4
        def regs(it):
            k, i = it
            return {'K': slot(i), 'V': slot(i % 16), 'A': slot(28 + i), 'W': (DT + 4*i if self.wpos > 40 else slot(28 + i))}[k]
        def setup_a():
            a("; stage-1 tile geometry")
            a(f"s_lshr_b32 {s(S_M)}, {s(S_WAVE)}, 1")
            self.s1_geom(True)
            a(f"s_and_b32 {s(S_T3)}, {s(S_WAVE)}, 1"); a(f"s_lshl_b32 {s(S_T3)}, {s(S_T3)}, 2"); a(f"s_add_u32 {s(S_T3)}, {s(S_T3)}, {s(S_M+3)}")
            a(f"s_mul_i32 {s(S_T3)}, {s(S_T3)}, {s(SSTR)}"); a(f"s_lshl_b32 {s(SA)}, {s(S_T2)}, 7"); a(f"s_add_u32 {s(SA)}, {s(SA)}, {s(S_T3)}")
            a(f"v_and_b32 {v(VT)}, 56, v0"); a(f"v_mul_u32_u24 {v(VT)}, {s(SSTR)}, {v(VT)}")
            a(f"v_and_b32 {v(VT2)}, 0x70, {v(VV)}"); a(f"v_add_u32 {v(VWA)}, {v(VT)}, {v(VT2)}")
            if self.afake:
                lg = 3 + self.afake
                a(f"v_lshrrev_b32 {v(VT)}, {lg}, v0"); a(f"v_mul_u32_u24 {v(VT)}, {s(SSTR)}, {v(VT)}")
                a(f"v_and_b32 {v(VT2)}, {(16 << lg) - 16:#x}, {v(VV)}"); a(f"v_add_u32 {v(VWA)}, {v(VT)}, {v(VT2)}")
                a(f"s_and_b32 {s(S_T3)}, {s(S_S)}, 15"); a(f"s_lshl_b32 {s(S_T3)}, {s(S_T3)}, 3"); a(f"s_add_u32 {s(S_T3)}, {s(S_T3)}, {s(S_WAVE)}")
                a(f"s_and_b32 {s(SA)}, {s(S_T3)}, {(8 >> self.afake) - 1}"); a(f"s_lshl_b32 {s(SA)}, {s(SA)}, {7 + self.afake}")
                a(f"s_lshr_b32 {s(S_T3)}, {s(S_T3)}, {3 - self.afake}"); a(f"s_lshl_b32 {s(S_T3)}, {s(S_T3)}, {5 - self.afake}")
                a(f"s_mul_i32 {s(S_T3)}, {s(S_T3)}, {s(SSTR)}"); a(f"s_add_u32 {s(SA)}, {s(SA)}, {s(S_T3)}")
                a(f"s_cmp_ge_u32 {s(S_S)}, 16"); a(f"s_cselect_b32 {s(S_T3)}, 7, 16"); a(f"s_lshl_b32 {s(S_T3)}, {s(S_T3)}, 6"); a(f"s_mul_i32 {s(S_T3)}, {s(S_T3)}, {s(S_H)}"); a(f"s_and_b32 {s(S_T3)}, {s(S_T3)}, 0xffffff80")
                a(f"s_add_u32 {s(SA)}, {s(SA)}, {s(S_T3)}")
                a(f"s_lshl_b32 {s(SSTR)}, {s(SSTR)}, {3 - self.afake}")
        def setup_w():
            a(f"s_and_b32 {s(S_T2)}, {s(S_S)}, 3"); a(f"s_lshl_b32 {s(S_T2)}, {s(S_T2)}, 1"); a(f"s_lshr_b32 {s(S_T3)}, {s(S_WAVE)}, 2")
            a(f"s_add_u32 {s(S_T2)}, {s(S_T2)}, {s(S_T3)}"); a(f"s_lshl_b32 {s(S_T2)}, {s(S_T2)}, 7")
            a(f"s_lshl_b32 {s(SW0)}, {s(S_H)}, 19"); a(f"s_lshr_b32 {s(S_T3)}, {s(S_S)}, 2"); a(f"s_lshl_b32 {s(S_T3)}, {s(S_T3)}, 10")
            a(f"s_add_u32 {s(SW0)}, {s(SW0)}, {s(S_T3)}"); a(f"s_add_u32 {s(SW0)}, {s(SW0)}, {s(S_T2)}")
            self.fblock(SW1, S_T3)
            a(f"s_lshl_b32 {s(SW1)}, {s(SW1)}, 15"); a(f"s_add_u32 {s(SW1)}, {s(SW1)}, {s(S_T2)}")
            a(f"s_and_b32 {s(S_T2)}, {s(S_WAVE)}, 3")
            a(f"s_lshl_b32 {s(S_T3)}, {s(S_T2)}, 16"); a(f"s_add_u32 {s(SW0)}, {s(SW0)}, {s(S_T3)}")
            a(f"s_lshl_b32 {s(S_T3)}, {s(S_T2)}, 13"); a(f"s_add_u32 {s(SW1)}, {s(SW1)}, {s(S_T3)}")
            self.srd(R2, P_WO, 0x400000); self.srd(R3, P_WD, 0x1c0000)
            a(f"v_lshrrev_b32 {v(VT)}, 3, v0"); a(f"v_and_b32 {v(VT2)}, 0x70, {v(VV)}")
            a(f"v_lshl_add_u32 {v(VWD)}, {v(VT)}, 10, {v(VT2)}"); a(f"v_lshl_add_u32 {v(VWA)}, {v(VT)}, 13, {v(VT2)}")
        def load(it):
            k, i = it
            r = v(regs(it), 4)
            if k in 'KV':
                so, imm = off(i)
                if so != last_so[0]:
                    if self.rot:
                        a(f"s_add_u32 {s(S_T1)}, {s(S_M+9)}, {so}"); a(f"s_and_b32 {s(S_T1)}, {s(S_T1)}, 0x38000"); a(f"s_or_b32 {s(S_T1)}, {s(S_T1)}, {s(SB)}")
                    else: a(f"s_add_u32 {s(S_T1)}, {s(SB)}, {so}")
                    last_so[0] = so
                a(f"buffer_load_dwordx4 {r}, {v(VV if k == 'V' else VK)}, {s(R1 if k == 'V' else R0,4)}, {s(S_T1)} offen offset:{imm} {self.kvpol}")
            elif k == 'A':
                if i == 0 and not self.early: setup_a()
                if i == 0 and self.early:
                    if self.early == 2: setup_a()
                    a(f"s_cmp_ge_u32 {s(S_WAVE)}, 4")
                    a(f"s_cselect_b32 {s(R2)}, {s(P_WU)}, {s(P_WG)}"); a(f"s_cselect_b32 {s(R2+1)}, {s(P_WU+1)}, {s(P_WG+1)}")
                    a(f"s_cmp_ge_u32 {s(S_S)}, 16")
                    a(f"s_cselect_b32 {s(R2)}, {s(R2)}, {s(P_WQ)}"); a(f"s_cselect_b32 {s(R2+1)}, {s(R2+1)}, {s(P_WQ+1)}")
                a(f"buffer_load_dwordx4 {r}, {v(VWA)}, {s(R2,4)}, {s(SA)} offen {self.wpol}")
                if i < 3: a(f"s_add_u32 {s(SA)}, {s(SA)}, {s(SSTR)}")
            else:
                if i < 2: a(f"buffer_load_dwordx4 {r}, {v(VWA)}, {s(R2,4)}, {s(SW0)} offen {self.wpol}")
                else: a(f"buffer_load_dwordx4 {r}, {v(VWD)}, {s(R3,4)}, {s(SW1)} offen {self.wpol}")
                if i == 0: a(f"s_add_u32 {s(SW0)}, {s(SW0)}, 0x40000")
        def count(off_):
            a(f"v_mov_b32 {v(VT2)}, 1"); a("s_mov_b64 exec, 1"); a(f"ds_add_u32 {v(VZ)}, {v(VT2)} offset:{off_}"); a("s_mov_b64 exec, -1")
        def put_a():
            a("; stage-1 tiles -> LDS")
            a(f"s_lshl_b32 {s(S_T2)}, {s(S_WAVE)}, 12"); a(f"v_add_u32 {v(VT)}, {s(S_T2)}, {v(VV)}")
            for i in range(4): a(f"ds_write_b128 {v(VT)}, {v(regs(('A', i)),4)} offset:{L_A + 1024*i}")
            count(L_ACNT)
            if not self.wdma: setup_w()
            if self.dirty:
                a(f"s_mul_i32 {s(S_T2)}, {s(S_WG)}, 8"); a(f"s_add_u32 {s(S_T2)}, {s(S_T2)}, {s(S_WAVE)}"); a(f"s_lshl_b32 {s(S_T2)}, {s(S_T2)}, 10")
                a(f"s_add_u32 {s(S_T2)}, {s(S_T2)}, 0x400000"); a(f"v_add_u32 {v(VT)}, {s(S_T2)}, {v(VV)}")
        def put_w():
            a(f"s_lshr_b32 {s(S_T2)}, {s(S_WAVE)}, 2"); a(f"s_mul_i32 {s(S_T2)}, {s(S_T2)}, 12288")
            a(f"s_and_b32 {s(S_T3)}, {s(S_WAVE)}, 3"); a(f"s_lshl_b32 {s(S_T3)}, {s(S_T3)}, 10"); a(f"s_add_u32 {s(S_T2)}, {s(S_T2)}, {s(S_T3)}")
            a(f"v_add_u32 {v(VT)}, {s(S_T2)}, {v(VV)}")
            for i in range(3): a(f"ds_write_b128 {v(VT)}, {v(regs(('W', i)),4)} offset:{L_W + 4096*i}")
            count(L_WCNT)
        def qk(j):
            for m in range(4):
                a(f"v_mfma_f32_16x16x32_bf16 {v(DT+4*m,4)}, {v(slot(4*j+m),4)}, {v(Q,4)}, 0")
            if self.qk2:
                if j == 0:
                    for m in range(1, 4):
                        a(f"s_mov_b32 {s(P_X+2*m)}, {(15 << 4*m) * 0x10001:#x}"); a(f"s_mov_b32 {s(P_X+2*m+1)}, {(15 << 4*m) * 0x10001:#x}")
                for k in range(1, 4):
                    for m in range(4):
                        b = (m + k) & 3
                        a(f"v_add_f32_dpp {v(DT+5*m)}, {v(DT+4*m+b)}, {v(DT+5*m)} row_ror:{(4*(m-b)) & 15} row_mask:0xf bank_mask:0xf")
                for m in range(1, 4):
                    a(f"v_cndmask_b32 {v(S+j)}, {v(DT if m == 1 else S+j)}, {v(DT+5*m)}, {s(P_X+2*m,2)}")
                return
            for k in range(1, 4):
                for m in range(4):
                    b = (m + k) & 3
                    other = DT+4*m+m if k == 1 else S+j
                    a(f"v_add_f32_dpp {v(S+j)}, {v(DT+4*m+b)}, {v(other)} row_ror:{(4*(m-b)) & 15} row_mask:0xf bank_mask:{1<<m:#x}")
        M, Lr = DT, DT+1
        def sm_scale(k):
            if k == 0: a(f"s_mov_b32 {s(S_M+8)}, {SCALE:#x}")
            x, y = S+2*k, S+2*k+1
            self.rbf2(x, y, x, y, VT)
            a(f"v_mul_f32 {v(x)}, {s(S_M+8)}, {v(x)}"); a(f"v_mul_f32 {v(y)}, {s(S_M+8)}, {v(y)}")
            self.rbf2(x, y, x, y, VT)
        def sm_max():
            a("; true row max over this wave's 128 keys")
            a(f"v_max3_f32 {v(M)}, {v(S)}, {v(S+1)}, {v(S+2)}"); a(f"v_max3_f32 {v(M)}, {v(M)}, {v(S+3)}, {v(S+4)}")
            a(f"v_max3_f32 {v(M)}, {v(M)}, {v(S+5)}, {v(S+6)}"); a(f"v_max_f32 {v(M)}, {v(M)}, {v(S+7)}")
            self.ror("v_max_f32", [M], (4, 8)); self.rows_all("v_max_f32", M, VT)
        def sm_exp():
            a(f"s_mov_b32 {s(S_T2)}, {LOG2E:#x}")
            for k in range(8): a(f"v_sub_f32 {v(S+k)}, {v(S+k)}, {v(M)}")
            for k in range(8): a(f"v_mul_f32 {v(S+k)}, {s(S_T2)}, {v(S+k)}")
            for k in range(8): a(f"v_exp_f32 {v(S+k)}, {v(S+k)}")
        def sm_sum():
            a(f"v_add_f32 {v(Lr)}, {v(S)}, {v(S+1)}")
            for k in range(2, 8): a(f"v_add_f32 {v(Lr)}, {v(Lr)}, {v(S+k)}")
            self.ror("v_add_f32", [Lr], (4, 8)); self.rows_all("v_add_f32", Lr, VT)
            a(f"s_lshl_b32 {s(S_T2)}, {s(S_WAVE)}, 5")
            a(f"v_lshl_add_u32 {v(VT)}, v0, 2, {s(S_T2)}"); a(f"v_mov_b32 {v(VT2)}, 1")
            a("s_mov_b64 exec, 15")
            a(f"ds_write2_b32 {v(VT)}, {v(M)}, {v(Lr)} offset0:{L_ML//4} offset1:{L_ML//4+4}")
            a("s_mov_b64 exec, 1")
            a(f"ds_add_u32 {v(VZ)}, {v(VT2)} offset:{L_MLCNT}")
            a("s_mov_b64 exec, -1")
        def zero_acc():
            a(f"s_mul_i32 {s(S_T2)}, {s(S_WAVE)}, {OSTR}")
            a(f"v_and_b32 {v(VT)}, 15, v0"); a(f"v_mul_u32_u24 {v(VT)}, 144, {v(VT)}"); a(f"v_and_b32 {v(VWD)}, 48, v0")
            a(f"v_add3_u32 {v(VWD)}, {v(VWD)}, {v(VT)}, {s(S_T2)}")
            for r in range(ACC, ACC+8): a(f"v_mov_b32 {v(r)}, 0")
            for r in range(AO, AO+16): a(f"v_mov_b32 {v(r)}, 0")
            if self.plo:
                for r in range(DT, DT+16): a(f"v_mov_b32 {v(r)}, 0")
        AL = DT
        def build_lo(j):
            a(f"v_cvt_pk_bf16_f32 {v(VT)}, {v(S+2*j)}, {v(S+2*j+1)}")
            self.unpack(Q, Q+1, VT)
            a(f"v_sub_f32 {v(Q)}, {v(S+2*j)}, {v(Q)}"); a(f"v_sub_f32 {v(Q+1)}, {v(S+2*j+1)}, {v(Q+1)}")
            a(f"v_cvt_pk_bf16_f32 {v(VT)}, {v(Q)}, {v(Q+1)}")
            for m in range(4):
                for e in range(4):
                    n = (4*(e-m)) & 15
                    ctl = f"row_ror:{n}" if n else "quad_perm:[0,1,2,3]"
                    a(f"v_mov_b32_dpp {v(AL+4*e+m)}, {v(VT)} {ctl} row_mask:0xf bank_mask:{1<<e:#x}")
        def build_a(j):
            a(f"v_cvt_pk_bf16_f32 {v(VT)}, {v(S+2*j)}, {v(S+2*j+1)}")
            for m in range(4):
                for e in range(4):
                    n = (4*(e-m)) & 15
                    ctl = f"row_ror:{n}" if n else "quad_perm:[0,1,2,3]"
                    a(f"v_mov_b32_dpp {v(AO+4*e+m)}, {v(VT)} {ctl} row_mask:0xf bank_mask:{1<<e:#x}")
        def perm1(j, m, e):
            lo, hi = slot((8*j+m) % 16), slot((8*j+4+m) % 16)
            a(f"v_perm_b32 {v(B+4*e+m)}, {v(hi+(e>>1))}, {v(lo+(e>>1))}, {s(S_HIS if e & 1 else S_LO)}")
        def mfma_pv(e, j):
            acc = ACC + 4*(e >> 2)
            a(f"v_mfma_f32_16x16x32_bf16 {v(acc,4)}, {v(AO+4*(e&3),4)}, {v(B+4*e,4)}, {v(acc,4)}")
            if j < self.plo: a(f"v_mfma_f32_16x16x32_bf16 {v(acc,4)}, {v(AL+4*(e&3),4)}, {v(B+4*e,4)}, {v(acc,4)}")
        def pv_last(j):
            order = [0, 4, 1, 5, 2, 6, 3, 7]
            for k in range(3): perm1(j, 3, order[k])
            for k in range(8):
                mfma_pv(order[k], j)
                if k + 3 < 8: perm1(j, 3, order[k+3])
        def qwait():
            a("; wait for q (B operand of QK^T)")
            a(f"v_and_b32 {v(VT2)}, 3, v0"); a(f"v_lshlrev_b32 {v(VT2)}, 8, {v(VT2)}")
            a(f"v_and_b32 {v(VT)}, 0xc0, {v(VV)}"); a(f"v_lshrrev_b32 {v(VT)}, 2, {v(VT)}")
            a(f"v_and_b32 {v(DT)}, 0x300, {v(VV)}"); a(f"v_lshrrev_b32 {v(DT)}, 2, {v(DT)}")
            a(f"v_or3_b32 {v(VT2)}, {v(VT2)}, {v(VT)}, {v(DT)}")
            self.stamp(2)
            if not self.cut: self.lds_wait(L_QFLAG, 1, VZ, VT, [f"ds_read_b128 {v(Q,4)}, {v(VT2)} offset:{L_Q}"])
            self.stamp(3)
        kv = [('K', i) for i in range(32)] + [('V', i) for i in range(32)]
        seq = kv[:self.apos] + [('A', i) for i in range(4)] + kv[self.apos:self.wpos] + [('W', i) for i in range(0 if self.wdma else 3)] + kv[self.wpos:]
        if self.agap:
            seq = [x for x in seq if x[0] != 'A']
            for i in range(4): seq.insert(self.apos + i*(self.agap + 1), ('A', i))
        pos = {it: n for n, it in enumerate(seq)}
        N = len(seq)
        def owrite():
            a("; last PV group, partial o -> LDS")
            self.stamp(7)
            pv_last(3)
            a(f"ds_write_b128 {v(VWD)}, {v(ACC,4)} offset:{L_O}")
            a(f"ds_write_b128 {v(VWD)}, {v(ACC+4,4)} offset:{L_O+64}")
            a("s_waitcnt lgkmcnt(0)")
            a("s_barrier")
            if self.dirty:
                a(f"s_mul_i32 {s(S_T2)}, {s(S_WG)}, 8"); a(f"s_add_u32 {s(S_T2)}, {s(S_T2)}, {s(S_WAVE)}"); a(f"s_lshl_b32 {s(S_T2)}, {s(S_T2)}, 10")
                a(f"s_add_u32 {s(S_T2)}, {s(S_T2)}, 0x400000"); a(f"v_add_u32 {v(VT)}, {s(S_T2)}, {v(VV)}")
                a(f"s_cmp_ge_u32 {s(S_WAVE)}, {self.dirty}"); a("s_cbranch_scc1 Lnodirty")
                a(f"global_store_dwordx4 {v(VT)}, {v(ACC,4)}, {s(P_WS,2)}")
                a("Lnodirty:")
        p0 = pos[('K', self.n0)]
        tasks = [(p0, -1, [], qwait)]
        for j in range(8):
            tasks.append((p0 + int(j*self.qgap), pos[('K', 4*j+3)], [('K', 4*j+m) for m in range(4)], lambda j=j: qk(j)))
            if j & 1: tasks.append((0, -1, [], lambda j=j: sm_scale(j >> 1)))
        for f in (sm_max, sm_exp, sm_sum, zero_acc): tasks.append(('next', -1, [], f))
        for j in range(4):
            tasks.append(('next', -1, [], lambda j=j: build_a(j)))
            if j < self.plo: tasks.append(('next', -1, [], lambda j=j: build_lo(j)))
            for m in range(3): tasks.append(('next', pos[('V', 8*j+4+m)], [('V', 8*j+m), ('V', 8*j+4+m)], lambda j=j, m=m: [perm1(j, m, e) for e in range(8)]))
            tasks.append(('next', pos[('V', 8*j+7)], [('V', 8*j+3), ('V', 8*j+7)], (lambda j=j: pv_last(j)) if j < 3 else owrite))
        side = [(0, pos[('A', 3)], [('A', i) for i in range(4)], put_a)]
        if not self.wdma: side.append((0, pos[('W', 2)], [('W', i) for i in range(3)], put_w))
        trigs = {pos[kv[t]]: t for t in (self.nq, self.nm, self.g_trig) if isinstance(t, int) and t > 0}
        def Dn(n):
            if self.ramp and n < len(self.ramp): return self.ramp[n]
            return self.D2 if (self.D2 and n >= self.nD2) else self.D
        nbar = (self.ramp[0] if self.ramp else self.D) - 1
        busy = {}; landed = -1
        def run(n):
            for q in (side, tasks):
                did = False
                while q and q[0][1] <= landed:
                    e = q[0][0]
                    if e == 'next':
                        if did and n < 99 and self.smooth: break
                    elif e > n: break
                    t = q.pop(0); t[3](); did = True
                    for x in t[2]: busy.pop(regs(x))
        NM = N - 3 if self.wlate else N
        if self.early:
            if self.early == 1: setup_a()
            for r in (R0, R1): a(f"s_mov_b32 {s(r+2)}, 0x4000000"); a(f"s_mov_b32 {s(r+3)}, 0x20000")
            assert seq[0] == ('K', 0) and self.rot
            a(f"s_and_b32 {s(S_T1)}, {s(S_M+9)}, 0x38000"); a(f"s_or_b32 {s(S_T1)}, {s(S_T1)}, {s(SB)}"); last_so[0] = 0
        SK, SJ, VB, V1 = S_M+10, S_M+11, 164, 167
        if self.ctl:
            a(f"s_mov_b32 {s(SK)}, {self.ctl.get('init', 0)}"); a(f"s_mov_b32 {s(SJ)}, 0"); a(f"v_mov_b32 {v(V1)}, 1")
        if self.early:
            a("s_waitcnt lgkmcnt(0)")
            a(f"s_mov_b64 {s(R0,2)}, {s(P_K,2)}")
        for n in range(NM):
            if self.early and n == 1: a(f"s_mov_b64 {s(R1,2)}, {s(P_V,2)}")
            if self.ctl and self.ctl['from'] <= n < self.ctl['to']:
                Lb = self.lab("win"); D = Dn(n)
                two = self.ctl.get('g2') or (self.ctl.get('l2') and n >= self.ctl.get('l2from', 0))
                top = D + (2 if two else 1)
                if n - top > landed: a(f"s_waitcnt vmcnt({top-1})"); landed = n - top
                if n & 1:
                    a("s_waitcnt lgkmcnt(0)"); a(f"v_readfirstlane_b32 {s(SK)}, {v(VB)}"); a(f"v_readfirstlane_b32 {s(SJ)}, {v(VB+1)}")
                a(f"s_cmp_gt_u32 {s(SJ if (self.ctl.get('l2') and not two) else SK)}, {n}"); a(f"s_cbranch_scc1 {Lb}")
                a(f"s_waitcnt vmcnt({top-2})")
                if two:
                    a(f"s_cmp_gt_u32 {s(SJ)}, {n}"); a(f"s_cbranch_scc1 {Lb}")
                    a(f"s_waitcnt vmcnt({top-3})")
                elif self.ctl['tcap']:
                    a(f"s_cmp_le_u32 {s(SJ)}, {n}"); a(f"s_cbranch_scc1 {Lb}")
                    a(f"s_waitcnt vmcnt({D-2})")
                a(f"{Lb}:")
            elif n - Dn(n) > landed:
                a(f"s_waitcnt vmcnt({Dn(n)-1})"); landed = n - Dn(n)
            assert regs(seq[n]) not in busy, (n, seq[n])
            busy[regs(seq[n])] = n
            load(seq[n])
            if self.trace and seq[n] in kv:
                m = kv.index(seq[n])
                if m: a("s_waitcnt lgkmcnt(0)"); a(f"v_writelane_b32 v166, s100, {m-1}")
                a("s_memrealtime s[100:101]")
            if n == nbar:
                a(f"s_mov_b32 {s(S_HI)}, 0xffff0000"); a(f"s_mov_b32 {s(S_LO)}, 0x05040100"); a(f"s_mov_b32 {s(S_HIS)}, 0x07060302")
                if self.ebar:
                    Lb = self.lab("flags")
                    a(f"s_cmp_lg_u32 {s(S_WAVE)}, 0"); a(f"s_cbranch_scc1 {Lb}")
                    a(f"v_lshlrev_b32 {v(VT)}, 2, v0")
                    a("s_mov_b64 exec, 0xffff")
                    a(f"ds_write_b32 {v(VT)}, {v(VZ)}")
                    a("s_mov_b64 exec, -1")
                    a("s_waitcnt lgkmcnt(0)")
                    a(f"{Lb}:")
                a("s_barrier")
            if self.ctl and nbar <= n < self.ctl['to']:
                a("s_mov_b64 exec, 1"); a(f"ds_add_u32 {v(VZ)}, {v(V1)} offset:{L_CNT}"); a("s_mov_b64 exec, -1")
                if not n & 1: a(f"ds_read_b64 {v(VB,2)}, {v(VZ)} offset:{L_BOOST}")
            if n in trigs:
                a(f"v_mov_b32 {v(VT)}, {trigs[n]}"); a("s_mov_b64 exec, 1"); a(f"ds_max_u32 {v(VZ)}, {v(VT)} offset:{L_PROG}"); a("s_mov_b64 exec, -1")
            if self.wdma and self.wdrain is None and seq[n] == kv[min(63, self.wpos - 1)]: count(L_WCNT)
            if n == nbar + 1: self.stamp(1)
            if landed == pos[('K', 31)]: self.stamp(4)
            run(n)
        issued = NM
        while landed < N - 1:
            landed += 1
            now = issued < N and landed == NM - self.wlate
            sig = self.wdrain is not None and N - 1 - landed == self.wdrain
            if not now and not sig and not any(q and q[0][1] <= landed for q in (side, tasks)): continue
            a(f"s_waitcnt vmcnt({issued - 1 - landed})")
            if sig: count(L_WCNT)
            if now:
                for n in range(NM, N):
                    busy[regs(seq[n])] = n; load(seq[n])
                issued = N
            run(99)
        assert not tasks and not side
        self.stamp(8)
        if self.trace:
            a(f"s_mul_i32 {s(S_T0)}, {s(S_WG)}, 8"); a(f"s_add_u32 {s(S_T0)}, {s(S_T0)}, {s(S_WAVE)}")
            a(f"s_lshl_b32 {s(S_T0)}, {s(S_T0)}, 8"); a(f"s_add_u32 {s(S_T0)}, {s(S_T0)}, {STAMP + (1<<20):#x}")
            a(f"v_lshl_add_u32 {v(VT)}, v0, 2, {s(S_T0)}")
            a(f"global_store_dword {v(VT)}, v166, {s(P_WS,2)}")
        self.finish(VT)

    def prefetch(self, VA, R):
        a = self.a
        Lp = self.lab("nopf")
        a(f"s_cmp_ge_u32 {s(S_S)}, {self.pf}"); a(f"s_cbranch_scc1 {Lp}")
        a(f"s_getpc_b64 {s(R4,2)}")
        a(f"Lpc:")
        a(f"s_sub_u32 {s(R4)}, {s(R4)}, Lpc-{KN}"); a(f"s_subb_u32 {s(R4+1)}, {s(R4+1)}, 0")
        a(f"s_mov_b32 {s(R4+2)}, Lcode_end-{KN}"); a(f"s_mov_b32 {s(R4+3)}, 0x20000")
        a(f"s_and_b32 {s(S_T0)}, {s(S_WAVE)}, 3"); a(f"s_lshl_b32 {s(S_T0)}, {s(S_T0)}, 10")
        for k in range(5):
            a(f"buffer_load_dwordx4 {v(R+4*k,4)}, {v(VA)}, {s(R4,4)}, {s(S_T0)} offen")
            if k < 4: a(f"s_add_u32 {s(S_T0)}, {s(S_T0)}, 4096")
        a(f"{Lp}:")

    def s1_geom(self, loader):
        a = self.a
        SZ, SCB, SRB, SROW, SSTR = S_M, S_M+1, S_M+2, S_M+3, S_M+4
        Lf, Lj = self.lab("s1ffn"), self.lab("s1join")
        a(f"s_cmp_ge_u32 {s(S_S)}, 16"); a(f"s_cbranch_scc1 {Lf}")
        a(f"s_and_b32 {s(SCB)}, {s(S_S)}, 7"); a(f"s_lshr_b32 {s(SRB)}, {s(S_S)}, 3")
        a(f"s_lshl_b32 {s(SROW)}, {s(SRB)}, 2"); a(f"s_add_u32 {s(SROW)}, {s(SROW)}, {s(SZ)}"); a(f"s_lshl_b32 {s(SROW)}, {s(SROW)}, 6")
        if loader:
            a(f"s_mov_b32 {s(SSTR)}, 8192")
            a(f"s_lshl_b32 {s(S_T2)}, {s(S_H)}, 3"); a(f"s_add_u32 {s(S_T2)}, {s(S_T2)}, {s(SCB)}")
            if self.early: a(f"s_mov_b32 {s(R2+2)}, 0x400000"); a(f"s_mov_b32 {s(R2+3)}, 0x20000")
            else: self.srd(R2, P_WQ, 0x400000)
        a(f"s_branch {Lj}")
        a(f"{Lf}:")
        if self.hello in (1, 3, 5): a(f"s_sub_u32 {s(S_T2)}, {s(S_S)}, 16"); a(f"s_lshl_b32 {s(S_T3)}, {s(S_H)}, 4"); a(f"s_add_u32 {s(S_T2)}, {s(S_T2)}, {s(S_T3)}")
        else: a(f"s_sub_u32 {s(S_T2)}, {s(S_S)}, 16"); a(f"s_lshl_b32 {s(S_T2)}, {s(S_T2)}, 3"); a(f"s_add_u32 {s(S_T2)}, {s(S_T2)}, {s(S_H)}")
        a(f"s_lshr_b32 {s(SCB)}, {s(S_T2)}, 2"); a(f"s_and_b32 {s(SRB)}, {s(S_T2)}, 3")
        a(f"s_and_b32 {s(S_T3)}, {s(SZ)}, 1")
        a(f"s_lshl_b32 {s(SROW)}, {s(SRB)}, 1"); a(f"s_add_u32 {s(SROW)}, {s(SROW)}, {s(S_T3)}"); a(f"s_lshl_b32 {s(SROW)}, {s(SROW)}, 6")
        if loader:
            a(f"s_mov_b32 {s(SSTR)}, 3584")
            a(f"s_mov_b32 {s(S_T2)}, {s(SCB)}")
            if not self.early:
                a(f"s_cmp_ge_u32 {s(SZ)}, 2")
                a(f"s_cselect_b32 {s(R2)}, {s(P_WU)}, {s(P_WG)}"); a(f"s_cselect_b32 {s(R2+1)}, {s(P_WU+1)}, {s(P_WG+1)}")
            a(f"s_cmp_lt_u32 {s(SCB)}, 28")
            a(f"s_cselect_b32 {s(R2+2)}, 0x1c0000, 0"); a(f"s_mov_b32 {s(R2+3)}, 0x20000")
        a(f"{Lj}:")

    VZ, VT, VA, T = 1, 2, 3, 4
    def stage1(self):
        a = self.a
        VZ, VT, VA, T = self.VZ, self.VT, self.VA, self.T
        X, XF, XR, ACC, W = 12, 16, 24, 32, 40
        SZ, SCB, SRB, SROW, SSTR = S_M, S_M+1, S_M+2, S_M+3, S_M+4
        a(f"s_and_b32 {s(SZ)}, {s(S_WAVE)}, 3")
        a(f"v_mov_b32 {v(VZ)}, 0"); a(f"v_lshlrev_b32 {v(VA)}, 4, v0")
        if self.pf and not self.pfe: self.prefetch(VA, W+32)
        self.s1_geom(False)
        a("s_waitcnt lgkmcnt(0)")
        self.srd(R0, P_WS, WS_USED); self.srd(R1, P_X, 1024)
        a(f"buffer_load_dwordx4 {v(X,4)}, {v(VA)}, {s(R1,4)}, 0 offen")
        a(f"buffer_load_dword {v(VT)}, {v(VZ)}, {s(R0,4)}, 0 offen offset:{EPOCH}")
        if not self.ebar:
            Lb = self.lab("s1b")
            a(f"s_cmp_lg_u32 {s(SZ)}, 0"); a(f"s_cbranch_scc1 {Lb}")
            a(f"v_lshlrev_b32 {v(T+2)}, 2, v0")
            a("s_mov_b64 exec, 0xffff")
            a(f"ds_write_b32 {v(T+2)}, {v(VZ)}")
            a("s_mov_b64 exec, -1")
            a("s_waitcnt lgkmcnt(0)")
            a(f"{Lb}:")
            a("s_barrier")
        a("s_waitcnt vmcnt(1)")
        self.stamp(1)
        self.layernorm(X, XF, T)
        a(f"s_lshr_b32 {s(S_T0)}, {s(SROW)}, 1")
        a(f"v_lshrrev_b32 {v(T)}, 3, v0"); a(f"v_lshl_add_u32 {v(T)}, {v(T)}, 2, {s(S_T0)}")
        for j in range(8): a(f"ds_bpermute_b32 {v(XR+j)}, {v(T)}, {v(XF+j)}")
        a("s_waitcnt vmcnt(0)")
        a(f"v_add_u32 {v(VT)}, 1, {v(VT)}"); a(f"v_readfirstlane_b32 {s(S_E)}, {v(VT)}")
        a(f"v_and_b32 {v(VT)}, {s(S_TM) if self.strip else '0x3ff'}, {v(VT)}")
        if self.hello:
            Lh = self.lab("hello")
            a(f"s_cmp_lg_u32 {s(SZ)}, 0"); a(f"s_cbranch_scc1 {Lh}")
            a(f"s_getreg_b32 {s(S_M+5)}, hwreg(HW_REG_XCC_ID, 0, 4)"); a(f"s_lshl_b32 {s(S_T0)}, {s(S_E)}, 4"); a(f"s_or_b32 {s(S_M+5)}, {s(S_M+5)}, {s(S_T0)}")
            a(f"s_lshl_b32 {s(S_M+7)}, {s(S_H)}, 7"); a(f"s_add_u32 {s(S_M+7)}, {s(S_M+7)}, {XBOX:#x}")
            a(f"s_lshl_b32 {s(S_T0)}, {s(S_S)}, 2"); a(f"s_add_u32 {s(S_T0)}, {s(S_T0)}, {s(S_M+7)}")
            a(f"v_mov_b32 {v(T+2)}, {s(S_M+5)}")
            a("s_mov_b64 exec, 1")
            a(f"buffer_store_dword {v(T+2)}, {v(VZ)}, {s(R0,4)}, {s(S_T0)} offen" + ("" if self.hello >= 4 else " sc1"))
            a("s_mov_b64 exec, -1")
            a(f"{Lh}:")
        a(f"s_lshl_b32 {s(S_T0)}, {s(SZ)}, 13"); a(f"v_add_u32 {v(T)}, {s(S_T0)}, {v(VA)}")
        self.lds_wait(L_ACNT, 8, VZ, T+1)
        for j in range(8): a(f"ds_read_b128 {v(W+4*j,4)}, {v(T)} offset:{L_A+1024*j}")
        for j in range(8):
            self.lgkm(7-j)
            for k in range(4):
                self.unpack(T, T+1, W+4*j+k)
                op = "v_mul_f32" if j == 0 else "v_fmac_f32"
                a(f"{op} {v(ACC+2*k)}, {v(XR+j)}, {v(T)}"); a(f"{op} {v(ACC+2*k+1)}, {v(XR+j)}, {v(T+1)}")
        self.fold("v_permlane32_swap_b32", [(ACC+e, ACC+e+4) for e in range(4)])
        self.fold("v_permlane16_swap_b32", [(ACC+e, ACC+e+2) for e in range(2)])
        self.ror("v_add_f32", [ACC, ACC+1], (8,))
        a(f"s_lshl_b32 {s(S_T0)}, {s(SZ)}, 8")
        a(f"v_and_b32 {v(T)}, 7, v0"); a(f"v_lshl_add_u32 {v(T)}, {v(T)}, 5, {s(S_T0)}")
        a(f"v_lshrrev_b32 {v(T+1)}, 4, v0"); a(f"v_lshl_add_u32 {v(T)}, {v(T+1)}, 3, {v(T)}")
        a(f"v_mov_b32 {v(T+1)}, 1")
        a("s_mov_b32 exec_lo, 0xff00ff"); a("s_mov_b32 exec_hi, 0xff00ff")
        a(f"ds_write_b64 {v(T)}, {v(ACC,2)} offset:{L_S1}")
        a("s_mov_b64 exec, 1")
        a(f"ds_add_u32 {v(VZ)}, {v(T+1)} offset:{L_S1CNT}")
        a("s_mov_b64 exec, -1")
        self.stamp(2)

    def sw0(self):
        a = self.a
        VZ, VT, VA, T = self.VZ, self.VT, self.VA, self.T
        XF, W = 16, 40
        SZ, SCB, SRB = S_M, S_M+1, S_M+2
        def hello_check():
            a(f"v_and_b32 {v(T+4)}, 31, v0"); a(f"v_lshlrev_b32 {v(T+4)}, 2, {v(T+4)}")
            a(f"buffer_load_dword {v(T+5)}, {v(T+4)}, {s(R0,4)}, {s(S_M+7)} offen sc1")
            a("s_waitcnt vmcnt(0)")
            a(f"v_cmp_ne_u32 vcc, {s(S_M+5)}, {v(T+5)}")
            a("s_cmp_eq_u64 vcc, 0"); a(f"s_cselect_b32 {s(S_M+6)}, 2, 1")
        if self.hello:
            assert self.hello >= 4
            self.lds_wait(L_S1CNT, 4, VZ, T+1)
            hello_check()
        a(f"v_and_b32 {v(T)}, 0xf0, {v(VA)}"); a(f"v_and_b32 {v(T+2)}, 16, v0"); a(f"v_lshl_add_u32 {v(T)}, {v(T+2)}, 5, {v(T)}")
        self.lds_wait(L_S1CNT, 4, VZ, T+1, [f"ds_read_b128 {v(W,4)}, {v(T)} offset:{L_S1}", f"ds_read_b128 {v(W+4,4)}, {v(T)} offset:{L_S1+256}"])
        a(f"v_pk_add_f32 {v(W,2)}, {v(W,2)}, {v(W+4,2)}"); a(f"v_pk_add_f32 {v(W+2,2)}, {v(W+2,2)}, {v(W+6,2)}")
        Lf, Lj = self.lab("c1ffn"), self.lab("c1join")
        a(f"s_cmp_ge_u32 {s(S_S)}, 16"); a(f"s_cbranch_scc1 {Lf}")
        for r in range(4): a(f"v_mov_b32 {v(W+4+r)}, {v(W+r)}")
        self.fold("v_permlane16_swap_b32", [(W+r, W+4+r) for r in range(4)])
        a(f"v_and_b32 {v(T)}, 0xf0, {v(VA)}")
        a(f"s_lshl_b32 {s(S_T1)}, {s(S_H)}, 12"); a(f"s_lshl_b32 {s(S_T2)}, {s(SRB)}, 11"); a(f"s_add_u32 {s(S_T1)}, {s(S_T1)}, {s(S_T2)}")
        a(f"s_lshl_b32 {s(S_T2)}, {s(SCB)}, 8"); a(f"s_add_u32 {s(S_T1)}, {s(S_T1)}, {s(S_T2)}"); a(f"s_add_u32 {s(S_T1)}, {s(S_T1)}, {QBOX:#x}")
        a("s_mov_b64 exec, 0xffff")
        a(f"s_branch {Lj}")
        a(f"{Lf}:")
        a(f"v_and_b32 {v(T)}, 8, v0"); a(f"v_lshlrev_b32 {v(T)}, 7, {v(T)}")
        a(f"v_and_b32 {v(T+1)}, 0x70, {v(VA)}"); a(f"v_lshl_add_u32 {v(T+1)}, {v(T+2)}, 3, {v(T+1)}"); a(f"v_add_u32 {v(T)}, {v(T)}, {v(T+1)}")
        a(f"s_lshl_b32 {s(S_T1)}, {s(SCB)}, 11"); a(f"s_lshl_b32 {s(S_T2)}, {s(SRB)}, 8"); a(f"s_add_u32 {s(S_T1)}, {s(S_T1)}, {s(S_T2)}")
        a(f"s_add_u32 {s(S_T1)}, {s(S_T1)}, {GBOX:#x}")
        a("s_mov_b32 exec_lo, -1"); a("s_mov_b32 exec_hi, 0")
        a(f"{Lj}:")
        self.tag(range(W, W+4), VT)
        if self.hello:
            if self.hello in (2, 4): a(f"s_cmp_ge_u32 {s(S_S)}, 16"); a(f"s_cselect_b32 {s(S_M+8)}, 1, {s(S_M+6)}")
            elif self.hello == 3: a(f"s_mov_b32 {s(S_M+8)}, 1")
            else: a(f"s_mov_b32 {s(S_M+8)}, {s(S_M+6)}")
            self.pub(f"buffer_store_dwordx4 {v(W,4)}, {v(T)}, {s(R0,4)}, {s(S_T1)} offen", S_M+8)
        else: a(f"buffer_store_dwordx4 {v(W,4)}, {v(T)}, {s(R0,4)}, {s(S_T1)} offen sc1")
        a("s_mov_b64 exec, -1")
        a(f"s_lshl_b32 {s(S_T0)}, {s(S_H)}, 12"); a(f"s_add_u32 {s(S_T0)}, {s(S_T0)}, {QBOX:#x}")
        W2 = W + 8
        self.trig(self.nq, VZ, T+1)
        self.poll([(f"buffer_load_dwordx4 {v(W2+4*k,4)}, {v(VA)}, {s(R0,4)}, {s(S_T0)} offen offset:{1024*k} sc1", W2+4*k, 4) for k in range(4)], VT, T)
        for k in range(4): a(f"v_pk_add_f32 {v(W2+2*k,2)}, {v(W2+2*k,2)}, {v(W2+8+2*k,2)}")
        for k in range(4): a(f"v_cvt_pk_bf16_f32 {v(XF+k)}, {v(W2+2*k)}, {v(W2+2*k+1)}")
        a(f"v_lshlrev_b32 {v(T)}, 3, v0"); a(f"v_mov_b32 {v(T+1)}, 1")
        a(f"ds_write_b64 {v(T)}, {v(XF,2)} offset:{L_Q}"); a(f"ds_write_b64 {v(T)}, {v(XF+2,2)} offset:{L_Q+512}")
        a("s_waitcnt lgkmcnt(0)")
        a(f"ds_write_b32 {v(VZ)}, {v(T+1)} offset:{L_QFLAG}")
        self.stamp(3)
        if self.cut == 1: return self.finish(T)
        if self.hello:
            Lk = self.lab("known")
            a(f"s_cmp_eq_u32 {s(S_M+6)}, 2"); a(f"s_cbranch_scc1 {Lk}")
            hello_check()
            a(f"{Lk}:")
        MW, LW, M, L, MA, LA, MB, LB = XF, XF+1, XF+2, XF+3, W, W+1, W+2, W+3
        a("; softmax statistics: workgroup -> head group -> per-wave factors")
        a(f"v_and_b32 {v(T)}, 28, v0"); a(f"v_lshlrev_b32 {v(T)}, 3, {v(T)}")
        a(f"v_and_b32 {v(T+2)}, 3, v0"); a(f"v_lshl_add_u32 {v(T)}, {v(T+2)}, 2, {v(T)}")
        self.lds_wait(L_MLCNT, 8, VZ, T+1, [f"ds_read2_b32 {v(MW,2)}, {v(T)} offset0:{L_ML//4} offset1:{L_ML//4+4}"])
        self.stamp(4)
        a(f"s_mov_b32 {s(S_T2)}, {LOG2E:#x}")
        a(f"v_mov_b32 {v(M)}, {v(MW)}")
        self.ror("v_max_f32", [M], (4, 8))
        a(f"v_mov_b32 {v(T)}, {v(M)}"); a(f"v_permlane16_swap_b32 {v(M)}, {v(T)}"); a(f"v_max_f32 {v(M)}, {v(M)}, {v(T)}")
        a(f"v_sub_f32 {v(L)}, {v(MW)}, {v(M)}"); a(f"v_mul_f32 {v(L)}, {s(S_T2)}, {v(L)}"); a(f"v_exp_f32 {v(L)}, {v(L)}")
        a(f"v_mul_f32 {v(L)}, {v(L)}, {v(LW)}")
        self.ror("v_add_f32", [L], (4, 8))
        a(f"v_mov_b32 {v(T)}, {v(L)}"); a(f"v_permlane16_swap_b32 {v(L)}, {v(T)}"); a(f"v_add_f32 {v(L)}, {v(L)}, {v(T)}")
        a(f"s_mov_b32 {s(S_TM)}, 0x3ff")
        if self.strip: a(f"v_mov_b32 {v(VT)}, {s(S_E)}"); a(f"v_and_b32 {v(VT)}, {s(S_TM)}, {v(VT)}")
        self.tag([M, L], VT)
        if self.fast and not self.hello:
            a(f"s_getreg_b32 {s(S_M+5)}, hwreg(HW_REG_XCC_ID, 0, 4)"); a(f"s_lshl_b32 {s(S_M+5)}, {s(S_M+5)}, 12")
            a(f"v_or_b32 {v(M)}, {s(S_M+5)}, {v(M)}")
        a(f"v_lshlrev_b32 {v(T)}, 3, v0")
        a(f"s_lshl_b32 {s(S_T0)}, {s(S_H)}, 10"); a(f"s_add_u32 {s(S_T0)}, {s(S_T0)}, {MLBOX:#x}")
        a(f"s_lshl_b32 {s(S_T1)}, {s(S_S)}, 5"); a(f"s_add_u32 {s(S_T1)}, {s(S_T1)}, {s(S_T0)}")
        a("s_mov_b64 exec, 15")
        if self.hello: self.pub(f"buffer_store_dwordx2 {v(M,2)}, {v(T)}, {s(R0,4)}, {s(S_T1)} offen", S_M+6)
        else: a(f"buffer_store_dwordx2 {v(M,2)}, {v(T)}, {s(R0,4)}, {s(S_T1)} offen sc1")
        a("s_mov_b64 exec, -1")
        self.trig(self.nm, VZ, T+1)
        self.poll([(f"buffer_load_dwordx2 {v(MA,2)}, {v(T)}, {s(R0,4)}, {s(S_T0)} offen sc1", MA, 2),
                   (f"buffer_load_dwordx2 {v(MB,2)}, {v(T)}, {s(R0,4)}, {s(S_T0)} offen offset:512 sc1", MB, 2)], VT, T+1, quad=True)
        if self.fast and not self.hello:
            a(f"v_xor_b32 {v(T+2)}, {s(S_M+5)}, {v(MA)}"); a(f"v_xor_b32 {v(T+3)}, {s(S_M+5)}, {v(MB)}")
            a(f"v_or_b32 {v(T+2)}, {v(T+2)}, {v(T+3)}"); a(f"v_and_b32 {v(T+2)}, 0xf000, {v(T+2)}")
            a(f"v_cmp_ne_u32 vcc, 0, {v(T+2)}")
            a("s_cmp_eq_u64 vcc, 0"); a(f"s_cselect_b32 {s(S_M+6)}, 2, 1")
        a(f"v_and_b32 {v(MA)}, {s(S_HI)}, {v(MA)}"); a(f"v_and_b32 {v(MB)}, {s(S_HI)}, {v(MB)}")
        a(f"v_max_f32 {v(M)}, {v(MA)}, {v(MB)}")
        self.ror("v_max_f32", [M], (4, 8)); self.rows_all("v_max_f32", M, T)
        for r in (MA, MB, MW): a(f"v_sub_f32 {v(r)}, {v(r)}, {v(M)}")
        for r in (MA, MB, MW): a(f"v_mul_f32 {v(r)}, {s(S_T2)}, {v(r)}")
        for r in (MA, MB, MW): a(f"v_exp_f32 {v(r)}, {v(r)}")
        a(f"v_mul_f32 {v(L)}, {v(MA)}, {v(LA)}"); a(f"v_fmac_f32 {v(L)}, {v(MB)}, {v(LB)}")
        self.ror("v_add_f32", [L], (4, 8)); self.rows_all("v_add_f32", L, T)
        a(f"v_rcp_f32 {v(L)}, {v(L)}"); a(f"v_mul_f32 {v(MW)}, {v(MW)}, {v(L)}")
        a(f"v_and_b32 {v(T)}, 31, v0"); a(f"v_lshlrev_b32 {v(T)}, 2, {v(T)}"); a(f"v_mov_b32 {v(T+1)}, {s(S_M+6) if self.fast else 1}")
        a(f"ds_write_b32 {v(T)}, {v(MW)} offset:{L_F}")
        a("s_waitcnt lgkmcnt(0)")
        a(f"ds_write_b32 {v(VZ)}, {v(T+1)} offset:{L_FFLAG}")
        a("s_waitcnt lgkmcnt(0)")
        self.stamp(5)
        self.finish(T)

    def fblock(self, dst, t):
        a = self.a
        a(f"s_lshl_b32 {s(dst)}, {s(S_H)}, 3"); a(f"s_lshr_b32 {s(t)}, {s(S_S)}, 2"); a(f"s_add_u32 {s(dst)}, {s(dst)}, {s(t)}")

    def sw1(self):
        a = self.a
        VZ, VT, VA, T = self.VZ, self.VT, self.VA, self.T
        XC, VO, G, W = 10, 11, 12, 16
        self.fblock(S_T0, S_T1)
        a(f"s_lshl_b32 {s(S_T0)}, {s(S_T0)}, 10"); a(f"s_add_u32 {s(S_T0)}, {s(S_T0)}, {GBOX:#x}")
        self.trig(self.g_trig, VZ, T+1)
        self.poll([(f"buffer_load_dwordx4 {v(G,4)}, {v(VA)}, {s(R0,4)}, {s(S_T0)} offen sc1", G, 4)], VT, T)
        self.fold4(G)
        self.rbf1(G, G)
        a(f"v_mov_b32_dpp {v(G+1)}, {v(G)} row_ror:8 row_mask:0xf bank_mask:0xf")
        self.silu_bf(G, G, T)
        a(f"v_mul_f32 {v(G)}, {v(G)}, {v(G+1)}"); a(f"v_cvt_pk_bf16_f32 {v(G)}, {v(G)}, {v(G)}")
        a(f"v_and_b32 {v(T)}, 7, v0"); a(f"v_lshlrev_b32 {v(T)}, 3, {v(T)}")
        a(f"v_lshrrev_b32 {v(T+1)}, 4, v0"); a(f"v_lshl_add_u32 {v(T)}, {v(T+1)}, 1, {v(T)}"); a(f"v_mov_b32 {v(T+1)}, 1")
        a("s_mov_b32 exec_lo, 0xff00ff"); a("s_mov_b32 exec_hi, 0xff00ff")
        a(f"ds_write_b16 {v(T)}, {v(G)} offset:{L_H}")
        a("s_mov_b64 exec, -1")
        a("s_waitcnt lgkmcnt(0)")
        a(f"ds_write_b32 {v(VZ)}, {v(T+1)} offset:{L_HFLAG}")
        self.stamp(3)
        if self.pf2:
            Lp = self.lab("nopf2")
            a(f"s_cmp_lg_u32 {s(S_S)}, 31"); a(f"s_cbranch_scc1 {Lp}")
            a(f"s_getpc_b64 {s(R4,2)}")
            a("Lpc2:")
            a(f"s_sub_u32 {s(R4)}, {s(R4)}, Lpc2-Lsw23"); a(f"s_subb_u32 {s(R4+1)}, {s(R4+1)}, 0")
            a(f"s_mov_b32 {s(R4+2)}, Lcode_end-Lsw23"); a(f"s_mov_b32 {s(R4+3)}, 0x20000")
            a(f"s_mov_b32 {s(S_T0)}, 4096")
            for k in range(7): a(f"buffer_load_dwordx4 {v(W+4*k,4)}, {v(VA)}, {s(R4,4)}, {s(S_T0) if k >= 4 else 0} offen offset:{1024*(k&3)}")
            a(f"{Lp}:")
        if self.red2: return self.finish(T)
        Lx = self.lab("sw1end")
        a(f"s_cmp_ge_u32 {s(S_WG)}, {0 if self.cut else 32}"); a(f"s_cbranch_scc1 {Lx}")
        a(f"s_lshl_b32 {s(S_T0)}, {s(S_WG)}, 5")
        a(f"v_and_b32 {v(VO)}, 3, v0"); a(f"v_lshl_add_u32 {v(VO)}, {v(VO)}, 3, {s(S_T0)}")
        a(f"v_lshrrev_b32 {v(T)}, 4, v0"); a(f"v_lshl_add_u32 {v(VO)}, {v(T)}, 1, {v(VO)}")
        a(f"buffer_load_ushort {v(XC)}, {v(VO)}, {s(R1,4)}, 0 offen")
        a(f"s_lshl_b32 {s(S_T0)}, {s(S_WG)}, 13"); a(f"s_add_u32 {s(S_T0)}, {s(S_T0)}, {HBOX:#x}"); a(f"s_add_u32 {s(S_T1)}, {s(S_T0)}, 4096")
        loads = [(f"buffer_load_dwordx4 {v(W+4*j,4)}, {v(VA)}, {s(R0,4)}, {s(S_T0+(j>>2))} offen offset:{1024*(j&3)} sc1", W+4*j, 4) for j in range(8)]
        if self.touch:
            for ld in loads: a(ld[0])
        a("s_waitcnt vmcnt(0)")
        a(f"v_lshlrev_b32 {v(XC)}, 16, {v(XC)}")
        self.srd(R1, P_OUT, 1024)
        if self.otouch: a(f"buffer_load_ushort {v(T+5)}, {v(VO)}, {s(R1,4)}, 0 offen sc1"); a("s_waitcnt vmcnt(0)")
        self.stamp(4)
        a("s_barrier")
        if self.rdelay: self.lds_wait(L_PUB, 2 if self.rdelay >= 3 else 1, VZ, T+1, sleep=0)
        self.stamp(5)
        if self.pipe:
            Y = [(f"buffer_load_dwordx4 {v(W+32+4*j,4)}, {v(VA)}, {s(R0,4)}, {s(S_T0+(j>>2))} offen offset:{1024*(j&3)} sc1", W+32+4*j, 4) for j in range(8)]
            self.poll2(loads, Y, VT, T, G)
        elif self.light: self.gather8(loads, VT, T, G, VA, S_T0, 10)
        else: self.poll(loads, VT, T, acc=G)
        self.stamp(6)
        self.fold4(G)
        self.ror("v_add_f32", [G], (8,))
        self.rbf1(G, G)
        self.silu_bf(G+1, G, T)
        a(f"v_mul_f32_dpp {v(G)}, {v(G+1)}, {v(G)} row_ror:12 row_mask:0xf bank_mask:0xf"); self.rbf1(G, G)
        a(f"v_add_f32 {v(G)}, {v(G)}, {v(XC)}"); a(f"v_cvt_pk_bf16_f32 {v(G)}, {v(G)}, {v(G)}")
        a("s_mov_b32 exec_lo, 0xf000f"); a("s_mov_b32 exec_hi, 0xf000f")
        a(f"buffer_store_short {v(G)}, {v(VO)}, {s(R1,4)}, 0 offen {self.outpol}")
        a(f"s_cmp_lg_u32 {s(S_WG)}, 0"); a(f"s_cbranch_scc1 {Lx}")
        a("s_mov_b64 exec, 1")
        a(f"v_mov_b32 {v(T)}, {s(S_E)}")
        a(f"buffer_store_dword {v(T)}, {v(VZ)}, {s(R0,4)}, 0 offen offset:{EPOCH} {self.outpol}")
        if self.amp:
            pa, pb, k = self.amp
            a("s_waitcnt vmcnt(0)"); self.stamp(7); a("s_waitcnt lgkmcnt(0)")
            a(f"s_sub_u32 {s(S_T0)}, {s(S_ST+2*pb)}, {s(S_ST+2*pa)}"); a(f"s_mul_i32 {s(S_T0)}, {s(S_T0)}, {k}")
            a(f"s_min_u32 {s(S_T0)}, {s(S_T0)}, 100000")
            a("Lamp:")
            a(f"s_memrealtime {s(S_ST+20,2)}"); a("s_waitcnt lgkmcnt(0)")
            a(f"s_sub_u32 {s(S_T1)}, {s(S_ST+20)}, {s(S_ST+14)}"); a(f"s_cmp_lt_u32 {s(S_T1)}, {s(S_T0)}"); a("s_cbranch_scc1 Lamp")
        a(f"{Lx}:")
        if self.diag: a("s_waitcnt vmcnt(0)")
        self.stamp(7)
        self.finish(T)

    def controller(self, SZ, nbar_):
        a = self.a; c = self.ctl
        VZ = self.VZ
        C, CP, E, X, Y, A, G = 24, 25, 26, 27, 28, 29, 30
        glob = c.get('gw', 0) or c['tcap'] or c.get('g2')
        SG, SPREV, SB8 = R3+1, R3+2, 4
        import struct
        f = lambda x: hex(struct.unpack('<I', struct.pack('<f', x))[0])
        L, Lo, Ls = self.lab("ctl"), self.lab("ctlx"), self.lab("ctls")
        a(f"s_cmp_lg_u32 {s(SZ)}, 0"); a(f"s_cbranch_scc1 {Lo}")
        a(f"s_lshl_b32 {s(S_T0)}, {s(S_H)}, 7")
        a(f"v_and_b32 {v(A)}, 31, v0"); a(f"v_lshlrev_b32 {v(A)}, 2, {v(A)}")
        if glob:
            a(f"v_cmp_gt_u32 vcc, 32, v0"); a(f"v_mov_b32 {v(X)}, 0x400"); a(f"v_cndmask_b32 {v(A)}, {v(X)}, {v(A)}, vcc")
            a(f"s_mov_b32 {s(SPREV)}, 0"); a(f"s_mov_b32 {s(17)}, 0")
            a(f"s_lshl_b32 {s(SPREV+1)}, {s(S_H)}, 2"); a(f"s_add_u32 {s(12)}, {s(P_DBG)}, {s(SPREV+1)}"); a(f"s_addc_u32 {s(13)}, {s(P_DBG+1)}, 0")
        a(f"s_add_u32 {s(S_T0)}, {s(S_T0)}, {PBOX:#x}")
        a(f"s_lshl_b32 {s(S_T1)}, {s(S_S)}, 2"); a(f"s_add_u32 {s(S_T1)}, {s(S_T1)}, {s(S_T0)}")
        a(f"s_lshl_b32 {s(R3)}, {s(S_E)}, 16")
        a(f"ds_read_b32 {v(CP)}, {v(VZ)} offset:{L_CNT}")
        a(f"s_mov_b32 {s(S_CNT)}, 4096")
        a(f"{L}:")
        a(f"ds_read_b32 {v(C)}, {v(VZ)} offset:{L_CNT}")
        a("s_waitcnt lgkmcnt(0)")
        a(f"v_or_b32 {v(E)}, {s(R3)}, {v(C)}")
        a(f"v_readfirstlane_b32 {s(S_T2)}, {v(C)}")
        a("s_mov_b64 exec, 1")
        a(f"buffer_store_dword {v(E)}, {v(VZ)}, {s(R0,4)}, {s(S_T1)} offen")
        a("s_mov_b64 exec, -1")
        a(f"s_cmp_ge_u32 {s(S_T2)}, {8*(c.get('exit', c['to'] - 2) - nbar_)}"); a(f"s_cbranch_scc1 {Lo}")
        a(f"s_sub_u32 {s(S_CNT)}, {s(S_CNT)}, 1"); a(f"s_cbranch_scc1 {Lo}")
        a(f"buffer_load_dword {v(X)}, {v(A)}, {s(R0,4)}, {s(S_T0)} offen sc1")
        if glob:
            Lr = self.lab("ctlr")
            a(f"s_cmp_lg_u32 {s(S_S)}, 5"); a(f"s_cbranch_scc1 {Lr}")
            if c.get('plain'):
                for k in range(8): a(f"s_load_dword {s(SB8+k)}, {s(P_WS,2)}, {PBOX + 0x800 + 128*k:#x} glc")
            else: a(f"s_load_dwordx8 {s(SB8,8)}, {s(P_DBG,2)}, 0 glc")
            a(f"{Lr}:")
        a(f"v_add_u32 {v(CP)}, {v(CP)}, {v(C)}"); a(f"v_cvt_f32_u32 {v(CP)}, {v(CP)}")
        a("s_waitcnt vmcnt(0)")
        a(f"ds_read_b32 {v(Y)}, {v(VZ)} offset:{L_CNT}")
        a(f"v_xor_b32 {v(X)}, {s(R3)}, {v(X)}"); a(f"v_cmp_gt_u32 vcc, 0x10000, {v(X)}")
        if glob:
            a(f"v_subrev_u32 {v(G)}, 0x8000, {v(X)}"); a(f"v_cvt_f32_i32 {v(G)}, {v(G)}"); a(f"v_cndmask_b32 {v(G)}, 0, {v(G)}, vcc")
        a(f"v_cvt_f32_u32 {v(X)}, {v(X)}"); a(f"v_cndmask_b32 {v(X)}, 0, {v(X)}, vcc")
        a(f"s_bcnt1_i32_b32 {s(S_T2)}, vcc_lo")
        if glob: a(f"v_readlane_b32 {s(SG)}, {v(G)}, 32")
        self.ror("v_add_f32", [X], (8, 4, 2, 1))
        a(f"v_mov_b32 {v(E)}, {v(X)}"); a(f"v_permlane16_swap_b32 {v(X)}, {v(E)}"); a(f"v_add_f32 {v(X)}, {v(X)}, {v(E)}")
        a(f"v_cvt_f32_u32 {v(E)}, {s(S_T2)}"); a(f"v_rcp_f32 {v(E)}, {v(E)}")
        a("s_waitcnt lgkmcnt(0)")
        a(f"s_cmp_lt_u32 {s(S_T2)}, 24"); a(f"s_cbranch_scc1 {Ls}")
        a(f"v_mul_f32 {v(X)}, {v(X)}, {v(E)}")
        if glob:
            Lr, Lv = self.lab("ctlr"), self.lab("ctlv")
            a(f"v_mov_b32 {v(G)}, {s(SG)}")
            a(f"s_cmp_lg_u32 {s(S_S)}, 5"); a(f"s_cbranch_scc1 {Lr}")
            a(f"v_cvt_u32_f32 {v(E)}, {v(X)}"); a(f"v_readfirstlane_b32 {s(S_T2)}, {v(E)}")
            a(f"s_add_u32 {s(S_T3)}, {s(SPREV)}, {s(17)}"); a(f"s_min_u32 {s(18)}, {s(SPREV)}, {s(17)}"); a(f"s_mov_b32 {s(17)}, {s(SPREV)}")
            a(f"s_sub_u32 {s(14)}, {s(S_T2)}, {s(SPREV)}"); a(f"s_mov_b32 {s(SPREV)}, {s(S_T2)}")
            if c.get('plain'):
                a(f"v_or_b32 {v(E)}, {s(R3)}, {v(E)}")
                a("s_mov_b64 exec, 1")
                a(f"buffer_store_dword {v(E)}, {v(VZ)}, {s(R0,4)}, {s(S_T0)} offen offset:2048")
                a("s_mov_b64 exec, -1")
                for k in range(8):
                    a(f"s_xor_b32 {s(SB8+k)}, {s(SB8+k)}, {s(R3)}"); a(f"s_cmp_lt_u32 {s(SB8+k)}, 0x10000"); a(f"s_cselect_b32 {s(SB8+k)}, {s(SB8+k)}, 0")
            else: a(f"s_atomic_add {s(14)}, {s(12,2)}, 0x0")
            a(f"s_min_u32 {s(15)}, {s(SB8)}, {s(SB8+1)}"); a(f"s_add_u32 {s(16)}, {s(SB8)}, {s(SB8+1)}")
            for k in range(2, 8): a(f"s_min_u32 {s(15)}, {s(15)}, {s(SB8+k)}"); a(f"s_add_u32 {s(16)}, {s(16)}, {s(SB8+k)}")
            a(f"s_min_u32 {s(15)}, {s(15)}, {s(18)}"); a(f"s_cmp_eq_u32 {s(15)}, 0"); a(f"s_cbranch_scc1 {Lr}")
            a(f"s_lshl_b32 {s(S_T3)}, {s(S_T3)}, 2")
            a(f"s_sub_u32 {s(16)}, {s(16)}, {s(S_T3)}"); a(f"s_ashr_i32 {s(16)}, {s(16)}, 3")
            a(f"s_add_u32 {s(16)}, {s(16)}, {0x8000 + c.get('gb', 0)}"); a(f"s_or_b32 {s(16)}, {s(16)}, {s(R3)}")
            a(f"v_mov_b32 {v(E)}, {s(16)}")
            a("s_mov_b64 exec, 1")
            a(f"buffer_store_dword {v(E)}, {v(VZ)}, {s(R0,4)}, {s(S_T0)} offen offset:1024")
            a("s_mov_b64 exec, -1")
            a(f"{Lr}:")
        a(f"v_fma_f32 {v(X)}, {v(CP)}, -0.5, {v(X)}")
        if c.get('gw', 0): a(f"v_fmac_f32 {v(X)}, {f(c['gw'])}, {v(G)}")
        a(f"v_lshrrev_b32 {v(Y)}, 3, {v(Y)}"); a(f"v_add_u32 {v(Y)}, {nbar_ + 1 + c['lead']}, {v(Y)}")
        for (dst, src, sign, th, g, cap) in ((E, X, 1, c['bth'], c['bg'], c['bcap']), (X, G, 1, *c['g2']) if c.get('g2') else (X, X, 1, *c['l2']) if c.get('l2') else (X, G, -1, c['tth'], c['tg'], c['tcap'])):
            if not cap: continue
            t = CP
            a(f"v_mul_f32 {v(t)}, {f(sign*g)}, {v(src)}")
            if c.get('k0') and dst == E: a(f"v_add_f32 {v(t)}, {f(c['k0'])}, {v(t)}")
            a(f"v_min_f32 {v(t)}, {f(cap)}, {v(t)}"); a(f"v_max_f32 {v(t)}, 0, {v(t)}")
            a(f"v_cmp_{'lt' if sign > 0 else 'gt'}_f32 vcc, {f(sign*th)}, {v(src)}")
            a(f"v_cvt_u32_f32 {v(t)}, {v(t)}"); a(f"v_add_u32 {v(t)}, {v(t)}, {v(Y)}")
            a(f"v_cndmask_b32 {v(dst)}, 0, {v(t)}, vcc")
        if c.get('g2') or c.get('l2'):
            a(f"v_min_u32 {v(CP)}, {v(E)}, {v(X)}"); a(f"v_max_u32 {v(X)}, {v(E)}, {v(X)}"); a(f"v_mov_b32 {v(E)}, {v(CP)}")
        a("s_mov_b64 exec, 1")
        a(f"ds_write_b64 {v(VZ)}, {v(E,2)} offset:{L_BOOST}")
        a("s_mov_b64 exec, -1")
        a(f"{Ls}:")
        a(f"v_mov_b32 {v(CP)}, {v(C)}")
        a(f"s_branch {L}")
        a(f"{Lo}:")
        if glob and self.diag: a(f"s_mov_b32 {s(S_ST+20)}, {s(16)}"); a(f"s_mov_b32 {s(S_ST+22)}, {s(15)}")

    def sw23(self):
        a = self.a
        VZ, VT, VA, T = self.VZ, self.VT, self.VA, self.T
        VP, VH, VB, VB2, OUT, SUM, W, HB, AW, AD, F, DD = 10, 11, 12, 13, 16, 20, 24, 56, 72, 104, 120, 152
        SZ, SFB, SCOL, SPUB, SP0, SHB, SLW = S_M+8, S_M+9, S_M+10, S_M+11, S_M, S_M+12, S_M+13
        a(f"s_and_b32 {s(SZ)}, {s(S_WAVE)}, 1")
        self.fblock(SFB, S_T1)
        a(f"s_and_b32 {s(SCOL)}, {s(S_S)}, 3"); a(f"s_lshl_b32 {s(SCOL)}, {s(SCOL)}, 1"); a(f"s_add_u32 {s(SCOL)}, {s(SCOL)}, {s(SZ)}")
        a(f"s_mul_i32 {s(SLW)}, {s(SZ)}, 12288")
        a(f"v_lshrrev_b32 {v(T)}, 4, v0"); a(f"v_lshl_add_u32 {v(T)}, {v(T)}, 10, {s(SLW)}")
        a(f"v_bfe_u32 {v(T+2)}, v0, 2, 2"); a(f"v_lshl_add_u32 {v(T)}, {v(T+2)}, 7, {v(T)}")
        a(f"v_and_b32 {v(T+2)}, 3, v0"); a(f"v_lshl_add_u32 {v(T)}, {v(T+2)}, 3, {v(T)}")
        a(f"s_lshl_b32 {s(S_T0)}, {s(S_H)}, 16"); a(f"s_add_u32 {s(S_T0)}, {s(S_T0)}, {OBOX:#x}")
        a(f"s_lshl_b32 {s(SPUB)}, {s(S_S)}, 11"); a(f"s_add_u32 {s(SPUB)}, {s(SPUB)}, {s(S_T0)}")
        a(f"s_lshr_b32 {s(S_T1)}, {s(S_S)}, 2"); a(f"s_lshl_b32 {s(S_T1)}, {s(S_T1)}, 8"); a(f"s_add_u32 {s(SP0)}, {s(S_T0)}, {s(S_T1)}")
        for k in range(1, 8): a(f"s_add_u32 {s(SP0+k)}, {s(SP0)}, {8192*k}")
        a(f"v_lshrrev_b32 {v(VP)}, 4, v0"); a(f"v_and_b32 {v(T+2)}, 0xf0, {v(VA)}"); a(f"v_lshl_add_u32 {v(VP)}, {v(VP)}, 11, {v(T+2)}")
        a(f"s_lshl_b32 {s(SHB)}, {s(SCOL)}, 15"); a(f"s_lshl_b32 {s(S_T1)}, {s(SFB)}, 7"); a(f"s_add_u32 {s(SHB)}, {s(SHB)}, {s(S_T1)}")
        a(f"s_add_u32 {s(SHB)}, {s(SHB)}, {HBOX:#x}")
        a(f"v_and_b32 {v(VH)}, 3, v0"); a(f"v_lshlrev_b32 {v(VH)}, 13, {v(VH)}")
        a(f"v_and_b32 {v(T+2)}, 4, v0"); a(f"v_lshl_add_u32 {v(VH)}, {v(T+2)}, 4, {v(VH)}")
        a(f"v_and_b32 {v(VB)}, 48, v0"); a(f"v_add_u32 {v(VH)}, {v(VH)}, {v(VB)}")
        def tr_ad():
            for t in range(4):
                for hf in range(2):
                    a(f"ds_read_b64_tr_b16 {v(AD+4*t+2*hf,2)}, {v(T)} offset:{L_W + 8192 + 512*hf + 32*t}")
        def tr_aw(t):
            for kk in range(2):
                for hf in range(2):
                    a(f"ds_read_b64_tr_b16 {v(AW+8*t+4*kk+2*hf,2)}, {v(T)} offset:{L_W + 4096*kk + 512*hf + 32*t}")
        def ffn_tags():
            a("s_mov_b32 exec_lo, 0x100010"); a("s_mov_b32 exec_hi, 0x100010")
            for t in range(4):
                self.tag(range(DD+4*t, DD+4*t+4), VT, dst=range(OUT, OUT+4))
                if t < 3: a("s_lshl_b64 exec, exec, 1")
            a("s_mov_b64 exec, -1")
        def wprep(less=0):
            if self.wprog:
                assert self.wsplit == 12
                a(f"s_waitcnt vmcnt({16 - less})")
                tr_ad()
                self.lgkm(0)
                for t in range(4): a(f"v_mfma_f32_16x16x32_bf16 {v(DD+4*t,4)}, {v(AD+4*t,4)}, {v(HB,4)}, 0")
                ffn_tags()
                for kk in range(2):
                    a(f"s_waitcnt vmcnt({12 - 4*kk - less})")
                    for t in range(4):
                        for hf in range(2):
                            a(f"ds_read_b64_tr_b16 {v(AW+8*t+4*kk+2*hf,2)}, {v(T)} offset:{L_W + 4096*kk + 512*hf + 32*t}")
                self.stamp(3)
                return
            if self.wdma:
                a(f"s_waitcnt vmcnt({9 if self.wsplit == 12 else 8})")
                tr_ad(); tr_aw(0)
                self.lgkm(4)
                for t in range(4): a(f"v_mfma_f32_16x16x32_bf16 {v(DD+4*t,4)}, {v(AD+4*t,4)}, {v(HB,4)}, 0")
                for t in range(1, 4): tr_aw(t)
                ffn_tags()
                self.stamp(3)
                return
            self.lds_wait(L_WCNT, 8, VZ, T+2)
            tr_ad()
            self.lds_wait(L_HFLAG, 1, VZ, T+2, [f"ds_read_b128 {v(HB,4)}, {v(VB)} offset:{L_H}"])
            for t in range(4): a(f"v_mfma_f32_16x16x32_bf16 {v(DD+4*t,4)}, {v(AD+4*t,4)}, {v(HB,4)}, 0")
            for t in range(4):
                tr_aw(t)
                if t == 1: a("s_waitcnt lgkmcnt(0)")
            ffn_tags()
            a("s_waitcnt lgkmcnt(0)")
            self.stamp(3)
        if self.wdma:
            VWA, VWD, SW0, SW1 = 14, 15, R4, R4+1
            a(f"v_lshrrev_b32 {v(T+1)}, 3, v0"); a(f"v_and_b32 {v(T+2)}, 0x70, {v(VA)}")
            a(f"v_lshl_add_u32 {v(VWD)}, {v(T+1)}, 10, {v(T+2)}")
            a(f"s_mul_i32 {s(S_T1)}, {s(SZ)}, {8*144}"); a(f"v_mul_u32_u24 {v(T+1)}, 144, {v(T+1)}"); a(f"v_add3_u32 {v(VWA)}, {v(T+1)}, {v(T+2)}, {s(S_T1)}")
            a(f"s_lshl_b32 {s(SW0)}, {s(S_H)}, 19"); a(f"s_lshr_b32 {s(S_T1)}, {s(S_S)}, 2"); a(f"s_lshl_b32 {s(S_T1)}, {s(S_T1)}, 14"); a(f"s_add_u32 {s(SW0)}, {s(SW0)}, {s(S_T1)}")
            a(f"s_lshl_b32 {s(S_T1)}, {s(SCOL)}, 7"); a(f"s_add_u32 {s(SW0)}, {s(SW0)}, {s(S_T1)}")
            a(f"s_lshl_b32 {s(SW1)}, {s(SFB)}, 15"); a(f"s_add_u32 {s(SW1)}, {s(SW1)}, {s(S_T1)}")
            a(f"s_add_u32 {s(SLW)}, {s(SLW)}, {L_W}")
            self.srd(R1, P_WO, 0x400000); self.srd(R2, P_WD, 0x1c0000)
            def touch_w():
                a("s_mov_b64 exec, 1")
                for h in range(4):
                    a(f"s_add_u32 {s(S_T1)}, {s(SW0)}, {0x20000*h}")
                    a(f"buffer_load_dword {v(T+3)}, {v(VZ)}, {s(R1,4)}, {s(S_T1)} offen {self.wpol}")
                a(f"buffer_load_dword {v(T+3)}, {v(VZ)}, {s(R2,4)}, {s(SW1)} offen {self.wpol}")
                a("s_mov_b64 exec, -1")
            if self.red2:
                XC, VOUT = 66, 67
                a(f"s_lshl_b32 {s(S_T0)}, {s(S_WG)}, 5"); a(f"s_lshl_b32 {s(S_T1)}, {s(SZ)}, 4"); a(f"s_add_u32 {s(S_T0)}, {s(S_T0)}, {s(S_T1)}")
                a(f"v_and_b32 {v(VOUT)}, 1, v0"); a(f"v_lshl_add_u32 {v(VOUT)}, {v(VOUT)}, 3, {s(S_T0)}")
                a(f"v_lshrrev_b32 {v(T+1)}, 4, v0"); a(f"v_lshl_add_u32 {v(VOUT)}, {v(T+1)}, 1, {v(VOUT)}")
                a(f"s_mov_b32 {s(P_X+2)}, 1024"); a(f"s_mov_b32 {s(P_X+3)}, 0x20000")
                a(f"buffer_load_ushort {v(XC)}, {v(VOUT)}, {s(P_X,4)}, 0 offen")
            if self.ctl: self.controller(SZ, nbar_=(self.ramp[0] if self.ramp else self.D) - 1)
            if self.wtouch == 1: touch_w()
            self.lds_wait(L_HFLAG, 1, VZ, T+2, [f"ds_read_b128 {v(HB,4)}, {v(VB)} offset:{L_H}"])
        worder = list(range(8, 12)) + list(range(8))
        def wload(js):
            for j in js:
                a(f"s_add_u32 m0, {s(SLW)}, {1024*j}")
                if j < 8:
                    a(f"buffer_load_dwordx4 {v(VWD)}, {s(R1,4)}, {s(SW0)} offen {self.wpol} lds")
                    a(f"s_add_u32 {s(SW0)}, {s(SW0)}, {0x20000 - 8192 if j & 1 else 8192:#x}")
                else:
                    a(f"buffer_load_dwordx4 {v(VWD)}, {s(R2,4)}, {s(SW1)} offen {self.wpol} lds")
                    a(f"s_add_u32 {s(SW1)}, {s(SW1)}, 8192")
        late = self.wpos > 56 or self.wdma
        if not late: wprep()
        if self.cut: return self.finish(T)
        if self.wtouch == 2: touch_w()
        loads = [(f"buffer_load_dwordx4 {v(W+4*k,4)}, {v(VP)}, {s(R0,4)}, {s(SP0+k)} offen sc1", W+4*k, 4) for k in range(8)]
        if self.touch and True:
            for ld in loads: a(ld[0])
        self.lds_wait(L_FFLAG, 1, VZ, T+2, [f"ds_read_b128 {v(F+4*w,4)}, {v(VZ)} offset:{L_F+16*w}" for w in range(8)])
        a(f"s_mov_b32 {s(S_M+14)}, {s(S_T3)}")
        if self.wtouch == 3: touch_w()
        a(f"s_lshl_b32 {s(S_T0)}, {s(SZ)}, 10"); a(f"v_add_u32 {v(VA)}, {s(S_T0)}, {v(VA)}")
        a(f"s_lshl_b32 {s(S_T0)}, {s(SZ)}, 7"); a(f"v_add_u32 {v(VB2)}, {s(S_T0)}, {v(VB)}"); a(f"v_lshl_add_u32 {v(T+1)}, v0, 1, {s(S_T0)}")
        if self.touch: a("s_waitcnt vmcnt(0)")
        if self.wdma and self.wsplit:
            self.lds_wait(L_WCNT, 8, VZ, T+2, sleep=0)
            wload(worder[:self.wsplit])
        self.stamp(4)
        if self.solo: a(f"v_mov_b32 {v(T+2)}, 1")
        a("s_barrier")
        self.stamp(5)
        for w in range(8): a(f"ds_read_b128 {v(W+4*w,4)}, {v(VWA)} offset:{L_O+OSTR*w}")
        for w in range(8):
            self.lgkm(7-w)
            for p in (0, 2):
                if w == 0: a(f"v_pk_mul_f32 {v(SUM+p,2)}, {v(W+p,2)}, {v(F+p,2)}")
                else: a(f"v_pk_fma_f32 {v(SUM+p,2)}, {v(W+4*w+p,2)}, {v(F+4*w+p,2)}, {v(SUM+p,2)}")
        if self.fast: a(f"s_cmp_eq_u32 {s(S_M+14)}, 2")
        self.tag(range(SUM, SUM+4), VT, dst=range(F, F+4))
        if self.fast:
            La, Lb = self.lab("h1l"), self.lab("h1j")
            a(f"s_cbranch_scc1 {La}")
            a(f"buffer_store_dwordx4 {v(F,4)}, {v(VA)}, {s(R0,4)}, {s(SPUB)} offen sc1")
            a(f"s_branch {Lb}")
            a(f"{La}:")
            a(f"buffer_store_dwordx4 {v(F,4)}, {v(VA)}, {s(R0,4)}, {s(SPUB)} offen")
            a(f"{Lb}:")
        else: a(f"buffer_store_dwordx4 {v(F,4)}, {v(VA)}, {s(R0,4)}, {s(SPUB)} offen sc1")
        self.stamp(6)
        if self.wdma: wload(worder[self.wsplit:])
        pre = late and (self.prepoll or self.wdma)
        if late and not pre: wprep()
        if self.solo:
            BO = HB
            L1, L2 = self.lab("solo1"), self.lab("solo2")
            breads = [f"ds_read_b128 {v(BO,4)}, {v(VB)} offset:{L_OB}", f"ds_read_b128 {v(BO+4,4)}, {v(VB)} offset:{L_OB+64}"]
            a(f"s_cmp_lg_u32 {s(SZ)}, 0"); a(f"s_cbranch_scc1 {L1}")
            if self.solo == 2:
                yr = [AD+4*k for k in range(4)] + [F+4+4*k for k in range(4)]
                Y = [(f"buffer_load_dwordx4 {v(yr[k],4)}, {v(VP)}, {s(R0,4)}, {s(SP0+k)} offen sc1", yr[k], 4) for k in range(8)]
                self.poll2(loads, Y, VT, T+3, SUM, between=wprep)
            else: self.poll(loads, VT, T+3, acc=SUM, between=wprep)
            self.stamp(7)
            self.fold4(SUM)
            a(f"v_cvt_pk_bf16_f32 {v(SUM)}, {v(SUM)}, {v(SUM)}")
            a(f"ds_write_b16 {v(T+1)}, {v(SUM)} offset:{L_OB}")
            a("s_mov_b64 exec, 1"); a(f"ds_write_b32 {v(VZ)}, {v(T+2)} offset:{L_OFLAG}"); a("s_mov_b64 exec, -1")
            for b in breads: a(b)
            a(f"s_branch {L2}")
            a(f"{L1}:")
            wprep(8)
            self.lds_wait(L_OFLAG, 1, VZ, T+2, breads, sleep=0)
            self.stamp(7)
            a(f"{L2}:")
        else:
            BO = W
            if self.pipe:
                yr = [AD+4*k for k in range(4)] + [F+4+4*k for k in range(4)]
                Y = [(f"buffer_load_dwordx4 {v(yr[k],4)}, {v(VP)}, {s(R0,4)}, {s(SP0+k)} offen sc1", yr[k], 4) for k in range(8)]
                self.poll2(loads, Y, VT, T+3, SUM, between=wprep)
                BO = HB
            elif self.light: self.gather8(loads, VT, HB+4, SUM, VP, SP0, 13, between=(wprep if pre else None))
            else: self.poll(loads, VT, T+3, acc=SUM, between=(wprep if pre else None))
            self.stamp(7)
            if self.rdelay == 1: a(f"v_mov_b32 {v(T+2)}, 1"); a(f"ds_write_b32 {v(VZ)}, {v(T+2)} offset:{L_PUB}")
            self.fold4(SUM)
            a(f"v_cvt_pk_bf16_f32 {v(SUM)}, {v(SUM)}, {v(SUM)}")
            a(f"ds_write_b16 {v(T+1)}, {v(SUM)} offset:{L_OB}")
            a(f"ds_read_b128 {v(BO,4)}, {v(VB2)} offset:{L_OB}"); a(f"ds_read_b128 {v(BO+4,4)}, {v(VB2)} offset:{L_OB+64}")
        a("s_mov_b32 exec_lo, 0x10001"); a("s_mov_b32 exec_hi, 0x10001")
        self.lgkm(1)
        for t in range(2): a(f"v_mfma_f32_16x16x32_bf16 {v(DD+4*t,4)}, {v(AW+8*t,4)}, {v(BO,4)}, 0")
        self.lgkm(0)
        for t in range(2): a(f"v_mfma_f32_16x16x32_bf16 {v(DD+4*t,4)}, {v(AW+8*t+4,4)}, {v(BO+4,4)}, {v(DD+4*t,4)}")
        for t in range(2, 4):
            a(f"v_mfma_f32_16x16x32_bf16 {v(DD+4*t,4)}, {v(AW+8*t,4)}, {v(BO,4)}, 0")
            a(f"v_mfma_f32_16x16x32_bf16 {v(DD+4*t,4)}, {v(AW+8*t+4,4)}, {v(BO+4,4)}, {v(DD+4*t,4)}")
        for t in range(4):
            self.tag(range(DD+4*t, DD+4*t+4), VT, dst=range(OUT, OUT+4))
            if t < 3: a("s_lshl_b64 exec, exec, 1")
        a("s_mov_b32 exec_lo, 0xff00ff"); a("s_mov_b32 exec_hi, 0xff00ff")
        a(f"buffer_store_dwordx4 {v(OUT,4)}, {v(VH)}, {s(R0,4)}, {s(SHB)} offen sc1")
        self.stamp(8)
        if self.red2:
            Lx = self.lab("tailend")
            G = SUM
            a(f"s_cmp_ge_u32 {s(S_WG)}, 32"); a(f"s_cbranch_scc1 {Lx}")
            a("s_mov_b64 exec, -1")
            a(f"v_lshrrev_b32 {v(VP)}, 2, v0"); a(f"v_lshlrev_b32 {v(VP)}, 7, {v(VP)}")
            a(f"v_and_b32 {v(T)}, 2, v0"); a(f"v_lshl_add_u32 {v(VP)}, {v(T)}, 5, {v(VP)}")
            a(f"v_and_b32 {v(T)}, 1, v0"); a(f"v_lshl_add_u32 {v(VP)}, {v(T)}, 4, {v(VP)}")
            a(f"s_lshl_b32 {s(S_T0)}, {s(S_WG)}, 13"); a(f"s_lshl_b32 {s(S_T1)}, {s(SZ)}, 5"); a(f"s_add_u32 {s(S_T0)}, {s(S_T0)}, {s(S_T1)}")
            a(f"s_add_u32 {s(S_T0)}, {s(S_T0)}, {HBOX:#x}"); a(f"s_add_u32 {s(S_T1)}, {s(S_T0)}, 4096")
            a(f"v_lshlrev_b32 {v(XC)}, 16, {v(XC)}")
            self.srd(R1, P_OUT, 1024)
            mk = lambda r0: [(f"buffer_load_dwordx4 {v(r0+4*j,4)}, {v(VP)}, {s(R0,4)}, {s(S_T0+(j>>1))} offen offset:{2048*(j&1)} sc1", r0+4*j, 4) for j in range(4)]
            a("s_waitcnt vmcnt(0)")
            self.stamp(9)
            if self.red2 == 1: self.poll2(mk(W), mk(W+16), VT, T, G, quad=True)
            else: self.poll(mk(W), VT, T, acc=G, quad=True)
            self.stamp(10)
            self.fold4(G)
            self.ror("v_add_f32", [G], (4, 8))
            self.rbf1(G, G)
            self.silu_bf(G+1, G, T)
            a(f"v_mul_f32_dpp {v(G)}, {v(G+1)}, {v(G)} quad_perm:[2,3,2,3] row_mask:0xf bank_mask:0xf"); self.rbf1(G, G)
            a(f"v_add_f32 {v(G)}, {v(G)}, {v(XC)}"); a(f"v_cvt_pk_bf16_f32 {v(G)}, {v(G)}, {v(G)}")
            a("s_mov_b32 exec_lo, 0x30003"); a("s_mov_b32 exec_hi, 0x30003")
            a(f"buffer_store_short {v(G)}, {v(VOUT)}, {s(R1,4)}, 0 offen {self.outpol}")
            a(f"s_or_b32 {s(S_T0)}, {s(S_WG)}, {s(SZ)}"); a(f"s_cbranch_scc1 {Lx}")
            a("s_mov_b64 exec, 1")
            a(f"v_mov_b32 {v(T)}, {s(S_E)}")
            a(f"buffer_store_dword {v(T)}, {v(VZ)}, {s(R0,4)}, 0 offen offset:{EPOCH} {self.outpol}")
            a(f"{Lx}:")
            if self.diag: a("s_waitcnt vmcnt(0)")
            self.stamp(11)
            return self.finish(T)
        if self.rdelay >= 2:
            a(f"v_mov_b32 {v(T+2)}, 1"); a("s_mov_b64 exec, 1")
            if self.rdelay != 3: a("s_waitcnt vmcnt(0)")
            a(f"ds_add_u32 {v(VZ)}, {v(T+2)} offset:{L_PUB}")
        if self.fast and self.clean:
            a("s_mov_b64 exec, -1")
            a(f"buffer_store_dwordx4 {v(F,4)}, {v(VA)}, {s(R0,4)}, {s(SPUB)} offen sc1")
        if self.amp2:
            pa, pb, k = self.amp2
            a(f"s_add_u32 {s(S_T0)}, {s(S_WG)}, {s(SZ)}"); a(f"s_cmp_lg_u32 {s(S_T0)}, 0"); a("s_cbranch_scc1 Lamp2x")
            a("s_waitcnt lgkmcnt(0)")
            a(f"s_sub_u32 {s(S_T0)}, {s(S_ST+2*pb)}, {s(S_ST+2*pa)}"); a(f"s_mul_i32 {s(S_T0)}, {s(S_T0)}, {k}")
            a(f"s_min_u32 {s(S_T0)}, {s(S_T0)}, 100000")
            a("Lamp2:")
            a(f"s_memrealtime {s(S_ST+20,2)}"); a("s_waitcnt lgkmcnt(0)")
            a(f"s_sub_u32 {s(S_T1)}, {s(S_ST+20)}, {s(S_ST+16)}"); a(f"s_cmp_lt_u32 {s(S_T1)}, {s(S_T0)}"); a("s_cbranch_scc1 Lamp2")
            a("Lamp2x:")
        if self.diag: a("s_waitcnt vmcnt(0)")
        self.stamp(9)
        self.finish(T)

    def build(self):
        a = self.a
        hdr = open("recurrent_scan__gqa_block_cached__swiglu_ffn__decode.s.ref").read().split("; @launch")[0]
        a(f'.amdgcn_target "amdgcn-amd-amdhsa--gfx950"')
        a(".text"); a(f".globl {KN}"); a(".p2align 8"); a(f".type {KN},@function"); a(f"{KN}:")
        if not (self.pf and self.pfe): self.ebar = 0
        a(f"s_load_dwordx16 {s(4,16)}, s[0:1], 0")
        if self.diag or not self.ebar: a(f"s_load_dwordx8 {s(20,8)}, s[0:1], 64")
        a("s_cmp_ge_u32 s2, 256"); a("s_cbranch_scc1 Lend")
        if self.diag:
            for k in range(1, 12): a(f"s_mov_b32 {s(S_ST+2*k)}, 0")
        self.stamp(0)
        a("v_lshrrev_b32 v1, 6, v0"); a("v_and_b32 v0, 63, v0"); a(f"v_readfirstlane_b32 {s(S_WAVE)}, v1")
        a(f"s_and_b32 {s(S_H)}, s2, 7"); a(f"s_lshr_b32 {s(S_S)}, s2, 3")
        if self.pf and self.pfe:
            a(f"s_cmp_lt_u32 {s(S_WAVE)}, 8"); a("s_cbranch_scc1 Lstream")
            a("v_lshlrev_b32 v3, 4, v0")
            if self.ebar and not self.diag: a(f"s_load_dwordx8 {s(20,8)}, s[0:1], 64")
            self.prefetch(3, 72)
            if self.ebar: a("s_barrier")
            a("s_branch Lservice")
            a("Lstream:")
        else:
            a(f"s_cmp_ge_u32 {s(S_WAVE)}, 8"); a("s_cbranch_scc1 Lservice")
        self.streamer()
        a("Lservice:")
        if self.prio: a("s_setprio 3")
        a(f"s_mov_b32 {s(S_HI)}, 0xffff0000"); a(f"s_mov_b32 {s(S_TM)}, {(1 << self.tagbits) - 1:#x}")
        self.stage1()
        a(f"s_cmp_eq_u32 {s(S_WAVE)}, 9"); a("s_cbranch_scc1 Lsw1")
        a(f"s_cmp_gt_u32 {s(S_WAVE)}, 9"); a("s_cbranch_scc1 Lsw23")
        self.sw0()
        a("Lsw23:"); self.sw23()
        a("Lsw1:"); self.sw1()
        a("Lend:"); a("s_endpgm")
        a("Lcode_end:")
        a(".fill 64, 4, 0xbf800000")
        a('.section .rodata,"a"'); a(".p2align 6"); a(f".amdhsa_kernel {KN}")
        for d in ("next_free_vgpr 168", "next_free_sgpr 102", "accum_offset 168", "group_segment_fixed_size 0", "kernarg_size 96",
                  "user_sgpr_count 2", "user_sgpr_kernarg_segment_ptr 1", "system_sgpr_workgroup_id_x 1", "float_denorm_mode_32 3"):
            a(f".amdhsa_{d}")
        a(".end_amdhsa_kernel")
        return hdr + f"; @launch grid=(256,1,1) block=(768,1,1) lds={LDS_BYTES + self.ldspad}\n" + DOC + a.finalize()

def gen(**kw): return G(**kw).build()
if __name__ == "__main__":
    kw = eval("dict(" + (sys.argv[2] if len(sys.argv) > 2 else "") + ")")
    open(sys.argv[1], "w").write(gen(**kw))
```

```python
import sys
from asmlib import Asm
KN = "recurrent_scan__gqa_block_cached__swiglu_ffn__decode_kernel"

EPOCH = 0
QBOX, MLBOX, PBOX, XBOX, GBOX, OBOX, HBOX = 0x1000, 0x9000, 0xB000, 0xC000, 0x10000, 0x20000, 0xA0000
WS_USED = 0xE0000
STAMP = 128 << 20
L_QFLAG, L_MLCNT, L_FFLAG, L_S1CNT, L_PROG, L_HFLAG, L_ACNT, L_WCNT = 0, 4, 8, 12, 16, 20, 24, 28
L_CNT, L_PUB, L_BOOST, L_OFLAG = 32, 36, 40, 48
L_ML, L_F, L_H, L_Q, L_S1, L_OB, L_O = 64, 320, 448, 512, 1536, 2560, 2816
OSTR = 16*144
L_W = L_O + 8*OSTR
L_A = L_O
LDS_BYTES = L_W + 2*12288
SPIN = 1 << 16

LOG2E = 0x3fb8aa3b
SCALE = 0x3db504f3
EPS = 0x3727c5ac

DOC = '''; ------------------------------------------------------------------------------------------------
;
; Workgroup (H = id & 7, S = id >> 3) owns 1024 keys of KV head H. 12 waves:
;   waves 0-7  "streamers": 128 keys each. K (all of it) then V go straight to registers, a few 1 KiB
;              They also fetch the stage-1 weight tile (wq or w_gate/w_up) into LDS.
;              max / sum inside the head group -> per-wave factors exp(m_w - M) / L
;
; it, so results do not depend on its value. Writers use sc1 (write-through) stores, or ordinary stores
; ------------------------------------------------------------------------------------------------
'''

def v(i, n=1): return f"v{i}" if n == 1 else f"v[{i}:{i+n-1}]"
def s(i, n=1): return f"s{i}" if n == 1 else f"s[{i}:{i+n-1}]"

S_WG, S_WAVE = 2, 3
P_X, P_K, P_V, P_WQ, P_WO, P_BX, P_WG, P_WU, P_WD, P_OUT, P_DBG, P_WS = range(4, 28, 2)
R0, R1, R2, R3, R4 = 28, 32, 36, 40, 44
S_H, S_S = 48, 49
S_T0, S_T1, S_T2, S_T3 = 50, 51, 52, 53
S_HI, S_TM, S_LO, S_HIS = 54, 55, 56, 57
S_CNT, S_E = 58, 59
S_M = 60
S_ST = 76

class G:
    def __init__(self, D=3, D2=3, nD2=58, n0=28, il=12, kvpol="nt", wpol="nt", diag=0, pf=1, nq=16, nm=56, g_trig=44,
                 outpol="", prio=1, touch=0, cut=0, amp=None, trace=0, ramp=None, wpos=64, apos=1, smooth=1, wlate=0, prepoll=0, fast=1, clean=0, wdma=1, rot=1, agap=1, light=0, ldspad=0, hsleep=0, pipe=1, wsplit=12, wtouch=0, otouch=0, ctl=1, qk2=1, hello=5, wprog=1, tagbits=6, plo=3, amp2=None, pfe=1, pf2=0, afake=0, rdelay=2, wdrain=None, pfirst=0, solo=2, dirty=0, red2=1, ebar=1, qgap=1, early=1, strip=1, wcnt=8, half=1, whole=1, oseq=1):
        self.__dict__.update(locals()); del self.__dict__['self']
        self.a = Asm(); self.nlab = 0
        assert self.wdma
        if self.ctl == 1: self.ctl = dict(to=68, bth=0, bg=0.5, bcap=5, tth=4, tg=0.15, tcap=0, lead=0, exit=62, **{'from': 8})
    def lab(self, p):
        self.nlab += 1; return f"L{p}{self.nlab}"
    def srd(self, r, ptr, size):
        a = self.a
        a(f"s_mov_b32 {s(r)}, {s(ptr)}"); a(f"s_mov_b32 {s(r+1)}, {s(ptr+1)}")
        a(f"s_mov_b32 {s(r+2)}, {size:#x}"); a(f"s_mov_b32 {s(r+3)}, 0x20000")
    def stamp(self, k):
        if self.diag or self.amp or self.amp2: self.a(f"s_memrealtime {s(S_ST+2*k,2)}")
    def lgkm(self, n):
        self.a(f"s_waitcnt lgkmcnt({0 if (self.diag or self.amp or self.amp2) else n})")
    def finish(self, vt):
        a = self.a
        if self.diag:
            a("s_waitcnt lgkmcnt(0)")
            a(f"s_mul_i32 {s(S_T0)}, {s(S_WG)}, 12"); a(f"s_add_u32 {s(S_T0)}, {s(S_T0)}, {s(S_WAVE)}")
            a(f"s_lshl_b32 {s(S_T0)}, {s(S_T0)}, 6"); a(f"s_add_u32 {s(S_T0)}, {s(S_T0)}, {STAMP:#x}")
            a("s_mov_b64 exec, 1")
            a(f"v_mov_b32 {v(vt)}, {s(S_T0)}")
            for k in range(12):
                a(f"v_mov_b32 {v(vt+1)}, {s(S_ST+2*k)}")
                a(f"global_store_dword {v(vt)}, {v(vt+1)}, {s(P_WS,2)} offset:{4*k}")
            a("s_waitcnt vmcnt(0)")
        a("s_endpgm")
    def unpack(self, lo, hi, src):
        self.a(f"v_lshlrev_b32 {v(lo)}, 16, {v(src)}"); self.a(f"v_and_b32 {v(hi)}, {s(S_HI)}, {v(src)}")
    def rbf1(self, dst, src):
        self.a(f"v_cvt_pk_bf16_f32 {v(dst)}, {v(src)}, {v(src)}"); self.a(f"v_and_b32 {v(dst)}, {s(S_HI)}, {v(dst)}")
    def rbf2(self, d0, d1, s0, s1, t):
        self.a(f"v_cvt_pk_bf16_f32 {v(t)}, {v(s0)}, {v(s1)}"); self.unpack(d0, d1, t)
    def ror(self, op, regs, steps):
        for n in steps:
            for r in regs: self.a(f"{op}_dpp {v(r)}, {v(r)}, {v(r)} row_ror:{n} row_mask:0xf bank_mask:0xf")
    def rows_all(self, op, x, t):
        a = self.a
        for sw in ("v_permlane16_swap_b32", "v_permlane32_swap_b32"):
            a(f"v_mov_b32 {v(t)}, {v(x)}"); a(f"{sw} {v(x)}, {v(t)}"); a(f"{op} {v(x)}, {v(x)}, {v(t)}")
    def fold(self, sw, pairs):
        for x, y in pairs: self.a(f"{sw} {v(x)}, {v(y)}")
        for x, y in pairs: self.a(f"v_add_f32 {v(x)}, {v(x)}, {v(y)}")
    def fold4(self, x):
        self.fold("v_permlane32_swap_b32", [(x, x+2), (x+1, x+3)])
        self.fold("v_permlane16_swap_b32", [(x, x+1)])
    def silu_bf(self, dst, x, t):
        a = self.a
        a(f"v_mul_f32 {v(t)}, {0x80000000 ^ LOG2E:#x}, {v(x)}"); a(f"v_exp_f32 {v(t)}, {v(t)}")
        a(f"v_add_f32 {v(t)}, 1.0, {v(t)}"); a(f"v_rcp_f32 {v(t)}, {v(t)}"); a(f"v_mul_f32 {v(t)}, {v(x)}, {v(t)}")
        self.rbf1(dst, t)
    def layernorm(self, X, XF, T):
        a = self.a
        for k in range(4): self.unpack(XF+2*k, XF+2*k+1, X+k)
        a(f"v_add_f32 {v(T)}, {v(XF)}, {v(XF+1)}")
        for k in range(2, 8): a(f"v_add_f32 {v(T)}, {v(T)}, {v(XF+k)}")
        self.ror("v_add_f32", [T], (8, 4, 2, 1)); self.rows_all("v_add_f32", T, T+1)
        a(f"v_mul_f32 {v(T)}, 0x3b000000, {v(T)}")
        a(f"v_sub_f32 {v(T+2)}, {v(XF)}, {v(T)}"); a(f"v_mul_f32 {v(T+3)}, {v(T+2)}, {v(T+2)}")
        for k in range(1, 8):
            a(f"v_sub_f32 {v(T+2)}, {v(XF+k)}, {v(T)}"); a(f"v_fmac_f32 {v(T+3)}, {v(T+2)}, {v(T+2)}")
        self.ror("v_add_f32", [T+3], (8, 4, 2, 1)); self.rows_all("v_add_f32", T+3, T+1)
        a(f"v_mul_f32 {v(T+3)}, 0x3b000000, {v(T+3)}")
        self.rbf2(T, T+3, T, T+3, T+1)
        a(f"v_add_f32 {v(T+3)}, {EPS:#x}, {v(T+3)}"); self.rbf1(T+3, T+3)
        a(f"v_sqrt_f32 {v(T+3)}, {v(T+3)}"); self.rbf1(T+3, T+3)
        a(f"v_rcp_f32 {v(T+2)}, {v(T+3)}")
        for k in range(8): a(f"v_sub_f32 {v(XF+k)}, {v(XF+k)}, {v(T)}")
        for k in range(4): self.rbf2(XF+2*k, XF+2*k+1, XF+2*k, XF+2*k+1, T+1)
        for k in range(8):
            a(f"v_mul_f32 {v(T+4)}, {v(XF+k)}, {v(T+2)}")
            a(f"v_fma_f32 {v(T+5)}, -{v(T+4)}, {v(T+3)}, {v(XF+k)}")
            a(f"v_fma_f32 {v(XF+k)}, {v(T+5)}, {v(T+2)}, {v(T+4)}")
        for k in range(4): self.rbf2(XF+2*k, XF+2*k+1, XF+2*k, XF+2*k+1, T+1)
    def tag(self, regs, vT, dst=None):
        for i, r in enumerate(regs):
            d = r if dst is None else dst[i]
            if self.half and len(regs) == 4 and not i & 1:
                if d != r: self.a(f"v_mov_b32 {v(d)}, {v(r)}")
            else: self.a(f"v_bfi_b32 {v(d)}, {s(S_TM)}, {v(vT)}, {v(r)}")
    def words(self, t, r0, n, vT, first):
        a = self.a
        if not self.strip:
            for w in range(r0, r0+n):
                if first: a(f"v_xor_b32 {v(t)}, {v(w)}, {v(vT)}"); first = False
                else: a(f"v_bitop3_b32 {v(t)}, {v(w)}, {v(vT)}, {v(t)} bitop3:0xbe")
            return
        if self.half and n == 4:
            for w in (r0+1, r0+3): a(f"v_xor_b32 {v(w)}, {v(w)}, {v(vT)}")
            if first: a(f"v_or_b32 {v(t)}, {v(r0+1)}, {v(r0+3)}")
            else: a(f"v_or3_b32 {v(t)}, {v(r0+1)}, {v(r0+3)}, {v(t)}")
            return
        for w in range(r0, r0+n): a(f"v_xor_b32 {v(w)}, {v(w)}, {v(vT)}")
        for w in range(r0, r0+n, 2):
            if first: a(f"v_or_b32 {v(t)}, {v(w)}, {v(w+1)}"); first = False
            else: a(f"v_or3_b32 {v(t)}, {v(w)}, {v(w+1)}, {v(t)}")
    def joint(self, t, quad=False):
        perms = ["quad_perm:[1,0,3,2]", "quad_perm:[2,3,0,1]"] + ([] if quad else ["row_half_mirror"])
        if self.whole: return
        if quad or self.tagbits < 10:
            for p in perms: self.a(f"v_or_b32_dpp {v(t)}, {v(t)}, {v(t)} {p} row_mask:0xf bank_mask:0xf")
    def poll(self, loads, vT, t, acc=None, between=None, quad=False):
        a = self.a; L = self.lab("poll"); Lo = self.lab("pollx")
        if between:
            Lc = self.lab("pollc")
            for ld in loads: a(ld[0])
            between()
            a(f"s_mov_b32 {s(S_CNT)}, {SPIN}")
            a(f"s_branch {Lc}")
        else: a(f"s_mov_b32 {s(S_CNT)}, {SPIN}")
        a(f"{L}:")
        for ld in loads: a(ld[0])
        if between: a(f"{Lc}:")
        first = True
        for j, (_, r0, n) in enumerate(loads):
            a(f"s_waitcnt vmcnt({len(loads)-1-j})")
            self.words(t, r0, n, vT, first); first = False
            if j == len(loads) - 1:
                self.joint(t, quad)
                a(f"v_and_b32 {v(t)}, {s(S_TM)}, {v(t)}")
                a(f"v_cmp_ne_u32 vcc, 0, {v(t)}")
            if acc is not None and j >= 1:
                p = loads[0][1] if j == 1 else acc
                a(f"v_pk_add_f32 {v(acc,2)}, {v(p,2)}, {v(r0,2)}"); a(f"v_pk_add_f32 {v(acc+2,2)}, {v(p+2,2)}, {v(r0+2,2)}")
        if self.whole:
            a(f"s_cbranch_vccz {Lo}")
            a(f"s_sub_u32 {s(S_CNT)}, {s(S_CNT)}, 1")
            a(f"s_cbranch_scc0 {L}")
            a(f"{Lo}:")
            a("s_nop 0")
            return
        a(f"s_sub_u32 {s(S_CNT)}, {s(S_CNT)}, 1")
        a(f"s_cbranch_scc1 {Lo}")
        a("s_mov_b64 exec, vcc")
        if acc is not None and self.hsleep:
            a(f"s_cbranch_execz {Lo}"); a(f"s_sleep {self.hsleep}"); a(f"s_branch {L}")
        else: a(f"s_cbranch_execnz {L}")
        a(f"{Lo}:")
        a("s_mov_b64 exec, -1")
    def poll2(self, X, Y, vT, t, acc, between=None, quad=False):
        a = self.a; L = self.lab("pp"); Lo = self.lab("ppx")
        n = len(X)
        def check(loads, out=2):
            first = True
            for j, (_, r0, nr) in enumerate(loads):
                a(f"s_waitcnt vmcnt({out*n-1-j})")
                self.words(t, r0, nr, vT, first); first = False
                if j >= 1:
                    p = loads[0][1] if j == 1 else acc
                    a(f"v_pk_add_f32 {v(acc,2)}, {v(p,2)}, {v(r0,2)}"); a(f"v_pk_add_f32 {v(acc+2,2)}, {v(p+2,2)}, {v(r0+2,2)}")
                if j == n - 1:
                    self.joint(t, quad)
                    a(f"v_and_b32 {v(t)}, {s(S_TM)}, {v(t)}")
                    a(f"v_cmp_ne_u32 vcc, 0, {v(t)}")
            if not self.whole: a("s_mov_b64 exec, vcc")
        for ld in X: a(ld[0])
        if between:
            between()
            if self.pfirst:
                check(X, 1)
                a(f"s_cbranch_{'vccz' if self.whole else 'execz'} {Lo}")
                for ld in X: a(ld[0])
        a(f"s_mov_b32 {s(S_CNT)}, {SPIN}")
        a(f"{L}:")
        for ld in Y: a(ld[0])
        check(X)
        a(f"s_cbranch_{'vccz' if self.whole else 'execz'} {Lo}")
        for ld in X: a(ld[0])
        check(Y)
        if self.whole:
            a(f"s_cbranch_vccz {Lo}")
            a(f"s_sub_u32 {s(S_CNT)}, {s(S_CNT)}, 1")
            a(f"s_cbranch_scc0 {L}")
            a(f"{Lo}:")
            return
        a(f"s_sub_u32 {s(S_CNT)}, {s(S_CNT)}, 1")
        a(f"s_cbranch_scc1 {Lo}")
        a(f"s_cbranch_execnz {L}")
        a(f"{Lo}:")
        a("s_mov_b64 exec, -1")
    def gather8(self, loads, vT, t, acc, vaddr, soff, lg, between=None):
        a = self.a; L = self.lab("lp"); Lo = self.lab("lpx")
        P, R, J, B, A = t+1, t+2, t+3, t+4, t+5
        for ld in loads: a(ld[0])
        if between: between()
        first = True
        for j, (_, r0, n) in enumerate(loads):
            a(f"s_waitcnt vmcnt({len(loads)-1-j})")
            for w in range(r0, r0+n):
                if first: a(f"v_xor_b32 {v(t)}, {v(w)}, {v(vT)}"); first = False
                else: a(f"v_bitop3_b32 {v(t)}, {v(w)}, {v(vT)}, {v(t)} bitop3:0xbe")
            if j == len(loads) - 1:
                a(f"v_and_b32 {v(t)}, {s(S_TM)}, {v(t)}")
                a(f"v_cmp_ne_u32 vcc, 0, {v(t)}")
            if j >= 1:
                p = loads[0][1] if j == 1 else acc
                a(f"v_pk_add_f32 {v(acc,2)}, {v(p,2)}, {v(r0,2)}"); a(f"v_pk_add_f32 {v(acc+2,2)}, {v(p+2,2)}, {v(r0+2,2)}")
        a(f"s_cbranch_vccz {Lo}")
        for r in range(acc, acc+4): a(f"v_mov_b32 {v(r)}, 0")
        a(f"v_mov_b32 {v(P)}, 0")
        def check(q):
            a(f"v_xor_b32 {v(t)}, {v(q)}, {v(vT)}")
            for w in range(q+1, q+4): a(f"v_bitop3_b32 {v(t)}, {v(w)}, {v(vT)}, {v(t)} bitop3:0xbe")
            a(f"v_and_b32 {v(t)}, {s(S_TM)}, {v(t)}")
            a(f"v_cmp_eq_u32 vcc, 0, {v(t)}")
        for j, (_, r0, n) in enumerate(loads):
            check(r0)
            a("s_mov_b64 exec, vcc")
            a(f"v_pk_add_f32 {v(acc,2)}, {v(acc,2)}, {v(r0,2)}"); a(f"v_pk_add_f32 {v(acc+2,2)}, {v(acc+2,2)}, {v(r0+2,2)}")
            a("s_not_b64 exec, vcc")
            a(f"v_or_b32 {v(P)}, {1 << j}, {v(P)}")
            a("s_mov_b64 exec, -1")
        Q = loads[0][1]
        a(f"v_mov_b32 {v(R)}, {v(P)}")
        a(f"v_cmp_ne_u32 vcc, 0, {v(P)}")
        a(f"s_mov_b32 {s(S_CNT)}, {SPIN*4}")
        a("s_mov_b64 exec, vcc")
        a(f"{L}:")
        a(f"v_ffbl_b32 {v(J)}, {v(R)}")
        a(f"v_lshl_add_u32 {v(A)}, {v(J)}, {lg}, {v(vaddr)}")
        a(f"buffer_load_dwordx4 {v(Q,4)}, {v(A)}, {s(R0,4)}, {s(soff)} offen sc1")
        a(f"v_lshlrev_b32 {v(B)}, {v(J)}, 1")
        a(f"v_xor_b32 {v(R)}, {v(R)}, {v(B)}")
        a(f"s_sub_u32 {s(S_CNT)}, {s(S_CNT)}, 1")
        a(f"s_cbranch_scc1 {Lo}")
        a("s_waitcnt vmcnt(0)")
        check(Q)
        a(f"s_and_saveexec_b64 {s(S_T2,2)}, vcc")
        a(f"v_xor_b32 {v(P)}, {v(P)}, {v(B)}")
        a(f"v_pk_add_f32 {v(acc,2)}, {v(acc,2)}, {v(Q,2)}"); a(f"v_pk_add_f32 {v(acc+2,2)}, {v(acc+2,2)}, {v(Q+2,2)}")
        a(f"s_mov_b64 exec, {s(S_T2,2)}")
        a(f"v_cmp_eq_u32 {s(S_T2,2)}, 0, {v(R)}")
        a(f"v_cmp_ne_u32 vcc, 0, {v(P)}")
        a(f"v_cndmask_b32 {v(R)}, {v(R)}, {v(P)}, {s(S_T2,2)}")
        a("s_mov_b64 exec, vcc")
        a(f"s_cbranch_execnz {L}")
        a(f"{Lo}:")
        a("s_mov_b64 exec, -1")
    def lds_wait(self, off, val, vz, t, extra=(), sleep=1):
        a = self.a; L = self.lab("lw"); Lo = self.lab("lwx")
        a(f"s_mov_b32 {s(S_CNT)}, {SPIN*16}")
        a(f"{L}:")
        a(f"ds_read_b32 {v(t)}, {v(vz)} offset:{off}")
        for e in extra: a(e)
        a("s_waitcnt lgkmcnt(0)")
        a(f"v_readfirstlane_b32 {s(S_T3)}, {v(t)}")
        a(f"s_cmp_ge_u32 {s(S_T3)}, {val}")
        a(f"s_cbranch_scc1 {Lo}")
        a(f"s_sub_u32 {s(S_CNT)}, {s(S_CNT)}, 1")
        a(f"s_cbranch_scc1 {Lo}")
        if sleep: a(f"s_sleep {sleep}")
        a(f"s_branch {L}")
        a(f"{Lo}:")
    def pub(self, text, sfast):
        a = self.a
        La, Lb = self.lab("pl"), self.lab("pj")
        a(f"s_cmp_eq_u32 {s(sfast)}, 2"); a(f"s_cbranch_scc1 {La}")
        a(text + " sc1"); a(f"s_branch {Lb}")
        a(f"{La}:"); a(text); a(f"{Lb}:")
    def trig(self, what, vz, t):
        if what == "q": self.lds_wait(L_QFLAG, 1, vz, t)
        elif what == "ml": self.lds_wait(L_MLCNT, 8, vz, t)
        elif isinstance(what, int) and what > 0: self.lds_wait(L_PROG, what, vz, t)
    def streamer(self):
        a = self.a
        VK, VV, VZ, VT, VT2 = 1, 2, 3, 4, 5
        Q, S, DT, KB = 8, 12, 20, 36
        slot = lambda i: KB + 4*i
        ACC, AO, B = slot(16), slot(18), slot(23)
        SB = S_T0
        a("; ==== streamer: lane offsets (K: quad-permuted 1 KiB, V: linear), descriptors, paced load sequence ====")
        a(f"s_lshl_b32 {s(SB)}, {s(S_H)}, 23"); a(f"s_lshl_b32 {s(S_T1)}, {s(S_S)}, 18"); a(f"s_or_b32 {s(SB)}, {s(SB)}, {s(S_T1)}")
        a(f"s_lshl_b32 {s(S_T1)}, {s(S_WAVE)}, {self.il}"); a(f"s_or_b32 {s(SB)}, {s(SB)}, {s(S_T1)}")
        if self.rot == 1: a(f"s_lshl_b32 {s(S_M+9)}, {s(S_S)}, 15")
        if self.rot == 2: a(f"s_add_u32 {s(S_M+9)}, {s(S_S)}, {s(S_H)}"); a(f"s_lshl_b32 {s(S_M+9)}, {s(S_M+9)}, 15")
        a(f"v_lshlrev_b32 {v(VV)}, 4, v0")
        a(f"v_and_b32 {v(VT)}, 0xc0, {v(VV)}"); a(f"v_lshlrev_b32 {v(VT)}, 2, {v(VT)}")
        a(f"v_lshrrev_b32 {v(VK)}, 4, v0"); a(f"v_lshlrev_b32 {v(VK)}, 6, {v(VK)}")
        a(f"v_and_b32 {v(VT2)}, 48, {v(VV)}")
        a(f"v_or3_b32 {v(VK)}, {v(VK)}, {v(VT)}, {v(VT2)}")
        a(f"v_mov_b32 {v(VZ)}, 0")
        if not self.early:
            a("s_waitcnt lgkmcnt(0)")
            self.srd(R0, P_K, 0x4000000); self.srd(R1, P_V, 0x4000000)
        def off(i):
            if self.il == 12: return (i >> 2) * 32768, (i & 3) * 1024
            return i * 8192, 0
        last_so = [None]
        VWA, VWD = 6, 7
        SA, SW0, SW1, SSTR = S_M+5, S_M+6, S_M+7, S_M+4
        def regs(it):
            k, i = it
            return {'K': slot(i), 'V': slot(i % 16), 'A': slot(28 + i), 'W': (DT + 4*i if self.wpos > 40 else slot(28 + i))}[k]
        def setup_a():
            a("; stage-1 tile geometry")
            a(f"s_lshr_b32 {s(S_M)}, {s(S_WAVE)}, 1")
            self.s1_geom(True)
            a(f"s_and_b32 {s(S_T3)}, {s(S_WAVE)}, 1"); a(f"s_lshl_b32 {s(S_T3)}, {s(S_T3)}, 2"); a(f"s_add_u32 {s(S_T3)}, {s(S_T3)}, {s(S_M+3)}")
            a(f"s_mul_i32 {s(S_T3)}, {s(S_T3)}, {s(SSTR)}"); a(f"s_lshl_b32 {s(SA)}, {s(S_T2)}, 7"); a(f"s_add_u32 {s(SA)}, {s(SA)}, {s(S_T3)}")
            a(f"v_and_b32 {v(VT)}, 56, v0"); a(f"v_mul_u32_u24 {v(VT)}, {s(SSTR)}, {v(VT)}")
            a(f"v_and_b32 {v(VT2)}, 0x70, {v(VV)}"); a(f"v_add_u32 {v(VWA)}, {v(VT)}, {v(VT2)}")
            if self.afake:
                lg = 3 + self.afake
                a(f"v_lshrrev_b32 {v(VT)}, {lg}, v0"); a(f"v_mul_u32_u24 {v(VT)}, {s(SSTR)}, {v(VT)}")
                a(f"v_and_b32 {v(VT2)}, {(16 << lg) - 16:#x}, {v(VV)}"); a(f"v_add_u32 {v(VWA)}, {v(VT)}, {v(VT2)}")
                a(f"s_and_b32 {s(S_T3)}, {s(S_S)}, 15"); a(f"s_lshl_b32 {s(S_T3)}, {s(S_T3)}, 3"); a(f"s_add_u32 {s(S_T3)}, {s(S_T3)}, {s(S_WAVE)}")
                a(f"s_and_b32 {s(SA)}, {s(S_T3)}, {(8 >> self.afake) - 1}"); a(f"s_lshl_b32 {s(SA)}, {s(SA)}, {7 + self.afake}")
                a(f"s_lshr_b32 {s(S_T3)}, {s(S_T3)}, {3 - self.afake}"); a(f"s_lshl_b32 {s(S_T3)}, {s(S_T3)}, {5 - self.afake}")
                a(f"s_mul_i32 {s(S_T3)}, {s(S_T3)}, {s(SSTR)}"); a(f"s_add_u32 {s(SA)}, {s(SA)}, {s(S_T3)}")
                a(f"s_cmp_ge_u32 {s(S_S)}, 16"); a(f"s_cselect_b32 {s(S_T3)}, 7, 16"); a(f"s_lshl_b32 {s(S_T3)}, {s(S_T3)}, 6"); a(f"s_mul_i32 {s(S_T3)}, {s(S_T3)}, {s(S_H)}"); a(f"s_and_b32 {s(S_T3)}, {s(S_T3)}, 0xffffff80")
                a(f"s_add_u32 {s(SA)}, {s(SA)}, {s(S_T3)}")
                a(f"s_lshl_b32 {s(SSTR)}, {s(SSTR)}, {3 - self.afake}")
        def setup_w():
            a(f"s_and_b32 {s(S_T2)}, {s(S_S)}, 3"); a(f"s_lshl_b32 {s(S_T2)}, {s(S_T2)}, 1"); a(f"s_lshr_b32 {s(S_T3)}, {s(S_WAVE)}, 2")
            a(f"s_add_u32 {s(S_T2)}, {s(S_T2)}, {s(S_T3)}"); a(f"s_lshl_b32 {s(S_T2)}, {s(S_T2)}, 7")
            a(f"s_lshl_b32 {s(SW0)}, {s(S_H)}, 19"); a(f"s_lshr_b32 {s(S_T3)}, {s(S_S)}, 2"); a(f"s_lshl_b32 {s(S_T3)}, {s(S_T3)}, 10")
            a(f"s_add_u32 {s(SW0)}, {s(SW0)}, {s(S_T3)}"); a(f"s_add_u32 {s(SW0)}, {s(SW0)}, {s(S_T2)}")
            self.fblock(SW1, S_T3)
            a(f"s_lshl_b32 {s(SW1)}, {s(SW1)}, 15"); a(f"s_add_u32 {s(SW1)}, {s(SW1)}, {s(S_T2)}")
            a(f"s_and_b32 {s(S_T2)}, {s(S_WAVE)}, 3")
            a(f"s_lshl_b32 {s(S_T3)}, {s(S_T2)}, 16"); a(f"s_add_u32 {s(SW0)}, {s(SW0)}, {s(S_T3)}")
            a(f"s_lshl_b32 {s(S_T3)}, {s(S_T2)}, 13"); a(f"s_add_u32 {s(SW1)}, {s(SW1)}, {s(S_T3)}")
            self.srd(R2, P_WO, 0x400000); self.srd(R3, P_WD, 0x1c0000)
            a(f"v_lshrrev_b32 {v(VT)}, 3, v0"); a(f"v_and_b32 {v(VT2)}, 0x70, {v(VV)}")
            a(f"v_lshl_add_u32 {v(VWD)}, {v(VT)}, 10, {v(VT2)}"); a(f"v_lshl_add_u32 {v(VWA)}, {v(VT)}, 13, {v(VT2)}")
        def load(it):
            k, i = it
            r = v(regs(it), 4)
            if k in 'KV':
                so, imm = off(i)
                if so != last_so[0]:
                    if self.rot:
                        a(f"s_add_u32 {s(S_T1)}, {s(S_M+9)}, {so}"); a(f"s_and_b32 {s(S_T1)}, {s(S_T1)}, 0x38000"); a(f"s_or_b32 {s(S_T1)}, {s(S_T1)}, {s(SB)}")
                    else: a(f"s_add_u32 {s(S_T1)}, {s(SB)}, {so}")
                    last_so[0] = so
                a(f"buffer_load_dwordx4 {r}, {v(VV if k == 'V' else VK)}, {s(R1 if k == 'V' else R0,4)}, {s(S_T1)} offen offset:{imm} {self.kvpol}")
            elif k == 'A':
                if i == 0 and not self.early: setup_a()
                if i == 0 and self.early:
                    if self.early == 2: setup_a()
                    a(f"s_cmp_ge_u32 {s(S_WAVE)}, 4")
                    a(f"s_cselect_b32 {s(R2)}, {s(P_WU)}, {s(P_WG)}"); a(f"s_cselect_b32 {s(R2+1)}, {s(P_WU+1)}, {s(P_WG+1)}")
                    a(f"s_cmp_ge_u32 {s(S_S)}, 16")
                    a(f"s_cselect_b32 {s(R2)}, {s(R2)}, {s(P_WQ)}"); a(f"s_cselect_b32 {s(R2+1)}, {s(R2+1)}, {s(P_WQ+1)}")
                a(f"buffer_load_dwordx4 {r}, {v(VWA)}, {s(R2,4)}, {s(SA)} offen {self.wpol}")
                if i < 3: a(f"s_add_u32 {s(SA)}, {s(SA)}, {s(SSTR)}")
            else:
                if i < 2: a(f"buffer_load_dwordx4 {r}, {v(VWA)}, {s(R2,4)}, {s(SW0)} offen {self.wpol}")
                else: a(f"buffer_load_dwordx4 {r}, {v(VWD)}, {s(R3,4)}, {s(SW1)} offen {self.wpol}")
                if i == 0: a(f"s_add_u32 {s(SW0)}, {s(SW0)}, 0x40000")
        def count(off_):
            a(f"v_mov_b32 {v(VT2)}, 1"); a("s_mov_b64 exec, 1"); a(f"ds_add_u32 {v(VZ)}, {v(VT2)} offset:{off_}"); a("s_mov_b64 exec, -1")
        def put_a():
            a("; stage-1 tiles -> LDS")
            a(f"s_lshl_b32 {s(S_T2)}, {s(S_WAVE)}, 12"); a(f"v_add_u32 {v(VT)}, {s(S_T2)}, {v(VV)}")
            for i in range(4): a(f"ds_write_b128 {v(VT)}, {v(regs(('A', i)),4)} offset:{L_A + 1024*i}")
            count(L_ACNT)
            if not self.wdma: setup_w()
            if self.dirty:
                a(f"s_mul_i32 {s(S_T2)}, {s(S_WG)}, 8"); a(f"s_add_u32 {s(S_T2)}, {s(S_T2)}, {s(S_WAVE)}"); a(f"s_lshl_b32 {s(S_T2)}, {s(S_T2)}, 10")
                a(f"s_add_u32 {s(S_T2)}, {s(S_T2)}, 0x400000"); a(f"v_add_u32 {v(VT)}, {s(S_T2)}, {v(VV)}")
        def put_w():
            a(f"s_lshr_b32 {s(S_T2)}, {s(S_WAVE)}, 2"); a(f"s_mul_i32 {s(S_T2)}, {s(S_T2)}, 12288")
            a(f"s_and_b32 {s(S_T3)}, {s(S_WAVE)}, 3"); a(f"s_lshl_b32 {s(S_T3)}, {s(S_T3)}, 10"); a(f"s_add_u32 {s(S_T2)}, {s(S_T2)}, {s(S_T3)}")
            a(f"v_add_u32 {v(VT)}, {s(S_T2)}, {v(VV)}")
            for i in range(3): a(f"ds_write_b128 {v(VT)}, {v(regs(('W', i)),4)} offset:{L_W + 4096*i}")
            count(L_WCNT)
        def qk(j):
            for m in range(4):
                a(f"v_mfma_f32_16x16x32_bf16 {v(DT+4*m,4)}, {v(slot(4*j+m),4)}, {v(Q,4)}, 0")
            if self.qk2:
                if j == 0:
                    for m in range(1, 4):
                        a(f"s_mov_b32 {s(P_X+2*m)}, {(15 << 4*m) * 0x10001:#x}"); a(f"s_mov_b32 {s(P_X+2*m+1)}, {(15 << 4*m) * 0x10001:#x}")
                for k in range(1, 4):
                    for m in range(4):
                        b = (m + k) & 3
                        a(f"v_add_f32_dpp {v(DT+5*m)}, {v(DT+4*m+b)}, {v(DT+5*m)} row_ror:{(4*(m-b)) & 15} row_mask:0xf bank_mask:0xf")
                for m in range(1, 4):
                    a(f"v_cndmask_b32 {v(S+j)}, {v(DT if m == 1 else S+j)}, {v(DT+5*m)}, {s(P_X+2*m,2)}")
                return
            for k in range(1, 4):
                for m in range(4):
                    b = (m + k) & 3
                    other = DT+4*m+m if k == 1 else S+j
                    a(f"v_add_f32_dpp {v(S+j)}, {v(DT+4*m+b)}, {v(other)} row_ror:{(4*(m-b)) & 15} row_mask:0xf bank_mask:{1<<m:#x}")
        M, Lr = DT, DT+1
        def sm_scale(k):
            if k == 0: a(f"s_mov_b32 {s(S_M+8)}, {SCALE:#x}")
            x, y = S+2*k, S+2*k+1
            self.rbf2(x, y, x, y, VT)
            a(f"v_mul_f32 {v(x)}, {s(S_M+8)}, {v(x)}"); a(f"v_mul_f32 {v(y)}, {s(S_M+8)}, {v(y)}")
            self.rbf2(x, y, x, y, VT)
        def sm_max():
            a("; true row max over this wave's 128 keys")
            a(f"v_max3_f32 {v(M)}, {v(S)}, {v(S+1)}, {v(S+2)}"); a(f"v_max3_f32 {v(M)}, {v(M)}, {v(S+3)}, {v(S+4)}")
            a(f"v_max3_f32 {v(M)}, {v(M)}, {v(S+5)}, {v(S+6)}"); a(f"v_max_f32 {v(M)}, {v(M)}, {v(S+7)}")
            self.ror("v_max_f32", [M], (4, 8)); self.rows_all("v_max_f32", M, VT)
        def sm_exp():
            a(f"s_mov_b32 {s(S_T2)}, {LOG2E:#x}")
            for k in range(8): a(f"v_sub_f32 {v(S+k)}, {v(S+k)}, {v(M)}")
            for k in range(8): a(f"v_mul_f32 {v(S+k)}, {s(S_T2)}, {v(S+k)}")
            for k in range(8): a(f"v_exp_f32 {v(S+k)}, {v(S+k)}")
        def sm_sum():
            a(f"v_add_f32 {v(Lr)}, {v(S)}, {v(S+1)}")
            for k in range(2, 8): a(f"v_add_f32 {v(Lr)}, {v(Lr)}, {v(S+k)}")
            self.ror("v_add_f32", [Lr], (4, 8)); self.rows_all("v_add_f32", Lr, VT)
            a(f"s_lshl_b32 {s(S_T2)}, {s(S_WAVE)}, 5")
            a(f"v_lshl_add_u32 {v(VT)}, v0, 2, {s(S_T2)}"); a(f"v_mov_b32 {v(VT2)}, 1")
            a("s_mov_b64 exec, 15")
            a(f"ds_write2_b32 {v(VT)}, {v(M)}, {v(Lr)} offset0:{L_ML//4} offset1:{L_ML//4+4}")
            a("s_mov_b64 exec, 1")
            a(f"ds_add_u32 {v(VZ)}, {v(VT2)} offset:{L_MLCNT}")
            a("s_mov_b64 exec, -1")
        def zero_acc():
            a(f"s_mul_i32 {s(S_T2)}, {s(S_WAVE)}, {OSTR}")
            a(f"v_and_b32 {v(VT)}, 15, v0"); a(f"v_mul_u32_u24 {v(VT)}, 144, {v(VT)}"); a(f"v_and_b32 {v(VWD)}, 48, v0")
            a(f"v_add3_u32 {v(VWD)}, {v(VWD)}, {v(VT)}, {s(S_T2)}")
            for r in range(ACC, ACC+8): a(f"v_mov_b32 {v(r)}, 0")
            for r in range(AO, AO+16): a(f"v_mov_b32 {v(r)}, 0")
            if self.plo:
                for r in range(DT, DT+16): a(f"v_mov_b32 {v(r)}, 0")
        AL = DT
        def build_lo(j):
            a(f"v_cvt_pk_bf16_f32 {v(VT)}, {v(S+2*j)}, {v(S+2*j+1)}")
            self.unpack(Q, Q+1, VT)
            a(f"v_sub_f32 {v(Q)}, {v(S+2*j)}, {v(Q)}"); a(f"v_sub_f32 {v(Q+1)}, {v(S+2*j+1)}, {v(Q+1)}")
            a(f"v_cvt_pk_bf16_f32 {v(VT)}, {v(Q)}, {v(Q+1)}")
            for m in range(4):
                for e in range(4):
                    n = (4*(e-m)) & 15
                    ctl = f"row_ror:{n}" if n else "quad_perm:[0,1,2,3]"
                    a(f"v_mov_b32_dpp {v(AL+4*e+m)}, {v(VT)} {ctl} row_mask:0xf bank_mask:{1<<e:#x}")
        def build_a(j):
            a(f"v_cvt_pk_bf16_f32 {v(VT)}, {v(S+2*j)}, {v(S+2*j+1)}")
            for m in range(4):
                for e in range(4):
                    n = (4*(e-m)) & 15
                    ctl = f"row_ror:{n}" if n else "quad_perm:[0,1,2,3]"
                    a(f"v_mov_b32_dpp {v(AO+4*e+m)}, {v(VT)} {ctl} row_mask:0xf bank_mask:{1<<e:#x}")
        def perm1(j, m, e):
            lo, hi = slot((8*j+m) % 16), slot((8*j+4+m) % 16)
            a(f"v_perm_b32 {v(B+4*e+m)}, {v(hi+(e>>1))}, {v(lo+(e>>1))}, {s(S_HIS if e & 1 else S_LO)}")
        def mfma_pv(e, j):
            acc = ACC + 4*(e >> 2)
            a(f"v_mfma_f32_16x16x32_bf16 {v(acc,4)}, {v(AO+4*(e&3),4)}, {v(B+4*e,4)}, {v(acc,4)}")
            if j < self.plo: a(f"v_mfma_f32_16x16x32_bf16 {v(acc,4)}, {v(AL+4*(e&3),4)}, {v(B+4*e,4)}, {v(acc,4)}")
        def pv_last(j, mid=None):
            order = [0, 4, 1, 5, 2, 6, 3, 7] if mid is None else list(range(8))
            for k in range(3): perm1(j, 3, order[k])
            for k in range(8):
                mfma_pv(order[k], j)
                if k + 3 < 8: perm1(j, 3, order[k+3])
            if mid: mid()
        def qwait():
            a("; wait for q (B operand of QK^T)")
            a(f"v_and_b32 {v(VT2)}, 3, v0"); a(f"v_lshlrev_b32 {v(VT2)}, 8, {v(VT2)}")
            a(f"v_and_b32 {v(VT)}, 0xc0, {v(VV)}"); a(f"v_lshrrev_b32 {v(VT)}, 2, {v(VT)}")
            a(f"v_and_b32 {v(DT)}, 0x300, {v(VV)}"); a(f"v_lshrrev_b32 {v(DT)}, 2, {v(DT)}")
            a(f"v_or3_b32 {v(VT2)}, {v(VT2)}, {v(VT)}, {v(DT)}")
            self.stamp(2)
            if not self.cut: self.lds_wait(L_QFLAG, 1, VZ, VT, [f"ds_read_b128 {v(Q,4)}, {v(VT2)} offset:{L_Q}"])
            self.stamp(3)
        kv = [('K', i) for i in range(32)] + [('V', i) for i in range(32)]
        seq = kv[:self.apos] + [('A', i) for i in range(4)] + kv[self.apos:self.wpos] + [('W', i) for i in range(0 if self.wdma else 3)] + kv[self.wpos:]
        if self.agap:
            seq = [x for x in seq if x[0] != 'A']
            for i in range(4): seq.insert(self.apos + i*(self.agap + 1), ('A', i))
        pos = {it: n for n, it in enumerate(seq)}
        N = len(seq)
        def owrite():
            a("; last PV group, partial o -> LDS")
            self.stamp(7)
            pv_last(3, (lambda: None) if self.oseq else None)
            a(f"ds_write_b128 {v(VWD)}, {v(ACC,4)} offset:{L_O}")
            a(f"ds_write_b128 {v(VWD)}, {v(ACC+4,4)} offset:{L_O+64}")
            a("s_waitcnt lgkmcnt(0)")
            a("s_barrier")
            if self.dirty:
                a(f"s_mul_i32 {s(S_T2)}, {s(S_WG)}, 8"); a(f"s_add_u32 {s(S_T2)}, {s(S_T2)}, {s(S_WAVE)}"); a(f"s_lshl_b32 {s(S_T2)}, {s(S_T2)}, 10")
                a(f"s_add_u32 {s(S_T2)}, {s(S_T2)}, 0x400000"); a(f"v_add_u32 {v(VT)}, {s(S_T2)}, {v(VV)}")
                a(f"s_cmp_ge_u32 {s(S_WAVE)}, {self.dirty}"); a("s_cbranch_scc1 Lnodirty")
                a(f"global_store_dwordx4 {v(VT)}, {v(ACC,4)}, {s(P_WS,2)}")
                a("Lnodirty:")
        p0 = pos[('K', self.n0)]
        tasks = [(p0, -1, [], qwait)]
        for j in range(8):
            tasks.append((p0 + int(j*self.qgap), pos[('K', 4*j+3)], [('K', 4*j+m) for m in range(4)], lambda j=j: qk(j)))
            if j & 1: tasks.append((0, -1, [], lambda j=j: sm_scale(j >> 1)))
        for f in (sm_max, sm_exp, sm_sum, zero_acc): tasks.append(('next', -1, [], f))
        for j in range(4):
            tasks.append(('next', -1, [], lambda j=j: build_a(j)))
            if j < self.plo: tasks.append(('next', -1, [], lambda j=j: build_lo(j)))
            for m in range(3): tasks.append(('next', pos[('V', 8*j+4+m)], [('V', 8*j+m), ('V', 8*j+4+m)], lambda j=j, m=m: [perm1(j, m, e) for e in range(8)]))
            tasks.append(('next', pos[('V', 8*j+7)], [('V', 8*j+3), ('V', 8*j+7)], (lambda j=j: pv_last(j)) if j < 3 else owrite))
        side = [(0, pos[('A', 3)], [('A', i) for i in range(4)], put_a)]
        if not self.wdma: side.append((0, pos[('W', 2)], [('W', i) for i in range(3)], put_w))
        trigs = {pos[kv[t]]: t for t in (self.nq, self.nm, self.g_trig) if isinstance(t, int) and t > 0}
        def Dn(n):
            if self.ramp and n < len(self.ramp): return self.ramp[n]
            return self.D2 if (self.D2 and n >= self.nD2) else self.D
        nbar = (self.ramp[0] if self.ramp else self.D) - 1
        busy = {}; landed = -1
        def run(n):
            for q in (side, tasks):
                did = False
                while q and q[0][1] <= landed:
                    e = q[0][0]
                    if e == 'next':
                        if did and n < 99 and self.smooth: break
                    elif e > n: break
                    t = q.pop(0); t[3](); did = True
                    for x in t[2]: busy.pop(regs(x))
        NM = N - 3 if self.wlate else N
        if self.early:
            if self.early == 1: setup_a()
            for r in (R0, R1): a(f"s_mov_b32 {s(r+2)}, 0x4000000"); a(f"s_mov_b32 {s(r+3)}, 0x20000")
            assert seq[0] == ('K', 0) and self.rot
            a(f"s_and_b32 {s(S_T1)}, {s(S_M+9)}, 0x38000"); a(f"s_or_b32 {s(S_T1)}, {s(S_T1)}, {s(SB)}"); last_so[0] = 0
        SK, SJ, VB, V1 = S_M+10, S_M+11, 164, 167
        if self.ctl:
            a(f"s_mov_b32 {s(SK)}, {self.ctl.get('init', 0)}"); a(f"s_mov_b32 {s(SJ)}, 0"); a(f"v_mov_b32 {v(V1)}, 1")
        if self.early:
            a("s_waitcnt lgkmcnt(0)")
            a(f"s_mov_b64 {s(R0,2)}, {s(P_K,2)}")
        for n in range(NM):
            if self.early and n == 1: a(f"s_mov_b64 {s(R1,2)}, {s(P_V,2)}")
            if self.ctl and self.ctl['from'] <= n < self.ctl['to']:
                Lb = self.lab("win"); D = Dn(n)
                two = self.ctl.get('g2') or (self.ctl.get('l2') and n >= self.ctl.get('l2from', 0))
                top = D + (2 if two else 1)
                if n - top > landed: a(f"s_waitcnt vmcnt({top-1})"); landed = n - top
                if n & 1:
                    a("s_waitcnt lgkmcnt(0)"); a(f"v_readfirstlane_b32 {s(SK)}, {v(VB)}"); a(f"v_readfirstlane_b32 {s(SJ)}, {v(VB+1)}")
                a(f"s_cmp_gt_u32 {s(SJ if (self.ctl.get('l2') and not two) else SK)}, {n}"); a(f"s_cbranch_scc1 {Lb}")
                a(f"s_waitcnt vmcnt({top-2})")
                if two:
                    a(f"s_cmp_gt_u32 {s(SJ)}, {n}"); a(f"s_cbranch_scc1 {Lb}")
                    a(f"s_waitcnt vmcnt({top-3})")
                elif self.ctl['tcap']:
                    a(f"s_cmp_le_u32 {s(SJ)}, {n}"); a(f"s_cbranch_scc1 {Lb}")
                    a(f"s_waitcnt vmcnt({D-2})")
                a(f"{Lb}:")
            elif n - Dn(n) > landed:
                a(f"s_waitcnt vmcnt({Dn(n)-1})"); landed = n - Dn(n)
            assert regs(seq[n]) not in busy, (n, seq[n])
            busy[regs(seq[n])] = n
            load(seq[n])
            if self.trace and seq[n] in kv:
                m = kv.index(seq[n])
                if m: a("s_waitcnt lgkmcnt(0)"); a(f"v_writelane_b32 v166, s100, {m-1}")
                a("s_memrealtime s[100:101]")
            if n == nbar:
                a(f"s_mov_b32 {s(S_HI)}, 0xffff0000"); a(f"s_mov_b32 {s(S_LO)}, 0x05040100"); a(f"s_mov_b32 {s(S_HIS)}, 0x07060302")
                if self.ebar:
                    Lb = self.lab("flags")
                    a(f"s_cmp_lg_u32 {s(S_WAVE)}, 0"); a(f"s_cbranch_scc1 {Lb}")
                    a(f"v_lshlrev_b32 {v(VT)}, 2, v0")
                    a("s_mov_b64 exec, 0xffff")
                    a(f"ds_write_b32 {v(VT)}, {v(VZ)}")
                    a("s_mov_b64 exec, -1")
                    a("s_waitcnt lgkmcnt(0)")
                    a(f"{Lb}:")
                a("s_barrier")
            if self.ctl and nbar <= n < self.ctl['to']:
                a("s_mov_b64 exec, 1"); a(f"ds_add_u32 {v(VZ)}, {v(V1)} offset:{L_CNT}"); a("s_mov_b64 exec, -1")
                if not n & 1: a(f"ds_read_b64 {v(VB,2)}, {v(VZ)} offset:{L_BOOST}")
            if n in trigs:
                a(f"v_mov_b32 {v(VT)}, {trigs[n]}"); a("s_mov_b64 exec, 1"); a(f"ds_max_u32 {v(VZ)}, {v(VT)} offset:{L_PROG}"); a("s_mov_b64 exec, -1")
            if self.wdma and self.wdrain is None and seq[n] == kv[min(63, self.wpos - 1)]: count(L_WCNT)
            if n == nbar + 1: self.stamp(1)
            if landed == pos[('K', 31)]: self.stamp(4)
            run(n)
        issued = NM
        while landed < N - 1:
            landed += 1
            now = issued < N and landed == NM - self.wlate
            sig = self.wdrain is not None and N - 1 - landed == self.wdrain
            if not now and not sig and not any(q and q[0][1] <= landed for q in (side, tasks)): continue
            a(f"s_waitcnt vmcnt({issued - 1 - landed})")
            if sig: count(L_WCNT)
            if now:
                for n in range(NM, N):
                    busy[regs(seq[n])] = n; load(seq[n])
                issued = N
            run(99)
        assert not tasks and not side
        self.stamp(8)
        if self.trace:
            a(f"s_mul_i32 {s(S_T0)}, {s(S_WG)}, 8"); a(f"s_add_u32 {s(S_T0)}, {s(S_T0)}, {s(S_WAVE)}")
            a(f"s_lshl_b32 {s(S_T0)}, {s(S_T0)}, 8"); a(f"s_add_u32 {s(S_T0)}, {s(S_T0)}, {STAMP + (1<<20):#x}")
            a(f"v_lshl_add_u32 {v(VT)}, v0, 2, {s(S_T0)}")
            a(f"global_store_dword {v(VT)}, v166, {s(P_WS,2)}")
        self.finish(VT)

    def prefetch(self, VA, R):
        a = self.a
        Lp = self.lab("nopf")
        a(f"s_cmp_ge_u32 {s(S_S)}, {self.pf}"); a(f"s_cbranch_scc1 {Lp}")
        a(f"s_getpc_b64 {s(R4,2)}")
        a(f"Lpc:")
        a(f"s_sub_u32 {s(R4)}, {s(R4)}, Lpc-{KN}"); a(f"s_subb_u32 {s(R4+1)}, {s(R4+1)}, 0")
        a(f"s_mov_b32 {s(R4+2)}, Lcode_end-{KN}"); a(f"s_mov_b32 {s(R4+3)}, 0x20000")
        a(f"s_and_b32 {s(S_T0)}, {s(S_WAVE)}, 3"); a(f"s_lshl_b32 {s(S_T0)}, {s(S_T0)}, 10")
        for k in range(5):
            a(f"buffer_load_dwordx4 {v(R+4*k,4)}, {v(VA)}, {s(R4,4)}, {s(S_T0)} offen")
            if k < 4: a(f"s_add_u32 {s(S_T0)}, {s(S_T0)}, 4096")
        a(f"{Lp}:")

    def s1_geom(self, loader):
        a = self.a
        SZ, SCB, SRB, SROW, SSTR = S_M, S_M+1, S_M+2, S_M+3, S_M+4
        Lf, Lj = self.lab("s1ffn"), self.lab("s1join")
        a(f"s_cmp_ge_u32 {s(S_S)}, 16"); a(f"s_cbranch_scc1 {Lf}")
        a(f"s_and_b32 {s(SCB)}, {s(S_S)}, 7"); a(f"s_lshr_b32 {s(SRB)}, {s(S_S)}, 3")
        a(f"s_lshl_b32 {s(SROW)}, {s(SRB)}, 2"); a(f"s_add_u32 {s(SROW)}, {s(SROW)}, {s(SZ)}"); a(f"s_lshl_b32 {s(SROW)}, {s(SROW)}, 6")
        if loader:
            a(f"s_mov_b32 {s(SSTR)}, 8192")
            a(f"s_lshl_b32 {s(S_T2)}, {s(S_H)}, 3"); a(f"s_add_u32 {s(S_T2)}, {s(S_T2)}, {s(SCB)}")
            if self.early: a(f"s_mov_b32 {s(R2+2)}, 0x400000"); a(f"s_mov_b32 {s(R2+3)}, 0x20000")
            else: self.srd(R2, P_WQ, 0x400000)
        a(f"s_branch {Lj}")
        a(f"{Lf}:")
        if self.hello in (1, 3, 5): a(f"s_sub_u32 {s(S_T2)}, {s(S_S)}, 16"); a(f"s_lshl_b32 {s(S_T3)}, {s(S_H)}, 4"); a(f"s_add_u32 {s(S_T2)}, {s(S_T2)}, {s(S_T3)}")
        else: a(f"s_sub_u32 {s(S_T2)}, {s(S_S)}, 16"); a(f"s_lshl_b32 {s(S_T2)}, {s(S_T2)}, 3"); a(f"s_add_u32 {s(S_T2)}, {s(S_T2)}, {s(S_H)}")
        a(f"s_lshr_b32 {s(SCB)}, {s(S_T2)}, 2"); a(f"s_and_b32 {s(SRB)}, {s(S_T2)}, 3")
        a(f"s_and_b32 {s(S_T3)}, {s(SZ)}, 1")
        a(f"s_lshl_b32 {s(SROW)}, {s(SRB)}, 1"); a(f"s_add_u32 {s(SROW)}, {s(SROW)}, {s(S_T3)}"); a(f"s_lshl_b32 {s(SROW)}, {s(SROW)}, 6")
        if loader:
            a(f"s_mov_b32 {s(SSTR)}, 3584")
            a(f"s_mov_b32 {s(S_T2)}, {s(SCB)}")
            if not self.early:
                a(f"s_cmp_ge_u32 {s(SZ)}, 2")
                a(f"s_cselect_b32 {s(R2)}, {s(P_WU)}, {s(P_WG)}"); a(f"s_cselect_b32 {s(R2+1)}, {s(P_WU+1)}, {s(P_WG+1)}")
            a(f"s_cmp_lt_u32 {s(SCB)}, 28")
            a(f"s_cselect_b32 {s(R2+2)}, 0x1c0000, 0"); a(f"s_mov_b32 {s(R2+3)}, 0x20000")
        a(f"{Lj}:")

    VZ, VT, VA, T = 1, 2, 3, 4
    def stage1(self):
        a = self.a
        VZ, VT, VA, T = self.VZ, self.VT, self.VA, self.T
        X, XF, XR, ACC, W = 12, 16, 24, 32, 40
        SZ, SCB, SRB, SROW, SSTR = S_M, S_M+1, S_M+2, S_M+3, S_M+4
        a(f"s_and_b32 {s(SZ)}, {s(S_WAVE)}, 3")
        a(f"v_mov_b32 {v(VZ)}, 0"); a(f"v_lshlrev_b32 {v(VA)}, 4, v0")
        if self.pf and not self.pfe: self.prefetch(VA, W+32)
        self.s1_geom(False)
        a("s_waitcnt lgkmcnt(0)")
        self.srd(R0, P_WS, WS_USED); self.srd(R1, P_X, 1024)
        a(f"buffer_load_dwordx4 {v(X,4)}, {v(VA)}, {s(R1,4)}, 0 offen")
        a(f"buffer_load_dword {v(VT)}, {v(VZ)}, {s(R0,4)}, 0 offen offset:{EPOCH}")
        if not self.ebar:
            Lb = self.lab("s1b")
            a(f"s_cmp_lg_u32 {s(SZ)}, 0"); a(f"s_cbranch_scc1 {Lb}")
            a(f"v_lshlrev_b32 {v(T+2)}, 2, v0")
            a("s_mov_b64 exec, 0xffff")
            a(f"ds_write_b32 {v(T+2)}, {v(VZ)}")
            a("s_mov_b64 exec, -1")
            a("s_waitcnt lgkmcnt(0)")
            a(f"{Lb}:")
            a("s_barrier")
        a("s_waitcnt vmcnt(1)")
        self.stamp(1)
        self.layernorm(X, XF, T)
        a(f"s_lshr_b32 {s(S_T0)}, {s(SROW)}, 1")
        a(f"v_lshrrev_b32 {v(T)}, 3, v0"); a(f"v_lshl_add_u32 {v(T)}, {v(T)}, 2, {s(S_T0)}")
        for j in range(8): a(f"ds_bpermute_b32 {v(XR+j)}, {v(T)}, {v(XF+j)}")
        a("s_waitcnt vmcnt(0)")
        a(f"v_add_u32 {v(VT)}, 1, {v(VT)}"); a(f"v_readfirstlane_b32 {s(S_E)}, {v(VT)}")
        a(f"v_and_b32 {v(VT)}, {s(S_TM) if self.strip else '0x3ff'}, {v(VT)}")
        if self.hello:
            Lh = self.lab("hello")
            a(f"s_cmp_lg_u32 {s(SZ)}, 0"); a(f"s_cbranch_scc1 {Lh}")
            a(f"s_getreg_b32 {s(S_M+5)}, hwreg(HW_REG_XCC_ID, 0, 4)"); a(f"s_lshl_b32 {s(S_T0)}, {s(S_E)}, 4"); a(f"s_or_b32 {s(S_M+5)}, {s(S_M+5)}, {s(S_T0)}")
            a(f"s_lshl_b32 {s(S_M+7)}, {s(S_H)}, 7"); a(f"s_add_u32 {s(S_M+7)}, {s(S_M+7)}, {XBOX:#x}")
            a(f"s_lshl_b32 {s(S_T0)}, {s(S_S)}, 2"); a(f"s_add_u32 {s(S_T0)}, {s(S_T0)}, {s(S_M+7)}")
            a(f"v_mov_b32 {v(T+2)}, {s(S_M+5)}")
            a("s_mov_b64 exec, 1")
            a(f"buffer_store_dword {v(T+2)}, {v(VZ)}, {s(R0,4)}, {s(S_T0)} offen" + ("" if self.hello >= 4 else " sc1"))
            a("s_mov_b64 exec, -1")
            a(f"{Lh}:")
        a(f"s_lshl_b32 {s(S_T0)}, {s(SZ)}, 13"); a(f"v_add_u32 {v(T)}, {s(S_T0)}, {v(VA)}")
        self.lds_wait(L_ACNT, 8, VZ, T+1)
        for j in range(8): a(f"ds_read_b128 {v(W+4*j,4)}, {v(T)} offset:{L_A+1024*j}")
        for j in range(8):
            self.lgkm(7-j)
            for k in range(4):
                self.unpack(T, T+1, W+4*j+k)
                op = "v_mul_f32" if j == 0 else "v_fmac_f32"
                a(f"{op} {v(ACC+2*k)}, {v(XR+j)}, {v(T)}"); a(f"{op} {v(ACC+2*k+1)}, {v(XR+j)}, {v(T+1)}")
        self.fold("v_permlane32_swap_b32", [(ACC+e, ACC+e+4) for e in range(4)])
        self.fold("v_permlane16_swap_b32", [(ACC+e, ACC+e+2) for e in range(2)])
        self.ror("v_add_f32", [ACC, ACC+1], (8,))
        a(f"s_lshl_b32 {s(S_T0)}, {s(SZ)}, 8")
        a(f"v_and_b32 {v(T)}, 7, v0"); a(f"v_lshl_add_u32 {v(T)}, {v(T)}, 5, {s(S_T0)}")
        a(f"v_lshrrev_b32 {v(T+1)}, 4, v0"); a(f"v_lshl_add_u32 {v(T)}, {v(T+1)}, 3, {v(T)}")
        a(f"v_mov_b32 {v(T+1)}, 1")
        a("s_mov_b32 exec_lo, 0xff00ff"); a("s_mov_b32 exec_hi, 0xff00ff")
        a(f"ds_write_b64 {v(T)}, {v(ACC,2)} offset:{L_S1}")
        a("s_mov_b64 exec, 1")
        a(f"ds_add_u32 {v(VZ)}, {v(T+1)} offset:{L_S1CNT}")
        a("s_mov_b64 exec, -1")
        self.stamp(2)

    def sw0(self):
        a = self.a
        VZ, VT, VA, T = self.VZ, self.VT, self.VA, self.T
        XF, W = 16, 40
        SZ, SCB, SRB = S_M, S_M+1, S_M+2
        def hello_check():
            a(f"v_and_b32 {v(T+4)}, 31, v0"); a(f"v_lshlrev_b32 {v(T+4)}, 2, {v(T+4)}")
            a(f"buffer_load_dword {v(T+5)}, {v(T+4)}, {s(R0,4)}, {s(S_M+7)} offen sc1")
            a("s_waitcnt vmcnt(0)")
            a(f"v_cmp_ne_u32 vcc, {s(S_M+5)}, {v(T+5)}")
            a("s_cmp_eq_u64 vcc, 0"); a(f"s_cselect_b32 {s(S_M+6)}, 2, 1")
        if self.hello:
            assert self.hello >= 4
            self.lds_wait(L_S1CNT, 4, VZ, T+1)
            hello_check()
        a(f"v_and_b32 {v(T)}, 0xf0, {v(VA)}"); a(f"v_and_b32 {v(T+2)}, 16, v0"); a(f"v_lshl_add_u32 {v(T)}, {v(T+2)}, 5, {v(T)}")
        self.lds_wait(L_S1CNT, 4, VZ, T+1, [f"ds_read_b128 {v(W,4)}, {v(T)} offset:{L_S1}", f"ds_read_b128 {v(W+4,4)}, {v(T)} offset:{L_S1+256}"])
        a(f"v_pk_add_f32 {v(W,2)}, {v(W,2)}, {v(W+4,2)}"); a(f"v_pk_add_f32 {v(W+2,2)}, {v(W+2,2)}, {v(W+6,2)}")
        Lf, Lj = self.lab("c1ffn"), self.lab("c1join")
        a(f"s_cmp_ge_u32 {s(S_S)}, 16"); a(f"s_cbranch_scc1 {Lf}")
        for r in range(4): a(f"v_mov_b32 {v(W+4+r)}, {v(W+r)}")
        self.fold("v_permlane16_swap_b32", [(W+r, W+4+r) for r in range(4)])
        a(f"v_and_b32 {v(T)}, 0xf0, {v(VA)}")
        a(f"s_lshl_b32 {s(S_T1)}, {s(S_H)}, 12"); a(f"s_lshl_b32 {s(S_T2)}, {s(SRB)}, 11"); a(f"s_add_u32 {s(S_T1)}, {s(S_T1)}, {s(S_T2)}")
        a(f"s_lshl_b32 {s(S_T2)}, {s(SCB)}, 8"); a(f"s_add_u32 {s(S_T1)}, {s(S_T1)}, {s(S_T2)}"); a(f"s_add_u32 {s(S_T1)}, {s(S_T1)}, {QBOX:#x}")
        a("s_mov_b64 exec, 0xffff")
        a(f"s_branch {Lj}")
        a(f"{Lf}:")
        a(f"v_and_b32 {v(T)}, 8, v0"); a(f"v_lshlrev_b32 {v(T)}, 7, {v(T)}")
        a(f"v_and_b32 {v(T+1)}, 0x70, {v(VA)}"); a(f"v_lshl_add_u32 {v(T+1)}, {v(T+2)}, 3, {v(T+1)}"); a(f"v_add_u32 {v(T)}, {v(T)}, {v(T+1)}")
        a(f"s_lshl_b32 {s(S_T1)}, {s(SCB)}, 11"); a(f"s_lshl_b32 {s(S_T2)}, {s(SRB)}, 8"); a(f"s_add_u32 {s(S_T1)}, {s(S_T1)}, {s(S_T2)}")
        a(f"s_add_u32 {s(S_T1)}, {s(S_T1)}, {GBOX:#x}")
        a("s_mov_b32 exec_lo, -1"); a("s_mov_b32 exec_hi, 0")
        a(f"{Lj}:")
        self.tag(range(W, W+4), VT)
        if self.hello:
            if self.hello in (2, 4): a(f"s_cmp_ge_u32 {s(S_S)}, 16"); a(f"s_cselect_b32 {s(S_M+8)}, 1, {s(S_M+6)}")
            elif self.hello == 3: a(f"s_mov_b32 {s(S_M+8)}, 1")
            else: a(f"s_mov_b32 {s(S_M+8)}, {s(S_M+6)}")
            self.pub(f"buffer_store_dwordx4 {v(W,4)}, {v(T)}, {s(R0,4)}, {s(S_T1)} offen", S_M+8)
        else: a(f"buffer_store_dwordx4 {v(W,4)}, {v(T)}, {s(R0,4)}, {s(S_T1)} offen sc1")
        a("s_mov_b64 exec, -1")
        a(f"s_lshl_b32 {s(S_T0)}, {s(S_H)}, 12"); a(f"s_add_u32 {s(S_T0)}, {s(S_T0)}, {QBOX:#x}")
        W2 = W + 8
        self.trig(self.nq, VZ, T+1)
        self.poll([(f"buffer_load_dwordx4 {v(W2+4*k,4)}, {v(VA)}, {s(R0,4)}, {s(S_T0)} offen offset:{1024*k} sc1", W2+4*k, 4) for k in range(4)], VT, T)
        for k in range(4): a(f"v_pk_add_f32 {v(W2+2*k,2)}, {v(W2+2*k,2)}, {v(W2+8+2*k,2)}")
        for k in range(4): a(f"v_cvt_pk_bf16_f32 {v(XF+k)}, {v(W2+2*k)}, {v(W2+2*k+1)}")
        a(f"v_lshlrev_b32 {v(T)}, 3, v0"); a(f"v_mov_b32 {v(T+1)}, 1")
        a(f"ds_write_b64 {v(T)}, {v(XF,2)} offset:{L_Q}"); a(f"ds_write_b64 {v(T)}, {v(XF+2,2)} offset:{L_Q+512}")
        a("s_waitcnt lgkmcnt(0)")
        a(f"ds_write_b32 {v(VZ)}, {v(T+1)} offset:{L_QFLAG}")
        self.stamp(3)
        if self.cut == 1: return self.finish(T)
        if self.hello:
            Lk = self.lab("known")
            a(f"s_cmp_eq_u32 {s(S_M+6)}, 2"); a(f"s_cbranch_scc1 {Lk}")
            hello_check()
            a(f"{Lk}:")
        MW, LW, M, L, MA, LA, MB, LB = XF, XF+1, XF+2, XF+3, W, W+1, W+2, W+3
        a("; softmax statistics: workgroup -> head group -> per-wave factors")
        a(f"v_and_b32 {v(T)}, 28, v0"); a(f"v_lshlrev_b32 {v(T)}, 3, {v(T)}")
        a(f"v_and_b32 {v(T+2)}, 3, v0"); a(f"v_lshl_add_u32 {v(T)}, {v(T+2)}, 2, {v(T)}")
        self.lds_wait(L_MLCNT, 8, VZ, T+1, [f"ds_read2_b32 {v(MW,2)}, {v(T)} offset0:{L_ML//4} offset1:{L_ML//4+4}"])
        self.stamp(4)
        a(f"s_mov_b32 {s(S_T2)}, {LOG2E:#x}")
        a(f"v_mov_b32 {v(M)}, {v(MW)}")
        self.ror("v_max_f32", [M], (4, 8))
        a(f"v_mov_b32 {v(T)}, {v(M)}"); a(f"v_permlane16_swap_b32 {v(M)}, {v(T)}"); a(f"v_max_f32 {v(M)}, {v(M)}, {v(T)}")
        a(f"v_sub_f32 {v(L)}, {v(MW)}, {v(M)}"); a(f"v_mul_f32 {v(L)}, {s(S_T2)}, {v(L)}"); a(f"v_exp_f32 {v(L)}, {v(L)}")
        a(f"v_mul_f32 {v(L)}, {v(L)}, {v(LW)}")
        self.ror("v_add_f32", [L], (4, 8))
        a(f"v_mov_b32 {v(T)}, {v(L)}"); a(f"v_permlane16_swap_b32 {v(L)}, {v(T)}"); a(f"v_add_f32 {v(L)}, {v(L)}, {v(T)}")
        a(f"s_mov_b32 {s(S_TM)}, 0x3ff")
        if self.strip: a(f"v_mov_b32 {v(VT)}, {s(S_E)}"); a(f"v_and_b32 {v(VT)}, {s(S_TM)}, {v(VT)}")
        self.tag([M, L], VT)
        if self.fast and not self.hello:
            a(f"s_getreg_b32 {s(S_M+5)}, hwreg(HW_REG_XCC_ID, 0, 4)"); a(f"s_lshl_b32 {s(S_M+5)}, {s(S_M+5)}, 12")
            a(f"v_or_b32 {v(M)}, {s(S_M+5)}, {v(M)}")
        a(f"v_lshlrev_b32 {v(T)}, 3, v0")
        a(f"s_lshl_b32 {s(S_T0)}, {s(S_H)}, 10"); a(f"s_add_u32 {s(S_T0)}, {s(S_T0)}, {MLBOX:#x}")
        a(f"s_lshl_b32 {s(S_T1)}, {s(S_S)}, 5"); a(f"s_add_u32 {s(S_T1)}, {s(S_T1)}, {s(S_T0)}")
        a("s_mov_b64 exec, 15")
        if self.hello: self.pub(f"buffer_store_dwordx2 {v(M,2)}, {v(T)}, {s(R0,4)}, {s(S_T1)} offen", S_M+6)
        else: a(f"buffer_store_dwordx2 {v(M,2)}, {v(T)}, {s(R0,4)}, {s(S_T1)} offen sc1")
        a("s_mov_b64 exec, -1")
        self.trig(self.nm, VZ, T+1)
        self.poll([(f"buffer_load_dwordx2 {v(MA,2)}, {v(T)}, {s(R0,4)}, {s(S_T0)} offen sc1", MA, 2),
                   (f"buffer_load_dwordx2 {v(MB,2)}, {v(T)}, {s(R0,4)}, {s(S_T0)} offen offset:512 sc1", MB, 2)], VT, T+1, quad=True)
        if self.fast and not self.hello:
            a(f"v_xor_b32 {v(T+2)}, {s(S_M+5)}, {v(MA)}"); a(f"v_xor_b32 {v(T+3)}, {s(S_M+5)}, {v(MB)}")
            a(f"v_or_b32 {v(T+2)}, {v(T+2)}, {v(T+3)}"); a(f"v_and_b32 {v(T+2)}, 0xf000, {v(T+2)}")
            a(f"v_cmp_ne_u32 vcc, 0, {v(T+2)}")
            a("s_cmp_eq_u64 vcc, 0"); a(f"s_cselect_b32 {s(S_M+6)}, 2, 1")
        a(f"v_and_b32 {v(MA)}, {s(S_HI)}, {v(MA)}"); a(f"v_and_b32 {v(MB)}, {s(S_HI)}, {v(MB)}")
        a(f"v_max_f32 {v(M)}, {v(MA)}, {v(MB)}")
        self.ror("v_max_f32", [M], (4, 8)); self.rows_all("v_max_f32", M, T)
        for r in (MA, MB, MW): a(f"v_sub_f32 {v(r)}, {v(r)}, {v(M)}")
        for r in (MA, MB, MW): a(f"v_mul_f32 {v(r)}, {s(S_T2)}, {v(r)}")
        for r in (MA, MB, MW): a(f"v_exp_f32 {v(r)}, {v(r)}")
        a(f"v_mul_f32 {v(L)}, {v(MA)}, {v(LA)}"); a(f"v_fmac_f32 {v(L)}, {v(MB)}, {v(LB)}")
        self.ror("v_add_f32", [L], (4, 8)); self.rows_all("v_add_f32", L, T)
        a(f"v_rcp_f32 {v(L)}, {v(L)}"); a(f"v_mul_f32 {v(MW)}, {v(MW)}, {v(L)}")
        a(f"v_and_b32 {v(T)}, 31, v0"); a(f"v_lshlrev_b32 {v(T)}, 2, {v(T)}"); a(f"v_mov_b32 {v(T+1)}, {s(S_M+6) if self.fast else 1}")
        a(f"ds_write_b32 {v(T)}, {v(MW)} offset:{L_F}")
        a("s_waitcnt lgkmcnt(0)")
        a(f"ds_write_b32 {v(VZ)}, {v(T+1)} offset:{L_FFLAG}")
        a("s_waitcnt lgkmcnt(0)")
        self.stamp(5)
        self.finish(T)

    def fblock(self, dst, t):
        a = self.a
        a(f"s_lshl_b32 {s(dst)}, {s(S_H)}, 3"); a(f"s_lshr_b32 {s(t)}, {s(S_S)}, 2"); a(f"s_add_u32 {s(dst)}, {s(dst)}, {s(t)}")

    def sw1(self):
        a = self.a
        VZ, VT, VA, T = self.VZ, self.VT, self.VA, self.T
        XC, VO, G, W = 10, 11, 12, 16
        self.fblock(S_T0, S_T1)
        a(f"s_lshl_b32 {s(S_T0)}, {s(S_T0)}, 10"); a(f"s_add_u32 {s(S_T0)}, {s(S_T0)}, {GBOX:#x}")
        self.trig(self.g_trig, VZ, T+1)
        self.poll([(f"buffer_load_dwordx4 {v(G,4)}, {v(VA)}, {s(R0,4)}, {s(S_T0)} offen sc1", G, 4)], VT, T)
        self.fold4(G)
        self.rbf1(G, G)
        a(f"v_mov_b32_dpp {v(G+1)}, {v(G)} row_ror:8 row_mask:0xf bank_mask:0xf")
        self.silu_bf(G, G, T)
        a(f"v_mul_f32 {v(G)}, {v(G)}, {v(G+1)}"); a(f"v_cvt_pk_bf16_f32 {v(G)}, {v(G)}, {v(G)}")
        a(f"v_and_b32 {v(T)}, 7, v0"); a(f"v_lshlrev_b32 {v(T)}, 3, {v(T)}")
        a(f"v_lshrrev_b32 {v(T+1)}, 4, v0"); a(f"v_lshl_add_u32 {v(T)}, {v(T+1)}, 1, {v(T)}"); a(f"v_mov_b32 {v(T+1)}, 1")
        a("s_mov_b32 exec_lo, 0xff00ff"); a("s_mov_b32 exec_hi, 0xff00ff")
        a(f"ds_write_b16 {v(T)}, {v(G)} offset:{L_H}")
        a("s_mov_b64 exec, -1")
        a("s_waitcnt lgkmcnt(0)")
        a(f"ds_write_b32 {v(VZ)}, {v(T+1)} offset:{L_HFLAG}")
        self.stamp(3)
        if self.pf2:
            Lp = self.lab("nopf2")
            a(f"s_cmp_lg_u32 {s(S_S)}, 31"); a(f"s_cbranch_scc1 {Lp}")
            a(f"s_getpc_b64 {s(R4,2)}")
            a("Lpc2:")
            a(f"s_sub_u32 {s(R4)}, {s(R4)}, Lpc2-Lsw23"); a(f"s_subb_u32 {s(R4+1)}, {s(R4+1)}, 0")
            a(f"s_mov_b32 {s(R4+2)}, Lcode_end-Lsw23"); a(f"s_mov_b32 {s(R4+3)}, 0x20000")
            a(f"s_mov_b32 {s(S_T0)}, 4096")
            for k in range(7): a(f"buffer_load_dwordx4 {v(W+4*k,4)}, {v(VA)}, {s(R4,4)}, {s(S_T0) if k >= 4 else 0} offen offset:{1024*(k&3)}")
            a(f"{Lp}:")
        if self.red2: return self.finish(T)
        Lx = self.lab("sw1end")
        a(f"s_cmp_ge_u32 {s(S_WG)}, {0 if self.cut else 32}"); a(f"s_cbranch_scc1 {Lx}")
        a(f"s_lshl_b32 {s(S_T0)}, {s(S_WG)}, 5")
        a(f"v_and_b32 {v(VO)}, 3, v0"); a(f"v_lshl_add_u32 {v(VO)}, {v(VO)}, 3, {s(S_T0)}")
        a(f"v_lshrrev_b32 {v(T)}, 4, v0"); a(f"v_lshl_add_u32 {v(VO)}, {v(T)}, 1, {v(VO)}")
        a(f"buffer_load_ushort {v(XC)}, {v(VO)}, {s(R1,4)}, 0 offen")
        a(f"s_lshl_b32 {s(S_T0)}, {s(S_WG)}, 13"); a(f"s_add_u32 {s(S_T0)}, {s(S_T0)}, {HBOX:#x}"); a(f"s_add_u32 {s(S_T1)}, {s(S_T0)}, 4096")
        loads = [(f"buffer_load_dwordx4 {v(W+4*j,4)}, {v(VA)}, {s(R0,4)}, {s(S_T0+(j>>2))} offen offset:{1024*(j&3)} sc1", W+4*j, 4) for j in range(8)]
        if self.touch:
            for ld in loads: a(ld[0])
        a("s_waitcnt vmcnt(0)")
        a(f"v_lshlrev_b32 {v(XC)}, 16, {v(XC)}")
        self.srd(R1, P_OUT, 1024)
        if self.otouch: a(f"buffer_load_ushort {v(T+5)}, {v(VO)}, {s(R1,4)}, 0 offen sc1"); a("s_waitcnt vmcnt(0)")
        self.stamp(4)
        a("s_barrier")
        if self.rdelay: self.lds_wait(L_PUB, 2 if self.rdelay >= 3 else 1, VZ, T+1, sleep=0)
        self.stamp(5)
        if self.pipe:
            Y = [(f"buffer_load_dwordx4 {v(W+32+4*j,4)}, {v(VA)}, {s(R0,4)}, {s(S_T0+(j>>2))} offen offset:{1024*(j&3)} sc1", W+32+4*j, 4) for j in range(8)]
            self.poll2(loads, Y, VT, T, G)
        elif self.light: self.gather8(loads, VT, T, G, VA, S_T0, 10)
        else: self.poll(loads, VT, T, acc=G)
        self.stamp(6)
        self.fold4(G)
        self.ror("v_add_f32", [G], (8,))
        self.rbf1(G, G)
        self.silu_bf(G+1, G, T)
        a(f"v_mul_f32_dpp {v(G)}, {v(G+1)}, {v(G)} row_ror:12 row_mask:0xf bank_mask:0xf"); self.rbf1(G, G)
        a(f"v_add_f32 {v(G)}, {v(G)}, {v(XC)}"); a(f"v_cvt_pk_bf16_f32 {v(G)}, {v(G)}, {v(G)}")
        a("s_mov_b32 exec_lo, 0xf000f"); a("s_mov_b32 exec_hi, 0xf000f")
        a(f"buffer_store_short {v(G)}, {v(VO)}, {s(R1,4)}, 0 offen {self.outpol}")
        a(f"s_cmp_lg_u32 {s(S_WG)}, 0"); a(f"s_cbranch_scc1 {Lx}")
        a("s_mov_b64 exec, 1")
        a(f"v_mov_b32 {v(T)}, {s(S_E)}")
        a(f"buffer_store_dword {v(T)}, {v(VZ)}, {s(R0,4)}, 0 offen offset:{EPOCH} {self.outpol}")
        if self.amp:
            pa, pb, k = self.amp
            a("s_waitcnt vmcnt(0)"); self.stamp(7); a("s_waitcnt lgkmcnt(0)")
            a(f"s_sub_u32 {s(S_T0)}, {s(S_ST+2*pb)}, {s(S_ST+2*pa)}"); a(f"s_mul_i32 {s(S_T0)}, {s(S_T0)}, {k}")
            a(f"s_min_u32 {s(S_T0)}, {s(S_T0)}, 100000")
            a("Lamp:")
            a(f"s_memrealtime {s(S_ST+20,2)}"); a("s_waitcnt lgkmcnt(0)")
            a(f"s_sub_u32 {s(S_T1)}, {s(S_ST+20)}, {s(S_ST+14)}"); a(f"s_cmp_lt_u32 {s(S_T1)}, {s(S_T0)}"); a("s_cbranch_scc1 Lamp")
        a(f"{Lx}:")
        if self.diag: a("s_waitcnt vmcnt(0)")
        self.stamp(7)
        self.finish(T)

    def controller(self, SZ, nbar_):
        a = self.a; c = self.ctl
        VZ = self.VZ
        C, CP, E, X, Y, A, G = 24, 25, 26, 27, 28, 29, 30
        glob = c.get('gw', 0) or c['tcap'] or c.get('g2')
        SG, SPREV, SB8 = R3+1, R3+2, 4
        import struct
        f = lambda x: hex(struct.unpack('<I', struct.pack('<f', x))[0])
        L, Lo, Ls = self.lab("ctl"), self.lab("ctlx"), self.lab("ctls")
        a(f"s_cmp_lg_u32 {s(SZ)}, 0"); a(f"s_cbranch_scc1 {Lo}")
        a(f"s_lshl_b32 {s(S_T0)}, {s(S_H)}, 7")
        a(f"v_and_b32 {v(A)}, 31, v0"); a(f"v_lshlrev_b32 {v(A)}, 2, {v(A)}")
        if glob:
            a(f"v_cmp_gt_u32 vcc, 32, v0"); a(f"v_mov_b32 {v(X)}, 0x400"); a(f"v_cndmask_b32 {v(A)}, {v(X)}, {v(A)}, vcc")
            a(f"s_mov_b32 {s(SPREV)}, 0"); a(f"s_mov_b32 {s(17)}, 0")
            a(f"s_lshl_b32 {s(SPREV+1)}, {s(S_H)}, 2"); a(f"s_add_u32 {s(12)}, {s(P_DBG)}, {s(SPREV+1)}"); a(f"s_addc_u32 {s(13)}, {s(P_DBG+1)}, 0")
        a(f"s_add_u32 {s(S_T0)}, {s(S_T0)}, {PBOX:#x}")
        a(f"s_lshl_b32 {s(S_T1)}, {s(S_S)}, 2"); a(f"s_add_u32 {s(S_T1)}, {s(S_T1)}, {s(S_T0)}")
        a(f"s_lshl_b32 {s(R3)}, {s(S_E)}, 16")
        a(f"ds_read_b32 {v(CP)}, {v(VZ)} offset:{L_CNT}")
        a(f"s_mov_b32 {s(S_CNT)}, 4096")
        a(f"{L}:")
        a(f"ds_read_b32 {v(C)}, {v(VZ)} offset:{L_CNT}")
        a("s_waitcnt lgkmcnt(0)")
        a(f"v_or_b32 {v(E)}, {s(R3)}, {v(C)}")
        a(f"v_readfirstlane_b32 {s(S_T2)}, {v(C)}")
        a("s_mov_b64 exec, 1")
        a(f"buffer_store_dword {v(E)}, {v(VZ)}, {s(R0,4)}, {s(S_T1)} offen")
        a("s_mov_b64 exec, -1")
        a(f"s_cmp_ge_u32 {s(S_T2)}, {8*(c.get('exit', c['to'] - 2) - nbar_)}"); a(f"s_cbranch_scc1 {Lo}")
        a(f"s_sub_u32 {s(S_CNT)}, {s(S_CNT)}, 1"); a(f"s_cbranch_scc1 {Lo}")
        a(f"buffer_load_dword {v(X)}, {v(A)}, {s(R0,4)}, {s(S_T0)} offen sc1")
        if glob:
            Lr = self.lab("ctlr")
            a(f"s_cmp_lg_u32 {s(S_S)}, 5"); a(f"s_cbranch_scc1 {Lr}")
            if c.get('plain'):
                for k in range(8): a(f"s_load_dword {s(SB8+k)}, {s(P_WS,2)}, {PBOX + 0x800 + 128*k:#x} glc")
            else: a(f"s_load_dwordx8 {s(SB8,8)}, {s(P_DBG,2)}, 0 glc")
            a(f"{Lr}:")
        a(f"v_add_u32 {v(CP)}, {v(CP)}, {v(C)}"); a(f"v_cvt_f32_u32 {v(CP)}, {v(CP)}")
        a("s_waitcnt vmcnt(0)")
        a(f"ds_read_b32 {v(Y)}, {v(VZ)} offset:{L_CNT}")
        a(f"v_xor_b32 {v(X)}, {s(R3)}, {v(X)}"); a(f"v_cmp_gt_u32 vcc, 0x10000, {v(X)}")
        if glob:
            a(f"v_subrev_u32 {v(G)}, 0x8000, {v(X)}"); a(f"v_cvt_f32_i32 {v(G)}, {v(G)}"); a(f"v_cndmask_b32 {v(G)}, 0, {v(G)}, vcc")
        a(f"v_cvt_f32_u32 {v(X)}, {v(X)}"); a(f"v_cndmask_b32 {v(X)}, 0, {v(X)}, vcc")
        a(f"s_bcnt1_i32_b32 {s(S_T2)}, vcc_lo")
        if glob: a(f"v_readlane_b32 {s(SG)}, {v(G)}, 32")
        self.ror("v_add_f32", [X], (8, 4, 2, 1))
        a(f"v_mov_b32 {v(E)}, {v(X)}"); a(f"v_permlane16_swap_b32 {v(X)}, {v(E)}"); a(f"v_add_f32 {v(X)}, {v(X)}, {v(E)}")
        a(f"v_cvt_f32_u32 {v(E)}, {s(S_T2)}"); a(f"v_rcp_f32 {v(E)}, {v(E)}")
        a("s_waitcnt lgkmcnt(0)")
        a(f"s_cmp_lt_u32 {s(S_T2)}, 24"); a(f"s_cbranch_scc1 {Ls}")
        a(f"v_mul_f32 {v(X)}, {v(X)}, {v(E)}")
        if glob:
            Lr, Lv = self.lab("ctlr"), self.lab("ctlv")
            a(f"v_mov_b32 {v(G)}, {s(SG)}")
            a(f"s_cmp_lg_u32 {s(S_S)}, 5"); a(f"s_cbranch_scc1 {Lr}")
            a(f"v_cvt_u32_f32 {v(E)}, {v(X)}"); a(f"v_readfirstlane_b32 {s(S_T2)}, {v(E)}")
            a(f"s_add_u32 {s(S_T3)}, {s(SPREV)}, {s(17)}"); a(f"s_min_u32 {s(18)}, {s(SPREV)}, {s(17)}"); a(f"s_mov_b32 {s(17)}, {s(SPREV)}")
            a(f"s_sub_u32 {s(14)}, {s(S_T2)}, {s(SPREV)}"); a(f"s_mov_b32 {s(SPREV)}, {s(S_T2)}")
            if c.get('plain'):
                a(f"v_or_b32 {v(E)}, {s(R3)}, {v(E)}")
                a("s_mov_b64 exec, 1")
                a(f"buffer_store_dword {v(E)}, {v(VZ)}, {s(R0,4)}, {s(S_T0)} offen offset:2048")
                a("s_mov_b64 exec, -1")
                for k in range(8):
                    a(f"s_xor_b32 {s(SB8+k)}, {s(SB8+k)}, {s(R3)}"); a(f"s_cmp_lt_u32 {s(SB8+k)}, 0x10000"); a(f"s_cselect_b32 {s(SB8+k)}, {s(SB8+k)}, 0")
            else: a(f"s_atomic_add {s(14)}, {s(12,2)}, 0x0")
            a(f"s_min_u32 {s(15)}, {s(SB8)}, {s(SB8+1)}"); a(f"s_add_u32 {s(16)}, {s(SB8)}, {s(SB8+1)}")
            for k in range(2, 8): a(f"s_min_u32 {s(15)}, {s(15)}, {s(SB8+k)}"); a(f"s_add_u32 {s(16)}, {s(16)}, {s(SB8+k)}")
            a(f"s_min_u32 {s(15)}, {s(15)}, {s(18)}"); a(f"s_cmp_eq_u32 {s(15)}, 0"); a(f"s_cbranch_scc1 {Lr}")
            a(f"s_lshl_b32 {s(S_T3)}, {s(S_T3)}, 2")
            a(f"s_sub_u32 {s(16)}, {s(16)}, {s(S_T3)}"); a(f"s_ashr_i32 {s(16)}, {s(16)}, 3")
            a(f"s_add_u32 {s(16)}, {s(16)}, {0x8000 + c.get('gb', 0)}"); a(f"s_or_b32 {s(16)}, {s(16)}, {s(R3)}")
            a(f"v_mov_b32 {v(E)}, {s(16)}")
            a("s_mov_b64 exec, 1")
            a(f"buffer_store_dword {v(E)}, {v(VZ)}, {s(R0,4)}, {s(S_T0)} offen offset:1024")
            a("s_mov_b64 exec, -1")
            a(f"{Lr}:")
        a(f"v_fma_f32 {v(X)}, {v(CP)}, -0.5, {v(X)}")
        if c.get('gw', 0): a(f"v_fmac_f32 {v(X)}, {f(c['gw'])}, {v(G)}")
        a(f"v_lshrrev_b32 {v(Y)}, 3, {v(Y)}"); a(f"v_add_u32 {v(Y)}, {nbar_ + 1 + c['lead']}, {v(Y)}")
        for (dst, src, sign, th, g, cap) in ((E, X, 1, c['bth'], c['bg'], c['bcap']), (X, G, 1, *c['g2']) if c.get('g2') else (X, X, 1, *c['l2']) if c.get('l2') else (X, G, -1, c['tth'], c['tg'], c['tcap'])):
            if not cap: continue
            t = CP
            a(f"v_mul_f32 {v(t)}, {f(sign*g)}, {v(src)}")
            if c.get('k0') and dst == E: a(f"v_add_f32 {v(t)}, {f(c['k0'])}, {v(t)}")
            a(f"v_min_f32 {v(t)}, {f(cap)}, {v(t)}"); a(f"v_max_f32 {v(t)}, 0, {v(t)}")
            a(f"v_cmp_{'lt' if sign > 0 else 'gt'}_f32 vcc, {f(sign*th)}, {v(src)}")
            a(f"v_cvt_u32_f32 {v(t)}, {v(t)}"); a(f"v_add_u32 {v(t)}, {v(t)}, {v(Y)}")
            a(f"v_cndmask_b32 {v(dst)}, 0, {v(t)}, vcc")
        if c.get('g2') or c.get('l2'):
            a(f"v_min_u32 {v(CP)}, {v(E)}, {v(X)}"); a(f"v_max_u32 {v(X)}, {v(E)}, {v(X)}"); a(f"v_mov_b32 {v(E)}, {v(CP)}")
        a("s_mov_b64 exec, 1")
        a(f"ds_write_b64 {v(VZ)}, {v(E,2)} offset:{L_BOOST}")
        a("s_mov_b64 exec, -1")
        a(f"{Ls}:")
        a(f"v_mov_b32 {v(CP)}, {v(C)}")
        a(f"s_branch {L}")
        a(f"{Lo}:")
        if glob and self.diag: a(f"s_mov_b32 {s(S_ST+20)}, {s(16)}"); a(f"s_mov_b32 {s(S_ST+22)}, {s(15)}")

    def sw23(self):
        a = self.a
        VZ, VT, VA, T = self.VZ, self.VT, self.VA, self.T
        VP, VH, VB, VB2, OUT, SUM, W, HB, AW, AD, F, DD = 10, 11, 12, 13, 16, 20, 24, 56, 72, 104, 120, 152
        SZ, SFB, SCOL, SPUB, SP0, SHB, SLW = S_M+8, S_M+9, S_M+10, S_M+11, S_M, S_M+12, S_M+13
        a(f"s_and_b32 {s(SZ)}, {s(S_WAVE)}, 1")
        self.fblock(SFB, S_T1)
        a(f"s_and_b32 {s(SCOL)}, {s(S_S)}, 3"); a(f"s_lshl_b32 {s(SCOL)}, {s(SCOL)}, 1"); a(f"s_add_u32 {s(SCOL)}, {s(SCOL)}, {s(SZ)}")
        a(f"s_mul_i32 {s(SLW)}, {s(SZ)}, 12288")
        a(f"v_lshrrev_b32 {v(T)}, 4, v0"); a(f"v_lshl_add_u32 {v(T)}, {v(T)}, 10, {s(SLW)}")
        a(f"v_bfe_u32 {v(T+2)}, v0, 2, 2"); a(f"v_lshl_add_u32 {v(T)}, {v(T+2)}, 7, {v(T)}")
        a(f"v_and_b32 {v(T+2)}, 3, v0"); a(f"v_lshl_add_u32 {v(T)}, {v(T+2)}, 3, {v(T)}")
        a(f"s_lshl_b32 {s(S_T0)}, {s(S_H)}, 16"); a(f"s_add_u32 {s(S_T0)}, {s(S_T0)}, {OBOX:#x}")
        a(f"s_lshl_b32 {s(SPUB)}, {s(S_S)}, 11"); a(f"s_add_u32 {s(SPUB)}, {s(SPUB)}, {s(S_T0)}")
        a(f"s_lshr_b32 {s(S_T1)}, {s(S_S)}, 2"); a(f"s_lshl_b32 {s(S_T1)}, {s(S_T1)}, 8"); a(f"s_add_u32 {s(SP0)}, {s(S_T0)}, {s(S_T1)}")
        for k in range(1, 8): a(f"s_add_u32 {s(SP0+k)}, {s(SP0)}, {8192*k}")
        a(f"v_lshrrev_b32 {v(VP)}, 4, v0"); a(f"v_and_b32 {v(T+2)}, 0xf0, {v(VA)}"); a(f"v_lshl_add_u32 {v(VP)}, {v(VP)}, 11, {v(T+2)}")
        a(f"s_lshl_b32 {s(SHB)}, {s(SCOL)}, 15"); a(f"s_lshl_b32 {s(S_T1)}, {s(SFB)}, 7"); a(f"s_add_u32 {s(SHB)}, {s(SHB)}, {s(S_T1)}")
        a(f"s_add_u32 {s(SHB)}, {s(SHB)}, {HBOX:#x}")
        a(f"v_and_b32 {v(VH)}, 3, v0"); a(f"v_lshlrev_b32 {v(VH)}, 13, {v(VH)}")
        a(f"v_and_b32 {v(T+2)}, 4, v0"); a(f"v_lshl_add_u32 {v(VH)}, {v(T+2)}, 4, {v(VH)}")
        a(f"v_and_b32 {v(VB)}, 48, v0"); a(f"v_add_u32 {v(VH)}, {v(VH)}, {v(VB)}")
        def tr_ad():
            for t in range(4):
                for hf in range(2):
                    a(f"ds_read_b64_tr_b16 {v(AD+4*t+2*hf,2)}, {v(T)} offset:{L_W + 8192 + 512*hf + 32*t}")
        def tr_aw(t):
            for kk in range(2):
                for hf in range(2):
                    a(f"ds_read_b64_tr_b16 {v(AW+8*t+4*kk+2*hf,2)}, {v(T)} offset:{L_W + 4096*kk + 512*hf + 32*t}")
        def ffn_tags():
            a("s_mov_b32 exec_lo, 0x100010"); a("s_mov_b32 exec_hi, 0x100010")
            for t in range(4):
                self.tag(range(DD+4*t, DD+4*t+4), VT, dst=range(OUT, OUT+4))
                if t < 3: a("s_lshl_b64 exec, exec, 1")
            a("s_mov_b64 exec, -1")
        def wprep(less=0):
            if self.wprog:
                assert self.wsplit == 12
                a(f"s_waitcnt vmcnt({16 - less})")
                tr_ad()
                self.lgkm(0)
                for t in range(4): a(f"v_mfma_f32_16x16x32_bf16 {v(DD+4*t,4)}, {v(AD+4*t,4)}, {v(HB,4)}, 0")
                ffn_tags()
                for kk in range(2):
                    a(f"s_waitcnt vmcnt({12 - 4*kk - less})")
                    for t in range(4):
                        for hf in range(2):
                            a(f"ds_read_b64_tr_b16 {v(AW+8*t+4*kk+2*hf,2)}, {v(T)} offset:{L_W + 4096*kk + 512*hf + 32*t}")
                self.stamp(3)
                return
            if self.wdma:
                a(f"s_waitcnt vmcnt({9 if self.wsplit == 12 else 8})")
                tr_ad(); tr_aw(0)
                self.lgkm(4)
                for t in range(4): a(f"v_mfma_f32_16x16x32_bf16 {v(DD+4*t,4)}, {v(AD+4*t,4)}, {v(HB,4)}, 0")
                for t in range(1, 4): tr_aw(t)
                ffn_tags()
                self.stamp(3)
                return
            self.lds_wait(L_WCNT, 8, VZ, T+2)
            tr_ad()
            self.lds_wait(L_HFLAG, 1, VZ, T+2, [f"ds_read_b128 {v(HB,4)}, {v(VB)} offset:{L_H}"])
            for t in range(4): a(f"v_mfma_f32_16x16x32_bf16 {v(DD+4*t,4)}, {v(AD+4*t,4)}, {v(HB,4)}, 0")
            for t in range(4):
                tr_aw(t)
                if t == 1: a("s_waitcnt lgkmcnt(0)")
            ffn_tags()
            a("s_waitcnt lgkmcnt(0)")
            self.stamp(3)
        if self.wdma:
            VWA, VWD, SW0, SW1 = 14, 15, R4, R4+1
            a(f"v_lshrrev_b32 {v(T+1)}, 3, v0"); a(f"v_and_b32 {v(T+2)}, 0x70, {v(VA)}")
            a(f"v_lshl_add_u32 {v(VWD)}, {v(T+1)}, 10, {v(T+2)}")
            a(f"s_mul_i32 {s(S_T1)}, {s(SZ)}, {8*144}"); a(f"v_mul_u32_u24 {v(T+1)}, 144, {v(T+1)}"); a(f"v_add3_u32 {v(VWA)}, {v(T+1)}, {v(T+2)}, {s(S_T1)}")
            a(f"s_lshl_b32 {s(SW0)}, {s(S_H)}, 19"); a(f"s_lshr_b32 {s(S_T1)}, {s(S_S)}, 2"); a(f"s_lshl_b32 {s(S_T1)}, {s(S_T1)}, 14"); a(f"s_add_u32 {s(SW0)}, {s(SW0)}, {s(S_T1)}")
            a(f"s_lshl_b32 {s(S_T1)}, {s(SCOL)}, 7"); a(f"s_add_u32 {s(SW0)}, {s(SW0)}, {s(S_T1)}")
            a(f"s_lshl_b32 {s(SW1)}, {s(SFB)}, 15"); a(f"s_add_u32 {s(SW1)}, {s(SW1)}, {s(S_T1)}")
            a(f"s_add_u32 {s(SLW)}, {s(SLW)}, {L_W}")
            self.srd(R1, P_WO, 0x400000); self.srd(R2, P_WD, 0x1c0000)
            def touch_w():
                a("s_mov_b64 exec, 1")
                for h in range(4):
                    a(f"s_add_u32 {s(S_T1)}, {s(SW0)}, {0x20000*h}")
                    a(f"buffer_load_dword {v(T+3)}, {v(VZ)}, {s(R1,4)}, {s(S_T1)} offen {self.wpol}")
                a(f"buffer_load_dword {v(T+3)}, {v(VZ)}, {s(R2,4)}, {s(SW1)} offen {self.wpol}")
                a("s_mov_b64 exec, -1")
            if self.red2:
                XC, VOUT = 66, 67
                a(f"s_lshl_b32 {s(S_T0)}, {s(S_WG)}, 5"); a(f"s_lshl_b32 {s(S_T1)}, {s(SZ)}, 4"); a(f"s_add_u32 {s(S_T0)}, {s(S_T0)}, {s(S_T1)}")
                a(f"v_and_b32 {v(VOUT)}, 1, v0"); a(f"v_lshl_add_u32 {v(VOUT)}, {v(VOUT)}, 3, {s(S_T0)}")
                a(f"v_lshrrev_b32 {v(T+1)}, 4, v0"); a(f"v_lshl_add_u32 {v(VOUT)}, {v(T+1)}, 1, {v(VOUT)}")
                a(f"s_mov_b32 {s(P_X+2)}, 1024"); a(f"s_mov_b32 {s(P_X+3)}, 0x20000")
                a(f"buffer_load_ushort {v(XC)}, {v(VOUT)}, {s(P_X,4)}, 0 offen")
            if self.ctl: self.controller(SZ, nbar_=(self.ramp[0] if self.ramp else self.D) - 1)
            if self.wtouch == 1: touch_w()
            self.lds_wait(L_HFLAG, 1, VZ, T+2, [f"ds_read_b128 {v(HB,4)}, {v(VB)} offset:{L_H}"])
        worder = list(range(8, 12)) + list(range(8))
        def wload(js):
            for j in js:
                a(f"s_add_u32 m0, {s(SLW)}, {1024*j}")
                if j < 8:
                    a(f"buffer_load_dwordx4 {v(VWD)}, {s(R1,4)}, {s(SW0)} offen {self.wpol} lds")
                    a(f"s_add_u32 {s(SW0)}, {s(SW0)}, {0x20000 - 8192 if j & 1 else 8192:#x}")
                else:
                    a(f"buffer_load_dwordx4 {v(VWD)}, {s(R2,4)}, {s(SW1)} offen {self.wpol} lds")
                    a(f"s_add_u32 {s(SW1)}, {s(SW1)}, 8192")
        late = self.wpos > 56 or self.wdma
        if not late: wprep()
        if self.cut: return self.finish(T)
        if self.wtouch == 2: touch_w()
        loads = [(f"buffer_load_dwordx4 {v(W+4*k,4)}, {v(VP)}, {s(R0,4)}, {s(SP0+k)} offen sc1", W+4*k, 4) for k in range(8)]
        if self.touch and True:
            for ld in loads: a(ld[0])
        self.lds_wait(L_FFLAG, 1, VZ, T+2, [f"ds_read_b128 {v(F+4*w,4)}, {v(VZ)} offset:{L_F+16*w}" for w in range(8)])
        a(f"s_mov_b32 {s(S_M+14)}, {s(S_T3)}")
        if self.wtouch == 3: touch_w()
        a(f"s_lshl_b32 {s(S_T0)}, {s(SZ)}, 10"); a(f"v_add_u32 {v(VA)}, {s(S_T0)}, {v(VA)}")
        a(f"s_lshl_b32 {s(S_T0)}, {s(SZ)}, 7"); a(f"v_add_u32 {v(VB2)}, {s(S_T0)}, {v(VB)}"); a(f"v_lshl_add_u32 {v(T+1)}, v0, 1, {s(S_T0)}")
        if self.touch: a("s_waitcnt vmcnt(0)")
        if self.wdma and self.wsplit:
            self.lds_wait(L_WCNT, self.wcnt, VZ, T+2, sleep=0)
            wload(worder[:self.wsplit])
        self.stamp(4)
        if self.solo: a(f"v_mov_b32 {v(T+2)}, 1")
        a("s_barrier")
        self.stamp(5)
        for w in range(8): a(f"ds_read_b128 {v(W+4*w,4)}, {v(VWA)} offset:{L_O+OSTR*w}")
        for w in range(8):
            self.lgkm(7-w)
            for p in (0, 2):
                if w == 0: a(f"v_pk_mul_f32 {v(SUM+p,2)}, {v(W+p,2)}, {v(F+p,2)}")
                else: a(f"v_pk_fma_f32 {v(SUM+p,2)}, {v(W+4*w+p,2)}, {v(F+4*w+p,2)}, {v(SUM+p,2)}")
        if self.fast: a(f"s_cmp_eq_u32 {s(S_M+14)}, 2")
        if self.half:
            assert not self.clean
            F = SUM; self.tag(range(SUM, SUM+4), VT)
        else: self.tag(range(SUM, SUM+4), VT, dst=range(F, F+4))
        if self.fast:
            La, Lb = self.lab("h1l"), self.lab("h1j")
            a(f"s_cbranch_scc1 {La}")
            a(f"buffer_store_dwordx4 {v(F,4)}, {v(VA)}, {s(R0,4)}, {s(SPUB)} offen sc1")
            a(f"s_branch {Lb}")
            a(f"{La}:")
            a(f"buffer_store_dwordx4 {v(F,4)}, {v(VA)}, {s(R0,4)}, {s(SPUB)} offen")
            a(f"{Lb}:")
        else: a(f"buffer_store_dwordx4 {v(F,4)}, {v(VA)}, {s(R0,4)}, {s(SPUB)} offen sc1")
        self.stamp(6)
        if self.wdma: wload(worder[self.wsplit:])
        pre = late and (self.prepoll or self.wdma)
        if late and not pre: wprep()
        if self.solo:
            BO = HB
            L1, L2 = self.lab("solo1"), self.lab("solo2")
            breads = [f"ds_read_b128 {v(BO,4)}, {v(VB)} offset:{L_OB}", f"ds_read_b128 {v(BO+4,4)}, {v(VB)} offset:{L_OB+64}"]
            a(f"s_cmp_lg_u32 {s(SZ)}, 0"); a(f"s_cbranch_scc1 {L1}")
            if self.solo == 2:
                yr = [AD+4*k for k in range(4)] + [124+4*k for k in range(4)]
                Y = [(f"buffer_load_dwordx4 {v(yr[k],4)}, {v(VP)}, {s(R0,4)}, {s(SP0+k)} offen sc1", yr[k], 4) for k in range(8)]
                self.poll2(loads, Y, VT, T+3, SUM, between=wprep)
            else: self.poll(loads, VT, T+3, acc=SUM, between=wprep)
            self.stamp(7)
            self.fold4(SUM)
            a(f"v_cvt_pk_bf16_f32 {v(SUM)}, {v(SUM)}, {v(SUM)}")
            a(f"ds_write_b16 {v(T+1)}, {v(SUM)} offset:{L_OB}")
            a("s_mov_b64 exec, 1"); a(f"ds_write_b32 {v(VZ)}, {v(T+2)} offset:{L_OFLAG}"); a("s_mov_b64 exec, -1")
            for b in breads: a(b)
            a(f"s_branch {L2}")
            a(f"{L1}:")
            wprep(8)
            self.lds_wait(L_OFLAG, 1, VZ, T+2, breads, sleep=0)
            self.stamp(7)
            a(f"{L2}:")
        else:
            BO = W
            if self.pipe:
                yr = [AD+4*k for k in range(4)] + [124+4*k for k in range(4)]
                Y = [(f"buffer_load_dwordx4 {v(yr[k],4)}, {v(VP)}, {s(R0,4)}, {s(SP0+k)} offen sc1", yr[k], 4) for k in range(8)]
                self.poll2(loads, Y, VT, T+3, SUM, between=wprep)
                BO = HB
            elif self.light: self.gather8(loads, VT, HB+4, SUM, VP, SP0, 13, between=(wprep if pre else None))
            else: self.poll(loads, VT, T+3, acc=SUM, between=(wprep if pre else None))
            self.stamp(7)
            if self.rdelay == 1: a(f"v_mov_b32 {v(T+2)}, 1"); a(f"ds_write_b32 {v(VZ)}, {v(T+2)} offset:{L_PUB}")
            self.fold4(SUM)
            a(f"v_cvt_pk_bf16_f32 {v(SUM)}, {v(SUM)}, {v(SUM)}")
            a(f"ds_write_b16 {v(T+1)}, {v(SUM)} offset:{L_OB}")
            a(f"ds_read_b128 {v(BO,4)}, {v(VB2)} offset:{L_OB}"); a(f"ds_read_b128 {v(BO+4,4)}, {v(VB2)} offset:{L_OB+64}")
        a("s_mov_b32 exec_lo, 0x10001"); a("s_mov_b32 exec_hi, 0x10001")
        self.lgkm(1)
        for t in range(2): a(f"v_mfma_f32_16x16x32_bf16 {v(DD+4*t,4)}, {v(AW+8*t,4)}, {v(BO,4)}, 0")
        self.lgkm(0)
        for t in range(2): a(f"v_mfma_f32_16x16x32_bf16 {v(DD+4*t,4)}, {v(AW+8*t+4,4)}, {v(BO+4,4)}, {v(DD+4*t,4)}")
        for t in range(2, 4):
            a(f"v_mfma_f32_16x16x32_bf16 {v(DD+4*t,4)}, {v(AW+8*t,4)}, {v(BO,4)}, 0")
            a(f"v_mfma_f32_16x16x32_bf16 {v(DD+4*t,4)}, {v(AW+8*t+4,4)}, {v(BO+4,4)}, {v(DD+4*t,4)}")
        for t in range(4):
            self.tag(range(DD+4*t, DD+4*t+4), VT, dst=range(OUT, OUT+4))
            if t < 3: a("s_lshl_b64 exec, exec, 1")
        a("s_mov_b32 exec_lo, 0xff00ff"); a("s_mov_b32 exec_hi, 0xff00ff")
        a(f"buffer_store_dwordx4 {v(OUT,4)}, {v(VH)}, {s(R0,4)}, {s(SHB)} offen sc1")
        self.stamp(8)
        if self.red2:
            Lx = self.lab("tailend")
            G = SUM
            a(f"s_cmp_ge_u32 {s(S_WG)}, 32"); a(f"s_cbranch_scc1 {Lx}")
            a("s_mov_b64 exec, -1")
            a(f"v_lshrrev_b32 {v(VP)}, 2, v0"); a(f"v_lshlrev_b32 {v(VP)}, 7, {v(VP)}")
            a(f"v_and_b32 {v(T)}, 2, v0"); a(f"v_lshl_add_u32 {v(VP)}, {v(T)}, 5, {v(VP)}")
            a(f"v_and_b32 {v(T)}, 1, v0"); a(f"v_lshl_add_u32 {v(VP)}, {v(T)}, 4, {v(VP)}")
            a(f"s_lshl_b32 {s(S_T0)}, {s(S_WG)}, 13"); a(f"s_lshl_b32 {s(S_T1)}, {s(SZ)}, 5"); a(f"s_add_u32 {s(S_T0)}, {s(S_T0)}, {s(S_T1)}")
            a(f"s_add_u32 {s(S_T0)}, {s(S_T0)}, {HBOX:#x}"); a(f"s_add_u32 {s(S_T1)}, {s(S_T0)}, 4096")
            a(f"v_lshlrev_b32 {v(XC)}, 16, {v(XC)}")
            self.srd(R1, P_OUT, 1024)
            mk = lambda r0: [(f"buffer_load_dwordx4 {v(r0+4*j,4)}, {v(VP)}, {s(R0,4)}, {s(S_T0+(j>>1))} offen offset:{2048*(j&1)} sc1", r0+4*j, 4) for j in range(4)]
            a("s_waitcnt vmcnt(0)")
            self.stamp(9)
            if self.red2 == 1: self.poll2(mk(W), mk(W+16), VT, T, G, quad=True)
            else: self.poll(mk(W), VT, T, acc=G, quad=True)
            self.stamp(10)
            self.fold4(G)
            self.ror("v_add_f32", [G], (4, 8))
            self.rbf1(G, G)
            self.silu_bf(G+1, G, T)
            a(f"v_mul_f32_dpp {v(G)}, {v(G+1)}, {v(G)} quad_perm:[2,3,2,3] row_mask:0xf bank_mask:0xf"); self.rbf1(G, G)
            a(f"v_add_f32 {v(G)}, {v(G)}, {v(XC)}"); a(f"v_cvt_pk_bf16_f32 {v(G)}, {v(G)}, {v(G)}")
            a("s_mov_b32 exec_lo, 0x30003"); a("s_mov_b32 exec_hi, 0x30003")
            a(f"buffer_store_short {v(G)}, {v(VOUT)}, {s(R1,4)}, 0 offen {self.outpol}")
            a(f"s_or_b32 {s(S_T0)}, {s(S_WG)}, {s(SZ)}"); a(f"s_cbranch_scc1 {Lx}")
            a("s_mov_b64 exec, 1")
            a(f"v_mov_b32 {v(T)}, {s(S_E)}")
            a(f"buffer_store_dword {v(T)}, {v(VZ)}, {s(R0,4)}, 0 offen offset:{EPOCH} {self.outpol}")
            a(f"{Lx}:")
            if self.diag: a("s_waitcnt vmcnt(0)")
            self.stamp(11)
            return self.finish(T)
        if self.rdelay >= 2:
            a(f"v_mov_b32 {v(T+2)}, 1"); a("s_mov_b64 exec, 1")
            if self.rdelay != 3: a("s_waitcnt vmcnt(0)")
            a(f"ds_add_u32 {v(VZ)}, {v(T+2)} offset:{L_PUB}")
        if self.fast and self.clean:
            a("s_mov_b64 exec, -1")
            a(f"buffer_store_dwordx4 {v(F,4)}, {v(VA)}, {s(R0,4)}, {s(SPUB)} offen sc1")
        if self.amp2:
            pa, pb, k = self.amp2
            a(f"s_add_u32 {s(S_T0)}, {s(S_WG)}, {s(SZ)}"); a(f"s_cmp_lg_u32 {s(S_T0)}, 0"); a("s_cbranch_scc1 Lamp2x")
            a("s_waitcnt lgkmcnt(0)")
            a(f"s_sub_u32 {s(S_T0)}, {s(S_ST+2*pb)}, {s(S_ST+2*pa)}"); a(f"s_mul_i32 {s(S_T0)}, {s(S_T0)}, {k}")
            a(f"s_min_u32 {s(S_T0)}, {s(S_T0)}, 100000")
            a("Lamp2:")
            a(f"s_memrealtime {s(S_ST+20,2)}"); a("s_waitcnt lgkmcnt(0)")
            a(f"s_sub_u32 {s(S_T1)}, {s(S_ST+20)}, {s(S_ST+16)}"); a(f"s_cmp_lt_u32 {s(S_T1)}, {s(S_T0)}"); a("s_cbranch_scc1 Lamp2")
            a("Lamp2x:")
        if self.diag: a("s_waitcnt vmcnt(0)")
        self.stamp(9)
        self.finish(T)

    def build(self):
        a = self.a
        hdr = open("recurrent_scan__gqa_block_cached__swiglu_ffn__decode.s.ref").read().split("; @launch")[0]
        a(f'.amdgcn_target "amdgcn-amd-amdhsa--gfx950"')
        a(".text"); a(f".globl {KN}"); a(".p2align 8"); a(f".type {KN},@function"); a(f"{KN}:")
        if not (self.pf and self.pfe): self.ebar = 0
        a(f"s_load_dwordx16 {s(4,16)}, s[0:1], 0")
        if self.diag or not self.ebar: a(f"s_load_dwordx8 {s(20,8)}, s[0:1], 64")
        a("s_cmp_ge_u32 s2, 256"); a("s_cbranch_scc1 Lend")
        if self.diag:
            for k in range(1, 12): a(f"s_mov_b32 {s(S_ST+2*k)}, 0")
        self.stamp(0)
        a("v_lshrrev_b32 v1, 6, v0"); a("v_and_b32 v0, 63, v0"); a(f"v_readfirstlane_b32 {s(S_WAVE)}, v1")
        a(f"s_and_b32 {s(S_H)}, s2, 7"); a(f"s_lshr_b32 {s(S_S)}, s2, 3")
        if self.pf and self.pfe:
            a(f"s_cmp_lt_u32 {s(S_WAVE)}, 8"); a("s_cbranch_scc1 Lstream")
            a("v_lshlrev_b32 v3, 4, v0")
            if self.ebar and not self.diag: a(f"s_load_dwordx8 {s(20,8)}, s[0:1], 64")
            self.prefetch(3, 72)
            if self.ebar: a("s_barrier")
            a("s_branch Lservice")
            a("Lstream:")
        else:
            a(f"s_cmp_ge_u32 {s(S_WAVE)}, 8"); a("s_cbranch_scc1 Lservice")
        self.streamer()
        a("Lservice:")
        if self.prio: a("s_setprio 3")
        a(f"s_mov_b32 {s(S_HI)}, 0xffff0000"); a(f"s_mov_b32 {s(S_TM)}, {(1 << self.tagbits) - 1:#x}")
        self.stage1()
        a(f"s_cmp_eq_u32 {s(S_WAVE)}, 9"); a("s_cbranch_scc1 Lsw1")
        a(f"s_cmp_gt_u32 {s(S_WAVE)}, 9"); a("s_cbranch_scc1 Lsw23")
        self.sw0()
        a("Lsw23:"); self.sw23()
        a("Lsw1:"); self.sw1()
        a("Lend:"); a("s_endpgm")
        a("Lcode_end:")
        a(".fill 64, 4, 0xbf800000")
        a('.section .rodata,"a"'); a(".p2align 6"); a(f".amdhsa_kernel {KN}")
        for d in ("next_free_vgpr 168", "next_free_sgpr 102", "accum_offset 168", "group_segment_fixed_size 0", "kernarg_size 96",
                  "user_sgpr_count 2", "user_sgpr_kernarg_segment_ptr 1", "system_sgpr_workgroup_id_x 1", "float_denorm_mode_32 3"):
            a(f".amdhsa_{d}")
        a(".end_amdhsa_kernel")
        return hdr + f"; @launch grid=(256,1,1) block=(768,1,1) lds={LDS_BYTES + self.ldspad}\n" + DOC + a.finalize()

def gen(**kw): return G(**kw).build()
if __name__ == "__main__":
    kw = eval("dict(" + (sys.argv[2] if len(sys.argv) > 2 else "") + ")")
    open(sys.argv[1], "w").write(gen(**kw))
```

```python
import sys
from asmlib import Asm
KN = "recurrent_scan__gqa_block_cached__swiglu_ffn__decode_kernel"

EPOCH = 0
QBOX, MLBOX, PBOX, XBOX, GBOX, OBOX, HBOX = 0x1000, 0x9000, 0xB000, 0xC000, 0x10000, 0x20000, 0xA0000
WS_USED = 0xE0000
STAMP = 128 << 20
L_QFLAG, L_MLCNT, L_FFLAG, L_S1CNT, L_PROG, L_HFLAG, L_ACNT, L_WCNT = 0, 4, 8, 12, 16, 20, 24, 28
L_CNT, L_PUB, L_BOOST, L_OFLAG = 32, 36, 40, 48
L_ML, L_F, L_H, L_Q, L_S1, L_OB, L_O = 64, 320, 448, 512, 1536, 2560, 2816
OSTR = 16*144
L_W = L_O + 8*OSTR
L_A = L_O
LDS_BYTES = L_W + 2*12288
SPIN = 1 << 16

LOG2E = 0x3fb8aa3b
SCALE = 0x3db504f3
EPS = 0x3727c5ac

DOC = '''; ------------------------------------------------------------------------------------------------
;
; Workgroup (H = id & 7, S = id >> 3) owns 1024 keys of KV head H. 12 waves:
;   waves 0-7  "streamers": 128 keys each. K (all of it) then V go straight to registers, a few 1 KiB
;              They also fetch the stage-1 weight tile (wq or w_gate/w_up) into LDS.
;              max / sum inside the head group -> per-wave factors exp(m_w - M) / L
;
; it, so results do not depend on its value. Writers use sc1 (write-through) stores, or ordinary stores
; ------------------------------------------------------------------------------------------------
'''

def v(i, n=1): return f"v{i}" if n == 1 else f"v[{i}:{i+n-1}]"
def s(i, n=1): return f"s{i}" if n == 1 else f"s[{i}:{i+n-1}]"

S_WG, S_WAVE = 2, 3
P_X, P_K, P_V, P_WQ, P_WO, P_BX, P_WG, P_WU, P_WD, P_OUT, P_DBG, P_WS = range(4, 28, 2)
R0, R1, R2, R3, R4 = 28, 32, 36, 40, 44
S_H, S_S = 48, 49
S_T0, S_T1, S_T2, S_T3 = 50, 51, 52, 53
S_HI, S_TM, S_LO, S_HIS = 54, 55, 56, 57
S_CNT, S_E = 58, 59
S_M = 60
S_ST = 76

class G:
    def __init__(self, D=3, D2=3, nD2=58, n0=28, il=12, kvpol="nt", wpol="nt", diag=0, pf=1, nq=16, nm=56, g_trig=44,
                 outpol="", prio=1, touch=0, cut=0, amp=None, trace=0, ramp=None, wpos=64, apos=1, smooth=1, wlate=0, prepoll=0, fast=1, clean=0, wdma=1, rot=1, agap=1, light=0, ldspad=0, hsleep=0, pipe=1, wsplit=12, wtouch=0, otouch=0, ctl=1, qk2=1, hello=5, wprog=1, tagbits=6, plo=3, amp2=None, pfe=1, pf2=0, afake=0, rdelay=2, wdrain=None, pfirst=0, solo=2, dirty=0, red2=1, ebar=1, qgap=1, early=1, strip=1, wcnt=8, half=1, whole=1, oseq=1, vtouch=0, pert=None):
        self.__dict__.update(locals()); del self.__dict__['self']
        self.a = Asm(); self.nlab = 0
        assert self.wdma
        if self.ctl == 1: self.ctl = dict(to=68, bth=0, bg=0.5, bcap=5, tth=4, tg=0.15, tcap=0, lead=0, exit=62, **{'from': 8})
    def lab(self, p):
        self.nlab += 1; return f"L{p}{self.nlab}"
    def srd(self, r, ptr, size):
        a = self.a
        a(f"s_mov_b32 {s(r)}, {s(ptr)}"); a(f"s_mov_b32 {s(r+1)}, {s(ptr+1)}")
        a(f"s_mov_b32 {s(r+2)}, {size:#x}"); a(f"s_mov_b32 {s(r+3)}, 0x20000")
    def stamp(self, k):
        if self.diag or self.amp or self.amp2: self.a(f"s_memrealtime {s(S_ST+2*k,2)}")
    def lgkm(self, n):
        self.a(f"s_waitcnt lgkmcnt({0 if (self.diag or self.amp or self.amp2) else n})")
    def finish(self, vt):
        a = self.a
        if self.diag:
            a("s_waitcnt lgkmcnt(0)")
            a(f"s_mul_i32 {s(S_T0)}, {s(S_WG)}, 12"); a(f"s_add_u32 {s(S_T0)}, {s(S_T0)}, {s(S_WAVE)}")
            a(f"s_lshl_b32 {s(S_T0)}, {s(S_T0)}, 6"); a(f"s_add_u32 {s(S_T0)}, {s(S_T0)}, {STAMP:#x}")
            a("s_mov_b64 exec, 1")
            a(f"v_mov_b32 {v(vt)}, {s(S_T0)}")
            for k in range(12):
                a(f"v_mov_b32 {v(vt+1)}, {s(S_ST+2*k)}")
                a(f"global_store_dword {v(vt)}, {v(vt+1)}, {s(P_WS,2)} offset:{4*k}")
            a("s_waitcnt vmcnt(0)")
        a("s_endpgm")
    def unpack(self, lo, hi, src):
        self.a(f"v_lshlrev_b32 {v(lo)}, 16, {v(src)}"); self.a(f"v_and_b32 {v(hi)}, {s(S_HI)}, {v(src)}")
    def rbf1(self, dst, src):
        self.a(f"v_cvt_pk_bf16_f32 {v(dst)}, {v(src)}, {v(src)}"); self.a(f"v_and_b32 {v(dst)}, {s(S_HI)}, {v(dst)}")
    def rbf2(self, d0, d1, s0, s1, t):
        self.a(f"v_cvt_pk_bf16_f32 {v(t)}, {v(s0)}, {v(s1)}"); self.unpack(d0, d1, t)
    def ror(self, op, regs, steps):
        for n in steps:
            for r in regs: self.a(f"{op}_dpp {v(r)}, {v(r)}, {v(r)} row_ror:{n} row_mask:0xf bank_mask:0xf")
    def rows_all(self, op, x, t):
        a = self.a
        for sw in ("v_permlane16_swap_b32", "v_permlane32_swap_b32"):
            a(f"v_mov_b32 {v(t)}, {v(x)}"); a(f"{sw} {v(x)}, {v(t)}"); a(f"{op} {v(x)}, {v(x)}, {v(t)}")
    def fold(self, sw, pairs):
        for x, y in pairs: self.a(f"{sw} {v(x)}, {v(y)}")
        for x, y in pairs: self.a(f"v_add_f32 {v(x)}, {v(x)}, {v(y)}")
    def fold4(self, x):
        self.fold("v_permlane32_swap_b32", [(x, x+2), (x+1, x+3)])
        self.fold("v_permlane16_swap_b32", [(x, x+1)])
    def silu_bf(self, dst, x, t):
        a = self.a
        a(f"v_mul_f32 {v(t)}, {0x80000000 ^ LOG2E:#x}, {v(x)}"); a(f"v_exp_f32 {v(t)}, {v(t)}")
        a(f"v_add_f32 {v(t)}, 1.0, {v(t)}"); a(f"v_rcp_f32 {v(t)}, {v(t)}"); a(f"v_mul_f32 {v(t)}, {v(x)}, {v(t)}")
        self.rbf1(dst, t)
    def layernorm(self, X, XF, T):
        a = self.a
        for k in range(4): self.unpack(XF+2*k, XF+2*k+1, X+k)
        a(f"v_add_f32 {v(T)}, {v(XF)}, {v(XF+1)}")
        for k in range(2, 8): a(f"v_add_f32 {v(T)}, {v(T)}, {v(XF+k)}")
        self.ror("v_add_f32", [T], (8, 4, 2, 1)); self.rows_all("v_add_f32", T, T+1)
        a(f"v_mul_f32 {v(T)}, 0x3b000000, {v(T)}")
        a(f"v_sub_f32 {v(T+2)}, {v(XF)}, {v(T)}"); a(f"v_mul_f32 {v(T+3)}, {v(T+2)}, {v(T+2)}")
        for k in range(1, 8):
            a(f"v_sub_f32 {v(T+2)}, {v(XF+k)}, {v(T)}"); a(f"v_fmac_f32 {v(T+3)}, {v(T+2)}, {v(T+2)}")
        self.ror("v_add_f32", [T+3], (8, 4, 2, 1)); self.rows_all("v_add_f32", T+3, T+1)
        a(f"v_mul_f32 {v(T+3)}, 0x3b000000, {v(T+3)}")
        self.rbf2(T, T+3, T, T+3, T+1)
        a(f"v_add_f32 {v(T+3)}, {EPS:#x}, {v(T+3)}"); self.rbf1(T+3, T+3)
        a(f"v_sqrt_f32 {v(T+3)}, {v(T+3)}"); self.rbf1(T+3, T+3)
        a(f"v_rcp_f32 {v(T+2)}, {v(T+3)}")
        for k in range(8): a(f"v_sub_f32 {v(XF+k)}, {v(XF+k)}, {v(T)}")
        for k in range(4): self.rbf2(XF+2*k, XF+2*k+1, XF+2*k, XF+2*k+1, T+1)
        for k in range(8):
            a(f"v_mul_f32 {v(T+4)}, {v(XF+k)}, {v(T+2)}")
            a(f"v_fma_f32 {v(T+5)}, -{v(T+4)}, {v(T+3)}, {v(XF+k)}")
            a(f"v_fma_f32 {v(XF+k)}, {v(T+5)}, {v(T+2)}, {v(T+4)}")
        for k in range(4): self.rbf2(XF+2*k, XF+2*k+1, XF+2*k, XF+2*k+1, T+1)
    def tag(self, regs, vT, dst=None):
        for i, r in enumerate(regs):
            d = r if dst is None else dst[i]
            if self.half and len(regs) == 4 and not i & 1:
                if d != r: self.a(f"v_mov_b32 {v(d)}, {v(r)}")
            else: self.a(f"v_bfi_b32 {v(d)}, {s(S_TM)}, {v(vT)}, {v(r)}")
    def words(self, t, r0, n, vT, first):
        a = self.a
        if not self.strip:
            for w in range(r0, r0+n):
                if first: a(f"v_xor_b32 {v(t)}, {v(w)}, {v(vT)}"); first = False
                else: a(f"v_bitop3_b32 {v(t)}, {v(w)}, {v(vT)}, {v(t)} bitop3:0xbe")
            return
        if self.half and n == 4:
            for w in (r0+1, r0+3): a(f"v_xor_b32 {v(w)}, {v(w)}, {v(vT)}")
            if first: a(f"v_or_b32 {v(t)}, {v(r0+1)}, {v(r0+3)}")
            else: a(f"v_or3_b32 {v(t)}, {v(r0+1)}, {v(r0+3)}, {v(t)}")
            return
        for w in range(r0, r0+n): a(f"v_xor_b32 {v(w)}, {v(w)}, {v(vT)}")
        for w in range(r0, r0+n, 2):
            if first: a(f"v_or_b32 {v(t)}, {v(w)}, {v(w+1)}"); first = False
            else: a(f"v_or3_b32 {v(t)}, {v(w)}, {v(w+1)}, {v(t)}")
    def joint(self, t, quad=False):
        perms = ["quad_perm:[1,0,3,2]", "quad_perm:[2,3,0,1]"] + ([] if quad else ["row_half_mirror"])
        if self.whole: return
        if quad or self.tagbits < 10:
            for p in perms: self.a(f"v_or_b32_dpp {v(t)}, {v(t)}, {v(t)} {p} row_mask:0xf bank_mask:0xf")
    def poll(self, loads, vT, t, acc=None, between=None, quad=False):
        a = self.a; L = self.lab("poll"); Lo = self.lab("pollx")
        if between:
            Lc = self.lab("pollc")
            for ld in loads: a(ld[0])
            between()
            a(f"s_mov_b32 {s(S_CNT)}, {SPIN}")
            a(f"s_branch {Lc}")
        else: a(f"s_mov_b32 {s(S_CNT)}, {SPIN}")
        a(f"{L}:")
        for ld in loads: a(ld[0])
        if between: a(f"{Lc}:")
        first = True
        for j, (_, r0, n) in enumerate(loads):
            a(f"s_waitcnt vmcnt({len(loads)-1-j})")
            self.words(t, r0, n, vT, first); first = False
            if j == len(loads) - 1:
                self.joint(t, quad)
                a(f"v_and_b32 {v(t)}, {s(S_TM)}, {v(t)}")
                a(f"v_cmp_ne_u32 vcc, 0, {v(t)}")
            if acc is not None and j >= 1:
                p = loads[0][1] if j == 1 else acc
                a(f"v_pk_add_f32 {v(acc,2)}, {v(p,2)}, {v(r0,2)}"); a(f"v_pk_add_f32 {v(acc+2,2)}, {v(p+2,2)}, {v(r0+2,2)}")
        if self.whole:
            a(f"s_cbranch_vccz {Lo}")
            a(f"s_sub_u32 {s(S_CNT)}, {s(S_CNT)}, 1")
            a(f"s_cbranch_scc0 {L}")
            a(f"{Lo}:")
            a("s_nop 0")
            return
        a(f"s_sub_u32 {s(S_CNT)}, {s(S_CNT)}, 1")
        a(f"s_cbranch_scc1 {Lo}")
        a("s_mov_b64 exec, vcc")
        if acc is not None and self.hsleep:
            a(f"s_cbranch_execz {Lo}"); a(f"s_sleep {self.hsleep}"); a(f"s_branch {L}")
        else: a(f"s_cbranch_execnz {L}")
        a(f"{Lo}:")
        a("s_mov_b64 exec, -1")
    def poll2(self, X, Y, vT, t, acc, between=None, quad=False):
        a = self.a; L = self.lab("pp"); Lo = self.lab("ppx")
        n = len(X)
        def check(loads, out=2):
            first = True
            for j, (_, r0, nr) in enumerate(loads):
                a(f"s_waitcnt vmcnt({out*n-1-j})")
                self.words(t, r0, nr, vT, first); first = False
                if j >= 1:
                    p = loads[0][1] if j == 1 else acc
                    a(f"v_pk_add_f32 {v(acc,2)}, {v(p,2)}, {v(r0,2)}"); a(f"v_pk_add_f32 {v(acc+2,2)}, {v(p+2,2)}, {v(r0+2,2)}")
                if j == n - 1:
                    self.joint(t, quad)
                    a(f"v_and_b32 {v(t)}, {s(S_TM)}, {v(t)}")
                    a(f"v_cmp_ne_u32 vcc, 0, {v(t)}")
            if not self.whole: a("s_mov_b64 exec, vcc")
        for ld in X: a(ld[0])
        if between:
            between()
            if self.pfirst:
                check(X, 1)
                a(f"s_cbranch_{'vccz' if self.whole else 'execz'} {Lo}")
                for ld in X: a(ld[0])
        a(f"s_mov_b32 {s(S_CNT)}, {SPIN}")
        a(f"{L}:")
        for ld in Y: a(ld[0])
        check(X)
        a(f"s_cbranch_{'vccz' if self.whole else 'execz'} {Lo}")
        for ld in X: a(ld[0])
        check(Y)
        if self.whole:
            a(f"s_cbranch_vccz {Lo}")
            a(f"s_sub_u32 {s(S_CNT)}, {s(S_CNT)}, 1")
            a(f"s_cbranch_scc0 {L}")
            a(f"{Lo}:")
            return
        a(f"s_sub_u32 {s(S_CNT)}, {s(S_CNT)}, 1")
        a(f"s_cbranch_scc1 {Lo}")
        a(f"s_cbranch_execnz {L}")
        a(f"{Lo}:")
        a("s_mov_b64 exec, -1")
    def gather8(self, loads, vT, t, acc, vaddr, soff, lg, between=None):
        a = self.a; L = self.lab("lp"); Lo = self.lab("lpx")
        P, R, J, B, A = t+1, t+2, t+3, t+4, t+5
        for ld in loads: a(ld[0])
        if between: between()
        first = True
        for j, (_, r0, n) in enumerate(loads):
            a(f"s_waitcnt vmcnt({len(loads)-1-j})")
            for w in range(r0, r0+n):
                if first: a(f"v_xor_b32 {v(t)}, {v(w)}, {v(vT)}"); first = False
                else: a(f"v_bitop3_b32 {v(t)}, {v(w)}, {v(vT)}, {v(t)} bitop3:0xbe")
            if j == len(loads) - 1:
                a(f"v_and_b32 {v(t)}, {s(S_TM)}, {v(t)}")
                a(f"v_cmp_ne_u32 vcc, 0, {v(t)}")
            if j >= 1:
                p = loads[0][1] if j == 1 else acc
                a(f"v_pk_add_f32 {v(acc,2)}, {v(p,2)}, {v(r0,2)}"); a(f"v_pk_add_f32 {v(acc+2,2)}, {v(p+2,2)}, {v(r0+2,2)}")
        a(f"s_cbranch_vccz {Lo}")
        for r in range(acc, acc+4): a(f"v_mov_b32 {v(r)}, 0")
        a(f"v_mov_b32 {v(P)}, 0")
        def check(q):
            a(f"v_xor_b32 {v(t)}, {v(q)}, {v(vT)}")
            for w in range(q+1, q+4): a(f"v_bitop3_b32 {v(t)}, {v(w)}, {v(vT)}, {v(t)} bitop3:0xbe")
            a(f"v_and_b32 {v(t)}, {s(S_TM)}, {v(t)}")
            a(f"v_cmp_eq_u32 vcc, 0, {v(t)}")
        for j, (_, r0, n) in enumerate(loads):
            check(r0)
            a("s_mov_b64 exec, vcc")
            a(f"v_pk_add_f32 {v(acc,2)}, {v(acc,2)}, {v(r0,2)}"); a(f"v_pk_add_f32 {v(acc+2,2)}, {v(acc+2,2)}, {v(r0+2,2)}")
            a("s_not_b64 exec, vcc")
            a(f"v_or_b32 {v(P)}, {1 << j}, {v(P)}")
            a("s_mov_b64 exec, -1")
        Q = loads[0][1]
        a(f"v_mov_b32 {v(R)}, {v(P)}")
        a(f"v_cmp_ne_u32 vcc, 0, {v(P)}")
        a(f"s_mov_b32 {s(S_CNT)}, {SPIN*4}")
        a("s_mov_b64 exec, vcc")
        a(f"{L}:")
        a(f"v_ffbl_b32 {v(J)}, {v(R)}")
        a(f"v_lshl_add_u32 {v(A)}, {v(J)}, {lg}, {v(vaddr)}")
        a(f"buffer_load_dwordx4 {v(Q,4)}, {v(A)}, {s(R0,4)}, {s(soff)} offen sc1")
        a(f"v_lshlrev_b32 {v(B)}, {v(J)}, 1")
        a(f"v_xor_b32 {v(R)}, {v(R)}, {v(B)}")
        a(f"s_sub_u32 {s(S_CNT)}, {s(S_CNT)}, 1")
        a(f"s_cbranch_scc1 {Lo}")
        a("s_waitcnt vmcnt(0)")
        check(Q)
        a(f"s_and_saveexec_b64 {s(S_T2,2)}, vcc")
        a(f"v_xor_b32 {v(P)}, {v(P)}, {v(B)}")
        a(f"v_pk_add_f32 {v(acc,2)}, {v(acc,2)}, {v(Q,2)}"); a(f"v_pk_add_f32 {v(acc+2,2)}, {v(acc+2,2)}, {v(Q+2,2)}")
        a(f"s_mov_b64 exec, {s(S_T2,2)}")
        a(f"v_cmp_eq_u32 {s(S_T2,2)}, 0, {v(R)}")
        a(f"v_cmp_ne_u32 vcc, 0, {v(P)}")
        a(f"v_cndmask_b32 {v(R)}, {v(R)}, {v(P)}, {s(S_T2,2)}")
        a("s_mov_b64 exec, vcc")
        a(f"s_cbranch_execnz {L}")
        a(f"{Lo}:")
        a("s_mov_b64 exec, -1")
    def lds_wait(self, off, val, vz, t, extra=(), sleep=1):
        a = self.a; L = self.lab("lw"); Lo = self.lab("lwx")
        a(f"s_mov_b32 {s(S_CNT)}, {SPIN*16}")
        a(f"{L}:")
        a(f"ds_read_b32 {v(t)}, {v(vz)} offset:{off}")
        for e in extra: a(e)
        a("s_waitcnt lgkmcnt(0)")
        a(f"v_readfirstlane_b32 {s(S_T3)}, {v(t)}")
        a(f"s_cmp_ge_u32 {s(S_T3)}, {val}")
        a(f"s_cbranch_scc1 {Lo}")
        a(f"s_sub_u32 {s(S_CNT)}, {s(S_CNT)}, 1")
        a(f"s_cbranch_scc1 {Lo}")
        if sleep: a(f"s_sleep {sleep}")
        a(f"s_branch {L}")
        a(f"{Lo}:")
    def pub(self, text, sfast):
        a = self.a
        La, Lb = self.lab("pl"), self.lab("pj")
        a(f"s_cmp_eq_u32 {s(sfast)}, 2"); a(f"s_cbranch_scc1 {La}")
        a(text + " sc1"); a(f"s_branch {Lb}")
        a(f"{La}:"); a(text); a(f"{Lb}:")
    def trig(self, what, vz, t):
        if what == "q": self.lds_wait(L_QFLAG, 1, vz, t)
        elif what == "ml": self.lds_wait(L_MLCNT, 8, vz, t)
        elif isinstance(what, int) and what > 0: self.lds_wait(L_PROG, what, vz, t)
    def streamer(self):
        a = self.a
        VK, VV, VZ, VT, VT2 = 1, 2, 3, 4, 5
        Q, S, DT, KB = 8, 12, 20, 36
        slot = lambda i: KB + 4*i
        ACC, AO, B = slot(16), slot(18), slot(23)
        SB = S_T0
        a("; ==== streamer: lane offsets (K: quad-permuted 1 KiB, V: linear), descriptors, paced load sequence ====")
        a(f"s_lshl_b32 {s(SB)}, {s(S_H)}, 23"); a(f"s_lshl_b32 {s(S_T1)}, {s(S_S)}, 18"); a(f"s_or_b32 {s(SB)}, {s(SB)}, {s(S_T1)}")
        a(f"s_lshl_b32 {s(S_T1)}, {s(S_WAVE)}, {self.il}"); a(f"s_or_b32 {s(SB)}, {s(SB)}, {s(S_T1)}")
        if self.rot == 1: a(f"s_lshl_b32 {s(S_M+9)}, {s(S_S)}, 15")
        if self.rot == 2: a(f"s_add_u32 {s(S_M+9)}, {s(S_S)}, {s(S_H)}"); a(f"s_lshl_b32 {s(S_M+9)}, {s(S_M+9)}, 15")
        a(f"v_lshlrev_b32 {v(VV)}, 4, v0")
        a(f"v_and_b32 {v(VT)}, 0xc0, {v(VV)}"); a(f"v_lshlrev_b32 {v(VT)}, 2, {v(VT)}")
        a(f"v_lshrrev_b32 {v(VK)}, 4, v0"); a(f"v_lshlrev_b32 {v(VK)}, 6, {v(VK)}")
        a(f"v_and_b32 {v(VT2)}, 48, {v(VV)}")
        a(f"v_or3_b32 {v(VK)}, {v(VK)}, {v(VT)}, {v(VT2)}")
        a(f"v_mov_b32 {v(VZ)}, 0")
        if not self.early:
            a("s_waitcnt lgkmcnt(0)")
            self.srd(R0, P_K, 0x4000000); self.srd(R1, P_V, 0x4000000)
        def off(i):
            if self.il == 12: return (i >> 2) * 32768, (i & 3) * 1024
            return i * 8192, 0
        last_so = [None]
        VWA, VWD = 6, 7
        SA, SW0, SW1, SSTR = S_M+5, S_M+6, S_M+7, S_M+4
        def regs(it):
            k, i = it
            return {'K': slot(i), 'V': slot(i % 16), 'A': slot(28 + i), 'W': (DT + 4*i if self.wpos > 40 else slot(28 + i))}[k]
        def setup_a():
            a("; stage-1 tile geometry")
            a(f"s_lshr_b32 {s(S_M)}, {s(S_WAVE)}, 1")
            self.s1_geom(True)
            a(f"s_and_b32 {s(S_T3)}, {s(S_WAVE)}, 1"); a(f"s_lshl_b32 {s(S_T3)}, {s(S_T3)}, 2"); a(f"s_add_u32 {s(S_T3)}, {s(S_T3)}, {s(S_M+3)}")
            a(f"s_mul_i32 {s(S_T3)}, {s(S_T3)}, {s(SSTR)}"); a(f"s_lshl_b32 {s(SA)}, {s(S_T2)}, 7"); a(f"s_add_u32 {s(SA)}, {s(SA)}, {s(S_T3)}")
            a(f"v_and_b32 {v(VT)}, 56, v0"); a(f"v_mul_u32_u24 {v(VT)}, {s(SSTR)}, {v(VT)}")
            a(f"v_and_b32 {v(VT2)}, 0x70, {v(VV)}"); a(f"v_add_u32 {v(VWA)}, {v(VT)}, {v(VT2)}")
            if self.afake:
                lg = 3 + self.afake
                a(f"v_lshrrev_b32 {v(VT)}, {lg}, v0"); a(f"v_mul_u32_u24 {v(VT)}, {s(SSTR)}, {v(VT)}")
                a(f"v_and_b32 {v(VT2)}, {(16 << lg) - 16:#x}, {v(VV)}"); a(f"v_add_u32 {v(VWA)}, {v(VT)}, {v(VT2)}")
                a(f"s_and_b32 {s(S_T3)}, {s(S_S)}, 15"); a(f"s_lshl_b32 {s(S_T3)}, {s(S_T3)}, 3"); a(f"s_add_u32 {s(S_T3)}, {s(S_T3)}, {s(S_WAVE)}")
                a(f"s_and_b32 {s(SA)}, {s(S_T3)}, {(8 >> self.afake) - 1}"); a(f"s_lshl_b32 {s(SA)}, {s(SA)}, {7 + self.afake}")
                a(f"s_lshr_b32 {s(S_T3)}, {s(S_T3)}, {3 - self.afake}"); a(f"s_lshl_b32 {s(S_T3)}, {s(S_T3)}, {5 - self.afake}")
                a(f"s_mul_i32 {s(S_T3)}, {s(S_T3)}, {s(SSTR)}"); a(f"s_add_u32 {s(SA)}, {s(SA)}, {s(S_T3)}")
                a(f"s_cmp_ge_u32 {s(S_S)}, 16"); a(f"s_cselect_b32 {s(S_T3)}, 7, 16"); a(f"s_lshl_b32 {s(S_T3)}, {s(S_T3)}, 6"); a(f"s_mul_i32 {s(S_T3)}, {s(S_T3)}, {s(S_H)}"); a(f"s_and_b32 {s(S_T3)}, {s(S_T3)}, 0xffffff80")
                a(f"s_add_u32 {s(SA)}, {s(SA)}, {s(S_T3)}")
                a(f"s_lshl_b32 {s(SSTR)}, {s(SSTR)}, {3 - self.afake}")
        def setup_w():
            a(f"s_and_b32 {s(S_T2)}, {s(S_S)}, 3"); a(f"s_lshl_b32 {s(S_T2)}, {s(S_T2)}, 1"); a(f"s_lshr_b32 {s(S_T3)}, {s(S_WAVE)}, 2")
            a(f"s_add_u32 {s(S_T2)}, {s(S_T2)}, {s(S_T3)}"); a(f"s_lshl_b32 {s(S_T2)}, {s(S_T2)}, 7")
            a(f"s_lshl_b32 {s(SW0)}, {s(S_H)}, 19"); a(f"s_lshr_b32 {s(S_T3)}, {s(S_S)}, 2"); a(f"s_lshl_b32 {s(S_T3)}, {s(S_T3)}, 10")
            a(f"s_add_u32 {s(SW0)}, {s(SW0)}, {s(S_T3)}"); a(f"s_add_u32 {s(SW0)}, {s(SW0)}, {s(S_T2)}")
            self.fblock(SW1, S_T3)
            a(f"s_lshl_b32 {s(SW1)}, {s(SW1)}, 15"); a(f"s_add_u32 {s(SW1)}, {s(SW1)}, {s(S_T2)}")
            a(f"s_and_b32 {s(S_T2)}, {s(S_WAVE)}, 3")
            a(f"s_lshl_b32 {s(S_T3)}, {s(S_T2)}, 16"); a(f"s_add_u32 {s(SW0)}, {s(SW0)}, {s(S_T3)}")
            a(f"s_lshl_b32 {s(S_T3)}, {s(S_T2)}, 13"); a(f"s_add_u32 {s(SW1)}, {s(SW1)}, {s(S_T3)}")
            self.srd(R2, P_WO, 0x400000); self.srd(R3, P_WD, 0x1c0000)
            a(f"v_lshrrev_b32 {v(VT)}, 3, v0"); a(f"v_and_b32 {v(VT2)}, 0x70, {v(VV)}")
            a(f"v_lshl_add_u32 {v(VWD)}, {v(VT)}, 10, {v(VT2)}"); a(f"v_lshl_add_u32 {v(VWA)}, {v(VT)}, 13, {v(VT2)}")
        def load(it):
            k, i = it
            r = v(regs(it), 4)
            if k in 'KV':
                so, imm = off(i)
                if so != last_so[0]:
                    if self.rot:
                        a(f"s_add_u32 {s(S_T1)}, {s(S_M+9)}, {so}"); a(f"s_and_b32 {s(S_T1)}, {s(S_T1)}, 0x38000"); a(f"s_or_b32 {s(S_T1)}, {s(S_T1)}, {s(SB)}")
                    else: a(f"s_add_u32 {s(S_T1)}, {s(SB)}, {so}")
                    last_so[0] = so
                a(f"buffer_load_dwordx4 {r}, {v(VV if k == 'V' else VK)}, {s(R1 if k == 'V' else R0,4)}, {s(S_T1)} offen offset:{imm} {self.kvpol}")
            elif k == 'A':
                if i == 0 and not self.early: setup_a()
                if i == 0 and self.early:
                    if self.early == 2: setup_a()
                    a(f"s_cmp_ge_u32 {s(S_WAVE)}, 4")
                    a(f"s_cselect_b32 {s(R2)}, {s(P_WU)}, {s(P_WG)}"); a(f"s_cselect_b32 {s(R2+1)}, {s(P_WU+1)}, {s(P_WG+1)}")
                    a(f"s_cmp_ge_u32 {s(S_S)}, 16")
                    a(f"s_cselect_b32 {s(R2)}, {s(R2)}, {s(P_WQ)}"); a(f"s_cselect_b32 {s(R2+1)}, {s(R2+1)}, {s(P_WQ+1)}")
                a(f"buffer_load_dwordx4 {r}, {v(VWA)}, {s(R2,4)}, {s(SA)} offen {self.wpol}")
                if i < 3: a(f"s_add_u32 {s(SA)}, {s(SA)}, {s(SSTR)}")
            else:
                if i < 2: a(f"buffer_load_dwordx4 {r}, {v(VWA)}, {s(R2,4)}, {s(SW0)} offen {self.wpol}")
                else: a(f"buffer_load_dwordx4 {r}, {v(VWD)}, {s(R3,4)}, {s(SW1)} offen {self.wpol}")
                if i == 0: a(f"s_add_u32 {s(SW0)}, {s(SW0)}, 0x40000")
        def count(off_):
            a(f"v_mov_b32 {v(VT2)}, 1"); a("s_mov_b64 exec, 1"); a(f"ds_add_u32 {v(VZ)}, {v(VT2)} offset:{off_}"); a("s_mov_b64 exec, -1")
        def put_a():
            a("; stage-1 tiles -> LDS")
            a(f"s_lshl_b32 {s(S_T2)}, {s(S_WAVE)}, 12"); a(f"v_add_u32 {v(VT)}, {s(S_T2)}, {v(VV)}")
            for i in range(4): a(f"ds_write_b128 {v(VT)}, {v(regs(('A', i)),4)} offset:{L_A + 1024*i}")
            count(L_ACNT)
            if not self.wdma: setup_w()
            if self.dirty:
                a(f"s_mul_i32 {s(S_T2)}, {s(S_WG)}, 8"); a(f"s_add_u32 {s(S_T2)}, {s(S_T2)}, {s(S_WAVE)}"); a(f"s_lshl_b32 {s(S_T2)}, {s(S_T2)}, 10")
                a(f"s_add_u32 {s(S_T2)}, {s(S_T2)}, 0x400000"); a(f"v_add_u32 {v(VT)}, {s(S_T2)}, {v(VV)}")
        def put_w():
            a(f"s_lshr_b32 {s(S_T2)}, {s(S_WAVE)}, 2"); a(f"s_mul_i32 {s(S_T2)}, {s(S_T2)}, 12288")
            a(f"s_and_b32 {s(S_T3)}, {s(S_WAVE)}, 3"); a(f"s_lshl_b32 {s(S_T3)}, {s(S_T3)}, 10"); a(f"s_add_u32 {s(S_T2)}, {s(S_T2)}, {s(S_T3)}")
            a(f"v_add_u32 {v(VT)}, {s(S_T2)}, {v(VV)}")
            for i in range(3): a(f"ds_write_b128 {v(VT)}, {v(regs(('W', i)),4)} offset:{L_W + 4096*i}")
            count(L_WCNT)
        def qk(j):
            for m in range(4):
                a(f"v_mfma_f32_16x16x32_bf16 {v(DT+4*m,4)}, {v(slot(4*j+m),4)}, {v(Q,4)}, 0")
            if self.qk2:
                if j == 0:
                    for m in range(1, 4):
                        a(f"s_mov_b32 {s(P_X+2*m)}, {(15 << 4*m) * 0x10001:#x}"); a(f"s_mov_b32 {s(P_X+2*m+1)}, {(15 << 4*m) * 0x10001:#x}")
                for k in range(1, 4):
                    for m in range(4):
                        b = (m + k) & 3
                        a(f"v_add_f32_dpp {v(DT+5*m)}, {v(DT+4*m+b)}, {v(DT+5*m)} row_ror:{(4*(m-b)) & 15} row_mask:0xf bank_mask:0xf")
                for m in range(1, 4):
                    a(f"v_cndmask_b32 {v(S+j)}, {v(DT if m == 1 else S+j)}, {v(DT+5*m)}, {s(P_X+2*m,2)}")
                return
            for k in range(1, 4):
                for m in range(4):
                    b = (m + k) & 3
                    other = DT+4*m+m if k == 1 else S+j
                    a(f"v_add_f32_dpp {v(S+j)}, {v(DT+4*m+b)}, {v(other)} row_ror:{(4*(m-b)) & 15} row_mask:0xf bank_mask:{1<<m:#x}")
        M, Lr = DT, DT+1
        def sm_scale(k):
            if k == 0: a(f"s_mov_b32 {s(S_M+8)}, {SCALE:#x}")
            x, y = S+2*k, S+2*k+1
            self.rbf2(x, y, x, y, VT)
            a(f"v_mul_f32 {v(x)}, {s(S_M+8)}, {v(x)}"); a(f"v_mul_f32 {v(y)}, {s(S_M+8)}, {v(y)}")
            self.rbf2(x, y, x, y, VT)
        def sm_max():
            a("; true row max over this wave's 128 keys")
            a(f"v_max3_f32 {v(M)}, {v(S)}, {v(S+1)}, {v(S+2)}"); a(f"v_max3_f32 {v(M)}, {v(M)}, {v(S+3)}, {v(S+4)}")
            a(f"v_max3_f32 {v(M)}, {v(M)}, {v(S+5)}, {v(S+6)}"); a(f"v_max_f32 {v(M)}, {v(M)}, {v(S+7)}")
            self.ror("v_max_f32", [M], (4, 8)); self.rows_all("v_max_f32", M, VT)
        def sm_exp():
            a(f"s_mov_b32 {s(S_T2)}, {LOG2E:#x}")
            for k in range(8): a(f"v_sub_f32 {v(S+k)}, {v(S+k)}, {v(M)}")
            for k in range(8): a(f"v_mul_f32 {v(S+k)}, {s(S_T2)}, {v(S+k)}")
            for k in range(8): a(f"v_exp_f32 {v(S+k)}, {v(S+k)}")
        def sm_sum():
            a(f"v_add_f32 {v(Lr)}, {v(S)}, {v(S+1)}")
            for k in range(2, 8): a(f"v_add_f32 {v(Lr)}, {v(Lr)}, {v(S+k)}")
            self.ror("v_add_f32", [Lr], (4, 8)); self.rows_all("v_add_f32", Lr, VT)
            a(f"s_lshl_b32 {s(S_T2)}, {s(S_WAVE)}, 5")
            a(f"v_lshl_add_u32 {v(VT)}, v0, 2, {s(S_T2)}"); a(f"v_mov_b32 {v(VT2)}, 1")
            a("s_mov_b64 exec, 15")
            a(f"ds_write2_b32 {v(VT)}, {v(M)}, {v(Lr)} offset0:{L_ML//4} offset1:{L_ML//4+4}")
            a("s_mov_b64 exec, 1")
            a(f"ds_add_u32 {v(VZ)}, {v(VT2)} offset:{L_MLCNT}")
            a("s_mov_b64 exec, -1")
        def zero_acc():
            a(f"s_mul_i32 {s(S_T2)}, {s(S_WAVE)}, {OSTR}")
            a(f"v_and_b32 {v(VT)}, 15, v0"); a(f"v_mul_u32_u24 {v(VT)}, 144, {v(VT)}"); a(f"v_and_b32 {v(VWD)}, 48, v0")
            a(f"v_add3_u32 {v(VWD)}, {v(VWD)}, {v(VT)}, {s(S_T2)}")
            for r in range(ACC, ACC+8): a(f"v_mov_b32 {v(r)}, 0")
            for r in range(AO, AO+16): a(f"v_mov_b32 {v(r)}, 0")
            if self.plo:
                for r in range(DT, DT+16): a(f"v_mov_b32 {v(r)}, 0")
        AL = DT
        def build_lo(j):
            a(f"v_cvt_pk_bf16_f32 {v(VT)}, {v(S+2*j)}, {v(S+2*j+1)}")
            self.unpack(Q, Q+1, VT)
            a(f"v_sub_f32 {v(Q)}, {v(S+2*j)}, {v(Q)}"); a(f"v_sub_f32 {v(Q+1)}, {v(S+2*j+1)}, {v(Q+1)}")
            a(f"v_cvt_pk_bf16_f32 {v(VT)}, {v(Q)}, {v(Q+1)}")
            for m in range(4):
                for e in range(4):
                    n = (4*(e-m)) & 15
                    ctl = f"row_ror:{n}" if n else "quad_perm:[0,1,2,3]"
                    a(f"v_mov_b32_dpp {v(AL+4*e+m)}, {v(VT)} {ctl} row_mask:0xf bank_mask:{1<<e:#x}")
        def build_a(j):
            a(f"v_cvt_pk_bf16_f32 {v(VT)}, {v(S+2*j)}, {v(S+2*j+1)}")
            for m in range(4):
                for e in range(4):
                    n = (4*(e-m)) & 15
                    ctl = f"row_ror:{n}" if n else "quad_perm:[0,1,2,3]"
                    a(f"v_mov_b32_dpp {v(AO+4*e+m)}, {v(VT)} {ctl} row_mask:0xf bank_mask:{1<<e:#x}")
        def perm1(j, m, e):
            lo, hi = slot((8*j+m) % 16), slot((8*j+4+m) % 16)
            a(f"v_perm_b32 {v(B+4*e+m)}, {v(hi+(e>>1))}, {v(lo+(e>>1))}, {s(S_HIS if e & 1 else S_LO)}")
        def mfma_pv(e, j):
            acc = ACC + 4*(e >> 2)
            a(f"v_mfma_f32_16x16x32_bf16 {v(acc,4)}, {v(AO+4*(e&3),4)}, {v(B+4*e,4)}, {v(acc,4)}")
            if j < self.plo: a(f"v_mfma_f32_16x16x32_bf16 {v(acc,4)}, {v(AL+4*(e&3),4)}, {v(B+4*e,4)}, {v(acc,4)}")
        def pv_last(j, mid=None):
            order = [0, 4, 1, 5, 2, 6, 3, 7] if mid is None else list(range(8))
            for k in range(3): perm1(j, 3, order[k])
            for k in range(8):
                mfma_pv(order[k], j)
                if k + 3 < 8: perm1(j, 3, order[k+3])
            if mid: mid()
        def qwait():
            a("; wait for q (B operand of QK^T)")
            a(f"v_and_b32 {v(VT2)}, 3, v0"); a(f"v_lshlrev_b32 {v(VT2)}, 8, {v(VT2)}")
            a(f"v_and_b32 {v(VT)}, 0xc0, {v(VV)}"); a(f"v_lshrrev_b32 {v(VT)}, 2, {v(VT)}")
            a(f"v_and_b32 {v(DT)}, 0x300, {v(VV)}"); a(f"v_lshrrev_b32 {v(DT)}, 2, {v(DT)}")
            a(f"v_or3_b32 {v(VT2)}, {v(VT2)}, {v(VT)}, {v(DT)}")
            self.stamp(2)
            if not self.cut: self.lds_wait(L_QFLAG, 1, VZ, VT, [f"ds_read_b128 {v(Q,4)}, {v(VT2)} offset:{L_Q}"])
            self.stamp(3)
        kv = [('K', i) for i in range(32)] + [('V', i) for i in range(32)]
        seq = kv[:self.apos] + [('A', i) for i in range(4)] + kv[self.apos:self.wpos] + [('W', i) for i in range(0 if self.wdma else 3)] + kv[self.wpos:]
        if self.agap:
            seq = [x for x in seq if x[0] != 'A']
            for i in range(4): seq.insert(self.apos + i*(self.agap + 1), ('A', i))
        pos = {it: n for n, it in enumerate(seq)}
        N = len(seq)
        def owrite():
            a("; last PV group, partial o -> LDS")
            self.stamp(7)
            pv_last(3, (lambda: None) if self.oseq else None)
            a(f"ds_write_b128 {v(VWD)}, {v(ACC,4)} offset:{L_O}")
            a(f"ds_write_b128 {v(VWD)}, {v(ACC+4,4)} offset:{L_O+64}")
            a("s_waitcnt lgkmcnt(0)")
            a("s_barrier")
            if self.dirty:
                a(f"s_mul_i32 {s(S_T2)}, {s(S_WG)}, 8"); a(f"s_add_u32 {s(S_T2)}, {s(S_T2)}, {s(S_WAVE)}"); a(f"s_lshl_b32 {s(S_T2)}, {s(S_T2)}, 10")
                a(f"s_add_u32 {s(S_T2)}, {s(S_T2)}, 0x400000"); a(f"v_add_u32 {v(VT)}, {s(S_T2)}, {v(VV)}")
                a(f"s_cmp_ge_u32 {s(S_WAVE)}, {self.dirty}"); a("s_cbranch_scc1 Lnodirty")
                a(f"global_store_dwordx4 {v(VT)}, {v(ACC,4)}, {s(P_WS,2)}")
                a("Lnodirty:")
        p0 = pos[('K', self.n0)]
        tasks = [(p0, -1, [], qwait)]
        for j in range(8):
            tasks.append((p0 + int(j*self.qgap), pos[('K', 4*j+3)], [('K', 4*j+m) for m in range(4)], lambda j=j: qk(j)))
            if j & 1: tasks.append((0, -1, [], lambda j=j: sm_scale(j >> 1)))
        for f in (sm_max, sm_exp, sm_sum, zero_acc): tasks.append(('next', -1, [], f))
        for j in range(4):
            tasks.append(('next', -1, [], lambda j=j: build_a(j)))
            if j < self.plo: tasks.append(('next', -1, [], lambda j=j: build_lo(j)))
            for m in range(3): tasks.append(('next', pos[('V', 8*j+4+m)], [('V', 8*j+m), ('V', 8*j+4+m)], lambda j=j, m=m: [perm1(j, m, e) for e in range(8)]))
            tasks.append(('next', pos[('V', 8*j+7)], [('V', 8*j+3), ('V', 8*j+7)], (lambda j=j: pv_last(j)) if j < 3 else owrite))
        side = [(0, pos[('A', 3)], [('A', i) for i in range(4)], put_a)]
        if not self.wdma: side.append((0, pos[('W', 2)], [('W', i) for i in range(3)], put_w))
        trigs = {pos[kv[t]]: t for t in (self.nq, self.nm, self.g_trig) if isinstance(t, int) and t > 0}
        def Dn(n):
            if self.ramp and n < len(self.ramp): return self.ramp[n]
            return self.D2 if (self.D2 and n >= self.nD2) else self.D
        nbar = (self.ramp[0] if self.ramp else self.D) - 1
        busy = {}; landed = -1
        def run(n):
            for q in (side, tasks):
                did = False
                while q and q[0][1] <= landed:
                    e = q[0][0]
                    if e == 'next':
                        if did and n < 99 and self.smooth: break
                    elif e > n: break
                    t = q.pop(0); t[3](); did = True
                    for x in t[2]: busy.pop(regs(x))
        NM = N - 3 if self.wlate else N
        if self.early:
            if self.early == 1: setup_a()
            for r in (R0, R1): a(f"s_mov_b32 {s(r+2)}, 0x4000000"); a(f"s_mov_b32 {s(r+3)}, 0x20000")
            assert seq[0] == ('K', 0) and self.rot
            a(f"s_and_b32 {s(S_T1)}, {s(S_M+9)}, 0x38000"); a(f"s_or_b32 {s(S_T1)}, {s(S_T1)}, {s(SB)}"); last_so[0] = 0
        SK, SJ, VB, V1 = S_M+10, S_M+11, 164, 167
        if self.ctl:
            a(f"s_mov_b32 {s(SK)}, {self.ctl.get('init', 0)}"); a(f"s_mov_b32 {s(SJ)}, 0"); a(f"v_mov_b32 {v(V1)}, 1")
        if self.early:
            a("s_waitcnt lgkmcnt(0)")
            a(f"s_mov_b64 {s(R0,2)}, {s(P_K,2)}")
        for n in range(NM):
            if self.early and n == 1: a(f"s_mov_b64 {s(R1,2)}, {s(P_V,2)}")
            if self.ctl and self.ctl['from'] <= n < self.ctl['to']:
                Lb = self.lab("win"); D = Dn(n)
                two = self.ctl.get('g2') or (self.ctl.get('l2') and n >= self.ctl.get('l2from', 0))
                top = D + (2 if two else 1)
                if n - top > landed: a(f"s_waitcnt vmcnt({top-1})"); landed = n - top
                if n & 1:
                    a("s_waitcnt lgkmcnt(0)"); a(f"v_readfirstlane_b32 {s(SK)}, {v(VB)}"); a(f"v_readfirstlane_b32 {s(SJ)}, {v(VB+1)}")
                a(f"s_cmp_gt_u32 {s(SJ if (self.ctl.get('l2') and not two) else SK)}, {n}"); a(f"s_cbranch_scc1 {Lb}")
                a(f"s_waitcnt vmcnt({top-2})")
                if two:
                    a(f"s_cmp_gt_u32 {s(SJ)}, {n}"); a(f"s_cbranch_scc1 {Lb}")
                    a(f"s_waitcnt vmcnt({top-3})")
                elif self.ctl['tcap']:
                    a(f"s_cmp_le_u32 {s(SJ)}, {n}"); a(f"s_cbranch_scc1 {Lb}")
                    a(f"s_waitcnt vmcnt({D-2})")
                a(f"{Lb}:")
            elif n - Dn(n) > landed:
                a(f"s_waitcnt vmcnt({Dn(n)-1})"); landed = n - Dn(n)
            assert regs(seq[n]) not in busy, (n, seq[n])
            busy[regs(seq[n])] = n
            load(seq[n])
            if self.trace and seq[n] in kv:
                m = kv.index(seq[n])
                if m: a("s_waitcnt lgkmcnt(0)"); a(f"v_writelane_b32 v166, s100, {m-1}")
                a("s_memrealtime s[100:101]")
            if n == nbar:
                a(f"s_mov_b32 {s(S_HI)}, 0xffff0000"); a(f"s_mov_b32 {s(S_LO)}, 0x05040100"); a(f"s_mov_b32 {s(S_HIS)}, 0x07060302")
                if self.ebar:
                    Lb = self.lab("flags")
                    a(f"s_cmp_lg_u32 {s(S_WAVE)}, 0"); a(f"s_cbranch_scc1 {Lb}")
                    a(f"v_lshlrev_b32 {v(VT)}, 2, v0")
                    a("s_mov_b64 exec, 0xffff")
                    a(f"ds_write_b32 {v(VT)}, {v(VZ)}")
                    a("s_mov_b64 exec, -1")
                    a("s_waitcnt lgkmcnt(0)")
                    a(f"{Lb}:")
                a("s_barrier")
            if self.ctl and nbar <= n < self.ctl['to']:
                a("s_mov_b64 exec, 1"); a(f"ds_add_u32 {v(VZ)}, {v(V1)} offset:{L_CNT}"); a("s_mov_b64 exec, -1")
                if not n & 1: a(f"ds_read_b64 {v(VB,2)}, {v(VZ)} offset:{L_BOOST}")
            if n in trigs:
                a(f"v_mov_b32 {v(VT)}, {trigs[n]}"); a("s_mov_b64 exec, 1"); a(f"ds_max_u32 {v(VZ)}, {v(VT)} offset:{L_PROG}"); a("s_mov_b64 exec, -1")
            if self.wdma and self.wdrain is None and seq[n] == kv[min(63, self.wpos - 1)]: count(L_WCNT)
            if n == nbar + 1: self.stamp(1)
            if landed == pos[('K', 31)]: self.stamp(4)
            run(n)
        issued = NM
        while landed < N - 1:
            landed += 1
            now = issued < N and landed == NM - self.wlate
            sig = self.wdrain is not None and N - 1 - landed == self.wdrain
            if not now and not sig and not any(q and q[0][1] <= landed for q in (side, tasks)): continue
            a(f"s_waitcnt vmcnt({issued - 1 - landed})")
            if sig: count(L_WCNT)
            if now:
                for n in range(NM, N):
                    busy[regs(seq[n])] = n; load(seq[n])
                issued = N
            run(99)
        assert not tasks and not side
        self.stamp(8)
        if self.trace:
            a(f"s_mul_i32 {s(S_T0)}, {s(S_WG)}, 8"); a(f"s_add_u32 {s(S_T0)}, {s(S_T0)}, {s(S_WAVE)}")
            a(f"s_lshl_b32 {s(S_T0)}, {s(S_T0)}, 8"); a(f"s_add_u32 {s(S_T0)}, {s(S_T0)}, {STAMP + (1<<20):#x}")
            a(f"v_lshl_add_u32 {v(VT)}, v0, 2, {s(S_T0)}")
            a(f"global_store_dword {v(VT)}, v166, {s(P_WS,2)}")
        self.finish(VT)

    def prefetch(self, VA, R):
        a = self.a
        Lp = self.lab("nopf")
        a(f"s_cmp_ge_u32 {s(S_S)}, {self.pf}"); a(f"s_cbranch_scc1 {Lp}")
        a(f"s_getpc_b64 {s(R4,2)}")
        a(f"Lpc:")
        a(f"s_sub_u32 {s(R4)}, {s(R4)}, Lpc-{KN}"); a(f"s_subb_u32 {s(R4+1)}, {s(R4+1)}, 0")
        a(f"s_mov_b32 {s(R4+2)}, Lcode_end-{KN}"); a(f"s_mov_b32 {s(R4+3)}, 0x20000")
        a(f"s_and_b32 {s(S_T0)}, {s(S_WAVE)}, 3"); a(f"s_lshl_b32 {s(S_T0)}, {s(S_T0)}, 10")
        for k in range(5):
            a(f"buffer_load_dwordx4 {v(R+4*k,4)}, {v(VA)}, {s(R4,4)}, {s(S_T0)} offen")
            if k < 4: a(f"s_add_u32 {s(S_T0)}, {s(S_T0)}, 4096")
        a(f"{Lp}:")

    def s1_geom(self, loader):
        a = self.a
        SZ, SCB, SRB, SROW, SSTR = S_M, S_M+1, S_M+2, S_M+3, S_M+4
        Lf, Lj = self.lab("s1ffn"), self.lab("s1join")
        a(f"s_cmp_ge_u32 {s(S_S)}, 16"); a(f"s_cbranch_scc1 {Lf}")
        a(f"s_and_b32 {s(SCB)}, {s(S_S)}, 7"); a(f"s_lshr_b32 {s(SRB)}, {s(S_S)}, 3")
        a(f"s_lshl_b32 {s(SROW)}, {s(SRB)}, 2"); a(f"s_add_u32 {s(SROW)}, {s(SROW)}, {s(SZ)}"); a(f"s_lshl_b32 {s(SROW)}, {s(SROW)}, 6")
        if loader:
            a(f"s_mov_b32 {s(SSTR)}, 8192")
            a(f"s_lshl_b32 {s(S_T2)}, {s(S_H)}, 3"); a(f"s_add_u32 {s(S_T2)}, {s(S_T2)}, {s(SCB)}")
            if self.early: a(f"s_mov_b32 {s(R2+2)}, 0x400000"); a(f"s_mov_b32 {s(R2+3)}, 0x20000")
            else: self.srd(R2, P_WQ, 0x400000)
        a(f"s_branch {Lj}")
        a(f"{Lf}:")
        if self.hello in (1, 3, 5): a(f"s_sub_u32 {s(S_T2)}, {s(S_S)}, 16"); a(f"s_lshl_b32 {s(S_T3)}, {s(S_H)}, 4"); a(f"s_add_u32 {s(S_T2)}, {s(S_T2)}, {s(S_T3)}")
        else: a(f"s_sub_u32 {s(S_T2)}, {s(S_S)}, 16"); a(f"s_lshl_b32 {s(S_T2)}, {s(S_T2)}, 3"); a(f"s_add_u32 {s(S_T2)}, {s(S_T2)}, {s(S_H)}")
        a(f"s_lshr_b32 {s(SCB)}, {s(S_T2)}, 2"); a(f"s_and_b32 {s(SRB)}, {s(S_T2)}, 3")
        a(f"s_and_b32 {s(S_T3)}, {s(SZ)}, 1")
        a(f"s_lshl_b32 {s(SROW)}, {s(SRB)}, 1"); a(f"s_add_u32 {s(SROW)}, {s(SROW)}, {s(S_T3)}"); a(f"s_lshl_b32 {s(SROW)}, {s(SROW)}, 6")
        if loader:
            a(f"s_mov_b32 {s(SSTR)}, 3584")
            a(f"s_mov_b32 {s(S_T2)}, {s(SCB)}")
            if not self.early:
                a(f"s_cmp_ge_u32 {s(SZ)}, 2")
                a(f"s_cselect_b32 {s(R2)}, {s(P_WU)}, {s(P_WG)}"); a(f"s_cselect_b32 {s(R2+1)}, {s(P_WU+1)}, {s(P_WG+1)}")
            a(f"s_cmp_lt_u32 {s(SCB)}, 28")
            a(f"s_cselect_b32 {s(R2+2)}, 0x1c0000, 0"); a(f"s_mov_b32 {s(R2+3)}, 0x20000")
        a(f"{Lj}:")

    VZ, VT, VA, T = 1, 2, 3, 4
    def stage1(self):
        a = self.a
        VZ, VT, VA, T = self.VZ, self.VT, self.VA, self.T
        X, XF, XR, ACC, W = 12, 16, 24, 32, 40
        SZ, SCB, SRB, SROW, SSTR = S_M, S_M+1, S_M+2, S_M+3, S_M+4
        a(f"s_and_b32 {s(SZ)}, {s(S_WAVE)}, 3")
        a(f"v_mov_b32 {v(VZ)}, 0"); a(f"v_lshlrev_b32 {v(VA)}, 4, v0")
        if self.pf and not self.pfe: self.prefetch(VA, W+32)
        self.s1_geom(False)
        a("s_waitcnt lgkmcnt(0)")
        self.srd(R0, P_WS, WS_USED); self.srd(R1, P_X, 1024)
        a(f"buffer_load_dwordx4 {v(X,4)}, {v(VA)}, {s(R1,4)}, 0 offen")
        a(f"buffer_load_dword {v(VT)}, {v(VZ)}, {s(R0,4)}, 0 offen offset:{EPOCH}")
        if not self.ebar:
            Lb = self.lab("s1b")
            a(f"s_cmp_lg_u32 {s(SZ)}, 0"); a(f"s_cbranch_scc1 {Lb}")
            a(f"v_lshlrev_b32 {v(T+2)}, 2, v0")
            a("s_mov_b64 exec, 0xffff")
            a(f"ds_write_b32 {v(T+2)}, {v(VZ)}")
            a("s_mov_b64 exec, -1")
            a("s_waitcnt lgkmcnt(0)")
            a(f"{Lb}:")
            a("s_barrier")
        a("s_waitcnt vmcnt(1)")
        self.stamp(1)
        self.layernorm(X, XF, T)
        a(f"s_lshr_b32 {s(S_T0)}, {s(SROW)}, 1")
        a(f"v_lshrrev_b32 {v(T)}, 3, v0"); a(f"v_lshl_add_u32 {v(T)}, {v(T)}, 2, {s(S_T0)}")
        for j in range(8): a(f"ds_bpermute_b32 {v(XR+j)}, {v(T)}, {v(XF+j)}")
        a("s_waitcnt vmcnt(0)")
        a(f"v_add_u32 {v(VT)}, 1, {v(VT)}"); a(f"v_readfirstlane_b32 {s(S_E)}, {v(VT)}")
        a(f"v_and_b32 {v(VT)}, {s(S_TM) if self.strip else '0x3ff'}, {v(VT)}")
        if self.hello:
            Lh = self.lab("hello")
            a(f"s_cmp_lg_u32 {s(SZ)}, 0"); a(f"s_cbranch_scc1 {Lh}")
            a(f"s_getreg_b32 {s(S_M+5)}, hwreg(HW_REG_XCC_ID, 0, 4)"); a(f"s_lshl_b32 {s(S_T0)}, {s(S_E)}, 4"); a(f"s_or_b32 {s(S_M+5)}, {s(S_M+5)}, {s(S_T0)}")
            a(f"s_lshl_b32 {s(S_M+7)}, {s(S_H)}, 7"); a(f"s_add_u32 {s(S_M+7)}, {s(S_M+7)}, {XBOX:#x}")
            a(f"s_lshl_b32 {s(S_T0)}, {s(S_S)}, 2"); a(f"s_add_u32 {s(S_T0)}, {s(S_T0)}, {s(S_M+7)}")
            a(f"v_mov_b32 {v(T+2)}, {s(S_M+5)}")
            a("s_mov_b64 exec, 1")
            a(f"buffer_store_dword {v(T+2)}, {v(VZ)}, {s(R0,4)}, {s(S_T0)} offen" + ("" if self.hello >= 4 else " sc1"))
            a("s_mov_b64 exec, -1")
            a(f"{Lh}:")
        a(f"s_lshl_b32 {s(S_T0)}, {s(SZ)}, 13"); a(f"v_add_u32 {v(T)}, {s(S_T0)}, {v(VA)}")
        self.lds_wait(L_ACNT, 8, VZ, T+1)
        for j in range(8): a(f"ds_read_b128 {v(W+4*j,4)}, {v(T)} offset:{L_A+1024*j}")
        for j in range(8):
            self.lgkm(7-j)
            for k in range(4):
                self.unpack(T, T+1, W+4*j+k)
                op = "v_mul_f32" if j == 0 else "v_fmac_f32"
                a(f"{op} {v(ACC+2*k)}, {v(XR+j)}, {v(T)}"); a(f"{op} {v(ACC+2*k+1)}, {v(XR+j)}, {v(T+1)}")
        self.fold("v_permlane32_swap_b32", [(ACC+e, ACC+e+4) for e in range(4)])
        self.fold("v_permlane16_swap_b32", [(ACC+e, ACC+e+2) for e in range(2)])
        self.ror("v_add_f32", [ACC, ACC+1], (8,))
        a(f"s_lshl_b32 {s(S_T0)}, {s(SZ)}, 8")
        a(f"v_and_b32 {v(T)}, 7, v0"); a(f"v_lshl_add_u32 {v(T)}, {v(T)}, 5, {s(S_T0)}")
        a(f"v_lshrrev_b32 {v(T+1)}, 4, v0"); a(f"v_lshl_add_u32 {v(T)}, {v(T+1)}, 3, {v(T)}")
        a(f"v_mov_b32 {v(T+1)}, 1")
        a("s_mov_b32 exec_lo, 0xff00ff"); a("s_mov_b32 exec_hi, 0xff00ff")
        a(f"ds_write_b64 {v(T)}, {v(ACC,2)} offset:{L_S1}")
        a("s_mov_b64 exec, 1")
        a(f"ds_add_u32 {v(VZ)}, {v(T+1)} offset:{L_S1CNT}")
        a("s_mov_b64 exec, -1")
        self.stamp(2)

    def sw0(self):
        a = self.a
        VZ, VT, VA, T = self.VZ, self.VT, self.VA, self.T
        XF, W = 16, 40
        SZ, SCB, SRB = S_M, S_M+1, S_M+2
        def hello_check():
            a(f"v_and_b32 {v(T+4)}, 31, v0"); a(f"v_lshlrev_b32 {v(T+4)}, 2, {v(T+4)}")
            a(f"buffer_load_dword {v(T+5)}, {v(T+4)}, {s(R0,4)}, {s(S_M+7)} offen sc1")
            a("s_waitcnt vmcnt(0)")
            a(f"v_cmp_ne_u32 vcc, {s(S_M+5)}, {v(T+5)}")
            a("s_cmp_eq_u64 vcc, 0"); a(f"s_cselect_b32 {s(S_M+6)}, 2, 1")
        if self.hello:
            assert self.hello >= 4
            self.lds_wait(L_S1CNT, 4, VZ, T+1)
            hello_check()
        a(f"v_and_b32 {v(T)}, 0xf0, {v(VA)}"); a(f"v_and_b32 {v(T+2)}, 16, v0"); a(f"v_lshl_add_u32 {v(T)}, {v(T+2)}, 5, {v(T)}")
        self.lds_wait(L_S1CNT, 4, VZ, T+1, [f"ds_read_b128 {v(W,4)}, {v(T)} offset:{L_S1}", f"ds_read_b128 {v(W+4,4)}, {v(T)} offset:{L_S1+256}"])
        a(f"v_pk_add_f32 {v(W,2)}, {v(W,2)}, {v(W+4,2)}"); a(f"v_pk_add_f32 {v(W+2,2)}, {v(W+2,2)}, {v(W+6,2)}")
        Lf, Lj = self.lab("c1ffn"), self.lab("c1join")
        a(f"s_cmp_ge_u32 {s(S_S)}, 16"); a(f"s_cbranch_scc1 {Lf}")
        for r in range(4): a(f"v_mov_b32 {v(W+4+r)}, {v(W+r)}")
        self.fold("v_permlane16_swap_b32", [(W+r, W+4+r) for r in range(4)])
        a(f"v_and_b32 {v(T)}, 0xf0, {v(VA)}")
        a(f"s_lshl_b32 {s(S_T1)}, {s(S_H)}, 12"); a(f"s_lshl_b32 {s(S_T2)}, {s(SRB)}, 11"); a(f"s_add_u32 {s(S_T1)}, {s(S_T1)}, {s(S_T2)}")
        a(f"s_lshl_b32 {s(S_T2)}, {s(SCB)}, 8"); a(f"s_add_u32 {s(S_T1)}, {s(S_T1)}, {s(S_T2)}"); a(f"s_add_u32 {s(S_T1)}, {s(S_T1)}, {QBOX:#x}")
        a("s_mov_b64 exec, 0xffff")
        a(f"s_branch {Lj}")
        a(f"{Lf}:")
        a(f"v_and_b32 {v(T)}, 8, v0"); a(f"v_lshlrev_b32 {v(T)}, 7, {v(T)}")
        a(f"v_and_b32 {v(T+1)}, 0x70, {v(VA)}"); a(f"v_lshl_add_u32 {v(T+1)}, {v(T+2)}, 3, {v(T+1)}"); a(f"v_add_u32 {v(T)}, {v(T)}, {v(T+1)}")
        a(f"s_lshl_b32 {s(S_T1)}, {s(SCB)}, 11"); a(f"s_lshl_b32 {s(S_T2)}, {s(SRB)}, 8"); a(f"s_add_u32 {s(S_T1)}, {s(S_T1)}, {s(S_T2)}")
        a(f"s_add_u32 {s(S_T1)}, {s(S_T1)}, {GBOX:#x}")
        a("s_mov_b32 exec_lo, -1"); a("s_mov_b32 exec_hi, 0")
        a(f"{Lj}:")
        self.tag(range(W, W+4), VT)
        if self.hello:
            if self.hello in (2, 4): a(f"s_cmp_ge_u32 {s(S_S)}, 16"); a(f"s_cselect_b32 {s(S_M+8)}, 1, {s(S_M+6)}")
            elif self.hello == 3: a(f"s_mov_b32 {s(S_M+8)}, 1")
            else: a(f"s_mov_b32 {s(S_M+8)}, {s(S_M+6)}")
            self.pub(f"buffer_store_dwordx4 {v(W,4)}, {v(T)}, {s(R0,4)}, {s(S_T1)} offen", S_M+8)
        else: a(f"buffer_store_dwordx4 {v(W,4)}, {v(T)}, {s(R0,4)}, {s(S_T1)} offen sc1")
        a("s_mov_b64 exec, -1")
        a(f"s_lshl_b32 {s(S_T0)}, {s(S_H)}, 12"); a(f"s_add_u32 {s(S_T0)}, {s(S_T0)}, {QBOX:#x}")
        W2 = W + 8
        self.trig(self.nq, VZ, T+1)
        self.poll([(f"buffer_load_dwordx4 {v(W2+4*k,4)}, {v(VA)}, {s(R0,4)}, {s(S_T0)} offen offset:{1024*k} sc1", W2+4*k, 4) for k in range(4)], VT, T)
        for k in range(4): a(f"v_pk_add_f32 {v(W2+2*k,2)}, {v(W2+2*k,2)}, {v(W2+8+2*k,2)}")
        for k in range(4): a(f"v_cvt_pk_bf16_f32 {v(XF+k)}, {v(W2+2*k)}, {v(W2+2*k+1)}")
        a(f"v_lshlrev_b32 {v(T)}, 3, v0"); a(f"v_mov_b32 {v(T+1)}, 1")
        a(f"ds_write_b64 {v(T)}, {v(XF,2)} offset:{L_Q}"); a(f"ds_write_b64 {v(T)}, {v(XF+2,2)} offset:{L_Q+512}")
        a("s_waitcnt lgkmcnt(0)")
        a(f"ds_write_b32 {v(VZ)}, {v(T+1)} offset:{L_QFLAG}")
        self.stamp(3)
        if self.cut == 1: return self.finish(T)
        if self.hello:
            Lk = self.lab("known")
            a(f"s_cmp_eq_u32 {s(S_M+6)}, 2"); a(f"s_cbranch_scc1 {Lk}")
            hello_check()
            a(f"{Lk}:")
        MW, LW, M, L, MA, LA, MB, LB = XF, XF+1, XF+2, XF+3, W, W+1, W+2, W+3
        a("; softmax statistics: workgroup -> head group -> per-wave factors")
        a(f"v_and_b32 {v(T)}, 28, v0"); a(f"v_lshlrev_b32 {v(T)}, 3, {v(T)}")
        a(f"v_and_b32 {v(T+2)}, 3, v0"); a(f"v_lshl_add_u32 {v(T)}, {v(T+2)}, 2, {v(T)}")
        self.lds_wait(L_MLCNT, 8, VZ, T+1, [f"ds_read2_b32 {v(MW,2)}, {v(T)} offset0:{L_ML//4} offset1:{L_ML//4+4}"])
        self.stamp(4)
        a(f"s_mov_b32 {s(S_T2)}, {LOG2E:#x}")
        a(f"v_mov_b32 {v(M)}, {v(MW)}")
        self.ror("v_max_f32", [M], (4, 8))
        a(f"v_mov_b32 {v(T)}, {v(M)}"); a(f"v_permlane16_swap_b32 {v(M)}, {v(T)}"); a(f"v_max_f32 {v(M)}, {v(M)}, {v(T)}")
        a(f"v_sub_f32 {v(L)}, {v(MW)}, {v(M)}"); a(f"v_mul_f32 {v(L)}, {s(S_T2)}, {v(L)}"); a(f"v_exp_f32 {v(L)}, {v(L)}")
        a(f"v_mul_f32 {v(L)}, {v(L)}, {v(LW)}")
        self.ror("v_add_f32", [L], (4, 8))
        a(f"v_mov_b32 {v(T)}, {v(L)}"); a(f"v_permlane16_swap_b32 {v(L)}, {v(T)}"); a(f"v_add_f32 {v(L)}, {v(L)}, {v(T)}")
        a(f"s_mov_b32 {s(S_TM)}, 0x3ff")
        if self.strip: a(f"v_mov_b32 {v(VT)}, {s(S_E)}"); a(f"v_and_b32 {v(VT)}, {s(S_TM)}, {v(VT)}")
        self.tag([M, L], VT)
        if self.fast and not self.hello:
            a(f"s_getreg_b32 {s(S_M+5)}, hwreg(HW_REG_XCC_ID, 0, 4)"); a(f"s_lshl_b32 {s(S_M+5)}, {s(S_M+5)}, 12")
            a(f"v_or_b32 {v(M)}, {s(S_M+5)}, {v(M)}")
        a(f"v_lshlrev_b32 {v(T)}, 3, v0")
        a(f"s_lshl_b32 {s(S_T0)}, {s(S_H)}, 10"); a(f"s_add_u32 {s(S_T0)}, {s(S_T0)}, {MLBOX:#x}")
        a(f"s_lshl_b32 {s(S_T1)}, {s(S_S)}, 5"); a(f"s_add_u32 {s(S_T1)}, {s(S_T1)}, {s(S_T0)}")
        a("s_mov_b64 exec, 15")
        if self.hello: self.pub(f"buffer_store_dwordx2 {v(M,2)}, {v(T)}, {s(R0,4)}, {s(S_T1)} offen", S_M+6)
        else: a(f"buffer_store_dwordx2 {v(M,2)}, {v(T)}, {s(R0,4)}, {s(S_T1)} offen sc1")
        a("s_mov_b64 exec, -1")
        self.trig(self.nm, VZ, T+1)
        self.poll([(f"buffer_load_dwordx2 {v(MA,2)}, {v(T)}, {s(R0,4)}, {s(S_T0)} offen sc1", MA, 2),
                   (f"buffer_load_dwordx2 {v(MB,2)}, {v(T)}, {s(R0,4)}, {s(S_T0)} offen offset:512 sc1", MB, 2)], VT, T+1, quad=True)
        if self.fast and not self.hello:
            a(f"v_xor_b32 {v(T+2)}, {s(S_M+5)}, {v(MA)}"); a(f"v_xor_b32 {v(T+3)}, {s(S_M+5)}, {v(MB)}")
            a(f"v_or_b32 {v(T+2)}, {v(T+2)}, {v(T+3)}"); a(f"v_and_b32 {v(T+2)}, 0xf000, {v(T+2)}")
            a(f"v_cmp_ne_u32 vcc, 0, {v(T+2)}")
            a("s_cmp_eq_u64 vcc, 0"); a(f"s_cselect_b32 {s(S_M+6)}, 2, 1")
        a(f"v_and_b32 {v(MA)}, {s(S_HI)}, {v(MA)}"); a(f"v_and_b32 {v(MB)}, {s(S_HI)}, {v(MB)}")
        a(f"v_max_f32 {v(M)}, {v(MA)}, {v(MB)}")
        self.ror("v_max_f32", [M], (4, 8)); self.rows_all("v_max_f32", M, T)
        for r in (MA, MB, MW): a(f"v_sub_f32 {v(r)}, {v(r)}, {v(M)}")
        for r in (MA, MB, MW): a(f"v_mul_f32 {v(r)}, {s(S_T2)}, {v(r)}")
        for r in (MA, MB, MW): a(f"v_exp_f32 {v(r)}, {v(r)}")
        a(f"v_mul_f32 {v(L)}, {v(MA)}, {v(LA)}"); a(f"v_fmac_f32 {v(L)}, {v(MB)}, {v(LB)}")
        self.ror("v_add_f32", [L], (4, 8)); self.rows_all("v_add_f32", L, T)
        a(f"v_rcp_f32 {v(L)}, {v(L)}"); a(f"v_mul_f32 {v(MW)}, {v(MW)}, {v(L)}")
        a(f"v_and_b32 {v(T)}, 31, v0"); a(f"v_lshlrev_b32 {v(T)}, 2, {v(T)}"); a(f"v_mov_b32 {v(T+1)}, {s(S_M+6) if self.fast else 1}")
        a(f"ds_write_b32 {v(T)}, {v(MW)} offset:{L_F}")
        a("s_waitcnt lgkmcnt(0)")
        a(f"ds_write_b32 {v(VZ)}, {v(T+1)} offset:{L_FFLAG}")
        a("s_waitcnt lgkmcnt(0)")
        self.stamp(5)
        self.finish(T)

    def fblock(self, dst, t):
        a = self.a
        a(f"s_lshl_b32 {s(dst)}, {s(S_H)}, 3"); a(f"s_lshr_b32 {s(t)}, {s(S_S)}, 2"); a(f"s_add_u32 {s(dst)}, {s(dst)}, {s(t)}")

    def sw1(self):
        a = self.a
        VZ, VT, VA, T = self.VZ, self.VT, self.VA, self.T
        XC, VO, G, W = 10, 11, 12, 16
        if self.vtouch:
            self.srd(R2, P_V, 0x4000000)
            a(f"s_lshl_b32 {s(S_T0)}, {s(S_H)}, 23"); a(f"s_lshl_b32 {s(S_T1)}, {s(S_S)}, 18"); a(f"s_or_b32 {s(S_T0)}, {s(S_T0)}, {s(S_T1)}")
            a(f"v_lshlrev_b32 {v(T)}, 16, v0")
            a(f"s_mov_b64 exec, {(1 << self.vtouch) - 1}")
            a(f"buffer_load_dword {v(T+1)}, {v(T)}, {s(R2,4)}, {s(S_T0)} offen nt")
            a("s_mov_b64 exec, -1")
            a("s_waitcnt vmcnt(0)")
        self.fblock(S_T0, S_T1)
        a(f"s_lshl_b32 {s(S_T0)}, {s(S_T0)}, 10"); a(f"s_add_u32 {s(S_T0)}, {s(S_T0)}, {GBOX:#x}")
        self.trig(self.g_trig, VZ, T+1)
        self.poll([(f"buffer_load_dwordx4 {v(G,4)}, {v(VA)}, {s(R0,4)}, {s(S_T0)} offen sc1", G, 4)], VT, T)
        self.fold4(G)
        self.rbf1(G, G)
        a(f"v_mov_b32_dpp {v(G+1)}, {v(G)} row_ror:8 row_mask:0xf bank_mask:0xf")
        self.silu_bf(G, G, T)
        a(f"v_mul_f32 {v(G)}, {v(G)}, {v(G+1)}"); a(f"v_cvt_pk_bf16_f32 {v(G)}, {v(G)}, {v(G)}")
        a(f"v_and_b32 {v(T)}, 7, v0"); a(f"v_lshlrev_b32 {v(T)}, 3, {v(T)}")
        a(f"v_lshrrev_b32 {v(T+1)}, 4, v0"); a(f"v_lshl_add_u32 {v(T)}, {v(T+1)}, 1, {v(T)}"); a(f"v_mov_b32 {v(T+1)}, 1")
        a("s_mov_b32 exec_lo, 0xff00ff"); a("s_mov_b32 exec_hi, 0xff00ff")
        a(f"ds_write_b16 {v(T)}, {v(G)} offset:{L_H}")
        a("s_mov_b64 exec, -1")
        a("s_waitcnt lgkmcnt(0)")
        a(f"ds_write_b32 {v(VZ)}, {v(T+1)} offset:{L_HFLAG}")
        self.stamp(3)
        if self.pf2:
            Lp = self.lab("nopf2")
            a(f"s_cmp_lg_u32 {s(S_S)}, 31"); a(f"s_cbranch_scc1 {Lp}")
            a(f"s_getpc_b64 {s(R4,2)}")
            a("Lpc2:")
            a(f"s_sub_u32 {s(R4)}, {s(R4)}, Lpc2-Lsw23"); a(f"s_subb_u32 {s(R4+1)}, {s(R4+1)}, 0")
            a(f"s_mov_b32 {s(R4+2)}, Lcode_end-Lsw23"); a(f"s_mov_b32 {s(R4+3)}, 0x20000")
            a(f"s_mov_b32 {s(S_T0)}, 4096")
            for k in range(7): a(f"buffer_load_dwordx4 {v(W+4*k,4)}, {v(VA)}, {s(R4,4)}, {s(S_T0) if k >= 4 else 0} offen offset:{1024*(k&3)}")
            a(f"{Lp}:")
        if self.red2: return self.finish(T)
        Lx = self.lab("sw1end")
        a(f"s_cmp_ge_u32 {s(S_WG)}, {0 if self.cut else 32}"); a(f"s_cbranch_scc1 {Lx}")
        a(f"s_lshl_b32 {s(S_T0)}, {s(S_WG)}, 5")
        a(f"v_and_b32 {v(VO)}, 3, v0"); a(f"v_lshl_add_u32 {v(VO)}, {v(VO)}, 3, {s(S_T0)}")
        a(f"v_lshrrev_b32 {v(T)}, 4, v0"); a(f"v_lshl_add_u32 {v(VO)}, {v(T)}, 1, {v(VO)}")
        a(f"buffer_load_ushort {v(XC)}, {v(VO)}, {s(R1,4)}, 0 offen")
        a(f"s_lshl_b32 {s(S_T0)}, {s(S_WG)}, 13"); a(f"s_add_u32 {s(S_T0)}, {s(S_T0)}, {HBOX:#x}"); a(f"s_add_u32 {s(S_T1)}, {s(S_T0)}, 4096")
        loads = [(f"buffer_load_dwordx4 {v(W+4*j,4)}, {v(VA)}, {s(R0,4)}, {s(S_T0+(j>>2))} offen offset:{1024*(j&3)} sc1", W+4*j, 4) for j in range(8)]
        if self.touch:
            for ld in loads: a(ld[0])
        a("s_waitcnt vmcnt(0)")
        a(f"v_lshlrev_b32 {v(XC)}, 16, {v(XC)}")
        self.srd(R1, P_OUT, 1024)
        if self.otouch: a(f"buffer_load_ushort {v(T+5)}, {v(VO)}, {s(R1,4)}, 0 offen sc1"); a("s_waitcnt vmcnt(0)")
        self.stamp(4)
        a("s_barrier")
        if self.rdelay: self.lds_wait(L_PUB, 2 if self.rdelay >= 3 else 1, VZ, T+1, sleep=0)
        self.stamp(5)
        if self.pipe:
            Y = [(f"buffer_load_dwordx4 {v(W+32+4*j,4)}, {v(VA)}, {s(R0,4)}, {s(S_T0+(j>>2))} offen offset:{1024*(j&3)} sc1", W+32+4*j, 4) for j in range(8)]
            self.poll2(loads, Y, VT, T, G)
        elif self.light: self.gather8(loads, VT, T, G, VA, S_T0, 10)
        else: self.poll(loads, VT, T, acc=G)
        self.stamp(6)
        self.fold4(G)
        self.ror("v_add_f32", [G], (8,))
        self.rbf1(G, G)
        self.silu_bf(G+1, G, T)
        a(f"v_mul_f32_dpp {v(G)}, {v(G+1)}, {v(G)} row_ror:12 row_mask:0xf bank_mask:0xf"); self.rbf1(G, G)
        a(f"v_add_f32 {v(G)}, {v(G)}, {v(XC)}"); a(f"v_cvt_pk_bf16_f32 {v(G)}, {v(G)}, {v(G)}")
        a("s_mov_b32 exec_lo, 0xf000f"); a("s_mov_b32 exec_hi, 0xf000f")
        a(f"buffer_store_short {v(G)}, {v(VO)}, {s(R1,4)}, 0 offen {self.outpol}")
        a(f"s_cmp_lg_u32 {s(S_WG)}, 0"); a(f"s_cbranch_scc1 {Lx}")
        a("s_mov_b64 exec, 1")
        a(f"v_mov_b32 {v(T)}, {s(S_E)}")
        a(f"buffer_store_dword {v(T)}, {v(VZ)}, {s(R0,4)}, 0 offen offset:{EPOCH} {self.outpol}")
        if self.amp:
            pa, pb, k = self.amp
            a("s_waitcnt vmcnt(0)"); self.stamp(7); a("s_waitcnt lgkmcnt(0)")
            a(f"s_sub_u32 {s(S_T0)}, {s(S_ST+2*pb)}, {s(S_ST+2*pa)}"); a(f"s_mul_i32 {s(S_T0)}, {s(S_T0)}, {k}")
            a(f"s_min_u32 {s(S_T0)}, {s(S_T0)}, 100000")
            a("Lamp:")
            a(f"s_memrealtime {s(S_ST+20,2)}"); a("s_waitcnt lgkmcnt(0)")
            a(f"s_sub_u32 {s(S_T1)}, {s(S_ST+20)}, {s(S_ST+14)}"); a(f"s_cmp_lt_u32 {s(S_T1)}, {s(S_T0)}"); a("s_cbranch_scc1 Lamp")
        a(f"{Lx}:")
        if self.diag: a("s_waitcnt vmcnt(0)")
        self.stamp(7)
        self.finish(T)

    def controller(self, SZ, nbar_):
        a = self.a; c = self.ctl
        VZ = self.VZ
        C, CP, E, X, Y, A, G = 24, 25, 26, 27, 28, 29, 30
        glob = c.get('gw', 0) or c['tcap'] or c.get('g2')
        SG, SPREV, SB8 = R3+1, R3+2, 4
        import struct
        f = lambda x: hex(struct.unpack('<I', struct.pack('<f', x))[0])
        L, Lo, Ls = self.lab("ctl"), self.lab("ctlx"), self.lab("ctls")
        if c.get('dual'):
            Ld = self.lab("ctld")
            a(f"s_cmp_eq_u32 {s(SZ)}, 0"); a(f"s_cbranch_scc1 {Ld}")
            a(f"ds_read_b32 {v(C)}, {v(VZ)} offset:{L_CNT}"); a("s_waitcnt lgkmcnt(0)")
            a(f"v_readfirstlane_b32 {s(S_T0)}, {v(C)}"); a(f"s_add_u32 {s(S_T0)}, {s(S_T0)}, {c['dual']}")
            self.lds_wait(L_CNT, s(S_T0), VZ, C)
            a(f"{Ld}:")
        else:
            a(f"s_cmp_lg_u32 {s(SZ)}, 0"); a(f"s_cbranch_scc1 {Lo}")
        a(f"s_lshl_b32 {s(S_T0)}, {s(S_H)}, 7")
        a(f"v_and_b32 {v(A)}, 31, v0"); a(f"v_lshlrev_b32 {v(A)}, 2, {v(A)}")
        if glob:
            a(f"v_cmp_gt_u32 vcc, 32, v0"); a(f"v_mov_b32 {v(X)}, 0x400"); a(f"v_cndmask_b32 {v(A)}, {v(X)}, {v(A)}, vcc")
            a(f"s_mov_b32 {s(SPREV)}, 0"); a(f"s_mov_b32 {s(17)}, 0")
            a(f"s_lshl_b32 {s(SPREV+1)}, {s(S_H)}, 2"); a(f"s_add_u32 {s(12)}, {s(P_DBG)}, {s(SPREV+1)}"); a(f"s_addc_u32 {s(13)}, {s(P_DBG+1)}, 0")
        a(f"s_add_u32 {s(S_T0)}, {s(S_T0)}, {PBOX:#x}")
        a(f"s_lshl_b32 {s(S_T1)}, {s(S_S)}, 2"); a(f"s_add_u32 {s(S_T1)}, {s(S_T1)}, {s(S_T0)}")
        a(f"s_lshl_b32 {s(R3)}, {s(S_E)}, 16")
        a(f"ds_read_b32 {v(CP)}, {v(VZ)} offset:{L_CNT}")
        a(f"s_mov_b32 {s(S_CNT)}, 4096")
        a(f"{L}:")
        a(f"ds_read_b32 {v(C)}, {v(VZ)} offset:{L_CNT}")
        a("s_waitcnt lgkmcnt(0)")
        a(f"v_or_b32 {v(E)}, {s(R3)}, {v(C)}")
        a(f"v_readfirstlane_b32 {s(S_T2)}, {v(C)}")
        a("s_mov_b64 exec, 1")
        a(f"buffer_store_dword {v(E)}, {v(VZ)}, {s(R0,4)}, {s(S_T1)} offen")
        a("s_mov_b64 exec, -1")
        a(f"s_cmp_ge_u32 {s(S_T2)}, {8*(c.get('exit', c['to'] - 2) - nbar_)}"); a(f"s_cbranch_scc1 {Lo}")
        a(f"s_sub_u32 {s(S_CNT)}, {s(S_CNT)}, 1"); a(f"s_cbranch_scc1 {Lo}")
        a(f"buffer_load_dword {v(X)}, {v(A)}, {s(R0,4)}, {s(S_T0)} offen sc1")
        if glob:
            Lr = self.lab("ctlr")
            a(f"s_cmp_lg_u32 {s(S_S)}, 5"); a(f"s_cbranch_scc1 {Lr}")
            if c.get('plain'):
                for k in range(8): a(f"s_load_dword {s(SB8+k)}, {s(P_WS,2)}, {PBOX + 0x800 + 128*k:#x} glc")
            else: a(f"s_load_dwordx8 {s(SB8,8)}, {s(P_DBG,2)}, 0 glc")
            a(f"{Lr}:")
        if c.get('dual'): a(f"v_mad_u32_u24 {v(CP)}, {v(C)}, 3, {v(CP)}")
        else: a(f"v_add_u32 {v(CP)}, {v(CP)}, {v(C)}")
        a(f"v_cvt_f32_u32 {v(CP)}, {v(CP)}")
        if c.get('dual'): a(f"v_mul_f32 {v(CP)}, 0.5, {v(CP)}")
        a("s_waitcnt vmcnt(0)")
        a(f"ds_read_b32 {v(Y)}, {v(VZ)} offset:{L_CNT}")
        a(f"v_xor_b32 {v(X)}, {s(R3)}, {v(X)}"); a(f"v_cmp_gt_u32 vcc, 0x10000, {v(X)}")
        if glob:
            a(f"v_subrev_u32 {v(G)}, 0x8000, {v(X)}"); a(f"v_cvt_f32_i32 {v(G)}, {v(G)}"); a(f"v_cndmask_b32 {v(G)}, 0, {v(G)}, vcc")
        a(f"v_cvt_f32_u32 {v(X)}, {v(X)}"); a(f"v_cndmask_b32 {v(X)}, 0, {v(X)}, vcc")
        a(f"s_bcnt1_i32_b32 {s(S_T2)}, vcc_lo")
        if glob: a(f"v_readlane_b32 {s(SG)}, {v(G)}, 32")
        self.ror("v_add_f32", [X], (8, 4, 2, 1))
        a(f"v_mov_b32 {v(E)}, {v(X)}"); a(f"v_permlane16_swap_b32 {v(X)}, {v(E)}"); a(f"v_add_f32 {v(X)}, {v(X)}, {v(E)}")
        a(f"v_cvt_f32_u32 {v(E)}, {s(S_T2)}"); a(f"v_rcp_f32 {v(E)}, {v(E)}")
        a("s_waitcnt lgkmcnt(0)")
        a(f"s_cmp_lt_u32 {s(S_T2)}, 24"); a(f"s_cbranch_scc1 {Ls}")
        a(f"v_mul_f32 {v(X)}, {v(X)}, {v(E)}")
        if glob:
            Lr, Lv = self.lab("ctlr"), self.lab("ctlv")
            a(f"v_mov_b32 {v(G)}, {s(SG)}")
            a(f"s_cmp_lg_u32 {s(S_S)}, 5"); a(f"s_cbranch_scc1 {Lr}")
            a(f"v_cvt_u32_f32 {v(E)}, {v(X)}"); a(f"v_readfirstlane_b32 {s(S_T2)}, {v(E)}")
            a(f"s_add_u32 {s(S_T3)}, {s(SPREV)}, {s(17)}"); a(f"s_min_u32 {s(18)}, {s(SPREV)}, {s(17)}"); a(f"s_mov_b32 {s(17)}, {s(SPREV)}")
            a(f"s_sub_u32 {s(14)}, {s(S_T2)}, {s(SPREV)}"); a(f"s_mov_b32 {s(SPREV)}, {s(S_T2)}")
            if c.get('plain'):
                a(f"v_or_b32 {v(E)}, {s(R3)}, {v(E)}")
                a("s_mov_b64 exec, 1")
                a(f"buffer_store_dword {v(E)}, {v(VZ)}, {s(R0,4)}, {s(S_T0)} offen offset:2048")
                a("s_mov_b64 exec, -1")
                for k in range(8):
                    a(f"s_xor_b32 {s(SB8+k)}, {s(SB8+k)}, {s(R3)}"); a(f"s_cmp_lt_u32 {s(SB8+k)}, 0x10000"); a(f"s_cselect_b32 {s(SB8+k)}, {s(SB8+k)}, 0")
            else: a(f"s_atomic_add {s(14)}, {s(12,2)}, 0x0")
            a(f"s_min_u32 {s(15)}, {s(SB8)}, {s(SB8+1)}"); a(f"s_add_u32 {s(16)}, {s(SB8)}, {s(SB8+1)}")
            for k in range(2, 8): a(f"s_min_u32 {s(15)}, {s(15)}, {s(SB8+k)}"); a(f"s_add_u32 {s(16)}, {s(16)}, {s(SB8+k)}")
            a(f"s_min_u32 {s(15)}, {s(15)}, {s(18)}"); a(f"s_cmp_eq_u32 {s(15)}, 0"); a(f"s_cbranch_scc1 {Lr}")
            a(f"s_lshl_b32 {s(S_T3)}, {s(S_T3)}, 2")
            a(f"s_sub_u32 {s(16)}, {s(16)}, {s(S_T3)}"); a(f"s_ashr_i32 {s(16)}, {s(16)}, 3")
            a(f"s_add_u32 {s(16)}, {s(16)}, {0x8000 + c.get('gb', 0)}"); a(f"s_or_b32 {s(16)}, {s(16)}, {s(R3)}")
            a(f"v_mov_b32 {v(E)}, {s(16)}")
            a("s_mov_b64 exec, 1")
            a(f"buffer_store_dword {v(E)}, {v(VZ)}, {s(R0,4)}, {s(S_T0)} offen offset:1024")
            a("s_mov_b64 exec, -1")
            a(f"{Lr}:")
        a(f"v_fma_f32 {v(X)}, {v(CP)}, -0.5, {v(X)}")
        if c.get('gw', 0): a(f"v_fmac_f32 {v(X)}, {f(c['gw'])}, {v(G)}")
        a(f"v_lshrrev_b32 {v(Y)}, 3, {v(Y)}"); a(f"v_add_u32 {v(Y)}, {nbar_ + 1 + c['lead']}, {v(Y)}")
        for (dst, src, sign, th, g, cap) in ((E, X, 1, c['bth'], c['bg'], c['bcap']), (X, G, 1, *c['g2']) if c.get('g2') else (X, X, 1, *c['l2']) if c.get('l2') else (X, G, -1, c['tth'], c['tg'], c['tcap'])):
            if not cap: continue
            t = CP
            a(f"v_mul_f32 {v(t)}, {f(sign*g)}, {v(src)}")
            if c.get('k0') and dst == E: a(f"v_add_f32 {v(t)}, {f(c['k0'])}, {v(t)}")
            a(f"v_min_f32 {v(t)}, {f(cap)}, {v(t)}"); a(f"v_max_f32 {v(t)}, 0, {v(t)}")
            a(f"v_cmp_{'lt' if sign > 0 else 'gt'}_f32 vcc, {f(sign*th)}, {v(src)}")
            a(f"v_cvt_u32_f32 {v(t)}, {v(t)}"); a(f"v_add_u32 {v(t)}, {v(t)}, {v(Y)}")
            a(f"v_cndmask_b32 {v(dst)}, 0, {v(t)}, vcc")
        if c.get('g2') or c.get('l2'):
            a(f"v_min_u32 {v(CP)}, {v(E)}, {v(X)}"); a(f"v_max_u32 {v(X)}, {v(E)}, {v(X)}"); a(f"v_mov_b32 {v(E)}, {v(CP)}")
        a("s_mov_b64 exec, 1")
        a(f"ds_write_b64 {v(VZ)}, {v(E,2)} offset:{L_BOOST}")
        a("s_mov_b64 exec, -1")
        a(f"{Ls}:")
        a(f"v_mov_b32 {v(CP)}, {v(C)}")
        a(f"s_branch {L}")
        a(f"{Lo}:")
        if glob and self.diag: a(f"s_mov_b32 {s(S_ST+20)}, {s(16)}"); a(f"s_mov_b32 {s(S_ST+22)}, {s(15)}")

    def sw23(self):
        a = self.a
        VZ, VT, VA, T = self.VZ, self.VT, self.VA, self.T
        VP, VH, VB, VB2, OUT, SUM, W, HB, AW, AD, F, DD = 10, 11, 12, 13, 16, 20, 24, 56, 72, 104, 120, 152
        SZ, SFB, SCOL, SPUB, SP0, SHB, SLW = S_M+8, S_M+9, S_M+10, S_M+11, S_M, S_M+12, S_M+13
        a(f"s_and_b32 {s(SZ)}, {s(S_WAVE)}, 1")
        self.fblock(SFB, S_T1)
        a(f"s_and_b32 {s(SCOL)}, {s(S_S)}, 3"); a(f"s_lshl_b32 {s(SCOL)}, {s(SCOL)}, 1"); a(f"s_add_u32 {s(SCOL)}, {s(SCOL)}, {s(SZ)}")
        a(f"s_mul_i32 {s(SLW)}, {s(SZ)}, 12288")
        a(f"v_lshrrev_b32 {v(T)}, 4, v0"); a(f"v_lshl_add_u32 {v(T)}, {v(T)}, 10, {s(SLW)}")
        a(f"v_bfe_u32 {v(T+2)}, v0, 2, 2"); a(f"v_lshl_add_u32 {v(T)}, {v(T+2)}, 7, {v(T)}")
        a(f"v_and_b32 {v(T+2)}, 3, v0"); a(f"v_lshl_add_u32 {v(T)}, {v(T+2)}, 3, {v(T)}")
        a(f"s_lshl_b32 {s(S_T0)}, {s(S_H)}, 16"); a(f"s_add_u32 {s(S_T0)}, {s(S_T0)}, {OBOX:#x}")
        a(f"s_lshl_b32 {s(SPUB)}, {s(S_S)}, 11"); a(f"s_add_u32 {s(SPUB)}, {s(SPUB)}, {s(S_T0)}")
        a(f"s_lshr_b32 {s(S_T1)}, {s(S_S)}, 2"); a(f"s_lshl_b32 {s(S_T1)}, {s(S_T1)}, 8"); a(f"s_add_u32 {s(SP0)}, {s(S_T0)}, {s(S_T1)}")
        for k in range(1, 8): a(f"s_add_u32 {s(SP0+k)}, {s(SP0)}, {8192*k}")
        a(f"v_lshrrev_b32 {v(VP)}, 4, v0"); a(f"v_and_b32 {v(T+2)}, 0xf0, {v(VA)}"); a(f"v_lshl_add_u32 {v(VP)}, {v(VP)}, 11, {v(T+2)}")
        a(f"s_lshl_b32 {s(SHB)}, {s(SCOL)}, 15"); a(f"s_lshl_b32 {s(S_T1)}, {s(SFB)}, 7"); a(f"s_add_u32 {s(SHB)}, {s(SHB)}, {s(S_T1)}")
        a(f"s_add_u32 {s(SHB)}, {s(SHB)}, {HBOX:#x}")
        a(f"v_and_b32 {v(VH)}, 3, v0"); a(f"v_lshlrev_b32 {v(VH)}, 13, {v(VH)}")
        a(f"v_and_b32 {v(T+2)}, 4, v0"); a(f"v_lshl_add_u32 {v(VH)}, {v(T+2)}, 4, {v(VH)}")
        a(f"v_and_b32 {v(VB)}, 48, v0"); a(f"v_add_u32 {v(VH)}, {v(VH)}, {v(VB)}")
        def tr_ad():
            for t in range(4):
                for hf in range(2):
                    a(f"ds_read_b64_tr_b16 {v(AD+4*t+2*hf,2)}, {v(T)} offset:{L_W + 8192 + 512*hf + 32*t}")
        def tr_aw(t):
            for kk in range(2):
                for hf in range(2):
                    a(f"ds_read_b64_tr_b16 {v(AW+8*t+4*kk+2*hf,2)}, {v(T)} offset:{L_W + 4096*kk + 512*hf + 32*t}")
        def ffn_tags():
            a("s_mov_b32 exec_lo, 0x100010"); a("s_mov_b32 exec_hi, 0x100010")
            for t in range(4):
                self.tag(range(DD+4*t, DD+4*t+4), VT, dst=range(OUT, OUT+4))
                if t < 3: a("s_lshl_b64 exec, exec, 1")
            a("s_mov_b64 exec, -1")
        def wprep(less=0):
            if self.wprog:
                assert self.wsplit == 12
                a(f"s_waitcnt vmcnt({16 - less})")
                tr_ad()
                self.lgkm(0)
                for t in range(4): a(f"v_mfma_f32_16x16x32_bf16 {v(DD+4*t,4)}, {v(AD+4*t,4)}, {v(HB,4)}, 0")
                ffn_tags()
                for kk in range(2):
                    a(f"s_waitcnt vmcnt({12 - 4*kk - less})")
                    for t in range(4):
                        for hf in range(2):
                            a(f"ds_read_b64_tr_b16 {v(AW+8*t+4*kk+2*hf,2)}, {v(T)} offset:{L_W + 4096*kk + 512*hf + 32*t}")
                self.stamp(3)
                return
            if self.wdma:
                a(f"s_waitcnt vmcnt({9 if self.wsplit == 12 else 8})")
                tr_ad(); tr_aw(0)
                self.lgkm(4)
                for t in range(4): a(f"v_mfma_f32_16x16x32_bf16 {v(DD+4*t,4)}, {v(AD+4*t,4)}, {v(HB,4)}, 0")
                for t in range(1, 4): tr_aw(t)
                ffn_tags()
                self.stamp(3)
                return
            self.lds_wait(L_WCNT, 8, VZ, T+2)
            tr_ad()
            self.lds_wait(L_HFLAG, 1, VZ, T+2, [f"ds_read_b128 {v(HB,4)}, {v(VB)} offset:{L_H}"])
            for t in range(4): a(f"v_mfma_f32_16x16x32_bf16 {v(DD+4*t,4)}, {v(AD+4*t,4)}, {v(HB,4)}, 0")
            for t in range(4):
                tr_aw(t)
                if t == 1: a("s_waitcnt lgkmcnt(0)")
            ffn_tags()
            a("s_waitcnt lgkmcnt(0)")
            self.stamp(3)
        if self.wdma:
            VWA, VWD, SW0, SW1 = 14, 15, R4, R4+1
            a(f"v_lshrrev_b32 {v(T+1)}, 3, v0"); a(f"v_and_b32 {v(T+2)}, 0x70, {v(VA)}")
            a(f"v_lshl_add_u32 {v(VWD)}, {v(T+1)}, 10, {v(T+2)}")
            a(f"s_mul_i32 {s(S_T1)}, {s(SZ)}, {8*144}"); a(f"v_mul_u32_u24 {v(T+1)}, 144, {v(T+1)}"); a(f"v_add3_u32 {v(VWA)}, {v(T+1)}, {v(T+2)}, {s(S_T1)}")
            a(f"s_lshl_b32 {s(SW0)}, {s(S_H)}, 19"); a(f"s_lshr_b32 {s(S_T1)}, {s(S_S)}, 2"); a(f"s_lshl_b32 {s(S_T1)}, {s(S_T1)}, 14"); a(f"s_add_u32 {s(SW0)}, {s(SW0)}, {s(S_T1)}")
            a(f"s_lshl_b32 {s(S_T1)}, {s(SCOL)}, 7"); a(f"s_add_u32 {s(SW0)}, {s(SW0)}, {s(S_T1)}")
            a(f"s_lshl_b32 {s(SW1)}, {s(SFB)}, 15"); a(f"s_add_u32 {s(SW1)}, {s(SW1)}, {s(S_T1)}")
            a(f"s_add_u32 {s(SLW)}, {s(SLW)}, {L_W}")
            self.srd(R1, P_WO, 0x400000); self.srd(R2, P_WD, 0x1c0000)
            def touch_w():
                a("s_mov_b64 exec, 1")
                for h in range(4):
                    a(f"s_add_u32 {s(S_T1)}, {s(SW0)}, {0x20000*h}")
                    a(f"buffer_load_dword {v(T+3)}, {v(VZ)}, {s(R1,4)}, {s(S_T1)} offen {self.wpol}")
                a(f"buffer_load_dword {v(T+3)}, {v(VZ)}, {s(R2,4)}, {s(SW1)} offen {self.wpol}")
                a("s_mov_b64 exec, -1")
            if self.red2:
                XC, VOUT = 66, 67
                a(f"s_lshl_b32 {s(S_T0)}, {s(S_WG)}, 5"); a(f"s_lshl_b32 {s(S_T1)}, {s(SZ)}, 4"); a(f"s_add_u32 {s(S_T0)}, {s(S_T0)}, {s(S_T1)}")
                a(f"v_and_b32 {v(VOUT)}, 1, v0"); a(f"v_lshl_add_u32 {v(VOUT)}, {v(VOUT)}, 3, {s(S_T0)}")
                a(f"v_lshrrev_b32 {v(T+1)}, 4, v0"); a(f"v_lshl_add_u32 {v(VOUT)}, {v(T+1)}, 1, {v(VOUT)}")
                a(f"s_mov_b32 {s(P_X+2)}, 1024"); a(f"s_mov_b32 {s(P_X+3)}, 0x20000")
                a(f"buffer_load_ushort {v(XC)}, {v(VOUT)}, {s(P_X,4)}, 0 offen")
            if self.ctl: self.controller(SZ, nbar_=(self.ramp[0] if self.ramp else self.D) - 1)
            if self.wtouch == 1: touch_w()
            self.lds_wait(L_HFLAG, 1, VZ, T+2, [f"ds_read_b128 {v(HB,4)}, {v(VB)} offset:{L_H}"])
        worder = list(range(8, 12)) + list(range(8))
        def wload(js):
            for j in js:
                a(f"s_add_u32 m0, {s(SLW)}, {1024*j}")
                if j < 8:
                    a(f"buffer_load_dwordx4 {v(VWD)}, {s(R1,4)}, {s(SW0)} offen {self.wpol} lds")
                    a(f"s_add_u32 {s(SW0)}, {s(SW0)}, {0x20000 - 8192 if j & 1 else 8192:#x}")
                else:
                    a(f"buffer_load_dwordx4 {v(VWD)}, {s(R2,4)}, {s(SW1)} offen {self.wpol} lds")
                    a(f"s_add_u32 {s(SW1)}, {s(SW1)}, 8192")
        late = self.wpos > 56 or self.wdma
        if not late: wprep()
        if self.cut: return self.finish(T)
        if self.wtouch == 2: touch_w()
        loads = [(f"buffer_load_dwordx4 {v(W+4*k,4)}, {v(VP)}, {s(R0,4)}, {s(SP0+k)} offen sc1", W+4*k, 4) for k in range(8)]
        if self.touch and True:
            for ld in loads: a(ld[0])
        self.lds_wait(L_FFLAG, 1, VZ, T+2, [f"ds_read_b128 {v(F+4*w,4)}, {v(VZ)} offset:{L_F+16*w}" for w in range(8)])
        a(f"s_mov_b32 {s(S_M+14)}, {s(S_T3)}")
        if self.wtouch == 3: touch_w()
        a(f"s_lshl_b32 {s(S_T0)}, {s(SZ)}, 10"); a(f"v_add_u32 {v(VA)}, {s(S_T0)}, {v(VA)}")
        a(f"s_lshl_b32 {s(S_T0)}, {s(SZ)}, 7"); a(f"v_add_u32 {v(VB2)}, {s(S_T0)}, {v(VB)}"); a(f"v_lshl_add_u32 {v(T+1)}, v0, 1, {s(S_T0)}")
        if self.touch: a("s_waitcnt vmcnt(0)")
        if self.wdma and self.wsplit:
            self.lds_wait(L_WCNT, self.wcnt, VZ, T+2, sleep=0)
            wload(worder[:self.wsplit])
        self.stamp(4)
        if self.solo: a(f"v_mov_b32 {v(T+2)}, 1")
        a("s_barrier")
        self.stamp(5)
        for w in range(8): a(f"ds_read_b128 {v(W+4*w,4)}, {v(VWA)} offset:{L_O+OSTR*w}")
        for w in range(8):
            self.lgkm(7-w)
            for p in (0, 2):
                if w == 0: a(f"v_pk_mul_f32 {v(SUM+p,2)}, {v(W+p,2)}, {v(F+p,2)}")
                else: a(f"v_pk_fma_f32 {v(SUM+p,2)}, {v(W+4*w+p,2)}, {v(F+4*w+p,2)}, {v(SUM+p,2)}")
        if self.fast: a(f"s_cmp_eq_u32 {s(S_M+14)}, 2")
        if self.half:
            assert not self.clean
            F = SUM; self.tag(range(SUM, SUM+4), VT)
        else: self.tag(range(SUM, SUM+4), VT, dst=range(F, F+4))
        if self.fast:
            La, Lb = self.lab("h1l"), self.lab("h1j")
            a(f"s_cbranch_scc1 {La}")
            a(f"buffer_store_dwordx4 {v(F,4)}, {v(VA)}, {s(R0,4)}, {s(SPUB)} offen sc1")
            a(f"s_branch {Lb}")
            a(f"{La}:")
            a(f"buffer_store_dwordx4 {v(F,4)}, {v(VA)}, {s(R0,4)}, {s(SPUB)} offen")
            a(f"{Lb}:")
        else: a(f"buffer_store_dwordx4 {v(F,4)}, {v(VA)}, {s(R0,4)}, {s(SPUB)} offen sc1")
        self.stamp(6)
        if self.wdma: wload(worder[self.wsplit:])
        pre = late and (self.prepoll or self.wdma)
        if late and not pre: wprep()
        if self.solo:
            BO = HB
            L1, L2 = self.lab("solo1"), self.lab("solo2")
            breads = [f"ds_read_b128 {v(BO,4)}, {v(VB)} offset:{L_OB}", f"ds_read_b128 {v(BO+4,4)}, {v(VB)} offset:{L_OB+64}"]
            a(f"s_cmp_lg_u32 {s(SZ)}, 0"); a(f"s_cbranch_scc1 {L1}")
            if self.solo == 2:
                yr = [AD+4*k for k in range(4)] + [124+4*k for k in range(4)]
                Y = [(f"buffer_load_dwordx4 {v(yr[k],4)}, {v(VP)}, {s(R0,4)}, {s(SP0+k)} offen sc1", yr[k], 4) for k in range(8)]
                self.poll2(loads, Y, VT, T+3, SUM, between=wprep)
            else: self.poll(loads, VT, T+3, acc=SUM, between=wprep)
            self.stamp(7)
            self.fold4(SUM)
            a(f"v_cvt_pk_bf16_f32 {v(SUM)}, {v(SUM)}, {v(SUM)}")
            a(f"ds_write_b16 {v(T+1)}, {v(SUM)} offset:{L_OB}")
            a("s_mov_b64 exec, 1"); a(f"ds_write_b32 {v(VZ)}, {v(T+2)} offset:{L_OFLAG}"); a("s_mov_b64 exec, -1")
            for b in breads: a(b)
            a(f"s_branch {L2}")
            a(f"{L1}:")
            wprep(8)
            self.lds_wait(L_OFLAG, 1, VZ, T+2, breads, sleep=0)
            self.stamp(7)
            a(f"{L2}:")
        else:
            BO = W
            if self.pipe:
                yr = [AD+4*k for k in range(4)] + [124+4*k for k in range(4)]
                Y = [(f"buffer_load_dwordx4 {v(yr[k],4)}, {v(VP)}, {s(R0,4)}, {s(SP0+k)} offen sc1", yr[k], 4) for k in range(8)]
                self.poll2(loads, Y, VT, T+3, SUM, between=wprep)
                BO = HB
            elif self.light: self.gather8(loads, VT, HB+4, SUM, VP, SP0, 13, between=(wprep if pre else None))
            else: self.poll(loads, VT, T+3, acc=SUM, between=(wprep if pre else None))
            self.stamp(7)
            if self.rdelay == 1: a(f"v_mov_b32 {v(T+2)}, 1"); a(f"ds_write_b32 {v(VZ)}, {v(T+2)} offset:{L_PUB}")
            self.fold4(SUM)
            a(f"v_cvt_pk_bf16_f32 {v(SUM)}, {v(SUM)}, {v(SUM)}")
            a(f"ds_write_b16 {v(T+1)}, {v(SUM)} offset:{L_OB}")
            a(f"ds_read_b128 {v(BO,4)}, {v(VB2)} offset:{L_OB}"); a(f"ds_read_b128 {v(BO+4,4)}, {v(VB2)} offset:{L_OB+64}")
        a("s_mov_b32 exec_lo, 0x10001"); a("s_mov_b32 exec_hi, 0x10001")
        self.lgkm(1)
        for t in range(2): a(f"v_mfma_f32_16x16x32_bf16 {v(DD+4*t,4)}, {v(AW+8*t,4)}, {v(BO,4)}, 0")
        self.lgkm(0)
        for t in range(2): a(f"v_mfma_f32_16x16x32_bf16 {v(DD+4*t,4)}, {v(AW+8*t+4,4)}, {v(BO+4,4)}, {v(DD+4*t,4)}")
        for t in range(2, 4):
            a(f"v_mfma_f32_16x16x32_bf16 {v(DD+4*t,4)}, {v(AW+8*t,4)}, {v(BO,4)}, 0")
            a(f"v_mfma_f32_16x16x32_bf16 {v(DD+4*t,4)}, {v(AW+8*t+4,4)}, {v(BO+4,4)}, {v(DD+4*t,4)}")
        for t in range(4):
            self.tag(range(DD+4*t, DD+4*t+4), VT, dst=range(OUT, OUT+4))
            if t < 3: a("s_lshl_b64 exec, exec, 1")
        a("s_mov_b32 exec_lo, 0xff00ff"); a("s_mov_b32 exec_hi, 0xff00ff")
        a(f"buffer_store_dwordx4 {v(OUT,4)}, {v(VH)}, {s(R0,4)}, {s(SHB)} offen sc1")
        self.stamp(8)
        if self.red2:
            Lx = self.lab("tailend")
            G = SUM
            a(f"s_cmp_ge_u32 {s(S_WG)}, 32"); a(f"s_cbranch_scc1 {Lx}")
            a("s_mov_b64 exec, -1")
            a(f"v_lshrrev_b32 {v(VP)}, 2, v0"); a(f"v_lshlrev_b32 {v(VP)}, 7, {v(VP)}")
            a(f"v_and_b32 {v(T)}, 2, v0"); a(f"v_lshl_add_u32 {v(VP)}, {v(T)}, 5, {v(VP)}")
            a(f"v_and_b32 {v(T)}, 1, v0"); a(f"v_lshl_add_u32 {v(VP)}, {v(T)}, 4, {v(VP)}")
            a(f"s_lshl_b32 {s(S_T0)}, {s(S_WG)}, 13"); a(f"s_lshl_b32 {s(S_T1)}, {s(SZ)}, 5"); a(f"s_add_u32 {s(S_T0)}, {s(S_T0)}, {s(S_T1)}")
            a(f"s_add_u32 {s(S_T0)}, {s(S_T0)}, {HBOX:#x}"); a(f"s_add_u32 {s(S_T1)}, {s(S_T0)}, 4096")
            a(f"v_lshlrev_b32 {v(XC)}, 16, {v(XC)}")
            if self.pert:
                import struct
                a(f"v_cmp_eq_u32 vcc, 0, {v(VOUT)}"); a(f"v_add_f32 {v(T)}, {struct.unpack('<I', struct.pack('<f', self.pert))[0]:#x}, {v(XC)}")
                a(f"v_cndmask_b32 {v(XC)}, {v(XC)}, {v(T)}, vcc")
            self.srd(R1, P_OUT, 1024)
            mk = lambda r0: [(f"buffer_load_dwordx4 {v(r0+4*j,4)}, {v(VP)}, {s(R0,4)}, {s(S_T0+(j>>1))} offen offset:{2048*(j&1)} sc1", r0+4*j, 4) for j in range(4)]
            a("s_waitcnt vmcnt(0)")
            self.stamp(9)
            if self.red2 == 1: self.poll2(mk(W), mk(W+16), VT, T, G, quad=True)
            else: self.poll(mk(W), VT, T, acc=G, quad=True)
            self.stamp(10)
            self.fold4(G)
            self.ror("v_add_f32", [G], (4, 8))
            self.rbf1(G, G)
            self.silu_bf(G+1, G, T)
            a(f"v_mul_f32_dpp {v(G)}, {v(G+1)}, {v(G)} quad_perm:[2,3,2,3] row_mask:0xf bank_mask:0xf"); self.rbf1(G, G)
            a(f"v_add_f32 {v(G)}, {v(G)}, {v(XC)}"); a(f"v_cvt_pk_bf16_f32 {v(G)}, {v(G)}, {v(G)}")
            a("s_mov_b32 exec_lo, 0x30003"); a("s_mov_b32 exec_hi, 0x30003")
            a(f"buffer_store_short {v(G)}, {v(VOUT)}, {s(R1,4)}, 0 offen {self.outpol}")
            a(f"s_or_b32 {s(S_T0)}, {s(S_WG)}, {s(SZ)}"); a(f"s_cbranch_scc1 {Lx}")
            a("s_mov_b64 exec, 1")
            a(f"v_mov_b32 {v(T)}, {s(S_E)}")
            a(f"buffer_store_dword {v(T)}, {v(VZ)}, {s(R0,4)}, 0 offen offset:{EPOCH} {self.outpol}")
            a(f"{Lx}:")
            if self.diag: a("s_waitcnt vmcnt(0)")
            self.stamp(11)
            return self.finish(T)
        if self.rdelay >= 2:
            a(f"v_mov_b32 {v(T+2)}, 1"); a("s_mov_b64 exec, 1")
            if self.rdelay != 3: a("s_waitcnt vmcnt(0)")
            a(f"ds_add_u32 {v(VZ)}, {v(T+2)} offset:{L_PUB}")
        if self.fast and self.clean:
            a("s_mov_b64 exec, -1")
            a(f"buffer_store_dwordx4 {v(F,4)}, {v(VA)}, {s(R0,4)}, {s(SPUB)} offen sc1")
        if self.amp2:
            pa, pb, k = self.amp2
            a(f"s_add_u32 {s(S_T0)}, {s(S_WG)}, {s(SZ)}"); a(f"s_cmp_lg_u32 {s(S_T0)}, 0"); a("s_cbranch_scc1 Lamp2x")
            a("s_waitcnt lgkmcnt(0)")
            a(f"s_sub_u32 {s(S_T0)}, {s(S_ST+2*pb)}, {s(S_ST+2*pa)}"); a(f"s_mul_i32 {s(S_T0)}, {s(S_T0)}, {k}")
            a(f"s_min_u32 {s(S_T0)}, {s(S_T0)}, 100000")
            a("Lamp2:")
            a(f"s_memrealtime {s(S_ST+20,2)}"); a("s_waitcnt lgkmcnt(0)")
            a(f"s_sub_u32 {s(S_T1)}, {s(S_ST+20)}, {s(S_ST+16)}"); a(f"s_cmp_lt_u32 {s(S_T1)}, {s(S_T0)}"); a("s_cbranch_scc1 Lamp2")
            a("Lamp2x:")
        if self.diag: a("s_waitcnt vmcnt(0)")
        self.stamp(9)
        self.finish(T)

    def build(self):
        a = self.a
        hdr = open("recurrent_scan__gqa_block_cached__swiglu_ffn__decode.s.ref").read().split("; @launch")[0]
        a(f'.amdgcn_target "amdgcn-amd-amdhsa--gfx950"')
        a(".text"); a(f".globl {KN}"); a(".p2align 8"); a(f".type {KN},@function"); a(f"{KN}:")
        if not (self.pf and self.pfe): self.ebar = 0
        a(f"s_load_dwordx16 {s(4,16)}, s[0:1], 0")
        if self.diag or not self.ebar: a(f"s_load_dwordx8 {s(20,8)}, s[0:1], 64")
        a("s_cmp_ge_u32 s2, 256"); a("s_cbranch_scc1 Lend")
        if self.diag:
            for k in range(1, 12): a(f"s_mov_b32 {s(S_ST+2*k)}, 0")
        self.stamp(0)
        a("v_lshrrev_b32 v1, 6, v0"); a("v_and_b32 v0, 63, v0"); a(f"v_readfirstlane_b32 {s(S_WAVE)}, v1")
        a(f"s_and_b32 {s(S_H)}, s2, 7"); a(f"s_lshr_b32 {s(S_S)}, s2, 3")
        if self.pf and self.pfe:
            a(f"s_cmp_lt_u32 {s(S_WAVE)}, 8"); a("s_cbranch_scc1 Lstream")
            a("v_lshlrev_b32 v3, 4, v0")
            if self.ebar and not self.diag: a(f"s_load_dwordx8 {s(20,8)}, s[0:1], 64")
            self.prefetch(3, 72)
            if self.ebar: a("s_barrier")
            a("s_branch Lservice")
            a("Lstream:")
        else:
            a(f"s_cmp_ge_u32 {s(S_WAVE)}, 8"); a("s_cbranch_scc1 Lservice")
        self.streamer()
        a("Lservice:")
        if self.prio: a("s_setprio 3")
        a(f"s_mov_b32 {s(S_HI)}, 0xffff0000"); a(f"s_mov_b32 {s(S_TM)}, {(1 << self.tagbits) - 1:#x}")
        self.stage1()
        a(f"s_cmp_eq_u32 {s(S_WAVE)}, 9"); a("s_cbranch_scc1 Lsw1")
        a(f"s_cmp_gt_u32 {s(S_WAVE)}, 9"); a("s_cbranch_scc1 Lsw23")
        self.sw0()
        a("Lsw23:"); self.sw23()
        a("Lsw1:"); self.sw1()
        a("Lend:"); a("s_endpgm")
        a("Lcode_end:")
        a(".fill 64, 4, 0xbf800000")
        a('.section .rodata,"a"'); a(".p2align 6"); a(f".amdhsa_kernel {KN}")
        for d in ("next_free_vgpr 168", "next_free_sgpr 102", "accum_offset 168", "group_segment_fixed_size 0", "kernarg_size 96",
                  "user_sgpr_count 2", "user_sgpr_kernarg_segment_ptr 1", "system_sgpr_workgroup_id_x 1", "float_denorm_mode_32 3"):
            a(f".amdhsa_{d}")
        a(".end_amdhsa_kernel")
        return hdr + f"; @launch grid=(256,1,1) block=(768,1,1) lds={LDS_BYTES + self.ldspad}\n" + DOC + a.finalize()

def gen(**kw): return G(**kw).build()
if __name__ == "__main__":
    kw = eval("dict(" + (sys.argv[2] if len(sys.argv) > 2 else "") + ")")
    open(sys.argv[1], "w").write(gen(**kw))
```

```python
import sys
from asmlib import Asm
KN = "recurrent_scan__gqa_block_cached__swiglu_ffn__decode_kernel"

EPOCH = 0
QBOX, MLBOX, PBOX, XBOX, GBOX, OBOX, HBOX = 0x1000, 0x9000, 0xB000, 0xC000, 0x10000, 0x20000, 0xA0000
WS_USED = 0xE0000
STAMP = 128 << 20
L_QFLAG, L_MLCNT, L_FFLAG, L_S1CNT, L_PROG, L_HFLAG, L_ACNT, L_WCNT = 0, 4, 8, 12, 16, 20, 24, 28
L_CNT, L_PUB, L_BOOST, L_OFLAG = 32, 36, 40, 48
L_ML, L_F, L_H, L_Q, L_S1, L_OB, L_O = 64, 320, 448, 512, 1536, 2560, 2816
OSTR = 16*144
L_W = L_O + 8*OSTR
L_A = L_O
LDS_BYTES = L_W + 2*12288
SPIN = 1 << 16

LOG2E = 0x3fb8aa3b
SCALE = 0x3db504f3
EPS = 0x3727c5ac

DOC = '''; ------------------------------------------------------------------------------------------------
;
; Workgroup (H = id & 7, S = id >> 3) owns 1024 keys of KV head H. 12 waves:
;   waves 0-7  "streamers": 128 keys each. K (all of it) then V go straight to registers, a few 1 KiB
;              They also fetch the stage-1 weight tile (wq or w_gate/w_up) into LDS.
;              max / sum inside the head group -> per-wave factors exp(m_w - M) / L
;
; it, so results do not depend on its value. Writers use sc1 (write-through) stores, or ordinary stores
; ------------------------------------------------------------------------------------------------
'''

def v(i, n=1): return f"v{i}" if n == 1 else f"v[{i}:{i+n-1}]"
def s(i, n=1): return f"s{i}" if n == 1 else f"s[{i}:{i+n-1}]"

S_WG, S_WAVE = 2, 3
P_X, P_K, P_V, P_WQ, P_WO, P_BX, P_WG, P_WU, P_WD, P_OUT, P_DBG, P_WS = range(4, 28, 2)
R0, R1, R2, R3, R4 = 28, 32, 36, 40, 44
S_H, S_S = 48, 49
S_T0, S_T1, S_T2, S_T3 = 50, 51, 52, 53
S_HI, S_TM, S_LO, S_HIS = 54, 55, 56, 57
S_CNT, S_E = 58, 59
S_M = 60
S_ST = 76

class G:
    def __init__(self, D=3, D2=3, nD2=58, n0=28, il=12, kvpol="nt", wpol="nt", diag=0, pf=1, nq=16, nm=56, g_trig=44,
                 outpol="", prio=1, touch=0, cut=0, amp=None, trace=0, ramp=None, wpos=64, apos=1, smooth=1, wlate=0, prepoll=0, fast=1, clean=0, wdma=1, rot=1, agap=1, light=0, ldspad=0, hsleep=0, pipe=1, wsplit=12, wtouch=0, otouch=0, ctl=1, qk2=1, hello=5, wprog=1, tagbits=6, plo=3, amp2=None, pfe=1, pf2=0, afake=0, rdelay=2, wdrain=None, pfirst=0, solo=2, dirty=0, red2=1, ebar=1, qgap=1, early=1, strip=1, wcnt=8, half=1, whole=1, oseq=1, vtouch=0):
        self.__dict__.update(locals()); del self.__dict__['self']
        self.a = Asm(); self.nlab = 0
        assert self.wdma
        if self.ctl == 1: self.ctl = dict(to=68, bth=0, bg=0.5, bcap=5, tth=4, tg=0.15, tcap=0, lead=0, exit=62, **{'from': 8})
    def lab(self, p):
        self.nlab += 1; return f"L{p}{self.nlab}"
    def srd(self, r, ptr, size):
        a = self.a
        a(f"s_mov_b32 {s(r)}, {s(ptr)}"); a(f"s_mov_b32 {s(r+1)}, {s(ptr+1)}")
        a(f"s_mov_b32 {s(r+2)}, {size:#x}"); a(f"s_mov_b32 {s(r+3)}, 0x20000")
    def stamp(self, k):
        if self.diag or self.amp or self.amp2: self.a(f"s_memrealtime {s(S_ST+2*k,2)}")
    def lgkm(self, n):
        self.a(f"s_waitcnt lgkmcnt({0 if (self.diag or self.amp or self.amp2) else n})")
    def finish(self, vt):
        a = self.a
        if self.diag:
            a("s_waitcnt lgkmcnt(0)")
            a(f"s_mul_i32 {s(S_T0)}, {s(S_WG)}, 12"); a(f"s_add_u32 {s(S_T0)}, {s(S_T0)}, {s(S_WAVE)}")
            a(f"s_lshl_b32 {s(S_T0)}, {s(S_T0)}, 6"); a(f"s_add_u32 {s(S_T0)}, {s(S_T0)}, {STAMP:#x}")
            a("s_mov_b64 exec, 1")
            a(f"v_mov_b32 {v(vt)}, {s(S_T0)}")
            for k in range(12):
                a(f"v_mov_b32 {v(vt+1)}, {s(S_ST+2*k)}")
                a(f"global_store_dword {v(vt)}, {v(vt+1)}, {s(P_WS,2)} offset:{4*k}")
            a("s_waitcnt vmcnt(0)")
        a("s_endpgm")
    def unpack(self, lo, hi, src):
        self.a(f"v_lshlrev_b32 {v(lo)}, 16, {v(src)}"); self.a(f"v_and_b32 {v(hi)}, {s(S_HI)}, {v(src)}")
    def rbf1(self, dst, src):
        self.a(f"v_cvt_pk_bf16_f32 {v(dst)}, {v(src)}, {v(src)}"); self.a(f"v_and_b32 {v(dst)}, {s(S_HI)}, {v(dst)}")
    def rbf2(self, d0, d1, s0, s1, t):
        self.a(f"v_cvt_pk_bf16_f32 {v(t)}, {v(s0)}, {v(s1)}"); self.unpack(d0, d1, t)
    def ror(self, op, regs, steps):
        for n in steps:
            for r in regs: self.a(f"{op}_dpp {v(r)}, {v(r)}, {v(r)} row_ror:{n} row_mask:0xf bank_mask:0xf")
    def rows_all(self, op, x, t):
        a = self.a
        for sw in ("v_permlane16_swap_b32", "v_permlane32_swap_b32"):
            a(f"v_mov_b32 {v(t)}, {v(x)}"); a(f"{sw} {v(x)}, {v(t)}"); a(f"{op} {v(x)}, {v(x)}, {v(t)}")
    def fold(self, sw, pairs):
        for x, y in pairs: self.a(f"{sw} {v(x)}, {v(y)}")
        for x, y in pairs: self.a(f"v_add_f32 {v(x)}, {v(x)}, {v(y)}")
    def fold4(self, x):
        self.fold("v_permlane32_swap_b32", [(x, x+2), (x+1, x+3)])
        self.fold("v_permlane16_swap_b32", [(x, x+1)])
    def silu_bf(self, dst, x, t):
        a = self.a
        a(f"v_mul_f32 {v(t)}, {0x80000000 ^ LOG2E:#x}, {v(x)}"); a(f"v_exp_f32 {v(t)}, {v(t)}")
        a(f"v_add_f32 {v(t)}, 1.0, {v(t)}"); a(f"v_rcp_f32 {v(t)}, {v(t)}"); a(f"v_mul_f32 {v(t)}, {v(x)}, {v(t)}")
        self.rbf1(dst, t)
    def layernorm(self, X, XF, T):
        a = self.a
        for k in range(4): self.unpack(XF+2*k, XF+2*k+1, X+k)
        a(f"v_add_f32 {v(T)}, {v(XF)}, {v(XF+1)}")
        for k in range(2, 8): a(f"v_add_f32 {v(T)}, {v(T)}, {v(XF+k)}")
        self.ror("v_add_f32", [T], (8, 4, 2, 1)); self.rows_all("v_add_f32", T, T+1)
        a(f"v_mul_f32 {v(T)}, 0x3b000000, {v(T)}")
        a(f"v_sub_f32 {v(T+2)}, {v(XF)}, {v(T)}"); a(f"v_mul_f32 {v(T+3)}, {v(T+2)}, {v(T+2)}")
        for k in range(1, 8):
            a(f"v_sub_f32 {v(T+2)}, {v(XF+k)}, {v(T)}"); a(f"v_fmac_f32 {v(T+3)}, {v(T+2)}, {v(T+2)}")
        self.ror("v_add_f32", [T+3], (8, 4, 2, 1)); self.rows_all("v_add_f32", T+3, T+1)
        a(f"v_mul_f32 {v(T+3)}, 0x3b000000, {v(T+3)}")
        self.rbf2(T, T+3, T, T+3, T+1)
        a(f"v_add_f32 {v(T+3)}, {EPS:#x}, {v(T+3)}"); self.rbf1(T+3, T+3)
        a(f"v_sqrt_f32 {v(T+3)}, {v(T+3)}"); self.rbf1(T+3, T+3)
        a(f"v_rcp_f32 {v(T+2)}, {v(T+3)}")
        for k in range(8): a(f"v_sub_f32 {v(XF+k)}, {v(XF+k)}, {v(T)}")
        for k in range(4): self.rbf2(XF+2*k, XF+2*k+1, XF+2*k, XF+2*k+1, T+1)
        for k in range(8):
            a(f"v_mul_f32 {v(T+4)}, {v(XF+k)}, {v(T+2)}")
            a(f"v_fma_f32 {v(T+5)}, -{v(T+4)}, {v(T+3)}, {v(XF+k)}")
            a(f"v_fma_f32 {v(XF+k)}, {v(T+5)}, {v(T+2)}, {v(T+4)}")
        for k in range(4): self.rbf2(XF+2*k, XF+2*k+1, XF+2*k, XF+2*k+1, T+1)
    def tag(self, regs, vT, dst=None):
        for i, r in enumerate(regs):
            d = r if dst is None else dst[i]
            if self.half and len(regs) == 4 and not i & 1:
                if d != r: self.a(f"v_mov_b32 {v(d)}, {v(r)}")
            else: self.a(f"v_bfi_b32 {v(d)}, {s(S_TM)}, {v(vT)}, {v(r)}")
    def words(self, t, r0, n, vT, first):
        a = self.a
        if not self.strip:
            for w in range(r0, r0+n):
                if first: a(f"v_xor_b32 {v(t)}, {v(w)}, {v(vT)}"); first = False
                else: a(f"v_bitop3_b32 {v(t)}, {v(w)}, {v(vT)}, {v(t)} bitop3:0xbe")
            return
        if self.half and n == 4:
            for w in (r0+1, r0+3): a(f"v_xor_b32 {v(w)}, {v(w)}, {v(vT)}")
            if first: a(f"v_or_b32 {v(t)}, {v(r0+1)}, {v(r0+3)}")
            else: a(f"v_or3_b32 {v(t)}, {v(r0+1)}, {v(r0+3)}, {v(t)}")
            return
        for w in range(r0, r0+n): a(f"v_xor_b32 {v(w)}, {v(w)}, {v(vT)}")
        for w in range(r0, r0+n, 2):
            if first: a(f"v_or_b32 {v(t)}, {v(w)}, {v(w+1)}"); first = False
            else: a(f"v_or3_b32 {v(t)}, {v(w)}, {v(w+1)}, {v(t)}")
    def joint(self, t, quad=False):
        perms = ["quad_perm:[1,0,3,2]", "quad_perm:[2,3,0,1]"] + ([] if quad else ["row_half_mirror"])
        if self.whole: return
        if quad or self.tagbits < 10:
            for p in perms: self.a(f"v_or_b32_dpp {v(t)}, {v(t)}, {v(t)} {p} row_mask:0xf bank_mask:0xf")
    def poll(self, loads, vT, t, acc=None, between=None, quad=False):
        a = self.a; L = self.lab("poll"); Lo = self.lab("pollx")
        if between:
            Lc = self.lab("pollc")
            for ld in loads: a(ld[0])
            between()
            a(f"s_mov_b32 {s(S_CNT)}, {SPIN}")
            a(f"s_branch {Lc}")
        else: a(f"s_mov_b32 {s(S_CNT)}, {SPIN}")
        a(f"{L}:")
        for ld in loads: a(ld[0])
        if between: a(f"{Lc}:")
        first = True
        for j, (_, r0, n) in enumerate(loads):
            a(f"s_waitcnt vmcnt({len(loads)-1-j})")
            self.words(t, r0, n, vT, first); first = False
            if j == len(loads) - 1:
                self.joint(t, quad)
                a(f"v_and_b32 {v(t)}, {s(S_TM)}, {v(t)}")
                a(f"v_cmp_ne_u32 vcc, 0, {v(t)}")
            if acc is not None and j >= 1:
                p = loads[0][1] if j == 1 else acc
                a(f"v_pk_add_f32 {v(acc,2)}, {v(p,2)}, {v(r0,2)}"); a(f"v_pk_add_f32 {v(acc+2,2)}, {v(p+2,2)}, {v(r0+2,2)}")
        if self.whole:
            a(f"s_cbranch_vccz {Lo}")
            a(f"s_sub_u32 {s(S_CNT)}, {s(S_CNT)}, 1")
            a(f"s_cbranch_scc0 {L}")
            a(f"{Lo}:")
            a("s_nop 0")
            return
        a(f"s_sub_u32 {s(S_CNT)}, {s(S_CNT)}, 1")
        a(f"s_cbranch_scc1 {Lo}")
        a("s_mov_b64 exec, vcc")
        if acc is not None and self.hsleep:
            a(f"s_cbranch_execz {Lo}"); a(f"s_sleep {self.hsleep}"); a(f"s_branch {L}")
        else: a(f"s_cbranch_execnz {L}")
        a(f"{Lo}:")
        a("s_mov_b64 exec, -1")
    def poll2(self, X, Y, vT, t, acc, between=None, quad=False):
        a = self.a; L = self.lab("pp"); Lo = self.lab("ppx")
        n = len(X)
        def check(loads, out=2):
            first = True
            for j, (_, r0, nr) in enumerate(loads):
                a(f"s_waitcnt vmcnt({out*n-1-j})")
                self.words(t, r0, nr, vT, first); first = False
                if j >= 1:
                    p = loads[0][1] if j == 1 else acc
                    a(f"v_pk_add_f32 {v(acc,2)}, {v(p,2)}, {v(r0,2)}"); a(f"v_pk_add_f32 {v(acc+2,2)}, {v(p+2,2)}, {v(r0+2,2)}")
                if j == n - 1:
                    self.joint(t, quad)
                    a(f"v_and_b32 {v(t)}, {s(S_TM)}, {v(t)}")
                    a(f"v_cmp_ne_u32 vcc, 0, {v(t)}")
            if not self.whole: a("s_mov_b64 exec, vcc")
        for ld in X: a(ld[0])
        if between:
            between()
            if self.pfirst:
                check(X, 1)
                a(f"s_cbranch_{'vccz' if self.whole else 'execz'} {Lo}")
                for ld in X: a(ld[0])
        a(f"s_mov_b32 {s(S_CNT)}, {SPIN}")
        a(f"{L}:")
        for ld in Y: a(ld[0])
        check(X)
        a(f"s_cbranch_{'vccz' if self.whole else 'execz'} {Lo}")
        for ld in X: a(ld[0])
        check(Y)
        if self.whole:
            a(f"s_cbranch_vccz {Lo}")
            a(f"s_sub_u32 {s(S_CNT)}, {s(S_CNT)}, 1")
            a(f"s_cbranch_scc0 {L}")
            a(f"{Lo}:")
            return
        a(f"s_sub_u32 {s(S_CNT)}, {s(S_CNT)}, 1")
        a(f"s_cbranch_scc1 {Lo}")
        a(f"s_cbranch_execnz {L}")
        a(f"{Lo}:")
        a("s_mov_b64 exec, -1")
    def gather8(self, loads, vT, t, acc, vaddr, soff, lg, between=None):
        a = self.a; L = self.lab("lp"); Lo = self.lab("lpx")
        P, R, J, B, A = t+1, t+2, t+3, t+4, t+5
        for ld in loads: a(ld[0])
        if between: between()
        first = True
        for j, (_, r0, n) in enumerate(loads):
            a(f"s_waitcnt vmcnt({len(loads)-1-j})")
            for w in range(r0, r0+n):
                if first: a(f"v_xor_b32 {v(t)}, {v(w)}, {v(vT)}"); first = False
                else: a(f"v_bitop3_b32 {v(t)}, {v(w)}, {v(vT)}, {v(t)} bitop3:0xbe")
            if j == len(loads) - 1:
                a(f"v_and_b32 {v(t)}, {s(S_TM)}, {v(t)}")
                a(f"v_cmp_ne_u32 vcc, 0, {v(t)}")
            if j >= 1:
                p = loads[0][1] if j == 1 else acc
                a(f"v_pk_add_f32 {v(acc,2)}, {v(p,2)}, {v(r0,2)}"); a(f"v_pk_add_f32 {v(acc+2,2)}, {v(p+2,2)}, {v(r0+2,2)}")
        a(f"s_cbranch_vccz {Lo}")
        for r in range(acc, acc+4): a(f"v_mov_b32 {v(r)}, 0")
        a(f"v_mov_b32 {v(P)}, 0")
        def check(q):
            a(f"v_xor_b32 {v(t)}, {v(q)}, {v(vT)}")
            for w in range(q+1, q+4): a(f"v_bitop3_b32 {v(t)}, {v(w)}, {v(vT)}, {v(t)} bitop3:0xbe")
            a(f"v_and_b32 {v(t)}, {s(S_TM)}, {v(t)}")
            a(f"v_cmp_eq_u32 vcc, 0, {v(t)}")
        for j, (_, r0, n) in enumerate(loads):
            check(r0)
            a("s_mov_b64 exec, vcc")
            a(f"v_pk_add_f32 {v(acc,2)}, {v(acc,2)}, {v(r0,2)}"); a(f"v_pk_add_f32 {v(acc+2,2)}, {v(acc+2,2)}, {v(r0+2,2)}")
            a("s_not_b64 exec, vcc")
            a(f"v_or_b32 {v(P)}, {1 << j}, {v(P)}")
            a("s_mov_b64 exec, -1")
        Q = loads[0][1]
        a(f"v_mov_b32 {v(R)}, {v(P)}")
        a(f"v_cmp_ne_u32 vcc, 0, {v(P)}")
        a(f"s_mov_b32 {s(S_CNT)}, {SPIN*4}")
        a("s_mov_b64 exec, vcc")
        a(f"{L}:")
        a(f"v_ffbl_b32 {v(J)}, {v(R)}")
        a(f"v_lshl_add_u32 {v(A)}, {v(J)}, {lg}, {v(vaddr)}")
        a(f"buffer_load_dwordx4 {v(Q,4)}, {v(A)}, {s(R0,4)}, {s(soff)} offen sc1")
        a(f"v_lshlrev_b32 {v(B)}, {v(J)}, 1")
        a(f"v_xor_b32 {v(R)}, {v(R)}, {v(B)}")
        a(f"s_sub_u32 {s(S_CNT)}, {s(S_CNT)}, 1")
        a(f"s_cbranch_scc1 {Lo}")
        a("s_waitcnt vmcnt(0)")
        check(Q)
        a(f"s_and_saveexec_b64 {s(S_T2,2)}, vcc")
        a(f"v_xor_b32 {v(P)}, {v(P)}, {v(B)}")
        a(f"v_pk_add_f32 {v(acc,2)}, {v(acc,2)}, {v(Q,2)}"); a(f"v_pk_add_f32 {v(acc+2,2)}, {v(acc+2,2)}, {v(Q+2,2)}")
        a(f"s_mov_b64 exec, {s(S_T2,2)}")
        a(f"v_cmp_eq_u32 {s(S_T2,2)}, 0, {v(R)}")
        a(f"v_cmp_ne_u32 vcc, 0, {v(P)}")
        a(f"v_cndmask_b32 {v(R)}, {v(R)}, {v(P)}, {s(S_T2,2)}")
        a("s_mov_b64 exec, vcc")
        a(f"s_cbranch_execnz {L}")
        a(f"{Lo}:")
        a("s_mov_b64 exec, -1")
    def lds_wait(self, off, val, vz, t, extra=(), sleep=1):
        a = self.a; L = self.lab("lw"); Lo = self.lab("lwx")
        a(f"s_mov_b32 {s(S_CNT)}, {SPIN*16}")
        a(f"{L}:")
        a(f"ds_read_b32 {v(t)}, {v(vz)} offset:{off}")
        for e in extra: a(e)
        a("s_waitcnt lgkmcnt(0)")
        a(f"v_readfirstlane_b32 {s(S_T3)}, {v(t)}")
        a(f"s_cmp_ge_u32 {s(S_T3)}, {val}")
        a(f"s_cbranch_scc1 {Lo}")
        a(f"s_sub_u32 {s(S_CNT)}, {s(S_CNT)}, 1")
        a(f"s_cbranch_scc1 {Lo}")
        if sleep: a(f"s_sleep {sleep}")
        a(f"s_branch {L}")
        a(f"{Lo}:")
    def pub(self, text, sfast):
        a = self.a
        La, Lb = self.lab("pl"), self.lab("pj")
        a(f"s_cmp_eq_u32 {s(sfast)}, 2"); a(f"s_cbranch_scc1 {La}")
        a(text + " sc1"); a(f"s_branch {Lb}")
        a(f"{La}:"); a(text); a(f"{Lb}:")
    def trig(self, what, vz, t):
        if what == "q": self.lds_wait(L_QFLAG, 1, vz, t)
        elif what == "ml": self.lds_wait(L_MLCNT, 8, vz, t)
        elif isinstance(what, int) and what > 0: self.lds_wait(L_PROG, what, vz, t)
    def streamer(self):
        a = self.a
        VK, VV, VZ, VT, VT2 = 1, 2, 3, 4, 5
        Q, S, DT, KB = 8, 12, 20, 36
        slot = lambda i: KB + 4*i
        ACC, AO, B = slot(16), slot(18), slot(23)
        SB = S_T0
        a("; ==== streamer: lane offsets (K: quad-permuted 1 KiB, V: linear), descriptors, paced load sequence ====")
        a(f"s_lshl_b32 {s(SB)}, {s(S_H)}, 23"); a(f"s_lshl_b32 {s(S_T1)}, {s(S_S)}, 18"); a(f"s_or_b32 {s(SB)}, {s(SB)}, {s(S_T1)}")
        a(f"s_lshl_b32 {s(S_T1)}, {s(S_WAVE)}, {self.il}"); a(f"s_or_b32 {s(SB)}, {s(SB)}, {s(S_T1)}")
        if self.rot == 1: a(f"s_lshl_b32 {s(S_M+9)}, {s(S_S)}, 15")
        if self.rot == 2: a(f"s_add_u32 {s(S_M+9)}, {s(S_S)}, {s(S_H)}"); a(f"s_lshl_b32 {s(S_M+9)}, {s(S_M+9)}, 15")
        a(f"v_lshlrev_b32 {v(VV)}, 4, v0")
        a(f"v_and_b32 {v(VT)}, 0xc0, {v(VV)}"); a(f"v_lshlrev_b32 {v(VT)}, 2, {v(VT)}")
        a(f"v_lshrrev_b32 {v(VK)}, 4, v0"); a(f"v_lshlrev_b32 {v(VK)}, 6, {v(VK)}")
        a(f"v_and_b32 {v(VT2)}, 48, {v(VV)}")
        a(f"v_or3_b32 {v(VK)}, {v(VK)}, {v(VT)}, {v(VT2)}")
        a(f"v_mov_b32 {v(VZ)}, 0")
        if not self.early:
            a("s_waitcnt lgkmcnt(0)")
            self.srd(R0, P_K, 0x4000000); self.srd(R1, P_V, 0x4000000)
        def off(i):
            if self.il == 12: return (i >> 2) * 32768, (i & 3) * 1024
            return i * 8192, 0
        last_so = [None]
        VWA, VWD = 6, 7
        SA, SW0, SW1, SSTR = S_M+5, S_M+6, S_M+7, S_M+4
        def regs(it):
            k, i = it
            return {'K': slot(i), 'V': slot(i % 16), 'A': slot(28 + i), 'W': (DT + 4*i if self.wpos > 40 else slot(28 + i))}[k]
        def setup_a():
            a("; stage-1 tile geometry")
            a(f"s_lshr_b32 {s(S_M)}, {s(S_WAVE)}, 1")
            self.s1_geom(True)
            a(f"s_and_b32 {s(S_T3)}, {s(S_WAVE)}, 1"); a(f"s_lshl_b32 {s(S_T3)}, {s(S_T3)}, 2"); a(f"s_add_u32 {s(S_T3)}, {s(S_T3)}, {s(S_M+3)}")
            a(f"s_mul_i32 {s(S_T3)}, {s(S_T3)}, {s(SSTR)}"); a(f"s_lshl_b32 {s(SA)}, {s(S_T2)}, 7"); a(f"s_add_u32 {s(SA)}, {s(SA)}, {s(S_T3)}")
            a(f"v_and_b32 {v(VT)}, 56, v0"); a(f"v_mul_u32_u24 {v(VT)}, {s(SSTR)}, {v(VT)}")
            a(f"v_and_b32 {v(VT2)}, 0x70, {v(VV)}"); a(f"v_add_u32 {v(VWA)}, {v(VT)}, {v(VT2)}")
            if self.afake:
                lg = 3 + self.afake
                a(f"v_lshrrev_b32 {v(VT)}, {lg}, v0"); a(f"v_mul_u32_u24 {v(VT)}, {s(SSTR)}, {v(VT)}")
                a(f"v_and_b32 {v(VT2)}, {(16 << lg) - 16:#x}, {v(VV)}"); a(f"v_add_u32 {v(VWA)}, {v(VT)}, {v(VT2)}")
                a(f"s_and_b32 {s(S_T3)}, {s(S_S)}, 15"); a(f"s_lshl_b32 {s(S_T3)}, {s(S_T3)}, 3"); a(f"s_add_u32 {s(S_T3)}, {s(S_T3)}, {s(S_WAVE)}")
                a(f"s_and_b32 {s(SA)}, {s(S_T3)}, {(8 >> self.afake) - 1}"); a(f"s_lshl_b32 {s(SA)}, {s(SA)}, {7 + self.afake}")
                a(f"s_lshr_b32 {s(S_T3)}, {s(S_T3)}, {3 - self.afake}"); a(f"s_lshl_b32 {s(S_T3)}, {s(S_T3)}, {5 - self.afake}")
                a(f"s_mul_i32 {s(S_T3)}, {s(S_T3)}, {s(SSTR)}"); a(f"s_add_u32 {s(SA)}, {s(SA)}, {s(S_T3)}")
                a(f"s_cmp_ge_u32 {s(S_S)}, 16"); a(f"s_cselect_b32 {s(S_T3)}, 7, 16"); a(f"s_lshl_b32 {s(S_T3)}, {s(S_T3)}, 6"); a(f"s_mul_i32 {s(S_T3)}, {s(S_T3)}, {s(S_H)}"); a(f"s_and_b32 {s(S_T3)}, {s(S_T3)}, 0xffffff80")
                a(f"s_add_u32 {s(SA)}, {s(SA)}, {s(S_T3)}")
                a(f"s_lshl_b32 {s(SSTR)}, {s(SSTR)}, {3 - self.afake}")
        def setup_w():
            a(f"s_and_b32 {s(S_T2)}, {s(S_S)}, 3"); a(f"s_lshl_b32 {s(S_T2)}, {s(S_T2)}, 1"); a(f"s_lshr_b32 {s(S_T3)}, {s(S_WAVE)}, 2")
            a(f"s_add_u32 {s(S_T2)}, {s(S_T2)}, {s(S_T3)}"); a(f"s_lshl_b32 {s(S_T2)}, {s(S_T2)}, 7")
            a(f"s_lshl_b32 {s(SW0)}, {s(S_H)}, 19"); a(f"s_lshr_b32 {s(S_T3)}, {s(S_S)}, 2"); a(f"s_lshl_b32 {s(S_T3)}, {s(S_T3)}, 10")
            a(f"s_add_u32 {s(SW0)}, {s(SW0)}, {s(S_T3)}"); a(f"s_add_u32 {s(SW0)}, {s(SW0)}, {s(S_T2)}")
            self.fblock(SW1, S_T3)
            a(f"s_lshl_b32 {s(SW1)}, {s(SW1)}, 15"); a(f"s_add_u32 {s(SW1)}, {s(SW1)}, {s(S_T2)}")
            a(f"s_and_b32 {s(S_T2)}, {s(S_WAVE)}, 3")
            a(f"s_lshl_b32 {s(S_T3)}, {s(S_T2)}, 16"); a(f"s_add_u32 {s(SW0)}, {s(SW0)}, {s(S_T3)}")
            a(f"s_lshl_b32 {s(S_T3)}, {s(S_T2)}, 13"); a(f"s_add_u32 {s(SW1)}, {s(SW1)}, {s(S_T3)}")
            self.srd(R2, P_WO, 0x400000); self.srd(R3, P_WD, 0x1c0000)
            a(f"v_lshrrev_b32 {v(VT)}, 3, v0"); a(f"v_and_b32 {v(VT2)}, 0x70, {v(VV)}")
            a(f"v_lshl_add_u32 {v(VWD)}, {v(VT)}, 10, {v(VT2)}"); a(f"v_lshl_add_u32 {v(VWA)}, {v(VT)}, 13, {v(VT2)}")
        def load(it):
            k, i = it
            r = v(regs(it), 4)
            if k in 'KV':
                so, imm = off(i)
                if so != last_so[0]:
                    if self.rot:
                        a(f"s_add_u32 {s(S_T1)}, {s(S_M+9)}, {so}"); a(f"s_and_b32 {s(S_T1)}, {s(S_T1)}, 0x38000"); a(f"s_or_b32 {s(S_T1)}, {s(S_T1)}, {s(SB)}")
                    else: a(f"s_add_u32 {s(S_T1)}, {s(SB)}, {so}")
                    last_so[0] = so
                a(f"buffer_load_dwordx4 {r}, {v(VV if k == 'V' else VK)}, {s(R1 if k == 'V' else R0,4)}, {s(S_T1)} offen offset:{imm} {self.kvpol}")
            elif k == 'A':
                if i == 0 and not self.early: setup_a()
                if i == 0 and self.early:
                    if self.early == 2: setup_a()
                    a(f"s_cmp_ge_u32 {s(S_WAVE)}, 4")
                    a(f"s_cselect_b32 {s(R2)}, {s(P_WU)}, {s(P_WG)}"); a(f"s_cselect_b32 {s(R2+1)}, {s(P_WU+1)}, {s(P_WG+1)}")
                    a(f"s_cmp_ge_u32 {s(S_S)}, 16")
                    a(f"s_cselect_b32 {s(R2)}, {s(R2)}, {s(P_WQ)}"); a(f"s_cselect_b32 {s(R2+1)}, {s(R2+1)}, {s(P_WQ+1)}")
                a(f"buffer_load_dwordx4 {r}, {v(VWA)}, {s(R2,4)}, {s(SA)} offen {self.wpol}")
                if i < 3: a(f"s_add_u32 {s(SA)}, {s(SA)}, {s(SSTR)}")
            else:
                if i < 2: a(f"buffer_load_dwordx4 {r}, {v(VWA)}, {s(R2,4)}, {s(SW0)} offen {self.wpol}")
                else: a(f"buffer_load_dwordx4 {r}, {v(VWD)}, {s(R3,4)}, {s(SW1)} offen {self.wpol}")
                if i == 0: a(f"s_add_u32 {s(SW0)}, {s(SW0)}, 0x40000")
        def count(off_):
            a(f"v_mov_b32 {v(VT2)}, 1"); a("s_mov_b64 exec, 1"); a(f"ds_add_u32 {v(VZ)}, {v(VT2)} offset:{off_}"); a("s_mov_b64 exec, -1")
        def put_a():
            a("; stage-1 tiles -> LDS")
            a(f"s_lshl_b32 {s(S_T2)}, {s(S_WAVE)}, 12"); a(f"v_add_u32 {v(VT)}, {s(S_T2)}, {v(VV)}")
            for i in range(4): a(f"ds_write_b128 {v(VT)}, {v(regs(('A', i)),4)} offset:{L_A + 1024*i}")
            count(L_ACNT)
            if not self.wdma: setup_w()
            if self.dirty:
                a(f"s_mul_i32 {s(S_T2)}, {s(S_WG)}, 8"); a(f"s_add_u32 {s(S_T2)}, {s(S_T2)}, {s(S_WAVE)}"); a(f"s_lshl_b32 {s(S_T2)}, {s(S_T2)}, 10")
                a(f"s_add_u32 {s(S_T2)}, {s(S_T2)}, 0x400000"); a(f"v_add_u32 {v(VT)}, {s(S_T2)}, {v(VV)}")
        def put_w():
            a(f"s_lshr_b32 {s(S_T2)}, {s(S_WAVE)}, 2"); a(f"s_mul_i32 {s(S_T2)}, {s(S_T2)}, 12288")
            a(f"s_and_b32 {s(S_T3)}, {s(S_WAVE)}, 3"); a(f"s_lshl_b32 {s(S_T3)}, {s(S_T3)}, 10"); a(f"s_add_u32 {s(S_T2)}, {s(S_T2)}, {s(S_T3)}")
            a(f"v_add_u32 {v(VT)}, {s(S_T2)}, {v(VV)}")
            for i in range(3): a(f"ds_write_b128 {v(VT)}, {v(regs(('W', i)),4)} offset:{L_W + 4096*i}")
            count(L_WCNT)
        def qk(j):
            for m in range(4):
                a(f"v_mfma_f32_16x16x32_bf16 {v(DT+4*m,4)}, {v(slot(4*j+m),4)}, {v(Q,4)}, 0")
            if self.qk2:
                if j == 0:
                    for m in range(1, 4):
                        a(f"s_mov_b32 {s(P_X+2*m)}, {(15 << 4*m) * 0x10001:#x}"); a(f"s_mov_b32 {s(P_X+2*m+1)}, {(15 << 4*m) * 0x10001:#x}")
                for k in range(1, 4):
                    for m in range(4):
                        b = (m + k) & 3
                        a(f"v_add_f32_dpp {v(DT+5*m)}, {v(DT+4*m+b)}, {v(DT+5*m)} row_ror:{(4*(m-b)) & 15} row_mask:0xf bank_mask:0xf")
                for m in range(1, 4):
                    a(f"v_cndmask_b32 {v(S+j)}, {v(DT if m == 1 else S+j)}, {v(DT+5*m)}, {s(P_X+2*m,2)}")
                return
            for k in range(1, 4):
                for m in range(4):
                    b = (m + k) & 3
                    other = DT+4*m+m if k == 1 else S+j
                    a(f"v_add_f32_dpp {v(S+j)}, {v(DT+4*m+b)}, {v(other)} row_ror:{(4*(m-b)) & 15} row_mask:0xf bank_mask:{1<<m:#x}")
        M, Lr = DT, DT+1
        def sm_scale(k):
            if k == 0: a(f"s_mov_b32 {s(S_M+8)}, {SCALE:#x}")
            x, y = S+2*k, S+2*k+1
            self.rbf2(x, y, x, y, VT)
            a(f"v_mul_f32 {v(x)}, {s(S_M+8)}, {v(x)}"); a(f"v_mul_f32 {v(y)}, {s(S_M+8)}, {v(y)}")
            self.rbf2(x, y, x, y, VT)
        def sm_max():
            a("; true row max over this wave's 128 keys")
            a(f"v_max3_f32 {v(M)}, {v(S)}, {v(S+1)}, {v(S+2)}"); a(f"v_max3_f32 {v(M)}, {v(M)}, {v(S+3)}, {v(S+4)}")
            a(f"v_max3_f32 {v(M)}, {v(M)}, {v(S+5)}, {v(S+6)}"); a(f"v_max_f32 {v(M)}, {v(M)}, {v(S+7)}")
            self.ror("v_max_f32", [M], (4, 8)); self.rows_all("v_max_f32", M, VT)
        def sm_exp():
            a(f"s_mov_b32 {s(S_T2)}, {LOG2E:#x}")
            for k in range(8): a(f"v_sub_f32 {v(S+k)}, {v(S+k)}, {v(M)}")
            for k in range(8): a(f"v_mul_f32 {v(S+k)}, {s(S_T2)}, {v(S+k)}")
            for k in range(8): a(f"v_exp_f32 {v(S+k)}, {v(S+k)}")
        def sm_sum():
            a(f"v_add_f32 {v(Lr)}, {v(S)}, {v(S+1)}")
            for k in range(2, 8): a(f"v_add_f32 {v(Lr)}, {v(Lr)}, {v(S+k)}")
            self.ror("v_add_f32", [Lr], (4, 8)); self.rows_all("v_add_f32", Lr, VT)
            a(f"s_lshl_b32 {s(S_T2)}, {s(S_WAVE)}, 5")
            a(f"v_lshl_add_u32 {v(VT)}, v0, 2, {s(S_T2)}"); a(f"v_mov_b32 {v(VT2)}, 1")
            a("s_mov_b64 exec, 15")
            a(f"ds_write2_b32 {v(VT)}, {v(M)}, {v(Lr)} offset0:{L_ML//4} offset1:{L_ML//4+4}")
            a("s_mov_b64 exec, 1")
            a(f"ds_add_u32 {v(VZ)}, {v(VT2)} offset:{L_MLCNT}")
            a("s_mov_b64 exec, -1")
        def zero_acc():
            a(f"s_mul_i32 {s(S_T2)}, {s(S_WAVE)}, {OSTR}")
            a(f"v_and_b32 {v(VT)}, 15, v0"); a(f"v_mul_u32_u24 {v(VT)}, 144, {v(VT)}"); a(f"v_and_b32 {v(VWD)}, 48, v0")
            a(f"v_add3_u32 {v(VWD)}, {v(VWD)}, {v(VT)}, {s(S_T2)}")
            for r in range(ACC, ACC+8): a(f"v_mov_b32 {v(r)}, 0")
            for r in range(AO, AO+16): a(f"v_mov_b32 {v(r)}, 0")
            if self.plo:
                for r in range(DT, DT+16): a(f"v_mov_b32 {v(r)}, 0")
        AL = DT
        def build_lo(j):
            a(f"v_cvt_pk_bf16_f32 {v(VT)}, {v(S+2*j)}, {v(S+2*j+1)}")
            self.unpack(Q, Q+1, VT)
            a(f"v_sub_f32 {v(Q)}, {v(S+2*j)}, {v(Q)}"); a(f"v_sub_f32 {v(Q+1)}, {v(S+2*j+1)}, {v(Q+1)}")
            a(f"v_cvt_pk_bf16_f32 {v(VT)}, {v(Q)}, {v(Q+1)}")
            for m in range(4):
                for e in range(4):
                    n = (4*(e-m)) & 15
                    ctl = f"row_ror:{n}" if n else "quad_perm:[0,1,2,3]"
                    a(f"v_mov_b32_dpp {v(AL+4*e+m)}, {v(VT)} {ctl} row_mask:0xf bank_mask:{1<<e:#x}")
        def build_a(j):
            a(f"v_cvt_pk_bf16_f32 {v(VT)}, {v(S+2*j)}, {v(S+2*j+1)}")
            for m in range(4):
                for e in range(4):
                    n = (4*(e-m)) & 15
                    ctl = f"row_ror:{n}" if n else "quad_perm:[0,1,2,3]"
                    a(f"v_mov_b32_dpp {v(AO+4*e+m)}, {v(VT)} {ctl} row_mask:0xf bank_mask:{1<<e:#x}")
        def perm1(j, m, e):
            lo, hi = slot((8*j+m) % 16), slot((8*j+4+m) % 16)
            a(f"v_perm_b32 {v(B+4*e+m)}, {v(hi+(e>>1))}, {v(lo+(e>>1))}, {s(S_HIS if e & 1 else S_LO)}")
        def mfma_pv(e, j):
            acc = ACC + 4*(e >> 2)
            a(f"v_mfma_f32_16x16x32_bf16 {v(acc,4)}, {v(AO+4*(e&3),4)}, {v(B+4*e,4)}, {v(acc,4)}")
            if j < self.plo: a(f"v_mfma_f32_16x16x32_bf16 {v(acc,4)}, {v(AL+4*(e&3),4)}, {v(B+4*e,4)}, {v(acc,4)}")
        def pv_last(j, mid=None):
            order = [0, 4, 1, 5, 2, 6, 3, 7] if mid is None else list(range(8))
            for k in range(3): perm1(j, 3, order[k])
            for k in range(8):
                mfma_pv(order[k], j)
                if k + 3 < 8: perm1(j, 3, order[k+3])
            if mid: mid()
        def qwait():
            a("; wait for q (B operand of QK^T)")
            a(f"v_and_b32 {v(VT2)}, 3, v0"); a(f"v_lshlrev_b32 {v(VT2)}, 8, {v(VT2)}")
            a(f"v_and_b32 {v(VT)}, 0xc0, {v(VV)}"); a(f"v_lshrrev_b32 {v(VT)}, 2, {v(VT)}")
            a(f"v_and_b32 {v(DT)}, 0x300, {v(VV)}"); a(f"v_lshrrev_b32 {v(DT)}, 2, {v(DT)}")
            a(f"v_or3_b32 {v(VT2)}, {v(VT2)}, {v(VT)}, {v(DT)}")
            self.stamp(2)
            if not self.cut: self.lds_wait(L_QFLAG, 1, VZ, VT, [f"ds_read_b128 {v(Q,4)}, {v(VT2)} offset:{L_Q}"])
            self.stamp(3)
        kv = [('K', i) for i in range(32)] + [('V', i) for i in range(32)]
        seq = kv[:self.apos] + [('A', i) for i in range(4)] + kv[self.apos:self.wpos] + [('W', i) for i in range(0 if self.wdma else 3)] + kv[self.wpos:]
        if self.agap:
            seq = [x for x in seq if x[0] != 'A']
            for i in range(4): seq.insert(self.apos + i*(self.agap + 1), ('A', i))
        pos = {it: n for n, it in enumerate(seq)}
        N = len(seq)
        def owrite():
            a("; last PV group, partial o -> LDS")
            self.stamp(7)
            pv_last(3, (lambda: None) if self.oseq else None)
            a(f"ds_write_b128 {v(VWD)}, {v(ACC,4)} offset:{L_O}")
            a(f"ds_write_b128 {v(VWD)}, {v(ACC+4,4)} offset:{L_O+64}")
            a("s_waitcnt lgkmcnt(0)")
            a("s_barrier")
            if self.dirty:
                a(f"s_mul_i32 {s(S_T2)}, {s(S_WG)}, 8"); a(f"s_add_u32 {s(S_T2)}, {s(S_T2)}, {s(S_WAVE)}"); a(f"s_lshl_b32 {s(S_T2)}, {s(S_T2)}, 10")
                a(f"s_add_u32 {s(S_T2)}, {s(S_T2)}, 0x400000"); a(f"v_add_u32 {v(VT)}, {s(S_T2)}, {v(VV)}")
                a(f"s_cmp_ge_u32 {s(S_WAVE)}, {self.dirty}"); a("s_cbranch_scc1 Lnodirty")
                a(f"global_store_dwordx4 {v(VT)}, {v(ACC,4)}, {s(P_WS,2)}")
                a("Lnodirty:")
        p0 = pos[('K', self.n0)]
        tasks = [(p0, -1, [], qwait)]
        for j in range(8):
            tasks.append((p0 + int(j*self.qgap), pos[('K', 4*j+3)], [('K', 4*j+m) for m in range(4)], lambda j=j: qk(j)))
            if j & 1: tasks.append((0, -1, [], lambda j=j: sm_scale(j >> 1)))
        for f in (sm_max, sm_exp, sm_sum, zero_acc): tasks.append(('next', -1, [], f))
        for j in range(4):
            tasks.append(('next', -1, [], lambda j=j: build_a(j)))
            if j < self.plo: tasks.append(('next', -1, [], lambda j=j: build_lo(j)))
            for m in range(3): tasks.append(('next', pos[('V', 8*j+4+m)], [('V', 8*j+m), ('V', 8*j+4+m)], lambda j=j, m=m: [perm1(j, m, e) for e in range(8)]))
            tasks.append(('next', pos[('V', 8*j+7)], [('V', 8*j+3), ('V', 8*j+7)], (lambda j=j: pv_last(j)) if j < 3 else owrite))
        side = [(0, pos[('A', 3)], [('A', i) for i in range(4)], put_a)]
        if not self.wdma: side.append((0, pos[('W', 2)], [('W', i) for i in range(3)], put_w))
        trigs = {pos[kv[t]]: t for t in (self.nq, self.nm, self.g_trig) if isinstance(t, int) and t > 0}
        def Dn(n):
            if self.ramp and n < len(self.ramp): return self.ramp[n]
            return self.D2 if (self.D2 and n >= self.nD2) else self.D
        nbar = (self.ramp[0] if self.ramp else self.D) - 1
        busy = {}; landed = -1
        def run(n):
            for q in (side, tasks):
                did = False
                while q and q[0][1] <= landed:
                    e = q[0][0]
                    if e == 'next':
                        if did and n < 99 and self.smooth: break
                    elif e > n: break
                    t = q.pop(0); t[3](); did = True
                    for x in t[2]: busy.pop(regs(x))
        NM = N - 3 if self.wlate else N
        if self.early:
            if self.early == 1: setup_a()
            for r in (R0, R1): a(f"s_mov_b32 {s(r+2)}, 0x4000000"); a(f"s_mov_b32 {s(r+3)}, 0x20000")
            assert seq[0] == ('K', 0) and self.rot
            a(f"s_and_b32 {s(S_T1)}, {s(S_M+9)}, 0x38000"); a(f"s_or_b32 {s(S_T1)}, {s(S_T1)}, {s(SB)}"); last_so[0] = 0
        SK, SJ, VB, V1 = S_M+10, S_M+11, 164, 167
        if self.ctl:
            a(f"s_mov_b32 {s(SK)}, {self.ctl.get('init', 0)}"); a(f"s_mov_b32 {s(SJ)}, 0"); a(f"v_mov_b32 {v(V1)}, 1")
        if self.early:
            a("s_waitcnt lgkmcnt(0)")
            a(f"s_mov_b64 {s(R0,2)}, {s(P_K,2)}")
        for n in range(NM):
            if self.early and n == 1: a(f"s_mov_b64 {s(R1,2)}, {s(P_V,2)}")
            if self.ctl and self.ctl['from'] <= n < self.ctl['to']:
                Lb = self.lab("win"); D = Dn(n)
                two = self.ctl.get('g2') or (self.ctl.get('l2') and n >= self.ctl.get('l2from', 0))
                top = D + (2 if two else 1)
                if n - top > landed: a(f"s_waitcnt vmcnt({top-1})"); landed = n - top
                if n & 1:
                    a("s_waitcnt lgkmcnt(0)"); a(f"v_readfirstlane_b32 {s(SK)}, {v(VB)}"); a(f"v_readfirstlane_b32 {s(SJ)}, {v(VB+1)}")
                a(f"s_cmp_gt_u32 {s(SJ if (self.ctl.get('l2') and not two) else SK)}, {n}"); a(f"s_cbranch_scc1 {Lb}")
                a(f"s_waitcnt vmcnt({top-2})")
                if two:
                    a(f"s_cmp_gt_u32 {s(SJ)}, {n}"); a(f"s_cbranch_scc1 {Lb}")
                    a(f"s_waitcnt vmcnt({top-3})")
                elif self.ctl['tcap']:
                    a(f"s_cmp_le_u32 {s(SJ)}, {n}"); a(f"s_cbranch_scc1 {Lb}")
                    a(f"s_waitcnt vmcnt({D-2})")
                a(f"{Lb}:")
            elif n - Dn(n) > landed:
                a(f"s_waitcnt vmcnt({Dn(n)-1})"); landed = n - Dn(n)
            assert regs(seq[n]) not in busy, (n, seq[n])
            busy[regs(seq[n])] = n
            load(seq[n])
            if self.trace and seq[n] in kv:
                m = kv.index(seq[n])
                if m: a("s_waitcnt lgkmcnt(0)"); a(f"v_writelane_b32 v166, s100, {m-1}")
                a("s_memrealtime s[100:101]")
            if n == nbar:
                a(f"s_mov_b32 {s(S_HI)}, 0xffff0000"); a(f"s_mov_b32 {s(S_LO)}, 0x05040100"); a(f"s_mov_b32 {s(S_HIS)}, 0x07060302")
                if self.ebar:
                    Lb = self.lab("flags")
                    a(f"s_cmp_lg_u32 {s(S_WAVE)}, 0"); a(f"s_cbranch_scc1 {Lb}")
                    a(f"v_lshlrev_b32 {v(VT)}, 2, v0")
                    a("s_mov_b64 exec, 0xffff")
                    a(f"ds_write_b32 {v(VT)}, {v(VZ)}")
                    a("s_mov_b64 exec, -1")
                    a("s_waitcnt lgkmcnt(0)")
                    a(f"{Lb}:")
                a("s_barrier")
            if self.ctl and nbar <= n < self.ctl['to']:
                a("s_mov_b64 exec, 1"); a(f"ds_add_u32 {v(VZ)}, {v(V1)} offset:{L_CNT}"); a("s_mov_b64 exec, -1")
                if not n & 1: a(f"ds_read_b64 {v(VB,2)}, {v(VZ)} offset:{L_BOOST}")
            if n in trigs:
                a(f"v_mov_b32 {v(VT)}, {trigs[n]}"); a("s_mov_b64 exec, 1"); a(f"ds_max_u32 {v(VZ)}, {v(VT)} offset:{L_PROG}"); a("s_mov_b64 exec, -1")
            if self.wdma and self.wdrain is None and seq[n] == kv[min(63, self.wpos - 1)]: count(L_WCNT)
            if n == nbar + 1: self.stamp(1)
            if landed == pos[('K', 31)]: self.stamp(4)
            run(n)
        issued = NM
        while landed < N - 1:
            landed += 1
            now = issued < N and landed == NM - self.wlate
            sig = self.wdrain is not None and N - 1 - landed == self.wdrain
            if not now and not sig and not any(q and q[0][1] <= landed for q in (side, tasks)): continue
            a(f"s_waitcnt vmcnt({issued - 1 - landed})")
            if sig: count(L_WCNT)
            if now:
                for n in range(NM, N):
                    busy[regs(seq[n])] = n; load(seq[n])
                issued = N
            run(99)
        assert not tasks and not side
        self.stamp(8)
        if self.trace:
            a(f"s_mul_i32 {s(S_T0)}, {s(S_WG)}, 8"); a(f"s_add_u32 {s(S_T0)}, {s(S_T0)}, {s(S_WAVE)}")
            a(f"s_lshl_b32 {s(S_T0)}, {s(S_T0)}, 8"); a(f"s_add_u32 {s(S_T0)}, {s(S_T0)}, {STAMP + (1<<20):#x}")
            a(f"v_lshl_add_u32 {v(VT)}, v0, 2, {s(S_T0)}")
            a(f"global_store_dword {v(VT)}, v166, {s(P_WS,2)}")
        self.finish(VT)

    def prefetch(self, VA, R):
        a = self.a
        Lp = self.lab("nopf")
        a(f"s_cmp_ge_u32 {s(S_S)}, {self.pf}"); a(f"s_cbranch_scc1 {Lp}")
        a(f"s_getpc_b64 {s(R4,2)}")
        a(f"Lpc:")
        a(f"s_sub_u32 {s(R4)}, {s(R4)}, Lpc-{KN}"); a(f"s_subb_u32 {s(R4+1)}, {s(R4+1)}, 0")
        a(f"s_mov_b32 {s(R4+2)}, Lcode_end-{KN}"); a(f"s_mov_b32 {s(R4+3)}, 0x20000")
        a(f"s_and_b32 {s(S_T0)}, {s(S_WAVE)}, 3"); a(f"s_lshl_b32 {s(S_T0)}, {s(S_T0)}, 10")
        for k in range(5):
            a(f"buffer_load_dwordx4 {v(R+4*k,4)}, {v(VA)}, {s(R4,4)}, {s(S_T0)} offen")
            if k < 4: a(f"s_add_u32 {s(S_T0)}, {s(S_T0)}, 4096")
        a(f"{Lp}:")

    def s1_geom(self, loader):
        a = self.a
        SZ, SCB, SRB, SROW, SSTR = S_M, S_M+1, S_M+2, S_M+3, S_M+4
        Lf, Lj = self.lab("s1ffn"), self.lab("s1join")
        a(f"s_cmp_ge_u32 {s(S_S)}, 16"); a(f"s_cbranch_scc1 {Lf}")
        a(f"s_and_b32 {s(SCB)}, {s(S_S)}, 7"); a(f"s_lshr_b32 {s(SRB)}, {s(S_S)}, 3")
        a(f"s_lshl_b32 {s(SROW)}, {s(SRB)}, 2"); a(f"s_add_u32 {s(SROW)}, {s(SROW)}, {s(SZ)}"); a(f"s_lshl_b32 {s(SROW)}, {s(SROW)}, 6")
        if loader:
            a(f"s_mov_b32 {s(SSTR)}, 8192")
            a(f"s_lshl_b32 {s(S_T2)}, {s(S_H)}, 3"); a(f"s_add_u32 {s(S_T2)}, {s(S_T2)}, {s(SCB)}")
            if self.early: a(f"s_mov_b32 {s(R2+2)}, 0x400000"); a(f"s_mov_b32 {s(R2+3)}, 0x20000")
            else: self.srd(R2, P_WQ, 0x400000)
        a(f"s_branch {Lj}")
        a(f"{Lf}:")
        if self.hello in (1, 3, 5): a(f"s_sub_u32 {s(S_T2)}, {s(S_S)}, 16"); a(f"s_lshl_b32 {s(S_T3)}, {s(S_H)}, 4"); a(f"s_add_u32 {s(S_T2)}, {s(S_T2)}, {s(S_T3)}")
        else: a(f"s_sub_u32 {s(S_T2)}, {s(S_S)}, 16"); a(f"s_lshl_b32 {s(S_T2)}, {s(S_T2)}, 3"); a(f"s_add_u32 {s(S_T2)}, {s(S_T2)}, {s(S_H)}")
        a(f"s_lshr_b32 {s(SCB)}, {s(S_T2)}, 2"); a(f"s_and_b32 {s(SRB)}, {s(S_T2)}, 3")
        a(f"s_and_b32 {s(S_T3)}, {s(SZ)}, 1")
        a(f"s_lshl_b32 {s(SROW)}, {s(SRB)}, 1"); a(f"s_add_u32 {s(SROW)}, {s(SROW)}, {s(S_T3)}"); a(f"s_lshl_b32 {s(SROW)}, {s(SROW)}, 6")
        if loader:
            a(f"s_mov_b32 {s(SSTR)}, 3584")
            a(f"s_mov_b32 {s(S_T2)}, {s(SCB)}")
            if not self.early:
                a(f"s_cmp_ge_u32 {s(SZ)}, 2")
                a(f"s_cselect_b32 {s(R2)}, {s(P_WU)}, {s(P_WG)}"); a(f"s_cselect_b32 {s(R2+1)}, {s(P_WU+1)}, {s(P_WG+1)}")
            a(f"s_cmp_lt_u32 {s(SCB)}, 28")
            a(f"s_cselect_b32 {s(R2+2)}, 0x1c0000, 0"); a(f"s_mov_b32 {s(R2+3)}, 0x20000")
        a(f"{Lj}:")

    VZ, VT, VA, T = 1, 2, 3, 4
    def stage1(self):
        a = self.a
        VZ, VT, VA, T = self.VZ, self.VT, self.VA, self.T
        X, XF, XR, ACC, W = 12, 16, 24, 32, 40
        SZ, SCB, SRB, SROW, SSTR = S_M, S_M+1, S_M+2, S_M+3, S_M+4
        a(f"s_and_b32 {s(SZ)}, {s(S_WAVE)}, 3")
        a(f"v_mov_b32 {v(VZ)}, 0"); a(f"v_lshlrev_b32 {v(VA)}, 4, v0")
        if self.pf and not self.pfe: self.prefetch(VA, W+32)
        self.s1_geom(False)
        a("s_waitcnt lgkmcnt(0)")
        self.srd(R0, P_WS, WS_USED); self.srd(R1, P_X, 1024)
        a(f"buffer_load_dwordx4 {v(X,4)}, {v(VA)}, {s(R1,4)}, 0 offen")
        a(f"buffer_load_dword {v(VT)}, {v(VZ)}, {s(R0,4)}, 0 offen offset:{EPOCH}")
        if not self.ebar:
            Lb = self.lab("s1b")
            a(f"s_cmp_lg_u32 {s(SZ)}, 0"); a(f"s_cbranch_scc1 {Lb}")
            a(f"v_lshlrev_b32 {v(T+2)}, 2, v0")
            a("s_mov_b64 exec, 0xffff")
            a(f"ds_write_b32 {v(T+2)}, {v(VZ)}")
            a("s_mov_b64 exec, -1")
            a("s_waitcnt lgkmcnt(0)")
            a(f"{Lb}:")
            a("s_barrier")
        a("s_waitcnt vmcnt(1)")
        self.stamp(1)
        self.layernorm(X, XF, T)
        a(f"s_lshr_b32 {s(S_T0)}, {s(SROW)}, 1")
        a(f"v_lshrrev_b32 {v(T)}, 3, v0"); a(f"v_lshl_add_u32 {v(T)}, {v(T)}, 2, {s(S_T0)}")
        for j in range(8): a(f"ds_bpermute_b32 {v(XR+j)}, {v(T)}, {v(XF+j)}")
        a("s_waitcnt vmcnt(0)")
        a(f"v_add_u32 {v(VT)}, 1, {v(VT)}"); a(f"v_readfirstlane_b32 {s(S_E)}, {v(VT)}")
        a(f"v_and_b32 {v(VT)}, {s(S_TM) if self.strip else '0x3ff'}, {v(VT)}")
        if self.hello:
            Lh = self.lab("hello")
            a(f"s_cmp_lg_u32 {s(SZ)}, 0"); a(f"s_cbranch_scc1 {Lh}")
            a(f"s_getreg_b32 {s(S_M+5)}, hwreg(HW_REG_XCC_ID, 0, 4)"); a(f"s_lshl_b32 {s(S_T0)}, {s(S_E)}, 4"); a(f"s_or_b32 {s(S_M+5)}, {s(S_M+5)}, {s(S_T0)}")
            a(f"s_lshl_b32 {s(S_M+7)}, {s(S_H)}, 7"); a(f"s_add_u32 {s(S_M+7)}, {s(S_M+7)}, {XBOX:#x}")
            a(f"s_lshl_b32 {s(S_T0)}, {s(S_S)}, 2"); a(f"s_add_u32 {s(S_T0)}, {s(S_T0)}, {s(S_M+7)}")
            a(f"v_mov_b32 {v(T+2)}, {s(S_M+5)}")
            a("s_mov_b64 exec, 1")
            a(f"buffer_store_dword {v(T+2)}, {v(VZ)}, {s(R0,4)}, {s(S_T0)} offen" + ("" if self.hello >= 4 else " sc1"))
            a("s_mov_b64 exec, -1")
            a(f"{Lh}:")
        a(f"s_lshl_b32 {s(S_T0)}, {s(SZ)}, 13"); a(f"v_add_u32 {v(T)}, {s(S_T0)}, {v(VA)}")
        self.lds_wait(L_ACNT, 8, VZ, T+1)
        for j in range(8): a(f"ds_read_b128 {v(W+4*j,4)}, {v(T)} offset:{L_A+1024*j}")
        for j in range(8):
            self.lgkm(7-j)
            for k in range(4):
                self.unpack(T, T+1, W+4*j+k)
                op = "v_mul_f32" if j == 0 else "v_fmac_f32"
                a(f"{op} {v(ACC+2*k)}, {v(XR+j)}, {v(T)}"); a(f"{op} {v(ACC+2*k+1)}, {v(XR+j)}, {v(T+1)}")
        self.fold("v_permlane32_swap_b32", [(ACC+e, ACC+e+4) for e in range(4)])
        self.fold("v_permlane16_swap_b32", [(ACC+e, ACC+e+2) for e in range(2)])
        self.ror("v_add_f32", [ACC, ACC+1], (8,))
        a(f"s_lshl_b32 {s(S_T0)}, {s(SZ)}, 8")
        a(f"v_and_b32 {v(T)}, 7, v0"); a(f"v_lshl_add_u32 {v(T)}, {v(T)}, 5, {s(S_T0)}")
        a(f"v_lshrrev_b32 {v(T+1)}, 4, v0"); a(f"v_lshl_add_u32 {v(T)}, {v(T+1)}, 3, {v(T)}")
        a(f"v_mov_b32 {v(T+1)}, 1")
        a("s_mov_b32 exec_lo, 0xff00ff"); a("s_mov_b32 exec_hi, 0xff00ff")
        a(f"ds_write_b64 {v(T)}, {v(ACC,2)} offset:{L_S1}")
        a("s_mov_b64 exec, 1")
        a(f"ds_add_u32 {v(VZ)}, {v(T+1)} offset:{L_S1CNT}")
        a("s_mov_b64 exec, -1")
        self.stamp(2)

    def sw0(self):
        a = self.a
        VZ, VT, VA, T = self.VZ, self.VT, self.VA, self.T
        XF, W = 16, 40
        SZ, SCB, SRB = S_M, S_M+1, S_M+2
        def hello_check():
            a(f"v_and_b32 {v(T+4)}, 31, v0"); a(f"v_lshlrev_b32 {v(T+4)}, 2, {v(T+4)}")
            a(f"buffer_load_dword {v(T+5)}, {v(T+4)}, {s(R0,4)}, {s(S_M+7)} offen sc1")
            a("s_waitcnt vmcnt(0)")
            a(f"v_cmp_ne_u32 vcc, {s(S_M+5)}, {v(T+5)}")
            a("s_cmp_eq_u64 vcc, 0"); a(f"s_cselect_b32 {s(S_M+6)}, 2, 1")
        if self.hello:
            assert self.hello >= 4
            self.lds_wait(L_S1CNT, 4, VZ, T+1)
            hello_check()
        a(f"v_and_b32 {v(T)}, 0xf0, {v(VA)}"); a(f"v_and_b32 {v(T+2)}, 16, v0"); a(f"v_lshl_add_u32 {v(T)}, {v(T+2)}, 5, {v(T)}")
        self.lds_wait(L_S1CNT, 4, VZ, T+1, [f"ds_read_b128 {v(W,4)}, {v(T)} offset:{L_S1}", f"ds_read_b128 {v(W+4,4)}, {v(T)} offset:{L_S1+256}"])
        a(f"v_pk_add_f32 {v(W,2)}, {v(W,2)}, {v(W+4,2)}"); a(f"v_pk_add_f32 {v(W+2,2)}, {v(W+2,2)}, {v(W+6,2)}")
        Lf, Lj = self.lab("c1ffn"), self.lab("c1join")
        a(f"s_cmp_ge_u32 {s(S_S)}, 16"); a(f"s_cbranch_scc1 {Lf}")
        for r in range(4): a(f"v_mov_b32 {v(W+4+r)}, {v(W+r)}")
        self.fold("v_permlane16_swap_b32", [(W+r, W+4+r) for r in range(4)])
        a(f"v_and_b32 {v(T)}, 0xf0, {v(VA)}")
        a(f"s_lshl_b32 {s(S_T1)}, {s(S_H)}, 12"); a(f"s_lshl_b32 {s(S_T2)}, {s(SRB)}, 11"); a(f"s_add_u32 {s(S_T1)}, {s(S_T1)}, {s(S_T2)}")
        a(f"s_lshl_b32 {s(S_T2)}, {s(SCB)}, 8"); a(f"s_add_u32 {s(S_T1)}, {s(S_T1)}, {s(S_T2)}"); a(f"s_add_u32 {s(S_T1)}, {s(S_T1)}, {QBOX:#x}")
        a("s_mov_b64 exec, 0xffff")
        a(f"s_branch {Lj}")
        a(f"{Lf}:")
        a(f"v_and_b32 {v(T)}, 8, v0"); a(f"v_lshlrev_b32 {v(T)}, 7, {v(T)}")
        a(f"v_and_b32 {v(T+1)}, 0x70, {v(VA)}"); a(f"v_lshl_add_u32 {v(T+1)}, {v(T+2)}, 3, {v(T+1)}"); a(f"v_add_u32 {v(T)}, {v(T)}, {v(T+1)}")
        a(f"s_lshl_b32 {s(S_T1)}, {s(SCB)}, 11"); a(f"s_lshl_b32 {s(S_T2)}, {s(SRB)}, 8"); a(f"s_add_u32 {s(S_T1)}, {s(S_T1)}, {s(S_T2)}")
        a(f"s_add_u32 {s(S_T1)}, {s(S_T1)}, {GBOX:#x}")
        a("s_mov_b32 exec_lo, -1"); a("s_mov_b32 exec_hi, 0")
        a(f"{Lj}:")
        self.tag(range(W, W+4), VT)
        if self.hello:
            if self.hello in (2, 4): a(f"s_cmp_ge_u32 {s(S_S)}, 16"); a(f"s_cselect_b32 {s(S_M+8)}, 1, {s(S_M+6)}")
            elif self.hello == 3: a(f"s_mov_b32 {s(S_M+8)}, 1")
            else: a(f"s_mov_b32 {s(S_M+8)}, {s(S_M+6)}")
            self.pub(f"buffer_store_dwordx4 {v(W,4)}, {v(T)}, {s(R0,4)}, {s(S_T1)} offen", S_M+8)
        else: a(f"buffer_store_dwordx4 {v(W,4)}, {v(T)}, {s(R0,4)}, {s(S_T1)} offen sc1")
        a("s_mov_b64 exec, -1")
        a(f"s_lshl_b32 {s(S_T0)}, {s(S_H)}, 12"); a(f"s_add_u32 {s(S_T0)}, {s(S_T0)}, {QBOX:#x}")
        W2 = W + 8
        self.trig(self.nq, VZ, T+1)
        self.poll([(f"buffer_load_dwordx4 {v(W2+4*k,4)}, {v(VA)}, {s(R0,4)}, {s(S_T0)} offen offset:{1024*k} sc1", W2+4*k, 4) for k in range(4)], VT, T)
        for k in range(4): a(f"v_pk_add_f32 {v(W2+2*k,2)}, {v(W2+2*k,2)}, {v(W2+8+2*k,2)}")
        for k in range(4): a(f"v_cvt_pk_bf16_f32 {v(XF+k)}, {v(W2+2*k)}, {v(W2+2*k+1)}")
        a(f"v_lshlrev_b32 {v(T)}, 3, v0"); a(f"v_mov_b32 {v(T+1)}, 1")
        a(f"ds_write_b64 {v(T)}, {v(XF,2)} offset:{L_Q}"); a(f"ds_write_b64 {v(T)}, {v(XF+2,2)} offset:{L_Q+512}")
        a("s_waitcnt lgkmcnt(0)")
        a(f"ds_write_b32 {v(VZ)}, {v(T+1)} offset:{L_QFLAG}")
        self.stamp(3)
        if self.cut == 1: return self.finish(T)
        if self.hello:
            Lk = self.lab("known")
            a(f"s_cmp_eq_u32 {s(S_M+6)}, 2"); a(f"s_cbranch_scc1 {Lk}")
            hello_check()
            a(f"{Lk}:")
        MW, LW, M, L, MA, LA, MB, LB = XF, XF+1, XF+2, XF+3, W, W+1, W+2, W+3
        a("; softmax statistics: workgroup -> head group -> per-wave factors")
        a(f"v_and_b32 {v(T)}, 28, v0"); a(f"v_lshlrev_b32 {v(T)}, 3, {v(T)}")
        a(f"v_and_b32 {v(T+2)}, 3, v0"); a(f"v_lshl_add_u32 {v(T)}, {v(T+2)}, 2, {v(T)}")
        self.lds_wait(L_MLCNT, 8, VZ, T+1, [f"ds_read2_b32 {v(MW,2)}, {v(T)} offset0:{L_ML//4} offset1:{L_ML//4+4}"])
        self.stamp(4)
        a(f"s_mov_b32 {s(S_T2)}, {LOG2E:#x}")
        a(f"v_mov_b32 {v(M)}, {v(MW)}")
        self.ror("v_max_f32", [M], (4, 8))
        a(f"v_mov_b32 {v(T)}, {v(M)}"); a(f"v_permlane16_swap_b32 {v(M)}, {v(T)}"); a(f"v_max_f32 {v(M)}, {v(M)}, {v(T)}")
        a(f"v_sub_f32 {v(L)}, {v(MW)}, {v(M)}"); a(f"v_mul_f32 {v(L)}, {s(S_T2)}, {v(L)}"); a(f"v_exp_f32 {v(L)}, {v(L)}")
        a(f"v_mul_f32 {v(L)}, {v(L)}, {v(LW)}")
        self.ror("v_add_f32", [L], (4, 8))
        a(f"v_mov_b32 {v(T)}, {v(L)}"); a(f"v_permlane16_swap_b32 {v(L)}, {v(T)}"); a(f"v_add_f32 {v(L)}, {v(L)}, {v(T)}")
        a(f"s_mov_b32 {s(S_TM)}, 0x3ff")
        if self.strip: a(f"v_mov_b32 {v(VT)}, {s(S_E)}"); a(f"v_and_b32 {v(VT)}, {s(S_TM)}, {v(VT)}")
        self.tag([M, L], VT)
        if self.fast and not self.hello:
            a(f"s_getreg_b32 {s(S_M+5)}, hwreg(HW_REG_XCC_ID, 0, 4)"); a(f"s_lshl_b32 {s(S_M+5)}, {s(S_M+5)}, 12")
            a(f"v_or_b32 {v(M)}, {s(S_M+5)}, {v(M)}")
        a(f"v_lshlrev_b32 {v(T)}, 3, v0")
        a(f"s_lshl_b32 {s(S_T0)}, {s(S_H)}, 10"); a(f"s_add_u32 {s(S_T0)}, {s(S_T0)}, {MLBOX:#x}")
        a(f"s_lshl_b32 {s(S_T1)}, {s(S_S)}, 5"); a(f"s_add_u32 {s(S_T1)}, {s(S_T1)}, {s(S_T0)}")
        a("s_mov_b64 exec, 15")
        if self.hello: self.pub(f"buffer_store_dwordx2 {v(M,2)}, {v(T)}, {s(R0,4)}, {s(S_T1)} offen", S_M+6)
        else: a(f"buffer_store_dwordx2 {v(M,2)}, {v(T)}, {s(R0,4)}, {s(S_T1)} offen sc1")
        a("s_mov_b64 exec, -1")
        self.trig(self.nm, VZ, T+1)
        self.poll([(f"buffer_load_dwordx2 {v(MA,2)}, {v(T)}, {s(R0,4)}, {s(S_T0)} offen sc1", MA, 2),
                   (f"buffer_load_dwordx2 {v(MB,2)}, {v(T)}, {s(R0,4)}, {s(S_T0)} offen offset:512 sc1", MB, 2)], VT, T+1, quad=True)
        if self.fast and not self.hello:
            a(f"v_xor_b32 {v(T+2)}, {s(S_M+5)}, {v(MA)}"); a(f"v_xor_b32 {v(T+3)}, {s(S_M+5)}, {v(MB)}")
            a(f"v_or_b32 {v(T+2)}, {v(T+2)}, {v(T+3)}"); a(f"v_and_b32 {v(T+2)}, 0xf000, {v(T+2)}")
            a(f"v_cmp_ne_u32 vcc, 0, {v(T+2)}")
            a("s_cmp_eq_u64 vcc, 0"); a(f"s_cselect_b32 {s(S_M+6)}, 2, 1")
        a(f"v_and_b32 {v(MA)}, {s(S_HI)}, {v(MA)}"); a(f"v_and_b32 {v(MB)}, {s(S_HI)}, {v(MB)}")
        a(f"v_max_f32 {v(M)}, {v(MA)}, {v(MB)}")
        self.ror("v_max_f32", [M], (4, 8)); self.rows_all("v_max_f32", M, T)
        for r in (MA, MB, MW): a(f"v_sub_f32 {v(r)}, {v(r)}, {v(M)}")
        for r in (MA, MB, MW): a(f"v_mul_f32 {v(r)}, {s(S_T2)}, {v(r)}")
        for r in (MA, MB, MW): a(f"v_exp_f32 {v(r)}, {v(r)}")
        a(f"v_mul_f32 {v(L)}, {v(MA)}, {v(LA)}"); a(f"v_fmac_f32 {v(L)}, {v(MB)}, {v(LB)}")
        self.ror("v_add_f32", [L], (4, 8)); self.rows_all("v_add_f32", L, T)
        a(f"v_rcp_f32 {v(L)}, {v(L)}"); a(f"v_mul_f32 {v(MW)}, {v(MW)}, {v(L)}")
        a(f"v_and_b32 {v(T)}, 31, v0"); a(f"v_lshlrev_b32 {v(T)}, 2, {v(T)}"); a(f"v_mov_b32 {v(T+1)}, {s(S_M+6) if self.fast else 1}")
        a(f"ds_write_b32 {v(T)}, {v(MW)} offset:{L_F}")
        a("s_waitcnt lgkmcnt(0)")
        a(f"ds_write_b32 {v(VZ)}, {v(T+1)} offset:{L_FFLAG}")
        a("s_waitcnt lgkmcnt(0)")
        self.stamp(5)
        self.finish(T)

    def fblock(self, dst, t):
        a = self.a
        a(f"s_lshl_b32 {s(dst)}, {s(S_H)}, 3"); a(f"s_lshr_b32 {s(t)}, {s(S_S)}, 2"); a(f"s_add_u32 {s(dst)}, {s(dst)}, {s(t)}")

    def sw1(self):
        a = self.a
        VZ, VT, VA, T = self.VZ, self.VT, self.VA, self.T
        XC, VO, G, W = 10, 11, 12, 16
        if self.vtouch:
            self.srd(R2, P_V, 0x4000000)
            a(f"s_lshl_b32 {s(S_T0)}, {s(S_H)}, 23"); a(f"s_lshl_b32 {s(S_T1)}, {s(S_S)}, 18"); a(f"s_or_b32 {s(S_T0)}, {s(S_T0)}, {s(S_T1)}")
            a(f"v_lshlrev_b32 {v(T)}, 16, v0")
            a(f"s_mov_b64 exec, {(1 << self.vtouch) - 1}")
            a(f"buffer_load_dword {v(T+1)}, {v(T)}, {s(R2,4)}, {s(S_T0)} offen nt")
            a("s_mov_b64 exec, -1")
            a("s_waitcnt vmcnt(0)")
        self.fblock(S_T0, S_T1)
        a(f"s_lshl_b32 {s(S_T0)}, {s(S_T0)}, 10"); a(f"s_add_u32 {s(S_T0)}, {s(S_T0)}, {GBOX:#x}")
        self.trig(self.g_trig, VZ, T+1)
        self.poll([(f"buffer_load_dwordx4 {v(G,4)}, {v(VA)}, {s(R0,4)}, {s(S_T0)} offen sc1", G, 4)], VT, T)
        self.fold4(G)
        self.rbf1(G, G)
        a(f"v_mov_b32_dpp {v(G+1)}, {v(G)} row_ror:8 row_mask:0xf bank_mask:0xf")
        self.silu_bf(G, G, T)
        a(f"v_mul_f32 {v(G)}, {v(G)}, {v(G+1)}"); a(f"v_cvt_pk_bf16_f32 {v(G)}, {v(G)}, {v(G)}")
        a(f"v_and_b32 {v(T)}, 7, v0"); a(f"v_lshlrev_b32 {v(T)}, 3, {v(T)}")
        a(f"v_lshrrev_b32 {v(T+1)}, 4, v0"); a(f"v_lshl_add_u32 {v(T)}, {v(T+1)}, 1, {v(T)}"); a(f"v_mov_b32 {v(T+1)}, 1")
        a("s_mov_b32 exec_lo, 0xff00ff"); a("s_mov_b32 exec_hi, 0xff00ff")
        a(f"ds_write_b16 {v(T)}, {v(G)} offset:{L_H}")
        a("s_mov_b64 exec, -1")
        a("s_waitcnt lgkmcnt(0)")
        a(f"ds_write_b32 {v(VZ)}, {v(T+1)} offset:{L_HFLAG}")
        self.stamp(3)
        if self.pf2:
            Lp = self.lab("nopf2")
            a(f"s_cmp_lg_u32 {s(S_S)}, 31"); a(f"s_cbranch_scc1 {Lp}")
            a(f"s_getpc_b64 {s(R4,2)}")
            a("Lpc2:")
            a(f"s_sub_u32 {s(R4)}, {s(R4)}, Lpc2-Lsw23"); a(f"s_subb_u32 {s(R4+1)}, {s(R4+1)}, 0")
            a(f"s_mov_b32 {s(R4+2)}, Lcode_end-Lsw23"); a(f"s_mov_b32 {s(R4+3)}, 0x20000")
            a(f"s_mov_b32 {s(S_T0)}, 4096")
            for k in range(7): a(f"buffer_load_dwordx4 {v(W+4*k,4)}, {v(VA)}, {s(R4,4)}, {s(S_T0) if k >= 4 else 0} offen offset:{1024*(k&3)}")
            a(f"{Lp}:")
        if self.red2: return self.finish(T)
        Lx = self.lab("sw1end")
        a(f"s_cmp_ge_u32 {s(S_WG)}, {0 if self.cut else 32}"); a(f"s_cbranch_scc1 {Lx}")
        a(f"s_lshl_b32 {s(S_T0)}, {s(S_WG)}, 5")
        a(f"v_and_b32 {v(VO)}, 3, v0"); a(f"v_lshl_add_u32 {v(VO)}, {v(VO)}, 3, {s(S_T0)}")
        a(f"v_lshrrev_b32 {v(T)}, 4, v0"); a(f"v_lshl_add_u32 {v(VO)}, {v(T)}, 1, {v(VO)}")
        a(f"buffer_load_ushort {v(XC)}, {v(VO)}, {s(R1,4)}, 0 offen")
        a(f"s_lshl_b32 {s(S_T0)}, {s(S_WG)}, 13"); a(f"s_add_u32 {s(S_T0)}, {s(S_T0)}, {HBOX:#x}"); a(f"s_add_u32 {s(S_T1)}, {s(S_T0)}, 4096")
        loads = [(f"buffer_load_dwordx4 {v(W+4*j,4)}, {v(VA)}, {s(R0,4)}, {s(S_T0+(j>>2))} offen offset:{1024*(j&3)} sc1", W+4*j, 4) for j in range(8)]
        if self.touch:
            for ld in loads: a(ld[0])
        a("s_waitcnt vmcnt(0)")
        a(f"v_lshlrev_b32 {v(XC)}, 16, {v(XC)}")
        self.srd(R1, P_OUT, 1024)
        if self.otouch: a(f"buffer_load_ushort {v(T+5)}, {v(VO)}, {s(R1,4)}, 0 offen sc1"); a("s_waitcnt vmcnt(0)")
        self.stamp(4)
        a("s_barrier")
        if self.rdelay: self.lds_wait(L_PUB, 2 if self.rdelay >= 3 else 1, VZ, T+1, sleep=0)
        self.stamp(5)
        if self.pipe:
            Y = [(f"buffer_load_dwordx4 {v(W+32+4*j,4)}, {v(VA)}, {s(R0,4)}, {s(S_T0+(j>>2))} offen offset:{1024*(j&3)} sc1", W+32+4*j, 4) for j in range(8)]
            self.poll2(loads, Y, VT, T, G)
        elif self.light: self.gather8(loads, VT, T, G, VA, S_T0, 10)
        else: self.poll(loads, VT, T, acc=G)
        self.stamp(6)
        self.fold4(G)
        self.ror("v_add_f32", [G], (8,))
        self.rbf1(G, G)
        self.silu_bf(G+1, G, T)
        a(f"v_mul_f32_dpp {v(G)}, {v(G+1)}, {v(G)} row_ror:12 row_mask:0xf bank_mask:0xf"); self.rbf1(G, G)
        a(f"v_add_f32 {v(G)}, {v(G)}, {v(XC)}"); a(f"v_cvt_pk_bf16_f32 {v(G)}, {v(G)}, {v(G)}")
        a("s_mov_b32 exec_lo, 0xf000f"); a("s_mov_b32 exec_hi, 0xf000f")
        a(f"buffer_store_short {v(G)}, {v(VO)}, {s(R1,4)}, 0 offen {self.outpol}")
        a(f"s_cmp_lg_u32 {s(S_WG)}, 0"); a(f"s_cbranch_scc1 {Lx}")
        a("s_mov_b64 exec, 1")
        a(f"v_mov_b32 {v(T)}, {s(S_E)}")
        a(f"buffer_store_dword {v(T)}, {v(VZ)}, {s(R0,4)}, 0 offen offset:{EPOCH} {self.outpol}")
        if self.amp:
            pa, pb, k = self.amp
            a("s_waitcnt vmcnt(0)"); self.stamp(7); a("s_waitcnt lgkmcnt(0)")
            a(f"s_sub_u32 {s(S_T0)}, {s(S_ST+2*pb)}, {s(S_ST+2*pa)}"); a(f"s_mul_i32 {s(S_T0)}, {s(S_T0)}, {k}")
            a(f"s_min_u32 {s(S_T0)}, {s(S_T0)}, 100000")
            a("Lamp:")
            a(f"s_memrealtime {s(S_ST+20,2)}"); a("s_waitcnt lgkmcnt(0)")
            a(f"s_sub_u32 {s(S_T1)}, {s(S_ST+20)}, {s(S_ST+14)}"); a(f"s_cmp_lt_u32 {s(S_T1)}, {s(S_T0)}"); a("s_cbranch_scc1 Lamp")
        a(f"{Lx}:")
        if self.diag: a("s_waitcnt vmcnt(0)")
        self.stamp(7)
        self.finish(T)

    def controller(self, SZ, nbar_):
        a = self.a; c = self.ctl
        VZ = self.VZ
        C, CP, E, X, Y, A, G = 24, 25, 26, 27, 28, 29, 30
        glob = c.get('gw', 0) or c['tcap'] or c.get('g2')
        SG, SPREV, SB8 = R3+1, R3+2, 4
        import struct
        f = lambda x: hex(struct.unpack('<I', struct.pack('<f', x))[0])
        L, Lo, Ls = self.lab("ctl"), self.lab("ctlx"), self.lab("ctls")
        if c.get('dual'):
            Ld = self.lab("ctld")
            a(f"s_cmp_eq_u32 {s(SZ)}, 0"); a(f"s_cbranch_scc1 {Ld}")
            a(f"ds_read_b32 {v(C)}, {v(VZ)} offset:{L_CNT}"); a("s_waitcnt lgkmcnt(0)")
            a(f"v_readfirstlane_b32 {s(S_T0)}, {v(C)}"); a(f"s_add_u32 {s(S_T0)}, {s(S_T0)}, {c['dual']}")
            self.lds_wait(L_CNT, s(S_T0), VZ, C)
            a(f"{Ld}:")
        else:
            a(f"s_cmp_lg_u32 {s(SZ)}, 0"); a(f"s_cbranch_scc1 {Lo}")
        a(f"s_lshl_b32 {s(S_T0)}, {s(S_H)}, 7")
        a(f"v_and_b32 {v(A)}, 31, v0"); a(f"v_lshlrev_b32 {v(A)}, 2, {v(A)}")
        if glob:
            a(f"v_cmp_gt_u32 vcc, 32, v0"); a(f"v_mov_b32 {v(X)}, 0x400"); a(f"v_cndmask_b32 {v(A)}, {v(X)}, {v(A)}, vcc")
            a(f"s_mov_b32 {s(SPREV)}, 0"); a(f"s_mov_b32 {s(17)}, 0")
            a(f"s_lshl_b32 {s(SPREV+1)}, {s(S_H)}, 2"); a(f"s_add_u32 {s(12)}, {s(P_DBG)}, {s(SPREV+1)}"); a(f"s_addc_u32 {s(13)}, {s(P_DBG+1)}, 0")
        a(f"s_add_u32 {s(S_T0)}, {s(S_T0)}, {PBOX:#x}")
        a(f"s_lshl_b32 {s(S_T1)}, {s(S_S)}, 2"); a(f"s_add_u32 {s(S_T1)}, {s(S_T1)}, {s(S_T0)}")
        a(f"s_lshl_b32 {s(R3)}, {s(S_E)}, 16")
        a(f"ds_read_b32 {v(CP)}, {v(VZ)} offset:{L_CNT}")
        a(f"s_mov_b32 {s(S_CNT)}, 4096")
        a(f"{L}:")
        a(f"ds_read_b32 {v(C)}, {v(VZ)} offset:{L_CNT}")
        a("s_waitcnt lgkmcnt(0)")
        a(f"v_or_b32 {v(E)}, {s(R3)}, {v(C)}")
        a(f"v_readfirstlane_b32 {s(S_T2)}, {v(C)}")
        a("s_mov_b64 exec, 1")
        a(f"buffer_store_dword {v(E)}, {v(VZ)}, {s(R0,4)}, {s(S_T1)} offen")
        a("s_mov_b64 exec, -1")
        a(f"s_cmp_ge_u32 {s(S_T2)}, {8*(c.get('exit', c['to'] - 2) - nbar_)}"); a(f"s_cbranch_scc1 {Lo}")
        a(f"s_sub_u32 {s(S_CNT)}, {s(S_CNT)}, 1"); a(f"s_cbranch_scc1 {Lo}")
        a(f"buffer_load_dword {v(X)}, {v(A)}, {s(R0,4)}, {s(S_T0)} offen sc1")
        if glob:
            Lr = self.lab("ctlr")
            a(f"s_cmp_lg_u32 {s(S_S)}, 5"); a(f"s_cbranch_scc1 {Lr}")
            if c.get('plain'):
                for k in range(8): a(f"s_load_dword {s(SB8+k)}, {s(P_WS,2)}, {PBOX + 0x800 + 128*k:#x} glc")
            else: a(f"s_load_dwordx8 {s(SB8,8)}, {s(P_DBG,2)}, 0 glc")
            a(f"{Lr}:")
        if c.get('dual'): a(f"v_mad_u32_u24 {v(CP)}, {v(C)}, 3, {v(CP)}")
        else: a(f"v_add_u32 {v(CP)}, {v(CP)}, {v(C)}")
        a(f"v_cvt_f32_u32 {v(CP)}, {v(CP)}")
        if c.get('dual'): a(f"v_mul_f32 {v(CP)}, 0.5, {v(CP)}")
        a("s_waitcnt vmcnt(0)")
        a(f"ds_read_b32 {v(Y)}, {v(VZ)} offset:{L_CNT}")
        a(f"v_xor_b32 {v(X)}, {s(R3)}, {v(X)}"); a(f"v_cmp_gt_u32 vcc, 0x10000, {v(X)}")
        if glob:
            a(f"v_subrev_u32 {v(G)}, 0x8000, {v(X)}"); a(f"v_cvt_f32_i32 {v(G)}, {v(G)}"); a(f"v_cndmask_b32 {v(G)}, 0, {v(G)}, vcc")
        a(f"v_cvt_f32_u32 {v(X)}, {v(X)}"); a(f"v_cndmask_b32 {v(X)}, 0, {v(X)}, vcc")
        a(f"s_bcnt1_i32_b32 {s(S_T2)}, vcc_lo")
        if glob: a(f"v_readlane_b32 {s(SG)}, {v(G)}, 32")
        self.ror("v_add_f32", [X], (8, 4, 2, 1))
        a(f"v_mov_b32 {v(E)}, {v(X)}"); a(f"v_permlane16_swap_b32 {v(X)}, {v(E)}"); a(f"v_add_f32 {v(X)}, {v(X)}, {v(E)}")
        a(f"v_cvt_f32_u32 {v(E)}, {s(S_T2)}"); a(f"v_rcp_f32 {v(E)}, {v(E)}")
        a("s_waitcnt lgkmcnt(0)")
        a(f"s_cmp_lt_u32 {s(S_T2)}, 24"); a(f"s_cbranch_scc1 {Ls}")
        a(f"v_mul_f32 {v(X)}, {v(X)}, {v(E)}")
        if glob:
            Lr, Lv = self.lab("ctlr"), self.lab("ctlv")
            a(f"v_mov_b32 {v(G)}, {s(SG)}")
            a(f"s_cmp_lg_u32 {s(S_S)}, 5"); a(f"s_cbranch_scc1 {Lr}")
            a(f"v_cvt_u32_f32 {v(E)}, {v(X)}"); a(f"v_readfirstlane_b32 {s(S_T2)}, {v(E)}")
            a(f"s_add_u32 {s(S_T3)}, {s(SPREV)}, {s(17)}"); a(f"s_min_u32 {s(18)}, {s(SPREV)}, {s(17)}"); a(f"s_mov_b32 {s(17)}, {s(SPREV)}")
            a(f"s_sub_u32 {s(14)}, {s(S_T2)}, {s(SPREV)}"); a(f"s_mov_b32 {s(SPREV)}, {s(S_T2)}")
            if c.get('plain'):
                a(f"v_or_b32 {v(E)}, {s(R3)}, {v(E)}")
                a("s_mov_b64 exec, 1")
                a(f"buffer_store_dword {v(E)}, {v(VZ)}, {s(R0,4)}, {s(S_T0)} offen offset:2048")
                a("s_mov_b64 exec, -1")
                for k in range(8):
                    a(f"s_xor_b32 {s(SB8+k)}, {s(SB8+k)}, {s(R3)}"); a(f"s_cmp_lt_u32 {s(SB8+k)}, 0x10000"); a(f"s_cselect_b32 {s(SB8+k)}, {s(SB8+k)}, 0")
            else: a(f"s_atomic_add {s(14)}, {s(12,2)}, 0x0")
            a(f"s_min_u32 {s(15)}, {s(SB8)}, {s(SB8+1)}"); a(f"s_add_u32 {s(16)}, {s(SB8)}, {s(SB8+1)}")
            for k in range(2, 8): a(f"s_min_u32 {s(15)}, {s(15)}, {s(SB8+k)}"); a(f"s_add_u32 {s(16)}, {s(16)}, {s(SB8+k)}")
            a(f"s_min_u32 {s(15)}, {s(15)}, {s(18)}"); a(f"s_cmp_eq_u32 {s(15)}, 0"); a(f"s_cbranch_scc1 {Lr}")
            a(f"s_lshl_b32 {s(S_T3)}, {s(S_T3)}, 2")
            a(f"s_sub_u32 {s(16)}, {s(16)}, {s(S_T3)}"); a(f"s_ashr_i32 {s(16)}, {s(16)}, 3")
            a(f"s_add_u32 {s(16)}, {s(16)}, {0x8000 + c.get('gb', 0)}"); a(f"s_or_b32 {s(16)}, {s(16)}, {s(R3)}")
            a(f"v_mov_b32 {v(E)}, {s(16)}")
            a("s_mov_b64 exec, 1")
            a(f"buffer_store_dword {v(E)}, {v(VZ)}, {s(R0,4)}, {s(S_T0)} offen offset:1024")
            a("s_mov_b64 exec, -1")
            a(f"{Lr}:")
        a(f"v_fma_f32 {v(X)}, {v(CP)}, -0.5, {v(X)}")
        if c.get('gw', 0): a(f"v_fmac_f32 {v(X)}, {f(c['gw'])}, {v(G)}")
        a(f"v_lshrrev_b32 {v(Y)}, 3, {v(Y)}"); a(f"v_add_u32 {v(Y)}, {nbar_ + 1 + c['lead']}, {v(Y)}")
        for (dst, src, sign, th, g, cap) in ((E, X, 1, c['bth'], c['bg'], c['bcap']), (X, G, 1, *c['g2']) if c.get('g2') else (X, X, 1, *c['l2']) if c.get('l2') else (X, G, -1, c['tth'], c['tg'], c['tcap'])):
            if not cap: continue
            t = CP
            a(f"v_mul_f32 {v(t)}, {f(sign*g)}, {v(src)}")
            if c.get('k0') and dst == E: a(f"v_add_f32 {v(t)}, {f(c['k0'])}, {v(t)}")
            a(f"v_min_f32 {v(t)}, {f(cap)}, {v(t)}"); a(f"v_max_f32 {v(t)}, 0, {v(t)}")
            a(f"v_cmp_{'lt' if sign > 0 else 'gt'}_f32 vcc, {f(sign*th)}, {v(src)}")
            a(f"v_cvt_u32_f32 {v(t)}, {v(t)}"); a(f"v_add_u32 {v(t)}, {v(t)}, {v(Y)}")
            a(f"v_cndmask_b32 {v(dst)}, 0, {v(t)}, vcc")
        if c.get('g2') or c.get('l2'):
            a(f"v_min_u32 {v(CP)}, {v(E)}, {v(X)}"); a(f"v_max_u32 {v(X)}, {v(E)}, {v(X)}"); a(f"v_mov_b32 {v(E)}, {v(CP)}")
        a("s_mov_b64 exec, 1")
        a(f"ds_write_b64 {v(VZ)}, {v(E,2)} offset:{L_BOOST}")
        a("s_mov_b64 exec, -1")
        a(f"{Ls}:")
        a(f"v_mov_b32 {v(CP)}, {v(C)}")
        a(f"s_branch {L}")
        a(f"{Lo}:")
        if glob and self.diag: a(f"s_mov_b32 {s(S_ST+20)}, {s(16)}"); a(f"s_mov_b32 {s(S_ST+22)}, {s(15)}")

    def sw23(self):
        a = self.a
        VZ, VT, VA, T = self.VZ, self.VT, self.VA, self.T
        VP, VH, VB, VB2, OUT, SUM, W, HB, AW, AD, F, DD = 10, 11, 12, 13, 16, 20, 24, 56, 72, 104, 120, 152
        SZ, SFB, SCOL, SPUB, SP0, SHB, SLW = S_M+8, S_M+9, S_M+10, S_M+11, S_M, S_M+12, S_M+13
        a(f"s_and_b32 {s(SZ)}, {s(S_WAVE)}, 1")
        self.fblock(SFB, S_T1)
        a(f"s_and_b32 {s(SCOL)}, {s(S_S)}, 3"); a(f"s_lshl_b32 {s(SCOL)}, {s(SCOL)}, 1"); a(f"s_add_u32 {s(SCOL)}, {s(SCOL)}, {s(SZ)}")
        a(f"s_mul_i32 {s(SLW)}, {s(SZ)}, 12288")
        a(f"v_lshrrev_b32 {v(T)}, 4, v0"); a(f"v_lshl_add_u32 {v(T)}, {v(T)}, 10, {s(SLW)}")
        a(f"v_bfe_u32 {v(T+2)}, v0, 2, 2"); a(f"v_lshl_add_u32 {v(T)}, {v(T+2)}, 7, {v(T)}")
        a(f"v_and_b32 {v(T+2)}, 3, v0"); a(f"v_lshl_add_u32 {v(T)}, {v(T+2)}, 3, {v(T)}")
        a(f"s_lshl_b32 {s(S_T0)}, {s(S_H)}, 16"); a(f"s_add_u32 {s(S_T0)}, {s(S_T0)}, {OBOX:#x}")
        a(f"s_lshl_b32 {s(SPUB)}, {s(S_S)}, 11"); a(f"s_add_u32 {s(SPUB)}, {s(SPUB)}, {s(S_T0)}")
        a(f"s_lshr_b32 {s(S_T1)}, {s(S_S)}, 2"); a(f"s_lshl_b32 {s(S_T1)}, {s(S_T1)}, 8"); a(f"s_add_u32 {s(SP0)}, {s(S_T0)}, {s(S_T1)}")
        for k in range(1, 8): a(f"s_add_u32 {s(SP0+k)}, {s(SP0)}, {8192*k}")
        a(f"v_lshrrev_b32 {v(VP)}, 4, v0"); a(f"v_and_b32 {v(T+2)}, 0xf0, {v(VA)}"); a(f"v_lshl_add_u32 {v(VP)}, {v(VP)}, 11, {v(T+2)}")
        a(f"s_lshl_b32 {s(SHB)}, {s(SCOL)}, 15"); a(f"s_lshl_b32 {s(S_T1)}, {s(SFB)}, 7"); a(f"s_add_u32 {s(SHB)}, {s(SHB)}, {s(S_T1)}")
        a(f"s_add_u32 {s(SHB)}, {s(SHB)}, {HBOX:#x}")
        a(f"v_and_b32 {v(VH)}, 3, v0"); a(f"v_lshlrev_b32 {v(VH)}, 13, {v(VH)}")
        a(f"v_and_b32 {v(T+2)}, 4, v0"); a(f"v_lshl_add_u32 {v(VH)}, {v(T+2)}, 4, {v(VH)}")
        a(f"v_and_b32 {v(VB)}, 48, v0"); a(f"v_add_u32 {v(VH)}, {v(VH)}, {v(VB)}")
        def tr_ad():
            for t in range(4):
                for hf in range(2):
                    a(f"ds_read_b64_tr_b16 {v(AD+4*t+2*hf,2)}, {v(T)} offset:{L_W + 8192 + 512*hf + 32*t}")
        def tr_aw(t):
            for kk in range(2):
                for hf in range(2):
                    a(f"ds_read_b64_tr_b16 {v(AW+8*t+4*kk+2*hf,2)}, {v(T)} offset:{L_W + 4096*kk + 512*hf + 32*t}")
        def ffn_tags():
            a("s_mov_b32 exec_lo, 0x100010"); a("s_mov_b32 exec_hi, 0x100010")
            for t in range(4):
                self.tag(range(DD+4*t, DD+4*t+4), VT, dst=range(OUT, OUT+4))
                if t < 3: a("s_lshl_b64 exec, exec, 1")
            a("s_mov_b64 exec, -1")
        def wprep(less=0):
            if self.wprog:
                assert self.wsplit == 12
                a(f"s_waitcnt vmcnt({16 - less})")
                tr_ad()
                self.lgkm(0)
                for t in range(4): a(f"v_mfma_f32_16x16x32_bf16 {v(DD+4*t,4)}, {v(AD+4*t,4)}, {v(HB,4)}, 0")
                ffn_tags()
                for kk in range(2):
                    a(f"s_waitcnt vmcnt({12 - 4*kk - less})")
                    for t in range(4):
                        for hf in range(2):
                            a(f"ds_read_b64_tr_b16 {v(AW+8*t+4*kk+2*hf,2)}, {v(T)} offset:{L_W + 4096*kk + 512*hf + 32*t}")
                self.stamp(3)
                return
            if self.wdma:
                a(f"s_waitcnt vmcnt({9 if self.wsplit == 12 else 8})")
                tr_ad(); tr_aw(0)
                self.lgkm(4)
                for t in range(4): a(f"v_mfma_f32_16x16x32_bf16 {v(DD+4*t,4)}, {v(AD+4*t,4)}, {v(HB,4)}, 0")
                for t in range(1, 4): tr_aw(t)
                ffn_tags()
                self.stamp(3)
                return
            self.lds_wait(L_WCNT, 8, VZ, T+2)
            tr_ad()
            self.lds_wait(L_HFLAG, 1, VZ, T+2, [f"ds_read_b128 {v(HB,4)}, {v(VB)} offset:{L_H}"])
            for t in range(4): a(f"v_mfma_f32_16x16x32_bf16 {v(DD+4*t,4)}, {v(AD+4*t,4)}, {v(HB,4)}, 0")
            for t in range(4):
                tr_aw(t)
                if t == 1: a("s_waitcnt lgkmcnt(0)")
            ffn_tags()
            a("s_waitcnt lgkmcnt(0)")
            self.stamp(3)
        if self.wdma:
            VWA, VWD, SW0, SW1 = 14, 15, R4, R4+1
            a(f"v_lshrrev_b32 {v(T+1)}, 3, v0"); a(f"v_and_b32 {v(T+2)}, 0x70, {v(VA)}")
            a(f"v_lshl_add_u32 {v(VWD)}, {v(T+1)}, 10, {v(T+2)}")
            a(f"s_mul_i32 {s(S_T1)}, {s(SZ)}, {8*144}"); a(f"v_mul_u32_u24 {v(T+1)}, 144, {v(T+1)}"); a(f"v_add3_u32 {v(VWA)}, {v(T+1)}, {v(T+2)}, {s(S_T1)}")
            a(f"s_lshl_b32 {s(SW0)}, {s(S_H)}, 19"); a(f"s_lshr_b32 {s(S_T1)}, {s(S_S)}, 2"); a(f"s_lshl_b32 {s(S_T1)}, {s(S_T1)}, 14"); a(f"s_add_u32 {s(SW0)}, {s(SW0)}, {s(S_T1)}")
            a(f"s_lshl_b32 {s(S_T1)}, {s(SCOL)}, 7"); a(f"s_add_u32 {s(SW0)}, {s(SW0)}, {s(S_T1)}")
            a(f"s_lshl_b32 {s(SW1)}, {s(SFB)}, 15"); a(f"s_add_u32 {s(SW1)}, {s(SW1)}, {s(S_T1)}")
            a(f"s_add_u32 {s(SLW)}, {s(SLW)}, {L_W}")
            self.srd(R1, P_WO, 0x400000); self.srd(R2, P_WD, 0x1c0000)
            def touch_w():
                a("s_mov_b64 exec, 1")
                for h in range(4):
                    a(f"s_add_u32 {s(S_T1)}, {s(SW0)}, {0x20000*h}")
                    a(f"buffer_load_dword {v(T+3)}, {v(VZ)}, {s(R1,4)}, {s(S_T1)} offen {self.wpol}")
                a(f"buffer_load_dword {v(T+3)}, {v(VZ)}, {s(R2,4)}, {s(SW1)} offen {self.wpol}")
                a("s_mov_b64 exec, -1")
            if self.red2:
                XC, VOUT = 66, 67
                a(f"s_lshl_b32 {s(S_T0)}, {s(S_WG)}, 5"); a(f"s_lshl_b32 {s(S_T1)}, {s(SZ)}, 4"); a(f"s_add_u32 {s(S_T0)}, {s(S_T0)}, {s(S_T1)}")
                a(f"v_and_b32 {v(VOUT)}, 1, v0"); a(f"v_lshl_add_u32 {v(VOUT)}, {v(VOUT)}, 3, {s(S_T0)}")
                a(f"v_lshrrev_b32 {v(T+1)}, 4, v0"); a(f"v_lshl_add_u32 {v(VOUT)}, {v(T+1)}, 1, {v(VOUT)}")
                a(f"s_mov_b32 {s(P_X+2)}, 1024"); a(f"s_mov_b32 {s(P_X+3)}, 0x20000")
                a(f"buffer_load_ushort {v(XC)}, {v(VOUT)}, {s(P_X,4)}, 0 offen")
            if self.ctl: self.controller(SZ, nbar_=(self.ramp[0] if self.ramp else self.D) - 1)
            if self.wtouch == 1: touch_w()
            self.lds_wait(L_HFLAG, 1, VZ, T+2, [f"ds_read_b128 {v(HB,4)}, {v(VB)} offset:{L_H}"])
        worder = list(range(8, 12)) + list(range(8))
        def wload(js):
            for j in js:
                a(f"s_add_u32 m0, {s(SLW)}, {1024*j}")
                if j < 8:
                    a(f"buffer_load_dwordx4 {v(VWD)}, {s(R1,4)}, {s(SW0)} offen {self.wpol} lds")
                    a(f"s_add_u32 {s(SW0)}, {s(SW0)}, {0x20000 - 8192 if j & 1 else 8192:#x}")
                else:
                    a(f"buffer_load_dwordx4 {v(VWD)}, {s(R2,4)}, {s(SW1)} offen {self.wpol} lds")
                    a(f"s_add_u32 {s(SW1)}, {s(SW1)}, 8192")
        late = self.wpos > 56 or self.wdma
        if not late: wprep()
        if self.cut: return self.finish(T)
        if self.wtouch == 2: touch_w()
        loads = [(f"buffer_load_dwordx4 {v(W+4*k,4)}, {v(VP)}, {s(R0,4)}, {s(SP0+k)} offen sc1", W+4*k, 4) for k in range(8)]
        if self.touch and True:
            for ld in loads: a(ld[0])
        self.lds_wait(L_FFLAG, 1, VZ, T+2, [f"ds_read_b128 {v(F+4*w,4)}, {v(VZ)} offset:{L_F+16*w}" for w in range(8)])
        a(f"s_mov_b32 {s(S_M+14)}, {s(S_T3)}")
        if self.wtouch == 3: touch_w()
        a(f"s_lshl_b32 {s(S_T0)}, {s(SZ)}, 10"); a(f"v_add_u32 {v(VA)}, {s(S_T0)}, {v(VA)}")
        a(f"s_lshl_b32 {s(S_T0)}, {s(SZ)}, 7"); a(f"v_add_u32 {v(VB2)}, {s(S_T0)}, {v(VB)}"); a(f"v_lshl_add_u32 {v(T+1)}, v0, 1, {s(S_T0)}")
        if self.touch: a("s_waitcnt vmcnt(0)")
        if self.wdma and self.wsplit:
            self.lds_wait(L_WCNT, self.wcnt, VZ, T+2, sleep=0)
            wload(worder[:self.wsplit])
        self.stamp(4)
        if self.solo: a(f"v_mov_b32 {v(T+2)}, 1")
        a("s_barrier")
        self.stamp(5)
        for w in range(8): a(f"ds_read_b128 {v(W+4*w,4)}, {v(VWA)} offset:{L_O+OSTR*w}")
        for w in range(8):
            self.lgkm(7-w)
            for p in (0, 2):
                if w == 0: a(f"v_pk_mul_f32 {v(SUM+p,2)}, {v(W+p,2)}, {v(F+p,2)}")
                else: a(f"v_pk_fma_f32 {v(SUM+p,2)}, {v(W+4*w+p,2)}, {v(F+4*w+p,2)}, {v(SUM+p,2)}")
        if self.fast: a(f"s_cmp_eq_u32 {s(S_M+14)}, 2")
        if self.half:
            assert not self.clean
            F = SUM; self.tag(range(SUM, SUM+4), VT)
        else: self.tag(range(SUM, SUM+4), VT, dst=range(F, F+4))
        if self.fast:
            La, Lb = self.lab("h1l"), self.lab("h1j")
            a(f"s_cbranch_scc1 {La}")
            a(f"buffer_store_dwordx4 {v(F,4)}, {v(VA)}, {s(R0,4)}, {s(SPUB)} offen sc1")
            a(f"s_branch {Lb}")
            a(f"{La}:")
            a(f"buffer_store_dwordx4 {v(F,4)}, {v(VA)}, {s(R0,4)}, {s(SPUB)} offen")
            a(f"{Lb}:")
        else: a(f"buffer_store_dwordx4 {v(F,4)}, {v(VA)}, {s(R0,4)}, {s(SPUB)} offen sc1")
        self.stamp(6)
        if self.wdma: wload(worder[self.wsplit:])
        pre = late and (self.prepoll or self.wdma)
        if late and not pre: wprep()
        if self.solo:
            BO = HB
            L1, L2 = self.lab("solo1"), self.lab("solo2")
            breads = [f"ds_read_b128 {v(BO,4)}, {v(VB)} offset:{L_OB}", f"ds_read_b128 {v(BO+4,4)}, {v(VB)} offset:{L_OB+64}"]
            a(f"s_cmp_lg_u32 {s(SZ)}, 0"); a(f"s_cbranch_scc1 {L1}")
            if self.solo == 2:
                yr = [AD+4*k for k in range(4)] + [124+4*k for k in range(4)]
                Y = [(f"buffer_load_dwordx4 {v(yr[k],4)}, {v(VP)}, {s(R0,4)}, {s(SP0+k)} offen sc1", yr[k], 4) for k in range(8)]
                self.poll2(loads, Y, VT, T+3, SUM, between=wprep)
            else: self.poll(loads, VT, T+3, acc=SUM, between=wprep)
            self.stamp(7)
            self.fold4(SUM)
            a(f"v_cvt_pk_bf16_f32 {v(SUM)}, {v(SUM)}, {v(SUM)}")
            a(f"ds_write_b16 {v(T+1)}, {v(SUM)} offset:{L_OB}")
            a("s_mov_b64 exec, 1"); a(f"ds_write_b32 {v(VZ)}, {v(T+2)} offset:{L_OFLAG}"); a("s_mov_b64 exec, -1")
            for b in breads: a(b)
            a(f"s_branch {L2}")
            a(f"{L1}:")
            wprep(8)
            self.lds_wait(L_OFLAG, 1, VZ, T+2, breads, sleep=0)
            self.stamp(7)
            a(f"{L2}:")
        else:
            BO = W
            if self.pipe:
                yr = [AD+4*k for k in range(4)] + [124+4*k for k in range(4)]
                Y = [(f"buffer_load_dwordx4 {v(yr[k],4)}, {v(VP)}, {s(R0,4)}, {s(SP0+k)} offen sc1", yr[k], 4) for k in range(8)]
                self.poll2(loads, Y, VT, T+3, SUM, between=wprep)
                BO = HB
            elif self.light: self.gather8(loads, VT, HB+4, SUM, VP, SP0, 13, between=(wprep if pre else None))
            else: self.poll(loads, VT, T+3, acc=SUM, between=(wprep if pre else None))
            self.stamp(7)
            if self.rdelay == 1: a(f"v_mov_b32 {v(T+2)}, 1"); a(f"ds_write_b32 {v(VZ)}, {v(T+2)} offset:{L_PUB}")
            self.fold4(SUM)
            a(f"v_cvt_pk_bf16_f32 {v(SUM)}, {v(SUM)}, {v(SUM)}")
            a(f"ds_write_b16 {v(T+1)}, {v(SUM)} offset:{L_OB}")
            a(f"ds_read_b128 {v(BO,4)}, {v(VB2)} offset:{L_OB}"); a(f"ds_read_b128 {v(BO+4,4)}, {v(VB2)} offset:{L_OB+64}")
        a("s_mov_b32 exec_lo, 0x10001"); a("s_mov_b32 exec_hi, 0x10001")
        self.lgkm(1)
        for t in range(2): a(f"v_mfma_f32_16x16x32_bf16 {v(DD+4*t,4)}, {v(AW+8*t,4)}, {v(BO,4)}, 0")
        self.lgkm(0)
        for t in range(2): a(f"v_mfma_f32_16x16x32_bf16 {v(DD+4*t,4)}, {v(AW+8*t+4,4)}, {v(BO+4,4)}, {v(DD+4*t,4)}")
        for t in range(2, 4):
            a(f"v_mfma_f32_16x16x32_bf16 {v(DD+4*t,4)}, {v(AW+8*t,4)}, {v(BO,4)}, 0")
            a(f"v_mfma_f32_16x16x32_bf16 {v(DD+4*t,4)}, {v(AW+8*t+4,4)}, {v(BO+4,4)}, {v(DD+4*t,4)}")
        for t in range(4):
            self.tag(range(DD+4*t, DD+4*t+4), VT, dst=range(OUT, OUT+4))
            if t < 3: a("s_lshl_b64 exec, exec, 1")
        a("s_mov_b32 exec_lo, 0xff00ff"); a("s_mov_b32 exec_hi, 0xff00ff")
        a(f"buffer_store_dwordx4 {v(OUT,4)}, {v(VH)}, {s(R0,4)}, {s(SHB)} offen sc1")
        self.stamp(8)
        if self.red2:
            Lx = self.lab("tailend")
            G = SUM
            a(f"s_cmp_ge_u32 {s(S_WG)}, 32"); a(f"s_cbranch_scc1 {Lx}")
            a("s_mov_b64 exec, -1")
            a(f"v_lshrrev_b32 {v(VP)}, 2, v0"); a(f"v_lshlrev_b32 {v(VP)}, 7, {v(VP)}")
            a(f"v_and_b32 {v(T)}, 2, v0"); a(f"v_lshl_add_u32 {v(VP)}, {v(T)}, 5, {v(VP)}")
            a(f"v_and_b32 {v(T)}, 1, v0"); a(f"v_lshl_add_u32 {v(VP)}, {v(T)}, 4, {v(VP)}")
            a(f"s_lshl_b32 {s(S_T0)}, {s(S_WG)}, 13"); a(f"s_lshl_b32 {s(S_T1)}, {s(SZ)}, 5"); a(f"s_add_u32 {s(S_T0)}, {s(S_T0)}, {s(S_T1)}")
            a(f"s_add_u32 {s(S_T0)}, {s(S_T0)}, {HBOX:#x}"); a(f"s_add_u32 {s(S_T1)}, {s(S_T0)}, 4096")
            a(f"v_lshlrev_b32 {v(XC)}, 16, {v(XC)}")
            self.srd(R1, P_OUT, 1024)
            mk = lambda r0: [(f"buffer_load_dwordx4 {v(r0+4*j,4)}, {v(VP)}, {s(R0,4)}, {s(S_T0+(j>>1))} offen offset:{2048*(j&1)} sc1", r0+4*j, 4) for j in range(4)]
            a("s_waitcnt vmcnt(0)")
            self.stamp(9)
            if self.red2 == 1: self.poll2(mk(W), mk(W+16), VT, T, G, quad=True)
            else: self.poll(mk(W), VT, T, acc=G, quad=True)
            self.stamp(10)
            self.fold4(G)
            self.ror("v_add_f32", [G], (4, 8))
            self.rbf1(G, G)
            self.silu_bf(G+1, G, T)
            a(f"v_mul_f32_dpp {v(G)}, {v(G+1)}, {v(G)} quad_perm:[2,3,2,3] row_mask:0xf bank_mask:0xf"); self.rbf1(G, G)
            a(f"v_add_f32 {v(G)}, {v(G)}, {v(XC)}"); a(f"v_cvt_pk_bf16_f32 {v(G)}, {v(G)}, {v(G)}")
            a("s_mov_b32 exec_lo, 0x30003"); a("s_mov_b32 exec_hi, 0x30003")
            a(f"buffer_store_short {v(G)}, {v(VOUT)}, {s(R1,4)}, 0 offen {self.outpol}")
            a(f"s_or_b32 {s(S_T0)}, {s(S_WG)}, {s(SZ)}"); a(f"s_cbranch_scc1 {Lx}")
            a("s_mov_b64 exec, 1")
            a(f"v_mov_b32 {v(T)}, {s(S_E)}")
            a(f"buffer_store_dword {v(T)}, {v(VZ)}, {s(R0,4)}, 0 offen offset:{EPOCH} {self.outpol}")
            a(f"{Lx}:")
            if self.diag: a("s_waitcnt vmcnt(0)")
            self.stamp(11)
            return self.finish(T)
        if self.rdelay >= 2:
            a(f"v_mov_b32 {v(T+2)}, 1"); a("s_mov_b64 exec, 1")
            if self.rdelay != 3: a("s_waitcnt vmcnt(0)")
            a(f"ds_add_u32 {v(VZ)}, {v(T+2)} offset:{L_PUB}")
        if self.fast and self.clean:
            a("s_mov_b64 exec, -1")
            a(f"buffer_store_dwordx4 {v(F,4)}, {v(VA)}, {s(R0,4)}, {s(SPUB)} offen sc1")
        if self.amp2:
            pa, pb, k = self.amp2
            a(f"s_add_u32 {s(S_T0)}, {s(S_WG)}, {s(SZ)}"); a(f"s_cmp_lg_u32 {s(S_T0)}, 0"); a("s_cbranch_scc1 Lamp2x")
            a("s_waitcnt lgkmcnt(0)")
            a(f"s_sub_u32 {s(S_T0)}, {s(S_ST+2*pb)}, {s(S_ST+2*pa)}"); a(f"s_mul_i32 {s(S_T0)}, {s(S_T0)}, {k}")
            a(f"s_min_u32 {s(S_T0)}, {s(S_T0)}, 100000")
            a("Lamp2:")
            a(f"s_memrealtime {s(S_ST+20,2)}"); a("s_waitcnt lgkmcnt(0)")
            a(f"s_sub_u32 {s(S_T1)}, {s(S_ST+20)}, {s(S_ST+16)}"); a(f"s_cmp_lt_u32 {s(S_T1)}, {s(S_T0)}"); a("s_cbranch_scc1 Lamp2")
            a("Lamp2x:")
        if self.diag: a("s_waitcnt vmcnt(0)")
        self.stamp(9)
        self.finish(T)

    def build(self):
        a = self.a
        hdr = open("recurrent_scan__gqa_block_cached__swiglu_ffn__decode.s.ref").read().split("; @launch")[0]
        a(f'.amdgcn_target "amdgcn-amd-amdhsa--gfx950"')
        a(".text"); a(f".globl {KN}"); a(".p2align 8"); a(f".type {KN},@function"); a(f"{KN}:")
        if not (self.pf and self.pfe): self.ebar = 0
        a(f"s_load_dwordx16 {s(4,16)}, s[0:1], 0")
        if self.diag or not self.ebar: a(f"s_load_dwordx8 {s(20,8)}, s[0:1], 64")
        a("s_cmp_ge_u32 s2, 256"); a("s_cbranch_scc1 Lend")
        if self.diag:
            for k in range(1, 12): a(f"s_mov_b32 {s(S_ST+2*k)}, 0")
        self.stamp(0)
        a("v_lshrrev_b32 v1, 6, v0"); a("v_and_b32 v0, 63, v0"); a(f"v_readfirstlane_b32 {s(S_WAVE)}, v1")
        a(f"s_and_b32 {s(S_H)}, s2, 7"); a(f"s_lshr_b32 {s(S_S)}, s2, 3")
        if self.pf and self.pfe:
            a(f"s_cmp_lt_u32 {s(S_WAVE)}, 8"); a("s_cbranch_scc1 Lstream")
            a("v_lshlrev_b32 v3, 4, v0")
            if self.ebar and not self.diag: a(f"s_load_dwordx8 {s(20,8)}, s[0:1], 64")
            self.prefetch(3, 72)
            if self.ebar: a("s_barrier")
            a("s_branch Lservice")
            a("Lstream:")
        else:
            a(f"s_cmp_ge_u32 {s(S_WAVE)}, 8"); a("s_cbranch_scc1 Lservice")
        self.streamer()
        a("Lservice:")
        if self.prio: a("s_setprio 3")
        a(f"s_mov_b32 {s(S_HI)}, 0xffff0000"); a(f"s_mov_b32 {s(S_TM)}, {(1 << self.tagbits) - 1:#x}")
        self.stage1()
        a(f"s_cmp_eq_u32 {s(S_WAVE)}, 9"); a("s_cbranch_scc1 Lsw1")
        a(f"s_cmp_gt_u32 {s(S_WAVE)}, 9"); a("s_cbranch_scc1 Lsw23")
        self.sw0()
        a("Lsw23:"); self.sw23()
        a("Lsw1:"); self.sw1()
        a("Lend:"); a("s_endpgm")
        a("Lcode_end:")
        a(".fill 64, 4, 0xbf800000")
        a('.section .rodata,"a"'); a(".p2align 6"); a(f".amdhsa_kernel {KN}")
        for d in ("next_free_vgpr 168", "next_free_sgpr 102", "accum_offset 168", "group_segment_fixed_size 0", "kernarg_size 96",
                  "user_sgpr_count 2", "user_sgpr_kernarg_segment_ptr 1", "system_sgpr_workgroup_id_x 1", "float_denorm_mode_32 3"):
            a(f".amdhsa_{d}")
        a(".end_amdhsa_kernel")
        return hdr + f"; @launch grid=(256,1,1) block=(768,1,1) lds={LDS_BYTES + self.ldspad}\n" + DOC + a.finalize()

def gen(**kw): return G(**kw).build()
if __name__ == "__main__":
    kw = eval("dict(" + (sys.argv[2] if len(sys.argv) > 2 else "") + ")")
    open(sys.argv[1], "w").write(gen(**kw))
```

```python
KN = "recurrent_scan__gqa_block_cached__swiglu_ffn__decode_kernel"
def gen(W=8, pat="co", D=4, pol="nt", arr="s4 s3 s2 s1 s0 i4 i3 i2 w2 w1 w0 i1 i0", hmap="lo", order="kv", rot=0, boost=None):
    L = []; a = L.append
    nwg = 256
    toks = arr.split()
    if not any(t[0] == 'h' for t in toks): toks = ["h2", "h1", "h0"] + toks
    assert len(toks) == 16, toks
    pos = {t: 15 - n + 10 for n, t in enumerate(toks)}
    nload = 256 // W
    nib = nload.bit_length() - 1
    lds = 0 if pat != "lds" else W*D*1024
    a(f"; @launch grid=({nwg},1,1) block=({W*64},1,1) lds={lds}")
    a('.amdgcn_target "amdgcn-amd-amdhsa--gfx950"')
    a(".text"); a(f".globl {KN}"); a(".p2align 8"); a(f".type {KN},@function"); a(f"{KN}:")
    a(f"s_cmp_ge_u32 s2, {nwg}"); a("s_cbranch_scc1 Lend")
    a("s_memrealtime s[20:21]")
    a("s_load_dwordx4 s[4:7], s[0:1], 8")
    a("s_load_dwordx2 s[8:9], s[0:1], 88")
    a("v_lshrrev_b32 v1, 6, v0"); a("s_nop 0"); a("v_readfirstlane_b32 s3, v1")
    a("v_and_b32 v2, 63, v0")
    if hmap == "lo":
        a("s_and_b32 s27, s2, 7"); a("s_lshr_b32 s28, s2, 3")
    else:
        a("s_lshr_b32 s27, s2, 5"); a("s_and_b32 s28, s2, 31")
    a("s_mov_b32 s10, 0")
    if rot == 1: a("s_mov_b32 s33, s28")
    if rot == 2: a("s_add_u32 s33, s28, s27")
    if rot == 3: a("s_mov_b32 s33, s27")
    if rot == 4: a("s_lshr_b32 s33, s28, 2")
    if rot == 5: a("s_lshr_b32 s33, s28, 2"); a("s_add_u32 s33, s33, s27")
    if rot == 6: a("s_lshr_b32 s33, s28, 3"); a("s_add_u32 s33, s33, s28"); a("s_add_u32 s33, s33, s27")
    if rot: a("s_lshl_b32 s33, s33, 15")
    if boost:
        a(f"s_bitcmp1_b32 s2, {boost[0]}"); a(f"s_cselect_b32 s29, {boost[1]}, 0")
    for t, p in pos.items():
        src = {'h': 's27', 's': 's28', 'w': 's3'}.get(t[0])
        if src is None: continue
        b = int(t[1:])
        a(f"s_bfe_u32 s11, {src}, {(1<<16)|b:#x}"); a(f"s_lshl_b32 s11, s11, {p}"); a("s_or_b32 s10, s10, s11")
    if pat == "q64":
        a("v_bfe_u32 v3, v2, 2, 2"); a("v_lshlrev_b32 v3, 8, v3")
        a("v_lshrrev_b32 v4, 4, v2"); a("v_lshlrev_b32 v4, 6, v4"); a("v_add_u32 v3, v3, v4")
        a("v_and_b32 v4, 3, v2"); a("v_lshlrev_b32 v4, 4, v4"); a("v_add_u32 v3, v3, v4")
    else:
        a("v_lshlrev_b32 v3, 4, v2")
    a("s_waitcnt lgkmcnt(0)")
    a("s_mov_b32 s12, s4"); a("s_mov_b32 s13, s5"); a("s_mov_b32 s14, 0x4000000"); a("s_mov_b32 s15, 0x20000")
    a("s_mov_b32 s16, s6"); a("s_mov_b32 s17, s7"); a("s_mov_b32 s18, 0x4000000"); a("s_mov_b32 s19, 0x20000")
    a(f"s_mul_i32 s24, s3, {D*1024}")
    def ioff(i):
        return sum(((i >> b) & 1) << pos[f"i{b}"] for b in range(nib))
    if order == "kv":
        seq = [(0, i) for i in range(nload)] + [(1, i) for i in range(nload)]
    else:
        g = int(order[3:])
        seq = []
        for q in range(nload//g):
            seq += [(0, q*g+i) for i in range(g)] + [(1, q*g+i) for i in range(g)]
    for n, (t, i) in enumerate(seq):
        srd = "s[12:15]" if t == 0 else "s[16:19]"
        if n >= D: a(f"s_waitcnt vmcnt({D-1})")
        if boost and n >= D - 1:
            a(f"s_cmp_lt_u32 {n}, s29"); a(f"s_cbranch_scc1 Lb{n}"); a(f"s_waitcnt vmcnt({D-2})"); a(f"Lb{n}:")
        slot = n % D
        if rot:
            a(f"s_add_u32 s26, s33, {(i >> 2) << 15}"); a("s_and_b32 s26, s26, 0x38000"); a("s_add_u32 s26, s26, s10"); a(f"s_add_u32 s26, s26, {(i & 3) << 10}")
        else: a(f"s_add_u32 s26, s10, {ioff(i)}")
        if pat == "lds":
            a(f"s_add_u32 s25, s24, {slot*1024}")
            a(f"s_mov_b32 m0, s25")
            a("s_nop 0")
            a(f"buffer_load_dwordx4 v3, {srd}, s26 offen {pol} lds")
        else:
            r = 8 + slot*4
            a(f"buffer_load_dwordx4 v[{r}:{r+3}], v3, {srd}, s26 offen {pol}")
    a("s_waitcnt vmcnt(0)")
    a("s_memrealtime s[22:23]")
    a("s_waitcnt lgkmcnt(0)")
    a("s_getreg_b32 s30, hwreg(HW_REG_XCC_ID)"); a("s_getreg_b32 s31, hwreg(HW_REG_HW_ID)")
    a("s_and_b32 s30, s30, 15"); a("s_lshl_b32 s30, s30, 28"); a("s_and_b32 s31, s31, 0xfffffff"); a("s_or_b32 s21, s30, s31")
    a(f"s_mul_i32 s24, s2, {W}"); a("s_add_u32 s24, s24, s3"); a("s_lshl_b32 s24, s24, 4")
    a(f"s_add_u32 s24, s24, {128<<20}")
    a("v_mov_b32 v4, s20"); a("v_mov_b32 v5, s21"); a("v_mov_b32 v6, s22"); a("v_mov_b32 v7, s23")
    a("v_mov_b32 v1, s24")
    a("s_mov_b64 exec, 1")
    a("global_store_dwordx4 v1, v[4:7], s[8:9]")
    a("Lend:")
    a("s_endpgm")
    nv = max(16, 8 + (D*4 if pat != "lds" else 0))
    nv = (nv+7)//8*8
    a('.section .rodata,"a"'); a(".p2align 6"); a(f".amdhsa_kernel {KN}")
    a(f".amdhsa_next_free_vgpr {nv}"); a(".amdhsa_next_free_sgpr 40"); a(f".amdhsa_accum_offset {nv}")
    a(".amdhsa_group_segment_fixed_size 0"); a(".amdhsa_kernarg_size 96"); a(".amdhsa_user_sgpr_count 2")
    a(".amdhsa_user_sgpr_kernarg_segment_ptr 1"); a(".amdhsa_system_sgpr_workgroup_id_x 1"); a(".end_amdhsa_kernel")
    return "\n".join(L) + "\n"
```
